```python
import torch

def _softmax(x, axis=-1):
    return torch.softmax(x, dim=axis)
def _gelu(x):
    return torch.nn.functional.gelu(x, approximate="tanh")
def _silu(x):
    return torch.nn.functional.silu(x)
def _sigmoid(x):
    return torch.sigmoid(x)
def _layernorm(x, axis=-1, eps=1e-5):
    m = x.mean(dim=axis, keepdim=True)
    v = x.var(dim=axis, keepdim=True, unbiased=False)
    return (x - m) / torch.sqrt(v + eps)
def _scatter_add(tgt, idx, src, axis=0):
    return tgt.clone().index_add_(axis, idx, src)
def _segment_sum(src, seg, n):
    out = torch.zeros((n,) + src.shape[1:], dtype=src.dtype)
    return out.index_add_(0, seg, src)
def _pad(x, pw):
    flat = tuple(v for pair in reversed(pw) for v in pair)
    return torch.nn.functional.pad(x, flat)

kernel_name = 'parallel_sum__softmax_full_mha__mixer_channel_mlp__prompt'

def setup_inputs():

    _w = (lambda a: (lambda t: t.to(torch.bfloat16) if t.is_floating_point() else t)(torch.as_tensor(a)))
    def _A_setup():
        B, S, D = 1, 2048, 512
        return {
            "x": _w((lambda *s: torch.randn(*s, dtype=torch.bfloat16) * 0.05)(B, S, D)),
            "wqkv": _w((lambda *s: torch.randn(*s, dtype=torch.bfloat16) * 0.05)(D, 3 * D)),
            "wo": _w((lambda *s: torch.randn(*s, dtype=torch.bfloat16) * 0.05)(D, D)),
        }
    _A_in = _A_setup()

    def _B_setup():
        B, S, D, F = 1, 2048, 512, 1376
        return {
            "x": _w((lambda *s: torch.randn(*s, dtype=torch.bfloat16) * 0.05)(B, S, D)),
            "w1": _w((lambda *s: torch.randn(*s, dtype=torch.bfloat16) * 3.2)(D, F) * (D ** -0.5)),
            "b1": _w((lambda *s: torch.randn(*s, dtype=torch.bfloat16) * 1.6)(F)),
            "w2": _w((lambda *s: torch.randn(*s, dtype=torch.bfloat16) * 0.05)(F, D) * (F ** -0.5)),
            "b2": _w((lambda *s: torch.randn(*s, dtype=torch.bfloat16) * 0.1)(D)),
        }
    _B_in = _B_setup()

    return {
        "A_x": _A_in["x"],
        "A_wqkv": _A_in["wqkv"],
        "A_wo": _A_in["wo"],
        "B_x": _B_in["x"],
        "B_w1": _B_in["w1"],
        "B_b1": _B_in["b1"],
        "B_w2": _B_in["w2"],
        "B_b2": _B_in["b2"],
    }

def reference(A_x, A_wqkv, A_wo, B_x, B_w1, B_b1, B_w2, B_b2):
    def _A_ref(x, wqkv, wo):
        B, S, D = x.shape
        H = 32; Dh = D // H
        qkv = (lambda x, *d: x.permute(*d))((x @ wqkv).reshape(B, S, 3, H, Dh), 2, 0, 3, 1, 4)
        q, k, v = qkv[0], qkv[1], qkv[2]
        scale = Dh ** -0.5
        scores = torch.einsum("bhqd,bhkd->bhqk", q, k) * scale
        p = _softmax(scores, axis=-1)
        o = torch.einsum("bhqk,bhkd->bhqd", p, v)
        return (lambda x, *d: x.permute(*d))(o, 0, 2, 1, 3).reshape(B, S, D) @ wo

    def _B_ref(x, w1, b1, w2, b2):
        y = _layernorm(x, axis=-1)
        h = _gelu(torch.einsum("bsd,df->bsf", y, w1) + b1)
        return torch.einsum("bsf,fd->bsd", h, w2) + b2

    x = A_x
    xn = _layernorm(x, axis=-1)
    return x + _A_ref(xn, A_wqkv, A_wo) + _B_ref(xn, B_w1, B_b1, B_w2, B_b2)
```

```python
import sys
NAME='parallel_sum__softmax_full_mha__mixer_channel_mlp__prompt'

WS_Q = 0
WS_K = 2<<20
WS_V = 4<<20
WS_O = 6<<20
WS_H = 8<<20
WS_N = 14<<20
WS_SIZE = 16<<20
QSCALE = 0.25*1.4426950408889634

def f2u(f):
    import struct
    return struct.unpack('<I', struct.pack('<f', f))[0]

class Asm:
    def __init__(self):
        self.L=[]; self.vmq=[]
    def __call__(self, s):
        self.L.append('  '+s)
    def c(self, s): self.L.append('  ; '+s)
    def label(self, n): self.L.append(n+':')
    def vm(self, tag, s):
        self.vmq.append(tag); self(s)
    def wait_vm(self, tags):
        if isinstance(tags,str): tags=[tags]
        idx=[i for i,t in enumerate(self.vmq) if t in tags]
        if not idx: return
        last=max(idx); n=len(self.vmq)-1-last
        assert n<=63
        self(f's_waitcnt vmcnt({n})')
        self.vmq=self.vmq[last+1:]
    def text(self): return '\n'.join(self.L)

STAMP=False
STAMP2=False
STAMP3=False
STAMP4=False
force2=[False]
WS_T=15<<20
def stamp(a, i, force=False):
    if not STAMP: return
    if STAMP2 and not force2[0]: return
    a(f's_memtime s[{66+2*i}:{67+2*i}]')
def stamp_flush(a, n, sWS, wavereg='s36', lanereg='v1'):
    if not STAMP: return
    a('s_waitcnt lgkmcnt(0)')
    a(f's_lshl_b32 s98, s2, 3')
    a(f's_add_u32 s98, s98, {wavereg}')
    a(f's_lshl_b32 s98, s98, 6')
    a(f's_add_u32 s98, s98, {WS_T}')
    a('v_mov_b32 v2, 0')
    for i in range(n):
        a(f'v_mov_b32 v3, s{66+2*i}')
        a(f's_mov_b64 exec, 1')
        a(f'buffer_store_dword v3, v2, s[{sWS}:{sWS+3}], s98 offen offset:{4*i}')
        a(f's_mov_b64 exec, -1')
        a('s_nop 1')

def code_prefetch(e, nkb, wave_sreg, nwaves, dst, endlabel, tag, lane='v1', tmp='v9'):
    per_wave=-(-nkb//(8*nwaves))
    e('s_getpc_b64 s[62:63]')
    e.label(f'PF_{tag}')
    e('s_lshr_b32 s60, s2, 3')
    e('s_and_b32 s60, s60, 7')
    e(f's_mul_i32 s60, s60, {nwaves}')
    e(f's_add_u32 s60, s60, {wave_sreg}')
    e(f's_mul_i32 s60, s60, {per_wave*1024}')
    e(f'v_lshlrev_b32 {tmp}, 4, {lane}')
    e(f'v_add_u32 {tmp}, s60, {tmp}')
    for i in range(per_wave):
        if i: e(f'v_add_u32 {tmp}, 1024, {tmp}')
        e(f'v_min_u32 v{dst+4}, {endlabel}-PF_{tag}-16, {tmp}')
        e(f'global_load_dwordx4 v[{dst}:{dst+3}], v{dst+4}, s[62:63]')

def R(a,n=1):
    return f'v{a}' if n==1 else f'v[{a}:{a+n-1}]'
def S(a,n=1):
    return f's{a}' if n==1 else f's[{a}:{a+n-1}]'

def srd(a, d, ptr, size, off=0):
    if off:
        a(f's_add_u32 s{d}, s{ptr}, {off}')
        a(f's_addc_u32 s{d+1}, s{ptr+1}, 0')
    else:
        a(f's_mov_b32 s{d}, s{ptr}')
        a(f's_mov_b32 s{d+1}, s{ptr+1}')
    a(f's_mov_b32 s{d+2}, {size}')
    a(f's_mov_b32 s{d+3}, 0x00020000')

SLOT=28672
XS=16384
WST=12288
W1_SPARE=5*SLOT
SCR=W1_SPARE+WST
L_A  =SCR
L_MU =SCR+512
L_CS =SCR+1024
L_CS1=SCR+1536
L_B1 =SCR+2048
L_A2 =SCR+2560
L_A2M=SCR+3072
LDS_K1=163840
W1_ADDR=[W1_SPARE, 3*SLOT, 3*SLOT+WST, 4*SLOT, 4*SLOT+WST, 0, WST, SLOT]
A_SLOT=[0,1,2,3,4,0,1,2]

def pk(op, d, a_, b_, c_=None, bsel=None, csel=None, neg=None):
    ops=[a_,b_]+([c_] if c_ is not None else [])
    n=len(ops)
    txt=[ (f'v[{o}:{o+1}]' if isinstance(o,int) else o) for o in ops]
    hi=[1]*n
    if bsel=='lo': hi[1]=0
    if csel=='lo': hi[2]=0
    s_=f'v_pk_{op}_f32 v[{d}:{d+1}], '+', '.join(txt)
    if hi!=[1]*n: s_+=' op_sel_hi:['+','.join(map(str,hi))+']'
    if neg: s_+=' '+neg
    return s_

def gen_k1(fused=False):
    a=Asm()
    sX,sWQ,sW1,sWS,sB1=16,20,24,28,32
    a('s_cmp_ge_u32 s2, 256')
    a('s_cbranch_scc1 K1_END')
    stamp(a,0)
    a('s_load_dwordx4 s[4:7], s[0:1], 0')
    a('s_load_dwordx4 s[8:11], s[0:1], 32')
    a('s_load_dwordx2 s[12:13], s[0:1], 80')
    a('v_and_b32 v1, 63, v0')
    a('v_lshrrev_b32 v2, 6, v0')
    a('s_and_b32 s40, s2, 7')
    a('v_readfirstlane_b32 s36, v2')
    a('s_lshr_b32 s41, s2, 3')
    a('s_and_b32 s42, s40, 1')
    a('s_lshr_b32 s43, s40, 1')
    a('s_lshl_b32 s42, s42, 3')
    a('s_and_b32 s44, s41, 7')
    a('s_add_u32 s38, s42, s44')
    a('s_lshl_b32 s43, s43, 2')
    a('s_lshr_b32 s44, s41, 3')
    a('s_add_u32 s39, s43, s44')
    a('s_and_b32 s37, s36, 3')
    a('v_and_b32 v3, 31, v1')
    a('v_lshrrev_b32 v4, 5, v1')
    a('s_cmp_ge_u32 s36, 4')
    a('s_cbranch_scc1 K1_G1')

    def common_lds_addr(e):
        e('v_bfe_u32 v5, v1, 1, 3')
        e('v_xor_b32 v5, v5, v4')
        e('v_lshlrev_b32 v5, 4, v5')
        e('s_lshl_b32 s40, s37, 12')
        e('v_lshlrev_b32 v6, 7, v3')
        e('v_add3_u32 v12, v6, v5, s40')
        e('v_xor_b32 v13, 32, v12')
        e('v_xor_b32 v14, 64, v12')
        e('v_xor_b32 v15, 0x60, v12')
        e('v_lshlrev_b32 v6, 3, v4')
        e('v_bfe_u32 v7, v1, 2, 2')
        e('v_add_u32 v6, v6, v7')
        e('v_mul_u32_u24 v6, 192, v6')
        e('v_bfe_u32 v7, v1, 4, 1')
        e('v_lshlrev_b32 v7, 5, v7')
        e('v_and_b32 v8, 3, v1')
        e('v_lshlrev_b32 v8, 3, v8')
        e('v_add3_u32 v16, v6, v7, v8')

    g=Asm()
    accQ,accK,accV=64,80,96
    FS0=[128,144,160,176]
    code_prefetch(g, 32, 's37', 4, 200, 'K1_END', 'k1')
    common_lds_addr(g)
    for r in range(64,112): g(f'v_mov_b32 v{r}, 0')
    for r in range(FS0[2],FS0[2]+32): g(f'v_mov_b32 v{r}, 0')
    g(f'v_add_u32 v17, {XS}, v16')
    g('s_mov_b32 s50, 0')
    g('s_mov_b32 s51, 0')
    g(f's_mov_b32 s53, {(-4*SLOT)&0xffffffff:#x}')
    g(f's_mov_b32 s54, {SLOT}')
    g('s_lshl_b32 s40, s37, 7')
    g('v_lshlrev_b32 v20, 2, v3')
    g('v_add_u32 v20, s40, v20')
    g(f'v_add_u32 v20, {L_A}, v20')
    g('v_lshlrev_b32 v23, 4, v4')
    g(f'v_add_u32 v24, {L_CS}, v23')
    g('v_lshlrev_b32 v25, 2, v3')
    g(f'v_add_u32 v25, {L_CS+64*4}, v25')
    g('v_add_u32 v27, s40, v23')
    g(f'v_add_u32 v27, {L_A}, v27')
    g('s_lshl_b32 s41, s38, 2')
    g('s_add_u32 s41, s41, s37')
    g('s_lshl_b32 s42, s41, 10')
    g('s_lshl_b32 s43, s39, 17')
    g('s_add_u32 s42, s42, s43')
    g('s_add_u32 s43, s42, 65536')
    g(f's_add_u32 s44, s42, {WS_K}')
    g(f's_add_u32 s45, s43, {WS_K}')
    g(f's_add_u32 s46, s42, {WS_V}')
    g('v_lshlrev_b32 v28, 4, v1')
    g('v_and_b32 v29, 0x13, v3')
    g('v_bfe_u32 v30, v3, 2, 1')
    g('v_lshlrev_b32 v30, 3, v30')
    g('v_bfe_u32 v31, v3, 3, 1')
    g('v_lshlrev_b32 v31, 2, v31')
    g('v_or3_b32 v29, v29, v30, v31')
    g('v_lshlrev_b32 v30, 5, v4')
    g('v_add_u32 v29, v29, v30')
    g('v_lshlrev_b32 v29, 4, v29')
    g('v_bfe_u32 v30, v3, 4, 1')
    g('v_lshlrev_b32 v30, 16, v30')
    g('v_lshlrev_b32 v31, 8, v4')
    g('v_and_b32 v32, 15, v3')
    g('v_lshlrev_b32 v32, 4, v32')
    g('v_add3_u32 v30, v30, v31, v32')
    g('s_lshl_b32 s56, s39, 10')
    g('s_lshl_b32 s57, s41, 2')
    g('s_add_u32 s56, s56, s57')
    g(f's_add_u32 s56, s56, {WS_N}')
    g('v_lshlrev_b32 v31, 8, v1')
    g('s_waitcnt lgkmcnt(0)')
    srd(g,sWS,12,WS_SIZE)
    def readlist(set_, ks):
        L=[f'ds_read_b128 {R(set_,4)}, v{12+ks}']
        for t in range(3):
            for e in range(2):
                L.append(f'ds_read_b64_tr_b16 {R(set_+4+4*t+2*e,2)}, v17 offset:{ks*3072+e*768+t*64}')
        return L
    def mfmalist(set_):
        return [f'v_mfma_f32_32x32x16_bf16 {R(accQ,16)}, {R(set_+4,4)}, {R(set_,4)}, {R(accQ,16)}',
                f'v_mfma_f32_32x32x16_bf16 {R(accK,16)}, {R(set_+8,4)}, {R(set_,4)}, {R(accK,16)}',
                f'v_mfma_f32_32x32x16_bf16 {R(accV,16)}, {R(set_,4)}, {R(set_+12,4)}, {R(accV,16)}']
    stamp(g,1)
    for st in range(8):
        g('s_barrier')
        if st==0: stamp(g,2)
        for ks in range(4):
            rl=readlist(FS0[ks],ks); ml=mfmalist(FS0[(ks+2)%4])
            if st==0 and ks<2:
                for r_ in rl: g(r_)
                continue
            g('s_waitcnt lgkmcnt(7)')
            g(ml[0]); g(rl[0]); g(rl[1]); g(rl[2])
            g(ml[1]); g(rl[3]); g(rl[4])
            g(ml[2]); g(rl[5]); g(rl[6])
        if st<7:
            sr='s54' if A_SLOT[st+1]>A_SLOT[st] else 's53'
            for r in (12,13,14,15,17): g(f'v_add_u32 v{r}, {sr}, v{r}')
    g('s_waitcnt lgkmcnt(7)')
    for m in mfmalist(FS0[2]): g(m)
    g('s_waitcnt lgkmcnt(0)')
    for m in mfmalist(FS0[3]): g(m)
    stamp(g,3)
    g('s_barrier')
    stamp(g,4)
    g.c('QKV epilogue')
    CSQ=128; CSK=144; AV=160; MV=176
    g('ds_read_b32 v21, v20')
    g(f'ds_read_b32 v22, v20 offset:{L_MU-L_A}')
    for T,base in ((0,CSQ),(1,CSK)):
        for gg in range(4):
            g(f'ds_read_b128 {R(base+4*gg,4)}, v24 offset:{(32*T+8*gg)*4}')
    g('ds_read_b32 v26, v25')
    g('s_waitcnt lgkmcnt(9)')
    g(f'v_mul_f32 v34, {f2u(QSCALE):#x}, v21')
    g('v_mul_f32 v38, v21, v22')
    g('v_mul_f32 v36, v34, v22')
    g('v_mov_b32 v40, v21')
    for gg in range(4):
        g(f'ds_read_b128 {R(AV+4*gg,4)}, v27 offset:{8*gg*4}')
        g(f'ds_read_b128 {R(MV+4*gg,4)}, v27 offset:{8*gg*4+L_MU-L_A}')
    g('s_waitcnt lgkmcnt(13)')
    for r in range(16):
        g(f'v_mul_f32 v{CSQ+r}, v{CSQ+r}, v36')
    for r in range(16):
        g(f'v_fma_f32 v{accQ+r}, v{accQ+r}, v34, -v{CSQ+r}')
    for i in range(8):
        g(f'v_cvt_pk_bf16_f32 v{CSQ+i}, v{accQ+2*i}, v{accQ+2*i+1}')
    g(f'buffer_store_dwordx4 {R(CSQ,4)}, v28, s[{sWS}:{sWS+3}], s42 offen')
    g(f'buffer_store_dwordx4 {R(CSQ+4,4)}, v28, s[{sWS}:{sWS+3}], s43 offen')
    g('s_waitcnt lgkmcnt(8)')
    for r in range(16):
        g(f'v_mul_f32 v{CSK+r}, v{CSK+r}, v38')
    for r in range(16):
        g(f'v_fma_f32 v{accK+r}, v{accK+r}, v40, -v{CSK+r}')
    for i in range(8):
        g(f'v_cvt_pk_bf16_f32 v{CSK+i}, v{accK+2*i}, v{accK+2*i+1}')
    g(f'buffer_store_dwordx4 {R(CSK,4)}, v29, s[{sWS}:{sWS+3}], s44 offen')
    g(f'buffer_store_dwordx4 {R(CSK+4,4)}, v29, s[{sWS}:{sWS+3}], s45 offen')
    g('s_waitcnt lgkmcnt(0)')
    for r in range(16):
        g(f'v_fma_f32 v{accV+r}, -v{MV+r}, v26, v{accV+r}')
    for r in range(16):
        g(f'v_mul_f32 v{accV+r}, v{accV+r}, v{AV+r}')
    for i in range(8):
        g(f'v_cvt_pk_bf16_f32 v{AV+i}, v{accV+2*i}, v{accV+2*i+1}')
    g(f'buffer_store_dwordx4 {R(AV,4)}, v30, s[{sWS}:{sWS+3}], s46 offen')
    g(f'buffer_store_dwordx4 {R(AV+4,4)}, v30, s[{sWS}:{sWS+3}], s46 offen offset:512')
    g(f'v_mul_f32 v42, v{accK}, v{accK}'); g(f'v_mul_f32 v43, v{accK+1}, v{accK+1}')
    g(f'v_mul_f32 v44, v{accK+8}, v{accK+8}'); g(f'v_mul_f32 v45, v{accK+9}, v{accK+9}')
    for i in range(2,8):
        g(f'v_fmac_f32 v{42+(i&1)}, v{accK+i}, v{accK+i}'); g(f'v_fmac_f32 v{44+(i&1)}, v{accK+8+i}, v{accK+8+i}')
    g(f'v_max3_f32 v38, |v{accV}|, |v{accV+1}|, |v{accV+2}|')
    g('v_add_f32 v36, v42, v43')
    g('v_add_f32 v37, v44, v45')
    for r in range(3,15,2):
        g(f'v_max3_f32 v38, v38, |v{accV+r}|, |v{accV+r+1}|')
    g(f'v_max_f32 v38, v38, |v{accV+15}|')
    g('v_mov_b32 v40, v36')
    g('v_mov_b32 v41, v37')
    g('s_nop 1')
    g('v_permlane32_swap_b32 v36, v40')
    g('v_permlane32_swap_b32 v37, v41')
    g('s_nop 1')
    g('v_add_f32 v36, v36, v40')
    g('v_add_f32 v37, v37, v41')
    def dppmax(regs, ctrl):
        for r in regs:
            g(f'v_max_f32_dpp v{r}, v{r}, v{r} {ctrl}')
    g('s_nop 1')
    for sh in (1,2,4,8):
        dppmax((36,37,38), f'row_shr:{sh} row_mask:0xf bank_mask:0xf')
    dppmax((36,37), 'row_bcast:15 row_mask:0xa bank_mask:0xf')
    g('s_nop 1')
    g('v_readlane_b32 s50, v36, 31')
    g('v_readlane_b32 s51, v37, 31')
    g('v_readlane_b32 s52, v38, 15')
    g('v_readlane_b32 s53, v38, 47')
    g('v_readlane_b32 s54, v38, 31')
    g('v_readlane_b32 s55, v38, 63')
    g('s_nop 1')
    g('s_max_u32 s52, s52, s53')
    g('s_max_u32 s54, s54, s55')
    g('v_mov_b32 v40, s50')
    g('v_writelane_b32 v40, s52, 1')
    g('v_writelane_b32 v40, s51, 2')
    g('v_writelane_b32 v40, s54, 3')
    g('s_mov_b64 exec, 15')
    g(f'buffer_store_dword v40, v31, s[{sWS}:{sWS+3}], s56 offen')
    g('s_mov_b64 exec, -1')
    stamp(g,5)
    if STAMP: g('s_waitcnt vmcnt(0)')
    stamp(g,6)
    stamp_flush(g,16 if STAMP4 else 7,sWS)
    g('s_endpgm')

    h=Asm()
    h.label('K1_G1')
    h('s_setprio 2')
    XF=128
    h('s_mul_i32 s45, s39, 3')
    h('s_lshl_b32 s46, s39, 1')
    h('s_add_u32 s46, s46, 11')
    h('s_cmp_lt_u32 s39, 11')
    h('s_cselect_b32 s47, s45, s46')
    h('s_cselect_b32 s48, 3, 2')
    h('v_lshrrev_b32 v20, 3, v1')
    h('v_and_b32 v21, 7, v1')
    h('v_lshrrev_b32 v22, 4, v1')
    h('v_xor_b32 v21, v21, v22')
    h('v_lshlrev_b32 v20, 10, v20')
    h('v_lshlrev_b32 v22, 4, v21')
    h('v_add_u32 v2, v20, v22')
    h('v_xor_b32 v22, 64, v22')
    h('v_add_u32 v22, 7168, v22')
    h('v_add_u32 v18, v20, v22')
    h('v_add_u32 v19, 14336, v2')
    h('v_add_u32 v20, 14336, v18')
    VX=[2,18,19,20]
    VW=[21,22,23]; VW1=[24,25,26]
    for p in range(3):
        h(f'v_add_u32 v27, {64*p}, v1')
        h('v_mul_u32_u24 v28, 43691, v27')
        h('v_lshrrev_b32 v28, 19, v28')
        h('v_mul_u32_u24 v29, 12, v28')
        h('v_sub_u32 v29, v27, v29')
        h('v_lshrrev_b32 v30, 2, v29')
        h('v_lshlrev_b32 v30, 10, v30')
        h('v_and_b32 v31, 3, v29')
        h('v_lshlrev_b32 v31, 4, v31')
        h('v_mul_u32_u24 v32, 3072, v28')
        h(f'v_add3_u32 v{VW[p]}, v32, v30, v31')
        if p: h(f'v_subrev_u32 v{VW[p]}, {1024*p}, v{VW[p]}')
        h('v_mul_u32_u24 v32, 2752, v28')
        h('v_lshlrev_b32 v31, 4, v29')
        h(f'v_add_u32 v{VW1[p]}, v32, v31')
        if p: h(f'v_subrev_u32 v{VW1[p]}, {1024*p}, v{VW1[p]}')
    h('s_lshl_b32 s50, s38, 17')
    h('s_lshl_b32 s51, s37, 15')
    h('s_add_u32 s50, s50, s51')
    h('s_mul_i32 s51, s37, 49152')
    h('s_lshl_b32 s52, s39, 6')
    h('s_add_u32 s51, s51, s52')
    h('s_mul_i32 s52, s37, 44032')
    h('s_lshl_b32 s53, s47, 6')
    h('s_add_u32 s52, s52, s53')
    h('s_lshl_b32 s53, s37, 12')
    h('s_mul_i32 s54, s37, 3072')
    h('s_lshl_b32 s56, s47, 6')
    h('s_waitcnt lgkmcnt(0)')
    srd(h,sX,4,2048*512*2); srd(h,sWQ,6,512*1536*2); srd(h,sW1,8,512*1376*2); srd(h,sWS,12,WS_SIZE); srd(h,sB1,10,1376*2)
    h('s_and_b32 s58, s39, 3')
    h('s_lshl_b32 s58, s58, 1')
    h('s_add_u32 s58, s58, s38')
    h('s_and_b32 s58, s58, 7')
    def dmaA(st):
        slot=A_SLOT[st]*SLOT; L=[]
        L.append((f's_add_u32 s46, s58, {st}',None))
        L.append(('s_and_b32 s46, s46, 7',None))
        L.append((f's_add_u32 m0, s53, {slot}',None))
        L.append(('s_lshl_b32 s55, s46, 7',None))
        L.append(('s_add_u32 s55, s55, s50',None))
        for i in range(4):
            L.append((f'buffer_load_dwordx4 v{VX[i]}, s[{sX}:{sX+3}], s55 offen offset:{1024*i} lds',f'A{st}'))
        L.append((f's_add_u32 m0, s54, {slot+XS}',None))
        L.append((f's_mul_i32 s55, s46, {64*3072}',None))
        L.append(('s_add_u32 s55, s55, s51',None))
        for p in range(3):
            L.append((f'buffer_load_dwordx4 v{VW[p]}, s[{sWQ}:{sWQ+3}], s55 offen offset:{1024*p} lds',f'A{st}'))
        return L
    def dmaB(st):
        L=[]
        L.append((f's_add_u32 s46, s58, {st}',None))
        L.append(('s_and_b32 s46, s46, 7',None))
        L.append((f's_add_u32 m0, s54, {W1_ADDR[st]}',None))
        L.append((f's_mul_i32 s55, s46, {64*2752}',None))
        L.append(('s_add_u32 s55, s55, s52',None))
        for p in range(3):
            L.append((f'buffer_load_dwordx4 v{VW1[p]}, s[{sW1}:{sW1+3}], s55 offen offset:{1024*p} lds',f'B{st}'))
        return L
    def emit_mixed(e, dmas, valus):
        nvm=sum(1 for x in dmas if x[1])
        per=(len(valus)+max(nvm,1)-1)//max(nvm,1) if nvm else 0
        vi=0
        for (ins,tag) in dmas:
            if tag:
                e.vm(tag,ins)
                for _ in range(per):
                    if vi<len(valus): e(valus[vi]); vi+=1
            else: e(ins)
        while vi<len(valus): e(valus[vi]); vi+=1
    stamp(h,1)
    NINIT=3
    for st in range(NINIT): emit_mixed(h,dmaA(st),[])
    stamp(h,2)
    common_lds_addr(h)
    h('v_lshlrev_b32 v27, 2, v1')
    h.vm('b1', f'buffer_load_dword v31, v27, s[{sB1}:{sB1+3}], s56 offen')
    h('s_cmp_eq_u32 s37, 3')
    h('s_cselect_b32 s57, 0, s37')
    h('s_lshl_b32 s40, s57, 6')
    h(f's_add_u32 s40, s40, {XS}')
    h('v_add_u32 v17, s40, v16')
    PAT=112; ONES=8; SUMA=[116,120]; GRA=[124,104]; CSA=108
    h('v_and_b32 v27, 15, v1')
    h('v_bfe_u32 v28, v1, 4, 1')
    h('v_cmp_eq_u32 vcc, v27, v28')
    h('v_mov_b32 v29, 0x3f803f80')
    h(f'v_cndmask_b32 v{PAT}, 0, v29, vcc')
    for r in range(1,4): h(f'v_mov_b32 v{PAT+r}, v{PAT}')
    for r in range(4): h(f'v_mov_b32 v{ONES+r}, v29')
    for b in SUMA+GRA+[CSA]:
        for r in range(4): h(f'v_mov_b32 v{b+r}, 0')
    h('v_lshrrev_b32 v28, 4, v1')
    h('v_bfe_u32 v29, v1, 1, 3')
    h('v_xor_b32 v28, v28, v29')
    h('v_lshlrev_b32 v28, 4, v28')
    h('v_lshlrev_b32 v27, 7, v27')
    h('s_lshl_b32 s40, s37, 12')
    h('v_add3_u32 v5, v27, v28, s40')
    h('v_xor_b32 v6, 64, v5')
    TMP=40; XS16=56
    h(f's_mov_b32 s59, {SLOT}')
    h(f's_mov_b32 s49, {(-4*SLOT)&0xffffffff:#x}')
    sched={0:dmaA(3)+dmaA(4), 1:dmaB(0), 2:dmaA(5), 3:dmaA(6), 4:dmaA(7), 5:dmaB(1)+dmaB(2), 6:dmaB(3)+dmaB(4), 7:dmaB(5)+dmaB(6)}
    for st in range(8):
        if STAMP2 and not STAMP3: force2[0]=True; stamp(h,2*st); force2[0]=False
        h.wait_vm(f'A{st}')
        h('s_barrier')
        if STAMP2 and not STAMP3: force2[0]=True; stamp(h,2*st+1); force2[0]=False
        if st==0 and not STAMP2: stamp(h,3)
        dm=sched[st]
        for u in range(2):
            for kk in range(2):
                h(f'ds_read_b128 {R(XS16+8*u+4*kk,4)}, v{5+kk} offset:{2048*u}')
        for ks in range(4):
            for e in range(2):
                h(f'ds_read_b64_tr_b16 {R(TMP+4*ks+2*e,2)}, v17 offset:{ks*3072+e*768}')
        k=0; nv=0
        while nv<2 and k<len(dm):
            if dm[k][1]: h.vm(dm[k][1],dm[k][0]); nv+=1
            else: h(dm[k][0])
            k+=1
        val=['s_waitcnt lgkmcnt(8)']
        for u in range(2):
            for kk in range(2):
                x=XS16+8*u+4*kk
                val.append(f'v_mfma_f32_16x16x32_bf16 {R(SUMA[u],4)}, {R(ONES,4)}, {R(x,4)}, {R(SUMA[u],4)}')
                val.append(f'ds_read_b128 {R(XF+16*st+4*(2*u+kk),4)}, v{12+2*u+kk}')
                val.append(f'v_mfma_f32_16x16x32_bf16 {R(GRA[u],4)}, {R(x,4)}, {R(x,4)}, {R(GRA[u],4)}')
        val.append('s_waitcnt lgkmcnt(4)')
        for ks in range(4):
            val.append(f'v_mfma_f32_16x16x32_bf16 {R(CSA,4)}, {R(TMP+4*ks,4)}, {R(PAT,4)}, {R(CSA,4)}')
        if st<7:
            d=(A_SLOT[st+1]-A_SLOT[st])*SLOT
            sr='s59' if d==SLOT else 's49'
            for r in (12,13,14,15,17,5,6): val.append(f'v_add_u32 v{r}, {sr}, v{r}')
        h(val.pop(0))
        rest=dm[k:]; vi=0
        for (ins,tag) in rest:
            if tag:
                for _ in range(2):
                    if vi<len(val): h(val[vi]); vi+=1
                h.vm(tag,ins)
            else: h(ins)
        while vi<len(val): h(val[vi]); vi+=1
    h('s_waitcnt lgkmcnt(0)')
    h('v_and_b32 v27, 3, v1')
    h('v_cmp_eq_u32 vcc, 1, v27')
    h('v_cmp_eq_u32 s[40:41], 2, v27')
    h('v_cmp_eq_u32 s[42:43], 3, v27')
    h('v_and_b32 v28, 15, v1')
    h('v_lshlrev_b32 v28, 2, v28')
    h('s_lshl_b32 s44, s37, 7')
    h('v_add_u32 v28, s44, v28')
    h(f'v_add_u32 v28, {L_A}, v28')
    for u in range(2):
        gr=GRA[u]; q=32+2*u
        h(f'v_cndmask_b32 v{q}, v{gr}, v{gr+1}, vcc')
        h(f'v_cndmask_b32 v{q}, v{q}, v{gr+2}, s[40:41]')
        h(f'v_cndmask_b32 v{q}, v{q}, v{gr+3}, s[42:43]')
    for u in range(2):
        q=32+2*u; m=SUMA[u]
        h(f'v_mul_f32 v{m}, {f2u(1/512):#x}, v{m}')
        h(f'v_mul_f32 v{q}, {f2u(1/512):#x}, v{q}')
    for u in range(2):
        q=32+2*u; m=SUMA[u]
        h(f'v_fma_f32 v{q}, -v{m}, v{m}, v{q}')
        h(f'v_max_f32 v{q}, 0, v{q}')
        h(f'v_add_f32 v{q+1}, {f2u(1e-5):#x}, v{q}')
    for u in range(2):
        q=32+2*u
        h(f'v_rsq_f32 v{q+1}, v{q+1}')
    h('s_nop 0')
    for u in range(2):
        q=32+2*u; m=SUMA[u]
        h(f'v_mul_f32 v{m+1}, v{q+1}, v{q+1}')
        h(f'v_mul_f32 v{m+1}, v{m+1}, v{q}')
        h(f'v_add_f32 v{m+1}, {f2u(1e-5):#x}, v{m+1}')
    for u in range(2):
        m=SUMA[u]
        h(f'v_rsq_f32 v{m+1}, v{m+1}')
    h('s_mov_b32 s40, 0x00f0000f')
    h('s_mov_b32 s41, 0xf0000f00')
    for u in range(2):
        q=32+2*u; m=SUMA[u]
        h(f'v_mul_f32 v{m+2}, v{m+1}, v{q+1}')
        h(f'v_mul_f32 v{m+3}, v{m+2}, v{m}')
    h('s_mov_b64 exec, s[40:41]')
    for u in range(2):
        q=32+2*u; m=SUMA[u]
        h(f'ds_write_b32 v28, v{q+1} offset:{64*u}')
        h(f'ds_write_b32 v28, v{m} offset:{64*u+L_MU-L_A}')
        h(f'ds_write_b32 v28, v{m+2} offset:{64*u+L_A2-L_A}')
        h(f'ds_write_b32 v28, v{m+3} offset:{64*u+L_A2M-L_A}')
    h('s_mov_b64 exec, -1')
    h('v_and_b32 v29, 15, v1')
    h('v_lshlrev_b32 v29, 6, v29')
    h('v_lshrrev_b32 v30, 4, v1')
    h('v_lshlrev_b32 v30, 4, v30')
    h('s_lshl_b32 s41, s57, 7')
    h('v_add3_u32 v29, v29, v30, s41')
    h(f'v_add_u32 v29, {L_CS}, v29')
    h('s_mov_b32 s60, 0x00030003')
    h('s_mov_b32 s61, 0x00030003')
    h('s_mov_b64 exec, s[60:61]')
    h(f'ds_write_b128 v29, {R(CSA,4)}')
    h('s_mov_b64 exec, -1')
    h('v_lshlrev_b32 v27, 2, v3')
    h('v_add_u32 v28, s44, v27')
    h(f'v_add_u32 v28, {L_A2}, v28')
    h('s_waitcnt lgkmcnt(0)')
    h('ds_read_b32 v38, v28')
    h(f'ds_read_b32 v30, v28 offset:{L_A2M-L_A2}')
    h.wait_vm('b1')
    h('v_lshlrev_b32 v34, 16, v31')
    h('v_and_b32 v35, 0xffff0000, v31')
    h('v_lshlrev_b32 v28, 3, v1')
    h(f'v_add_u32 v28, {L_B1}, v28')
    h('v_cmp_gt_u32 vcc, 48, v1')
    h('s_and_saveexec_b64 s[44:45], vcc')
    h('ds_write_b64 v28, v[34:35]')
    h('s_mov_b64 exec, s[44:45]')
    ACC=[64,80,96]
    for r in range(64,112): h(f'v_mov_b32 v{r}, 0')
    FS=[40,52,112]
    for sl in range(3):
        h(f's_add_u32 s40, s37, {sl}')
        h('s_cmp_ge_u32 s40, 3')
        h('s_cselect_b32 s41, 3, 0')
        h('s_sub_u32 s40, s40, s41')
        h('s_cmp_ge_u32 s40, 3')
        h('s_cselect_b32 s41, 3, 0')
        h('s_sub_u32 s40, s40, s41')
        h(f's_mov_b32 s{62+sl}, s40')
        h('s_lshl_b32 s40, s40, 6')
        h(f'v_add_u32 v{12+sl}, s40, v16')
    PAT2=8; CS1A=124
    for r in range(4):
        h(f'v_mov_b32 v{PAT2+r}, v{PAT}')
        h(f'v_mov_b32 v{CS1A+r}, 0')
    cur=[0]
    def setbase(st):
        d=W1_ADDR[st]-cur[0]
        if d:
            for sl in range(3): h(f'v_add_u32 v{12+sl}, {d&0xffffffff:#x}, v{12+sl}')
        cur[0]=W1_ADDR[st]
    def readsB(n):
        st,ks=divmod(n,4); fs=FS[n%3]
        if ks==0: setbase(st)
        for sl in range(3):
            for e in range(2):
                h(f'ds_read_b64_tr_b16 {R(fs+4*sl+2*e,2)}, v{12+sl} offset:{ks*3072+e*768}')
    def mfmaB(n):
        fs=FS[n%3]
        for sl in range(3):
            h(f'v_mfma_f32_32x32x16_bf16 {R(ACC[sl],16)}, {R(fs+4*sl,4)}, {R(XF+4*n,4)}, {R(ACC[sl],16)}')
            if sl==1:
                h(f'v_mfma_f32_16x16x32_bf16 {R(CS1A,4)}, {R(fs,4)}, {R(PAT2,4)}, {R(CS1A,4)}')
    h.wait_vm(['B0','B1'])
    h('s_waitcnt lgkmcnt(0)')
    stamp(h,4)
    h('s_barrier')
    stamp(h,5)
    if STAMP: h('s_waitcnt lgkmcnt(0)')
    bar={8:['B2','B3','B4','B5'], 24:['B6','B7']}
    emit_mixed(h,dmaB(7),[])
    readsB(0); readsB(1)
    for n in range(32):
        m=n+2
        last_issued=min(n+1,31)
        if m<32 and m in bar:
            h('s_waitcnt lgkmcnt(0)')
            stamp(h,9 if m==8 else 11)
            h.wait_vm(bar[m])
            h('s_barrier')
            stamp(h,10 if m==8 else 12)
            if STAMP: h('s_waitcnt lgkmcnt(0)')
            readsB(m)
        elif m<32:
            h('s_waitcnt lgkmcnt(6)')
            readsB(m)
        elif m==32:
            h('s_waitcnt lgkmcnt(6)')
        else:
            h('s_waitcnt lgkmcnt(0)')
        mfmaB(n)
    h('v_and_b32 v29, 15, v1')
    h('v_lshlrev_b32 v29, 6, v29')
    h('v_lshrrev_b32 v27, 4, v1')
    h('v_lshlrev_b32 v27, 4, v27')
    h('s_lshl_b32 s41, s62, 7')
    h('v_add3_u32 v29, v29, v27, s41')
    h(f'v_add_u32 v29, {L_CS1}, v29')
    h('s_nop 1')
    h('s_mov_b64 exec, s[60:61]')
    h(f'ds_write_b128 v29, {R(CS1A,4)}')
    h('s_mov_b64 exec, -1')
    h('s_waitcnt lgkmcnt(0)')
    h('s_barrier')
    stamp(h,6)
    C1=-2*1.4426950408889634*0.7978845608028654
    C2=C1*0.044715
    h(f'v_mov_b32 v32, {f2u(C1):#x}')
    h(f'v_mov_b32 v34, {f2u(C2):#x}')
    h('v_mov_b32 v36, 1.0')
    h('v_lshlrev_b32 v23, 4, v4')
    h('v_lshlrev_b32 v28, 4, v1')
    h('s_lshl_b32 s41, s38, 2')
    h('s_add_u32 s41, s41, s37')
    h('s_mul_i32 s41, s41, 86')
    CSR=[128,160,192]; B1R=[144,176,208]
    for sl in range(3):
        h(f's_lshl_b32 s40, s{62+sl}, 7')
        h('v_add_u32 v24, s40, v23')
        h(f'v_add_u32 v24, {L_CS1}, v24')
        for gg in range(4):
            h(f'ds_read_b128 {R(CSR[sl]+4*gg,4)}, v24 offset:{8*gg*4}')
            h(f'ds_read_b128 {R(B1R[sl]+4*gg,4)}, v24 offset:{8*gg*4+L_B1-L_CS1}')
        if sl==0: h('s_waitcnt lgkmcnt(0)')
    for sl in range(3):
        acc=ACC[sl]; cs=CSR[sl]; b1=B1R[sl]
        lab=f'K1_SKIP{sl}'
        h(f's_cmp_ge_u32 s{62+sl}, s48')
        h(f's_cbranch_scc1 {lab}')
        h(f's_add_u32 s42, s47, s{62+sl}')
        h('s_lshl_b32 s42, s42, 1')
        h('s_add_u32 s42, s42, s41')
        h('s_lshl_b32 s42, s42, 10')
        h(f's_add_u32 s42, s42, {WS_H}')
        if sl==1: h('s_waitcnt lgkmcnt(0)')
        for i in range(8): h(pk('fma',b1+2*i,cs+2*i,30,b1+2*i,bsel='lo',neg='neg_lo:[1,0,0] neg_hi:[1,0,0]'))
        for i in range(8): h(pk('fma',acc+2*i,acc+2*i,38,b1+2*i,bsel='lo'))
        for i in range(8): h(pk('mul',cs+2*i,acc+2*i,acc+2*i))
        for i in range(8): h(pk('fma',cs+2*i,cs+2*i,34,32,bsel='lo',csel='lo'))
        for i in range(8): h(pk('mul',cs+2*i,cs+2*i,acc+2*i))
        for r in range(16): h(f'v_exp_f32 v{cs+r}, v{cs+r}')
        for i in range(8): h(pk('add',cs+2*i,cs+2*i,36,bsel='lo'))
        for r in range(16): h(f'v_rcp_f32 v{cs+r}, v{cs+r}')
        for i in range(8): h(pk('mul',acc+2*i,acc+2*i,cs+2*i))
        for i in range(8): h(f'v_cvt_pk_bf16_f32 v{b1+i}, v{acc+2*i}, v{acc+2*i+1}')
        h(f'buffer_store_dwordx4 {R(b1,4)}, v28, s[{sWS}:{sWS+3}], s42 offen')
        h(f'buffer_store_dwordx4 {R(b1+4,4)}, v28, s[{sWS}:{sWS+3}], s42 offen offset:1024')
        h.label(lab)
    stamp(h,7)
    if STAMP: h('s_waitcnt vmcnt(0)')
    stamp(h,8)
    stamp_flush(h,16 if STAMP2 else 13,sWS)
    h('s_endpgm')
    txt=a.text()+'\n'+g.text()+'\n'+h.text()+'\nK1_END:\n  s_endpgm\n'
    return txt


T_LOG2 = 48.0
def gen_k2():
    a=Asm()
    sWS=28
    a('s_cmp_ge_u32 s2, 256')
    a('s_cbranch_scc1 K2_END')
    stamp(a,0)
    a('s_load_dwordx2 s[12:13], s[0:1], 80')
    a('v_and_b32 v1, 63, v0')
    a('v_lshrrev_b32 v2, 6, v0')
    a('s_and_b32 s40, s2, 7')
    a('v_readfirstlane_b32 s36, v2')
    a('s_lshr_b32 s41, s2, 3')
    a('s_and_b32 s42, s41, 3')
    a('s_lshl_b32 s40, s40, 2')
    a('s_add_u32 s38, s40, s42')
    a('s_lshr_b32 s39, s41, 2')
    a('s_and_b32 s37, s36, 1')
    a('s_lshr_b32 s43, s36, 1')
    code_prefetch(a, 32, 's36', 8, 44, 'K2_END', 'k2')
    a('v_and_b32 v3, 31, v1')
    a('v_lshrrev_b32 v4, 5, v1')
    a('v_lshlrev_b32 v5, 4, v1')
    a('v_lshlrev_b32 v6, 8, v4')
    a('v_and_b32 v7, 15, v1')
    a('v_lshlrev_b32 v7, 4, v7')
    a('v_add_u32 v6, v6, v7')
    a('s_lshl_b32 s44, s38, 16')
    a('s_lshl_b32 s45, s39, 3')
    a('s_lshl_b32 s46, s37, 2')
    a('s_add_u32 s45, s45, s46')
    a('s_lshl_b32 s46, s45, 10')
    a('s_add_u32 s46, s46, s44')
    a('s_lshl_b32 s47, s43, 14')
    a('s_add_u32 s47, s47, s44')
    a(f's_add_u32 s48, s47, {WS_V}')
    a(f's_add_u32 s47, s47, {WS_K}')
    a('s_lshl_b32 s49, s38, 9')
    a(f's_add_u32 s49, s49, {WS_N}')
    a('v_lshlrev_b32 v8, 2, v1')
    a('s_mov_b32 s50, 0x0000ffff')
    a('s_mov_b32 s51, 0x0000ffff')
    KB=[80,84,88]; VB=[92,100,108]; QF=64; SA,SB=8,24; OA=[128,144,160,176]; IDX=116
    a(f'v_mov_b32 v{IDX}, 0xdddddddd')
    a('v_mov_b32 v9, 0x3f803f80')
    for b in VB:
        for r in range(8): a(f'v_mov_b32 v{b+r}, v9')
    for o in OA:
        for r in range(16): a(f'v_mov_b32 v{o+r}, 0')
    a('s_waitcnt lgkmcnt(0)')
    srd(a,sWS,12,WS_SIZE)
    W=f's[{sWS}:{sWS+3}]'
    a.vm('N', f'buffer_load_dword v10, v8, {W}, s49 offen')
    a.vm('N', f'buffer_load_dword v11, v8, {W}, s49 offen offset:256')
    for i in range(4):
        a.vm('Q', f'buffer_load_dwordx4 {R(QF+4*i,4)}, v5, {W}, s46 offen offset:{1024*i}')
    def loadkv(kt):
        b=kt%3
        a.vm(f'KV{kt}', f'buffer_load_dwordx4 {R(KB[b],4)}, v5, {W}, s47 offen')
        a('s_mov_b64 exec, s[50:51]')
        a.vm(f'KV{kt}', f'buffer_load_dwordx4 {R(VB[b],4)}, v6, {W}, s48 offen')
        a.vm(f'KV{kt}', f'buffer_load_dwordx4 {R(VB[b]+4,4)}, v6, {W}, s48 offen offset:512')
        a('s_mov_b64 exec, -1')
        a('s_add_u32 s47, s47, 1024')
        a('s_add_u32 s48, s48, 1024')
    loadkv(0); loadkv(1)
    a.wait_vm('Q')
    for i in range(4):
        for r in range(4):
            x=QF+4*i+r
            a(f'v_lshlrev_b32 v12, 16, v{x}')
            a(f'v_and_b32 v13, 0xffff0000, v{x}')
            if r==0:
                a(f'v_mul_f32 v{16+i}, v12, v12')
            else:
                a(f'v_fmac_f32 v{16+i}, v12, v12')
            a(f'v_fmac_f32 v{16+i}, v13, v13')
    a('v_max3_f32 v16, v16, v17, v18')
    a('v_max_f32 v16, v16, v19')
    a('v_max_f32 v10, v10, v10')
    a('s_nop 1')
    for sh in (1,2,4,8):
        for r in (16,10,11): a(f'v_max_f32_dpp v{r}, v{r}, v{r} row_shr:{sh} row_mask:0xf bank_mask:0xf')
    for r in (16,10,11): a(f'v_max_f32_dpp v{r}, v{r}, v{r} row_bcast:15 row_mask:0xa bank_mask:0xf')
    a('s_nop 1')
    for r in (10,11): a(f'v_max_f32_dpp v{r}, v{r}, v{r} row_bcast:31 row_mask:0xc bank_mask:0xf')
    a('s_nop 1')
    a('v_readlane_b32 s52, v16, 31')
    a('v_readlane_b32 s53, v16, 63')
    a('v_readlane_b32 s54, v10, 63')
    a('v_readlane_b32 s55, v11, 63')
    a('s_nop 1')
    a('v_mov_b32 v12, s52')
    a('v_add_f32 v12, s53, v12')
    a('v_mul_f32 v12, s54, v12')
    a(f'v_mul_f32 v12, {f2u(1.05):#x}, v12')
    a(f'v_mov_b32 v13, {f2u(T_LOG2*T_LOG2):#x}')
    a('v_cmp_le_f32 vcc, v12, v13')
    a('v_mov_b32 v12, s55')
    a(f'v_mov_b32 v13, {f2u(2.0**60):#x}')
    a('v_cmp_le_f32 s[56:57], v12, v13')
    a('s_nop 1')
    a('s_and_b64 vcc, vcc, s[56:57]')
    a('s_cmp_eq_u64 vcc, -1')
    a('s_cbranch_scc0 K2_SLOW')
    stamp(a,1)
    def qk(n, dst):
        kt,i=divmod(n,4)
        return f'v_mfma_f32_32x32x16_bf16 {R(dst,16)}, {R(KB[kt%3],4)}, {R(QF+4*i,4)}, 0'
    def pv(n, half, src):
        kt,i=divmod(n,4)
        return f'v_smfmac_f32_32x32x32_bf16 {R(OA[i],16)}, {R(VB[kt%3]+4*half,4)}, {R(src+8*half,8)}, v{IDX}'
    a.wait_vm('KV0')
    a(qk(0,SA))
    a('s_nop 7'); a('s_nop 3')
    NT=64
    for n in range(NT):
        kt,i=divmod(n,4)
        sa=SA if n%2==0 else SB
        sb=SB if n%2==0 else SA
        ex=[f'v_exp_f32 v{sa+r}, v{sa+r}' for r in range(16)]
        for e in ex[0:2]: a(e)
        if n>0: a(pv(n-1,1,sb))
        if i==0 and kt+2<16: loadkv(kt+2)
        for e in ex[2:5]: a(e)
        if n+1<NT:
            if i==3: a.wait_vm(f'KV{kt+1}')
            a(qk(n+1,sb))
        for e in ex[5:11]: a(e)
        a(pv(n,0,sa))
        for e in ex[11:16]: a(e)
    a('s_nop 1')
    a(pv(NT-1,1,SB))
    a.label('K2_JOIN')
    stamp(a,2)
    a('s_mul_i32 s52, s37, 27648')
    a('v_lshlrev_b32 v12, 4, v1')
    a('v_lshlrev_b32 v13, 2, v1')
    a('v_add_u32 v12, s52, v12')
    a('v_add_u32 v13, s52, v13')
    a('s_nop 7')
    for i in range(4):
        lab=f'K2_SK{i}'
        a(f's_cmp_eq_u32 s43, {i}')
        a(f's_cbranch_scc1 {lab}')
        a(f's_sub_u32 s53, s43, {i+1}')
        a('s_and_b32 s53, s53, 3')
        a(f's_add_u32 s53, s53, {3*i}')
        a('s_mul_i32 s53, s53, 2304')
        a('v_add_u32 v14, s53, v12')
        a('v_add_u32 v15, s53, v13')
        a(f'ds_write_b128 v14, {R(OA[i],4)}')
        a(f'ds_write_b128 v14, {R(OA[i]+4,4)} offset:1024')
        a(f'ds_write_b32 v15, v{OA[i]+8} offset:2048')
        a.label(lab)
    for i in range(4):
        lab=f'K2_MV{i}'
        a(f's_cmp_lg_u32 s43, {i}')
        a(f's_cbranch_scc1 {lab}')
        for r in range(9): a(f'v_mov_b32 v{32+r}, v{OA[i]+r}')
        a.label(lab)
    a('s_waitcnt lgkmcnt(0)')
    a('s_barrier')
    a('s_mul_i32 s53, s43, 6912')
    a('v_add_u32 v14, s53, v12')
    a('v_add_u32 v15, s53, v13')
    for sl in range(3):
        a(f'ds_read_b128 {R(44+12*sl,4)}, v14 offset:{2304*sl}')
        a(f'ds_read_b128 {R(48+12*sl,4)}, v14 offset:{2304*sl+1024}')
        a(f'ds_read_b32 v{52+12*sl}, v15 offset:{2304*sl+2048}')
    a('s_add_u32 s53, s45, s43')
    a('s_lshl_b32 s53, s53, 5')
    a('s_add_u32 s53, s53, s38')
    a('s_lshl_b32 s53, s53, 10')
    a(f's_add_u32 s53, s53, {WS_O}')
    a('s_waitcnt lgkmcnt(0)')
    for sl in range(3):
        for r in range(9): a(f'v_add_f32 v{32+r}, v{32+r}, v{44+12*sl+r}')
    a('v_rcp_f32 v41, v40')
    a('s_nop 0')
    for r in range(8): a(f'v_mul_f32 v{32+r}, v{32+r}, v41')
    for i in range(4): a(f'v_cvt_pk_bf16_f32 v{44+i}, v{32+2*i}, v{33+2*i}')
    a(f'buffer_store_dwordx4 v[44:47], v5, {W}, s53 offen')
    stamp(a,3)
    if STAMP: a('s_waitcnt vmcnt(0)')
    stamp(a,4)
    stamp_flush(a,5,sWS)
    a('s_endpgm')
    a.label('K2_SLOW')
    a('s_waitcnt vmcnt(0)')
    a('s_lshl_b32 s58, s43, 14'); a('s_add_u32 s58, s58, s44'); a(f's_add_u32 s58, s58, {WS_K}')
    MX=120
    for i in range(4): a(f'v_mov_b32 v{MX+i}, 0xff800000')
    a('s_mov_b32 s59, 0')
    a.label('K2_S1')
    a(f'buffer_load_dwordx4 {R(KB[0],4)}, v5, {W}, s58 offen')
    a('s_waitcnt vmcnt(0)')
    for i in range(4):
        a(f'v_mfma_f32_32x32x16_bf16 {R(SA,16)}, {R(KB[0],4)}, {R(QF+4*i,4)}, 0')
        a('s_nop 7'); a('s_nop 7')
        for r in range(0,16,2): a(f'v_max3_f32 v{MX+i}, v{MX+i}, v{SA+r}, v{SA+r+1}')
    a('s_add_u32 s58, s58, 1024')
    a('s_add_u32 s59, s59, 1')
    a('s_cmp_lt_u32 s59, 16')
    a('s_cbranch_scc1 K2_S1')
    for i in range(4): a(f'v_mov_b32 v{MX+4+i}, v{MX+i}')
    a('s_nop 1')
    for i in range(4): a(f'v_permlane32_swap_b32 v{MX+i}, v{MX+4+i}')
    a('s_nop 1')
    for i in range(4): a(f'v_max_f32 v{MX+i}, v{MX+i}, v{MX+4+i}')
    a('s_lshl_b32 s52, s37, 12'); a('s_lshl_b32 s53, s43, 10'); a('s_add_u32 s53, s53, s52')
    a('v_lshlrev_b32 v13, 2, v1')
    a('v_add_u32 v14, s53, v13')
    for i in range(4): a(f'ds_write_b32 v14, v{MX+i} offset:{256*i}')
    a('s_waitcnt lgkmcnt(0)')
    a('s_barrier')
    a('v_add_u32 v14, s52, v13')
    for q in range(4):
        for i in range(4): a(f'ds_read_b32 v{SA+4*q+i}, v14 offset:{1024*q+256*i}')
    a('s_waitcnt lgkmcnt(0)')
    for i in range(4):
        a(f'v_max3_f32 v{MX+i}, v{SA+i}, v{SA+4+i}, v{SA+8+i}')
        a(f'v_max_f32 v{MX+i}, v{MX+i}, v{SA+12+i}')
    a('s_barrier')
    a('s_lshl_b32 s58, s43, 14'); a('s_add_u32 s58, s58, s44'); a(f's_add_u32 s60, s58, {WS_V}'); a(f's_add_u32 s58, s58, {WS_K}')
    a('s_mov_b32 s59, 0')
    a.label('K2_S2')
    a(f'buffer_load_dwordx4 {R(KB[0],4)}, v5, {W}, s58 offen')
    a('s_mov_b64 exec, s[50:51]')
    a(f'buffer_load_dwordx4 {R(VB[0],4)}, v6, {W}, s60 offen')
    a(f'buffer_load_dwordx4 {R(VB[0]+4,4)}, v6, {W}, s60 offen offset:512')
    a('s_mov_b64 exec, -1')
    a('s_waitcnt vmcnt(0)')
    for i in range(4):
        a(f'v_mfma_f32_32x32x16_bf16 {R(SA,16)}, {R(KB[0],4)}, {R(QF+4*i,4)}, 0')
        a('s_nop 7'); a('s_nop 7')
        for r in range(16): a(f'v_sub_f32 v{SA+r}, v{SA+r}, v{MX+i}')
        for r in range(16): a(f'v_exp_f32 v{SA+r}, v{SA+r}')
        a('s_nop 1')
        a(f'v_smfmac_f32_32x32x32_bf16 {R(OA[i],16)}, {R(VB[0],4)}, {R(SA,8)}, v{IDX}')
        a(f'v_smfmac_f32_32x32x32_bf16 {R(OA[i],16)}, {R(VB[0]+4,4)}, {R(SA+8,8)}, v{IDX}')
        a('s_nop 7')
    a('s_add_u32 s58, s58, 1024')
    a('s_add_u32 s60, s60, 1024')
    a('s_add_u32 s59, s59, 1')
    a('s_cmp_lt_u32 s59, 16')
    a('s_cbranch_scc1 K2_S2')
    a('s_nop 7')
    a('s_branch K2_JOIN')
    return a.text()+'\nK2_END:\n  s_endpgm\n'
LDS_K2=2*27648


LDS_K3=4*32768
def gen_k3():
    a=Asm()
    sWS,sWO,sW2,sX,sOUT,sB2=28,16,20,24,32,40
    a('s_cmp_ge_u32 s2, 256')
    a('s_cbranch_scc1 K3_END')
    stamp(a,0)
    a('s_load_dwordx2 s[4:5], s[0:1], 0')
    a('s_load_dwordx2 s[6:7], s[0:1], 16')
    a('s_load_dwordx4 s[8:11], s[0:1], 48')
    a('s_load_dwordx2 s[12:13], s[0:1], 64')
    a('s_load_dwordx2 s[14:15], s[0:1], 80')
    a('v_and_b32 v1, 63, v0')
    a('v_lshrrev_b32 v2, 6, v0')
    a('s_and_b32 s44, s2, 7')
    a('v_readfirstlane_b32 s36, v2')
    a('s_lshr_b32 s45, s2, 3')
    a('s_and_b32 s46, s45, 3')
    a('s_lshl_b32 s44, s44, 2')
    a('s_add_u32 s38, s44, s46')
    a('s_lshr_b32 s39, s45, 2')
    a('s_and_b32 s47, s36, 1')
    a('s_bfe_u32 s48, s36, 0x10001')
    a('s_lshr_b32 s49, s36, 2')
    code_prefetch(a, 32, 's36', 8, 100, 'K3_END', 'k3')
    a('v_and_b32 v3, 31, v1')
    a('v_lshrrev_b32 v4, 5, v1')
    a('v_lshlrev_b32 v5, 4, v1')
    a('v_lshrrev_b32 v6, 3, v1')
    a('v_lshlrev_b32 v6, 10, v6')
    a('v_and_b32 v7, 7, v1')
    a('v_bfe_u32 v8, v1, 4, 1')
    a('v_lshlrev_b32 v8, 2, v8')
    a('v_xor_b32 v7, v7, v8')
    a('v_lshlrev_b32 v7, 4, v7')
    a('v_add_u32 v6, v6, v7')
    a('v_add_u32 v7, 7168, v6')
    a('s_lshl_b32 s50, s47, 13')
    a('s_lshl_b32 s51, s49, 12')
    a('s_add_u32 s50, s50, s51')
    a('v_add_u32 v10, s50, v5')
    a('v_bfe_u32 v11, v1, 2, 2')
    a('v_lshlrev_b32 v12, 2, v4')
    a('v_add_u32 v12, v12, v11')
    a('v_lshlrev_b32 v12, 7, v12')
    a('v_bfe_u32 v13, v1, 4, 1')
    a('v_lshlrev_b32 v13, 1, v13')
    a('v_and_b32 v14, 1, v1')
    a('v_add_u32 v13, v13, v14')
    a('s_lshl_b32 s51, s48, 2')
    a('v_add_u32 v13, s51, v13')
    a('v_lshrrev_b32 v11, 1, v11')
    a('v_lshlrev_b32 v11, 2, v11')
    a('v_xor_b32 v13, v13, v11')
    a('v_lshlrev_b32 v13, 4, v13')
    a('v_bfe_u32 v14, v1, 1, 1')
    a('v_lshlrev_b32 v14, 3, v14')
    a('v_add3_u32 v11, v12, v13, v14')
    a('s_lshl_b32 s51, s49, 13')
    a(f's_add_u32 s51, s51, 16384')
    a('v_add_u32 v11, s51, v11')
    a('s_lshl_b32 s52, s38, 1')
    a('s_add_u32 s52, s52, s47')
    a('s_lshr_b32 s53, s36, 1')
    a('s_lshl_b32 s54, s52, 5')
    a('s_lshl_b32 s55, s53, 1')
    a('s_add_u32 s54, s54, s55')
    a('s_lshl_b32 s54, s54, 10')
    a(f's_add_u32 s54, s54, {WS_O}')
    a('s_mul_i32 s56, s52, 86')
    a('s_add_u32 s56, s56, s55')
    a('s_lshl_b32 s56, s56, 10')
    a(f's_add_u32 s56, s56, {WS_H}')
    a('s_lshl_b32 s57, s47, 3')
    a('s_add_u32 s57, s57, s55')
    a('s_lshl_b32 s57, s57, 10')
    a('s_lshl_b32 s58, s36, 14')
    a('s_lshl_b32 s59, s39, 7')
    a('s_add_u32 s58, s58, s59')
    a('s_lshl_b32 s59, s36, 11')
    a('s_add_u32 s59, s59, 16384')
    ACC=32
    for r in range(16): a(f'v_mov_b32 v{ACC+r}, 0')
    a('s_lshl_b32 s60, s38, 6')
    a('s_lshl_b32 s61, s47, 5')
    a('s_add_u32 s60, s60, s61')
    a('v_add_u32 v15, s60, v3')
    a('v_lshlrev_b32 v15, 10, v15')
    a('s_lshl_b32 s60, s39, 6')
    a('s_lshl_b32 s61, s48, 5')
    a('s_add_u32 s60, s60, s61')
    a('s_lshl_b32 s61, s49, 4')
    a('s_add_u32 s60, s60, s61')
    a('v_lshlrev_b32 v16, 3, v4')
    a('v_add_u32 v16, s60, v16')
    a('v_lshlrev_b32 v16, 1, v16')
    a('v_add_u32 v15, v15, v16')
    a('s_waitcnt lgkmcnt(0)')
    srd(a,sWS,14,WS_SIZE); srd(a,sWO,6,512*512*2); srd(a,sW2,8,1376*512*2); srd(a,sX,4,2048*512*2); srd(a,sOUT,12,2048*512*2); srd(a,sB2,10,512*2)
    NST=15
    def dma(st):
        slot=(st%4)*32768
        if st<4:
            a(f's_add_u32 m0, s57, {slot}')
            a(f's_add_u32 s62, s54, {st*8*1024}')
            srdw=sWO; woff=st*128*1024
        else:
            a(f's_add_u32 m0, s57, {slot}')
            a(f's_add_u32 s62, s56, {(st-4)*8*1024}')
            srdw=sW2; woff=(st-4)*128*1024
        a.vm(f'S{st}', f'buffer_load_dwordx4 v5, s[{sWS}:{sWS+3}], s62 offen lds')
        a.vm(f'S{st}', f'buffer_load_dwordx4 v5, s[{sWS}:{sWS+3}], s62 offen offset:1024 lds')
        a(f's_add_u32 m0, s59, {slot}')
        a(f's_add_u32 s62, s58, {woff}')
        a.vm(f'S{st}', f'buffer_load_dwordx4 v6, s[{srdw}:{srdw+3}], s62 offen lds')
        a.vm(f'S{st}', f'buffer_load_dwordx4 v7, s[{srdw}:{srdw+3}], s62 offen offset:1024 lds')
    for st in range(3): dma(st)
    a.vm('X', f'buffer_load_dwordx4 v[52:55], v15, s[{sX}:{sX+3}], 0 offen')
    a.vm('X', f'buffer_load_dwordx4 v[56:59], v16, s[{sB2}:{sB2+3}], 0 offen')
    FX=[64,68,72,76]; FW=[80,84,88,92]
    a(f's_mov_b32 s63, 32768')
    a(f's_mov_b32 s64, {(-3*32768)&0xffffffff:#x}')
    for st in range(NST):
        a.wait_vm(f'S{st}')
        a('s_barrier')
        nks=4
        last=(st==NST-1)
        for k in range(4):
            a(f'ds_read_b128 {R(FX[k],4)}, v10 offset:{k*1024}')
            a(f'ds_read_b64_tr_b16 {R(FW[k],2)}, v11 offset:{k*2048}')
            a(f'ds_read_b64_tr_b16 {R(FW[k]+2,2)}, v11 offset:{k*2048+1024}')
        if st+3<NST: dma(st+3)
        for k in range(4):
            if last and k==2:
                a('s_cmp_eq_u32 s49, 1')
                a('s_cbranch_scc1 K3_LAST')
            a(f's_waitcnt lgkmcnt({3*(3-k)})')
            a(f'v_mfma_f32_32x32x16_bf16 {R(ACC,16)}, {R(FW[k],4)}, {R(FX[k],4)}, {R(ACC,16)}')
        if not last:
            sr='s64' if (st%4)==3 else 's63'
            a(f'v_add_u32 v10, {sr}, v10')
            a(f'v_add_u32 v11, {sr}, v11')
    a.label('K3_LAST')
    a('s_waitcnt lgkmcnt(0)')
    stamp(a,1)
    a('s_barrier')
    a('s_and_b32 s62, s36, 3')
    a('s_lshl_b32 s62, s62, 12')
    a('s_lshl_b32 s65, s49, 11')
    a('s_add_u32 s66, s62, s65')
    a('s_xor_b32 s65, s65, 2048')
    a('s_add_u32 s67, s62, s65')
    a('v_add_u32 v20, s66, v5')
    a('v_add_u32 v21, s67, v5')
    a('s_nop 7')
    a('s_cmp_eq_u32 s49, 0')
    a('s_cbranch_scc1 K3_KH0')
    a(f'ds_write_b128 v20, {R(ACC,4)}')
    a(f'ds_write_b128 v20, {R(ACC+4,4)} offset:1024')
    a('s_waitcnt lgkmcnt(0)')
    for r in range(8): a(f'v_mov_b32 v{ACC+r}, v{ACC+8+r}')
    a('s_branch K3_EX')
    a.label('K3_KH0')
    a(f'ds_write_b128 v20, {R(ACC+8,4)}')
    a(f'ds_write_b128 v20, {R(ACC+12,4)} offset:1024')
    a.label('K3_EX')
    a('s_waitcnt lgkmcnt(0)')
    a('s_barrier')
    a('ds_read_b128 v[64:67], v21')
    a('ds_read_b128 v[68:71], v21 offset:1024')
    a.wait_vm('X')
    for i in range(4):
        a(f'v_lshlrev_b32 v{72+2*i}, 16, v{52+i}')
        a(f'v_and_b32 v{73+2*i}, 0xffff0000, v{52+i}')
        a(f'v_lshlrev_b32 v{80+2*i}, 16, v{56+i}')
        a(f'v_and_b32 v{81+2*i}, 0xffff0000, v{56+i}')
    for r in range(8): a(f'v_add_f32 v{72+r}, v{72+r}, v{80+r}')
    a('s_waitcnt lgkmcnt(0)')
    for r in range(8): a(f'v_add_f32 v{ACC+r}, v{ACC+r}, v{64+r}')
    for r in range(8): a(f'v_add_f32 v{ACC+r}, v{ACC+r}, v{72+r}')
    for i in range(4): a(f'v_cvt_pk_bf16_f32 v{64+i}, v{ACC+2*i}, v{ACC+2*i+1}')
    a(f'buffer_store_dwordx4 v[64:67], v15, s[{sOUT}:{sOUT+3}], 0 offen')
    stamp(a,2)
    if STAMP: a('s_waitcnt vmcnt(0)')
    stamp(a,3)
    stamp_flush(a,4,sWS)
    a('s_endpgm')
    return a.text()+'\nK3_END:\n  s_endpgm\n'

def kernel_block(name, body, vgpr=256, sgpr=102):
    return f'''.globl {name}
.p2align 8
.type {name},@function
{name}:
{body}
''', f'''.p2align 6
.amdhsa_kernel {name}
  .amdhsa_next_free_vgpr {vgpr}
  .amdhsa_next_free_sgpr {sgpr}
  .amdhsa_accum_offset {(vgpr+3)//4*4}
  .amdhsa_group_segment_fixed_size 0
  .amdhsa_kernarg_size 88
  .amdhsa_user_sgpr_count 2
  .amdhsa_user_sgpr_kernarg_segment_ptr 1
  .amdhsa_system_sgpr_workgroup_id_x 1
  .amdhsa_float_denorm_mode_32 3
.end_amdhsa_kernel
'''

HEADER=open('cdna_kernels/'+NAME+'.s.ref').read().split('; Override launch geometry')[0]

def assemble(kernels, launches):
    out=HEADER
    for l in launches: out+=l+'\n'
    out+='.amdgcn_target "amdgcn-amd-amdhsa--gfx950"\n.text\n'
    descs=''
    for (n,b,v) in kernels:
        code,desc=kernel_block(n,b,v)
        out+=code; descs+=desc
    out+='.section .rodata,"a"\n'+descs
    return out

if __name__=='__main__':
    which=sys.argv[1] if len(sys.argv)>1 else 'k1'
    if 'stamp' in sys.argv: STAMP=True
    if 'stamp2' in sys.argv: STAMP=True; STAMP2=True
    if 'stamp3' in sys.argv: STAMP=True; STAMP2=True; STAMP3=True
    if 'stamp4' in sys.argv: STAMP=True; STAMP2=True; STAMP3=True; STAMP4=True
    outp=sys.argv[2] if len(sys.argv)>2 else 'out.s'
    ks=[]; ls=[]
    ks.append(('k1_kernel', gen_k1(), 256))
    ls.append(f'; @launch kernel=k1_kernel grid=(256,1,1) block=(512,1,1) lds={LDS_K1}')
    if which in ('k12','all'):
        ks.append(('k2_kernel', gen_k2(), 192))
        ls.append(f'; @launch kernel=k2_kernel grid=(256,1,1) block=(512,1,1) lds={max(LDS_K2,98304)}')
    if which=='all':
        ks.append(('k3_kernel', gen_k3(), 128))
        ls.append(f'; @launch kernel=k3_kernel grid=(256,1,1) block=(512,1,1) lds={LDS_K3}')
    open(outp,'w').write(assemble(ks,ls))
    print('wrote',outp)
```

```python
import sys, struct
NAME='parallel_sum__softmax_full_mha__mixer_channel_mlp__prompt'

WS_F = 0
F_1, F_2, F_3 = 32768, 65536, 98304
WS_N = 256<<10
WS_Q = 1<<20
WS_K = 3<<20
WS_V = 5<<20
WS_O = 7<<20
WS_H = 9<<20
WS_T = 15<<20
WS_SIZE = 16<<20
QSCALE = 0.25*1.4426950408889634
T_LOG2 = 48.0
SPIN_MAX = 1<<20

def f2u(f): return struct.unpack('<I', struct.pack('<f', f))[0]

STAMP=False
OPT=set()
class Asm:
    def __init__(self):
        self.L=[]; self.vmq=[]
    def __call__(self, s): self.L.append('  '+s)
    def c(self, s): self.L.append('  ; '+s)
    def label(self, n): self.L.append(n+':')
    def vm(self, tag, s):
        self.vmq.append(tag); self(s)
    def wait_vm(self, tags):
        if isinstance(tags,str): tags=[tags]
        idx=[i for i,t in enumerate(self.vmq) if t in tags]
        if not idx: return
        last=max(idx); n=len(self.vmq)-1-last
        assert n<=63
        self(f's_waitcnt vmcnt({n})')
        self.vmq=self.vmq[last+1:]
    def wait_vm_all(self):
        self('s_waitcnt vmcnt(0)'); self.vmq=[]
    def text(self): return '\n'.join(self.L)

def stamp(a, i):
    if STAMP: a(f's_memtime s[{70+2*i}:{71+2*i}]')
def stamp_flush(a, n):
    if not STAMP: return
    a('s_waitcnt vmcnt(0) lgkmcnt(0)')
    a('s_lshl_b32 s69, s2, 3')
    a('s_add_u32 s69, s69, s36')
    a('s_lshl_b32 s69, s69, 6')
    a(f's_add_u32 s69, s69, {WS_T}')
    a('v_mov_b32 v2, 0')
    for i in range(n):
        a(f'v_mov_b32 v3, s{70+2*i}')
        a('s_mov_b64 exec, 1')
        a(f'buffer_store_dword v3, v2, s[28:31], s69 offen offset:{4*i}')
        a('s_mov_b64 exec, -1')
        a('s_nop 1')

def R(a,n=1): return f'v{a}' if n==1 else f'v[{a}:{a+n-1}]'
def SR(a): return f's[{a}:{a+3}]'
def srd(a, d, ptr, size):
    a(f's_mov_b32 s{d}, s{ptr}')
    a(f's_mov_b32 s{d+1}, s{ptr+1}')
    a(f's_mov_b32 s{d+2}, {size}')
    a(f's_mov_b32 s{d+3}, 0x00020000')
def pk(op, d, a_, b_, c_=None, bsel=None, csel=None, neg=None):
    ops=[a_,b_]+([c_] if c_ is not None else [])
    n=len(ops)
    txt=[ (f'v[{o}:{o+1}]' if isinstance(o,int) else o) for o in ops]
    hi=[1]*n
    if bsel=='lo': hi[1]=0
    if csel=='lo': hi[2]=0
    s_=f'v_pk_{op}_f32 v[{d}:{d+1}], '+', '.join(txt)
    if hi!=[1]*n: s_+=' op_sel_hi:['+','.join(map(str,hi))+']'
    if neg: s_+=' '+neg
    return s_

pX,pWQ,pWO,pW1,pB1,pW2,pB2,pOUT,pWS = 4,6,8,12,14,16,18,20,22
sWS=28
W_=SR(sWS)

SLOT=28672; XS=16384; WST=12288
W1_SPARE=5*SLOT
SCR=W1_SPARE+WST
L_A=SCR; L_MU=SCR+512; L_CS=SCR+1024; L_CS1=SCR+1536; L_B1=SCR+2048; L_A2=SCR+2560; L_A2M=SCR+3072
L_CNT=SCR+4096
LDS_TOTAL=163840
W1_ADDR=[W1_SPARE, 3*SLOT, 3*SLOT+WST, 4*SLOT, 4*SLOT+WST, 0, WST, SLOT]
A_SLOT=[0,1,2,3,4,0,1,2]
L_RED=0
L_RING=73728
L_MX=139264
G2D=4
L_WO=0
L_OX=65536
L_EX=131072

uid=[0]
def newlab(p):
    uid[0]+=1; return f'{p}_{uid[0]}'

def poll(a, nl, voff, soff, vt):
    lab=newlab('POLL'); done=newlab('POLLD')
    mask=(1<<nl)-1
    a(f's_mov_b32 s66, {mask:#x}')
    a('s_mov_b32 s67, 0')
    a(f's_mov_b32 s68, {SPIN_MAX}')
    a('s_mov_b64 exec, s[66:67]')
    a.label(lab)
    a(f'buffer_load_dwordx2 v[{vt}:{vt+1}], {voff}, {W_}, {soff} offen sc1')
    a('s_waitcnt vmcnt(0)')
    a(f'v_cmp_eq_u64 vcc, s[64:65], v[{vt}:{vt+1}]')
    a('s_sub_u32 s68, s68, 1')
    a('s_cmp_eq_u32 s68, 0')
    a(f's_cbranch_scc1 {done}')
    a('s_cmp_eq_u64 vcc, s[66:67]')
    a(f's_cbranch_scc1 {done}')
    a('s_sleep 2')
    a(f's_branch {lab}')
    a.label(done)
    a('s_mov_b64 exec, -1')
    a.vmq=[]

def poll_wg(a, nl, voff, soff, vt, leader, lds_addr):
    oth=newlab('PWO'); done=newlab('PWD')
    a(f'v_mov_b32 v{vt+2}, {lds_addr}')
    a(f's_cmp_eq_u32 s36, {leader}')
    a(f's_cbranch_scc0 {oth}')
    poll(a, nl, voff, soff, vt)
    a(f'v_mov_b32 v{vt}, 1')
    a('s_mov_b64 exec, 1')
    a(f'ds_write_b32 v{vt+2}, v{vt}')
    a('s_mov_b64 exec, -1')
    a(f's_branch {done}')
    a.label(oth)
    lab=newlab('PWL')
    a.label(lab)
    a(f'ds_read_b32 v{vt}, v{vt+2}')
    a('s_waitcnt lgkmcnt(0)')
    a(f'v_readfirstlane_b32 s66, v{vt}')
    a('s_nop 0')
    a('s_cmp_eq_u32 s66, 0')
    a(f's_cbranch_scc0 {done}')
    a('s_sleep 1')
    a(f's_branch {lab}')
    a.label(done)
    a('s_waitcnt vmcnt(0)')
    a.vmq=[]

def signal(a, cnt_addr, last, flag_soff, vt):
    skip=newlab('SIG')
    a(f'v_mov_b32 v{vt}, {cnt_addr}')
    a(f'v_mov_b32 v{vt+1}, 1')
    a('s_mov_b64 exec, 1')
    a(f'ds_add_rtn_u32 v{vt+2}, v{vt}, v{vt+1}')
    a('s_waitcnt lgkmcnt(0)')
    a(f'v_readfirstlane_b32 s66, v{vt+2}')
    a(f'v_mov_b32 v{vt}, s64')
    a(f'v_mov_b32 v{vt+1}, s65')
    a(f'v_mov_b32 v{vt+2}, 0')
    a(f's_cmp_eq_u32 s66, {last}')
    a(f's_cbranch_scc0 {skip}')
    a(f'buffer_store_dwordx2 v[{vt}:{vt+1}], v{vt+2}, {W_}, {flag_soff} offen sc1')
    a.label(skip)
    a('s_mov_b64 exec, -1')

def gbar_arrive(a, vaddr, vone):
    a('s_mov_b64 exec, 1')
    a(f'ds_add_u32 v{vaddr}, v{vone}')
    a('s_mov_b64 exec, -1')
def gbar_wait(a, vaddr, vt, target):
    lab=newlab('GB')
    a.label(lab)
    a(f'ds_read_b32 v{vt}, v{vaddr}')
    a('s_waitcnt lgkmcnt(0)')
    a(f'v_readfirstlane_b32 s3, v{vt}')
    a('s_nop 0')
    a(f's_cmp_ge_u32 s3, {target}')
    a(f's_cbranch_scc0 {lab}')

def gen():
    a=Asm()
    a('s_cmp_ge_u32 s2, 256')
    a('s_cbranch_scc1 K_END')
    stamp(a,0)
    a('s_load_dwordx16 s[4:19], s[0:1], 0')
    a('s_load_dwordx2 s[20:21], s[0:1], 64')
    a('s_load_dwordx2 s[22:23], s[0:1], 80')
    a('v_and_b32 v1, 63, v0')
    a('v_lshrrev_b32 v2, 6, v0')
    a('s_and_b32 s48, s2, 7')
    a('v_readfirstlane_b32 s36, v2')
    a('s_lshr_b32 s49, s2, 3')
    a('s_and_b32 s50, s48, 1')
    a('s_lshr_b32 s51, s48, 1')
    a('s_lshl_b32 s50, s50, 3')
    a('s_and_b32 s52, s49, 7')
    a('s_add_u32 s38, s50, s52')
    a('s_lshl_b32 s51, s51, 2')
    a('s_lshr_b32 s52, s49, 3')
    a('s_add_u32 s39, s51, s52')
    a('s_and_b32 s37, s36, 3')
    a('v_and_b32 v3, 31, v1')
    a('v_lshrrev_b32 v4, 5, v1')
    a('s_cmp_ge_u32 s36, 4')
    a('s_cbranch_scc1 K_G1')

    def common_lds_addr(e):
        e('v_bfe_u32 v5, v1, 1, 3')
        e('v_xor_b32 v5, v5, v4')
        e('v_lshlrev_b32 v5, 4, v5')
        e('s_lshl_b32 s3, s37, 12')
        e('v_lshlrev_b32 v6, 7, v3')
        e('v_add3_u32 v12, v6, v5, s3')
        e('v_xor_b32 v13, 32, v12')
        e('v_xor_b32 v14, 64, v12')
        e('v_xor_b32 v15, 0x60, v12')
        e('v_lshlrev_b32 v6, 3, v4')
        e('v_bfe_u32 v7, v1, 2, 2')
        e('v_add_u32 v6, v6, v7')
        e('v_mul_u32_u24 v6, 192, v6')
        e('v_bfe_u32 v7, v1, 4, 1')
        e('v_lshlrev_b32 v7, 5, v7')
        e('v_and_b32 v8, 3, v1')
        e('v_lshlrev_b32 v8, 3, v8')
        e('v_add3_u32 v16, v6, v7, v8')

    g=Asm()
    accQ,accK,accV=64,80,96
    FS0=[128,144,160,176]
    g('s_getpc_b64 s[62:63]')
    g.label('PF_0')
    g('s_lshr_b32 s60, s2, 3')
    g('s_and_b32 s60, s60, 7')
    g('s_lshl_b32 s60, s60, 2')
    g('s_add_u32 s60, s60, s37')
    g('s_lshl_b32 s60, s60, 10')
    g('v_lshlrev_b32 v9, 4, v1')
    g('v_add_u32 v9, s60, v9')
    g('v_min_u32 v10, K_END-PF_0-16, v9')
    g('global_load_dwordx4 v[200:203], v10, s[62:63]')
    g('v_add_u32 v9, 0x8000, v9')
    g('v_min_u32 v10, K_END-PF_0-16, v9')
    g('global_load_dwordx4 v[204:207], v10, s[62:63]')
    common_lds_addr(g)
    for r in range(64,112): g(f'v_mov_b32 v{r}, 0')
    g(f'v_add_u32 v17, {XS}, v16')
    g(f's_mov_b32 s56, {(-4*SLOT)&0xffffffff:#x}')
    g(f's_mov_b32 s57, {SLOT}')
    g(f'v_lshlrev_b32 v18, 2, v1')
    g(f'v_add_u32 v18, {L_CNT}, v18')
    g('v_mov_b32 v19, 0')
    g('s_mov_b64 exec, 0xff')
    g('ds_write_b32 v18, v19')
    g('s_mov_b64 exec, -1')
    g('s_lshl_b32 s48, s37, 7')
    g('v_lshlrev_b32 v20, 2, v3')
    g('v_add_u32 v20, s48, v20')
    g(f'v_add_u32 v20, {L_A}, v20')
    g('v_lshlrev_b32 v23, 4, v4')
    g(f'v_add_u32 v24, {L_CS}, v23')
    g('v_lshlrev_b32 v25, 2, v3')
    g(f'v_add_u32 v25, {L_CS+64*4}, v25')
    g('v_add_u32 v27, s48, v23')
    g(f'v_add_u32 v27, {L_A}, v27')
    g('s_lshl_b32 s49, s38, 2')
    g('s_add_u32 s49, s49, s37')
    g('s_lshl_b32 s50, s49, 10')
    g('s_lshl_b32 s51, s39, 17')
    g('s_add_u32 s50, s50, s51')
    g(f's_add_u32 s52, s50, {WS_K}')
    g(f's_add_u32 s53, s50, {WS_K+65536}')
    g(f's_add_u32 s54, s50, {WS_V}')
    g(f's_add_u32 s51, s50, {WS_Q+65536}')
    g(f's_add_u32 s50, s50, {WS_Q}')
    g('v_lshlrev_b32 v28, 4, v1')
    g('v_and_b32 v29, 0x13, v3')
    g('v_bfe_u32 v30, v3, 2, 1')
    g('v_lshlrev_b32 v30, 3, v30')
    g('v_bfe_u32 v31, v3, 3, 1')
    g('v_lshlrev_b32 v31, 2, v31')
    g('v_or3_b32 v29, v29, v30, v31')
    g('v_lshlrev_b32 v30, 5, v4')
    g('v_add_u32 v29, v29, v30')
    g('v_lshlrev_b32 v29, 4, v29')
    g('v_bfe_u32 v30, v3, 4, 1')
    g('v_lshlrev_b32 v30, 16, v30')
    g('v_lshlrev_b32 v31, 8, v4')
    g('v_and_b32 v32, 15, v3')
    g('v_lshlrev_b32 v32, 4, v32')
    g('v_add3_u32 v30, v30, v31, v32')
    g('s_mul_i32 s55, s39, 1536')
    g('s_lshl_b32 s58, s49, 2')
    g('s_add_u32 s55, s55, s58')
    g(f's_add_u32 s55, s55, {WS_N}')
    g('v_lshlrev_b32 v31, 8, v1')
    g('s_waitcnt lgkmcnt(0)')
    srd(g,sWS,pWS,WS_SIZE)
    g(f's_load_dwordx2 s[64:65], s[{pWS}:{pWS+1}], 0')
    def readlist(set_, ks):
        L=[f'ds_read_b128 {R(set_,4)}, v{12+ks}']
        for t in range(3):
            for e in range(2):
                L.append(f'ds_read_b64_tr_b16 {R(set_+4+4*t+2*e,2)}, v17 offset:{ks*3072+e*768+t*64}')
        return L
    def mfmalist(set_):
        return [f'v_mfma_f32_32x32x16_bf16 {R(accQ,16)}, {R(set_+4,4)}, {R(set_,4)}, {R(accQ,16)}',
                f'v_mfma_f32_32x32x16_bf16 {R(accK,16)}, {R(set_+8,4)}, {R(set_,4)}, {R(accK,16)}',
                f'v_mfma_f32_32x32x16_bf16 {R(accV,16)}, {R(set_,4)}, {R(set_+12,4)}, {R(accV,16)}']
    g('s_waitcnt lgkmcnt(0)')
    g('s_add_u32 s64, s64, 0x7f4a7c15')
    g('s_addc_u32 s65, s65, 0x9e3779b9')
    stamp(g,1)
    for st in range(8):
        g('s_barrier')
        if st==0: stamp(g,2)
        for ks in range(4):
            rl=readlist(FS0[ks],ks); ml=mfmalist(FS0[(ks+2)%4])
            if st==0 and ks<2:
                for r_ in rl: g(r_)
                continue
            g('s_waitcnt lgkmcnt(7)')
            g(ml[0]); g(rl[0]); g(rl[1]); g(rl[2])
            g(ml[1]); g(rl[3]); g(rl[4])
            g(ml[2]); g(rl[5]); g(rl[6])
        if st<7:
            sr='s57' if A_SLOT[st+1]>A_SLOT[st] else 's56'
            for r in (12,13,14,15,17): g(f'v_add_u32 v{r}, {sr}, v{r}')
    g('s_waitcnt lgkmcnt(7)')
    for m in mfmalist(FS0[2]): g(m)
    g('s_waitcnt lgkmcnt(0)')
    for m in mfmalist(FS0[3]): g(m)
    stamp(g,3)
    g('s_barrier')
    g('s_setprio 3')
    CSQ=128; CSK=144; AV=160; MV=176
    g('ds_read_b32 v21, v20')
    g(f'ds_read_b32 v22, v20 offset:{L_MU-L_A}')
    for T,base in ((0,CSQ),(1,CSK)):
        for gg in range(4):
            g(f'ds_read_b128 {R(base+4*gg,4)}, v24 offset:{(32*T+8*gg)*4}')
    g('ds_read_b32 v26, v25')
    g('s_waitcnt lgkmcnt(9)')
    g(f'v_mul_f32 v34, {f2u(QSCALE):#x}, v21')
    g('v_mul_f32 v38, v21, v22')
    g('v_mul_f32 v36, v34, v22')
    for gg in range(4):
        g(f'ds_read_b128 {R(AV+4*gg,4)}, v27 offset:{8*gg*4}')
        g(f'ds_read_b128 {R(MV+4*gg,4)}, v27 offset:{8*gg*4+L_MU-L_A}')
    g('s_waitcnt lgkmcnt(12)')
    for r in range(16): g(f'v_mul_f32 v{CSK+r}, v{CSK+r}, v38') if False else None
    g('s_waitcnt lgkmcnt(8)')
    for r in range(16): g(f'v_mul_f32 v{CSK+r}, v{CSK+r}, v38')
    for r in range(16): g(f'v_fma_f32 v{accK+r}, v{accK+r}, v21, -v{CSK+r}')
    for i in range(8): g(f'v_cvt_pk_bf16_f32 v{CSK+i}, v{accK+2*i}, v{accK+2*i+1}')
    g(f'buffer_store_dwordx4 {R(CSK,4)}, v29, {W_}, s52 offen sc1')
    g(f'buffer_store_dwordx4 {R(CSK+4,4)}, v29, {W_}, s53 offen sc1')
    g('s_waitcnt lgkmcnt(0)')
    for r in range(16): g(f'v_fma_f32 v{accV+r}, -v{MV+r}, v26, v{accV+r}')
    for r in range(16): g(f'v_mul_f32 v{accV+r}, v{accV+r}, v{AV+r}')
    for i in range(8): g(f'v_cvt_pk_bf16_f32 v{AV+i}, v{accV+2*i}, v{accV+2*i+1}')
    g(f'buffer_store_dwordx4 {R(AV,4)}, v30, {W_}, s54 offen sc1')
    g(f'buffer_store_dwordx4 {R(AV+4,4)}, v30, {W_}, s54 offen offset:512 sc1')
    for r in range(16): g(f'v_mul_f32 v{CSQ+r}, v{CSQ+r}, v36')
    for r in range(16): g(f'v_fma_f32 v{accQ+r}, v{accQ+r}, v34, -v{CSQ+r}')
    for i in range(8): g(f'v_cvt_pk_bf16_f32 v{CSQ+i}, v{accQ+2*i}, v{accQ+2*i+1}')
    g(f'buffer_store_dwordx4 {R(CSQ,4)}, v28, {W_}, s50 offen sc1')
    g(f'buffer_store_dwordx4 {R(CSQ+4,4)}, v28, {W_}, s51 offen sc1')
    for (b,acc) in ((42,accK),(46,accQ)):
        g(f'v_mul_f32 v{b}, v{acc}, v{acc}'); g(f'v_mul_f32 v{b+1}, v{acc+1}, v{acc+1}')
        g(f'v_mul_f32 v{b+2}, v{acc+8}, v{acc+8}'); g(f'v_mul_f32 v{b+3}, v{acc+9}, v{acc+9}')
        for i in range(2,8):
            g(f'v_fmac_f32 v{b+(i&1)}, v{acc+i}, v{acc+i}'); g(f'v_fmac_f32 v{b+2+(i&1)}, v{acc+8+i}, v{acc+8+i}')
    g(f'v_max3_f32 v38, |v{accV}|, |v{accV+1}|, |v{accV+2}|')
    g('v_add_f32 v34, v42, v43')
    g('v_add_f32 v35, v44, v45')
    g('v_add_f32 v36, v46, v47')
    g('v_add_f32 v37, v48, v49')
    for r in range(3,15,2): g(f'v_max3_f32 v38, v38, |v{accV+r}|, |v{accV+r+1}|')
    g(f'v_max_f32 v38, v38, |v{accV+15}|')
    for i in range(4): g(f'v_mov_b32 v{40+i}, v{34+i}')
    g('s_nop 1')
    for i in range(4): g(f'v_permlane32_swap_b32 v{34+i}, v{40+i}')
    g('s_nop 1')
    for i in range(4): g(f'v_add_f32 v{34+i}, v{34+i}, v{40+i}')
    g('s_nop 1')
    for sh in (1,2,4,8):
        for r in (34,35,36,37,38): g(f'v_max_f32_dpp v{r}, v{r}, v{r} row_shr:{sh} row_mask:0xf bank_mask:0xf')
    for r in (34,35,36,37): g(f'v_max_f32_dpp v{r}, v{r}, v{r} row_bcast:15 row_mask:0xa bank_mask:0xf')
    g('s_nop 1')
    g('v_readlane_b32 s56, v38, 15')
    g('v_readlane_b32 s57, v38, 47')
    g('v_readlane_b32 s58, v38, 31')
    g('v_readlane_b32 s59, v38, 63')
    g('v_readlane_b32 s66, v34, 31')
    g('v_readlane_b32 s67, v35, 31')
    g('v_readlane_b32 s68, v36, 31')
    g('v_readlane_b32 s69, v37, 31')
    g('s_max_u32 s56, s56, s57')
    g('s_max_u32 s58, s58, s59')
    g('v_mov_b32 v40, s66')
    g('v_writelane_b32 v40, s56, 1')
    g('v_writelane_b32 v40, s68, 2')
    g('v_writelane_b32 v40, s67, 3')
    g('v_writelane_b32 v40, s58, 4')
    g('v_writelane_b32 v40, s69, 5')
    g('s_mov_b64 exec, 63')
    g(f'buffer_store_dword v40, v31, {W_}, s55 offen sc1')
    g('s_mov_b64 exec, -1')
    stamp(g,4)
    g('s_setprio 0')
    g('s_waitcnt vmcnt(0)')
    g('s_lshl_b32 s48, s39, 4')
    g('s_add_u32 s48, s48, s38')
    g('s_lshl_b32 s48, s48, 7')
    g(f's_add_u32 s48, s48, {F_1}')
    signal(g, L_CNT, 3, 's48', 40)
    stamp(g,5)
    g('s_branch K_ATT')

    h=Asm()
    h.label('K_G1')
    h('s_setprio 2')
    sX,sWQ,sW1,sB1=24,32,40,44
    XF=128
    h('s_mul_i32 s50, s39, 3')
    h('s_lshl_b32 s51, s39, 1')
    h('s_add_u32 s51, s51, 11')
    h('s_cmp_lt_u32 s39, 11')
    h('s_cselect_b32 s48, s50, s51')
    h('s_cselect_b32 s49, 3, 2')
    h('v_lshrrev_b32 v20, 3, v1')
    h('v_and_b32 v21, 7, v1')
    h('v_lshrrev_b32 v22, 4, v1')
    h('v_xor_b32 v21, v21, v22')
    h('v_lshlrev_b32 v20, 10, v20')
    h('v_lshlrev_b32 v22, 4, v21')
    h('v_add_u32 v2, v20, v22')
    h('v_xor_b32 v22, 64, v22')
    h('v_add_u32 v22, 7168, v22')
    h('v_add_u32 v18, v20, v22')
    h('v_add_u32 v19, 14336, v2')
    h('v_add_u32 v20, 14336, v18')
    VX=[2,18,19,20]
    VW=[21,22,23]; VW1=[24,25,26]
    for p in range(3):
        h(f'v_add_u32 v27, {64*p}, v1')
        h('v_mul_u32_u24 v28, 43691, v27')
        h('v_lshrrev_b32 v28, 19, v28')
        h('v_mul_u32_u24 v29, 12, v28')
        h('v_sub_u32 v29, v27, v29')
        h('v_lshrrev_b32 v30, 2, v29')
        h('v_lshlrev_b32 v30, 10, v30')
        h('v_and_b32 v31, 3, v29')
        h('v_lshlrev_b32 v31, 4, v31')
        h('v_mul_u32_u24 v32, 3072, v28')
        h(f'v_add3_u32 v{VW[p]}, v32, v30, v31')
        if p: h(f'v_subrev_u32 v{VW[p]}, {1024*p}, v{VW[p]}')
        h('v_mul_u32_u24 v32, 2752, v28')
        h('v_lshlrev_b32 v31, 4, v29')
        h(f'v_add_u32 v{VW1[p]}, v32, v31')
        if p: h(f'v_subrev_u32 v{VW1[p]}, {1024*p}, v{VW1[p]}')
    h('s_lshl_b32 s50, s38, 17')
    h('s_lshl_b32 s51, s37, 15')
    h('s_add_u32 s50, s50, s51')
    h('s_mul_i32 s51, s37, 49152')
    h('s_lshl_b32 s52, s39, 6')
    h('s_add_u32 s51, s51, s52')
    h('s_mul_i32 s52, s37, 44032')
    h('s_lshl_b32 s53, s48, 6')
    h('s_add_u32 s52, s52, s53')
    h('s_lshl_b32 s53, s37, 12')
    h('s_mul_i32 s54, s37, 3072')
    h('s_lshl_b32 s56, s48, 6')
    h('s_and_b32 s58, s39, 3')
    h('s_lshl_b32 s58, s58, 1')
    h('s_add_u32 s58, s58, s38')
    h('s_and_b32 s58, s58, 7')
    h('s_waitcnt lgkmcnt(0)')
    srd(h,sX,pX,2048*512*2); srd(h,sWQ,pWQ,512*1536*2)
    def dmaA(st):
        slot=A_SLOT[st]*SLOT; L=[]
        L.append((f's_add_u32 s61, s58, {st}',None))
        L.append(('s_and_b32 s61, s61, 7',None))
        L.append((f's_add_u32 m0, s53, {slot}',None))
        L.append(('s_lshl_b32 s55, s61, 7',None))
        L.append(('s_add_u32 s55, s55, s50',None))
        for i in range(4):
            L.append((f'buffer_load_dwordx4 v{VX[i]}, {SR(sX)}, s55 offen offset:{1024*i} lds',f'A{st}'))
        L.append((f's_add_u32 m0, s54, {slot+XS}',None))
        L.append((f's_mul_i32 s55, s61, {64*3072}',None))
        L.append(('s_add_u32 s55, s55, s51',None))
        for p in range(3):
            L.append((f'buffer_load_dwordx4 v{VW[p]}, {SR(sWQ)}, s55 offen offset:{1024*p} lds',f'A{st}'))
        return L
    def dmaB(st):
        L=[]
        L.append((f's_add_u32 s61, s58, {st}',None))
        L.append(('s_and_b32 s61, s61, 7',None))
        L.append((f's_add_u32 m0, s54, {W1_ADDR[st]}',None))
        L.append((f's_mul_i32 s55, s61, {64*2752}',None))
        L.append(('s_add_u32 s55, s55, s52',None))
        for p in range(3):
            L.append((f'buffer_load_dwordx4 v{VW1[p]}, {SR(sW1)}, s55 offen offset:{1024*p} lds',f'B{st}'))
        return L
    def emit(e, dmas):
        for (ins,tag) in dmas:
            if tag: e.vm(tag,ins)
            else: e(ins)
    stamp(h,1)
    for st in range(3): emit(h,dmaA(st))
    stamp(h,2)
    srd(h,sW1,pW1,512*1376*2); srd(h,sWS,pWS,WS_SIZE); srd(h,sB1,pB1,1376*2)
    h(f's_load_dwordx2 s[64:65], s[{pWS}:{pWS+1}], 0')
    common_lds_addr(h)
    h('v_lshlrev_b32 v27, 2, v1')
    h.vm('b1', f'buffer_load_dword v31, v27, {SR(sB1)}, s56 offen')
    h('s_cmp_eq_u32 s37, 3')
    h('s_cselect_b32 s57, 0, s37')
    h('s_lshl_b32 s3, s57, 6')
    h(f's_add_u32 s3, s3, {XS}')
    h('v_add_u32 v17, s3, v16')
    PAT=112; ONES=8; SUMA=[116,120]; GRA=[124,104]; CSA=108
    h('v_and_b32 v27, 15, v1')
    h('v_bfe_u32 v28, v1, 4, 1')
    h('v_cmp_eq_u32 vcc, v27, v28')
    h('v_mov_b32 v29, 0x3f803f80')
    h(f'v_cndmask_b32 v{PAT}, 0, v29, vcc')
    for r in range(1,4): h(f'v_mov_b32 v{PAT+r}, v{PAT}')
    for r in range(4): h(f'v_mov_b32 v{ONES+r}, v29')
    for b in SUMA+GRA+[CSA]:
        for r in range(4): h(f'v_mov_b32 v{b+r}, 0')
    h('v_lshrrev_b32 v28, 4, v1')
    h('v_bfe_u32 v29, v1, 1, 3')
    h('v_xor_b32 v28, v28, v29')
    h('v_lshlrev_b32 v28, 4, v28')
    h('v_lshlrev_b32 v27, 7, v27')
    h('s_lshl_b32 s3, s37, 12')
    h('v_add3_u32 v5, v27, v28, s3')
    h('v_xor_b32 v6, 64, v5')
    TMP=40; XS16=56
    h('s_waitcnt lgkmcnt(0)')
    h('s_add_u32 s64, s64, 0x7f4a7c15')
    h('s_addc_u32 s65, s65, 0x9e3779b9')
    h(f's_mov_b32 s59, {SLOT}')
    h(f's_mov_b32 s60, {(-4*SLOT)&0xffffffff:#x}')
    sched={0:dmaA(3)+dmaA(4), 1:dmaB(0), 2:dmaA(5), 3:dmaA(6), 4:dmaA(7), 5:dmaB(1)+dmaB(2), 6:dmaB(3)+dmaB(4), 7:dmaB(5)+dmaB(6)}
    for st in range(8):
        h.wait_vm(f'A{st}')
        h('s_barrier')
        if st==0: stamp(h,3)
        dm=sched[st]
        for u in range(2):
            for kk in range(2):
                h(f'ds_read_b128 {R(XS16+8*u+4*kk,4)}, v{5+kk} offset:{2048*u}')
        for ks in range(4):
            for e in range(2):
                h(f'ds_read_b64_tr_b16 {R(TMP+4*ks+2*e,2)}, v17 offset:{ks*3072+e*768}')
        k=0; nv=0
        while nv<2 and k<len(dm):
            if dm[k][1]: h.vm(dm[k][1],dm[k][0]); nv+=1
            else: h(dm[k][0])
            k+=1
        val=[]
        for u in range(2):
            for kk in range(2):
                x=XS16+8*u+4*kk
                val.append(f'v_mfma_f32_16x16x32_bf16 {R(SUMA[u],4)}, {R(ONES,4)}, {R(x,4)}, {R(SUMA[u],4)}')
                val.append(f'ds_read_b128 {R(XF+16*st+4*(2*u+kk),4)}, v{12+2*u+kk}')
                val.append(f'v_mfma_f32_16x16x32_bf16 {R(GRA[u],4)}, {R(x,4)}, {R(x,4)}, {R(GRA[u],4)}')
        val.append('s_waitcnt lgkmcnt(4)')
        for ks in range(4):
            val.append(f'v_mfma_f32_16x16x32_bf16 {R(CSA,4)}, {R(TMP+4*ks,4)}, {R(PAT,4)}, {R(CSA,4)}')
        if st<7:
            d=(A_SLOT[st+1]-A_SLOT[st])*SLOT
            sr='s59' if d==SLOT else 's60'
            for r in (12,13,14,15,17,5,6): val.append(f'v_add_u32 v{r}, {sr}, v{r}')
        h('s_waitcnt lgkmcnt(8)')
        rest=dm[k:]; vi=0
        for (ins,tag) in rest:
            if tag:
                for _ in range(2):
                    if vi<len(val): h(val[vi]); vi+=1
                h.vm(tag,ins)
            else: h(ins)
        while vi<len(val): h(val[vi]); vi+=1
    h('s_waitcnt lgkmcnt(0)')
    h('v_and_b32 v27, 3, v1')
    h('v_cmp_eq_u32 vcc, 1, v27')
    h('v_cmp_eq_u32 s[66:67], 2, v27')
    h('v_cmp_eq_u32 s[68:69], 3, v27')
    h('v_and_b32 v28, 15, v1')
    h('v_lshlrev_b32 v28, 2, v28')
    h('s_lshl_b32 s3, s37, 7')
    h('v_add_u32 v28, s3, v28')
    h(f'v_add_u32 v28, {L_A}, v28')
    for u in range(2):
        gr=GRA[u]; q=32+2*u
        h(f'v_cndmask_b32 v{q}, v{gr}, v{gr+1}, vcc')
        h(f'v_cndmask_b32 v{q}, v{q}, v{gr+2}, s[66:67]')
        h(f'v_cndmask_b32 v{q}, v{q}, v{gr+3}, s[68:69]')
    for u in range(2):
        q=32+2*u; m=SUMA[u]
        h(f'v_mul_f32 v{m}, {f2u(1/512):#x}, v{m}')
        h(f'v_mul_f32 v{q}, {f2u(1/512):#x}, v{q}')
    for u in range(2):
        q=32+2*u; m=SUMA[u]
        h(f'v_fma_f32 v{q}, -v{m}, v{m}, v{q}')
        h(f'v_max_f32 v{q}, 0, v{q}')
        h(f'v_add_f32 v{q+1}, {f2u(1e-5):#x}, v{q}')
    for u in range(2):
        q=32+2*u
        h(f'v_rsq_f32 v{q+1}, v{q+1}')
    h('s_nop 0')
    for u in range(2):
        q=32+2*u; m=SUMA[u]
        h(f'v_mul_f32 v{m+1}, v{q+1}, v{q+1}')
        h(f'v_mul_f32 v{m+1}, v{m+1}, v{q}')
        h(f'v_add_f32 v{m+1}, {f2u(1e-5):#x}, v{m+1}')
    for u in range(2):
        m=SUMA[u]
        h(f'v_rsq_f32 v{m+1}, v{m+1}')
    h('s_mov_b32 s66, 0x00f0000f')
    h('s_mov_b32 s67, 0xf0000f00')
    for u in range(2):
        q=32+2*u; m=SUMA[u]
        h(f'v_mul_f32 v{m+2}, v{m+1}, v{q+1}')
        h(f'v_mul_f32 v{m+3}, v{m+2}, v{m}')
    h('s_mov_b64 exec, s[66:67]')
    for u in range(2):
        q=32+2*u; m=SUMA[u]
        h(f'ds_write_b32 v28, v{q+1} offset:{64*u}')
        h(f'ds_write_b32 v28, v{m} offset:{64*u+L_MU-L_A}')
        h(f'ds_write_b32 v28, v{m+2} offset:{64*u+L_A2-L_A}')
        h(f'ds_write_b32 v28, v{m+3} offset:{64*u+L_A2M-L_A}')
    h('s_mov_b64 exec, -1')
    h('v_and_b32 v29, 15, v1')
    h('v_lshlrev_b32 v29, 6, v29')
    h('v_lshrrev_b32 v30, 4, v1')
    h('v_lshlrev_b32 v30, 4, v30')
    h('s_lshl_b32 s55, s57, 7')
    h('v_add3_u32 v29, v29, v30, s55')
    h(f'v_add_u32 v29, {L_CS}, v29')
    h('s_mov_b32 s62, 0x00030003')
    h('s_mov_b32 s63, 0x00030003')
    h('s_mov_b64 exec, s[62:63]')
    h(f'ds_write_b128 v29, {R(CSA,4)}')
    h('s_mov_b64 exec, -1')
    h('v_lshlrev_b32 v27, 2, v3')
    h('v_add_u32 v28, s3, v27')
    h(f'v_add_u32 v28, {L_A2}, v28')
    h('s_waitcnt lgkmcnt(0)')
    h('ds_read_b32 v38, v28')
    h(f'ds_read_b32 v30, v28 offset:{L_A2M-L_A2}')
    h.wait_vm('b1')
    h('v_lshlrev_b32 v34, 16, v31')
    h('v_and_b32 v35, 0xffff0000, v31')
    h('v_lshlrev_b32 v28, 3, v1')
    h(f'v_add_u32 v28, {L_B1}, v28')
    h('v_cmp_gt_u32 vcc, 48, v1')
    h('s_and_saveexec_b64 s[66:67], vcc')
    h('ds_write_b64 v28, v[34:35]')
    h('s_mov_b64 exec, s[66:67]')
    ACC=[64,80,96]
    for r in range(64,112): h(f'v_mov_b32 v{r}, 0')
    FS=[40,52,112]
    TS=[57,59,60]
    for sl in range(3):
        h(f's_add_u32 s3, s37, {sl}')
        h('s_cmp_ge_u32 s3, 3')
        h('s_cselect_b32 s55, 3, 0')
        h('s_sub_u32 s3, s3, s55')
        h('s_cmp_ge_u32 s3, 3')
        h('s_cselect_b32 s55, 3, 0')
        h('s_sub_u32 s3, s3, s55')
        h(f's_mov_b32 s{TS[sl]}, s3')
        h('s_lshl_b32 s3, s3, 6')
        h(f'v_add_u32 v{12+sl}, s3, v16')
    PAT2=8; CS1A=124
    for r in range(4):
        h(f'v_mov_b32 v{PAT2+r}, v{PAT}')
        h(f'v_mov_b32 v{CS1A+r}, 0')
    cur=[0]
    def setbase(st):
        d=W1_ADDR[st]-cur[0]
        if d:
            for sl in range(3): h(f'v_add_u32 v{12+sl}, {d&0xffffffff:#x}, v{12+sl}')
        cur[0]=W1_ADDR[st]
    def readsB(n):
        st,ks=divmod(n,4); fs=FS[n%3]
        if ks==0: setbase(st)
        for sl in range(3):
            for e in range(2):
                h(f'ds_read_b64_tr_b16 {R(fs+4*sl+2*e,2)}, v{12+sl} offset:{ks*3072+e*768}')
    def mfmaB(n):
        fs=FS[n%3]
        for sl in range(3):
            h(f'v_mfma_f32_32x32x16_bf16 {R(ACC[sl],16)}, {R(fs+4*sl,4)}, {R(XF+4*n,4)}, {R(ACC[sl],16)}')
            if sl==1:
                h(f'v_mfma_f32_16x16x32_bf16 {R(CS1A,4)}, {R(fs,4)}, {R(PAT2,4)}, {R(CS1A,4)}')
    h(f'v_mov_b32 v17, {L_CNT+12}')
    h('v_mov_b32 v7, 1')
    h.wait_vm(['B0','B1'])
    h('s_waitcnt lgkmcnt(0)')
    stamp(h,4)
    h('s_barrier')
    bar={8:['B2','B3','B4','B5'], 24:['B6','B7']}
    emit(h,dmaB(7))
    readsB(0); readsB(1)
    for n in range(32):
        m=n+2
        if m+1 in bar:
            h.wait_vm(bar[m+1])
            gbar_arrive(h, 17, 7)
        if m<32 and m in bar:
            gbar_wait(h, 17, 6, 4 if m==8 else 8)
            readsB(m)
        elif m<32:
            h('s_waitcnt lgkmcnt(6)')
            readsB(m)
        elif m==32:
            h('s_waitcnt lgkmcnt(6)')
        else:
            h('s_waitcnt lgkmcnt(0)')
        mfmaB(n)
    h('v_and_b32 v29, 15, v1')
    h('v_lshlrev_b32 v29, 6, v29')
    h('v_lshrrev_b32 v27, 4, v1')
    h('v_lshlrev_b32 v27, 4, v27')
    h(f's_lshl_b32 s55, s{TS[0]}, 7')
    h('v_add3_u32 v29, v29, v27, s55')
    h(f'v_add_u32 v29, {L_CS1}, v29')
    h('s_nop 1')
    h('s_mov_b64 exec, s[62:63]')
    h(f'ds_write_b128 v29, {R(CS1A,4)}')
    h('s_mov_b64 exec, -1')
    h('s_waitcnt lgkmcnt(0)')
    gbar_arrive(h, 17, 7)
    stamp(h,5)
    gbar_wait(h, 17, 6, 12)
    C1=-2*1.4426950408889634*0.7978845608028654
    C2=C1*0.044715
    h(f's_mov_b32 s66, {f2u(C2):#x}')
    h(f'v_mov_b32 v32, {f2u(C1):#x}')
    h('v_lshlrev_b32 v23, 4, v4')
    h('v_lshlrev_b32 v28, 4, v1')
    h('s_lshl_b32 s53, s38, 2')
    h('s_add_u32 s53, s53, s37')
    h('s_mul_i32 s53, s53, 86')
    CSR=[128,160,192]; B1R=[144,176,208]
    for sl in range(3):
        h(f's_lshl_b32 s3, s{TS[sl]}, 7')
        h('v_add_u32 v24, s3, v23')
        h(f'v_add_u32 v24, {L_CS1}, v24')
        for gg in range(4):
            h(f'ds_read_b128 {R(CSR[sl]+4*gg,4)}, v24 offset:{8*gg*4}')
            h(f'ds_read_b128 {R(B1R[sl]+4*gg,4)}, v24 offset:{8*gg*4+L_B1-L_CS1}')
        if sl==0: h('s_waitcnt lgkmcnt(0)')
    for sl in range(3):
        acc=ACC[sl]; cs=CSR[sl]; b1=B1R[sl]
        lab=f'K_SKIP{sl}'
        h(f's_cmp_ge_u32 s{TS[sl]}, s49')
        h(f's_cbranch_scc1 {lab}')
        h(f's_add_u32 s54, s48, s{TS[sl]}')
        h('s_lshl_b32 s54, s54, 1')
        h('s_add_u32 s54, s54, s53')
        h('s_lshl_b32 s54, s54, 10')
        h(f's_add_u32 s54, s54, {WS_H}')
        if sl==1: h('s_waitcnt lgkmcnt(0)')
        for r in range(16): h(f'v_fma_f32 v{b1+r}, -v{cs+r}, v30, v{b1+r}')
        for r in range(16): h(f'v_fma_f32 v{acc+r}, v{acc+r}, v38, v{b1+r}')
        for r in range(16): h(f'v_mul_f32 v{cs+r}, v{acc+r}, v{acc+r}')
        for r in range(16): h(f'v_fma_f32 v{cs+r}, v{cs+r}, s66, v32')
        for r in range(16): h(f'v_mul_f32 v{cs+r}, v{cs+r}, v{acc+r}')
        for r in range(16): h(f'v_exp_f32 v{cs+r}, v{cs+r}')
        for r in range(16): h(f'v_add_f32 v{cs+r}, 1.0, v{cs+r}')
        for r in range(16): h(f'v_rcp_f32 v{cs+r}, v{cs+r}')
        for r in range(16): h(f'v_mul_f32 v{acc+r}, v{acc+r}, v{cs+r}')
        for i in range(8): h(f'v_cvt_pk_bf16_f32 v{b1+i}, v{acc+2*i}, v{acc+2*i+1}')
        h(f'buffer_store_dwordx4 {R(b1,4)}, v28, {W_}, s54 offen sc1')
        h(f'buffer_store_dwordx4 {R(b1+4,4)}, v28, {W_}, s54 offen offset:1024 sc1')
        h.label(lab)
    stamp(h,6)
    h('s_waitcnt vmcnt(0)')
    h.vmq=[]
    h('s_lshl_b32 s48, s38, 4')
    h('s_add_u32 s48, s48, s39')
    h('s_lshl_b32 s48, s48, 7')
    h(f's_add_u32 s48, s48, {F_2}')
    signal(h, L_CNT+4, 3, 's48', 40)

    h('s_setprio 2' if 'g2hi' in OPT else 's_setprio 0')
    h('s_and_b32 s52, s2, 7')
    h('s_lshr_b32 s53, s2, 3')
    h('s_and_b32 s54, s53, 3')
    h('s_lshl_b32 s52, s52, 2')
    h('s_add_u32 s58, s52, s54')
    h('s_lshr_b32 s59, s53, 2')
    h('v_lshlrev_b32 v5, 4, v1')
    h('v_lshlrev_b32 v8, 7, v1')
    sWw=24
    h('s_lshr_b32 s52, s2, 3')
    h('s_lshl_b32 s52, s52, 2')
    h('s_add_u32 s52, s52, s37')
    h('s_lshl_b32 s52, s52, 14')
    h(f's_cmp_ge_u32 s52, {1376*1024}')
    h(f's_cselect_b32 s{sWw}, s{pWO}, s{pW2}')
    h(f's_cselect_b32 s{sWw+1}, s{pWO+1}, s{pW2+1}')
    h(f's_cselect_b32 s53, {1376*1024}, 0')
    h('s_sub_u32 s52, s52, s53')
    h('s_cmp_eq_u32 s53, 0')
    h(f's_mov_b32 s26, {512*512*2}')
    h(f's_cselect_b32 s26, {1376*512*2}, s26')
    h(f's_mov_b32 s{sWw+3}, 0x00020000')
    for k in range(16 if 'warm' in OPT else 0):
        h(f'buffer_load_dwordx4 v[40:43], v5, {SR(sWw)}, s52 offen offset:{1024*(k%4)}')
        if k%4==3: h('s_add_u32 s52, s52, 4096')
    sW2=24
    h('s_lshr_b32 s52, s58, 1')
    h('s_lshl_b32 s52, s52, 11')
    h(f's_add_u32 s52, s52, {F_2}')
    stamp(h,7)
    poll_wg(h, 16, 'v8', 's52', 46, 4, L_CNT+20)
    stamp(h,8)
    srd(h,sW2,pW2,1376*512*2)
    h('s_sub_u32 s60, s36, 4')
    h('s_mul_i32 s61, s60, 22')
    h('s_cmp_eq_u32 s60, 3')
    h('s_cselect_b32 s52, 1, 0')
    h('s_sub_u32 s61, s61, s52')
    h('s_cmp_lt_u32 s60, 2')
    h('s_cselect_b32 s62, 22, 21')
    h('s_lshl_b32 s63, s59, 1')
    h('s_and_b32 s52, s58, 3')
    h('s_add_u32 s63, s63, s52')
    h('s_sub_u32 s57, s62, s63')
    h('s_add_u32 s61, s61, s63')
    h('s_lshl_b32 s52, s58, 1')
    h('s_mul_i32 s52, s52, 86')
    h('s_add_u32 s52, s52, s61')
    h('s_lshl_b32 s52, s52, 10')
    h(f's_add_u32 s52, s52, {WS_H}')
    h('s_lshl_b32 s54, s61, 14')
    h('s_lshl_b32 s55, s59, 7')
    h('s_add_u32 s54, s54, s55')
    h('s_lshl_b32 s56, s62, 10')
    h('s_lshl_b32 s53, s62, 14')
    h('s_lshl_b32 s55, s60, 14')
    h(f's_add_u32 s55, s55, {L_RING}')
    def wdma_voff(e):
        e('v_lshrrev_b32 v10, 3, v1')
        e('v_lshlrev_b32 v10, 10, v10')
        e('v_and_b32 v11, 7, v1')
        e('v_bfe_u32 v12, v1, 4, 1')
        e('v_lshlrev_b32 v12, 2, v12')
        e('v_xor_b32 v11, v11, v12')
        e('v_lshlrev_b32 v11, 4, v11')
        e('v_add_u32 v10, v10, v11')
        e('v_add_u32 v11, 7168, v10')
    wdma_voff(h)
    h(f'v_add_u32 v17, {86*1024}, v5')
    def tr_addr(e, dst, base_s):
        e('v_bfe_u32 v13, v1, 2, 2')
        e('v_lshlrev_b32 v14, 2, v4')
        e('v_add_u32 v14, v14, v13')
        e('v_lshlrev_b32 v14, 7, v14')
        e('v_bfe_u32 v15, v1, 4, 1')
        e('v_lshlrev_b32 v15, 1, v15')
        e('v_and_b32 v16, 1, v1')
        e('v_add_u32 v15, v15, v16')
        e('v_lshrrev_b32 v13, 1, v13')
        e('v_lshlrev_b32 v13, 2, v13')
        e('v_xor_b32 v15, v15, v13')
        e('v_lshlrev_b32 v15, 4, v15')
        e('v_bfe_u32 v16, v1, 1, 1')
        e('v_lshlrev_b32 v16, 3, v16')
        e('v_add3_u32 v14, v14, v15, v16')
        e(f'v_add_u32 v{dst}, {base_s}, v14')
        e(f'v_xor_b32 v{dst+1}, 64, v{dst}')
    tr_addr(h, 18, 's55')
    GA=[[192,208],[224,240]]
    for tt in range(2):
        for ct in range(2):
            for r in range(16): h(f'v_mov_b32 v{GA[tt][ct]+r}, 0')
    D=G2D
    for o_ in OPT:
        if o_.startswith('D='): D=int(o_[2:])
    XB=[64+8*i for i in range(D)]
    WB=[24,32]
    def g2_issue(sl):
        h(f'buffer_load_dwordx4 {R(XB[sl],4)}, v5, {W_}, s52 offen sc1')
        h(f'buffer_load_dwordx4 {R(XB[sl]+4,4)}, v17, {W_}, s52 offen sc1')
        h(f's_add_u32 m0, s55, {sl*2048}')
        h('s_add_u32 s52, s52, 1024')
        h('s_sub_u32 s57, s57, 1')
        h(f'buffer_load_dwordx4 v10, {SR(sW2)}, s54 offen lds')
        h(f'buffer_load_dwordx4 v11, {SR(sW2)}, s54 offen offset:1024 lds')
        h('s_add_u32 s54, s54, 16384')
        h('s_cmp_eq_u32 s57, 0')
        h('s_cselect_b32 s63, s56, 0')
        h('s_cselect_b32 s61, s53, 0')
        h('s_sub_u32 s52, s52, s63')
        h('s_sub_u32 s54, s54, s61')
    def g2_wread(sl, wb):
        for ct in range(2):
            for e in range(2):
                h(f'ds_read_b64_tr_b16 {R(WB[wb]+4*ct+2*e,2)}, v{18+ct} offset:{sl*2048+e*1024}')
    for sl in range(D-1): g2_issue(sl)
    h(f's_waitcnt vmcnt({4*(D-2)})')
    g2_wread(0,0)
    h.label('K_G2_LOOP')
    for sl in range(D):
        g2_issue((sl+D-1)%D)
        h(f's_waitcnt vmcnt({4*(D-2)})')
        g2_wread((sl+1)%D,(sl+1)%2)
        h('s_waitcnt lgkmcnt(4)')
        for tt in range(2):
            for ct in range(2):
                h(f'v_mfma_f32_32x32x16_bf16 {R(GA[tt][ct],16)}, {R(WB[sl%2]+4*ct,4)}, {R(XB[sl]+4*tt,4)}, {R(GA[tt][ct],16)}')
        h('s_sub_u32 s62, s62, 1')
        h('s_cmp_eq_u32 s62, 0')
        if sl<D-1: h('s_cbranch_scc1 K_G2_DONE')
        else: h('s_cbranch_scc0 K_G2_LOOP')
    h.label('K_G2_DONE')
    h('s_waitcnt vmcnt(0) lgkmcnt(0)')
    stamp(h,11)
    h('s_nop 7')
    for tt in range(2):
        for ct in range(2):
            qd=tt+2*ct
            lab=newlab('GXS')
            h(f's_cmp_eq_u32 s60, {qd}')
            h(f's_cbranch_scc1 {lab}')
            h(f's_sub_u32 s52, {qd+3}, s60')
            h('s_and_b32 s52, s52, 3')
            h('s_lshl_b32 s52, s52, 12')
            h('s_add_u32 s52, s52, s55')
            h('v_add_u32 v14, s52, v5')
            for k in range(4): h(f'ds_write_b128 v14, {R(GA[tt][ct]+4*k,4)} offset:{1024*k}')
            h.label(lab)
    for tt in range(2):
        for ct in range(2):
            qd=tt+2*ct
            if qd==0: continue
            lab=newlab('GXK')
            h(f's_cmp_lg_u32 s60, {qd}')
            h(f's_cbranch_scc1 {lab}')
            h('s_waitcnt lgkmcnt(0)')
            for r in range(16): h(f'v_mov_b32 v{192+r}, v{GA[tt][ct]+r}')
            h.label(lab)
    def att_ids(e):
        e('s_and_b32 s48, s2, 7')
        e('s_lshr_b32 s49, s2, 3')
        e('s_and_b32 s50, s49, 3')
        e('s_lshl_b32 s48, s48, 2')
        e('s_add_u32 s38, s48, s50')
        e('s_lshr_b32 s39, s49, 2')
    h(f'v_mov_b32 v12, {L_CNT+12}')
    h('v_mov_b32 v13, 1')
    h('s_waitcnt lgkmcnt(0)')
    gbar_arrive(h, 12, 13)
    gbar_wait(h, 12, 13, 16)
    for sl in range(3):
        h(f's_sub_u32 s52, s60, {sl+1}')
        h('s_and_b32 s52, s52, 3')
        h('s_lshl_b32 s52, s52, 14')
        h(f's_add_u32 s52, s52, {L_RING+4096*sl}')
        h('v_add_u32 v14, s52, v5')
        for k in range(4): h(f'ds_read_b128 {R(128+16*sl+4*k,4)}, v14 offset:{1024*k}')
    h('s_waitcnt lgkmcnt(0)')
    for sl in range(3):
        for r in range(16): h(f'v_add_f32 v{192+r}, v{192+r}, v{128+16*sl+r}')
    h('s_branch K_TAIL')

    a2=Asm()
    a2.label('K_ATT')
    a2('s_setprio 1')
    att_ids(a2)
    a2('v_lshlrev_b32 v5, 4, v1')
    a2('v_lshlrev_b32 v6, 8, v4')
    a2('v_and_b32 v7, 15, v1')
    a2('v_lshlrev_b32 v7, 4, v7')
    a2('v_add_u32 v6, v6, v7')
    a2('v_lshlrev_b32 v8, 7, v1')
    a2('v_lshlrev_b32 v9, 2, v1')
    a2('s_lshl_b32 s44, s38, 16')
    a2('s_lshl_b32 s46, s39, 13')
    a2('s_add_u32 s46, s46, s44')
    a2(f's_add_u32 s46, s46, {WS_Q}')
    a2('s_lshl_b32 s47, s36, 14')
    a2('s_add_u32 s47, s47, s44')
    a2(f's_add_u32 s48, s47, {WS_V}')
    a2(f's_add_u32 s47, s47, {WS_K}')
    a2('s_mov_b32 s40, s47')
    a2('s_mov_b32 s41, s48')
    a2('s_mul_i32 s49, s38, 768')
    a2(f's_add_u32 s49, s49, {WS_N}')
    a2('s_mov_b32 s50, 0x0000ffff')
    a2('s_mov_b32 s51, 0x0000ffff')
    KB=[80,84,88,92]; VB=[96,104,112,120]; QF=48
    SA,SB=10,26
    OA=[128+16*i for i in range(8)]; IDX=44
    a2('s_lshr_b32 s52, s38, 1')
    a2('s_lshl_b32 s52, s52, 11')
    a2(f's_add_u32 s52, s52, {F_1}')
    stamp(a2,7)
    poll_wg(a2, 16, 'v8', 's52', 46, 0, L_CNT+24)
    stamp(a2,8)
    a2.vm('N', f'buffer_load_dword v42, v9, {W_}, s49 offen sc1')
    a2.vm('N', f'buffer_load_dword v43, v9, {W_}, s49 offen offset:256 sc1')
    a2.vm('N', f'buffer_load_dword v45, v9, {W_}, s49 offen offset:512 sc1')
    def loadkv(b):
        a2.vm('KV', f'buffer_load_dwordx4 {R(KB[b],4)}, v5, {W_}, s47 offen sc1')
        a2('s_mov_b64 exec, s[50:51]')
        a2.vm('KV', f'buffer_load_dwordx4 {R(VB[b],4)}, v6, {W_}, s48 offen sc1')
        a2.vm('KV', f'buffer_load_dwordx4 {R(VB[b]+4,4)}, v6, {W_}, s48 offen offset:512 sc1')
        a2('s_mov_b64 exec, -1')
        a2('s_add_u32 s47, s47, 1024')
        a2('s_add_u32 s48, s48, 1024')
    a2(f'v_mov_b32 v{IDX}, 0x3f803f80')
    for b in VB:
        for r in range(8): a2(f'v_mov_b32 v{b+r}, v{IDX}')
    a2(f'v_mov_b32 v{IDX}, 0xdddddddd')
    for i in range(4):
        a2.vm('Q', f'buffer_load_dwordx4 {R(QF+4*i,4)}, v5, {W_}, s46 offen offset:{1024*i} sc1')
    loadkv(0)
    a2('s_add_u32 s46, s46, 4096')
    for i in range(4,8):
        a2.vm('Q', f'buffer_load_dwordx4 {R(QF+4*i,4)}, v5, {W_}, s46 offen offset:{1024*(i-4)} sc1')
    loadkv(1); loadkv(2)
    for o in OA:
        for r in range(16): a2(f'v_mov_b32 v{o+r}, 0')
    a2.wait_vm('N')
    for sh in (1,2,4,8):
        for r in (42,43,45): a2(f'v_max_f32_dpp v{r}, v{r}, v{r} row_shr:{sh} row_mask:0xf bank_mask:0xf')
    for r in (42,43,45): a2(f'v_max_f32_dpp v{r}, v{r}, v{r} row_bcast:15 row_mask:0xa bank_mask:0xf')
    for r in (42,43,45): a2(f'v_max_f32_dpp v{r}, v{r}, v{r} row_bcast:31 row_mask:0xc bank_mask:0xf')
    a2('s_nop 1')
    a2('v_readlane_b32 s52, v42, 63')
    a2('v_readlane_b32 s53, v43, 63')
    a2('v_readlane_b32 s54, v45, 63')
    a2('s_nop 1')
    a2('v_mov_b32 v42, s52')
    a2('v_mul_f32 v42, s54, v42')
    a2(f'v_mul_f32 v42, {f2u(1.05):#x}, v42')
    a2(f'v_mov_b32 v43, {f2u(T_LOG2*T_LOG2):#x}')
    a2('v_cmp_le_f32 vcc, v42, v43')
    a2('v_mov_b32 v42, s53')
    a2(f'v_mov_b32 v43, {f2u(2.0**60):#x}')
    a2('v_cmp_le_f32 s[56:57], v42, v43')
    a2('s_nop 1')
    a2('s_and_b64 vcc, vcc, s[56:57]')
    a2('s_cmp_eq_u64 vcc, -1')
    a2('s_cbranch_scc0 K_SLOW')
    def qk(kb, i, dst): return f'v_mfma_f32_32x32x16_bf16 {R(dst,16)}, {R(KB[kb],4)}, {R(QF+4*i,4)}, 0'
    def pv(kb, i, half, src): return f'v_smfmac_f32_32x32x32_bf16 {R(OA[i],16)}, {R(VB[kb]+4*half,4)}, {R(src+8*half,8)}, v{IDX}'
    a2('s_waitcnt vmcnt(6)')
    stamp(a2,9)
    a2(qk(0,0,SA))
    for r in range(8,16): a2(f'v_mov_b32 v{SB+r}, 0')
    a2('s_mov_b32 s42, 0')
    a2('s_nop 3')
    a2.label('K_ATT_LOOP')
    for n in range(32):
        kb,i=divmod(n,8)
        sa=SA if n%2==0 else SB
        sb=SB if n%2==0 else SA
        ex=[f'v_exp_f32 v{sa+r}, v{sa+r}' for r in range(16)]
        for e in ex[0:2]: a2(e)
        pkb,pi=divmod((n-1)%32,8)
        a2(pv(pkb,pi,1,sb))
        if i==0: loadkv((kb+3)%4)
        for e in ex[2:5]: a2(e)
        nkb,ni=divmod((n+1)%32,8)
        if i==7: a2('s_waitcnt vmcnt(6)')
        a2(qk(nkb,ni,sb))
        for e in ex[5:11]: a2(e)
        a2(pv(kb,i,0,sa))
        for e in ex[11:16]: a2(e)
    a2('s_add_u32 s42, s42, 1')
    a2('s_cmp_lt_u32 s42, 4')
    a2('s_cbranch_scc1 K_ATT_LOOP')
    a2('s_nop 1')
    a2(pv(3,7,1,SB))
    a2.label('K_ATT_DONE')
    stamp(a2,10)
    a2('s_waitcnt vmcnt(0)')
    a2.vmq=[]
    a2(f'v_mov_b32 v12, {L_CNT+12}')
    gbar_wait(a2, 12, 13, 12)
    a2('s_mul_i32 s52, s36, 2304')
    a2(f'v_add_u32 v12, s52, v5')
    a2(f'v_add_u32 v13, s52, v9')
    a2(f'v_add_u32 v14, {4*9216}, v12')
    a2(f'v_add_u32 v15, {4*9216}, v13')
    for i in range(8):
        off=(i%4)*9216; b=12 if i<4 else 14
        a2(f'ds_write_b128 v{b}, {R(OA[i],4)} offset:{off}')
        a2(f'ds_write_b128 v{b}, {R(OA[i]+4,4)} offset:{off+1024}')
        a2(f'ds_write_b32 v{b+1}, v{OA[i]+8} offset:{off+2048}')
    a2('s_and_b32 s52, s2, 7')
    a2('s_lshr_b32 s53, s2, 3')
    a2('s_and_b32 s54, s53, 3')
    a2('s_lshl_b32 s52, s52, 2')
    a2('s_add_u32 s58, s52, s54')
    a2('s_lshr_b32 s59, s53, 2')
    a2(f'v_mov_b32 v20, {L_CNT+28}')
    a2('v_mov_b32 v21, 1')
    a2('s_waitcnt lgkmcnt(0)')
    gbar_arrive(a2, 20, 21)
    gbar_wait(a2, 20, 22, 4)
    stamp(a2,12)
    a2('s_mul_i32 s53, s36, 18432')
    a2('v_add_u32 v14, s53, v5')
    a2('v_add_u32 v15, s53, v9')
    for t_ in range(2):
        for sl in range(4):
            b=32+48*t_+12*sl
            a2(f'ds_read_b128 {R(b,4)}, v14 offset:{9216*t_+2304*sl}')
            a2(f'ds_read_b128 {R(b+4,4)}, v14 offset:{9216*t_+2304*sl+1024}')
            a2(f'ds_read_b32 v{b+8}, v15 offset:{9216*t_+2304*sl+2048}')
        if t_==0: a2('s_waitcnt lgkmcnt(0)')
    a2('s_lshl_b32 s53, s39, 3')
    a2('s_lshl_b32 s52, s36, 1')
    a2('s_add_u32 s53, s53, s52')
    a2('s_lshl_b32 s53, s53, 5')
    a2('s_add_u32 s53, s53, s38')
    a2('s_lshl_b32 s53, s53, 10')
    a2(f's_add_u32 s53, s53, {WS_O}')
    for t_ in range(2):
        b=32+48*t_
        if t_==1: a2('s_waitcnt lgkmcnt(0)'); gbar_arrive(a2, 20, 21)
        for sl in range(1,4):
            for r in range(9): a2(f'v_add_f32 v{b+r}, v{b+r}, v{b+12*sl+r}')
        a2(f'v_rcp_f32 v{b+9}, v{b+8}')
        a2('s_nop 0')
        for r in range(8): a2(f'v_mul_f32 v{b+r}, v{b+r}, v{b+9}')
        for i in range(4): a2(f'v_cvt_pk_bf16_f32 v{b+12+i}, v{b+2*i}, v{b+2*i+1}')
        a2(f'buffer_store_dwordx4 {R(b+12,4)}, v5, {W_}, s53 offen sc1')
        if t_==0: a2(f's_add_u32 s53, s53, {32*1024}')
    ACC3=192
    for r in range(16): a2(f'v_mov_b32 v{ACC3+r}, 0')
    gbar_wait(a2, 20, 22, 8)
    sWO=24
    srd(a2,sWO,pWO,512*512*2)
    wdma_voff(a2)
    a2('s_lshl_b32 s52, s36, 17')
    a2('s_lshl_b32 s53, s59, 7')
    a2('s_add_u32 s52, s52, s53')
    a2('s_lshl_b32 s53, s36, 14')
    for i in range(8):
        a2(f's_add_u32 m0, s53, {L_WO+2048*i}')
        a2('s_nop 0')
        a2(f'buffer_load_dwordx4 v10, {SR(sWO)}, s52 offen lds')
        a2(f'buffer_load_dwordx4 v11, {SR(sWO)}, s52 offen offset:1024 lds')
        a2('s_add_u32 s52, s52, 16384')
    a2('s_waitcnt vmcnt(16)')
    a2('s_lshl_b32 s52, s39, 5')
    a2('s_add_u32 s52, s52, s38')
    a2('s_lshl_b32 s52, s52, 7')
    a2(f's_add_u32 s52, s52, {F_3}')
    signal(a2, L_CNT+8, 3, 's52', 46)
    a2.label('K_TAIL')
    a2('s_setprio 0')
    a2('v_lshlrev_b32 v8, 7, v1')
    sOUT,sB2,sX2=32,40,44
    srd(a2,sOUT,pOUT,2048*512*2); srd(a2,sB2,pB2,512*2); srd(a2,sX2,pX,2048*512*2)
    a2('s_and_b32 s50, s36, 1')
    a2('s_bfe_u32 s51, s36, 0x10001')
    a2('s_lshr_b32 s49, s36, 2')
    a2('s_lshl_b32 s60, s58, 6')
    a2('s_lshl_b32 s61, s50, 5')
    a2('s_add_u32 s60, s60, s61')
    a2('v_add_u32 v20, s60, v3')
    a2('v_lshlrev_b32 v20, 10, v20')
    a2('s_lshl_b32 s60, s59, 6')
    a2('s_lshl_b32 s61, s51, 5')
    a2('s_add_u32 s60, s60, s61')
    a2('s_lshl_b32 s61, s49, 4')
    a2('s_add_u32 s60, s60, s61')
    a2('v_lshlrev_b32 v21, 3, v4')
    a2('v_add_u32 v21, s60, v21')
    a2('v_lshlrev_b32 v21, 1, v21')
    a2('v_add_u32 v20, v20, v21')
    a2(f'buffer_load_dwordx4 v[52:55], v20, {SR(sX2)}, 0 offen')
    a2(f'buffer_load_dwordx4 v[56:59], v21, {SR(sB2)}, 0 offen')
    a2('s_lshl_b32 s52, s51, 6')
    a2(f's_lshl_b32 s53, s49, 15')
    a2(f's_add_u32 s53, s53, {L_WO}')
    tr_addr(a2, 18, 's53')
    a2('v_xor_b32 v18, s52, v18')
    a2('s_lshl_b32 s52, s50, 15')
    a2('s_lshl_b32 s53, s49, 14')
    a2('s_add_u32 s52, s52, s53')
    a2(f's_add_u32 s52, s52, {L_OX}')
    a2('v_add_u32 v19, s52, v5')
    a2('s_lshr_b32 s52, s58, 2')
    a2('s_lshl_b32 s52, s52, 12')
    a2(f's_add_u32 s52, s52, {F_3}')
    stamp(a2,13)
    a2('s_waitcnt vmcnt(0)')
    a2('s_cmp_eq_u32 s36, 0')
    a2('s_cbranch_scc0 K_S3W')
    poll(a2, 32, 'v8', 's52', 46)
    a2.label('K_S3W')
    a2.vmq=[]
    a2('s_barrier')
    stamp(a2,14)
    a2('s_cmp_eq_u32 s2, 0')
    a2('s_cbranch_scc0 K_NOE')
    a2('s_cmp_eq_u32 s36, 0')
    a2('s_cbranch_scc0 K_NOE')
    a2('v_mov_b32 v46, s64'); a2('v_mov_b32 v47, s65'); a2('v_mov_b32 v48, 0')
    a2('s_mov_b64 exec, 1')
    a2(f'buffer_store_dwordx2 v[46:47], v48, {W_}, 0 offen')
    a2('s_mov_b64 exec, -1')
    a2.label('K_NOE')
    a2('s_bfe_u32 s52, s36, 0x10001')
    a2('s_lshl_b32 s52, s52, 4')
    a2('s_lshr_b32 s53, s36, 2')
    a2('s_lshl_b32 s53, s53, 1')
    a2('s_add_u32 s52, s52, s53')
    a2('s_lshl_b32 s53, s58, 1')
    a2('s_add_u32 s53, s53, s50')
    a2('s_lshl_b32 s53, s53, 5')
    a2('s_add_u32 s53, s53, s52')
    a2('s_lshl_b32 s53, s53, 10')
    a2(f's_add_u32 s53, s53, {WS_O}')
    a2('s_lshl_b32 s54, s50, 5')
    a2('s_add_u32 s54, s54, s52')
    a2('s_lshl_b32 s54, s54, 10')
    a2(f's_add_u32 s54, s54, {L_OX}')
    for s_ in range(4):
        a2(f's_add_u32 m0, s54, {4096*s_}')
        a2(f's_add_u32 s55, s53, {4096*s_}')
        a2.vm(f'O{s_}', f'buffer_load_dwordx4 v5, {W_}, s55 offen sc1 lds')
        a2.vm(f'O{s_}', f'buffer_load_dwordx4 v5, {W_}, s55 offen offset:1024 sc1 lds')
    FX=[64,68,72,76]; FW=[80,84,88,92]
    for s_ in range(4):
        a2.wait_vm(f'O{s_}')
        a2('s_barrier')
        for k in range(4):
            ks=4*s_+k
            a2(f'ds_read_b128 {R(FX[k],4)}, v19 offset:{ks*1024}')
            a2(f'ds_read_b64_tr_b16 {R(FW[k],2)}, v18 offset:{ks*2048}')
            a2(f'ds_read_b64_tr_b16 {R(FW[k]+2,2)}, v18 offset:{ks*2048+1024}')
        for k in range(4):
            a2(f's_waitcnt lgkmcnt({3*(3-k)})')
            a2(f'v_mfma_f32_32x32x16_bf16 {R(ACC3,16)}, {R(FW[k],4)}, {R(FX[k],4)}, {R(ACC3,16)}')
    stamp(a2,15)
    a2('s_and_b32 s52, s36, 3')
    a2('s_lshl_b32 s52, s52, 12')
    a2('s_lshl_b32 s53, s49, 11')
    a2('s_add_u32 s54, s52, s53')
    a2('s_xor_b32 s53, s53, 2048')
    a2('s_add_u32 s55, s52, s53')
    a2(f's_add_u32 s54, s54, {L_EX}')
    a2(f's_add_u32 s55, s55, {L_EX}')
    a2('v_add_u32 v22, s54, v5')
    a2('v_add_u32 v23, s55, v5')
    a2('s_nop 7')
    a2('s_cmp_eq_u32 s49, 0')
    a2('s_cbranch_scc1 K_KH0')
    a2(f'ds_write_b128 v22, {R(ACC3,4)}')
    a2(f'ds_write_b128 v22, {R(ACC3+4,4)} offset:1024')
    a2('s_waitcnt lgkmcnt(0)')
    for r in range(8): a2(f'v_mov_b32 v{ACC3+r}, v{ACC3+8+r}')
    a2('s_branch K_EX')
    a2.label('K_KH0')
    a2(f'ds_write_b128 v22, {R(ACC3+8,4)}')
    a2(f'ds_write_b128 v22, {R(ACC3+12,4)} offset:1024')
    a2.label('K_EX')
    a2('s_waitcnt lgkmcnt(0)')
    a2('s_barrier')
    a2('ds_read_b128 v[64:67], v23')
    a2('ds_read_b128 v[68:71], v23 offset:1024')
    for i in range(4):
        a2(f'v_lshlrev_b32 v{72+2*i}, 16, v{52+i}')
        a2(f'v_and_b32 v{73+2*i}, 0xffff0000, v{52+i}')
        a2(f'v_lshlrev_b32 v{80+2*i}, 16, v{56+i}')
        a2(f'v_and_b32 v{81+2*i}, 0xffff0000, v{56+i}')
    for r in range(8): a2(f'v_add_f32 v{72+r}, v{72+r}, v{80+r}')
    a2('s_waitcnt lgkmcnt(0)')
    for r in range(8): a2(f'v_add_f32 v{ACC3+r}, v{ACC3+r}, v{64+r}')
    for r in range(8): a2(f'v_add_f32 v{ACC3+r}, v{ACC3+r}, v{72+r}')
    for i in range(4): a2(f'v_cvt_pk_bf16_f32 v{64+i}, v{ACC3+2*i}, v{ACC3+2*i+1}')
    a2(f'buffer_store_dwordx4 v[64:67], v20, {SR(sOUT)}, 0 offen')
    stamp_flush(a2,16)
    a2('s_endpgm')
    a2.label('K_SLOW')
    a2('s_waitcnt vmcnt(0)')
    MX=116
    a2('s_mov_b32 s58, s40')
    for i in range(8): a2(f'v_mov_b32 v{MX+i}, 0xff800000')
    a2('s_mov_b32 s59, 0')
    a2.label('K_S1')
    a2(f'buffer_load_dwordx4 {R(KB[0],4)}, v5, {W_}, s58 offen sc1')
    a2('s_waitcnt vmcnt(0)')
    for i in range(8):
        a2(f'v_mfma_f32_32x32x16_bf16 {R(SA,16)}, {R(KB[0],4)}, {R(QF+4*i,4)}, 0')
        a2('s_nop 7'); a2('s_nop 7')
        for r in range(0,16,2): a2(f'v_max3_f32 v{MX+i}, v{MX+i}, v{SA+r}, v{SA+r+1}')
    a2('s_add_u32 s58, s58, 1024')
    a2('s_add_u32 s59, s59, 1')
    a2('s_cmp_lt_u32 s59, 16')
    a2('s_cbranch_scc1 K_S1')
    for i in range(8): a2(f'v_mov_b32 v{SA+i}, v{MX+i}')
    a2('s_nop 1')
    for i in range(8): a2(f'v_permlane32_swap_b32 v{MX+i}, v{SA+i}')
    a2('s_nop 1')
    for i in range(8): a2(f'v_max_f32 v{MX+i}, v{MX+i}, v{SA+i}')
    a2(f'v_mov_b32 v12, {L_CNT+12}')
    gbar_wait(a2, 12, 13, 12)
    a2('s_lshl_b32 s53, s36, 11')
    a2(f's_add_u32 s53, s53, {L_MX}')
    a2('v_add_u32 v42, s53, v9')
    for i in range(8): a2(f'ds_write_b32 v42, v{MX+i} offset:{256*i}')
    a2(f'v_mov_b32 v12, {L_CNT+16}')
    a2('v_mov_b32 v13, 1')
    a2('s_waitcnt lgkmcnt(0)')
    gbar_arrive(a2, 12, 13)
    gbar_wait(a2, 12, 13, 4)
    a2(f'v_add_u32 v42, {L_MX}, v9')
    for q in range(4):
        for i in range(8): a2(f'ds_read_b32 v{SA+i}, v42 offset:{2048*q+256*i}')
        a2('s_waitcnt lgkmcnt(0)')
        for i in range(8): a2(f'v_max_f32 v{MX+i}, v{MX+i}, v{SA+i}')
    a2('s_mov_b32 s58, s40'); a2('s_mov_b32 s60, s41')
    a2('s_mov_b32 s59, 0')
    a2.label('K_S2')
    a2(f'buffer_load_dwordx4 {R(KB[0],4)}, v5, {W_}, s58 offen sc1')
    a2('s_mov_b64 exec, s[50:51]')
    a2(f'buffer_load_dwordx4 {R(VB[0],4)}, v6, {W_}, s60 offen sc1')
    a2(f'buffer_load_dwordx4 {R(VB[0]+4,4)}, v6, {W_}, s60 offen offset:512 sc1')
    a2('s_mov_b64 exec, -1')
    a2('s_waitcnt vmcnt(0)')
    for i in range(8):
        a2(f'v_mfma_f32_32x32x16_bf16 {R(SA,16)}, {R(KB[0],4)}, {R(QF+4*i,4)}, 0')
        a2('s_nop 7'); a2('s_nop 7')
        for r in range(16): a2(f'v_sub_f32 v{SA+r}, v{SA+r}, v{MX+i}')
        for r in range(16): a2(f'v_exp_f32 v{SA+r}, v{SA+r}')
        a2('s_nop 1')
        a2(f'v_smfmac_f32_32x32x32_bf16 {R(OA[i],16)}, {R(VB[0],4)}, {R(SA,8)}, v{IDX}')
        a2(f'v_smfmac_f32_32x32x32_bf16 {R(OA[i],16)}, {R(VB[0]+4,4)}, {R(SA+8,8)}, v{IDX}')
        a2('s_nop 7')
    a2('s_add_u32 s58, s58, 1024')
    a2('s_add_u32 s60, s60, 1024')
    a2('s_add_u32 s59, s59, 1')
    a2('s_cmp_lt_u32 s59, 16')
    a2('s_cbranch_scc1 K_S2')
    a2('s_nop 7')
    a2('s_branch K_ATT_DONE')
    return a.text()+'\n'+g.text()+'\n'+h.text()+'\n'+a2.text()+'\nK_END:\n  s_endpgm\n'

HEADER=open('cdna_kernels/'+NAME+'.s.ref').read().split('; Override launch geometry')[0]
def assemble(body):
    n=NAME+'_kernel'
    return HEADER+f'''; @launch grid=(256,1,1) block=(512,1,1) lds={LDS_TOTAL}
.amdgcn_target "amdgcn-amd-amdhsa--gfx950"
.text
.globl {n}
.p2align 8
.type {n},@function
{n}:
{body}
.section .rodata,"a"
.p2align 6
.amdhsa_kernel {n}
  .amdhsa_next_free_vgpr 256
  .amdhsa_next_free_sgpr 102
  .amdhsa_accum_offset 256
  .amdhsa_group_segment_fixed_size 0
  .amdhsa_kernarg_size 88
  .amdhsa_user_sgpr_count 2
  .amdhsa_user_sgpr_kernarg_segment_ptr 1
  .amdhsa_system_sgpr_workgroup_id_x 1
  .amdhsa_float_denorm_mode_32 3
.end_amdhsa_kernel
'''
if __name__=='__main__':
    outp=sys.argv[1]
    if 'stamp' in sys.argv: STAMP=True
    OPT.update(sys.argv[2:])
    open(outp,'w').write(assemble(gen()))
    print('wrote',outp)
```

```python
import sys, struct
NAME='parallel_sum__softmax_full_mha__mixer_channel_mlp__prompt'

WS_F = 0
F_1, F_2, F_3 = 32768, 65536, 98304
WS_N = 256<<10
WS_Q = 1<<20
WS_K = 3<<20
WS_V = 5<<20
WS_O = 7<<20
WS_H = 9<<20
WS_T = 15<<20
WS_SIZE = 16<<20
QSCALE = 0.25*1.4426950408889634
T_LOG2 = 48.0
SPIN_MAX = 1<<20

def f2u(f): return struct.unpack('<I', struct.pack('<f', f))[0]

STAMP=False
OPT=set()
class Asm:
    def __init__(self):
        self.L=[]; self.vmq=[]
    def __call__(self, s): self.L.append('  '+s)
    def c(self, s): self.L.append('  ; '+s)
    def label(self, n): self.L.append(n+':')
    def vm(self, tag, s):
        self.vmq.append(tag); self(s)
    def wait_vm(self, tags):
        if isinstance(tags,str): tags=[tags]
        idx=[i for i,t in enumerate(self.vmq) if t in tags]
        if not idx: return
        last=max(idx); n=len(self.vmq)-1-last
        assert n<=63
        self(f's_waitcnt vmcnt({n})')
        self.vmq=self.vmq[last+1:]
    def wait_vm_all(self):
        self('s_waitcnt vmcnt(0)'); self.vmq=[]
    def text(self): return '\n'.join(self.L)

def stamp(a, i):
    if STAMP: a(f's_memtime s[{70+2*i}:{71+2*i}]')
def stamp_flush(a, n):
    if not STAMP: return
    a('s_waitcnt vmcnt(0) lgkmcnt(0)')
    a('s_lshl_b32 s69, s2, 3')
    a('s_add_u32 s69, s69, s36')
    a('s_lshl_b32 s69, s69, 6')
    a(f's_add_u32 s69, s69, {WS_T}')
    a('v_mov_b32 v2, 0')
    for i in range(n):
        a(f'v_mov_b32 v3, s{70+2*i}')
        a('s_mov_b64 exec, 1')
        a(f'buffer_store_dword v3, v2, s[28:31], s69 offen offset:{4*i}')
        a('s_mov_b64 exec, -1')
        a('s_nop 1')

def stamp_dbg(a):
    if not (STAMP and 'dbg' in OPT): return
    lab=newlab('DBG')
    a('s_cmp_eq_u32 s2, 37')
    a(f's_cbranch_scc0 {lab}')
    a('s_cmp_eq_u32 s36, 0')
    a(f's_cbranch_scc0 {lab}')
    a('s_load_dwordx2 s[66:67], s[0:1], 72')
    a('s_waitcnt lgkmcnt(0)')
    a('s_mov_b32 s40, s66'); a('s_mov_b32 s41, s67'); a('s_mov_b32 s42, 256'); a('s_mov_b32 s43, 0x00020000')
    a('v_mov_b32 v2, 0')
    a('s_mov_b64 exec, 1')
    for i in range(16):
        a(f's_sub_u32 s3, s{70+2*i}, s70')
        a('v_mov_b32 v3, s3')
        a(f'buffer_store_dword v3, v2, s[40:43], 0 offen offset:{4*i}')
        a('s_nop 1')
    a('s_mov_b64 exec, -1')
    a.label(lab)

def R(a,n=1): return f'v{a}' if n==1 else f'v[{a}:{a+n-1}]'
def SR(a): return f's[{a}:{a+3}]'
def srd(a, d, ptr, size):
    a(f's_mov_b32 s{d}, s{ptr}')
    a(f's_mov_b32 s{d+1}, s{ptr+1}')
    a(f's_mov_b32 s{d+2}, {size}')
    a(f's_mov_b32 s{d+3}, 0x00020000')
def pk(op, d, a_, b_, c_=None, bsel=None, csel=None, neg=None):
    ops=[a_,b_]+([c_] if c_ is not None else [])
    n=len(ops)
    txt=[ (f'v[{o}:{o+1}]' if isinstance(o,int) else o) for o in ops]
    hi=[1]*n
    if bsel=='lo': hi[1]=0
    if csel=='lo': hi[2]=0
    s_=f'v_pk_{op}_f32 v[{d}:{d+1}], '+', '.join(txt)
    if hi!=[1]*n: s_+=' op_sel_hi:['+','.join(map(str,hi))+']'
    if neg: s_+=' '+neg
    return s_

pX,pWQ,pWO,pW1,pB1,pW2,pB2,pOUT,pWS = 4,6,8,12,14,16,18,20,22
sWS=28
W_=SR(sWS)

SLOT=28672; XS=16384; WST=12288
W1_SPARE=5*SLOT
SCR=W1_SPARE+WST
L_A=SCR; L_MU=SCR+512; L_CS=SCR+1024; L_CS1=SCR+1536; L_B1=SCR+2048; L_A2=SCR+2560; L_A2M=SCR+3072
L_CNT=SCR+4096
LDS_TOTAL=163840
W1_ADDR=[W1_SPARE, 3*SLOT, 3*SLOT+WST, 4*SLOT, 4*SLOT+WST, 0, WST, SLOT]
A_SLOT=[0,1,2,3,4,0,1,2]
L_RED=0
L_RING=73728
L_MX=139264
G2D=8
L_WO=0
L_OX=65536
L_EX=131072

uid=[0]
def newlab(p):
    uid[0]+=1; return f'{p}_{uid[0]}'

def poll(a, nl, voff, soff, vt):
    lab=newlab('POLL'); done=newlab('POLLD')
    mask=(1<<nl)-1
    a(f's_mov_b32 s66, {mask:#x}')
    a('s_mov_b32 s67, 0')
    a(f's_mov_b32 s68, {SPIN_MAX}')
    a('s_mov_b64 exec, s[66:67]')
    a.label(lab)
    a(f'buffer_load_dwordx2 v[{vt}:{vt+1}], {voff}, {W_}, {soff} offen sc1')
    a('s_waitcnt vmcnt(0)')
    a(f'v_cmp_eq_u64 vcc, s[64:65], v[{vt}:{vt+1}]')
    a('s_sub_u32 s68, s68, 1')
    a('s_cmp_eq_u32 s68, 0')
    a(f's_cbranch_scc1 {done}')
    a('s_cmp_eq_u64 vcc, s[66:67]')
    a(f's_cbranch_scc1 {done}')
    a('s_sleep 2')
    a(f's_branch {lab}')
    a.label(done)
    a('s_mov_b64 exec, -1')
    a.vmq=[]

def poll_wg(a, nl, voff, soff, vt, leader, lds_addr):
    oth=newlab('PWO'); done=newlab('PWD')
    a(f'v_mov_b32 v{vt+2}, {lds_addr}')
    a(f's_cmp_eq_u32 s36, {leader}')
    a(f's_cbranch_scc0 {oth}')
    poll(a, nl, voff, soff, vt)
    a(f'v_mov_b32 v{vt}, 1')
    a('s_mov_b64 exec, 1')
    a(f'ds_write_b32 v{vt+2}, v{vt}')
    a('s_mov_b64 exec, -1')
    a(f's_branch {done}')
    a.label(oth)
    lab=newlab('PWL')
    a.label(lab)
    a(f'ds_read_b32 v{vt}, v{vt+2}')
    a('s_waitcnt lgkmcnt(0)')
    a(f'v_readfirstlane_b32 s66, v{vt}')
    a('s_nop 0')
    a('s_cmp_eq_u32 s66, 0')
    a(f's_cbranch_scc0 {done}')
    a('s_sleep 1')
    a(f's_branch {lab}')
    a.label(done)
    a('s_waitcnt vmcnt(0)')
    a.vmq=[]

def signal(a, cnt_addr, last, flag_soff, vt):
    skip=newlab('SIG')
    a(f'v_mov_b32 v{vt}, {cnt_addr}')
    a(f'v_mov_b32 v{vt+1}, 1')
    a('s_mov_b64 exec, 1')
    a(f'ds_add_rtn_u32 v{vt+2}, v{vt}, v{vt+1}')
    a('s_waitcnt lgkmcnt(0)')
    a(f'v_readfirstlane_b32 s66, v{vt+2}')
    a(f'v_mov_b32 v{vt}, s64')
    a(f'v_mov_b32 v{vt+1}, s65')
    a(f'v_mov_b32 v{vt+2}, 0')
    a(f's_cmp_eq_u32 s66, {last}')
    a(f's_cbranch_scc0 {skip}')
    a(f'buffer_store_dwordx2 v[{vt}:{vt+1}], v{vt+2}, {W_}, {flag_soff} offen sc1')
    a.label(skip)
    a('s_mov_b64 exec, -1')

def gbar_arrive(a, vaddr, vone):
    a('s_mov_b64 exec, 1')
    a(f'ds_add_u32 v{vaddr}, v{vone}')
    a('s_mov_b64 exec, -1')
def gbar_wait(a, vaddr, vt, target):
    lab=newlab('GB')
    a.label(lab)
    a(f'ds_read_b32 v{vt}, v{vaddr}')
    a('s_waitcnt lgkmcnt(0)')
    a(f'v_readfirstlane_b32 s3, v{vt}')
    a('s_nop 0')
    a(f's_cmp_ge_u32 s3, {target}')
    a(f's_cbranch_scc0 {lab}')

def gen():
    a=Asm()
    a('s_cmp_ge_u32 s2, 256')
    a('s_cbranch_scc1 K_END')
    stamp(a,0)
    a('s_load_dwordx16 s[4:19], s[0:1], 0')
    a('s_load_dwordx2 s[20:21], s[0:1], 64')
    a('s_load_dwordx2 s[22:23], s[0:1], 80')
    a('v_and_b32 v1, 63, v0')
    a('v_lshrrev_b32 v2, 6, v0')
    a('s_and_b32 s48, s2, 7')
    a('v_readfirstlane_b32 s36, v2')
    a('s_lshr_b32 s49, s2, 3')
    a('s_and_b32 s50, s48, 1')
    a('s_lshr_b32 s51, s48, 1')
    a('s_lshl_b32 s50, s50, 3')
    a('s_and_b32 s52, s49, 7')
    a('s_add_u32 s38, s50, s52')
    a('s_lshl_b32 s51, s51, 2')
    a('s_lshr_b32 s52, s49, 3')
    a('s_add_u32 s39, s51, s52')
    a('s_and_b32 s37, s36, 3')
    a('v_and_b32 v3, 31, v1')
    a('v_lshrrev_b32 v4, 5, v1')
    a('s_cmp_ge_u32 s36, 4')
    a('s_cbranch_scc1 K_G1')

    def common_lds_addr(e):
        e('v_bfe_u32 v5, v1, 1, 3')
        e('v_xor_b32 v5, v5, v4')
        e('v_lshlrev_b32 v5, 4, v5')
        e('s_lshl_b32 s3, s37, 12')
        e('v_lshlrev_b32 v6, 7, v3')
        e('v_add3_u32 v12, v6, v5, s3')
        e('v_xor_b32 v13, 32, v12')
        e('v_xor_b32 v14, 64, v12')
        e('v_xor_b32 v15, 0x60, v12')
        e('v_lshlrev_b32 v6, 3, v4')
        e('v_bfe_u32 v7, v1, 2, 2')
        e('v_add_u32 v6, v6, v7')
        e('v_mul_u32_u24 v6, 192, v6')
        e('v_bfe_u32 v7, v1, 4, 1')
        e('v_lshlrev_b32 v7, 5, v7')
        e('v_and_b32 v8, 3, v1')
        e('v_lshlrev_b32 v8, 3, v8')
        e('v_add3_u32 v16, v6, v7, v8')

    g=Asm()
    accQ,accK,accV=64,80,96
    FS0=[128,144,160,176]
    g('s_getpc_b64 s[62:63]')
    g.label('PF_0')
    g('s_lshr_b32 s60, s2, 3')
    g('s_and_b32 s60, s60, 7')
    g('s_lshl_b32 s60, s60, 2')
    g('s_add_u32 s60, s60, s37')
    g('s_lshl_b32 s60, s60, 10')
    g('v_lshlrev_b32 v9, 4, v1')
    g('v_add_u32 v9, s60, v9')
    g('v_min_u32 v10, K_END-PF_0-16, v9')
    g('global_load_dwordx4 v[200:203], v10, s[62:63]')
    g('v_add_u32 v9, 0x8000, v9')
    g('v_min_u32 v10, K_END-PF_0-16, v9')
    g('global_load_dwordx4 v[204:207], v10, s[62:63]')
    common_lds_addr(g)
    for r in range(64,112): g(f'v_mov_b32 v{r}, 0')
    g(f'v_add_u32 v17, {XS}, v16')
    g(f's_mov_b32 s56, {(-4*SLOT)&0xffffffff:#x}')
    g(f's_mov_b32 s57, {SLOT}')
    g(f'v_lshlrev_b32 v18, 2, v1')
    g(f'v_add_u32 v18, {L_CNT}, v18')
    g('v_mov_b32 v19, 0')
    g('s_mov_b64 exec, 0xff')
    g('ds_write_b32 v18, v19')
    g('s_mov_b64 exec, -1')
    g('s_lshl_b32 s48, s37, 7')
    g('v_lshlrev_b32 v20, 2, v3')
    g('v_add_u32 v20, s48, v20')
    g(f'v_add_u32 v20, {L_A}, v20')
    g('v_lshlrev_b32 v23, 4, v4')
    g(f'v_add_u32 v24, {L_CS}, v23')
    g('v_lshlrev_b32 v25, 2, v3')
    g(f'v_add_u32 v25, {L_CS+64*4}, v25')
    g('v_add_u32 v27, s48, v23')
    g(f'v_add_u32 v27, {L_A}, v27')
    g('s_lshl_b32 s49, s38, 2')
    g('s_add_u32 s49, s49, s37')
    g('s_lshl_b32 s50, s49, 10')
    g('s_lshl_b32 s51, s39, 17')
    g('s_add_u32 s50, s50, s51')
    g(f's_add_u32 s52, s50, {WS_K}')
    g(f's_add_u32 s53, s50, {WS_K+65536}')
    g(f's_add_u32 s54, s50, {WS_V}')
    g(f's_add_u32 s51, s50, {WS_Q+65536}')
    g(f's_add_u32 s50, s50, {WS_Q}')
    g('v_lshlrev_b32 v28, 4, v1')
    g('v_and_b32 v29, 0x13, v3')
    g('v_bfe_u32 v30, v3, 2, 1')
    g('v_lshlrev_b32 v30, 3, v30')
    g('v_bfe_u32 v31, v3, 3, 1')
    g('v_lshlrev_b32 v31, 2, v31')
    g('v_or3_b32 v29, v29, v30, v31')
    g('v_lshlrev_b32 v30, 5, v4')
    g('v_add_u32 v29, v29, v30')
    g('v_lshlrev_b32 v29, 4, v29')
    g('v_bfe_u32 v30, v3, 4, 1')
    g('v_lshlrev_b32 v30, 16, v30')
    g('v_lshlrev_b32 v31, 8, v4')
    g('v_and_b32 v32, 15, v3')
    g('v_lshlrev_b32 v32, 4, v32')
    g('v_add3_u32 v30, v30, v31, v32')
    g('s_mul_i32 s55, s39, 1536')
    g('s_lshl_b32 s58, s49, 2')
    g('s_add_u32 s55, s55, s58')
    g(f's_add_u32 s55, s55, {WS_N}')
    g('v_lshlrev_b32 v31, 8, v1')
    g('s_waitcnt lgkmcnt(0)')
    srd(g,sWS,pWS,WS_SIZE)
    g(f's_load_dwordx2 s[64:65], s[{pWS}:{pWS+1}], 0')
    def readlist(set_, ks):
        L=[f'ds_read_b128 {R(set_,4)}, v{12+ks}']
        for t in range(3):
            for e in range(2):
                L.append(f'ds_read_b64_tr_b16 {R(set_+4+4*t+2*e,2)}, v17 offset:{ks*3072+e*768+t*64}')
        return L
    def mfmalist(set_):
        return [f'v_mfma_f32_32x32x16_bf16 {R(accQ,16)}, {R(set_+4,4)}, {R(set_,4)}, {R(accQ,16)}',
                f'v_mfma_f32_32x32x16_bf16 {R(accK,16)}, {R(set_+8,4)}, {R(set_,4)}, {R(accK,16)}',
                f'v_mfma_f32_32x32x16_bf16 {R(accV,16)}, {R(set_,4)}, {R(set_+12,4)}, {R(accV,16)}']
    g('s_waitcnt lgkmcnt(0)')
    g('s_add_u32 s64, s64, 0x7f4a7c15')
    g('s_addc_u32 s65, s65, 0x9e3779b9')
    stamp(g,1)
    for st in range(8):
        g('s_barrier')
        if st==0: stamp(g,2)
        for ks in range(4):
            rl=readlist(FS0[ks],ks); ml=mfmalist(FS0[(ks+2)%4])
            if st==0 and ks<2:
                for r_ in rl: g(r_)
                continue
            g('s_waitcnt lgkmcnt(7)')
            g(ml[0]); g(rl[0]); g(rl[1]); g(rl[2])
            g(ml[1]); g(rl[3]); g(rl[4])
            g(ml[2]); g(rl[5]); g(rl[6])
        if st<7:
            sr='s57' if A_SLOT[st+1]>A_SLOT[st] else 's56'
            for r in (12,13,14,15,17): g(f'v_add_u32 v{r}, {sr}, v{r}')
    g('s_waitcnt lgkmcnt(7)')
    for m in mfmalist(FS0[2]): g(m)
    g('s_waitcnt lgkmcnt(0)')
    for m in mfmalist(FS0[3]): g(m)
    stamp(g,3)
    g('s_barrier')
    g('s_setprio 3')
    CSQ=128; CSK=144; AV=160; MV=176
    g('ds_read_b32 v21, v20')
    g(f'ds_read_b32 v22, v20 offset:{L_MU-L_A}')
    for T,base in ((0,CSQ),(1,CSK)):
        for gg in range(4):
            g(f'ds_read_b128 {R(base+4*gg,4)}, v24 offset:{(32*T+8*gg)*4}')
    g('ds_read_b32 v26, v25')
    g('s_waitcnt lgkmcnt(9)')
    g(f'v_mul_f32 v34, {f2u(QSCALE):#x}, v21')
    g('v_mul_f32 v38, v21, v22')
    g('v_mul_f32 v36, v34, v22')
    for gg in range(4):
        g(f'ds_read_b128 {R(AV+4*gg,4)}, v27 offset:{8*gg*4}')
        g(f'ds_read_b128 {R(MV+4*gg,4)}, v27 offset:{8*gg*4+L_MU-L_A}')
    g('s_waitcnt lgkmcnt(12)')
    for r in range(16): g(f'v_mul_f32 v{CSK+r}, v{CSK+r}, v38') if False else None
    g('s_waitcnt lgkmcnt(8)')
    for r in range(16): g(f'v_mul_f32 v{CSK+r}, v{CSK+r}, v38')
    for r in range(16): g(f'v_fma_f32 v{accK+r}, v{accK+r}, v21, -v{CSK+r}')
    for i in range(8): g(f'v_cvt_pk_bf16_f32 v{CSK+i}, v{accK+2*i}, v{accK+2*i+1}')
    g(f'buffer_store_dwordx4 {R(CSK,4)}, v29, {W_}, s52 offen sc1')
    g(f'buffer_store_dwordx4 {R(CSK+4,4)}, v29, {W_}, s53 offen sc1')
    g('s_waitcnt lgkmcnt(0)')
    for r in range(16): g(f'v_fma_f32 v{accV+r}, -v{MV+r}, v26, v{accV+r}')
    for r in range(16): g(f'v_mul_f32 v{accV+r}, v{accV+r}, v{AV+r}')
    for i in range(8): g(f'v_cvt_pk_bf16_f32 v{AV+i}, v{accV+2*i}, v{accV+2*i+1}')
    g(f'buffer_store_dwordx4 {R(AV,4)}, v30, {W_}, s54 offen sc1')
    g(f'buffer_store_dwordx4 {R(AV+4,4)}, v30, {W_}, s54 offen offset:512 sc1')
    for r in range(16): g(f'v_mul_f32 v{CSQ+r}, v{CSQ+r}, v36')
    for r in range(16): g(f'v_fma_f32 v{accQ+r}, v{accQ+r}, v34, -v{CSQ+r}')
    for i in range(8): g(f'v_cvt_pk_bf16_f32 v{CSQ+i}, v{accQ+2*i}, v{accQ+2*i+1}')
    g(f'buffer_store_dwordx4 {R(CSQ,4)}, v28, {W_}, s50 offen sc1')
    g(f'buffer_store_dwordx4 {R(CSQ+4,4)}, v28, {W_}, s51 offen sc1')
    for (b,acc) in ((42,accK),(46,accQ)):
        g(f'v_mul_f32 v{b}, v{acc}, v{acc}'); g(f'v_mul_f32 v{b+1}, v{acc+1}, v{acc+1}')
        g(f'v_mul_f32 v{b+2}, v{acc+8}, v{acc+8}'); g(f'v_mul_f32 v{b+3}, v{acc+9}, v{acc+9}')
        for i in range(2,8):
            g(f'v_fmac_f32 v{b+(i&1)}, v{acc+i}, v{acc+i}'); g(f'v_fmac_f32 v{b+2+(i&1)}, v{acc+8+i}, v{acc+8+i}')
    g(f'v_max3_f32 v38, |v{accV}|, |v{accV+1}|, |v{accV+2}|')
    g('v_add_f32 v34, v42, v43')
    g('v_add_f32 v35, v44, v45')
    g('v_add_f32 v36, v46, v47')
    g('v_add_f32 v37, v48, v49')
    for r in range(3,15,2): g(f'v_max3_f32 v38, v38, |v{accV+r}|, |v{accV+r+1}|')
    g(f'v_max_f32 v38, v38, |v{accV+15}|')
    for i in range(4): g(f'v_mov_b32 v{40+i}, v{34+i}')
    g('s_nop 1')
    for i in range(4): g(f'v_permlane32_swap_b32 v{34+i}, v{40+i}')
    g('s_nop 1')
    for i in range(4): g(f'v_add_f32 v{34+i}, v{34+i}, v{40+i}')
    g('s_nop 1')
    for sh in (1,2,4,8):
        for r in (34,35,36,37,38): g(f'v_max_f32_dpp v{r}, v{r}, v{r} row_shr:{sh} row_mask:0xf bank_mask:0xf')
    for r in (34,35,36,37): g(f'v_max_f32_dpp v{r}, v{r}, v{r} row_bcast:15 row_mask:0xa bank_mask:0xf')
    g('s_nop 1')
    g('v_readlane_b32 s56, v38, 15')
    g('v_readlane_b32 s57, v38, 47')
    g('v_readlane_b32 s58, v38, 31')
    g('v_readlane_b32 s59, v38, 63')
    g('v_readlane_b32 s66, v34, 31')
    g('v_readlane_b32 s67, v35, 31')
    g('v_readlane_b32 s68, v36, 31')
    g('v_readlane_b32 s69, v37, 31')
    g('s_max_u32 s56, s56, s57')
    g('s_max_u32 s58, s58, s59')
    g('v_mov_b32 v40, s66')
    g('v_writelane_b32 v40, s56, 1')
    g('v_writelane_b32 v40, s68, 2')
    g('v_writelane_b32 v40, s67, 3')
    g('v_writelane_b32 v40, s58, 4')
    g('v_writelane_b32 v40, s69, 5')
    g('s_mov_b64 exec, 63')
    g(f'buffer_store_dword v40, v31, {W_}, s55 offen sc1')
    g('s_mov_b64 exec, -1')
    stamp(g,4)
    g('s_setprio 0')
    g('s_waitcnt vmcnt(0)')
    g('s_lshl_b32 s48, s39, 4')
    g('s_add_u32 s48, s48, s38')
    g('s_lshl_b32 s48, s48, 7')
    g(f's_add_u32 s48, s48, {F_1}')
    signal(g, L_CNT, 3, 's48', 40)
    stamp(g,5)
    g('s_branch K_ATT')

    h=Asm()
    h.label('K_G1')
    h('s_setprio 2')
    sX,sWQ,sW1,sB1=24,32,40,44
    XF=128
    h('s_mul_i32 s50, s39, 3')
    h('s_lshl_b32 s51, s39, 1')
    h('s_add_u32 s51, s51, 11')
    h('s_cmp_lt_u32 s39, 11')
    h('s_cselect_b32 s48, s50, s51')
    h('s_cselect_b32 s49, 3, 2')
    h('v_lshrrev_b32 v20, 3, v1')
    h('v_and_b32 v21, 7, v1')
    h('v_lshrrev_b32 v22, 4, v1')
    h('v_xor_b32 v21, v21, v22')
    h('v_lshlrev_b32 v20, 10, v20')
    h('v_lshlrev_b32 v22, 4, v21')
    h('v_add_u32 v2, v20, v22')
    h('v_xor_b32 v22, 64, v22')
    h('v_add_u32 v22, 7168, v22')
    h('v_add_u32 v18, v20, v22')
    h('v_add_u32 v19, 14336, v2')
    h('v_add_u32 v20, 14336, v18')
    VX=[2,18,19,20]
    VW=[21,22,23]; VW1=[24,25,26]
    for p in range(3):
        h(f'v_add_u32 v27, {64*p}, v1')
        h('v_mul_u32_u24 v28, 43691, v27')
        h('v_lshrrev_b32 v28, 19, v28')
        h('v_mul_u32_u24 v29, 12, v28')
        h('v_sub_u32 v29, v27, v29')
        h('v_lshrrev_b32 v30, 2, v29')
        h('v_lshlrev_b32 v30, 10, v30')
        h('v_and_b32 v31, 3, v29')
        h('v_lshlrev_b32 v31, 4, v31')
        h('v_mul_u32_u24 v32, 3072, v28')
        h(f'v_add3_u32 v{VW[p]}, v32, v30, v31')
        if p: h(f'v_subrev_u32 v{VW[p]}, {1024*p}, v{VW[p]}')
        h('v_mul_u32_u24 v32, 2752, v28')
        h('v_lshlrev_b32 v31, 4, v29')
        h(f'v_add_u32 v{VW1[p]}, v32, v31')
        if p: h(f'v_subrev_u32 v{VW1[p]}, {1024*p}, v{VW1[p]}')
    h('s_lshl_b32 s50, s38, 17')
    h('s_lshl_b32 s51, s37, 15')
    h('s_add_u32 s50, s50, s51')
    h('s_mul_i32 s51, s37, 49152')
    h('s_lshl_b32 s52, s39, 6')
    h('s_add_u32 s51, s51, s52')
    h('s_mul_i32 s52, s37, 44032')
    h('s_lshl_b32 s53, s48, 6')
    h('s_add_u32 s52, s52, s53')
    h('s_lshl_b32 s53, s37, 12')
    h('s_mul_i32 s54, s37, 3072')
    h('s_lshl_b32 s56, s48, 6')
    h('s_and_b32 s58, s39, 3')
    h('s_lshl_b32 s58, s58, 1')
    h('s_add_u32 s58, s58, s38')
    h('s_and_b32 s58, s58, 7')
    h('s_waitcnt lgkmcnt(0)')
    srd(h,sX,pX,2048*512*2); srd(h,sWQ,pWQ,512*1536*2)
    def dmaA(st):
        slot=A_SLOT[st]*SLOT; L=[]
        L.append((f's_add_u32 s61, s58, {st}',None))
        L.append(('s_and_b32 s61, s61, 7',None))
        L.append((f's_add_u32 m0, s53, {slot}',None))
        L.append(('s_lshl_b32 s55, s61, 7',None))
        L.append(('s_add_u32 s55, s55, s50',None))
        for i in range(4):
            L.append((f'buffer_load_dwordx4 v{VX[i]}, {SR(sX)}, s55 offen offset:{1024*i} lds',f'A{st}'))
        L.append((f's_add_u32 m0, s54, {slot+XS}',None))
        L.append((f's_mul_i32 s55, s61, {64*3072}',None))
        L.append(('s_add_u32 s55, s55, s51',None))
        for p in range(3):
            L.append((f'buffer_load_dwordx4 v{VW[p]}, {SR(sWQ)}, s55 offen offset:{1024*p} lds',f'A{st}'))
        return L
    def dmaB(st):
        L=[]
        L.append((f's_add_u32 s61, s58, {st}',None))
        L.append(('s_and_b32 s61, s61, 7',None))
        L.append((f's_add_u32 m0, s54, {W1_ADDR[st]}',None))
        L.append((f's_mul_i32 s55, s61, {64*2752}',None))
        L.append(('s_add_u32 s55, s55, s52',None))
        for p in range(3):
            L.append((f'buffer_load_dwordx4 v{VW1[p]}, {SR(sW1)}, s55 offen offset:{1024*p} lds',f'B{st}'))
        return L
    def emit(e, dmas):
        for (ins,tag) in dmas:
            if tag: e.vm(tag,ins)
            else: e(ins)
    stamp(h,1)
    for st in range(3): emit(h,dmaA(st))
    stamp(h,2)
    srd(h,sW1,pW1,512*1376*2); srd(h,sWS,pWS,WS_SIZE); srd(h,sB1,pB1,1376*2)
    h(f's_load_dwordx2 s[64:65], s[{pWS}:{pWS+1}], 0')
    common_lds_addr(h)
    h('v_lshlrev_b32 v27, 2, v1')
    h.vm('b1', f'buffer_load_dword v31, v27, {SR(sB1)}, s56 offen')
    h('s_cmp_eq_u32 s37, 3')
    h('s_cselect_b32 s57, 0, s37')
    h('s_lshl_b32 s3, s57, 6')
    h(f's_add_u32 s3, s3, {XS}')
    h('v_add_u32 v17, s3, v16')
    PAT=112; ONES=8; SUMA=[116,120]; GRA=[124,104]; CSA=108
    h('v_and_b32 v27, 15, v1')
    h('v_bfe_u32 v28, v1, 4, 1')
    h('v_cmp_eq_u32 vcc, v27, v28')
    h('v_mov_b32 v29, 0x3f803f80')
    h(f'v_cndmask_b32 v{PAT}, 0, v29, vcc')
    for r in range(1,4): h(f'v_mov_b32 v{PAT+r}, v{PAT}')
    for r in range(4): h(f'v_mov_b32 v{ONES+r}, v29')
    for b in SUMA+GRA+[CSA]:
        for r in range(4): h(f'v_mov_b32 v{b+r}, 0')
    h('v_lshrrev_b32 v28, 4, v1')
    h('v_bfe_u32 v29, v1, 1, 3')
    h('v_xor_b32 v28, v28, v29')
    h('v_lshlrev_b32 v28, 4, v28')
    h('v_lshlrev_b32 v27, 7, v27')
    h('s_lshl_b32 s3, s37, 12')
    h('v_add3_u32 v5, v27, v28, s3')
    h('v_xor_b32 v6, 64, v5')
    TMP=40; XS16=56
    h('s_waitcnt lgkmcnt(0)')
    h('s_add_u32 s64, s64, 0x7f4a7c15')
    h('s_addc_u32 s65, s65, 0x9e3779b9')
    h(f's_mov_b32 s59, {SLOT}')
    h(f's_mov_b32 s60, {(-4*SLOT)&0xffffffff:#x}')
    sched={0:dmaA(3)+dmaA(4), 1:dmaB(0), 2:dmaA(5), 3:dmaA(6), 4:dmaA(7), 5:dmaB(1)+dmaB(2), 6:dmaB(3)+dmaB(4), 7:dmaB(5)+dmaB(6)}
    for st in range(8):
        h.wait_vm(f'A{st}')
        h('s_barrier')
        if st==0: stamp(h,3)
        dm=sched[st]
        for u in range(2):
            for kk in range(2):
                h(f'ds_read_b128 {R(XS16+8*u+4*kk,4)}, v{5+kk} offset:{2048*u}')
        for ks in range(4):
            for e in range(2):
                h(f'ds_read_b64_tr_b16 {R(TMP+4*ks+2*e,2)}, v17 offset:{ks*3072+e*768}')
        k=0; nv=0
        while nv<2 and k<len(dm):
            if dm[k][1]: h.vm(dm[k][1],dm[k][0]); nv+=1
            else: h(dm[k][0])
            k+=1
        val=[]
        for u in range(2):
            for kk in range(2):
                x=XS16+8*u+4*kk
                val.append(f'v_mfma_f32_16x16x32_bf16 {R(SUMA[u],4)}, {R(ONES,4)}, {R(x,4)}, {R(SUMA[u],4)}')
                val.append(f'ds_read_b128 {R(XF+16*st+4*(2*u+kk),4)}, v{12+2*u+kk}')
                val.append(f'v_mfma_f32_16x16x32_bf16 {R(GRA[u],4)}, {R(x,4)}, {R(x,4)}, {R(GRA[u],4)}')
        val.append('s_waitcnt lgkmcnt(4)')
        for ks in range(4):
            val.append(f'v_mfma_f32_16x16x32_bf16 {R(CSA,4)}, {R(TMP+4*ks,4)}, {R(PAT,4)}, {R(CSA,4)}')
        if st<7:
            d=(A_SLOT[st+1]-A_SLOT[st])*SLOT
            sr='s59' if d==SLOT else 's60'
            for r in (12,13,14,15,17,5,6): val.append(f'v_add_u32 v{r}, {sr}, v{r}')
        h('s_waitcnt lgkmcnt(8)')
        rest=dm[k:]; vi=0
        for (ins,tag) in rest:
            if tag:
                for _ in range(2):
                    if vi<len(val): h(val[vi]); vi+=1
                h.vm(tag,ins)
            else: h(ins)
        while vi<len(val): h(val[vi]); vi+=1
    h('s_waitcnt lgkmcnt(0)')
    h('v_and_b32 v27, 3, v1')
    h('v_cmp_eq_u32 vcc, 1, v27')
    h('v_cmp_eq_u32 s[66:67], 2, v27')
    h('v_cmp_eq_u32 s[68:69], 3, v27')
    h('v_and_b32 v28, 15, v1')
    h('v_lshlrev_b32 v28, 2, v28')
    h('s_lshl_b32 s3, s37, 7')
    h('v_add_u32 v28, s3, v28')
    h(f'v_add_u32 v28, {L_A}, v28')
    for u in range(2):
        gr=GRA[u]; q=32+2*u
        h(f'v_cndmask_b32 v{q}, v{gr}, v{gr+1}, vcc')
        h(f'v_cndmask_b32 v{q}, v{q}, v{gr+2}, s[66:67]')
        h(f'v_cndmask_b32 v{q}, v{q}, v{gr+3}, s[68:69]')
    for u in range(2):
        q=32+2*u; m=SUMA[u]
        h(f'v_mul_f32 v{m}, {f2u(1/512):#x}, v{m}')
        h(f'v_mul_f32 v{q}, {f2u(1/512):#x}, v{q}')
    for u in range(2):
        q=32+2*u; m=SUMA[u]
        h(f'v_fma_f32 v{q}, -v{m}, v{m}, v{q}')
        h(f'v_max_f32 v{q}, 0, v{q}')
        h(f'v_add_f32 v{q+1}, {f2u(1e-5):#x}, v{q}')
    for u in range(2):
        q=32+2*u
        h(f'v_rsq_f32 v{q+1}, v{q+1}')
    h('s_nop 0')
    for u in range(2):
        q=32+2*u; m=SUMA[u]
        h(f'v_mul_f32 v{m+1}, v{q+1}, v{q+1}')
        h(f'v_mul_f32 v{m+1}, v{m+1}, v{q}')
        h(f'v_add_f32 v{m+1}, {f2u(1e-5):#x}, v{m+1}')
    for u in range(2):
        m=SUMA[u]
        h(f'v_rsq_f32 v{m+1}, v{m+1}')
    h('s_mov_b32 s66, 0x00f0000f')
    h('s_mov_b32 s67, 0xf0000f00')
    for u in range(2):
        q=32+2*u; m=SUMA[u]
        h(f'v_mul_f32 v{m+2}, v{m+1}, v{q+1}')
        h(f'v_mul_f32 v{m+3}, v{m+2}, v{m}')
    h('s_mov_b64 exec, s[66:67]')
    for u in range(2):
        q=32+2*u; m=SUMA[u]
        h(f'ds_write_b32 v28, v{q+1} offset:{64*u}')
        h(f'ds_write_b32 v28, v{m} offset:{64*u+L_MU-L_A}')
        h(f'ds_write_b32 v28, v{m+2} offset:{64*u+L_A2-L_A}')
        h(f'ds_write_b32 v28, v{m+3} offset:{64*u+L_A2M-L_A}')
    h('s_mov_b64 exec, -1')
    h('v_and_b32 v29, 15, v1')
    h('v_lshlrev_b32 v29, 6, v29')
    h('v_lshrrev_b32 v30, 4, v1')
    h('v_lshlrev_b32 v30, 4, v30')
    h('s_lshl_b32 s55, s57, 7')
    h('v_add3_u32 v29, v29, v30, s55')
    h(f'v_add_u32 v29, {L_CS}, v29')
    h('s_mov_b32 s62, 0x00030003')
    h('s_mov_b32 s63, 0x00030003')
    h('s_mov_b64 exec, s[62:63]')
    h(f'ds_write_b128 v29, {R(CSA,4)}')
    h('s_mov_b64 exec, -1')
    h('v_lshlrev_b32 v27, 2, v3')
    h('v_add_u32 v28, s3, v27')
    h(f'v_add_u32 v28, {L_A2}, v28')
    h('s_waitcnt lgkmcnt(0)')
    h('ds_read_b32 v38, v28')
    h(f'ds_read_b32 v30, v28 offset:{L_A2M-L_A2}')
    h.wait_vm('b1')
    h('v_lshlrev_b32 v34, 16, v31')
    h('v_and_b32 v35, 0xffff0000, v31')
    h('v_lshlrev_b32 v28, 3, v1')
    h(f'v_add_u32 v28, {L_B1}, v28')
    h('v_cmp_gt_u32 vcc, 48, v1')
    h('s_and_saveexec_b64 s[66:67], vcc')
    h('ds_write_b64 v28, v[34:35]')
    h('s_mov_b64 exec, s[66:67]')
    ACC=[64,80,96]
    for r in range(64,112): h(f'v_mov_b32 v{r}, 0')
    FS=[40,52,112]
    TS=[57,59,60]
    for sl in range(3):
        h(f's_add_u32 s3, s37, {sl}')
        h('s_cmp_ge_u32 s3, 3')
        h('s_cselect_b32 s55, 3, 0')
        h('s_sub_u32 s3, s3, s55')
        h('s_cmp_ge_u32 s3, 3')
        h('s_cselect_b32 s55, 3, 0')
        h('s_sub_u32 s3, s3, s55')
        h(f's_mov_b32 s{TS[sl]}, s3')
        h('s_lshl_b32 s3, s3, 6')
        h(f'v_add_u32 v{12+sl}, s3, v16')
    PAT2=8; CS1A=124
    for r in range(4):
        h(f'v_mov_b32 v{PAT2+r}, v{PAT}')
        h(f'v_mov_b32 v{CS1A+r}, 0')
    cur=[0]
    def setbase(st):
        d=W1_ADDR[st]-cur[0]
        if d:
            for sl in range(3): h(f'v_add_u32 v{12+sl}, {d&0xffffffff:#x}, v{12+sl}')
        cur[0]=W1_ADDR[st]
    def readsB(n):
        st,ks=divmod(n,4); fs=FS[n%3]
        if ks==0: setbase(st)
        for sl in range(3):
            for e in range(2):
                h(f'ds_read_b64_tr_b16 {R(fs+4*sl+2*e,2)}, v{12+sl} offset:{ks*3072+e*768}')
    def mfmaB(n):
        fs=FS[n%3]
        for sl in range(3):
            h(f'v_mfma_f32_32x32x16_bf16 {R(ACC[sl],16)}, {R(fs+4*sl,4)}, {R(XF+4*n,4)}, {R(ACC[sl],16)}')
            if sl==1:
                h(f'v_mfma_f32_16x16x32_bf16 {R(CS1A,4)}, {R(fs,4)}, {R(PAT2,4)}, {R(CS1A,4)}')
    h(f'v_mov_b32 v17, {L_CNT+12}')
    h('v_mov_b32 v7, 1')
    h.wait_vm(['B0','B1'])
    h('s_waitcnt lgkmcnt(0)')
    stamp(h,4)
    h('s_barrier')
    bar={8:['B2','B3','B4','B5'], 24:['B6','B7']}
    emit(h,dmaB(7))
    readsB(0); readsB(1)
    for n in range(32):
        m=n+2
        if m+1 in bar:
            h.wait_vm(bar[m+1])
            gbar_arrive(h, 17, 7)
        if m<32 and m in bar:
            gbar_wait(h, 17, 6, 4 if m==8 else 8)
            readsB(m)
        elif m<32:
            h('s_waitcnt lgkmcnt(6)')
            readsB(m)
        elif m==32:
            h('s_waitcnt lgkmcnt(6)')
        else:
            h('s_waitcnt lgkmcnt(0)')
        mfmaB(n)
    h('v_and_b32 v29, 15, v1')
    h('v_lshlrev_b32 v29, 6, v29')
    h('v_lshrrev_b32 v27, 4, v1')
    h('v_lshlrev_b32 v27, 4, v27')
    h(f's_lshl_b32 s55, s{TS[0]}, 7')
    h('v_add3_u32 v29, v29, v27, s55')
    h(f'v_add_u32 v29, {L_CS1}, v29')
    h('s_nop 1')
    h('s_mov_b64 exec, s[62:63]')
    h(f'ds_write_b128 v29, {R(CS1A,4)}')
    h('s_mov_b64 exec, -1')
    h('s_waitcnt lgkmcnt(0)')
    gbar_arrive(h, 17, 7)
    stamp(h,5)
    gbar_wait(h, 17, 6, 12)
    C1=-2*1.4426950408889634*0.7978845608028654
    C2=C1*0.044715
    h(f's_mov_b32 s66, {f2u(C2):#x}')
    h(f'v_mov_b32 v32, {f2u(C1):#x}')
    h('v_lshlrev_b32 v23, 4, v4')
    h('v_lshlrev_b32 v28, 4, v1')
    h('s_lshl_b32 s53, s38, 2')
    h('s_add_u32 s53, s53, s37')
    h('s_mul_i32 s53, s53, 86')
    CSR=[128,160,192]; B1R=[144,176,208]
    for sl in range(3):
        h(f's_lshl_b32 s3, s{TS[sl]}, 7')
        h('v_add_u32 v24, s3, v23')
        h(f'v_add_u32 v24, {L_CS1}, v24')
        for gg in range(4):
            h(f'ds_read_b128 {R(CSR[sl]+4*gg,4)}, v24 offset:{8*gg*4}')
            h(f'ds_read_b128 {R(B1R[sl]+4*gg,4)}, v24 offset:{8*gg*4+L_B1-L_CS1}')
        if sl==0: h('s_waitcnt lgkmcnt(0)')
    for sl in range(3):
        acc=ACC[sl]; cs=CSR[sl]; b1=B1R[sl]
        lab=f'K_SKIP{sl}'
        h(f's_cmp_ge_u32 s{TS[sl]}, s49')
        h(f's_cbranch_scc1 {lab}')
        h(f's_add_u32 s54, s48, s{TS[sl]}')
        h('s_lshl_b32 s54, s54, 1')
        h('s_add_u32 s54, s54, s53')
        h('s_lshl_b32 s54, s54, 10')
        h(f's_add_u32 s54, s54, {WS_H}')
        if sl==1: h('s_waitcnt lgkmcnt(0)')
        for r in range(16): h(f'v_fma_f32 v{b1+r}, -v{cs+r}, v30, v{b1+r}')
        for r in range(16): h(f'v_fma_f32 v{acc+r}, v{acc+r}, v38, v{b1+r}')
        for r in range(16): h(f'v_mul_f32 v{cs+r}, v{acc+r}, v{acc+r}')
        for r in range(16): h(f'v_fma_f32 v{cs+r}, v{cs+r}, s66, v32')
        for r in range(16): h(f'v_mul_f32 v{cs+r}, v{cs+r}, v{acc+r}')
        for r in range(16): h(f'v_exp_f32 v{cs+r}, v{cs+r}')
        for r in range(16): h(f'v_add_f32 v{cs+r}, 1.0, v{cs+r}')
        for r in range(16): h(f'v_rcp_f32 v{cs+r}, v{cs+r}')
        for r in range(16): h(f'v_mul_f32 v{acc+r}, v{acc+r}, v{cs+r}')
        for i in range(8): h(f'v_cvt_pk_bf16_f32 v{b1+i}, v{acc+2*i}, v{acc+2*i+1}')
        h(f'buffer_store_dwordx4 {R(b1,4)}, v28, {W_}, s54 offen sc1')
        h(f'buffer_store_dwordx4 {R(b1+4,4)}, v28, {W_}, s54 offen offset:1024 sc1')
        h.label(lab)
    stamp(h,6)
    h('s_waitcnt vmcnt(0)')
    h.vmq=[]
    h('s_lshl_b32 s48, s38, 4')
    h('s_add_u32 s48, s48, s39')
    h('s_lshl_b32 s48, s48, 7')
    h(f's_add_u32 s48, s48, {F_2}')
    signal(h, L_CNT+4, 3, 's48', 40)

    h('s_setprio 2' if 'g2hi' in OPT else 's_setprio 0')
    h('s_and_b32 s52, s2, 7')
    h('s_lshr_b32 s53, s2, 3')
    h('s_and_b32 s54, s53, 3')
    h('s_lshl_b32 s52, s52, 2')
    h('s_add_u32 s58, s52, s54')
    h('s_lshr_b32 s59, s53, 2')
    h('v_lshlrev_b32 v5, 4, v1')
    h('v_lshlrev_b32 v8, 7, v1')
    sWw=24
    h('s_lshr_b32 s52, s2, 3')
    h('s_lshl_b32 s52, s52, 2')
    h('s_add_u32 s52, s52, s37')
    h('s_lshl_b32 s52, s52, 14')
    h(f's_cmp_ge_u32 s52, {1376*1024}')
    h(f's_cselect_b32 s{sWw}, s{pWO}, s{pW2}')
    h(f's_cselect_b32 s{sWw+1}, s{pWO+1}, s{pW2+1}')
    h(f's_cselect_b32 s53, {1376*1024}, 0')
    h('s_sub_u32 s52, s52, s53')
    h('s_cmp_eq_u32 s53, 0')
    h(f's_mov_b32 s26, {512*512*2}')
    h(f's_cselect_b32 s26, {1376*512*2}, s26')
    h(f's_mov_b32 s{sWw+3}, 0x00020000')
    for k in range(0 if 'nowarm' in OPT else 16):
        h(f'buffer_load_dwordx4 v[40:43], v5, {SR(sWw)}, s52 offen offset:{1024*(k%4)}')
        if k%4==3: h('s_add_u32 s52, s52, 4096')
    sW2=24
    h('s_lshr_b32 s52, s58, 1')
    h('s_lshl_b32 s52, s52, 11')
    h(f's_add_u32 s52, s52, {F_2}')
    stamp(h,7)
    poll_wg(h, 16, 'v8', 's52', 46, 4, L_CNT+20)
    stamp(h,8)
    srd(h,sW2,pW2,1376*512*2)
    h('s_sub_u32 s60, s36, 4')
    h('s_mul_i32 s61, s60, 22')
    h('s_cmp_eq_u32 s60, 3')
    h('s_cselect_b32 s52, 1, 0')
    h('s_sub_u32 s61, s61, s52')
    h('s_cmp_lt_u32 s60, 2')
    h('s_cselect_b32 s62, 22, 21')
    h('s_lshl_b32 s63, s59, 1')
    h('s_and_b32 s52, s58, 3')
    h('s_add_u32 s63, s63, s52')
    h('s_sub_u32 s57, s62, s63')
    h('s_add_u32 s61, s61, s63')
    h('s_lshl_b32 s52, s58, 1')
    h('s_mul_i32 s52, s52, 86')
    h('s_add_u32 s52, s52, s61')
    h('s_lshl_b32 s52, s52, 10')
    h(f's_add_u32 s52, s52, {WS_H}')
    h('s_lshl_b32 s54, s61, 14')
    h('s_lshl_b32 s55, s59, 7')
    h('s_add_u32 s54, s54, s55')
    h('s_lshl_b32 s56, s62, 10')
    h('s_lshl_b32 s53, s62, 14')
    h('s_lshl_b32 s55, s60, 14')
    h(f's_add_u32 s55, s55, {L_RING}')
    def wdma_voff(e):
        e('v_lshrrev_b32 v10, 3, v1')
        e('v_lshlrev_b32 v10, 10, v10')
        e('v_and_b32 v11, 7, v1')
        e('v_bfe_u32 v12, v1, 4, 1')
        e('v_lshlrev_b32 v12, 2, v12')
        e('v_xor_b32 v11, v11, v12')
        e('v_lshlrev_b32 v11, 4, v11')
        e('v_add_u32 v10, v10, v11')
        e('v_add_u32 v11, 7168, v10')
    wdma_voff(h)
    h(f'v_add_u32 v17, {86*1024}, v5')
    def tr_addr(e, dst, base_s):
        e('v_bfe_u32 v13, v1, 2, 2')
        e('v_lshlrev_b32 v14, 2, v4')
        e('v_add_u32 v14, v14, v13')
        e('v_lshlrev_b32 v14, 7, v14')
        e('v_bfe_u32 v15, v1, 4, 1')
        e('v_lshlrev_b32 v15, 1, v15')
        e('v_and_b32 v16, 1, v1')
        e('v_add_u32 v15, v15, v16')
        e('v_lshrrev_b32 v13, 1, v13')
        e('v_lshlrev_b32 v13, 2, v13')
        e('v_xor_b32 v15, v15, v13')
        e('v_lshlrev_b32 v15, 4, v15')
        e('v_bfe_u32 v16, v1, 1, 1')
        e('v_lshlrev_b32 v16, 3, v16')
        e('v_add3_u32 v14, v14, v15, v16')
        e(f'v_add_u32 v{dst}, {base_s}, v14')
        e(f'v_xor_b32 v{dst+1}, 64, v{dst}')
    tr_addr(h, 18, 's55')
    GA=[[192,208],[224,240]]
    for tt in range(2):
        for ct in range(2):
            for r in range(16): h(f'v_mov_b32 v{GA[tt][ct]+r}, 0')
    D=G2D
    for o_ in OPT:
        if o_.startswith('D='): D=int(o_[2:])
    XB=[64+8*i for i in range(D)]
    WB=[24,32]
    def g2_issue(sl):
        h(f'buffer_load_dwordx4 {R(XB[sl],4)}, v5, {W_}, s52 offen sc1')
        h(f'buffer_load_dwordx4 {R(XB[sl]+4,4)}, v17, {W_}, s52 offen sc1')
        h(f's_add_u32 m0, s55, {sl*2048}')
        h('s_add_u32 s52, s52, 1024')
        h('s_sub_u32 s57, s57, 1')
        h(f'buffer_load_dwordx4 v10, {SR(sW2)}, s54 offen lds')
        h(f'buffer_load_dwordx4 v11, {SR(sW2)}, s54 offen offset:1024 lds')
        h('s_add_u32 s54, s54, 16384')
        h('s_cmp_eq_u32 s57, 0')
        h('s_cselect_b32 s63, s56, 0')
        h('s_cselect_b32 s61, s53, 0')
        h('s_sub_u32 s52, s52, s63')
        h('s_sub_u32 s54, s54, s61')
    def g2_wread(sl, wb):
        for ct in range(2):
            for e in range(2):
                h(f'ds_read_b64_tr_b16 {R(WB[wb]+4*ct+2*e,2)}, v{18+ct} offset:{sl*2048+e*1024}')
    if 'nog2' in OPT: h('s_branch K_G2_DONE')
    for sl in range(D-1): g2_issue(sl)
    h(f's_waitcnt vmcnt({4*(D-2)})')
    g2_wread(0,0)
    h.label('K_G2_LOOP')
    for sl in range(D):
        g2_issue((sl+D-1)%D)
        h(f's_waitcnt vmcnt({4*(D-2)})')
        g2_wread((sl+1)%D,(sl+1)%2)
        h('s_waitcnt lgkmcnt(4)')
        for tt in range(2):
            for ct in range(2):
                h(f'v_mfma_f32_32x32x16_bf16 {R(GA[tt][ct],16)}, {R(WB[sl%2]+4*ct,4)}, {R(XB[sl]+4*tt,4)}, {R(GA[tt][ct],16)}')
        h('s_sub_u32 s62, s62, 1')
        h('s_cmp_eq_u32 s62, 0')
        if sl<D-1: h('s_cbranch_scc1 K_G2_DONE')
        else: h('s_cbranch_scc0 K_G2_LOOP')
    h.label('K_G2_DONE')
    h('s_waitcnt vmcnt(0) lgkmcnt(0)')
    stamp(h,11)
    h('s_nop 7')
    for tt in range(2):
        for ct in range(2):
            qd=tt+2*ct
            lab=newlab('GXS')
            h(f's_cmp_eq_u32 s60, {qd}')
            h(f's_cbranch_scc1 {lab}')
            h(f's_sub_u32 s52, {qd+3}, s60')
            h('s_and_b32 s52, s52, 3')
            h('s_lshl_b32 s52, s52, 12')
            h('s_add_u32 s52, s52, s55')
            h('v_add_u32 v14, s52, v5')
            for k in range(4): h(f'ds_write_b128 v14, {R(GA[tt][ct]+4*k,4)} offset:{1024*k}')
            h.label(lab)
    for tt in range(2):
        for ct in range(2):
            qd=tt+2*ct
            if qd==0: continue
            lab=newlab('GXK')
            h(f's_cmp_lg_u32 s60, {qd}')
            h(f's_cbranch_scc1 {lab}')
            h('s_waitcnt lgkmcnt(0)')
            for r in range(16): h(f'v_mov_b32 v{192+r}, v{GA[tt][ct]+r}')
            h.label(lab)
    def att_ids(e):
        e('s_and_b32 s48, s2, 7')
        e('s_lshr_b32 s49, s2, 3')
        e('s_and_b32 s50, s49, 3')
        e('s_lshl_b32 s48, s48, 2')
        e('s_add_u32 s38, s48, s50')
        e('s_lshr_b32 s39, s49, 2')
    h(f'v_mov_b32 v12, {L_CNT+12}')
    h('v_mov_b32 v13, 1')
    h('s_waitcnt lgkmcnt(0)')
    gbar_arrive(h, 12, 13)
    gbar_wait(h, 12, 13, 16)
    for sl in range(3):
        h(f's_sub_u32 s52, s60, {sl+1}')
        h('s_and_b32 s52, s52, 3')
        h('s_lshl_b32 s52, s52, 14')
        h(f's_add_u32 s52, s52, {L_RING+4096*sl}')
        h('v_add_u32 v14, s52, v5')
        for k in range(4): h(f'ds_read_b128 {R(128+16*sl+4*k,4)}, v14 offset:{1024*k}')
    h('s_waitcnt lgkmcnt(0)')
    for sl in range(3):
        for r in range(16): h(f'v_add_f32 v{192+r}, v{192+r}, v{128+16*sl+r}')
    h('s_branch K_TAIL')

    a2=Asm()
    a2.label('K_ATT')
    a2('s_setprio 1')
    att_ids(a2)
    a2('v_lshlrev_b32 v5, 4, v1')
    a2('v_lshlrev_b32 v6, 8, v4')
    a2('v_and_b32 v7, 15, v1')
    a2('v_lshlrev_b32 v7, 4, v7')
    a2('v_add_u32 v6, v6, v7')
    a2('v_lshlrev_b32 v8, 7, v1')
    a2('v_lshlrev_b32 v9, 2, v1')
    a2('s_lshl_b32 s44, s38, 16')
    a2('s_lshl_b32 s46, s39, 13')
    a2('s_add_u32 s46, s46, s44')
    a2(f's_add_u32 s46, s46, {WS_Q}')
    a2('s_lshl_b32 s47, s36, 14')
    a2('s_add_u32 s47, s47, s44')
    a2(f's_add_u32 s48, s47, {WS_V}')
    a2(f's_add_u32 s47, s47, {WS_K}')
    a2('s_mov_b32 s40, s47')
    a2('s_mov_b32 s41, s48')
    a2('s_mul_i32 s49, s38, 768')
    a2(f's_add_u32 s49, s49, {WS_N}')
    a2('s_mov_b32 s50, 0x0000ffff')
    a2('s_mov_b32 s51, 0x0000ffff')
    KB=[80,84,88,92]; VB=[96,104,112,120]; QF=48
    SA,SB=10,26
    OA=[128+16*i for i in range(8)]; IDX=44
    a2('s_lshr_b32 s52, s38, 1')
    a2('s_lshl_b32 s52, s52, 11')
    a2(f's_add_u32 s52, s52, {F_1}')
    stamp(a2,7)
    poll_wg(a2, 16, 'v8', 's52', 46, 0, L_CNT+24)
    stamp(a2,8)
    a2.vm('N', f'buffer_load_dword v42, v9, {W_}, s49 offen sc1')
    a2.vm('N', f'buffer_load_dword v43, v9, {W_}, s49 offen offset:256 sc1')
    a2.vm('N', f'buffer_load_dword v45, v9, {W_}, s49 offen offset:512 sc1')
    def loadkv(b):
        a2.vm('KV', f'buffer_load_dwordx4 {R(KB[b],4)}, v5, {W_}, s47 offen sc1')
        a2('s_mov_b64 exec, s[50:51]')
        a2.vm('KV', f'buffer_load_dwordx4 {R(VB[b],4)}, v6, {W_}, s48 offen sc1')
        a2.vm('KV', f'buffer_load_dwordx4 {R(VB[b]+4,4)}, v6, {W_}, s48 offen offset:512 sc1')
        a2('s_mov_b64 exec, -1')
        a2('s_add_u32 s47, s47, 1024')
        a2('s_add_u32 s48, s48, 1024')
    a2(f'v_mov_b32 v{IDX}, 0x3f803f80')
    for b in VB:
        for r in range(8): a2(f'v_mov_b32 v{b+r}, v{IDX}')
    a2(f'v_mov_b32 v{IDX}, 0xdddddddd')
    for i in range(4):
        a2.vm('Q', f'buffer_load_dwordx4 {R(QF+4*i,4)}, v5, {W_}, s46 offen offset:{1024*i} sc1')
    loadkv(0)
    a2('s_add_u32 s46, s46, 4096')
    for i in range(4,8):
        a2.vm('Q', f'buffer_load_dwordx4 {R(QF+4*i,4)}, v5, {W_}, s46 offen offset:{1024*(i-4)} sc1')
    loadkv(1); loadkv(2)
    for o in OA:
        for r in range(16): a2(f'v_mov_b32 v{o+r}, 0')
    a2.wait_vm('N')
    for sh in (1,2,4,8):
        for r in (42,43,45): a2(f'v_max_f32_dpp v{r}, v{r}, v{r} row_shr:{sh} row_mask:0xf bank_mask:0xf')
    for r in (42,43,45): a2(f'v_max_f32_dpp v{r}, v{r}, v{r} row_bcast:15 row_mask:0xa bank_mask:0xf')
    for r in (42,43,45): a2(f'v_max_f32_dpp v{r}, v{r}, v{r} row_bcast:31 row_mask:0xc bank_mask:0xf')
    a2('s_nop 1')
    a2('v_readlane_b32 s52, v42, 63')
    a2('v_readlane_b32 s53, v43, 63')
    a2('v_readlane_b32 s54, v45, 63')
    a2('s_nop 1')
    a2('v_mov_b32 v42, s52')
    a2('v_mul_f32 v42, s54, v42')
    a2(f'v_mul_f32 v42, {f2u(1.05):#x}, v42')
    a2(f'v_mov_b32 v43, {f2u(T_LOG2*T_LOG2):#x}')
    a2('v_cmp_le_f32 vcc, v42, v43')
    a2('v_mov_b32 v42, s53')
    a2(f'v_mov_b32 v43, {f2u(2.0**60):#x}')
    a2('v_cmp_le_f32 s[56:57], v42, v43')
    a2('s_nop 1')
    a2('s_and_b64 vcc, vcc, s[56:57]')
    a2('s_cmp_eq_u64 vcc, -1')
    a2('s_cbranch_scc0 K_SLOW')
    def qk(kb, i, dst): return f'v_mfma_f32_32x32x16_bf16 {R(dst,16)}, {R(KB[kb],4)}, {R(QF+4*i,4)}, 0'
    def pv(kb, i, half, src): return f'v_smfmac_f32_32x32x32_bf16 {R(OA[i],16)}, {R(VB[kb]+4*half,4)}, {R(src+8*half,8)}, v{IDX}'
    a2('s_waitcnt vmcnt(6)')
    stamp(a2,9)
    a2(qk(0,0,SA))
    for r in range(8,16): a2(f'v_mov_b32 v{SB+r}, 0')
    a2('s_mov_b32 s42, 0')
    a2('s_nop 3')
    a2.label('K_ATT_LOOP')
    for n in range(32):
        kb,i=divmod(n,8)
        sa=SA if n%2==0 else SB
        sb=SB if n%2==0 else SA
        ex=[f'v_exp_f32 v{sa+r}, v{sa+r}' for r in range(16)]
        for e in ex[0:2]: a2(e)
        pkb,pi=divmod((n-1)%32,8)
        a2(pv(pkb,pi,1,sb))
        if i==0 and 'noload' not in OPT: loadkv((kb+3)%4)
        for e in ex[2:5]: a2(e)
        nkb,ni=divmod((n+1)%32,8)
        if i==7: a2('s_waitcnt vmcnt(6)')
        a2(qk(nkb,ni,sb))
        for e in ex[5:11]: a2(e)
        a2(pv(kb,i,0,sa))
        for e in ex[11:16]: a2(e)
    a2('s_add_u32 s42, s42, 1')
    a2('s_cmp_lt_u32 s42, 4')
    a2('s_cbranch_scc1 K_ATT_LOOP')
    a2('s_nop 1')
    a2(pv(3,7,1,SB))
    a2.label('K_ATT_DONE')
    stamp(a2,10)
    a2('s_waitcnt vmcnt(0)')
    a2.vmq=[]
    a2(f'v_mov_b32 v12, {L_CNT+12}')
    gbar_wait(a2, 12, 13, 12)
    a2('s_mul_i32 s52, s36, 2304')
    a2(f'v_add_u32 v12, s52, v5')
    a2(f'v_add_u32 v13, s52, v9')
    a2(f'v_add_u32 v14, {4*9216}, v12')
    a2(f'v_add_u32 v15, {4*9216}, v13')
    for p_ in range(4):
        lab=newlab('RS')
        a2(f's_cmp_eq_u32 s36, {p_}')
        a2(f's_cbranch_scc1 {lab}')
        for i in (2*p_,2*p_+1):
            off=(i%4)*9216; b=12 if i<4 else 14
            a2(f'ds_write_b128 v{b}, {R(OA[i],4)} offset:{off}')
            a2(f'ds_write_b128 v{b}, {R(OA[i]+4,4)} offset:{off+1024}')
            a2(f'ds_write_b32 v{b+1}, v{OA[i]+8} offset:{off+2048}')
        a2.label(lab)
    for p_ in range(4):
        lab=newlab('RM')
        a2(f's_cmp_lg_u32 s36, {p_}')
        a2(f's_cbranch_scc1 {lab}')
        for t_ in range(2):
            for r in range(9): a2(f'v_mov_b32 v{32+48*t_+r}, v{OA[2*p_+t_]+r}')
        a2.label(lab)
    a2('s_and_b32 s52, s2, 7')
    a2('s_lshr_b32 s53, s2, 3')
    a2('s_and_b32 s54, s53, 3')
    a2('s_lshl_b32 s52, s52, 2')
    a2('s_add_u32 s58, s52, s54')
    a2('s_lshr_b32 s59, s53, 2')
    a2(f'v_mov_b32 v20, {L_CNT+28}')
    a2('v_mov_b32 v21, 1')
    a2('s_waitcnt lgkmcnt(0)')
    gbar_arrive(a2, 20, 21)
    gbar_wait(a2, 20, 22, 4)
    stamp(a2,12)
    a2('s_mul_i32 s53, s36, 18432')
    for k in range(3):
        a2(f's_add_u32 s52, s36, {k+1}')
        a2('s_and_b32 s52, s52, 3')
        a2('s_mul_i32 s52, s52, 2304')
        a2('s_add_u32 s52, s52, s53')
        a2(f'v_add_u32 v{14+2*k}, s52, v5')
        a2(f'v_add_u32 v{15+2*k}, s52, v9')
    for t_ in range(2):
        for k in range(3):
            b=32+48*t_+12*(k+1)
            a2(f'ds_read_b128 {R(b,4)}, v{14+2*k} offset:{9216*t_}')
            a2(f'ds_read_b128 {R(b+4,4)}, v{14+2*k} offset:{9216*t_+1024}')
            a2(f'ds_read_b32 v{b+8}, v{15+2*k} offset:{9216*t_+2048}')
    a2('s_lshl_b32 s53, s39, 3')
    a2('s_lshl_b32 s52, s36, 1')
    a2('s_add_u32 s53, s53, s52')
    a2('s_lshl_b32 s53, s53, 5')
    a2('s_add_u32 s53, s53, s38')
    a2('s_lshl_b32 s53, s53, 10')
    a2(f's_add_u32 s53, s53, {WS_O}')
    for t_ in range(2):
        b=32+48*t_
        if t_==0: a2('s_waitcnt lgkmcnt(9)')
        if t_==1: a2('s_waitcnt lgkmcnt(0)'); gbar_arrive(a2, 20, 21)
        for sl in range(1,4):
            for r in range(9): a2(f'v_add_f32 v{b+r}, v{b+r}, v{b+12*sl+r}')
        a2(f'v_rcp_f32 v{b+9}, v{b+8}')
        a2('s_nop 0')
        for r in range(8): a2(f'v_mul_f32 v{b+r}, v{b+r}, v{b+9}')
        for i in range(4): a2(f'v_cvt_pk_bf16_f32 v{b+12+i}, v{b+2*i}, v{b+2*i+1}')
        a2(f'buffer_store_dwordx4 {R(b+12,4)}, v5, {W_}, s53 offen sc1')
        if t_==0: a2(f's_add_u32 s53, s53, {32*1024}')
    ACC3=192
    for r in range(16): a2(f'v_mov_b32 v{ACC3+r}, 0')
    a2('s_lshl_b32 s52, s39, 5')
    a2('s_add_u32 s52, s52, s38')
    a2('s_lshl_b32 s52, s52, 7')
    a2(f's_add_u32 s52, s52, {F_3}')
    a2('s_waitcnt vmcnt(0)')
    signal(a2, L_CNT+8, 3, 's52', 46)
    gbar_wait(a2, 20, 22, 8)
    sWO=24
    srd(a2,sWO,pWO,512*512*2)
    wdma_voff(a2)
    a2('s_lshl_b32 s52, s36, 17')
    a2('s_lshl_b32 s53, s59, 7')
    a2('s_add_u32 s52, s52, s53')
    a2('s_lshl_b32 s53, s36, 14')
    for i in range(8):
        a2(f's_add_u32 m0, s53, {L_WO+2048*i}')
        a2('s_nop 0')
        a2(f'buffer_load_dwordx4 v10, {SR(sWO)}, s52 offen lds')
        a2(f'buffer_load_dwordx4 v11, {SR(sWO)}, s52 offen offset:1024 lds')
        a2('s_add_u32 s52, s52, 16384')
    a2.label('K_TAIL')
    a2('s_setprio 0')
    a2('v_lshlrev_b32 v8, 7, v1')
    sOUT,sB2,sX2=32,40,44
    srd(a2,sOUT,pOUT,2048*512*2); srd(a2,sB2,pB2,512*2); srd(a2,sX2,pX,2048*512*2)
    a2('s_and_b32 s50, s36, 1')
    a2('s_bfe_u32 s51, s36, 0x10001')
    a2('s_lshr_b32 s49, s36, 2')
    a2('s_lshl_b32 s60, s58, 6')
    a2('s_lshl_b32 s61, s50, 5')
    a2('s_add_u32 s60, s60, s61')
    a2('v_add_u32 v20, s60, v3')
    a2('v_lshlrev_b32 v20, 10, v20')
    a2('s_lshl_b32 s60, s59, 6')
    a2('s_lshl_b32 s61, s51, 5')
    a2('s_add_u32 s60, s60, s61')
    a2('s_lshl_b32 s61, s49, 4')
    a2('s_add_u32 s60, s60, s61')
    a2('v_lshlrev_b32 v21, 3, v4')
    a2('v_add_u32 v21, s60, v21')
    a2('v_lshlrev_b32 v21, 1, v21')
    a2('v_add_u32 v20, v20, v21')
    a2(f'buffer_load_dwordx4 v[52:55], v20, {SR(sX2)}, 0 offen')
    a2(f'buffer_load_dwordx4 v[56:59], v21, {SR(sB2)}, 0 offen')
    a2('s_lshl_b32 s52, s51, 6')
    a2(f's_lshl_b32 s53, s49, 15')
    a2(f's_add_u32 s53, s53, {L_WO}')
    tr_addr(a2, 18, 's53')
    a2('v_xor_b32 v18, s52, v18')
    a2('s_lshl_b32 s52, s50, 15')
    a2('s_lshl_b32 s53, s49, 14')
    a2('s_add_u32 s52, s52, s53')
    a2(f's_add_u32 s52, s52, {L_OX}')
    a2('v_add_u32 v19, s52, v5')
    a2('s_lshr_b32 s52, s58, 2')
    a2('s_lshl_b32 s52, s52, 12')
    a2(f's_add_u32 s52, s52, {F_3}')
    stamp(a2,13)
    a2('s_waitcnt vmcnt(0)')
    a2('s_cmp_eq_u32 s36, 0')
    a2('s_cbranch_scc0 K_S3W')
    poll(a2, 32, 'v8', 's52', 46)
    a2.label('K_S3W')
    a2.vmq=[]
    a2('s_barrier')
    stamp(a2,14)
    a2('s_cmp_eq_u32 s2, 0')
    a2('s_cbranch_scc0 K_NOE')
    a2('s_cmp_eq_u32 s36, 0')
    a2('s_cbranch_scc0 K_NOE')
    a2('v_mov_b32 v46, s64'); a2('v_mov_b32 v47, s65'); a2('v_mov_b32 v48, 0')
    a2('s_mov_b64 exec, 1')
    a2(f'buffer_store_dwordx2 v[46:47], v48, {W_}, 0 offen')
    a2('s_mov_b64 exec, -1')
    a2.label('K_NOE')
    a2('s_bfe_u32 s52, s36, 0x10001')
    a2('s_lshl_b32 s52, s52, 4')
    a2('s_lshr_b32 s53, s36, 2')
    a2('s_lshl_b32 s53, s53, 1')
    a2('s_add_u32 s52, s52, s53')
    a2('s_lshl_b32 s53, s58, 1')
    a2('s_add_u32 s53, s53, s50')
    a2('s_lshl_b32 s53, s53, 5')
    a2('s_add_u32 s53, s53, s52')
    a2('s_lshl_b32 s53, s53, 10')
    a2(f's_add_u32 s53, s53, {WS_O}')
    a2('s_lshl_b32 s54, s50, 5')
    a2('s_add_u32 s54, s54, s52')
    a2('s_lshl_b32 s54, s54, 10')
    a2(f's_add_u32 s54, s54, {L_OX}')
    for s_ in range(4):
        a2(f's_add_u32 m0, s54, {4096*s_}')
        a2(f's_add_u32 s55, s53, {4096*s_}')
        a2.vm(f'O{s_}', f'buffer_load_dwordx4 v5, {W_}, s55 offen sc1 lds')
        a2.vm(f'O{s_}', f'buffer_load_dwordx4 v5, {W_}, s55 offen offset:1024 sc1 lds')
    FX=[64,68,72,76]; FW=[80,84,88,92]
    for s_ in range(4):
        a2.wait_vm(f'O{s_}')
        a2('s_barrier')
        for k in range(4):
            ks=4*s_+k
            a2(f'ds_read_b128 {R(FX[k],4)}, v19 offset:{ks*1024}')
            a2(f'ds_read_b64_tr_b16 {R(FW[k],2)}, v18 offset:{ks*2048}')
            a2(f'ds_read_b64_tr_b16 {R(FW[k]+2,2)}, v18 offset:{ks*2048+1024}')
        for k in range(4):
            a2(f's_waitcnt lgkmcnt({3*(3-k)})')
            a2(f'v_mfma_f32_32x32x16_bf16 {R(ACC3,16)}, {R(FW[k],4)}, {R(FX[k],4)}, {R(ACC3,16)}')
    stamp(a2,15)
    a2('s_and_b32 s52, s36, 3')
    a2('s_lshl_b32 s52, s52, 12')
    a2('s_lshl_b32 s53, s49, 11')
    a2('s_add_u32 s54, s52, s53')
    a2('s_xor_b32 s53, s53, 2048')
    a2('s_add_u32 s55, s52, s53')
    a2(f's_add_u32 s54, s54, {L_EX}')
    a2(f's_add_u32 s55, s55, {L_EX}')
    a2('v_add_u32 v22, s54, v5')
    a2('v_add_u32 v23, s55, v5')
    a2('s_nop 7')
    a2('s_cmp_eq_u32 s49, 0')
    a2('s_cbranch_scc1 K_KH0')
    a2(f'ds_write_b128 v22, {R(ACC3,4)}')
    a2(f'ds_write_b128 v22, {R(ACC3+4,4)} offset:1024')
    a2('s_waitcnt lgkmcnt(0)')
    for r in range(8): a2(f'v_mov_b32 v{ACC3+r}, v{ACC3+8+r}')
    a2('s_branch K_EX')
    a2.label('K_KH0')
    a2(f'ds_write_b128 v22, {R(ACC3+8,4)}')
    a2(f'ds_write_b128 v22, {R(ACC3+12,4)} offset:1024')
    a2.label('K_EX')
    a2('s_waitcnt lgkmcnt(0)')
    a2('s_barrier')
    a2('ds_read_b128 v[64:67], v23')
    a2('ds_read_b128 v[68:71], v23 offset:1024')
    for i in range(4):
        a2(f'v_lshlrev_b32 v{72+2*i}, 16, v{52+i}')
        a2(f'v_and_b32 v{73+2*i}, 0xffff0000, v{52+i}')
        a2(f'v_lshlrev_b32 v{80+2*i}, 16, v{56+i}')
        a2(f'v_and_b32 v{81+2*i}, 0xffff0000, v{56+i}')
    for r in range(8): a2(f'v_add_f32 v{72+r}, v{72+r}, v{80+r}')
    a2('s_waitcnt lgkmcnt(0)')
    for r in range(8): a2(f'v_add_f32 v{ACC3+r}, v{ACC3+r}, v{64+r}')
    for r in range(8): a2(f'v_add_f32 v{ACC3+r}, v{ACC3+r}, v{72+r}')
    for i in range(4): a2(f'v_cvt_pk_bf16_f32 v{64+i}, v{ACC3+2*i}, v{ACC3+2*i+1}')
    a2(f'buffer_store_dwordx4 v[64:67], v20, {SR(sOUT)}, 0 offen')
    stamp_flush(a2,16)
    stamp_dbg(a2)
    a2('s_endpgm')
    a2.label('K_SLOW')
    a2('s_waitcnt vmcnt(0)')
    MX=116
    a2('s_mov_b32 s58, s40')
    for i in range(8): a2(f'v_mov_b32 v{MX+i}, 0xff800000')
    a2('s_mov_b32 s59, 0')
    a2.label('K_S1')
    a2(f'buffer_load_dwordx4 {R(KB[0],4)}, v5, {W_}, s58 offen sc1')
    a2('s_waitcnt vmcnt(0)')
    for i in range(8):
        a2(f'v_mfma_f32_32x32x16_bf16 {R(SA,16)}, {R(KB[0],4)}, {R(QF+4*i,4)}, 0')
        a2('s_nop 7'); a2('s_nop 7')
        for r in range(0,16,2): a2(f'v_max3_f32 v{MX+i}, v{MX+i}, v{SA+r}, v{SA+r+1}')
    a2('s_add_u32 s58, s58, 1024')
    a2('s_add_u32 s59, s59, 1')
    a2('s_cmp_lt_u32 s59, 16')
    a2('s_cbranch_scc1 K_S1')
    for i in range(8): a2(f'v_mov_b32 v{SA+i}, v{MX+i}')
    a2('s_nop 1')
    for i in range(8): a2(f'v_permlane32_swap_b32 v{MX+i}, v{SA+i}')
    a2('s_nop 1')
    for i in range(8): a2(f'v_max_f32 v{MX+i}, v{MX+i}, v{SA+i}')
    a2(f'v_mov_b32 v12, {L_CNT+12}')
    gbar_wait(a2, 12, 13, 12)
    a2('s_lshl_b32 s53, s36, 11')
    a2(f's_add_u32 s53, s53, {L_MX}')
    a2('v_add_u32 v42, s53, v9')
    for i in range(8): a2(f'ds_write_b32 v42, v{MX+i} offset:{256*i}')
    a2(f'v_mov_b32 v12, {L_CNT+16}')
    a2('v_mov_b32 v13, 1')
    a2('s_waitcnt lgkmcnt(0)')
    gbar_arrive(a2, 12, 13)
    gbar_wait(a2, 12, 13, 4)
    a2(f'v_add_u32 v42, {L_MX}, v9')
    for q in range(4):
        for i in range(8): a2(f'ds_read_b32 v{SA+i}, v42 offset:{2048*q+256*i}')
        a2('s_waitcnt lgkmcnt(0)')
        for i in range(8): a2(f'v_max_f32 v{MX+i}, v{MX+i}, v{SA+i}')
    a2('s_mov_b32 s58, s40'); a2('s_mov_b32 s60, s41')
    a2('s_mov_b32 s59, 0')
    a2.label('K_S2')
    a2(f'buffer_load_dwordx4 {R(KB[0],4)}, v5, {W_}, s58 offen sc1')
    a2('s_mov_b64 exec, s[50:51]')
    a2(f'buffer_load_dwordx4 {R(VB[0],4)}, v6, {W_}, s60 offen sc1')
    a2(f'buffer_load_dwordx4 {R(VB[0]+4,4)}, v6, {W_}, s60 offen offset:512 sc1')
    a2('s_mov_b64 exec, -1')
    a2('s_waitcnt vmcnt(0)')
    for i in range(8):
        a2(f'v_mfma_f32_32x32x16_bf16 {R(SA,16)}, {R(KB[0],4)}, {R(QF+4*i,4)}, 0')
        a2('s_nop 7'); a2('s_nop 7')
        for r in range(16): a2(f'v_sub_f32 v{SA+r}, v{SA+r}, v{MX+i}')
        for r in range(16): a2(f'v_exp_f32 v{SA+r}, v{SA+r}')
        a2('s_nop 1')
        a2(f'v_smfmac_f32_32x32x32_bf16 {R(OA[i],16)}, {R(VB[0],4)}, {R(SA,8)}, v{IDX}')
        a2(f'v_smfmac_f32_32x32x32_bf16 {R(OA[i],16)}, {R(VB[0]+4,4)}, {R(SA+8,8)}, v{IDX}')
        a2('s_nop 7')
    a2('s_add_u32 s58, s58, 1024')
    a2('s_add_u32 s60, s60, 1024')
    a2('s_add_u32 s59, s59, 1')
    a2('s_cmp_lt_u32 s59, 16')
    a2('s_cbranch_scc1 K_S2')
    a2('s_nop 7')
    a2('s_branch K_ATT_DONE')
    return a.text()+'\n'+g.text()+'\n'+h.text()+'\n'+a2.text()+'\nK_END:\n  s_endpgm\n'

HEADER=open('cdna_kernels/'+NAME+'.s.ref').read().split('; Override launch geometry')[0]
def assemble(body):
    n=NAME+'_kernel'
    return HEADER+f'''; @launch grid=(256,1,1) block=(512,1,1) lds={LDS_TOTAL}
.amdgcn_target "amdgcn-amd-amdhsa--gfx950"
.text
.globl {n}
.p2align 8
.type {n},@function
{n}:
{body}
.section .rodata,"a"
.p2align 6
.amdhsa_kernel {n}
  .amdhsa_next_free_vgpr 256
  .amdhsa_next_free_sgpr 102
  .amdhsa_accum_offset 256
  .amdhsa_group_segment_fixed_size 0
  .amdhsa_kernarg_size 88
  .amdhsa_user_sgpr_count 2
  .amdhsa_user_sgpr_kernarg_segment_ptr 1
  .amdhsa_system_sgpr_workgroup_id_x 1
  .amdhsa_float_denorm_mode_32 3
.end_amdhsa_kernel
'''
if __name__=='__main__':
    outp=sys.argv[1]
    if 'stamp' in sys.argv: STAMP=True
    OPT.update(sys.argv[2:])
    open(outp,'w').write(assemble(gen()))
    print('wrote',outp)
```

```python
import sys, struct
NAME='parallel_sum__softmax_full_mha__mixer_channel_mlp__prompt'

WS_F = 0
F_1, F_2, F_3 = 32768, 65536, 98304
WS_N = 256<<10
WS_Q = 1<<20
WS_K = 3<<20
WS_V = 5<<20
WS_O = 7<<20
WS_H = 9<<20
WS_T = 15<<20
WS_SIZE = 16<<20
QSCALE = 0.25*1.4426950408889634
T_LOG2 = 48.0
SPIN_MAX = 1<<20

def f2u(f): return struct.unpack('<I', struct.pack('<f', f))[0]

STAMP=False
OPT=set()
class Asm:
    def __init__(self):
        self.L=[]; self.vmq=[]
    def __call__(self, s): self.L.append('  '+s)
    def c(self, s): self.L.append('  ; '+s)
    def label(self, n): self.L.append(n+':')
    def vm(self, tag, s):
        self.vmq.append(tag); self(s)
    def wait_vm(self, tags):
        if isinstance(tags,str): tags=[tags]
        idx=[i for i,t in enumerate(self.vmq) if t in tags]
        if not idx: return
        last=max(idx); n=len(self.vmq)-1-last
        assert n<=63
        self(f's_waitcnt vmcnt({n})')
        self.vmq=self.vmq[last+1:]
    def wait_vm_all(self):
        self('s_waitcnt vmcnt(0)'); self.vmq=[]
    def text(self): return '\n'.join(self.L)

def stamp(a, i):
    if STAMP: a(f's_memtime s[{70+2*i}:{71+2*i}]')
def stamp_flush(a, n):
    if not STAMP: return
    a('s_waitcnt vmcnt(0) lgkmcnt(0)')
    a('s_lshl_b32 s69, s2, 3')
    a('s_add_u32 s69, s69, s36')
    a('s_lshl_b32 s69, s69, 6')
    a(f's_add_u32 s69, s69, {WS_T}')
    a('v_mov_b32 v2, 0')
    for i in range(n):
        a(f'v_mov_b32 v3, s{70+2*i}')
        a('s_mov_b64 exec, 1')
        a(f'buffer_store_dword v3, v2, s[28:31], s69 offen offset:{4*i}')
        a('s_mov_b64 exec, -1')
        a('s_nop 1')

def stamp_dbg(a):
    if not (STAMP and 'dbg' in OPT): return
    lab=newlab('DBG')
    a('s_cmp_eq_u32 s2, 37')
    a(f's_cbranch_scc0 {lab}')
    a('s_cmp_eq_u32 s36, 0')
    a(f's_cbranch_scc0 {lab}')
    a('s_load_dwordx2 s[66:67], s[0:1], 72')
    a('s_memrealtime s[92:93]')
    a('s_memtime s[100:101]')
    a('s_waitcnt lgkmcnt(0)')
    a('s_sub_u32 s92, s92, s82')
    a('s_add_u32 s92, s92, s70')
    a('s_mov_b32 s82, s70')
    a('s_mov_b32 s40, s66'); a('s_mov_b32 s41, s67'); a('s_mov_b32 s42, 256'); a('s_mov_b32 s43, 0x00020000')
    a('v_mov_b32 v2, 0')
    a('s_mov_b64 exec, 1')
    for i in range(16):
        a(f's_sub_u32 s3, s{70+2*i}, s70')
        a('v_mov_b32 v3, s3')
        a(f'buffer_store_dword v3, v2, s[40:43], 0 offen offset:{4*i}')
        a('s_nop 1')
    a('s_mov_b64 exec, -1')
    a.label(lab)

def R(a,n=1): return f'v{a}' if n==1 else f'v[{a}:{a+n-1}]'
def SR(a): return f's[{a}:{a+3}]'
def srd(a, d, ptr, size):
    a(f's_mov_b32 s{d}, s{ptr}')
    a(f's_mov_b32 s{d+1}, s{ptr+1}')
    a(f's_mov_b32 s{d+2}, {size}')
    a(f's_mov_b32 s{d+3}, 0x00020000')
def pk(op, d, a_, b_, c_=None, bsel=None, csel=None, neg=None):
    ops=[a_,b_]+([c_] if c_ is not None else [])
    n=len(ops)
    txt=[ (f'v[{o}:{o+1}]' if isinstance(o,int) else o) for o in ops]
    hi=[1]*n
    if bsel=='lo': hi[1]=0
    if csel=='lo': hi[2]=0
    s_=f'v_pk_{op}_f32 v[{d}:{d+1}], '+', '.join(txt)
    if hi!=[1]*n: s_+=' op_sel_hi:['+','.join(map(str,hi))+']'
    if neg: s_+=' '+neg
    return s_

pX,pWQ,pWO,pW1,pB1,pW2,pB2,pOUT,pWS = 4,6,8,12,14,16,18,20,22
sWS=28
W_=SR(sWS)

SLOT=28672; XS=16384; WST=12288
W1_SPARE=5*SLOT
SCR=W1_SPARE+WST
L_A=SCR; L_MU=SCR+512; L_CS=SCR+1024; L_CS1=SCR+1536; L_B1=SCR+2048; L_A2=SCR+2560; L_A2M=SCR+3072
L_CNT=SCR+4096
LDS_TOTAL=163840
W1_ADDR=[W1_SPARE, 3*SLOT, 3*SLOT+WST, 4*SLOT, 4*SLOT+WST, 0, WST, SLOT]
A_SLOT=[0,1,2,3,4,0,1,2]
L_RED=0
L_RING=73728
L_MX=139264
G2D=8
L_WO=0
L_OX=65536
L_EX=131072

uid=[0]
def newlab(p):
    uid[0]+=1; return f'{p}_{uid[0]}'

def poll(a, nl, voff, soff, vt):
    lab=newlab('POLL'); done=newlab('POLLD')
    mask=(1<<nl)-1
    a(f's_mov_b32 s66, {mask:#x}')
    a('s_mov_b32 s67, 0')
    a(f's_mov_b32 s68, {SPIN_MAX}')
    a('s_mov_b64 exec, s[66:67]')
    a.label(lab)
    a(f'buffer_load_dwordx2 v[{vt}:{vt+1}], {voff}, {W_}, {soff} offen sc1')
    a('s_waitcnt vmcnt(0)')
    a(f'v_cmp_eq_u64 vcc, s[64:65], v[{vt}:{vt+1}]')
    a('s_sub_u32 s68, s68, 1')
    a('s_cmp_eq_u32 s68, 0')
    a(f's_cbranch_scc1 {done}')
    a('s_cmp_eq_u64 vcc, s[66:67]')
    a(f's_cbranch_scc1 {done}')
    a('s_sleep 2')
    a(f's_branch {lab}')
    a.label(done)
    a('s_mov_b64 exec, -1')
    a.vmq=[]

def poll_wg(a, nl, voff, soff, vt, leader, lds_addr):
    oth=newlab('PWO'); done=newlab('PWD')
    a(f'v_mov_b32 v{vt+2}, {lds_addr}')
    a(f's_cmp_eq_u32 s36, {leader}')
    a(f's_cbranch_scc0 {oth}')
    poll(a, nl, voff, soff, vt)
    a(f'v_mov_b32 v{vt}, 1')
    a('s_mov_b64 exec, 1')
    a(f'ds_write_b32 v{vt+2}, v{vt}')
    a('s_mov_b64 exec, -1')
    a(f's_branch {done}')
    a.label(oth)
    lab=newlab('PWL')
    a.label(lab)
    a(f'ds_read_b32 v{vt}, v{vt+2}')
    a('s_waitcnt lgkmcnt(0)')
    a(f'v_readfirstlane_b32 s66, v{vt}')
    a('s_nop 0')
    a('s_cmp_eq_u32 s66, 0')
    a(f's_cbranch_scc0 {done}')
    a('s_sleep 1')
    a(f's_branch {lab}')
    a.label(done)
    a('s_waitcnt vmcnt(0)')
    a.vmq=[]

def signal(a, cnt_addr, last, flag_soff, vt):
    skip=newlab('SIG')
    a(f'v_mov_b32 v{vt}, {cnt_addr}')
    a(f'v_mov_b32 v{vt+1}, 1')
    a('s_mov_b64 exec, 1')
    a(f'ds_add_rtn_u32 v{vt+2}, v{vt}, v{vt+1}')
    a('s_waitcnt lgkmcnt(0)')
    a(f'v_readfirstlane_b32 s66, v{vt+2}')
    a(f'v_mov_b32 v{vt}, s64')
    a(f'v_mov_b32 v{vt+1}, s65')
    a(f'v_mov_b32 v{vt+2}, 0')
    a(f's_cmp_eq_u32 s66, {last}')
    a(f's_cbranch_scc0 {skip}')
    a(f'buffer_store_dwordx2 v[{vt}:{vt+1}], v{vt+2}, {W_}, {flag_soff} offen sc1')
    a.label(skip)
    a('s_mov_b64 exec, -1')

def gbar_arrive(a, vaddr, vone):
    a('s_mov_b64 exec, 1')
    a(f'ds_add_u32 v{vaddr}, v{vone}')
    a('s_mov_b64 exec, -1')
def gbar_wait(a, vaddr, vt, target):
    lab=newlab('GB')
    a.label(lab)
    a(f'ds_read_b32 v{vt}, v{vaddr}')
    a('s_waitcnt lgkmcnt(0)')
    a(f'v_readfirstlane_b32 s3, v{vt}')
    a('s_nop 0')
    a(f's_cmp_ge_u32 s3, {target}')
    a(f's_cbranch_scc0 {lab}')

def gen():
    a=Asm()
    a('s_cmp_ge_u32 s2, 256')
    a('s_cbranch_scc1 K_END')
    stamp(a,0)
    if STAMP and 'dbg' in OPT: a('s_memrealtime s[82:83]')
    a('s_load_dwordx16 s[4:19], s[0:1], 0')
    a('s_load_dwordx2 s[20:21], s[0:1], 64')
    a('s_load_dwordx2 s[22:23], s[0:1], 80')
    a('v_and_b32 v1, 63, v0')
    a('v_lshrrev_b32 v2, 6, v0')
    a('s_and_b32 s48, s2, 7')
    a('v_readfirstlane_b32 s36, v2')
    a('s_lshr_b32 s49, s2, 3')
    a('s_and_b32 s50, s48, 1')
    a('s_lshr_b32 s51, s48, 1')
    a('s_lshl_b32 s50, s50, 3')
    a('s_and_b32 s52, s49, 7')
    a('s_add_u32 s38, s50, s52')
    a('s_lshl_b32 s51, s51, 2')
    a('s_lshr_b32 s52, s49, 3')
    a('s_add_u32 s39, s51, s52')
    a('s_and_b32 s37, s36, 3')
    a('v_and_b32 v3, 31, v1')
    a('v_lshrrev_b32 v4, 5, v1')
    a('s_cmp_ge_u32 s36, 4')
    a('s_cbranch_scc1 K_G1')

    def common_lds_addr(e):
        e('v_bfe_u32 v5, v1, 1, 3')
        e('v_xor_b32 v5, v5, v4')
        e('v_lshlrev_b32 v5, 4, v5')
        e('s_lshl_b32 s3, s37, 12')
        e('v_lshlrev_b32 v6, 7, v3')
        e('v_add3_u32 v12, v6, v5, s3')
        e('v_xor_b32 v13, 32, v12')
        e('v_xor_b32 v14, 64, v12')
        e('v_xor_b32 v15, 0x60, v12')
        e('v_lshlrev_b32 v6, 3, v4')
        e('v_bfe_u32 v7, v1, 2, 2')
        e('v_add_u32 v6, v6, v7')
        e('v_mul_u32_u24 v6, 192, v6')
        e('v_bfe_u32 v7, v1, 4, 1')
        e('v_lshlrev_b32 v7, 5, v7')
        e('v_and_b32 v8, 3, v1')
        e('v_lshlrev_b32 v8, 3, v8')
        e('v_add3_u32 v16, v6, v7, v8')

    g=Asm()
    accQ,accK,accV=64,80,96
    FS0=[128,144,160,176]
    g('s_getpc_b64 s[62:63]')
    g.label('PF_0')
    g('s_lshr_b32 s60, s2, 3')
    g('s_and_b32 s60, s60, 7')
    g('s_lshl_b32 s60, s60, 2')
    g('s_add_u32 s60, s60, s37')
    g('s_lshl_b32 s60, s60, 10')
    g('v_lshlrev_b32 v9, 4, v1')
    g('v_add_u32 v9, s60, v9')
    g('v_min_u32 v10, K_END-PF_0-16, v9')
    g('global_load_dwordx4 v[200:203], v10, s[62:63]')
    g('v_add_u32 v9, 0x8000, v9')
    g('v_min_u32 v10, K_END-PF_0-16, v9')
    g('global_load_dwordx4 v[204:207], v10, s[62:63]')
    common_lds_addr(g)
    for r in range(64,112): g(f'v_mov_b32 v{r}, 0')
    g(f'v_add_u32 v17, {XS}, v16')
    g(f's_mov_b32 s56, {(-4*SLOT)&0xffffffff:#x}')
    g(f's_mov_b32 s57, {SLOT}')
    g(f'v_lshlrev_b32 v18, 2, v1')
    g(f'v_add_u32 v18, {L_CNT}, v18')
    g('v_mov_b32 v19, 0')
    g('s_mov_b64 exec, 0xff')
    g('ds_write_b32 v18, v19')
    g('s_mov_b64 exec, -1')
    g('s_lshl_b32 s48, s37, 7')
    g('v_lshlrev_b32 v20, 2, v3')
    g('v_add_u32 v20, s48, v20')
    g(f'v_add_u32 v20, {L_A}, v20')
    g('v_lshlrev_b32 v23, 4, v4')
    g(f'v_add_u32 v24, {L_CS}, v23')
    g('v_lshlrev_b32 v25, 2, v3')
    g(f'v_add_u32 v25, {L_CS+64*4}, v25')
    g('v_add_u32 v27, s48, v23')
    g(f'v_add_u32 v27, {L_A}, v27')
    g('s_lshl_b32 s49, s38, 2')
    g('s_add_u32 s49, s49, s37')
    g('s_lshl_b32 s50, s49, 10')
    g('s_lshl_b32 s51, s39, 17')
    g('s_add_u32 s50, s50, s51')
    g(f's_add_u32 s52, s50, {WS_K}')
    g(f's_add_u32 s53, s50, {WS_K+65536}')
    g(f's_add_u32 s54, s50, {WS_V}')
    g(f's_add_u32 s51, s50, {WS_Q+65536}')
    g(f's_add_u32 s50, s50, {WS_Q}')
    g('v_lshlrev_b32 v28, 4, v1')
    g('v_and_b32 v29, 0x13, v3')
    g('v_bfe_u32 v30, v3, 2, 1')
    g('v_lshlrev_b32 v30, 3, v30')
    g('v_bfe_u32 v31, v3, 3, 1')
    g('v_lshlrev_b32 v31, 2, v31')
    g('v_or3_b32 v29, v29, v30, v31')
    g('v_lshlrev_b32 v30, 5, v4')
    g('v_add_u32 v29, v29, v30')
    g('v_lshlrev_b32 v29, 4, v29')
    g('v_bfe_u32 v30, v3, 4, 1')
    g('v_lshlrev_b32 v30, 16, v30')
    g('v_lshlrev_b32 v31, 8, v4')
    g('v_and_b32 v32, 15, v3')
    g('v_lshlrev_b32 v32, 4, v32')
    g('v_add3_u32 v30, v30, v31, v32')
    g('s_mul_i32 s55, s39, 1536')
    g('s_lshl_b32 s58, s49, 2')
    g('s_add_u32 s55, s55, s58')
    g(f's_add_u32 s55, s55, {WS_N}')
    g('v_lshlrev_b32 v31, 8, v1')
    g('s_waitcnt lgkmcnt(0)')
    srd(g,sWS,pWS,WS_SIZE)
    g(f's_load_dwordx2 s[64:65], s[{pWS}:{pWS+1}], 0')
    def readlist(set_, ks):
        L=[f'ds_read_b128 {R(set_,4)}, v{12+ks}']
        for t in range(3):
            for e in range(2):
                L.append(f'ds_read_b64_tr_b16 {R(set_+4+4*t+2*e,2)}, v17 offset:{ks*3072+e*768+t*64}')
        return L
    def mfmalist(set_):
        return [f'v_mfma_f32_32x32x16_bf16 {R(accQ,16)}, {R(set_+4,4)}, {R(set_,4)}, {R(accQ,16)}',
                f'v_mfma_f32_32x32x16_bf16 {R(accK,16)}, {R(set_+8,4)}, {R(set_,4)}, {R(accK,16)}',
                f'v_mfma_f32_32x32x16_bf16 {R(accV,16)}, {R(set_,4)}, {R(set_+12,4)}, {R(accV,16)}']
    g('s_waitcnt lgkmcnt(0)')
    g('s_add_u32 s64, s64, 0x7f4a7c15')
    g('s_addc_u32 s65, s65, 0x9e3779b9')
    stamp(g,1)
    for st in range(8):
        g('s_barrier')
        if st==0: stamp(g,2)
        for ks in range(4):
            rl=readlist(FS0[ks],ks); ml=mfmalist(FS0[(ks+2)%4])
            if st==0 and ks<2:
                for r_ in rl: g(r_)
                continue
            g('s_waitcnt lgkmcnt(7)')
            g(ml[0]); g(rl[0]); g(rl[1]); g(rl[2])
            g(ml[1]); g(rl[3]); g(rl[4])
            g(ml[2]); g(rl[5]); g(rl[6])
        if st<7:
            sr='s57' if A_SLOT[st+1]>A_SLOT[st] else 's56'
            for r in (12,13,14,15,17): g(f'v_add_u32 v{r}, {sr}, v{r}')
    g('s_waitcnt lgkmcnt(7)')
    for m in mfmalist(FS0[2]): g(m)
    g('s_waitcnt lgkmcnt(0)')
    for m in mfmalist(FS0[3]): g(m)
    stamp(g,3)
    g('s_barrier')
    g('s_setprio 3')
    CSQ=128; CSK=144; AV=160; MV=176
    g('ds_read_b32 v21, v20')
    g(f'ds_read_b32 v22, v20 offset:{L_MU-L_A}')
    for T,base in ((0,CSQ),(1,CSK)):
        for gg in range(4):
            g(f'ds_read_b128 {R(base+4*gg,4)}, v24 offset:{(32*T+8*gg)*4}')
    g('ds_read_b32 v26, v25')
    g('s_waitcnt lgkmcnt(9)')
    g(f'v_mul_f32 v34, {f2u(QSCALE):#x}, v21')
    g('v_mul_f32 v38, v21, v22')
    g('v_mul_f32 v36, v34, v22')
    for gg in range(4):
        g(f'ds_read_b128 {R(AV+4*gg,4)}, v27 offset:{8*gg*4}')
        g(f'ds_read_b128 {R(MV+4*gg,4)}, v27 offset:{8*gg*4+L_MU-L_A}')
    g('s_waitcnt lgkmcnt(12)')
    for r in range(16): g(f'v_mul_f32 v{CSK+r}, v{CSK+r}, v38') if False else None
    g('s_waitcnt lgkmcnt(8)')
    for r in range(16): g(f'v_mul_f32 v{CSK+r}, v{CSK+r}, v38')
    for r in range(16): g(f'v_fma_f32 v{accK+r}, v{accK+r}, v21, -v{CSK+r}')
    for i in range(8): g(f'v_cvt_pk_bf16_f32 v{CSK+i}, v{accK+2*i}, v{accK+2*i+1}')
    g(f'buffer_store_dwordx4 {R(CSK,4)}, v29, {W_}, s52 offen sc1')
    g(f'buffer_store_dwordx4 {R(CSK+4,4)}, v29, {W_}, s53 offen sc1')
    g('s_waitcnt lgkmcnt(0)')
    for r in range(16): g(f'v_fma_f32 v{accV+r}, -v{MV+r}, v26, v{accV+r}')
    for r in range(16): g(f'v_mul_f32 v{accV+r}, v{accV+r}, v{AV+r}')
    for i in range(8): g(f'v_cvt_pk_bf16_f32 v{AV+i}, v{accV+2*i}, v{accV+2*i+1}')
    g(f'buffer_store_dwordx4 {R(AV,4)}, v30, {W_}, s54 offen sc1')
    g(f'buffer_store_dwordx4 {R(AV+4,4)}, v30, {W_}, s54 offen offset:512 sc1')
    for r in range(16): g(f'v_mul_f32 v{CSQ+r}, v{CSQ+r}, v36')
    for r in range(16): g(f'v_fma_f32 v{accQ+r}, v{accQ+r}, v34, -v{CSQ+r}')
    for i in range(8): g(f'v_cvt_pk_bf16_f32 v{CSQ+i}, v{accQ+2*i}, v{accQ+2*i+1}')
    g(f'buffer_store_dwordx4 {R(CSQ,4)}, v28, {W_}, s50 offen sc1')
    g(f'buffer_store_dwordx4 {R(CSQ+4,4)}, v28, {W_}, s51 offen sc1')
    for (b,acc) in ((42,accK),(46,accQ)):
        g(f'v_mul_f32 v{b}, v{acc}, v{acc}'); g(f'v_mul_f32 v{b+1}, v{acc+1}, v{acc+1}')
        g(f'v_mul_f32 v{b+2}, v{acc+8}, v{acc+8}'); g(f'v_mul_f32 v{b+3}, v{acc+9}, v{acc+9}')
        for i in range(2,8):
            g(f'v_fmac_f32 v{b+(i&1)}, v{acc+i}, v{acc+i}'); g(f'v_fmac_f32 v{b+2+(i&1)}, v{acc+8+i}, v{acc+8+i}')
    g(f'v_max3_f32 v38, |v{accV}|, |v{accV+1}|, |v{accV+2}|')
    g('v_add_f32 v34, v42, v43')
    g('v_add_f32 v35, v44, v45')
    g('v_add_f32 v36, v46, v47')
    g('v_add_f32 v37, v48, v49')
    for r in range(3,15,2): g(f'v_max3_f32 v38, v38, |v{accV+r}|, |v{accV+r+1}|')
    g(f'v_max_f32 v38, v38, |v{accV+15}|')
    for i in range(4): g(f'v_mov_b32 v{40+i}, v{34+i}')
    g('s_nop 1')
    for i in range(4): g(f'v_permlane32_swap_b32 v{34+i}, v{40+i}')
    g('s_nop 1')
    for i in range(4): g(f'v_add_f32 v{34+i}, v{34+i}, v{40+i}')
    g('s_nop 1')
    for sh in (1,2,4,8):
        for r in (34,35,36,37,38): g(f'v_max_f32_dpp v{r}, v{r}, v{r} row_shr:{sh} row_mask:0xf bank_mask:0xf')
    for r in (34,35,36,37): g(f'v_max_f32_dpp v{r}, v{r}, v{r} row_bcast:15 row_mask:0xa bank_mask:0xf')
    g('s_nop 1')
    g('v_readlane_b32 s56, v38, 15')
    g('v_readlane_b32 s57, v38, 47')
    g('v_readlane_b32 s58, v38, 31')
    g('v_readlane_b32 s59, v38, 63')
    g('v_readlane_b32 s66, v34, 31')
    g('v_readlane_b32 s67, v35, 31')
    g('v_readlane_b32 s68, v36, 31')
    g('v_readlane_b32 s69, v37, 31')
    g('s_max_u32 s56, s56, s57')
    g('s_max_u32 s58, s58, s59')
    g('v_mov_b32 v40, s66')
    g('v_writelane_b32 v40, s56, 1')
    g('v_writelane_b32 v40, s68, 2')
    g('v_writelane_b32 v40, s67, 3')
    g('v_writelane_b32 v40, s58, 4')
    g('v_writelane_b32 v40, s69, 5')
    g('s_mov_b64 exec, 63')
    g(f'buffer_store_dword v40, v31, {W_}, s55 offen sc1')
    g('s_mov_b64 exec, -1')
    stamp(g,4)
    g('s_setprio 0')
    g('s_waitcnt vmcnt(0)')
    g('s_lshl_b32 s48, s39, 4')
    g('s_add_u32 s48, s48, s38')
    g('s_lshl_b32 s48, s48, 7')
    g(f's_add_u32 s48, s48, {F_1}')
    signal(g, L_CNT, 3, 's48', 40)
    stamp(g,5)
    g('s_branch K_ATT')

    h=Asm()
    h.label('K_G1')
    h('s_setprio 2')
    sX,sWQ,sW1,sB1=24,32,40,44
    XF=128
    h('s_mul_i32 s50, s39, 3')
    h('s_lshl_b32 s51, s39, 1')
    h('s_add_u32 s51, s51, 11')
    h('s_cmp_lt_u32 s39, 11')
    h('s_cselect_b32 s48, s50, s51')
    h('s_cselect_b32 s49, 3, 2')
    h('v_lshrrev_b32 v20, 3, v1')
    h('v_and_b32 v21, 7, v1')
    h('v_lshrrev_b32 v22, 4, v1')
    h('v_xor_b32 v21, v21, v22')
    h('v_lshlrev_b32 v20, 10, v20')
    h('v_lshlrev_b32 v22, 4, v21')
    h('v_add_u32 v2, v20, v22')
    h('v_xor_b32 v22, 64, v22')
    h('v_add_u32 v22, 7168, v22')
    h('v_add_u32 v18, v20, v22')
    h('v_add_u32 v19, 14336, v2')
    h('v_add_u32 v20, 14336, v18')
    VX=[2,18,19,20]
    VW=[21,22,23]; VW1=[24,25,26]
    for p in range(3):
        h(f'v_add_u32 v27, {64*p}, v1')
        h('v_mul_u32_u24 v28, 43691, v27')
        h('v_lshrrev_b32 v28, 19, v28')
        h('v_mul_u32_u24 v29, 12, v28')
        h('v_sub_u32 v29, v27, v29')
        h('v_lshrrev_b32 v30, 2, v29')
        h('v_lshlrev_b32 v30, 10, v30')
        h('v_and_b32 v31, 3, v29')
        h('v_lshlrev_b32 v31, 4, v31')
        h('v_mul_u32_u24 v32, 3072, v28')
        h(f'v_add3_u32 v{VW[p]}, v32, v30, v31')
        if p: h(f'v_subrev_u32 v{VW[p]}, {1024*p}, v{VW[p]}')
        h('v_mul_u32_u24 v32, 2752, v28')
        h('v_lshlrev_b32 v31, 4, v29')
        h(f'v_add_u32 v{VW1[p]}, v32, v31')
        if p: h(f'v_subrev_u32 v{VW1[p]}, {1024*p}, v{VW1[p]}')
    h('s_lshl_b32 s50, s38, 17')
    h('s_lshl_b32 s51, s37, 15')
    h('s_add_u32 s50, s50, s51')
    h('s_mul_i32 s51, s37, 49152')
    h('s_lshl_b32 s52, s39, 6')
    h('s_add_u32 s51, s51, s52')
    h('s_mul_i32 s52, s37, 44032')
    h('s_lshl_b32 s53, s48, 6')
    h('s_add_u32 s52, s52, s53')
    h('s_lshl_b32 s53, s37, 12')
    h('s_mul_i32 s54, s37, 3072')
    h('s_lshl_b32 s56, s48, 6')
    h('s_and_b32 s58, s39, 3')
    h('s_lshl_b32 s58, s58, 1')
    h('s_add_u32 s58, s58, s38')
    h('s_and_b32 s58, s58, 7')
    h('s_waitcnt lgkmcnt(0)')
    srd(h,sX,pX,2048*512*2); srd(h,sWQ,pWQ,512*1536*2)
    def dmaA(st):
        slot=A_SLOT[st]*SLOT; L=[]
        L.append((f's_add_u32 s61, s58, {st}',None))
        L.append(('s_and_b32 s61, s61, 7',None))
        L.append((f's_add_u32 m0, s53, {slot}',None))
        L.append(('s_lshl_b32 s55, s61, 7',None))
        L.append(('s_add_u32 s55, s55, s50',None))
        for i in range(4):
            L.append((f'buffer_load_dwordx4 v{VX[i]}, {SR(sX)}, s55 offen offset:{1024*i} lds',f'A{st}'))
        L.append((f's_add_u32 m0, s54, {slot+XS}',None))
        L.append((f's_mul_i32 s55, s61, {64*3072}',None))
        L.append(('s_add_u32 s55, s55, s51',None))
        for p in range(3):
            L.append((f'buffer_load_dwordx4 v{VW[p]}, {SR(sWQ)}, s55 offen offset:{1024*p} lds',f'A{st}'))
        return L
    def dmaB(st):
        L=[]
        L.append((f's_add_u32 s61, s58, {st}',None))
        L.append(('s_and_b32 s61, s61, 7',None))
        L.append((f's_add_u32 m0, s54, {W1_ADDR[st]}',None))
        L.append((f's_mul_i32 s55, s61, {64*2752}',None))
        L.append(('s_add_u32 s55, s55, s52',None))
        for p in range(3):
            L.append((f'buffer_load_dwordx4 v{VW1[p]}, {SR(sW1)}, s55 offen offset:{1024*p} lds',f'B{st}'))
        return L
    def emit(e, dmas):
        for (ins,tag) in dmas:
            if tag: e.vm(tag,ins)
            else: e(ins)
    stamp(h,1)
    for st in range(3): emit(h,dmaA(st))
    stamp(h,2)
    srd(h,sW1,pW1,512*1376*2); srd(h,sWS,pWS,WS_SIZE); srd(h,sB1,pB1,1376*2)
    h(f's_load_dwordx2 s[64:65], s[{pWS}:{pWS+1}], 0')
    common_lds_addr(h)
    h('v_lshlrev_b32 v27, 2, v1')
    h.vm('b1', f'buffer_load_dword v31, v27, {SR(sB1)}, s56 offen')
    h('s_cmp_eq_u32 s37, 3')
    h('s_cselect_b32 s57, 0, s37')
    h('s_lshl_b32 s3, s57, 6')
    h(f's_add_u32 s3, s3, {XS}')
    h('v_add_u32 v17, s3, v16')
    PAT=112; ONES=8; SUMA=[116,120]; GRA=[124,104]; CSA=108
    h('v_and_b32 v27, 15, v1')
    h('v_bfe_u32 v28, v1, 4, 1')
    h('v_cmp_eq_u32 vcc, v27, v28')
    h('v_mov_b32 v29, 0x3f803f80')
    h(f'v_cndmask_b32 v{PAT}, 0, v29, vcc')
    for r in range(1,4): h(f'v_mov_b32 v{PAT+r}, v{PAT}')
    for r in range(4): h(f'v_mov_b32 v{ONES+r}, v29')
    for b in SUMA+GRA+[CSA]:
        for r in range(4): h(f'v_mov_b32 v{b+r}, 0')
    h('v_lshrrev_b32 v28, 4, v1')
    h('v_bfe_u32 v29, v1, 1, 3')
    h('v_xor_b32 v28, v28, v29')
    h('v_lshlrev_b32 v28, 4, v28')
    h('v_lshlrev_b32 v27, 7, v27')
    h('s_lshl_b32 s3, s37, 12')
    h('v_add3_u32 v5, v27, v28, s3')
    h('v_xor_b32 v6, 64, v5')
    TMP=40; XS16=56
    h('s_waitcnt lgkmcnt(0)')
    h('s_add_u32 s64, s64, 0x7f4a7c15')
    h('s_addc_u32 s65, s65, 0x9e3779b9')
    h(f's_mov_b32 s59, {SLOT}')
    h(f's_mov_b32 s60, {(-4*SLOT)&0xffffffff:#x}')
    sched={0:dmaA(3)+dmaA(4), 1:dmaB(0), 2:dmaA(5), 3:dmaA(6), 4:dmaA(7), 5:dmaB(1)+dmaB(2), 6:dmaB(3)+dmaB(4), 7:dmaB(5)+dmaB(6)}
    for st in range(8):
        h.wait_vm(f'A{st}')
        h('s_barrier')
        if st==0: stamp(h,3)
        dm=sched[st]
        for u in range(2):
            for kk in range(2):
                h(f'ds_read_b128 {R(XS16+8*u+4*kk,4)}, v{5+kk} offset:{2048*u}')
        for ks in range(4):
            for e in range(2):
                h(f'ds_read_b64_tr_b16 {R(TMP+4*ks+2*e,2)}, v17 offset:{ks*3072+e*768}')
        k=0; nv=0
        while nv<2 and k<len(dm):
            if dm[k][1]: h.vm(dm[k][1],dm[k][0]); nv+=1
            else: h(dm[k][0])
            k+=1
        val=[]
        for u in range(2):
            for kk in range(2):
                x=XS16+8*u+4*kk
                val.append(f'v_mfma_f32_16x16x32_bf16 {R(SUMA[u],4)}, {R(ONES,4)}, {R(x,4)}, {R(SUMA[u],4)}')
                val.append(f'ds_read_b128 {R(XF+16*st+4*(2*u+kk),4)}, v{12+2*u+kk}')
                val.append(f'v_mfma_f32_16x16x32_bf16 {R(GRA[u],4)}, {R(x,4)}, {R(x,4)}, {R(GRA[u],4)}')
        val.append('s_waitcnt lgkmcnt(4)')
        for ks in range(4):
            val.append(f'v_mfma_f32_16x16x32_bf16 {R(CSA,4)}, {R(TMP+4*ks,4)}, {R(PAT,4)}, {R(CSA,4)}')
        if st<7:
            d=(A_SLOT[st+1]-A_SLOT[st])*SLOT
            sr='s59' if d==SLOT else 's60'
            for r in (12,13,14,15,17,5,6): val.append(f'v_add_u32 v{r}, {sr}, v{r}')
        h('s_waitcnt lgkmcnt(8)')
        rest=dm[k:]; vi=0
        for (ins,tag) in rest:
            if tag:
                for _ in range(2):
                    if vi<len(val): h(val[vi]); vi+=1
                h.vm(tag,ins)
            else: h(ins)
        while vi<len(val): h(val[vi]); vi+=1
    h('s_waitcnt lgkmcnt(0)')
    h('v_and_b32 v27, 3, v1')
    h('v_cmp_eq_u32 vcc, 1, v27')
    h('v_cmp_eq_u32 s[66:67], 2, v27')
    h('v_cmp_eq_u32 s[68:69], 3, v27')
    h('v_and_b32 v28, 15, v1')
    h('v_lshlrev_b32 v28, 2, v28')
    h('s_lshl_b32 s3, s37, 7')
    h('v_add_u32 v28, s3, v28')
    h(f'v_add_u32 v28, {L_A}, v28')
    for u in range(2):
        gr=GRA[u]; q=32+2*u
        h(f'v_cndmask_b32 v{q}, v{gr}, v{gr+1}, vcc')
        h(f'v_cndmask_b32 v{q}, v{q}, v{gr+2}, s[66:67]')
        h(f'v_cndmask_b32 v{q}, v{q}, v{gr+3}, s[68:69]')
    for u in range(2):
        q=32+2*u; m=SUMA[u]
        h(f'v_mul_f32 v{m}, {f2u(1/512):#x}, v{m}')
        h(f'v_mul_f32 v{q}, {f2u(1/512):#x}, v{q}')
    for u in range(2):
        q=32+2*u; m=SUMA[u]
        h(f'v_fma_f32 v{q}, -v{m}, v{m}, v{q}')
        h(f'v_max_f32 v{q}, 0, v{q}')
        h(f'v_add_f32 v{q+1}, {f2u(1e-5):#x}, v{q}')
    for u in range(2):
        q=32+2*u
        h(f'v_rsq_f32 v{q+1}, v{q+1}')
    h('s_nop 0')
    for u in range(2):
        q=32+2*u; m=SUMA[u]
        h(f'v_mul_f32 v{m+1}, v{q+1}, v{q+1}')
        h(f'v_mul_f32 v{m+1}, v{m+1}, v{q}')
        h(f'v_add_f32 v{m+1}, {f2u(1e-5):#x}, v{m+1}')
    for u in range(2):
        m=SUMA[u]
        h(f'v_rsq_f32 v{m+1}, v{m+1}')
    h('s_mov_b32 s66, 0x00f0000f')
    h('s_mov_b32 s67, 0xf0000f00')
    for u in range(2):
        q=32+2*u; m=SUMA[u]
        h(f'v_mul_f32 v{m+2}, v{m+1}, v{q+1}')
        h(f'v_mul_f32 v{m+3}, v{m+2}, v{m}')
    h('s_mov_b64 exec, s[66:67]')
    for u in range(2):
        q=32+2*u; m=SUMA[u]
        h(f'ds_write_b32 v28, v{q+1} offset:{64*u}')
        h(f'ds_write_b32 v28, v{m} offset:{64*u+L_MU-L_A}')
        h(f'ds_write_b32 v28, v{m+2} offset:{64*u+L_A2-L_A}')
        h(f'ds_write_b32 v28, v{m+3} offset:{64*u+L_A2M-L_A}')
    h('s_mov_b64 exec, -1')
    h('v_and_b32 v29, 15, v1')
    h('v_lshlrev_b32 v29, 6, v29')
    h('v_lshrrev_b32 v30, 4, v1')
    h('v_lshlrev_b32 v30, 4, v30')
    h('s_lshl_b32 s55, s57, 7')
    h('v_add3_u32 v29, v29, v30, s55')
    h(f'v_add_u32 v29, {L_CS}, v29')
    h('s_mov_b32 s62, 0x00030003')
    h('s_mov_b32 s63, 0x00030003')
    h('s_mov_b64 exec, s[62:63]')
    h(f'ds_write_b128 v29, {R(CSA,4)}')
    h('s_mov_b64 exec, -1')
    h('v_lshlrev_b32 v27, 2, v3')
    h('v_add_u32 v28, s3, v27')
    h(f'v_add_u32 v28, {L_A2}, v28')
    h('s_waitcnt lgkmcnt(0)')
    h('ds_read_b32 v38, v28')
    h(f'ds_read_b32 v30, v28 offset:{L_A2M-L_A2}')
    h.wait_vm('b1')
    h('v_lshlrev_b32 v34, 16, v31')
    h('v_and_b32 v35, 0xffff0000, v31')
    h('v_lshlrev_b32 v28, 3, v1')
    h(f'v_add_u32 v28, {L_B1}, v28')
    h('v_cmp_gt_u32 vcc, 48, v1')
    h('s_and_saveexec_b64 s[66:67], vcc')
    h('ds_write_b64 v28, v[34:35]')
    h('s_mov_b64 exec, s[66:67]')
    ACC=[64,80,96]
    for r in range(64,112): h(f'v_mov_b32 v{r}, 0')
    FS=[40,52,112]
    TS=[57,59,60]
    for sl in range(3):
        h(f's_add_u32 s3, s37, {sl}')
        h('s_cmp_ge_u32 s3, 3')
        h('s_cselect_b32 s55, 3, 0')
        h('s_sub_u32 s3, s3, s55')
        h('s_cmp_ge_u32 s3, 3')
        h('s_cselect_b32 s55, 3, 0')
        h('s_sub_u32 s3, s3, s55')
        h(f's_mov_b32 s{TS[sl]}, s3')
        h('s_lshl_b32 s3, s3, 6')
        h(f'v_add_u32 v{12+sl}, s3, v16')
    PAT2=8; CS1A=124
    for r in range(4):
        h(f'v_mov_b32 v{PAT2+r}, v{PAT}')
        h(f'v_mov_b32 v{CS1A+r}, 0')
    cur=[0]
    def setbase(st):
        d=W1_ADDR[st]-cur[0]
        if d:
            for sl in range(3): h(f'v_add_u32 v{12+sl}, {d&0xffffffff:#x}, v{12+sl}')
        cur[0]=W1_ADDR[st]
    def readsB(n):
        st,ks=divmod(n,4); fs=FS[n%3]
        if ks==0: setbase(st)
        for sl in range(3):
            for e in range(2):
                h(f'ds_read_b64_tr_b16 {R(fs+4*sl+2*e,2)}, v{12+sl} offset:{ks*3072+e*768}')
    def mfmaB(n):
        fs=FS[n%3]
        for sl in range(3):
            h(f'v_mfma_f32_32x32x16_bf16 {R(ACC[sl],16)}, {R(fs+4*sl,4)}, {R(XF+4*n,4)}, {R(ACC[sl],16)}')
            if sl==1:
                h(f'v_mfma_f32_16x16x32_bf16 {R(CS1A,4)}, {R(fs,4)}, {R(PAT2,4)}, {R(CS1A,4)}')
    h(f'v_mov_b32 v17, {L_CNT+12}')
    h('v_mov_b32 v7, 1')
    h.wait_vm(['B0','B1'])
    h('s_waitcnt lgkmcnt(0)')
    stamp(h,4)
    h('s_barrier')
    bar={8:['B2','B3','B4','B5'], 24:['B6','B7']}
    emit(h,dmaB(7))
    readsB(0); readsB(1)
    for n in range(32):
        m=n+2
        if m+1 in bar:
            h.wait_vm(bar[m+1])
            gbar_arrive(h, 17, 7)
        if m<32 and m in bar:
            gbar_wait(h, 17, 6, 4 if m==8 else 8)
            readsB(m)
        elif m<32:
            h('s_waitcnt lgkmcnt(6)')
            readsB(m)
        elif m==32:
            h('s_waitcnt lgkmcnt(6)')
        else:
            h('s_waitcnt lgkmcnt(0)')
        mfmaB(n)
    h('v_and_b32 v29, 15, v1')
    h('v_lshlrev_b32 v29, 6, v29')
    h('v_lshrrev_b32 v27, 4, v1')
    h('v_lshlrev_b32 v27, 4, v27')
    h(f's_lshl_b32 s55, s{TS[0]}, 7')
    h('v_add3_u32 v29, v29, v27, s55')
    h(f'v_add_u32 v29, {L_CS1}, v29')
    h('s_nop 1')
    h('s_mov_b64 exec, s[62:63]')
    h(f'ds_write_b128 v29, {R(CS1A,4)}')
    h('s_mov_b64 exec, -1')
    h('s_waitcnt lgkmcnt(0)')
    gbar_arrive(h, 17, 7)
    stamp(h,5)
    gbar_wait(h, 17, 6, 12)
    C1=-2*1.4426950408889634*0.7978845608028654
    C2=C1*0.044715
    h(f's_mov_b32 s66, {f2u(C2):#x}')
    h(f'v_mov_b32 v32, {f2u(C1):#x}')
    h('v_lshlrev_b32 v23, 4, v4')
    h('v_lshlrev_b32 v28, 4, v1')
    h('s_lshl_b32 s53, s38, 2')
    h('s_add_u32 s53, s53, s37')
    h('s_mul_i32 s53, s53, 86')
    CSR=[128,160,192]; B1R=[144,176,208]
    for sl in range(3):
        h(f's_lshl_b32 s3, s{TS[sl]}, 7')
        h('v_add_u32 v24, s3, v23')
        h(f'v_add_u32 v24, {L_CS1}, v24')
        for gg in range(4):
            h(f'ds_read_b128 {R(CSR[sl]+4*gg,4)}, v24 offset:{8*gg*4}')
            h(f'ds_read_b128 {R(B1R[sl]+4*gg,4)}, v24 offset:{8*gg*4+L_B1-L_CS1}')
        if sl==0: h('s_waitcnt lgkmcnt(0)')
    for sl in range(3):
        acc=ACC[sl]; cs=CSR[sl]; b1=B1R[sl]
        lab=f'K_SKIP{sl}'
        h(f's_cmp_ge_u32 s{TS[sl]}, s49')
        h(f's_cbranch_scc1 {lab}')
        h(f's_add_u32 s54, s48, s{TS[sl]}')
        h('s_lshl_b32 s54, s54, 1')
        h('s_add_u32 s54, s54, s53')
        h('s_lshl_b32 s54, s54, 10')
        h(f's_add_u32 s54, s54, {WS_H}')
        if sl==1: h('s_waitcnt lgkmcnt(0)')
        for r in range(16): h(f'v_fma_f32 v{b1+r}, -v{cs+r}, v30, v{b1+r}')
        for r in range(16): h(f'v_fma_f32 v{acc+r}, v{acc+r}, v38, v{b1+r}')
        for r in range(16): h(f'v_mul_f32 v{cs+r}, v{acc+r}, v{acc+r}')
        for r in range(16): h(f'v_fma_f32 v{cs+r}, v{cs+r}, s66, v32')
        for r in range(16): h(f'v_mul_f32 v{cs+r}, v{cs+r}, v{acc+r}')
        for r in range(16): h(f'v_exp_f32 v{cs+r}, v{cs+r}')
        for r in range(16): h(f'v_add_f32 v{cs+r}, 1.0, v{cs+r}')
        for r in range(16): h(f'v_rcp_f32 v{cs+r}, v{cs+r}')
        for r in range(16): h(f'v_mul_f32 v{acc+r}, v{acc+r}, v{cs+r}')
        for i in range(8): h(f'v_cvt_pk_bf16_f32 v{b1+i}, v{acc+2*i}, v{acc+2*i+1}')
        h(f'buffer_store_dwordx4 {R(b1,4)}, v28, {W_}, s54 offen sc1')
        h(f'buffer_store_dwordx4 {R(b1+4,4)}, v28, {W_}, s54 offen offset:1024 sc1')
        h.label(lab)
    stamp(h,6)
    h('s_waitcnt vmcnt(0)')
    h.vmq=[]
    h('s_lshl_b32 s48, s38, 4')
    h('s_add_u32 s48, s48, s39')
    h('s_lshl_b32 s48, s48, 7')
    h(f's_add_u32 s48, s48, {F_2}')
    signal(h, L_CNT+4, 3, 's48', 40)

    h('s_setprio 2' if 'g2hi' in OPT else 's_setprio 0')
    h('s_and_b32 s52, s2, 7')
    h('s_lshr_b32 s53, s2, 3')
    h('s_and_b32 s54, s53, 3')
    h('s_lshl_b32 s52, s52, 2')
    h('s_add_u32 s58, s52, s54')
    h('s_lshr_b32 s59, s53, 2')
    h('v_lshlrev_b32 v5, 4, v1')
    h('v_lshlrev_b32 v8, 7, v1')
    sWw=24
    h('s_lshr_b32 s52, s2, 3')
    h('s_lshl_b32 s52, s52, 2')
    h('s_add_u32 s52, s52, s37')
    h('s_lshl_b32 s52, s52, 14')
    h(f's_cmp_ge_u32 s52, {1376*1024}')
    h(f's_cselect_b32 s{sWw}, s{pWO}, s{pW2}')
    h(f's_cselect_b32 s{sWw+1}, s{pWO+1}, s{pW2+1}')
    h(f's_cselect_b32 s53, {1376*1024}, 0')
    h('s_sub_u32 s52, s52, s53')
    h('s_cmp_eq_u32 s53, 0')
    h(f's_mov_b32 s26, {512*512*2}')
    h(f's_cselect_b32 s26, {1376*512*2}, s26')
    h(f's_mov_b32 s{sWw+3}, 0x00020000')
    for k in range(0 if 'nowarm' in OPT else 16):
        h(f'buffer_load_dwordx4 v[40:43], v5, {SR(sWw)}, s52 offen offset:{1024*(k%4)}')
        if k%4==3: h('s_add_u32 s52, s52, 4096')
    sW2=24
    h('s_lshr_b32 s52, s58, 1')
    h('s_lshl_b32 s52, s52, 11')
    h(f's_add_u32 s52, s52, {F_2}')
    stamp(h,7)
    poll_wg(h, 16, 'v8', 's52', 46, 4, L_CNT+20)
    stamp(h,8)
    srd(h,sW2,pW2,1376*512*2)
    h('s_sub_u32 s60, s36, 4')
    h('s_mul_i32 s61, s60, 22')
    h('s_cmp_eq_u32 s60, 3')
    h('s_cselect_b32 s52, 1, 0')
    h('s_sub_u32 s61, s61, s52')
    h('s_cmp_lt_u32 s60, 2')
    h('s_cselect_b32 s62, 22, 21')
    h('s_lshl_b32 s63, s59, 1')
    h('s_and_b32 s52, s58, 3')
    h('s_add_u32 s63, s63, s52')
    h('s_sub_u32 s57, s62, s63')
    h('s_add_u32 s61, s61, s63')
    h('s_lshl_b32 s52, s58, 1')
    h('s_mul_i32 s52, s52, 86')
    h('s_add_u32 s52, s52, s61')
    h('s_lshl_b32 s52, s52, 10')
    h(f's_add_u32 s52, s52, {WS_H}')
    h('s_lshl_b32 s54, s61, 14')
    h('s_lshl_b32 s55, s59, 7')
    h('s_add_u32 s54, s54, s55')
    h('s_lshl_b32 s56, s62, 10')
    h('s_lshl_b32 s53, s62, 14')
    h('s_lshl_b32 s55, s60, 14')
    h(f's_add_u32 s55, s55, {L_RING}')
    def wdma_voff(e):
        e('v_lshrrev_b32 v10, 3, v1')
        e('v_lshlrev_b32 v10, 10, v10')
        e('v_and_b32 v11, 7, v1')
        e('v_bfe_u32 v12, v1, 4, 1')
        e('v_lshlrev_b32 v12, 2, v12')
        e('v_xor_b32 v11, v11, v12')
        e('v_lshlrev_b32 v11, 4, v11')
        e('v_add_u32 v10, v10, v11')
        e('v_add_u32 v11, 7168, v10')
    wdma_voff(h)
    h(f'v_add_u32 v17, {86*1024}, v5')
    def tr_addr(e, dst, base_s):
        e('v_bfe_u32 v13, v1, 2, 2')
        e('v_lshlrev_b32 v14, 2, v4')
        e('v_add_u32 v14, v14, v13')
        e('v_lshlrev_b32 v14, 7, v14')
        e('v_bfe_u32 v15, v1, 4, 1')
        e('v_lshlrev_b32 v15, 1, v15')
        e('v_and_b32 v16, 1, v1')
        e('v_add_u32 v15, v15, v16')
        e('v_lshrrev_b32 v13, 1, v13')
        e('v_lshlrev_b32 v13, 2, v13')
        e('v_xor_b32 v15, v15, v13')
        e('v_lshlrev_b32 v15, 4, v15')
        e('v_bfe_u32 v16, v1, 1, 1')
        e('v_lshlrev_b32 v16, 3, v16')
        e('v_add3_u32 v14, v14, v15, v16')
        e(f'v_add_u32 v{dst}, {base_s}, v14')
        e(f'v_xor_b32 v{dst+1}, 64, v{dst}')
    tr_addr(h, 18, 's55')
    GA=[[192,208],[224,240]]
    for tt in range(2):
        for ct in range(2):
            for r in range(16): h(f'v_mov_b32 v{GA[tt][ct]+r}, 0')
    D=G2D
    for o_ in OPT:
        if o_.startswith('D='): D=int(o_[2:])
    XB=[64+8*i for i in range(D)]
    WB=[24,32]
    def g2_issue(sl):
        h(f'buffer_load_dwordx4 {R(XB[sl],4)}, v5, {W_}, s52 offen sc1')
        h(f'buffer_load_dwordx4 {R(XB[sl]+4,4)}, v17, {W_}, s52 offen sc1')
        h(f's_add_u32 m0, s55, {sl*2048}')
        h('s_add_u32 s52, s52, 1024')
        h('s_sub_u32 s57, s57, 1')
        h(f'buffer_load_dwordx4 v10, {SR(sW2)}, s54 offen lds')
        h(f'buffer_load_dwordx4 v11, {SR(sW2)}, s54 offen offset:1024 lds')
        h('s_add_u32 s54, s54, 16384')
        h('s_cmp_eq_u32 s57, 0')
        h('s_cselect_b32 s63, s56, 0')
        h('s_cselect_b32 s61, s53, 0')
        h('s_sub_u32 s52, s52, s63')
        h('s_sub_u32 s54, s54, s61')
    def g2_wread(sl, wb):
        for ct in range(2):
            for e in range(2):
                h(f'ds_read_b64_tr_b16 {R(WB[wb]+4*ct+2*e,2)}, v{18+ct} offset:{sl*2048+e*1024}')
    if 'nog2' in OPT: h('s_branch K_G2_DONE')
    for sl in range(D-1): g2_issue(sl)
    h(f's_waitcnt vmcnt({4*(D-2)})')
    g2_wread(0,0)
    h.label('K_G2_LOOP')
    for sl in range(D):
        g2_issue((sl+D-1)%D)
        h(f's_waitcnt vmcnt({4*(D-2)})')
        g2_wread((sl+1)%D,(sl+1)%2)
        h('s_waitcnt lgkmcnt(4)')
        for tt in range(2):
            for ct in range(2):
                h(f'v_mfma_f32_32x32x16_bf16 {R(GA[tt][ct],16)}, {R(WB[sl%2]+4*ct,4)}, {R(XB[sl]+4*tt,4)}, {R(GA[tt][ct],16)}')
        h('s_sub_u32 s62, s62, 1')
        h('s_cmp_eq_u32 s62, 0')
        if sl<D-1: h('s_cbranch_scc1 K_G2_DONE')
        else: h('s_cbranch_scc0 K_G2_LOOP')
    h.label('K_G2_DONE')
    h('s_waitcnt vmcnt(0) lgkmcnt(0)')
    stamp(h,11)
    h('s_nop 7')
    for tt in range(2):
        for ct in range(2):
            qd=tt+2*ct
            lab=newlab('GXS')
            h(f's_cmp_eq_u32 s60, {qd}')
            h(f's_cbranch_scc1 {lab}')
            h(f's_sub_u32 s52, {qd+3}, s60')
            h('s_and_b32 s52, s52, 3')
            h('s_lshl_b32 s52, s52, 12')
            h('s_add_u32 s52, s52, s55')
            h('v_add_u32 v14, s52, v5')
            for k in range(4): h(f'ds_write_b128 v14, {R(GA[tt][ct]+4*k,4)} offset:{1024*k}')
            h.label(lab)
    for tt in range(2):
        for ct in range(2):
            qd=tt+2*ct
            if qd==0: continue
            lab=newlab('GXK')
            h(f's_cmp_lg_u32 s60, {qd}')
            h(f's_cbranch_scc1 {lab}')
            h('s_waitcnt lgkmcnt(0)')
            for r in range(16): h(f'v_mov_b32 v{192+r}, v{GA[tt][ct]+r}')
            h.label(lab)
    def att_ids(e):
        e('s_and_b32 s48, s2, 7')
        e('s_lshr_b32 s49, s2, 3')
        e('s_and_b32 s50, s49, 3')
        e('s_lshl_b32 s48, s48, 2')
        e('s_add_u32 s38, s48, s50')
        e('s_lshr_b32 s39, s49, 2')
    h(f'v_mov_b32 v12, {L_CNT+12}')
    h('v_mov_b32 v13, 1')
    h('s_waitcnt lgkmcnt(0)')
    gbar_arrive(h, 12, 13)
    gbar_wait(h, 12, 13, 16)
    for sl in range(3):
        h(f's_sub_u32 s52, s60, {sl+1}')
        h('s_and_b32 s52, s52, 3')
        h('s_lshl_b32 s52, s52, 14')
        h(f's_add_u32 s52, s52, {L_RING+4096*sl}')
        h('v_add_u32 v14, s52, v5')
        for k in range(4): h(f'ds_read_b128 {R(128+16*sl+4*k,4)}, v14 offset:{1024*k}')
    h('s_waitcnt lgkmcnt(0)')
    for sl in range(3):
        for r in range(16): h(f'v_add_f32 v{192+r}, v{192+r}, v{128+16*sl+r}')
    h('s_branch K_TAIL')

    a2=Asm()
    a2.label('K_ATT')
    a2('s_setprio 1')
    att_ids(a2)
    a2('v_lshlrev_b32 v5, 4, v1')
    a2('v_lshlrev_b32 v6, 8, v4')
    a2('v_and_b32 v7, 15, v1')
    a2('v_lshlrev_b32 v7, 4, v7')
    a2('v_add_u32 v6, v6, v7')
    a2('v_lshlrev_b32 v8, 7, v1')
    a2('v_lshlrev_b32 v9, 2, v1')
    a2('s_lshl_b32 s44, s38, 16')
    a2('s_lshl_b32 s46, s39, 13')
    a2('s_add_u32 s46, s46, s44')
    a2(f's_add_u32 s46, s46, {WS_Q}')
    a2('s_lshl_b32 s47, s36, 14')
    a2('s_add_u32 s47, s47, s44')
    a2(f's_add_u32 s48, s47, {WS_V}')
    a2(f's_add_u32 s47, s47, {WS_K}')
    a2('s_mov_b32 s40, s47')
    a2('s_mov_b32 s41, s48')
    a2('s_mul_i32 s49, s38, 768')
    a2(f's_add_u32 s49, s49, {WS_N}')
    a2('s_mov_b32 s50, 0x0000ffff')
    a2('s_mov_b32 s51, 0x0000ffff')
    KB=[80,84,88,92]; VB=[96,104,112,120]; QF=48
    SA,SB=10,26
    OA=[128+16*i for i in range(8)]; IDX=44
    a2('s_lshr_b32 s52, s38, 1')
    a2('s_lshl_b32 s52, s52, 11')
    a2(f's_add_u32 s52, s52, {F_1}')
    stamp(a2,7)
    poll_wg(a2, 16, 'v8', 's52', 46, 0, L_CNT+24)
    stamp(a2,8)
    a2.vm('N', f'buffer_load_dword v42, v9, {W_}, s49 offen sc1')
    a2.vm('N', f'buffer_load_dword v43, v9, {W_}, s49 offen offset:256 sc1')
    a2.vm('N', f'buffer_load_dword v45, v9, {W_}, s49 offen offset:512 sc1')
    def loadkv(b):
        a2.vm('KV', f'buffer_load_dwordx4 {R(KB[b],4)}, v5, {W_}, s47 offen sc1')
        a2('s_mov_b64 exec, s[50:51]')
        a2.vm('KV', f'buffer_load_dwordx4 {R(VB[b],4)}, v6, {W_}, s48 offen sc1')
        a2.vm('KV', f'buffer_load_dwordx4 {R(VB[b]+4,4)}, v6, {W_}, s48 offen offset:512 sc1')
        a2('s_mov_b64 exec, -1')
        a2('s_add_u32 s47, s47, 1024')
        a2('s_add_u32 s48, s48, 1024')
    a2(f'v_mov_b32 v{IDX}, 0x3f803f80')
    for b in VB:
        for r in range(8): a2(f'v_mov_b32 v{b+r}, v{IDX}')
    a2(f'v_mov_b32 v{IDX}, 0xdddddddd')
    for i in range(4):
        a2.vm('Q', f'buffer_load_dwordx4 {R(QF+4*i,4)}, v5, {W_}, s46 offen offset:{1024*i} sc1')
    loadkv(0)
    a2('s_add_u32 s46, s46, 4096')
    for i in range(4,8):
        a2.vm('Q', f'buffer_load_dwordx4 {R(QF+4*i,4)}, v5, {W_}, s46 offen offset:{1024*(i-4)} sc1')
    loadkv(1); loadkv(2)
    for o in OA:
        for r in range(16): a2(f'v_mov_b32 v{o+r}, 0')
    a2.wait_vm('N')
    for sh in (1,2,4,8):
        for r in (42,43,45): a2(f'v_max_f32_dpp v{r}, v{r}, v{r} row_shr:{sh} row_mask:0xf bank_mask:0xf')
    for r in (42,43,45): a2(f'v_max_f32_dpp v{r}, v{r}, v{r} row_bcast:15 row_mask:0xa bank_mask:0xf')
    for r in (42,43,45): a2(f'v_max_f32_dpp v{r}, v{r}, v{r} row_bcast:31 row_mask:0xc bank_mask:0xf')
    a2('s_nop 1')
    a2('v_readlane_b32 s52, v42, 63')
    a2('v_readlane_b32 s53, v43, 63')
    a2('v_readlane_b32 s54, v45, 63')
    a2('s_nop 1')
    a2('v_mov_b32 v42, s52')
    a2('v_mul_f32 v42, s54, v42')
    a2(f'v_mul_f32 v42, {f2u(1.05):#x}, v42')
    a2(f'v_mov_b32 v43, {f2u(T_LOG2*T_LOG2):#x}')
    a2('v_cmp_le_f32 vcc, v42, v43')
    a2('v_mov_b32 v42, s53')
    a2(f'v_mov_b32 v43, {f2u(2.0**60):#x}')
    a2('v_cmp_le_f32 s[56:57], v42, v43')
    a2('s_nop 1')
    a2('s_and_b64 vcc, vcc, s[56:57]')
    a2('s_cmp_eq_u64 vcc, -1')
    a2('s_cbranch_scc0 K_SLOW')
    def qk(kb, i, dst): return f'v_mfma_f32_32x32x16_bf16 {R(dst,16)}, {R(KB[kb],4)}, {R(QF+4*i,4)}, 0'
    def pv(kb, i, half, src): return f'v_smfmac_f32_32x32x32_bf16 {R(OA[i],16)}, {R(VB[kb]+4*half,4)}, {R(src+8*half,8)}, v{IDX}'
    a2('s_waitcnt vmcnt(6)')
    stamp(a2,9)
    a2(qk(0,0,SA))
    for r in range(8,16): a2(f'v_mov_b32 v{SB+r}, 0')
    a2('s_mov_b32 s42, 0')
    a2('s_nop 3')
    a2.label('K_ATT_LOOP')
    for n in range(32):
        kb,i=divmod(n,8)
        sa=SA if n%2==0 else SB
        sb=SB if n%2==0 else SA
        ex=[f'v_exp_f32 v{sa+r}, v{sa+r}' for r in range(16)]
        for e in ex[0:2]: a2(e)
        pkb,pi=divmod((n-1)%32,8)
        a2(pv(pkb,pi,1,sb))
        if i==0 and 'noload' not in OPT: loadkv((kb+3)%4)
        for e in ex[2:5]: a2(e)
        nkb,ni=divmod((n+1)%32,8)
        if i==7: a2('s_waitcnt vmcnt(6)')
        a2(qk(nkb,ni,sb))
        for e in ex[5:11]: a2(e)
        a2(pv(kb,i,0,sa))
        for e in ex[11:16]: a2(e)
    a2('s_add_u32 s42, s42, 1')
    a2('s_cmp_lt_u32 s42, 4')
    a2('s_cbranch_scc1 K_ATT_LOOP')
    a2('s_nop 1')
    a2(pv(3,7,1,SB))
    a2.label('K_ATT_DONE')
    stamp(a2,10)
    a2('s_waitcnt vmcnt(0)')
    a2.vmq=[]
    a2(f'v_mov_b32 v12, {L_CNT+12}')
    gbar_wait(a2, 12, 13, 12)
    a2('s_mul_i32 s52, s36, 2304')
    a2(f'v_add_u32 v12, s52, v5')
    a2(f'v_add_u32 v13, s52, v9')
    a2(f'v_add_u32 v14, {4*9216}, v12')
    a2(f'v_add_u32 v15, {4*9216}, v13')
    for p_ in range(4):
        lab=newlab('RS')
        a2(f's_cmp_eq_u32 s36, {p_}')
        a2(f's_cbranch_scc1 {lab}')
        for i in (2*p_,2*p_+1):
            off=(i%4)*9216; b=12 if i<4 else 14
            a2(f'ds_write_b128 v{b}, {R(OA[i],4)} offset:{off}')
            a2(f'ds_write_b128 v{b}, {R(OA[i]+4,4)} offset:{off+1024}')
            a2(f'ds_write_b32 v{b+1}, v{OA[i]+8} offset:{off+2048}')
        a2.label(lab)
    for p_ in range(4):
        lab=newlab('RM')
        a2(f's_cmp_lg_u32 s36, {p_}')
        a2(f's_cbranch_scc1 {lab}')
        for t_ in range(2):
            for r in range(9): a2(f'v_mov_b32 v{32+48*t_+r}, v{OA[2*p_+t_]+r}')
        a2.label(lab)
    a2('s_and_b32 s52, s2, 7')
    a2('s_lshr_b32 s53, s2, 3')
    a2('s_and_b32 s54, s53, 3')
    a2('s_lshl_b32 s52, s52, 2')
    a2('s_add_u32 s58, s52, s54')
    a2('s_lshr_b32 s59, s53, 2')
    a2(f'v_mov_b32 v20, {L_CNT+28}')
    a2('v_mov_b32 v21, 1')
    a2('s_waitcnt lgkmcnt(0)')
    gbar_arrive(a2, 20, 21)
    gbar_wait(a2, 20, 22, 4)
    stamp(a2,12)
    a2('s_mul_i32 s53, s36, 18432')
    for k in range(3):
        a2(f's_add_u32 s52, s36, {k+1}')
        a2('s_and_b32 s52, s52, 3')
        a2('s_mul_i32 s52, s52, 2304')
        a2('s_add_u32 s52, s52, s53')
        a2(f'v_add_u32 v{14+2*k}, s52, v5')
        a2(f'v_add_u32 v{15+2*k}, s52, v9')
    for t_ in range(2):
        for k in range(3):
            b=32+48*t_+12*(k+1)
            a2(f'ds_read_b128 {R(b,4)}, v{14+2*k} offset:{9216*t_}')
            a2(f'ds_read_b128 {R(b+4,4)}, v{14+2*k} offset:{9216*t_+1024}')
            a2(f'ds_read_b32 v{b+8}, v{15+2*k} offset:{9216*t_+2048}')
    a2('s_lshl_b32 s53, s39, 3')
    a2('s_lshl_b32 s52, s36, 1')
    a2('s_add_u32 s53, s53, s52')
    a2('s_lshl_b32 s53, s53, 5')
    a2('s_add_u32 s53, s53, s38')
    a2('s_lshl_b32 s53, s53, 10')
    a2(f's_add_u32 s53, s53, {WS_O}')
    for t_ in range(2):
        b=32+48*t_
        if t_==0: a2('s_waitcnt lgkmcnt(9)')
        if t_==1: a2('s_waitcnt lgkmcnt(0)'); gbar_arrive(a2, 20, 21)
        for sl in range(1,4):
            for r in range(9): a2(f'v_add_f32 v{b+r}, v{b+r}, v{b+12*sl+r}')
        a2(f'v_rcp_f32 v{b+9}, v{b+8}')
        a2('s_nop 0')
        for r in range(8): a2(f'v_mul_f32 v{b+r}, v{b+r}, v{b+9}')
        for i in range(4): a2(f'v_cvt_pk_bf16_f32 v{b+12+i}, v{b+2*i}, v{b+2*i+1}')
        a2(f'buffer_store_dwordx4 {R(b+12,4)}, v5, {W_}, s53 offen sc1')
        if t_==0: a2(f's_add_u32 s53, s53, {32*1024}')
    ACC3=192
    for r in range(16): a2(f'v_mov_b32 v{ACC3+r}, 0')
    a2('s_lshl_b32 s52, s39, 5')
    a2('s_add_u32 s52, s52, s38')
    a2('s_lshl_b32 s52, s52, 7')
    a2(f's_add_u32 s52, s52, {F_3}')
    a2('s_waitcnt vmcnt(0)')
    signal(a2, L_CNT+8, 3, 's52', 46)
    gbar_wait(a2, 20, 22, 8)
    sWO=24
    srd(a2,sWO,pWO,512*512*2)
    wdma_voff(a2)
    a2('s_lshl_b32 s52, s36, 17')
    a2('s_lshl_b32 s53, s59, 7')
    a2('s_add_u32 s52, s52, s53')
    a2('s_lshl_b32 s53, s36, 14')
    for i in range(8):
        a2(f's_add_u32 m0, s53, {L_WO+2048*i}')
        a2('s_nop 0')
        a2(f'buffer_load_dwordx4 v10, {SR(sWO)}, s52 offen lds')
        a2(f'buffer_load_dwordx4 v11, {SR(sWO)}, s52 offen offset:1024 lds')
        a2('s_add_u32 s52, s52, 16384')
    a2.label('K_TAIL')
    a2('s_setprio 0')
    a2('v_lshlrev_b32 v8, 7, v1')
    sOUT,sB2,sX2=32,40,44
    srd(a2,sOUT,pOUT,2048*512*2); srd(a2,sB2,pB2,512*2); srd(a2,sX2,pX,2048*512*2)
    a2('s_and_b32 s50, s36, 1')
    a2('s_bfe_u32 s51, s36, 0x10001')
    a2('s_lshr_b32 s49, s36, 2')
    a2('s_lshl_b32 s60, s58, 6')
    a2('s_lshl_b32 s61, s50, 5')
    a2('s_add_u32 s60, s60, s61')
    a2('v_add_u32 v20, s60, v3')
    a2('v_lshlrev_b32 v20, 10, v20')
    a2('s_lshl_b32 s60, s59, 6')
    a2('s_lshl_b32 s61, s51, 5')
    a2('s_add_u32 s60, s60, s61')
    a2('s_lshl_b32 s61, s49, 4')
    a2('s_add_u32 s60, s60, s61')
    a2('v_lshlrev_b32 v21, 3, v4')
    a2('v_add_u32 v21, s60, v21')
    a2('v_lshlrev_b32 v21, 1, v21')
    a2('v_add_u32 v20, v20, v21')
    a2(f'buffer_load_dwordx4 v[52:55], v20, {SR(sX2)}, 0 offen')
    a2(f'buffer_load_dwordx4 v[56:59], v21, {SR(sB2)}, 0 offen')
    a2('s_lshl_b32 s52, s51, 6')
    a2(f's_lshl_b32 s53, s49, 15')
    a2(f's_add_u32 s53, s53, {L_WO}')
    tr_addr(a2, 18, 's53')
    a2('v_xor_b32 v18, s52, v18')
    a2('s_lshl_b32 s52, s50, 15')
    a2('s_lshl_b32 s53, s49, 14')
    a2('s_add_u32 s52, s52, s53')
    a2(f's_add_u32 s52, s52, {L_OX}')
    a2('v_add_u32 v19, s52, v5')
    a2('s_lshr_b32 s52, s58, 2')
    a2('s_lshl_b32 s52, s52, 12')
    a2(f's_add_u32 s52, s52, {F_3}')
    stamp(a2,13)
    a2('s_waitcnt vmcnt(0)')
    a2('s_cmp_eq_u32 s36, 0')
    a2('s_cbranch_scc0 K_S3W')
    poll(a2, 32, 'v8', 's52', 46)
    a2.label('K_S3W')
    a2.vmq=[]
    a2('s_barrier')
    stamp(a2,14)
    a2('s_cmp_eq_u32 s2, 0')
    a2('s_cbranch_scc0 K_NOE')
    a2('s_cmp_eq_u32 s36, 0')
    a2('s_cbranch_scc0 K_NOE')
    a2('v_mov_b32 v46, s64'); a2('v_mov_b32 v47, s65'); a2('v_mov_b32 v48, 0')
    a2('s_mov_b64 exec, 1')
    a2(f'buffer_store_dwordx2 v[46:47], v48, {W_}, 0 offen')
    a2('s_mov_b64 exec, -1')
    a2.label('K_NOE')
    a2('s_bfe_u32 s52, s36, 0x10001')
    a2('s_lshl_b32 s52, s52, 4')
    a2('s_lshr_b32 s53, s36, 2')
    a2('s_lshl_b32 s53, s53, 1')
    a2('s_add_u32 s52, s52, s53')
    a2('s_lshl_b32 s53, s58, 1')
    a2('s_add_u32 s53, s53, s50')
    a2('s_lshl_b32 s53, s53, 5')
    a2('s_add_u32 s53, s53, s52')
    a2('s_lshl_b32 s53, s53, 10')
    a2(f's_add_u32 s53, s53, {WS_O}')
    a2('s_lshl_b32 s54, s50, 5')
    a2('s_add_u32 s54, s54, s52')
    a2('s_lshl_b32 s54, s54, 10')
    a2(f's_add_u32 s54, s54, {L_OX}')
    for s_ in range(4):
        a2(f's_add_u32 m0, s54, {4096*s_}')
        a2(f's_add_u32 s55, s53, {4096*s_}')
        a2.vm(f'O{s_}', f'buffer_load_dwordx4 v5, {W_}, s55 offen sc1 lds')
        a2.vm(f'O{s_}', f'buffer_load_dwordx4 v5, {W_}, s55 offen offset:1024 sc1 lds')
    FX=[64,68,72,76]; FW=[80,84,88,92]
    for s_ in range(4):
        a2.wait_vm(f'O{s_}')
        a2('s_barrier')
        for k in range(4):
            ks=4*s_+k
            a2(f'ds_read_b128 {R(FX[k],4)}, v19 offset:{ks*1024}')
            a2(f'ds_read_b64_tr_b16 {R(FW[k],2)}, v18 offset:{ks*2048}')
            a2(f'ds_read_b64_tr_b16 {R(FW[k]+2,2)}, v18 offset:{ks*2048+1024}')
        for k in range(4):
            a2(f's_waitcnt lgkmcnt({3*(3-k)})')
            a2(f'v_mfma_f32_32x32x16_bf16 {R(ACC3,16)}, {R(FW[k],4)}, {R(FX[k],4)}, {R(ACC3,16)}')
    stamp(a2,15)
    a2('s_and_b32 s52, s36, 3')
    a2('s_lshl_b32 s52, s52, 12')
    a2('s_lshl_b32 s53, s49, 11')
    a2('s_add_u32 s54, s52, s53')
    a2('s_xor_b32 s53, s53, 2048')
    a2('s_add_u32 s55, s52, s53')
    a2(f's_add_u32 s54, s54, {L_EX}')
    a2(f's_add_u32 s55, s55, {L_EX}')
    a2('v_add_u32 v22, s54, v5')
    a2('v_add_u32 v23, s55, v5')
    a2('s_nop 7')
    a2('s_cmp_eq_u32 s49, 0')
    a2('s_cbranch_scc1 K_KH0')
    a2(f'ds_write_b128 v22, {R(ACC3,4)}')
    a2(f'ds_write_b128 v22, {R(ACC3+4,4)} offset:1024')
    a2('s_waitcnt lgkmcnt(0)')
    for r in range(8): a2(f'v_mov_b32 v{ACC3+r}, v{ACC3+8+r}')
    a2('s_branch K_EX')
    a2.label('K_KH0')
    a2(f'ds_write_b128 v22, {R(ACC3+8,4)}')
    a2(f'ds_write_b128 v22, {R(ACC3+12,4)} offset:1024')
    a2.label('K_EX')
    a2('s_waitcnt lgkmcnt(0)')
    a2('s_barrier')
    a2('ds_read_b128 v[64:67], v23')
    a2('ds_read_b128 v[68:71], v23 offset:1024')
    for i in range(4):
        a2(f'v_lshlrev_b32 v{72+2*i}, 16, v{52+i}')
        a2(f'v_and_b32 v{73+2*i}, 0xffff0000, v{52+i}')
        a2(f'v_lshlrev_b32 v{80+2*i}, 16, v{56+i}')
        a2(f'v_and_b32 v{81+2*i}, 0xffff0000, v{56+i}')
    for r in range(8): a2(f'v_add_f32 v{72+r}, v{72+r}, v{80+r}')
    a2('s_waitcnt lgkmcnt(0)')
    for r in range(8): a2(f'v_add_f32 v{ACC3+r}, v{ACC3+r}, v{64+r}')
    for r in range(8): a2(f'v_add_f32 v{ACC3+r}, v{ACC3+r}, v{72+r}')
    for i in range(4): a2(f'v_cvt_pk_bf16_f32 v{64+i}, v{ACC3+2*i}, v{ACC3+2*i+1}')
    a2(f'buffer_store_dwordx4 v[64:67], v20, {SR(sOUT)}, 0 offen')
    stamp_flush(a2,16)
    stamp_dbg(a2)
    a2('s_endpgm')
    a2.label('K_SLOW')
    a2('s_waitcnt vmcnt(0)')
    MX=116
    a2('s_mov_b32 s58, s40')
    for i in range(8): a2(f'v_mov_b32 v{MX+i}, 0xff800000')
    a2('s_mov_b32 s59, 0')
    a2.label('K_S1')
    a2(f'buffer_load_dwordx4 {R(KB[0],4)}, v5, {W_}, s58 offen sc1')
    a2('s_waitcnt vmcnt(0)')
    for i in range(8):
        a2(f'v_mfma_f32_32x32x16_bf16 {R(SA,16)}, {R(KB[0],4)}, {R(QF+4*i,4)}, 0')
        a2('s_nop 7'); a2('s_nop 7')
        for r in range(0,16,2): a2(f'v_max3_f32 v{MX+i}, v{MX+i}, v{SA+r}, v{SA+r+1}')
    a2('s_add_u32 s58, s58, 1024')
    a2('s_add_u32 s59, s59, 1')
    a2('s_cmp_lt_u32 s59, 16')
    a2('s_cbranch_scc1 K_S1')
    for i in range(8): a2(f'v_mov_b32 v{SA+i}, v{MX+i}')
    a2('s_nop 1')
    for i in range(8): a2(f'v_permlane32_swap_b32 v{MX+i}, v{SA+i}')
    a2('s_nop 1')
    for i in range(8): a2(f'v_max_f32 v{MX+i}, v{MX+i}, v{SA+i}')
    a2(f'v_mov_b32 v12, {L_CNT+12}')
    gbar_wait(a2, 12, 13, 12)
    a2('s_lshl_b32 s53, s36, 11')
    a2(f's_add_u32 s53, s53, {L_MX}')
    a2('v_add_u32 v42, s53, v9')
    for i in range(8): a2(f'ds_write_b32 v42, v{MX+i} offset:{256*i}')
    a2(f'v_mov_b32 v12, {L_CNT+16}')
    a2('v_mov_b32 v13, 1')
    a2('s_waitcnt lgkmcnt(0)')
    gbar_arrive(a2, 12, 13)
    gbar_wait(a2, 12, 13, 4)
    a2(f'v_add_u32 v42, {L_MX}, v9')
    for q in range(4):
        for i in range(8): a2(f'ds_read_b32 v{SA+i}, v42 offset:{2048*q+256*i}')
        a2('s_waitcnt lgkmcnt(0)')
        for i in range(8): a2(f'v_max_f32 v{MX+i}, v{MX+i}, v{SA+i}')
    a2('s_mov_b32 s58, s40'); a2('s_mov_b32 s60, s41')
    a2('s_mov_b32 s59, 0')
    a2.label('K_S2')
    a2(f'buffer_load_dwordx4 {R(KB[0],4)}, v5, {W_}, s58 offen sc1')
    a2('s_mov_b64 exec, s[50:51]')
    a2(f'buffer_load_dwordx4 {R(VB[0],4)}, v6, {W_}, s60 offen sc1')
    a2(f'buffer_load_dwordx4 {R(VB[0]+4,4)}, v6, {W_}, s60 offen offset:512 sc1')
    a2('s_mov_b64 exec, -1')
    a2('s_waitcnt vmcnt(0)')
    for i in range(8):
        a2(f'v_mfma_f32_32x32x16_bf16 {R(SA,16)}, {R(KB[0],4)}, {R(QF+4*i,4)}, 0')
        a2('s_nop 7'); a2('s_nop 7')
        for r in range(16): a2(f'v_sub_f32 v{SA+r}, v{SA+r}, v{MX+i}')
        for r in range(16): a2(f'v_exp_f32 v{SA+r}, v{SA+r}')
        a2('s_nop 1')
        a2(f'v_smfmac_f32_32x32x32_bf16 {R(OA[i],16)}, {R(VB[0],4)}, {R(SA,8)}, v{IDX}')
        a2(f'v_smfmac_f32_32x32x32_bf16 {R(OA[i],16)}, {R(VB[0]+4,4)}, {R(SA+8,8)}, v{IDX}')
        a2('s_nop 7')
    a2('s_add_u32 s58, s58, 1024')
    a2('s_add_u32 s60, s60, 1024')
    a2('s_add_u32 s59, s59, 1')
    a2('s_cmp_lt_u32 s59, 16')
    a2('s_cbranch_scc1 K_S2')
    a2('s_nop 7')
    a2('s_branch K_ATT_DONE')
    return a.text()+'\n'+g.text()+'\n'+h.text()+'\n'+a2.text()+'\nK_END:\n  s_endpgm\n'

HEADER=open('cdna_kernels/'+NAME+'.s.ref').read().split('; Override launch geometry')[0]
def assemble(body):
    n=NAME+'_kernel'
    return HEADER+f'''; @launch grid=(256,1,1) block=(512,1,1) lds={LDS_TOTAL}
.amdgcn_target "amdgcn-amd-amdhsa--gfx950"
.text
.globl {n}
.p2align 8
.type {n},@function
{n}:
{body}
.section .rodata,"a"
.p2align 6
.amdhsa_kernel {n}
  .amdhsa_next_free_vgpr 256
  .amdhsa_next_free_sgpr 102
  .amdhsa_accum_offset 256
  .amdhsa_group_segment_fixed_size 0
  .amdhsa_kernarg_size 88
  .amdhsa_user_sgpr_count 2
  .amdhsa_user_sgpr_kernarg_segment_ptr 1
  .amdhsa_system_sgpr_workgroup_id_x 1
  .amdhsa_float_denorm_mode_32 3
.end_amdhsa_kernel
'''
if __name__=='__main__':
    outp=sys.argv[1]
    if 'stamp' in sys.argv: STAMP=True
    OPT.update(sys.argv[2:])
    open(outp,'w').write(assemble(gen()))
    print('wrote',outp)
```

```python
import sys, struct
NAME='parallel_sum__softmax_full_mha__mixer_channel_mlp__prompt'

WS_F = 0
F_1, F_2, F_3 = 32768, 65536, 98304
WS_N = 256<<10
WS_Q = 1<<20
WS_K = 3<<20
WS_V = 5<<20
WS_O = 7<<20
WS_H = 9<<20
WS_T = 15<<20
WS_SIZE = 16<<20
QSCALE = 0.25*1.4426950408889634
T_LOG2 = 48.0
SPIN_MAX = 1<<20

def f2u(f): return struct.unpack('<I', struct.pack('<f', f))[0]

STAMP=False
OPT=set()
class Asm:
    def __init__(self):
        self.L=[]; self.vmq=[]
    def __call__(self, s): self.L.append('  '+s)
    def c(self, s): self.L.append('  ; '+s)
    def label(self, n): self.L.append(n+':')
    def vm(self, tag, s):
        self.vmq.append(tag); self(s)
    def wait_vm(self, tags):
        if isinstance(tags,str): tags=[tags]
        idx=[i for i,t in enumerate(self.vmq) if t in tags]
        if not idx: return
        last=max(idx); n=len(self.vmq)-1-last
        assert n<=63
        self(f's_waitcnt vmcnt({n})')
        self.vmq=self.vmq[last+1:]
    def wait_vm_all(self):
        self('s_waitcnt vmcnt(0)'); self.vmq=[]
    def text(self): return '\n'.join(self.L)

RTMAP={3:1, 9:2, 10:4}
def stamp(a, i):
    if STAMP:
        if 'rt' in OPT and i in (1,2,4) : return
        a(f's_memtime s[{70+2*i}:{71+2*i}]')
        if 'rt' in OPT and i in RTMAP:
            j=RTMAP[i]; a(f's_memrealtime s[{70+2*j}:{71+2*j}]')
def stamp_flush(a, n):
    if not STAMP: return
    a('s_waitcnt vmcnt(0) lgkmcnt(0)')
    a('s_lshl_b32 s69, s2, 3')
    a('s_add_u32 s69, s69, s36')
    a('s_lshl_b32 s69, s69, 6')
    a(f's_add_u32 s69, s69, {WS_T}')
    a('v_mov_b32 v2, 0')
    for i in range(n):
        a(f'v_mov_b32 v3, s{70+2*i}')
        a('s_mov_b64 exec, 1')
        a(f'buffer_store_dword v3, v2, s[28:31], s69 offen offset:{4*i}')
        a('s_mov_b64 exec, -1')
        a('s_nop 1')

def stamp_dbg(a):
    if not (STAMP and 'dbg' in OPT): return
    lab=newlab('DBG')
    a('s_cmp_eq_u32 s2, 37')
    a(f's_cbranch_scc0 {lab}')
    a('s_cmp_eq_u32 s36, 0')
    a(f's_cbranch_scc0 {lab}')
    a('s_load_dwordx2 s[66:67], s[0:1], 72')
    a('s_memrealtime s[92:93]')
    a('s_memtime s[100:101]')
    a('s_waitcnt lgkmcnt(0)')
    a('s_sub_u32 s92, s92, s82')
    a('s_add_u32 s92, s92, s70')
    if 'rt' in OPT:
        for j in (1,2,4):
            a(f's_sub_u32 s{70+2*j}, s{70+2*j}, s82'); a(f's_add_u32 s{70+2*j}, s{70+2*j}, s70')
    a('s_mov_b32 s82, s70')
    a('s_mov_b32 s40, s66'); a('s_mov_b32 s41, s67'); a('s_mov_b32 s42, 256'); a('s_mov_b32 s43, 0x00020000')
    a('v_mov_b32 v2, 0')
    a('s_mov_b64 exec, 1')
    for i in range(16):
        a(f's_sub_u32 s3, s{70+2*i}, s70')
        a('v_mov_b32 v3, s3')
        a(f'buffer_store_dword v3, v2, s[40:43], 0 offen offset:{4*i}')
        a('s_nop 1')
    a('s_mov_b64 exec, -1')
    a.label(lab)

def R(a,n=1): return f'v{a}' if n==1 else f'v[{a}:{a+n-1}]'
def SR(a): return f's[{a}:{a+3}]'
def srd(a, d, ptr, size):
    a(f's_mov_b32 s{d}, s{ptr}')
    a(f's_mov_b32 s{d+1}, s{ptr+1}')
    a(f's_mov_b32 s{d+2}, {size}')
    a(f's_mov_b32 s{d+3}, 0x00020000')
def pk(op, d, a_, b_, c_=None, bsel=None, csel=None, neg=None):
    ops=[a_,b_]+([c_] if c_ is not None else [])
    n=len(ops)
    txt=[ (f'v[{o}:{o+1}]' if isinstance(o,int) else o) for o in ops]
    hi=[1]*n
    if bsel=='lo': hi[1]=0
    if csel=='lo': hi[2]=0
    s_=f'v_pk_{op}_f32 v[{d}:{d+1}], '+', '.join(txt)
    if hi!=[1]*n: s_+=' op_sel_hi:['+','.join(map(str,hi))+']'
    if neg: s_+=' '+neg
    return s_

pX,pWQ,pWO,pW1,pB1,pW2,pB2,pOUT,pWS = 4,6,8,12,14,16,18,20,22
sWS=28
W_=SR(sWS)

SLOT=28672; XS=16384; WST=12288
W1_SPARE=5*SLOT
SCR=W1_SPARE+WST
L_A=SCR; L_MU=SCR+512; L_CS=SCR+1024; L_CS1=SCR+1536; L_B1=SCR+2048; L_A2=SCR+2560; L_A2M=SCR+3072
L_CNT=SCR+4096
LDS_TOTAL=163840
W1_ADDR=[W1_SPARE, 3*SLOT, 3*SLOT+WST, 4*SLOT, 4*SLOT+WST, 0, WST, SLOT]
A_SLOT=[0,1,2,3,4,0,1,2]
L_RED=0
L_RING=73728
L_MX=139264
G2D=8
L_WO=0
L_OX=65536
L_EX=131072

uid=[0]
def newlab(p):
    uid[0]+=1; return f'{p}_{uid[0]}'

def poll(a, nl, voff, soff, vt):
    lab=newlab('POLL'); done=newlab('POLLD')
    mask=(1<<nl)-1
    a(f's_mov_b32 s66, {mask:#x}')
    a('s_mov_b32 s67, 0')
    a(f's_mov_b32 s68, {SPIN_MAX}')
    a('s_mov_b64 exec, s[66:67]')
    a.label(lab)
    a(f'buffer_load_dwordx2 v[{vt}:{vt+1}], {voff}, {W_}, {soff} offen sc1')
    a('s_waitcnt vmcnt(0)')
    a(f'v_cmp_eq_u64 vcc, s[64:65], v[{vt}:{vt+1}]')
    a('s_sub_u32 s68, s68, 1')
    a('s_cmp_eq_u32 s68, 0')
    a(f's_cbranch_scc1 {done}')
    a('s_cmp_eq_u64 vcc, s[66:67]')
    a(f's_cbranch_scc1 {done}')
    a('s_sleep 2')
    a(f's_branch {lab}')
    a.label(done)
    a('s_mov_b64 exec, -1')
    a.vmq=[]

def poll_wg(a, nl, voff, soff, vt, leader, lds_addr):
    oth=newlab('PWO'); done=newlab('PWD')
    a(f'v_mov_b32 v{vt+2}, {lds_addr}')
    a(f's_cmp_eq_u32 s36, {leader}')
    a(f's_cbranch_scc0 {oth}')
    poll(a, nl, voff, soff, vt)
    a(f'v_mov_b32 v{vt}, 1')
    a('s_mov_b64 exec, 1')
    a(f'ds_write_b32 v{vt+2}, v{vt}')
    a('s_mov_b64 exec, -1')
    a(f's_branch {done}')
    a.label(oth)
    lab=newlab('PWL')
    a.label(lab)
    a(f'ds_read_b32 v{vt}, v{vt+2}')
    a('s_waitcnt lgkmcnt(0)')
    a(f'v_readfirstlane_b32 s66, v{vt}')
    a('s_nop 0')
    a('s_cmp_eq_u32 s66, 0')
    a(f's_cbranch_scc0 {done}')
    a('s_sleep 1')
    a(f's_branch {lab}')
    a.label(done)
    a('s_waitcnt vmcnt(0)')
    a.vmq=[]

def signal(a, cnt_addr, last, flag_soff, vt):
    skip=newlab('SIG')
    a(f'v_mov_b32 v{vt}, {cnt_addr}')
    a(f'v_mov_b32 v{vt+1}, 1')
    a('s_mov_b64 exec, 1')
    a(f'ds_add_rtn_u32 v{vt+2}, v{vt}, v{vt+1}')
    a('s_waitcnt lgkmcnt(0)')
    a(f'v_readfirstlane_b32 s66, v{vt+2}')
    a(f'v_mov_b32 v{vt}, s64')
    a(f'v_mov_b32 v{vt+1}, s65')
    a(f'v_mov_b32 v{vt+2}, 0')
    a(f's_cmp_eq_u32 s66, {last}')
    a(f's_cbranch_scc0 {skip}')
    a(f'buffer_store_dwordx2 v[{vt}:{vt+1}], v{vt+2}, {W_}, {flag_soff} offen sc1')
    a.label(skip)
    a('s_mov_b64 exec, -1')

def gbar_arrive(a, vaddr, vone):
    a('s_mov_b64 exec, 1')
    a(f'ds_add_u32 v{vaddr}, v{vone}')
    a('s_mov_b64 exec, -1')
def gbar_wait(a, vaddr, vt, target):
    lab=newlab('GB')
    a.label(lab)
    a(f'ds_read_b32 v{vt}, v{vaddr}')
    a('s_waitcnt lgkmcnt(0)')
    a(f'v_readfirstlane_b32 s3, v{vt}')
    a('s_nop 0')
    a(f's_cmp_ge_u32 s3, {target}')
    a(f's_cbranch_scc0 {lab}')

def gen():
    a=Asm()
    a('s_cmp_ge_u32 s2, 256')
    a('s_cbranch_scc1 K_END')
    stamp(a,0)
    if STAMP and 'dbg' in OPT: a('s_memrealtime s[82:83]')
    a('s_load_dwordx16 s[4:19], s[0:1], 0')
    a('s_load_dwordx2 s[20:21], s[0:1], 64')
    a('s_load_dwordx2 s[22:23], s[0:1], 80')
    a('v_and_b32 v1, 63, v0')
    a('v_lshrrev_b32 v2, 6, v0')
    a('s_and_b32 s48, s2, 7')
    a('v_readfirstlane_b32 s36, v2')
    a('s_lshr_b32 s49, s2, 3')
    a('s_and_b32 s50, s48, 1')
    a('s_lshr_b32 s51, s48, 1')
    a('s_lshl_b32 s50, s50, 3')
    a('s_and_b32 s52, s49, 7')
    a('s_add_u32 s38, s50, s52')
    a('s_lshl_b32 s51, s51, 2')
    a('s_lshr_b32 s52, s49, 3')
    a('s_add_u32 s39, s51, s52')
    a('s_and_b32 s37, s36, 3')
    a('v_and_b32 v3, 31, v1')
    a('v_lshrrev_b32 v4, 5, v1')
    a('s_cmp_ge_u32 s36, 4')
    a('s_cbranch_scc1 K_G1')

    def common_lds_addr(e):
        e('v_bfe_u32 v5, v1, 1, 3')
        e('v_xor_b32 v5, v5, v4')
        e('v_lshlrev_b32 v5, 4, v5')
        e('s_lshl_b32 s3, s37, 12')
        e('v_lshlrev_b32 v6, 7, v3')
        e('v_add3_u32 v12, v6, v5, s3')
        e('v_xor_b32 v13, 32, v12')
        e('v_xor_b32 v14, 64, v12')
        e('v_xor_b32 v15, 0x60, v12')
        e('v_lshlrev_b32 v6, 3, v4')
        e('v_bfe_u32 v7, v1, 2, 2')
        e('v_add_u32 v6, v6, v7')
        e('v_mul_u32_u24 v6, 192, v6')
        e('v_bfe_u32 v7, v1, 4, 1')
        e('v_lshlrev_b32 v7, 5, v7')
        e('v_and_b32 v8, 3, v1')
        e('v_lshlrev_b32 v8, 3, v8')
        e('v_add3_u32 v16, v6, v7, v8')

    g=Asm()
    accQ,accK,accV=64,80,96
    FS0=[128,144,160,176]
    g('s_getpc_b64 s[62:63]')
    g.label('PF_0')
    g('s_lshr_b32 s60, s2, 3')
    g('s_and_b32 s60, s60, 7')
    g('s_lshl_b32 s60, s60, 2')
    g('s_add_u32 s60, s60, s37')
    g('s_lshl_b32 s60, s60, 10')
    g('v_lshlrev_b32 v9, 4, v1')
    g('v_add_u32 v9, s60, v9')
    g('v_min_u32 v10, K_END-PF_0-16, v9')
    g('global_load_dwordx4 v[200:203], v10, s[62:63]')
    g('v_add_u32 v9, 0x8000, v9')
    g('v_min_u32 v10, K_END-PF_0-16, v9')
    g('global_load_dwordx4 v[204:207], v10, s[62:63]')
    common_lds_addr(g)
    for r in range(64,112): g(f'v_mov_b32 v{r}, 0')
    g(f'v_add_u32 v17, {XS}, v16')
    g(f's_mov_b32 s56, {(-4*SLOT)&0xffffffff:#x}')
    g(f's_mov_b32 s57, {SLOT}')
    g(f'v_lshlrev_b32 v18, 2, v1')
    g(f'v_add_u32 v18, {L_CNT}, v18')
    g('v_mov_b32 v19, 0')
    g('s_mov_b64 exec, 0xff')
    g('ds_write_b32 v18, v19')
    g('s_mov_b64 exec, -1')
    g('s_lshl_b32 s48, s37, 7')
    g('v_lshlrev_b32 v20, 2, v3')
    g('v_add_u32 v20, s48, v20')
    g(f'v_add_u32 v20, {L_A}, v20')
    g('v_lshlrev_b32 v23, 4, v4')
    g(f'v_add_u32 v24, {L_CS}, v23')
    g('v_lshlrev_b32 v25, 2, v3')
    g(f'v_add_u32 v25, {L_CS+64*4}, v25')
    g('v_add_u32 v27, s48, v23')
    g(f'v_add_u32 v27, {L_A}, v27')
    g('s_lshl_b32 s49, s38, 2')
    g('s_add_u32 s49, s49, s37')
    g('s_lshl_b32 s50, s49, 10')
    g('s_lshl_b32 s51, s39, 17')
    g('s_add_u32 s50, s50, s51')
    g(f's_add_u32 s52, s50, {WS_K}')
    g(f's_add_u32 s53, s50, {WS_K+65536}')
    g(f's_add_u32 s54, s50, {WS_V}')
    g(f's_add_u32 s51, s50, {WS_Q+65536}')
    g(f's_add_u32 s50, s50, {WS_Q}')
    g('v_lshlrev_b32 v28, 4, v1')
    g('v_and_b32 v29, 0x13, v3')
    g('v_bfe_u32 v30, v3, 2, 1')
    g('v_lshlrev_b32 v30, 3, v30')
    g('v_bfe_u32 v31, v3, 3, 1')
    g('v_lshlrev_b32 v31, 2, v31')
    g('v_or3_b32 v29, v29, v30, v31')
    g('v_lshlrev_b32 v30, 5, v4')
    g('v_add_u32 v29, v29, v30')
    g('v_lshlrev_b32 v29, 4, v29')
    g('v_bfe_u32 v30, v3, 4, 1')
    g('v_lshlrev_b32 v30, 16, v30')
    g('v_lshlrev_b32 v31, 8, v4')
    g('v_and_b32 v32, 15, v3')
    g('v_lshlrev_b32 v32, 4, v32')
    g('v_add3_u32 v30, v30, v31, v32')
    g('s_mul_i32 s55, s39, 1536')
    g('s_lshl_b32 s58, s49, 2')
    g('s_add_u32 s55, s55, s58')
    g(f's_add_u32 s55, s55, {WS_N}')
    g('v_lshlrev_b32 v31, 8, v1')
    g('s_waitcnt lgkmcnt(0)')
    srd(g,sWS,pWS,WS_SIZE)
    g(f's_load_dwordx2 s[64:65], s[{pWS}:{pWS+1}], 0')
    def readlist(set_, ks):
        L=[f'ds_read_b128 {R(set_,4)}, v{12+ks}']
        for t in range(3):
            for e in range(2):
                L.append(f'ds_read_b64_tr_b16 {R(set_+4+4*t+2*e,2)}, v17 offset:{ks*3072+e*768+t*64}')
        return L
    def mfmalist(set_):
        return [f'v_mfma_f32_32x32x16_bf16 {R(accQ,16)}, {R(set_+4,4)}, {R(set_,4)}, {R(accQ,16)}',
                f'v_mfma_f32_32x32x16_bf16 {R(accK,16)}, {R(set_+8,4)}, {R(set_,4)}, {R(accK,16)}',
                f'v_mfma_f32_32x32x16_bf16 {R(accV,16)}, {R(set_,4)}, {R(set_+12,4)}, {R(accV,16)}']
    g('s_waitcnt lgkmcnt(0)')
    g('s_add_u32 s64, s64, 0x7f4a7c15')
    g('s_addc_u32 s65, s65, 0x9e3779b9')
    stamp(g,1)
    for st in range(8):
        g('s_barrier')
        if st==0: stamp(g,2)
        for ks in range(4):
            rl=readlist(FS0[ks],ks); ml=mfmalist(FS0[(ks+2)%4])
            if st==0 and ks<2:
                for r_ in rl: g(r_)
                continue
            g('s_waitcnt lgkmcnt(7)')
            g(ml[0]); g(rl[0]); g(rl[1]); g(rl[2])
            g(ml[1]); g(rl[3]); g(rl[4])
            g(ml[2]); g(rl[5]); g(rl[6])
        if st<7:
            sr='s57' if A_SLOT[st+1]>A_SLOT[st] else 's56'
            for r in (12,13,14,15,17): g(f'v_add_u32 v{r}, {sr}, v{r}')
    g('s_waitcnt lgkmcnt(7)')
    for m in mfmalist(FS0[2]): g(m)
    g('s_waitcnt lgkmcnt(0)')
    for m in mfmalist(FS0[3]): g(m)
    stamp(g,3)
    g('s_barrier')
    g('s_setprio 3')
    CSQ=128; CSK=144; AV=160; MV=176
    g('ds_read_b32 v21, v20')
    g(f'ds_read_b32 v22, v20 offset:{L_MU-L_A}')
    for T,base in ((0,CSQ),(1,CSK)):
        for gg in range(4):
            g(f'ds_read_b128 {R(base+4*gg,4)}, v24 offset:{(32*T+8*gg)*4}')
    g('ds_read_b32 v26, v25')
    g('s_waitcnt lgkmcnt(9)')
    g(f'v_mul_f32 v34, {f2u(QSCALE):#x}, v21')
    g('v_mul_f32 v38, v21, v22')
    g('v_mul_f32 v36, v34, v22')
    for gg in range(4):
        g(f'ds_read_b128 {R(AV+4*gg,4)}, v27 offset:{8*gg*4}')
        g(f'ds_read_b128 {R(MV+4*gg,4)}, v27 offset:{8*gg*4+L_MU-L_A}')
    g('s_waitcnt lgkmcnt(12)')
    for r in range(16): g(f'v_mul_f32 v{CSK+r}, v{CSK+r}, v38') if False else None
    g('s_waitcnt lgkmcnt(8)')
    for r in range(16): g(f'v_mul_f32 v{CSK+r}, v{CSK+r}, v38')
    for r in range(16): g(f'v_fma_f32 v{accK+r}, v{accK+r}, v21, -v{CSK+r}')
    for i in range(8): g(f'v_cvt_pk_bf16_f32 v{CSK+i}, v{accK+2*i}, v{accK+2*i+1}')
    g(f'buffer_store_dwordx4 {R(CSK,4)}, v29, {W_}, s52 offen sc1')
    g(f'buffer_store_dwordx4 {R(CSK+4,4)}, v29, {W_}, s53 offen sc1')
    g('s_waitcnt lgkmcnt(0)')
    for r in range(16): g(f'v_fma_f32 v{accV+r}, -v{MV+r}, v26, v{accV+r}')
    for r in range(16): g(f'v_mul_f32 v{accV+r}, v{accV+r}, v{AV+r}')
    for i in range(8): g(f'v_cvt_pk_bf16_f32 v{AV+i}, v{accV+2*i}, v{accV+2*i+1}')
    g(f'buffer_store_dwordx4 {R(AV,4)}, v30, {W_}, s54 offen sc1')
    g(f'buffer_store_dwordx4 {R(AV+4,4)}, v30, {W_}, s54 offen offset:512 sc1')
    for r in range(16): g(f'v_mul_f32 v{CSQ+r}, v{CSQ+r}, v36')
    for r in range(16): g(f'v_fma_f32 v{accQ+r}, v{accQ+r}, v34, -v{CSQ+r}')
    for i in range(8): g(f'v_cvt_pk_bf16_f32 v{CSQ+i}, v{accQ+2*i}, v{accQ+2*i+1}')
    g(f'buffer_store_dwordx4 {R(CSQ,4)}, v28, {W_}, s50 offen sc1')
    g(f'buffer_store_dwordx4 {R(CSQ+4,4)}, v28, {W_}, s51 offen sc1')
    for (b,acc) in ((42,accK),(46,accQ)):
        g(f'v_mul_f32 v{b}, v{acc}, v{acc}'); g(f'v_mul_f32 v{b+1}, v{acc+1}, v{acc+1}')
        g(f'v_mul_f32 v{b+2}, v{acc+8}, v{acc+8}'); g(f'v_mul_f32 v{b+3}, v{acc+9}, v{acc+9}')
        for i in range(2,8):
            g(f'v_fmac_f32 v{b+(i&1)}, v{acc+i}, v{acc+i}'); g(f'v_fmac_f32 v{b+2+(i&1)}, v{acc+8+i}, v{acc+8+i}')
    g(f'v_max3_f32 v38, |v{accV}|, |v{accV+1}|, |v{accV+2}|')
    g('v_add_f32 v34, v42, v43')
    g('v_add_f32 v35, v44, v45')
    g('v_add_f32 v36, v46, v47')
    g('v_add_f32 v37, v48, v49')
    for r in range(3,15,2): g(f'v_max3_f32 v38, v38, |v{accV+r}|, |v{accV+r+1}|')
    g(f'v_max_f32 v38, v38, |v{accV+15}|')
    for i in range(4): g(f'v_mov_b32 v{40+i}, v{34+i}')
    g('s_nop 1')
    for i in range(4): g(f'v_permlane32_swap_b32 v{34+i}, v{40+i}')
    g('s_nop 1')
    for i in range(4): g(f'v_add_f32 v{34+i}, v{34+i}, v{40+i}')
    g('s_nop 1')
    for sh in (1,2,4,8):
        for r in (34,35,36,37,38): g(f'v_max_f32_dpp v{r}, v{r}, v{r} row_shr:{sh} row_mask:0xf bank_mask:0xf')
    for r in (34,35,36,37): g(f'v_max_f32_dpp v{r}, v{r}, v{r} row_bcast:15 row_mask:0xa bank_mask:0xf')
    g('s_nop 1')
    g('v_readlane_b32 s56, v38, 15')
    g('v_readlane_b32 s57, v38, 47')
    g('v_readlane_b32 s58, v38, 31')
    g('v_readlane_b32 s59, v38, 63')
    g('v_readlane_b32 s66, v34, 31')
    g('v_readlane_b32 s67, v35, 31')
    g('v_readlane_b32 s68, v36, 31')
    g('v_readlane_b32 s69, v37, 31')
    g('s_max_u32 s56, s56, s57')
    g('s_max_u32 s58, s58, s59')
    g('v_mov_b32 v40, s66')
    g('v_writelane_b32 v40, s56, 1')
    g('v_writelane_b32 v40, s68, 2')
    g('v_writelane_b32 v40, s67, 3')
    g('v_writelane_b32 v40, s58, 4')
    g('v_writelane_b32 v40, s69, 5')
    g('s_mov_b64 exec, 63')
    g(f'buffer_store_dword v40, v31, {W_}, s55 offen sc1')
    g('s_mov_b64 exec, -1')
    stamp(g,4)
    g('s_setprio 0')
    g('s_waitcnt vmcnt(0)')
    g('s_lshl_b32 s48, s39, 4')
    g('s_add_u32 s48, s48, s38')
    g('s_lshl_b32 s48, s48, 7')
    g(f's_add_u32 s48, s48, {F_1}')
    signal(g, L_CNT, 3, 's48', 40)
    stamp(g,5)
    g('s_branch K_ATT')

    h=Asm()
    h.label('K_G1')
    h('s_setprio 2')
    sX,sWQ,sW1,sB1=24,32,40,44
    XF=128
    h('s_mul_i32 s50, s39, 3')
    h('s_lshl_b32 s51, s39, 1')
    h('s_add_u32 s51, s51, 11')
    h('s_cmp_lt_u32 s39, 11')
    h('s_cselect_b32 s48, s50, s51')
    h('s_cselect_b32 s49, 3, 2')
    h('v_lshrrev_b32 v20, 3, v1')
    h('v_and_b32 v21, 7, v1')
    h('v_lshrrev_b32 v22, 4, v1')
    h('v_xor_b32 v21, v21, v22')
    h('v_lshlrev_b32 v20, 10, v20')
    h('v_lshlrev_b32 v22, 4, v21')
    h('v_add_u32 v2, v20, v22')
    h('v_xor_b32 v22, 64, v22')
    h('v_add_u32 v22, 7168, v22')
    h('v_add_u32 v18, v20, v22')
    h('v_add_u32 v19, 14336, v2')
    h('v_add_u32 v20, 14336, v18')
    VX=[2,18,19,20]
    VW=[21,22,23]; VW1=[24,25,26]
    for p in range(3):
        h(f'v_add_u32 v27, {64*p}, v1')
        h('v_mul_u32_u24 v28, 43691, v27')
        h('v_lshrrev_b32 v28, 19, v28')
        h('v_mul_u32_u24 v29, 12, v28')
        h('v_sub_u32 v29, v27, v29')
        h('v_lshrrev_b32 v30, 2, v29')
        h('v_lshlrev_b32 v30, 10, v30')
        h('v_and_b32 v31, 3, v29')
        h('v_lshlrev_b32 v31, 4, v31')
        h('v_mul_u32_u24 v32, 3072, v28')
        h(f'v_add3_u32 v{VW[p]}, v32, v30, v31')
        if p: h(f'v_subrev_u32 v{VW[p]}, {1024*p}, v{VW[p]}')
        h('v_mul_u32_u24 v32, 2752, v28')
        h('v_lshlrev_b32 v31, 4, v29')
        h(f'v_add_u32 v{VW1[p]}, v32, v31')
        if p: h(f'v_subrev_u32 v{VW1[p]}, {1024*p}, v{VW1[p]}')
    h('s_lshl_b32 s50, s38, 17')
    h('s_lshl_b32 s51, s37, 15')
    h('s_add_u32 s50, s50, s51')
    h('s_mul_i32 s51, s37, 49152')
    h('s_lshl_b32 s52, s39, 6')
    h('s_add_u32 s51, s51, s52')
    h('s_mul_i32 s52, s37, 44032')
    h('s_lshl_b32 s53, s48, 6')
    h('s_add_u32 s52, s52, s53')
    h('s_lshl_b32 s53, s37, 12')
    h('s_mul_i32 s54, s37, 3072')
    h('s_lshl_b32 s56, s48, 6')
    h('s_and_b32 s58, s39, 3')
    h('s_lshl_b32 s58, s58, 1')
    h('s_add_u32 s58, s58, s38')
    h('s_and_b32 s58, s58, 7')
    h('s_waitcnt lgkmcnt(0)')
    srd(h,sX,pX,2048*512*2); srd(h,sWQ,pWQ,512*1536*2)
    def dmaA(st):
        slot=A_SLOT[st]*SLOT; L=[]
        L.append((f's_add_u32 s61, s58, {st}',None))
        L.append(('s_and_b32 s61, s61, 7',None))
        L.append((f's_add_u32 m0, s53, {slot}',None))
        L.append(('s_lshl_b32 s55, s61, 7',None))
        L.append(('s_add_u32 s55, s55, s50',None))
        for i in range(4):
            L.append((f'buffer_load_dwordx4 v{VX[i]}, {SR(sX)}, s55 offen offset:{1024*i} lds',f'A{st}'))
        L.append((f's_add_u32 m0, s54, {slot+XS}',None))
        L.append((f's_mul_i32 s55, s61, {64*3072}',None))
        L.append(('s_add_u32 s55, s55, s51',None))
        for p in range(3):
            L.append((f'buffer_load_dwordx4 v{VW[p]}, {SR(sWQ)}, s55 offen offset:{1024*p} lds',f'A{st}'))
        return L
    def dmaB(st):
        L=[]
        L.append((f's_add_u32 s61, s58, {st}',None))
        L.append(('s_and_b32 s61, s61, 7',None))
        L.append((f's_add_u32 m0, s54, {W1_ADDR[st]}',None))
        L.append((f's_mul_i32 s55, s61, {64*2752}',None))
        L.append(('s_add_u32 s55, s55, s52',None))
        for p in range(3):
            L.append((f'buffer_load_dwordx4 v{VW1[p]}, {SR(sW1)}, s55 offen offset:{1024*p} lds',f'B{st}'))
        return L
    def emit(e, dmas):
        for (ins,tag) in dmas:
            if tag: e.vm(tag,ins)
            else: e(ins)
    stamp(h,1)
    for st in range(3): emit(h,dmaA(st))
    stamp(h,2)
    srd(h,sW1,pW1,512*1376*2); srd(h,sWS,pWS,WS_SIZE); srd(h,sB1,pB1,1376*2)
    h(f's_load_dwordx2 s[64:65], s[{pWS}:{pWS+1}], 0')
    common_lds_addr(h)
    h('v_lshlrev_b32 v27, 2, v1')
    h.vm('b1', f'buffer_load_dword v31, v27, {SR(sB1)}, s56 offen')
    h('s_cmp_eq_u32 s37, 3')
    h('s_cselect_b32 s57, 0, s37')
    h('s_lshl_b32 s3, s57, 6')
    h(f's_add_u32 s3, s3, {XS}')
    h('v_add_u32 v17, s3, v16')
    PAT=112; ONES=8; SUMA=[116,120]; GRA=[124,104]; CSA=108
    h('v_and_b32 v27, 15, v1')
    h('v_bfe_u32 v28, v1, 4, 1')
    h('v_cmp_eq_u32 vcc, v27, v28')
    h('v_mov_b32 v29, 0x3f803f80')
    h(f'v_cndmask_b32 v{PAT}, 0, v29, vcc')
    for r in range(1,4): h(f'v_mov_b32 v{PAT+r}, v{PAT}')
    for r in range(4): h(f'v_mov_b32 v{ONES+r}, v29')
    for b in SUMA+GRA+[CSA]:
        for r in range(4): h(f'v_mov_b32 v{b+r}, 0')
    h('v_lshrrev_b32 v28, 4, v1')
    h('v_bfe_u32 v29, v1, 1, 3')
    h('v_xor_b32 v28, v28, v29')
    h('v_lshlrev_b32 v28, 4, v28')
    h('v_lshlrev_b32 v27, 7, v27')
    h('s_lshl_b32 s3, s37, 12')
    h('v_add3_u32 v5, v27, v28, s3')
    h('v_xor_b32 v6, 64, v5')
    TMP=40; XS16=56
    h('s_waitcnt lgkmcnt(0)')
    h('s_add_u32 s64, s64, 0x7f4a7c15')
    h('s_addc_u32 s65, s65, 0x9e3779b9')
    h(f's_mov_b32 s59, {SLOT}')
    h(f's_mov_b32 s60, {(-4*SLOT)&0xffffffff:#x}')
    sched={0:dmaA(3)+dmaA(4), 1:dmaB(0), 2:dmaA(5), 3:dmaA(6), 4:dmaA(7), 5:dmaB(1)+dmaB(2), 6:dmaB(3)+dmaB(4), 7:dmaB(5)+dmaB(6)}
    for st in range(8):
        h.wait_vm(f'A{st}')
        h('s_barrier')
        if st==0: stamp(h,3)
        dm=sched[st]
        for u in range(2):
            for kk in range(2):
                h(f'ds_read_b128 {R(XS16+8*u+4*kk,4)}, v{5+kk} offset:{2048*u}')
        for ks in range(4):
            for e in range(2):
                h(f'ds_read_b64_tr_b16 {R(TMP+4*ks+2*e,2)}, v17 offset:{ks*3072+e*768}')
        k=0; nv=0
        while nv<2 and k<len(dm):
            if dm[k][1]: h.vm(dm[k][1],dm[k][0]); nv+=1
            else: h(dm[k][0])
            k+=1
        val=[]
        for u in range(2):
            for kk in range(2):
                x=XS16+8*u+4*kk
                val.append(f'v_mfma_f32_16x16x32_bf16 {R(SUMA[u],4)}, {R(ONES,4)}, {R(x,4)}, {R(SUMA[u],4)}')
                val.append(f'ds_read_b128 {R(XF+16*st+4*(2*u+kk),4)}, v{12+2*u+kk}')
                val.append(f'v_mfma_f32_16x16x32_bf16 {R(GRA[u],4)}, {R(x,4)}, {R(x,4)}, {R(GRA[u],4)}')
        val.append('s_waitcnt lgkmcnt(4)')
        for ks in range(4):
            val.append(f'v_mfma_f32_16x16x32_bf16 {R(CSA,4)}, {R(TMP+4*ks,4)}, {R(PAT,4)}, {R(CSA,4)}')
        if st<7:
            d=(A_SLOT[st+1]-A_SLOT[st])*SLOT
            sr='s59' if d==SLOT else 's60'
            for r in (12,13,14,15,17,5,6): val.append(f'v_add_u32 v{r}, {sr}, v{r}')
        h('s_waitcnt lgkmcnt(8)')
        rest=dm[k:]; vi=0
        for (ins,tag) in rest:
            if tag:
                for _ in range(2):
                    if vi<len(val): h(val[vi]); vi+=1
                h.vm(tag,ins)
            else: h(ins)
        while vi<len(val): h(val[vi]); vi+=1
    h('s_waitcnt lgkmcnt(0)')
    h('v_and_b32 v27, 3, v1')
    h('v_cmp_eq_u32 vcc, 1, v27')
    h('v_cmp_eq_u32 s[66:67], 2, v27')
    h('v_cmp_eq_u32 s[68:69], 3, v27')
    h('v_and_b32 v28, 15, v1')
    h('v_lshlrev_b32 v28, 2, v28')
    h('s_lshl_b32 s3, s37, 7')
    h('v_add_u32 v28, s3, v28')
    h(f'v_add_u32 v28, {L_A}, v28')
    for u in range(2):
        gr=GRA[u]; q=32+2*u
        h(f'v_cndmask_b32 v{q}, v{gr}, v{gr+1}, vcc')
        h(f'v_cndmask_b32 v{q}, v{q}, v{gr+2}, s[66:67]')
        h(f'v_cndmask_b32 v{q}, v{q}, v{gr+3}, s[68:69]')
    for u in range(2):
        q=32+2*u; m=SUMA[u]
        h(f'v_mul_f32 v{m}, {f2u(1/512):#x}, v{m}')
        h(f'v_mul_f32 v{q}, {f2u(1/512):#x}, v{q}')
    for u in range(2):
        q=32+2*u; m=SUMA[u]
        h(f'v_fma_f32 v{q}, -v{m}, v{m}, v{q}')
        h(f'v_max_f32 v{q}, 0, v{q}')
        h(f'v_add_f32 v{q+1}, {f2u(1e-5):#x}, v{q}')
    for u in range(2):
        q=32+2*u
        h(f'v_rsq_f32 v{q+1}, v{q+1}')
    h('s_nop 0')
    for u in range(2):
        q=32+2*u; m=SUMA[u]
        h(f'v_mul_f32 v{m+1}, v{q+1}, v{q+1}')
        h(f'v_mul_f32 v{m+1}, v{m+1}, v{q}')
        h(f'v_add_f32 v{m+1}, {f2u(1e-5):#x}, v{m+1}')
    for u in range(2):
        m=SUMA[u]
        h(f'v_rsq_f32 v{m+1}, v{m+1}')
    h('s_mov_b32 s66, 0x00f0000f')
    h('s_mov_b32 s67, 0xf0000f00')
    for u in range(2):
        q=32+2*u; m=SUMA[u]
        h(f'v_mul_f32 v{m+2}, v{m+1}, v{q+1}')
        h(f'v_mul_f32 v{m+3}, v{m+2}, v{m}')
    h('s_mov_b64 exec, s[66:67]')
    for u in range(2):
        q=32+2*u; m=SUMA[u]
        h(f'ds_write_b32 v28, v{q+1} offset:{64*u}')
        h(f'ds_write_b32 v28, v{m} offset:{64*u+L_MU-L_A}')
        h(f'ds_write_b32 v28, v{m+2} offset:{64*u+L_A2-L_A}')
        h(f'ds_write_b32 v28, v{m+3} offset:{64*u+L_A2M-L_A}')
    h('s_mov_b64 exec, -1')
    h('v_and_b32 v29, 15, v1')
    h('v_lshlrev_b32 v29, 6, v29')
    h('v_lshrrev_b32 v30, 4, v1')
    h('v_lshlrev_b32 v30, 4, v30')
    h('s_lshl_b32 s55, s57, 7')
    h('v_add3_u32 v29, v29, v30, s55')
    h(f'v_add_u32 v29, {L_CS}, v29')
    h('s_mov_b32 s62, 0x00030003')
    h('s_mov_b32 s63, 0x00030003')
    h('s_mov_b64 exec, s[62:63]')
    h(f'ds_write_b128 v29, {R(CSA,4)}')
    h('s_mov_b64 exec, -1')
    h('v_lshlrev_b32 v27, 2, v3')
    h('v_add_u32 v28, s3, v27')
    h(f'v_add_u32 v28, {L_A2}, v28')
    h('s_waitcnt lgkmcnt(0)')
    h('ds_read_b32 v38, v28')
    h(f'ds_read_b32 v30, v28 offset:{L_A2M-L_A2}')
    h.wait_vm('b1')
    h('v_lshlrev_b32 v34, 16, v31')
    h('v_and_b32 v35, 0xffff0000, v31')
    h('v_lshlrev_b32 v28, 3, v1')
    h(f'v_add_u32 v28, {L_B1}, v28')
    h('v_cmp_gt_u32 vcc, 48, v1')
    h('s_and_saveexec_b64 s[66:67], vcc')
    h('ds_write_b64 v28, v[34:35]')
    h('s_mov_b64 exec, s[66:67]')
    ACC=[64,80,96]
    for r in range(64,112): h(f'v_mov_b32 v{r}, 0')
    FS=[40,52,112]
    TS=[57,59,60]
    for sl in range(3):
        h(f's_add_u32 s3, s37, {sl}')
        h('s_cmp_ge_u32 s3, 3')
        h('s_cselect_b32 s55, 3, 0')
        h('s_sub_u32 s3, s3, s55')
        h('s_cmp_ge_u32 s3, 3')
        h('s_cselect_b32 s55, 3, 0')
        h('s_sub_u32 s3, s3, s55')
        h(f's_mov_b32 s{TS[sl]}, s3')
        h('s_lshl_b32 s3, s3, 6')
        h(f'v_add_u32 v{12+sl}, s3, v16')
    PAT2=8; CS1A=124
    for r in range(4):
        h(f'v_mov_b32 v{PAT2+r}, v{PAT}')
        h(f'v_mov_b32 v{CS1A+r}, 0')
    cur=[0]
    def setbase(st):
        d=W1_ADDR[st]-cur[0]
        if d:
            for sl in range(3): h(f'v_add_u32 v{12+sl}, {d&0xffffffff:#x}, v{12+sl}')
        cur[0]=W1_ADDR[st]
    def readsB(n):
        st,ks=divmod(n,4); fs=FS[n%3]
        if ks==0: setbase(st)
        for sl in range(3):
            for e in range(2):
                h(f'ds_read_b64_tr_b16 {R(fs+4*sl+2*e,2)}, v{12+sl} offset:{ks*3072+e*768}')
    def mfmaB(n):
        fs=FS[n%3]
        for sl in range(3):
            h(f'v_mfma_f32_32x32x16_bf16 {R(ACC[sl],16)}, {R(fs+4*sl,4)}, {R(XF+4*n,4)}, {R(ACC[sl],16)}')
            if sl==1:
                h(f'v_mfma_f32_16x16x32_bf16 {R(CS1A,4)}, {R(fs,4)}, {R(PAT2,4)}, {R(CS1A,4)}')
    h(f'v_mov_b32 v17, {L_CNT+12}')
    h('v_mov_b32 v7, 1')
    h.wait_vm(['B0','B1'])
    h('s_waitcnt lgkmcnt(0)')
    stamp(h,4)
    h('s_barrier')
    bar={8:['B2','B3','B4','B5'], 24:['B6','B7']}
    emit(h,dmaB(7))
    readsB(0); readsB(1)
    for n in range(32):
        m=n+2
        if m+1 in bar:
            h.wait_vm(bar[m+1])
            gbar_arrive(h, 17, 7)
        if m<32 and m in bar:
            gbar_wait(h, 17, 6, 4 if m==8 else 8)
            readsB(m)
        elif m<32:
            h('s_waitcnt lgkmcnt(6)')
            readsB(m)
        elif m==32:
            h('s_waitcnt lgkmcnt(6)')
        else:
            h('s_waitcnt lgkmcnt(0)')
        mfmaB(n)
    h('v_and_b32 v29, 15, v1')
    h('v_lshlrev_b32 v29, 6, v29')
    h('v_lshrrev_b32 v27, 4, v1')
    h('v_lshlrev_b32 v27, 4, v27')
    h(f's_lshl_b32 s55, s{TS[0]}, 7')
    h('v_add3_u32 v29, v29, v27, s55')
    h(f'v_add_u32 v29, {L_CS1}, v29')
    h('s_nop 1')
    h('s_mov_b64 exec, s[62:63]')
    h(f'ds_write_b128 v29, {R(CS1A,4)}')
    h('s_mov_b64 exec, -1')
    h('s_waitcnt lgkmcnt(0)')
    gbar_arrive(h, 17, 7)
    stamp(h,5)
    gbar_wait(h, 17, 6, 12)
    C1=-2*1.4426950408889634*0.7978845608028654
    C2=C1*0.044715
    h(f's_mov_b32 s66, {f2u(C2):#x}')
    h(f'v_mov_b32 v32, {f2u(C1):#x}')
    h('v_lshlrev_b32 v23, 4, v4')
    h('v_lshlrev_b32 v28, 4, v1')
    h('s_lshl_b32 s53, s38, 2')
    h('s_add_u32 s53, s53, s37')
    h('s_mul_i32 s53, s53, 86')
    CSR=[128,160,192]; B1R=[144,176,208]
    for sl in range(3):
        h(f's_lshl_b32 s3, s{TS[sl]}, 7')
        h('v_add_u32 v24, s3, v23')
        h(f'v_add_u32 v24, {L_CS1}, v24')
        for gg in range(4):
            h(f'ds_read_b128 {R(CSR[sl]+4*gg,4)}, v24 offset:{8*gg*4}')
            h(f'ds_read_b128 {R(B1R[sl]+4*gg,4)}, v24 offset:{8*gg*4+L_B1-L_CS1}')
        if sl==0: h('s_waitcnt lgkmcnt(0)')
    for sl in range(3):
        acc=ACC[sl]; cs=CSR[sl]; b1=B1R[sl]
        lab=f'K_SKIP{sl}'
        h(f's_cmp_ge_u32 s{TS[sl]}, s49')
        h(f's_cbranch_scc1 {lab}')
        h(f's_add_u32 s54, s48, s{TS[sl]}')
        h('s_lshl_b32 s54, s54, 1')
        h('s_add_u32 s54, s54, s53')
        h('s_lshl_b32 s54, s54, 10')
        h(f's_add_u32 s54, s54, {WS_H}')
        if sl==1: h('s_waitcnt lgkmcnt(0)')
        for r in range(16): h(f'v_fma_f32 v{b1+r}, -v{cs+r}, v30, v{b1+r}')
        for r in range(16): h(f'v_fma_f32 v{acc+r}, v{acc+r}, v38, v{b1+r}')
        for r in range(16): h(f'v_mul_f32 v{cs+r}, v{acc+r}, v{acc+r}')
        for r in range(16): h(f'v_fma_f32 v{cs+r}, v{cs+r}, s66, v32')
        for r in range(16): h(f'v_mul_f32 v{cs+r}, v{cs+r}, v{acc+r}')
        for r in range(16): h(f'v_exp_f32 v{cs+r}, v{cs+r}')
        for r in range(16): h(f'v_add_f32 v{cs+r}, 1.0, v{cs+r}')
        for r in range(16): h(f'v_rcp_f32 v{cs+r}, v{cs+r}')
        for r in range(16): h(f'v_mul_f32 v{acc+r}, v{acc+r}, v{cs+r}')
        for i in range(8): h(f'v_cvt_pk_bf16_f32 v{b1+i}, v{acc+2*i}, v{acc+2*i+1}')
        h(f'buffer_store_dwordx4 {R(b1,4)}, v28, {W_}, s54 offen sc1')
        h(f'buffer_store_dwordx4 {R(b1+4,4)}, v28, {W_}, s54 offen offset:1024 sc1')
        h.label(lab)
    stamp(h,6)
    h('s_waitcnt vmcnt(0)')
    h.vmq=[]
    h('s_lshl_b32 s48, s38, 4')
    h('s_add_u32 s48, s48, s39')
    h('s_lshl_b32 s48, s48, 7')
    h(f's_add_u32 s48, s48, {F_2}')
    signal(h, L_CNT+4, 3, 's48', 40)

    h('s_setprio 2' if 'g2hi' in OPT else 's_setprio 0')
    h('s_and_b32 s52, s2, 7')
    h('s_lshr_b32 s53, s2, 3')
    h('s_and_b32 s54, s53, 3')
    h('s_lshl_b32 s52, s52, 2')
    h('s_add_u32 s58, s52, s54')
    h('s_lshr_b32 s59, s53, 2')
    h('v_lshlrev_b32 v5, 4, v1')
    h('v_lshlrev_b32 v8, 7, v1')
    sWw=24
    h('s_lshr_b32 s52, s2, 3')
    h('s_lshl_b32 s52, s52, 2')
    h('s_add_u32 s52, s52, s37')
    h('s_lshl_b32 s52, s52, 14')
    h(f's_cmp_ge_u32 s52, {1376*1024}')
    h(f's_cselect_b32 s{sWw}, s{pWO}, s{pW2}')
    h(f's_cselect_b32 s{sWw+1}, s{pWO+1}, s{pW2+1}')
    h(f's_cselect_b32 s53, {1376*1024}, 0')
    h('s_sub_u32 s52, s52, s53')
    h('s_cmp_eq_u32 s53, 0')
    h(f's_mov_b32 s26, {512*512*2}')
    h(f's_cselect_b32 s26, {1376*512*2}, s26')
    h(f's_mov_b32 s{sWw+3}, 0x00020000')
    for k in range(0 if 'nowarm' in OPT else 16):
        h(f'buffer_load_dwordx4 v[40:43], v5, {SR(sWw)}, s52 offen offset:{1024*(k%4)}')
        if k%4==3: h('s_add_u32 s52, s52, 4096')
    sW2=24
    h('s_lshr_b32 s52, s58, 1')
    h('s_lshl_b32 s52, s52, 11')
    h(f's_add_u32 s52, s52, {F_2}')
    stamp(h,7)
    poll_wg(h, 16, 'v8', 's52', 46, 4, L_CNT+20)
    stamp(h,8)
    srd(h,sW2,pW2,1376*512*2)
    h('s_sub_u32 s60, s36, 4')
    h('s_mul_i32 s61, s60, 22')
    h('s_cmp_eq_u32 s60, 3')
    h('s_cselect_b32 s52, 1, 0')
    h('s_sub_u32 s61, s61, s52')
    h('s_cmp_lt_u32 s60, 2')
    h('s_cselect_b32 s62, 22, 21')
    h('s_lshl_b32 s63, s59, 1')
    h('s_and_b32 s52, s58, 3')
    h('s_add_u32 s63, s63, s52')
    h('s_sub_u32 s57, s62, s63')
    h('s_add_u32 s61, s61, s63')
    h('s_lshl_b32 s52, s58, 1')
    h('s_mul_i32 s52, s52, 86')
    h('s_add_u32 s52, s52, s61')
    h('s_lshl_b32 s52, s52, 10')
    h(f's_add_u32 s52, s52, {WS_H}')
    h('s_lshl_b32 s54, s61, 14')
    h('s_lshl_b32 s55, s59, 7')
    h('s_add_u32 s54, s54, s55')
    h('s_lshl_b32 s56, s62, 10')
    h('s_lshl_b32 s53, s62, 14')
    h('s_lshl_b32 s55, s60, 14')
    h(f's_add_u32 s55, s55, {L_RING}')
    def wdma_voff(e):
        e('v_lshrrev_b32 v10, 3, v1')
        e('v_lshlrev_b32 v10, 10, v10')
        e('v_and_b32 v11, 7, v1')
        e('v_bfe_u32 v12, v1, 4, 1')
        e('v_lshlrev_b32 v12, 2, v12')
        e('v_xor_b32 v11, v11, v12')
        e('v_lshlrev_b32 v11, 4, v11')
        e('v_add_u32 v10, v10, v11')
        e('v_add_u32 v11, 7168, v10')
    wdma_voff(h)
    h(f'v_add_u32 v17, {86*1024}, v5')
    def tr_addr(e, dst, base_s):
        e('v_bfe_u32 v13, v1, 2, 2')
        e('v_lshlrev_b32 v14, 2, v4')
        e('v_add_u32 v14, v14, v13')
        e('v_lshlrev_b32 v14, 7, v14')
        e('v_bfe_u32 v15, v1, 4, 1')
        e('v_lshlrev_b32 v15, 1, v15')
        e('v_and_b32 v16, 1, v1')
        e('v_add_u32 v15, v15, v16')
        e('v_lshrrev_b32 v13, 1, v13')
        e('v_lshlrev_b32 v13, 2, v13')
        e('v_xor_b32 v15, v15, v13')
        e('v_lshlrev_b32 v15, 4, v15')
        e('v_bfe_u32 v16, v1, 1, 1')
        e('v_lshlrev_b32 v16, 3, v16')
        e('v_add3_u32 v14, v14, v15, v16')
        e(f'v_add_u32 v{dst}, {base_s}, v14')
        e(f'v_xor_b32 v{dst+1}, 64, v{dst}')
    tr_addr(h, 18, 's55')
    GA=[[192,208],[224,240]]
    for tt in range(2):
        for ct in range(2):
            for r in range(16): h(f'v_mov_b32 v{GA[tt][ct]+r}, 0')
    D=G2D
    for o_ in OPT:
        if o_.startswith('D='): D=int(o_[2:])
    XB=[64+8*i for i in range(D)]
    WB=[24,32]
    def g2_issue(sl):
        h(f'buffer_load_dwordx4 {R(XB[sl],4)}, v5, {W_}, s52 offen sc1')
        h(f'buffer_load_dwordx4 {R(XB[sl]+4,4)}, v17, {W_}, s52 offen sc1')
        h(f's_add_u32 m0, s55, {sl*2048}')
        h('s_add_u32 s52, s52, 1024')
        h('s_sub_u32 s57, s57, 1')
        h(f'buffer_load_dwordx4 v10, {SR(sW2)}, s54 offen lds')
        h(f'buffer_load_dwordx4 v11, {SR(sW2)}, s54 offen offset:1024 lds')
        h('s_add_u32 s54, s54, 16384')
        h('s_cmp_eq_u32 s57, 0')
        h('s_cselect_b32 s63, s56, 0')
        h('s_cselect_b32 s61, s53, 0')
        h('s_sub_u32 s52, s52, s63')
        h('s_sub_u32 s54, s54, s61')
    def g2_wread(sl, wb):
        for ct in range(2):
            for e in range(2):
                h(f'ds_read_b64_tr_b16 {R(WB[wb]+4*ct+2*e,2)}, v{18+ct} offset:{sl*2048+e*1024}')
    if 'nog2' in OPT: h('s_branch K_G2_DONE')
    for sl in range(D-1): g2_issue(sl)
    h(f's_waitcnt vmcnt({4*(D-2)})')
    g2_wread(0,0)
    h.label('K_G2_LOOP')
    for sl in range(D):
        g2_issue((sl+D-1)%D)
        h(f's_waitcnt vmcnt({4*(D-2)})')
        g2_wread((sl+1)%D,(sl+1)%2)
        h('s_waitcnt lgkmcnt(4)')
        for tt in range(2):
            for ct in range(2):
                h(f'v_mfma_f32_32x32x16_bf16 {R(GA[tt][ct],16)}, {R(WB[sl%2]+4*ct,4)}, {R(XB[sl]+4*tt,4)}, {R(GA[tt][ct],16)}')
        h('s_sub_u32 s62, s62, 1')
        h('s_cmp_eq_u32 s62, 0')
        if sl<D-1: h('s_cbranch_scc1 K_G2_DONE')
        else: h('s_cbranch_scc0 K_G2_LOOP')
    h.label('K_G2_DONE')
    h('s_waitcnt vmcnt(0) lgkmcnt(0)')
    stamp(h,11)
    h('s_nop 7')
    for tt in range(2):
        for ct in range(2):
            qd=tt+2*ct
            lab=newlab('GXS')
            h(f's_cmp_eq_u32 s60, {qd}')
            h(f's_cbranch_scc1 {lab}')
            h(f's_sub_u32 s52, {qd+3}, s60')
            h('s_and_b32 s52, s52, 3')
            h('s_lshl_b32 s52, s52, 12')
            h('s_add_u32 s52, s52, s55')
            h('v_add_u32 v14, s52, v5')
            for k in range(4): h(f'ds_write_b128 v14, {R(GA[tt][ct]+4*k,4)} offset:{1024*k}')
            h.label(lab)
    for tt in range(2):
        for ct in range(2):
            qd=tt+2*ct
            if qd==0: continue
            lab=newlab('GXK')
            h(f's_cmp_lg_u32 s60, {qd}')
            h(f's_cbranch_scc1 {lab}')
            h('s_waitcnt lgkmcnt(0)')
            for r in range(16): h(f'v_mov_b32 v{192+r}, v{GA[tt][ct]+r}')
            h.label(lab)
    def att_ids(e):
        e('s_and_b32 s48, s2, 7')
        e('s_lshr_b32 s49, s2, 3')
        e('s_and_b32 s50, s49, 3')
        e('s_lshl_b32 s48, s48, 2')
        e('s_add_u32 s38, s48, s50')
        e('s_lshr_b32 s39, s49, 2')
    h(f'v_mov_b32 v12, {L_CNT+12}')
    h('v_mov_b32 v13, 1')
    h('s_waitcnt lgkmcnt(0)')
    gbar_arrive(h, 12, 13)
    gbar_wait(h, 12, 13, 16)
    for sl in range(3):
        h(f's_sub_u32 s52, s60, {sl+1}')
        h('s_and_b32 s52, s52, 3')
        h('s_lshl_b32 s52, s52, 14')
        h(f's_add_u32 s52, s52, {L_RING+4096*sl}')
        h('v_add_u32 v14, s52, v5')
        for k in range(4): h(f'ds_read_b128 {R(128+16*sl+4*k,4)}, v14 offset:{1024*k}')
    h('s_waitcnt lgkmcnt(0)')
    for sl in range(3):
        for r in range(16): h(f'v_add_f32 v{192+r}, v{192+r}, v{128+16*sl+r}')
    h('s_branch K_TAIL')

    a2=Asm()
    a2.label('K_ATT')
    a2('s_setprio 1')
    att_ids(a2)
    a2('v_lshlrev_b32 v5, 4, v1')
    a2('v_lshlrev_b32 v6, 8, v4')
    a2('v_and_b32 v7, 15, v1')
    a2('v_lshlrev_b32 v7, 4, v7')
    a2('v_add_u32 v6, v6, v7')
    a2('v_lshlrev_b32 v8, 7, v1')
    a2('v_lshlrev_b32 v9, 2, v1')
    a2('s_lshl_b32 s44, s38, 16')
    a2('s_lshl_b32 s46, s39, 13')
    a2('s_add_u32 s46, s46, s44')
    a2(f's_add_u32 s46, s46, {WS_Q}')
    a2('s_lshl_b32 s47, s36, 14')
    a2('s_add_u32 s47, s47, s44')
    a2(f's_add_u32 s48, s47, {WS_V}')
    a2(f's_add_u32 s47, s47, {WS_K}')
    a2('s_mov_b32 s40, s47')
    a2('s_mov_b32 s41, s48')
    a2('s_mul_i32 s49, s38, 768')
    a2(f's_add_u32 s49, s49, {WS_N}')
    a2('s_mov_b32 s50, 0x0000ffff')
    a2('s_mov_b32 s51, 0x0000ffff')
    KB=[80,84,88,92]; VB=[96,104,112,120]; QF=48
    SA,SB=10,26
    OA=[128+16*i for i in range(8)]; IDX=44
    a2('s_lshr_b32 s52, s38, 1')
    a2('s_lshl_b32 s52, s52, 11')
    a2(f's_add_u32 s52, s52, {F_1}')
    stamp(a2,7)
    poll_wg(a2, 16, 'v8', 's52', 46, 0, L_CNT+24)
    stamp(a2,8)
    a2.vm('N', f'buffer_load_dword v42, v9, {W_}, s49 offen sc1')
    a2.vm('N', f'buffer_load_dword v43, v9, {W_}, s49 offen offset:256 sc1')
    a2.vm('N', f'buffer_load_dword v45, v9, {W_}, s49 offen offset:512 sc1')
    def loadkv(b):
        a2.vm('KV', f'buffer_load_dwordx4 {R(KB[b],4)}, v5, {W_}, s47 offen sc1')
        a2('s_mov_b64 exec, s[50:51]')
        a2.vm('KV', f'buffer_load_dwordx4 {R(VB[b],4)}, v6, {W_}, s48 offen sc1')
        a2.vm('KV', f'buffer_load_dwordx4 {R(VB[b]+4,4)}, v6, {W_}, s48 offen offset:512 sc1')
        a2('s_mov_b64 exec, -1')
        a2('s_add_u32 s47, s47, 1024')
        a2('s_add_u32 s48, s48, 1024')
    a2(f'v_mov_b32 v{IDX}, 0x3f803f80')
    for b in VB:
        for r in range(8): a2(f'v_mov_b32 v{b+r}, v{IDX}')
    a2(f'v_mov_b32 v{IDX}, 0xdddddddd')
    for i in range(4):
        a2.vm('Q', f'buffer_load_dwordx4 {R(QF+4*i,4)}, v5, {W_}, s46 offen offset:{1024*i} sc1')
    loadkv(0)
    a2('s_add_u32 s46, s46, 4096')
    for i in range(4,8):
        a2.vm('Q', f'buffer_load_dwordx4 {R(QF+4*i,4)}, v5, {W_}, s46 offen offset:{1024*(i-4)} sc1')
    loadkv(1); loadkv(2)
    for o in OA:
        for r in range(16): a2(f'v_mov_b32 v{o+r}, 0')
    a2.wait_vm('N')
    for sh in (1,2,4,8):
        for r in (42,43,45): a2(f'v_max_f32_dpp v{r}, v{r}, v{r} row_shr:{sh} row_mask:0xf bank_mask:0xf')
    for r in (42,43,45): a2(f'v_max_f32_dpp v{r}, v{r}, v{r} row_bcast:15 row_mask:0xa bank_mask:0xf')
    for r in (42,43,45): a2(f'v_max_f32_dpp v{r}, v{r}, v{r} row_bcast:31 row_mask:0xc bank_mask:0xf')
    a2('s_nop 1')
    a2('v_readlane_b32 s52, v42, 63')
    a2('v_readlane_b32 s53, v43, 63')
    a2('v_readlane_b32 s54, v45, 63')
    a2('s_nop 1')
    a2('v_mov_b32 v42, s52')
    a2('v_mul_f32 v42, s54, v42')
    a2(f'v_mul_f32 v42, {f2u(1.05):#x}, v42')
    a2(f'v_mov_b32 v43, {f2u(T_LOG2*T_LOG2):#x}')
    a2('v_cmp_le_f32 vcc, v42, v43')
    a2('v_mov_b32 v42, s53')
    a2(f'v_mov_b32 v43, {f2u(2.0**60):#x}')
    a2('v_cmp_le_f32 s[56:57], v42, v43')
    a2('s_nop 1')
    a2('s_and_b64 vcc, vcc, s[56:57]')
    a2('s_cmp_eq_u64 vcc, -1')
    a2('s_cbranch_scc0 K_SLOW')
    def qk(kb, i, dst): return f'v_mfma_f32_32x32x16_bf16 {R(dst,16)}, {R(KB[kb],4)}, {R(QF+4*i,4)}, 0'
    def pv(kb, i, half, src): return f'v_smfmac_f32_32x32x32_bf16 {R(OA[i],16)}, {R(VB[kb]+4*half,4)}, {R(src+8*half,8)}, v{IDX}'
    a2('s_waitcnt vmcnt(6)')
    stamp(a2,9)
    a2(qk(0,0,SA))
    for r in range(8,16): a2(f'v_mov_b32 v{SB+r}, 0')
    a2('s_mov_b32 s42, 0')
    a2('s_nop 3')
    a2.label('K_ATT_LOOP')
    for n in range(32):
        kb,i=divmod(n,8)
        sa=SA if n%2==0 else SB
        sb=SB if n%2==0 else SA
        ex=[f'v_exp_f32 v{sa+r}, v{sa+r}' for r in range(16)]
        for e in ex[0:2]: a2(e)
        pkb,pi=divmod((n-1)%32,8)
        a2(pv(pkb,pi,1,sb))
        if i==0 and 'noload' not in OPT: loadkv((kb+3)%4)
        for e in ex[2:5]: a2(e)
        nkb,ni=divmod((n+1)%32,8)
        if i==7: a2('s_waitcnt vmcnt(6)')
        a2(qk(nkb,ni,sb))
        for e in ex[5:11]: a2(e)
        a2(pv(kb,i,0,sa))
        for e in ex[11:16]: a2(e)
    a2('s_add_u32 s42, s42, 1')
    a2('s_cmp_lt_u32 s42, 4')
    a2('s_cbranch_scc1 K_ATT_LOOP')
    a2('s_nop 1')
    a2(pv(3,7,1,SB))
    a2.label('K_ATT_DONE')
    stamp(a2,10)
    a2('s_waitcnt vmcnt(0)')
    a2.vmq=[]
    a2(f'v_mov_b32 v12, {L_CNT+12}')
    gbar_wait(a2, 12, 13, 12)
    a2('s_mul_i32 s52, s36, 2304')
    a2(f'v_add_u32 v12, s52, v5')
    a2(f'v_add_u32 v13, s52, v9')
    a2(f'v_add_u32 v14, {4*9216}, v12')
    a2(f'v_add_u32 v15, {4*9216}, v13')
    for p_ in range(4):
        lab=newlab('RS')
        a2(f's_cmp_eq_u32 s36, {p_}')
        a2(f's_cbranch_scc1 {lab}')
        for i in (2*p_,2*p_+1):
            off=(i%4)*9216; b=12 if i<4 else 14
            a2(f'ds_write_b128 v{b}, {R(OA[i],4)} offset:{off}')
            a2(f'ds_write_b128 v{b}, {R(OA[i]+4,4)} offset:{off+1024}')
            a2(f'ds_write_b32 v{b+1}, v{OA[i]+8} offset:{off+2048}')
        a2.label(lab)
    for p_ in range(4):
        lab=newlab('RM')
        a2(f's_cmp_lg_u32 s36, {p_}')
        a2(f's_cbranch_scc1 {lab}')
        for t_ in range(2):
            for r in range(9): a2(f'v_mov_b32 v{32+48*t_+r}, v{OA[2*p_+t_]+r}')
        a2.label(lab)
    a2('s_and_b32 s52, s2, 7')
    a2('s_lshr_b32 s53, s2, 3')
    a2('s_and_b32 s54, s53, 3')
    a2('s_lshl_b32 s52, s52, 2')
    a2('s_add_u32 s58, s52, s54')
    a2('s_lshr_b32 s59, s53, 2')
    a2(f'v_mov_b32 v20, {L_CNT+28}')
    a2('v_mov_b32 v21, 1')
    a2('s_waitcnt lgkmcnt(0)')
    gbar_arrive(a2, 20, 21)
    gbar_wait(a2, 20, 22, 4)
    stamp(a2,12)
    a2('s_mul_i32 s53, s36, 18432')
    for k in range(3):
        a2(f's_add_u32 s52, s36, {k+1}')
        a2('s_and_b32 s52, s52, 3')
        a2('s_mul_i32 s52, s52, 2304')
        a2('s_add_u32 s52, s52, s53')
        a2(f'v_add_u32 v{14+2*k}, s52, v5')
        a2(f'v_add_u32 v{15+2*k}, s52, v9')
    for t_ in range(2):
        for k in range(3):
            b=32+48*t_+12*(k+1)
            a2(f'ds_read_b128 {R(b,4)}, v{14+2*k} offset:{9216*t_}')
            a2(f'ds_read_b128 {R(b+4,4)}, v{14+2*k} offset:{9216*t_+1024}')
            a2(f'ds_read_b32 v{b+8}, v{15+2*k} offset:{9216*t_+2048}')
    a2('s_lshl_b32 s53, s39, 3')
    a2('s_lshl_b32 s52, s36, 1')
    a2('s_add_u32 s53, s53, s52')
    a2('s_lshl_b32 s53, s53, 5')
    a2('s_add_u32 s53, s53, s38')
    a2('s_lshl_b32 s53, s53, 10')
    a2(f's_add_u32 s53, s53, {WS_O}')
    for t_ in range(2):
        b=32+48*t_
        if t_==0: a2('s_waitcnt lgkmcnt(9)')
        if t_==1: a2('s_waitcnt lgkmcnt(0)'); gbar_arrive(a2, 20, 21)
        for sl in range(1,4):
            for r in range(9): a2(f'v_add_f32 v{b+r}, v{b+r}, v{b+12*sl+r}')
        a2(f'v_rcp_f32 v{b+9}, v{b+8}')
        a2('s_nop 0')
        for r in range(8): a2(f'v_mul_f32 v{b+r}, v{b+r}, v{b+9}')
        for i in range(4): a2(f'v_cvt_pk_bf16_f32 v{b+12+i}, v{b+2*i}, v{b+2*i+1}')
        a2(f'buffer_store_dwordx4 {R(b+12,4)}, v5, {W_}, s53 offen sc1')
        if t_==0: a2(f's_add_u32 s53, s53, {32*1024}')
    ACC3=192
    for r in range(16): a2(f'v_mov_b32 v{ACC3+r}, 0')
    a2('s_lshl_b32 s52, s39, 5')
    a2('s_add_u32 s52, s52, s38')
    a2('s_lshl_b32 s52, s52, 7')
    a2(f's_add_u32 s52, s52, {F_3}')
    a2('s_waitcnt vmcnt(0)')
    signal(a2, L_CNT+8, 3, 's52', 46)
    gbar_wait(a2, 20, 22, 8)
    sWO=24
    srd(a2,sWO,pWO,512*512*2)
    wdma_voff(a2)
    a2('s_lshl_b32 s52, s36, 17')
    a2('s_lshl_b32 s53, s59, 7')
    a2('s_add_u32 s52, s52, s53')
    a2('s_lshl_b32 s53, s36, 14')
    for i in range(8):
        a2(f's_add_u32 m0, s53, {L_WO+2048*i}')
        a2('s_nop 0')
        a2(f'buffer_load_dwordx4 v10, {SR(sWO)}, s52 offen lds')
        a2(f'buffer_load_dwordx4 v11, {SR(sWO)}, s52 offen offset:1024 lds')
        a2('s_add_u32 s52, s52, 16384')
    a2.label('K_TAIL')
    a2('s_setprio 0')
    a2('v_lshlrev_b32 v8, 7, v1')
    sOUT,sB2,sX2=32,40,44
    srd(a2,sOUT,pOUT,2048*512*2); srd(a2,sB2,pB2,512*2); srd(a2,sX2,pX,2048*512*2)
    a2('s_and_b32 s50, s36, 1')
    a2('s_bfe_u32 s51, s36, 0x10001')
    a2('s_lshr_b32 s49, s36, 2')
    a2('s_lshl_b32 s60, s58, 6')
    a2('s_lshl_b32 s61, s50, 5')
    a2('s_add_u32 s60, s60, s61')
    a2('v_add_u32 v20, s60, v3')
    a2('v_lshlrev_b32 v20, 10, v20')
    a2('s_lshl_b32 s60, s59, 6')
    a2('s_lshl_b32 s61, s51, 5')
    a2('s_add_u32 s60, s60, s61')
    a2('s_lshl_b32 s61, s49, 4')
    a2('s_add_u32 s60, s60, s61')
    a2('v_lshlrev_b32 v21, 3, v4')
    a2('v_add_u32 v21, s60, v21')
    a2('v_lshlrev_b32 v21, 1, v21')
    a2('v_add_u32 v20, v20, v21')
    a2(f'buffer_load_dwordx4 v[52:55], v20, {SR(sX2)}, 0 offen')
    a2(f'buffer_load_dwordx4 v[56:59], v21, {SR(sB2)}, 0 offen')
    a2('s_lshl_b32 s52, s51, 6')
    a2(f's_lshl_b32 s53, s49, 15')
    a2(f's_add_u32 s53, s53, {L_WO}')
    tr_addr(a2, 18, 's53')
    a2('v_xor_b32 v18, s52, v18')
    a2('s_lshl_b32 s52, s50, 15')
    a2('s_lshl_b32 s53, s49, 14')
    a2('s_add_u32 s52, s52, s53')
    a2(f's_add_u32 s52, s52, {L_OX}')
    a2('v_add_u32 v19, s52, v5')
    a2('s_lshr_b32 s52, s58, 2')
    a2('s_lshl_b32 s52, s52, 12')
    a2(f's_add_u32 s52, s52, {F_3}')
    stamp(a2,13)
    a2('s_waitcnt vmcnt(0)')
    a2('s_cmp_eq_u32 s36, 0')
    a2('s_cbranch_scc0 K_S3W')
    poll(a2, 32, 'v8', 's52', 46)
    a2.label('K_S3W')
    a2.vmq=[]
    a2('s_barrier')
    stamp(a2,14)
    a2('s_cmp_eq_u32 s2, 0')
    a2('s_cbranch_scc0 K_NOE')
    a2('s_cmp_eq_u32 s36, 0')
    a2('s_cbranch_scc0 K_NOE')
    a2('v_mov_b32 v46, s64'); a2('v_mov_b32 v47, s65'); a2('v_mov_b32 v48, 0')
    a2('s_mov_b64 exec, 1')
    a2(f'buffer_store_dwordx2 v[46:47], v48, {W_}, 0 offen')
    a2('s_mov_b64 exec, -1')
    a2.label('K_NOE')
    a2('s_bfe_u32 s52, s36, 0x10001')
    a2('s_lshl_b32 s52, s52, 4')
    a2('s_lshr_b32 s53, s36, 2')
    a2('s_lshl_b32 s53, s53, 1')
    a2('s_add_u32 s52, s52, s53')
    a2('s_lshl_b32 s53, s58, 1')
    a2('s_add_u32 s53, s53, s50')
    a2('s_lshl_b32 s53, s53, 5')
    a2('s_add_u32 s53, s53, s52')
    a2('s_lshl_b32 s53, s53, 10')
    a2(f's_add_u32 s53, s53, {WS_O}')
    a2('s_lshl_b32 s54, s50, 5')
    a2('s_add_u32 s54, s54, s52')
    a2('s_lshl_b32 s54, s54, 10')
    a2(f's_add_u32 s54, s54, {L_OX}')
    for s_ in range(4):
        a2(f's_add_u32 m0, s54, {4096*s_}')
        a2(f's_add_u32 s55, s53, {4096*s_}')
        a2.vm(f'O{s_}', f'buffer_load_dwordx4 v5, {W_}, s55 offen sc1 lds')
        a2.vm(f'O{s_}', f'buffer_load_dwordx4 v5, {W_}, s55 offen offset:1024 sc1 lds')
    FX=[64,68,72,76]; FW=[80,84,88,92]
    for s_ in range(4):
        a2.wait_vm(f'O{s_}')
        a2('s_barrier')
        for k in range(4):
            ks=4*s_+k
            a2(f'ds_read_b128 {R(FX[k],4)}, v19 offset:{ks*1024}')
            a2(f'ds_read_b64_tr_b16 {R(FW[k],2)}, v18 offset:{ks*2048}')
            a2(f'ds_read_b64_tr_b16 {R(FW[k]+2,2)}, v18 offset:{ks*2048+1024}')
        for k in range(4):
            a2(f's_waitcnt lgkmcnt({3*(3-k)})')
            a2(f'v_mfma_f32_32x32x16_bf16 {R(ACC3,16)}, {R(FW[k],4)}, {R(FX[k],4)}, {R(ACC3,16)}')
    stamp(a2,15)
    a2('s_and_b32 s52, s36, 3')
    a2('s_lshl_b32 s52, s52, 12')
    a2('s_lshl_b32 s53, s49, 11')
    a2('s_add_u32 s54, s52, s53')
    a2('s_xor_b32 s53, s53, 2048')
    a2('s_add_u32 s55, s52, s53')
    a2(f's_add_u32 s54, s54, {L_EX}')
    a2(f's_add_u32 s55, s55, {L_EX}')
    a2('v_add_u32 v22, s54, v5')
    a2('v_add_u32 v23, s55, v5')
    a2('s_nop 7')
    a2('s_cmp_eq_u32 s49, 0')
    a2('s_cbranch_scc1 K_KH0')
    a2(f'ds_write_b128 v22, {R(ACC3,4)}')
    a2(f'ds_write_b128 v22, {R(ACC3+4,4)} offset:1024')
    a2('s_waitcnt lgkmcnt(0)')
    for r in range(8): a2(f'v_mov_b32 v{ACC3+r}, v{ACC3+8+r}')
    a2('s_branch K_EX')
    a2.label('K_KH0')
    a2(f'ds_write_b128 v22, {R(ACC3+8,4)}')
    a2(f'ds_write_b128 v22, {R(ACC3+12,4)} offset:1024')
    a2.label('K_EX')
    a2('s_waitcnt lgkmcnt(0)')
    a2('s_barrier')
    a2('ds_read_b128 v[64:67], v23')
    a2('ds_read_b128 v[68:71], v23 offset:1024')
    for i in range(4):
        a2(f'v_lshlrev_b32 v{72+2*i}, 16, v{52+i}')
        a2(f'v_and_b32 v{73+2*i}, 0xffff0000, v{52+i}')
        a2(f'v_lshlrev_b32 v{80+2*i}, 16, v{56+i}')
        a2(f'v_and_b32 v{81+2*i}, 0xffff0000, v{56+i}')
    for r in range(8): a2(f'v_add_f32 v{72+r}, v{72+r}, v{80+r}')
    a2('s_waitcnt lgkmcnt(0)')
    for r in range(8): a2(f'v_add_f32 v{ACC3+r}, v{ACC3+r}, v{64+r}')
    for r in range(8): a2(f'v_add_f32 v{ACC3+r}, v{ACC3+r}, v{72+r}')
    for i in range(4): a2(f'v_cvt_pk_bf16_f32 v{64+i}, v{ACC3+2*i}, v{ACC3+2*i+1}')
    a2(f'buffer_store_dwordx4 v[64:67], v20, {SR(sOUT)}, 0 offen')
    stamp_flush(a2,16)
    stamp_dbg(a2)
    a2('s_endpgm')
    a2.label('K_SLOW')
    a2('s_waitcnt vmcnt(0)')
    MX=116
    a2('s_mov_b32 s58, s40')
    for i in range(8): a2(f'v_mov_b32 v{MX+i}, 0xff800000')
    a2('s_mov_b32 s59, 0')
    a2.label('K_S1')
    a2(f'buffer_load_dwordx4 {R(KB[0],4)}, v5, {W_}, s58 offen sc1')
    a2('s_waitcnt vmcnt(0)')
    for i in range(8):
        a2(f'v_mfma_f32_32x32x16_bf16 {R(SA,16)}, {R(KB[0],4)}, {R(QF+4*i,4)}, 0')
        a2('s_nop 7'); a2('s_nop 7')
        for r in range(0,16,2): a2(f'v_max3_f32 v{MX+i}, v{MX+i}, v{SA+r}, v{SA+r+1}')
    a2('s_add_u32 s58, s58, 1024')
    a2('s_add_u32 s59, s59, 1')
    a2('s_cmp_lt_u32 s59, 16')
    a2('s_cbranch_scc1 K_S1')
    for i in range(8): a2(f'v_mov_b32 v{SA+i}, v{MX+i}')
    a2('s_nop 1')
    for i in range(8): a2(f'v_permlane32_swap_b32 v{MX+i}, v{SA+i}')
    a2('s_nop 1')
    for i in range(8): a2(f'v_max_f32 v{MX+i}, v{MX+i}, v{SA+i}')
    a2(f'v_mov_b32 v12, {L_CNT+12}')
    gbar_wait(a2, 12, 13, 12)
    a2('s_lshl_b32 s53, s36, 11')
    a2(f's_add_u32 s53, s53, {L_MX}')
    a2('v_add_u32 v42, s53, v9')
    for i in range(8): a2(f'ds_write_b32 v42, v{MX+i} offset:{256*i}')
    a2(f'v_mov_b32 v12, {L_CNT+16}')
    a2('v_mov_b32 v13, 1')
    a2('s_waitcnt lgkmcnt(0)')
    gbar_arrive(a2, 12, 13)
    gbar_wait(a2, 12, 13, 4)
    a2(f'v_add_u32 v42, {L_MX}, v9')
    for q in range(4):
        for i in range(8): a2(f'ds_read_b32 v{SA+i}, v42 offset:{2048*q+256*i}')
        a2('s_waitcnt lgkmcnt(0)')
        for i in range(8): a2(f'v_max_f32 v{MX+i}, v{MX+i}, v{SA+i}')
    a2('s_mov_b32 s58, s40'); a2('s_mov_b32 s60, s41')
    a2('s_mov_b32 s59, 0')
    a2.label('K_S2')
    a2(f'buffer_load_dwordx4 {R(KB[0],4)}, v5, {W_}, s58 offen sc1')
    a2('s_mov_b64 exec, s[50:51]')
    a2(f'buffer_load_dwordx4 {R(VB[0],4)}, v6, {W_}, s60 offen sc1')
    a2(f'buffer_load_dwordx4 {R(VB[0]+4,4)}, v6, {W_}, s60 offen offset:512 sc1')
    a2('s_mov_b64 exec, -1')
    a2('s_waitcnt vmcnt(0)')
    for i in range(8):
        a2(f'v_mfma_f32_32x32x16_bf16 {R(SA,16)}, {R(KB[0],4)}, {R(QF+4*i,4)}, 0')
        a2('s_nop 7'); a2('s_nop 7')
        for r in range(16): a2(f'v_sub_f32 v{SA+r}, v{SA+r}, v{MX+i}')
        for r in range(16): a2(f'v_exp_f32 v{SA+r}, v{SA+r}')
        a2('s_nop 1')
        a2(f'v_smfmac_f32_32x32x32_bf16 {R(OA[i],16)}, {R(VB[0],4)}, {R(SA,8)}, v{IDX}')
        a2(f'v_smfmac_f32_32x32x32_bf16 {R(OA[i],16)}, {R(VB[0]+4,4)}, {R(SA+8,8)}, v{IDX}')
        a2('s_nop 7')
    a2('s_add_u32 s58, s58, 1024')
    a2('s_add_u32 s60, s60, 1024')
    a2('s_add_u32 s59, s59, 1')
    a2('s_cmp_lt_u32 s59, 16')
    a2('s_cbranch_scc1 K_S2')
    a2('s_nop 7')
    a2('s_branch K_ATT_DONE')
    return a.text()+'\n'+g.text()+'\n'+h.text()+'\n'+a2.text()+'\nK_END:\n  s_endpgm\n'

HEADER=open('cdna_kernels/'+NAME+'.s.ref').read().split('; Override launch geometry')[0]
def assemble(body):
    n=NAME+'_kernel'
    return HEADER+f'''; @launch grid=(256,1,1) block=(512,1,1) lds={LDS_TOTAL}
.amdgcn_target "amdgcn-amd-amdhsa--gfx950"
.text
.globl {n}
.p2align 8
.type {n},@function
{n}:
{body}
.section .rodata,"a"
.p2align 6
.amdhsa_kernel {n}
  .amdhsa_next_free_vgpr 256
  .amdhsa_next_free_sgpr 102
  .amdhsa_accum_offset 256
  .amdhsa_group_segment_fixed_size 0
  .amdhsa_kernarg_size 88
  .amdhsa_user_sgpr_count 2
  .amdhsa_user_sgpr_kernarg_segment_ptr 1
  .amdhsa_system_sgpr_workgroup_id_x 1
  .amdhsa_float_denorm_mode_32 3
.end_amdhsa_kernel
'''
if __name__=='__main__':
    outp=sys.argv[1]
    if 'stamp' in sys.argv: STAMP=True
    OPT.update(sys.argv[2:])
    open(outp,'w').write(assemble(gen()))
    print('wrote',outp)
```

```python
import sys, struct
NAME='parallel_sum__softmax_full_mha__mixer_channel_mlp__prompt'

WS_F = 0
F_1, F_2, F_3 = 32768, 65536, 98304
WS_N = 256<<10
WS_Q = 1<<20
WS_K = 3<<20
WS_V = 5<<20
WS_O = 7<<20
WS_H = 9<<20
WS_T = 15<<20
WS_SIZE = 16<<20
QSCALE = 0.25*1.4426950408889634
T_LOG2 = 48.0
SPIN_MAX = 1<<20
POLLD = 1

def f2u(f): return struct.unpack('<I', struct.pack('<f', f))[0]

STAMP=False
OPT=set()
class Asm:
    def __init__(self):
        self.L=[]; self.vmq=[]
    def __call__(self, s): self.L.append('  '+s)
    def c(self, s): self.L.append('  ; '+s)
    def label(self, n): self.L.append(n+':')
    def vm(self, tag, s):
        self.vmq.append(tag); self(s)
    def wait_vm(self, tags):
        if isinstance(tags,str): tags=[tags]
        idx=[i for i,t in enumerate(self.vmq) if t in tags]
        if not idx: return
        last=max(idx); n=len(self.vmq)-1-last
        assert n<=63
        self(f's_waitcnt vmcnt({n})')
        self.vmq=self.vmq[last+1:]
    def wait_vm_all(self):
        self('s_waitcnt vmcnt(0)'); self.vmq=[]
    def text(self): return '\n'.join(self.L)

RTMAP={3:1, 9:2, 10:4}
def fstamp(a, i):
    if STAMP and 'fine' in OPT: a(f's_memtime s[{70+2*i}:{71+2*i}]')
def stamp(a, i):
    if STAMP:
        if 'span' in OPT: return
        if 'fine' in OPT: return
        if 'rt' in OPT and i in (1,2,4) : return
        a(f's_memtime s[{70+2*i}:{71+2*i}]')
        if 'rt' in OPT and i in RTMAP:
            j=RTMAP[i]; a(f's_memrealtime s[{70+2*j}:{71+2*j}]')
def stamp_flush(a, n):
    if not STAMP: return
    a('s_waitcnt vmcnt(0) lgkmcnt(0)')
    a('s_lshl_b32 s69, s2, 3')
    a('s_add_u32 s69, s69, s36')
    a('s_lshl_b32 s69, s69, 6')
    a(f's_add_u32 s69, s69, {WS_T}')
    a('v_mov_b32 v2, 0')
    for i in range(n):
        a(f'v_mov_b32 v3, s{70+2*i}')
        a('s_mov_b64 exec, 1')
        a(f'buffer_store_dword v3, v2, s[28:31], s69 offen offset:{4*i}')
        a('s_mov_b64 exec, -1')
        a('s_nop 1')

def stamp_dbg(a):
    if not (STAMP and 'dbg' in OPT): return
    lab=newlab('DBG')
    a('s_cmp_eq_u32 s2, 37')
    a(f's_cbranch_scc0 {lab}')
    a('s_cmp_eq_u32 s36, 0')
    a(f's_cbranch_scc0 {lab}')
    a('s_load_dwordx2 s[66:67], s[0:1], 72')
    a('s_memrealtime s[92:93]')
    a('s_memtime s[100:101]')
    a('s_waitcnt lgkmcnt(0)')
    a('s_sub_u32 s92, s92, s82')
    a('s_add_u32 s92, s92, s70')
    if 'rt' in OPT:
        for j in (1,2,4):
            a(f's_sub_u32 s{70+2*j}, s{70+2*j}, s82'); a(f's_add_u32 s{70+2*j}, s{70+2*j}, s70')
    a('s_mov_b32 s82, s70')
    a('s_mov_b32 s40, s66'); a('s_mov_b32 s41, s67'); a('s_mov_b32 s42, 256'); a('s_mov_b32 s43, 0x00020000')
    a('v_mov_b32 v2, 0')
    a('s_mov_b64 exec, 1')
    for i in range(16):
        a(f's_sub_u32 s3, s{70+2*i}, s70')
        a('v_mov_b32 v3, s3')
        a(f'buffer_store_dword v3, v2, s[40:43], 0 offen offset:{4*i}')
        a('s_nop 1')
    a('s_mov_b64 exec, -1')
    a.label(lab)

def R(a,n=1): return f'v{a}' if n==1 else f'v[{a}:{a+n-1}]'
def SR(a): return f's[{a}:{a+3}]'
def srd(a, d, ptr, size):
    a(f's_mov_b32 s{d}, s{ptr}')
    a(f's_mov_b32 s{d+1}, s{ptr+1}')
    a(f's_mov_b32 s{d+2}, {size}')
    a(f's_mov_b32 s{d+3}, 0x00020000')
def pk(op, d, a_, b_, c_=None, bsel=None, csel=None, neg=None):
    ops=[a_,b_]+([c_] if c_ is not None else [])
    n=len(ops)
    txt=[ (f'v[{o}:{o+1}]' if isinstance(o,int) else o) for o in ops]
    hi=[1]*n
    if bsel=='lo': hi[1]=0
    if csel=='lo': hi[2]=0
    s_=f'v_pk_{op}_f32 v[{d}:{d+1}], '+', '.join(txt)
    if hi!=[1]*n: s_+=' op_sel_hi:['+','.join(map(str,hi))+']'
    if neg: s_+=' '+neg
    return s_

pX,pWQ,pWO,pW1,pB1,pW2,pB2,pOUT,pWS = 4,6,8,12,14,16,18,20,22
sWS=28
W_=SR(sWS)

SLOT=28672; XS=16384; WST=12288
W1_SPARE=5*SLOT
SCR=W1_SPARE+WST
L_A=SCR; L_MU=SCR+512; L_CS=SCR+1024; L_CS1=SCR+1536; L_B1=SCR+2048; L_A2=SCR+2560; L_A2M=SCR+3072
L_CNT=SCR+4096
LDS_TOTAL=163840
W1_ADDR=[W1_SPARE, 3*SLOT, 3*SLOT+WST, 4*SLOT, 4*SLOT+WST, 0, WST, SLOT]
A_SLOT=[0,1,2,3,4,0,1,2]
L_RED=0
L_RING=73728
RINGSZ=20480; WD=10; XD=18
L_MX=0
G2CNT=32; G2TGT=4
L_WO=0
L_OX=65536
L_EX=131072

uid=[0]
def newlab(p):
    uid[0]+=1; return f'{p}_{uid[0]}'

def poll(a, nl, voff, soff, vt):
    PD=POLLD
    lab=newlab('POLL'); done=newlab('POLLD')
    mask=(1<<nl)-1
    a(f's_mov_b32 s66, {mask:#x}')
    a('s_mov_b32 s67, 0')
    a(f's_mov_b32 s68, {SPIN_MAX}')
    a('s_waitcnt vmcnt(0)')
    a('s_mov_b64 exec, s[66:67]')
    for k in range(PD-1):
        a(f'buffer_load_dwordx2 v[{vt+2*k}:{vt+2*k+1}], {voff}, {W_}, {soff} offen sc1')
        if PD>1: a('s_sleep 2')
    a.label(lab)
    for k in range(PD):
        kn=(k+PD-1)%PD
        a(f'buffer_load_dwordx2 v[{vt+2*kn}:{vt+2*kn+1}], {voff}, {W_}, {soff} offen sc1')
        a(f's_waitcnt vmcnt({PD-1})')
        a(f'v_cmp_eq_u64 vcc, s[64:65], v[{vt+2*k}:{vt+2*k+1}]')
        a('s_sub_u32 s68, s68, 1')
        a('s_cmp_eq_u32 s68, 0')
        a(f's_cbranch_scc1 {done}')
        a('s_cmp_eq_u64 vcc, s[66:67]')
        a(f's_cbranch_scc1 {done}')
        a('s_sleep 2')
    a(f's_branch {lab}')
    a.label(done)
    a('s_mov_b64 exec, -1')
    a.vmq=[]

def poll_wg(a, nl, voff, soff, vt, leader, lds_addr):
    oth=newlab('PWO'); done=newlab('PWD')
    va=vt+2*POLLD
    a(f'v_mov_b32 v{va}, {lds_addr}')
    a(f's_cmp_eq_u32 s36, {leader}')
    a(f's_cbranch_scc0 {oth}')
    poll(a, nl, voff, soff, vt)
    a(f'v_mov_b32 v{va+1}, 1')
    a('s_mov_b64 exec, 1')
    a(f'ds_write_b32 v{va}, v{va+1}')
    a('s_mov_b64 exec, -1')
    a(f's_branch {done}')
    a.label(oth)
    lab=newlab('PWL')
    a.label(lab)
    a(f'ds_read_b32 v{va+1}, v{va}')
    a('s_waitcnt lgkmcnt(0)')
    a(f'v_readfirstlane_b32 s66, v{va+1}')
    a('s_nop 0')
    a('s_cmp_eq_u32 s66, 0')
    a(f's_cbranch_scc0 {done}')
    a('s_sleep 1')
    a(f's_branch {lab}')
    a.label(done)
    a.vmq=[]

def signal(a, cnt_addr, last, flag_soff, vt):
    skip=newlab('SIG')
    a(f'v_mov_b32 v{vt}, {cnt_addr}')
    a(f'v_mov_b32 v{vt+1}, 1')
    a('s_mov_b64 exec, 1')
    a(f'ds_add_rtn_u32 v{vt+2}, v{vt}, v{vt+1}')
    a('s_waitcnt lgkmcnt(0)')
    a(f'v_readfirstlane_b32 s66, v{vt+2}')
    a(f'v_mov_b32 v{vt}, s64')
    a(f'v_mov_b32 v{vt+1}, s65')
    a(f'v_mov_b32 v{vt+2}, 0')
    a(f's_cmp_eq_u32 s66, {last}')
    a(f's_cbranch_scc0 {skip}')
    a(f'buffer_store_dwordx2 v[{vt}:{vt+1}], v{vt+2}, {W_}, {flag_soff} offen sc1')
    a.label(skip)
    a('s_mov_b64 exec, -1')

def gbar_arrive(a, vaddr, vone):
    a('s_mov_b64 exec, 1')
    a(f'ds_add_u32 v{vaddr}, v{vone}')
    a('s_mov_b64 exec, -1')
def gbar_wait(a, vaddr, vt, target):
    lab=newlab('GB')
    a.label(lab)
    a(f'ds_read_b32 v{vt}, v{vaddr}')
    a('s_waitcnt lgkmcnt(0)')
    a(f'v_readfirstlane_b32 s3, v{vt}')
    a('s_nop 0')
    a(f's_cmp_ge_u32 s3, {target}')
    a(f's_cbranch_scc0 {lab}')

def gen():
    a=Asm()
    a('s_cmp_ge_u32 s2, 256')
    a('s_cbranch_scc1 K_END')
    stamp(a,0)
    if STAMP and ('dbg' in OPT or 'rt' in OPT or 'span' in OPT): a('s_memrealtime s[82:83]')
    a('s_load_dwordx16 s[4:19], s[0:1], 0')
    a('s_load_dwordx2 s[20:21], s[0:1], 64')
    a('s_load_dwordx2 s[22:23], s[0:1], 80')
    a('v_and_b32 v1, 63, v0')
    a('v_lshrrev_b32 v2, 6, v0')
    a('s_and_b32 s48, s2, 7')
    a('v_readfirstlane_b32 s36, v2')
    a('s_lshr_b32 s49, s2, 3')
    a('s_and_b32 s50, s48, 1')
    a('s_lshr_b32 s51, s48, 1')
    a('s_lshl_b32 s50, s50, 3')
    a('s_and_b32 s52, s49, 7')
    a('s_add_u32 s38, s50, s52')
    a('s_lshl_b32 s51, s51, 2')
    a('s_lshr_b32 s52, s49, 3')
    a('s_add_u32 s39, s51, s52')
    a('s_and_b32 s37, s36, 3')
    a('v_and_b32 v3, 31, v1')
    a('v_lshrrev_b32 v4, 5, v1')
    a('s_cmp_ge_u32 s36, 4')
    a('s_cbranch_scc1 K_G1')

    def common_lds_addr(e):
        e('v_bfe_u32 v5, v1, 1, 3')
        e('v_xor_b32 v5, v5, v4')
        e('v_lshlrev_b32 v5, 4, v5')
        e('s_lshl_b32 s3, s37, 12')
        e('v_lshlrev_b32 v6, 7, v3')
        e('v_add3_u32 v12, v6, v5, s3')
        e('v_xor_b32 v13, 32, v12')
        e('v_xor_b32 v14, 64, v12')
        e('v_xor_b32 v15, 0x60, v12')
        e('v_lshlrev_b32 v6, 3, v4')
        e('v_bfe_u32 v7, v1, 2, 2')
        e('v_add_u32 v6, v6, v7')
        e('v_mul_u32_u24 v6, 192, v6')
        e('v_bfe_u32 v7, v1, 4, 1')
        e('v_lshlrev_b32 v7, 5, v7')
        e('v_and_b32 v8, 3, v1')
        e('v_lshlrev_b32 v8, 3, v8')
        e('v_add3_u32 v16, v6, v7, v8')

    g=Asm()
    accQ,accK,accV=64,80,96
    FS0=[128,144,160,176]
    g('s_getpc_b64 s[62:63]')
    g.label('PF_0')
    g('s_lshr_b32 s60, s2, 3')
    g('s_and_b32 s60, s60, 7')
    g('s_lshl_b32 s60, s60, 2')
    g('s_add_u32 s60, s60, s37')
    g('s_lshl_b32 s60, s60, 10')
    g('v_lshlrev_b32 v9, 4, v1')
    g('v_add_u32 v9, s60, v9')
    g('v_min_u32 v10, K_END-PF_0-16, v9')
    g('global_load_dwordx4 v[200:203], v10, s[62:63]')
    g('v_add_u32 v9, 0x8000, v9')
    g('v_min_u32 v10, K_END-PF_0-16, v9')
    g('global_load_dwordx4 v[204:207], v10, s[62:63]')
    common_lds_addr(g)
    for r in range(64,112): g(f'v_mov_b32 v{r}, 0')
    g(f'v_add_u32 v17, {XS}, v16')
    g(f's_mov_b32 s56, {(-4*SLOT)&0xffffffff:#x}')
    g(f's_mov_b32 s57, {SLOT}')
    g(f'v_lshlrev_b32 v18, 2, v1')
    g(f'v_add_u32 v18, {L_CNT}, v18')
    g('v_mov_b32 v19, 0')
    g('s_mov_b64 exec, 0xffff')
    g('ds_write_b32 v18, v19')
    g('s_mov_b64 exec, -1')
    g('s_lshl_b32 s48, s37, 7')
    g('v_lshlrev_b32 v20, 2, v3')
    g('v_add_u32 v20, s48, v20')
    g(f'v_add_u32 v20, {L_A}, v20')
    g('v_lshlrev_b32 v23, 4, v4')
    g(f'v_add_u32 v24, {L_CS}, v23')
    g('v_lshlrev_b32 v25, 2, v3')
    g(f'v_add_u32 v25, {L_CS+64*4}, v25')
    g('v_add_u32 v27, s48, v23')
    g(f'v_add_u32 v27, {L_A}, v27')
    g('s_lshl_b32 s49, s38, 2')
    g('s_add_u32 s49, s49, s37')
    g('s_lshl_b32 s50, s49, 10')
    g('s_lshl_b32 s51, s39, 17')
    g('s_add_u32 s50, s50, s51')
    g(f's_add_u32 s52, s50, {WS_K}')
    g(f's_add_u32 s53, s50, {WS_K+65536}')
    g(f's_add_u32 s54, s50, {WS_V}')
    g(f's_add_u32 s51, s50, {WS_Q+65536}')
    g(f's_add_u32 s50, s50, {WS_Q}')
    g('v_lshlrev_b32 v28, 4, v1')
    g('v_and_b32 v29, 0x13, v3')
    g('v_bfe_u32 v30, v3, 2, 1')
    g('v_lshlrev_b32 v30, 3, v30')
    g('v_bfe_u32 v31, v3, 3, 1')
    g('v_lshlrev_b32 v31, 2, v31')
    g('v_or3_b32 v29, v29, v30, v31')
    g('v_lshlrev_b32 v30, 5, v4')
    g('v_add_u32 v29, v29, v30')
    g('v_lshlrev_b32 v29, 4, v29')
    g('v_bfe_u32 v30, v3, 4, 1')
    g('v_lshlrev_b32 v30, 16, v30')
    g('v_lshlrev_b32 v31, 8, v4')
    g('v_and_b32 v32, 15, v3')
    g('v_lshlrev_b32 v32, 4, v32')
    g('v_add3_u32 v30, v30, v31, v32')
    g('s_mul_i32 s55, s39, 1536')
    g('s_lshl_b32 s58, s49, 2')
    g('s_add_u32 s55, s55, s58')
    g(f's_add_u32 s55, s55, {WS_N}')
    g('v_lshlrev_b32 v31, 8, v4')
    g('s_waitcnt lgkmcnt(0)')
    srd(g,sWS,pWS,WS_SIZE)
    g(f's_load_dwordx2 s[64:65], s[{pWS}:{pWS+1}], 0')
    if 'tlb' in OPT:
        g('v_mov_b32 v40, 0')
        g('v_mov_b32 v41, 0')
        g('s_mov_b64 exec, 1')
        for sreg in ('s50','s52','s54'):
            g(f'buffer_store_dword v40, v41, {W_}, {sreg} offen sc1')
        g(f'buffer_store_dword v40, v41, {W_}, s55 offen sc1')
        g('s_mov_b64 exec, -1')
        g('v_lshlrev_b32 v41, 21, v1')
        g(f's_mov_b32 s40, s{pW2}'); g(f's_mov_b32 s41, s{pW2+1}'); g(f's_mov_b32 s42, {1376*512*2}'); g('s_mov_b32 s43, 0x00020000')
        g('buffer_load_dword v208, v41, s[40:43], 0 offen')
        g(f's_mov_b32 s44, s{pWO}'); g(f's_mov_b32 s45, s{pWO+1}'); g(f's_mov_b32 s46, {512*512*2}'); g('s_mov_b32 s47, 0x00020000')
        g('buffer_load_dword v209, v41, s[44:47], 0 offen')
        g(f's_mov_b32 s40, s{pOUT}'); g(f's_mov_b32 s41, s{pOUT+1}'); g(f's_mov_b32 s42, {2048*512*2}')
        g('buffer_load_dword v210, v41, s[40:43], 0 offen')
    def readlist(set_, ks):
        L=[f'ds_read_b128 {R(set_,4)}, v{12+ks}']
        for t in range(3):
            for e in range(2):
                L.append(f'ds_read_b64_tr_b16 {R(set_+4+4*t+2*e,2)}, v17 offset:{ks*3072+e*768+t*64}')
        return L
    def mfmalist(set_):
        return [f'v_mfma_f32_32x32x16_bf16 {R(accQ,16)}, {R(set_+4,4)}, {R(set_,4)}, {R(accQ,16)}',
                f'v_mfma_f32_32x32x16_bf16 {R(accK,16)}, {R(set_+8,4)}, {R(set_,4)}, {R(accK,16)}',
                f'v_mfma_f32_32x32x16_bf16 {R(accV,16)}, {R(set_,4)}, {R(set_+12,4)}, {R(accV,16)}']
    g('s_waitcnt lgkmcnt(0)')
    g('s_add_u32 s64, s64, 0x7f4a7c15')
    g('s_addc_u32 s65, s65, 0x9e3779b9')
    stamp(g,1)
    for st in range(8):
        if st==5: fstamp(g,0)
        g('s_barrier')
        if st==5: fstamp(g,1)
        if st==6: fstamp(g,10)
        if st==0: stamp(g,2)
        for ks in range(4):
            rl=readlist(FS0[ks],ks); ml=mfmalist(FS0[(ks+2)%4])
            if st==5: fstamp(g,2+2*ks)
            if st==0 and ks<2:
                for r_ in rl: g(r_)
                continue
            g('s_waitcnt lgkmcnt(7)')
            if st==5: fstamp(g,3+2*ks)
            g(ml[0]); g(rl[0]); g(rl[1]); g(rl[2])
            g(ml[1]); g(rl[3]); g(rl[4])
            if 'noq' not in OPT: g(ml[2])
            g(rl[5]); g(rl[6])
        if st<7:
            sr='s57' if A_SLOT[st+1]>A_SLOT[st] else 's56'
            for r in (12,13,14,15,17): g(f'v_add_u32 v{r}, {sr}, v{r}')
    g('s_waitcnt lgkmcnt(7)')
    for m in mfmalist(FS0[2]): g(m)
    g('s_waitcnt lgkmcnt(0)')
    for m in mfmalist(FS0[3]): g(m)
    stamp(g,3)
    g('s_barrier')
    g('s_setprio 3')
    CSQ=128; CSK=144; AV=160; MV=176
    g('ds_read_b32 v21, v20')
    g(f'ds_read_b32 v22, v20 offset:{L_MU-L_A}')
    for gg in range(4): g(f'ds_read_b128 {R(CSK+4*gg,4)}, v24 offset:{(32+8*gg)*4}')
    g('ds_read_b32 v26, v25')
    for gg in range(4): g(f'ds_read_b128 {R(MV+4*gg,4)}, v27 offset:{8*gg*4+L_MU-L_A}')
    for gg in range(4): g(f'ds_read_b128 {R(AV+4*gg,4)}, v27 offset:{8*gg*4}')
    g('s_waitcnt lgkmcnt(13)')
    g('v_mul_f32 v38, v21, v22')
    g(f'v_mul_f32 v34, {f2u(QSCALE):#x}, v21')
    g('v_sub_f32 v38, 0, v38')
    g(f'v_mul_f32 v36, {f2u(QSCALE):#x}, v38')
    g('s_waitcnt lgkmcnt(9)')
    for r in range(16): g(f'v_mul_f32 v{CSK+r}, v38, v{CSK+r}')
    for r in range(16): g(f'v_fmac_f32 v{CSK+r}, v21, v{accK+r}')
    for i in range(8): g(f'v_cvt_pk_bf16_f32 v{accK+i}, v{CSK+2*i}, v{CSK+2*i+1}')
    g(f'buffer_store_dwordx4 {R(accK,4)}, v29, {W_}, s52 offen sc1')
    g(f'buffer_store_dwordx4 {R(accK+4,4)}, v29, {W_}, s53 offen sc1')
    for gg in range(4): g(f'ds_read_b128 {R(CSQ+4*gg,4)}, v24 offset:{(8*gg)*4}')
    g('s_waitcnt lgkmcnt(8)')
    g('v_sub_f32 v26, 0, v26')
    g('s_waitcnt lgkmcnt(4)')
    for r in range(16): g(f'v_fmac_f32 v{accV+r}, v26, v{MV+r}')
    for r in range(16): g(f'v_mul_f32 v{accV+r}, v{accV+r}, v{AV+r}')
    for i in range(8): g(f'v_cvt_pk_bf16_f32 v{AV+i}, v{accV+2*i}, v{accV+2*i+1}')
    g(f'buffer_store_dwordx4 {R(AV,4)}, v30, {W_}, s54 offen sc1')
    g(f'buffer_store_dwordx4 {R(AV+4,4)}, v30, {W_}, s54 offen offset:512 sc1')
    g('s_waitcnt lgkmcnt(0)')
    for r in range(16): g(f'v_mul_f32 v{CSQ+r}, v36, v{CSQ+r}')
    for r in range(16): g(f'v_fmac_f32 v{CSQ+r}, v34, v{accQ+r}')
    for i in range(8): g(f'v_cvt_pk_bf16_f32 v{accQ+i}, v{CSQ+2*i}, v{CSQ+2*i+1}')
    g(f'buffer_store_dwordx4 {R(accQ,4)}, v28, {W_}, s50 offen sc1')
    g(f'buffer_store_dwordx4 {R(accQ+4,4)}, v28, {W_}, s51 offen sc1')
    for (b,src) in ((42,CSK),(46,CSQ)):
        g(f'v_mul_f32 v{b}, v{src}, v{src}'); g(f'v_mul_f32 v{b+1}, v{src+8}, v{src+8}')
        for i in range(1,8):
            g(f'v_fmac_f32 v{b}, v{src+i}, v{src+i}'); g(f'v_fmac_f32 v{b+1}, v{src+8+i}, v{src+8+i}')
    g(f'v_max3_f32 v38, |v{accV}|, |v{accV+1}|, |v{accV+2}|')
    g('v_max_f32 v34, v42, v43')
    g('v_max_f32 v35, v46, v47')
    for r in range(3,15,2): g(f'v_max3_f32 v38, v38, |v{accV+r}|, |v{accV+r+1}|')
    g(f'v_max_f32 v36, v38, |v{accV+15}|')
    g('s_nop 1')
    for sh in (1,2,4,8):
        for r in (34,35,36): g(f'v_max_f32_dpp v{r}, v{r}, v{r} row_shr:{sh} row_mask:0xf bank_mask:0xf')
    for r in (34,35,36): g(f'v_max_f32_dpp v{r}, v{r}, v{r} row_bcast:15 row_mask:0xa bank_mask:0xf')
    g('s_nop 1')
    g('s_mov_b32 s66, 0x80000000')
    g('s_mov_b32 s67, 0x80000000')
    g('s_mov_b64 exec, s[66:67]')
    g(f'buffer_store_dword v34, v31, {W_}, s55 offen sc1')
    g(f'buffer_store_dword v35, v31, {W_}, s55 offen offset:512 sc1')
    g(f'buffer_store_dword v36, v31, {W_}, s55 offen offset:1024 sc1')
    g('s_mov_b64 exec, -1')
    stamp(g,4)
    g('s_setprio 0')
    g('s_waitcnt vmcnt(0)')
    g('s_lshl_b32 s48, s39, 4')
    g('s_add_u32 s48, s48, s38')
    g('s_lshl_b32 s48, s48, 7')
    g(f's_add_u32 s48, s48, {F_1}')
    signal(g, L_CNT, 3, 's48', 40)
    stamp(g,5)
    g('s_branch K_ATT')

    h=Asm()
    h.label('K_G1')
    h('s_setprio 2')
    sX,sWQ,sW1,sB1=24,32,40,44
    XF=128
    h('s_mul_i32 s50, s39, 3')
    h('s_lshl_b32 s51, s39, 1')
    h('s_add_u32 s51, s51, 11')
    h('s_cmp_lt_u32 s39, 11')
    h('s_cselect_b32 s48, s50, s51')
    h('s_cselect_b32 s49, 3, 2')
    h('v_lshrrev_b32 v20, 3, v1')
    h('v_and_b32 v21, 7, v1')
    h('v_lshrrev_b32 v22, 4, v1')
    h('v_xor_b32 v21, v21, v22')
    h('v_lshlrev_b32 v20, 10, v20')
    h('v_lshlrev_b32 v22, 4, v21')
    h('v_add_u32 v2, v20, v22')
    h('v_xor_b32 v22, 64, v22')
    h('v_add_u32 v22, 7168, v22')
    h('v_add_u32 v18, v20, v22')
    h('v_add_u32 v19, 14336, v2')
    h('v_add_u32 v20, 14336, v18')
    VX=[2,18,19,20]
    VW=[21,22,23]; VW1=[24,25,26]
    for p in range(3):
        h(f'v_add_u32 v27, {64*p}, v1')
        h('v_mul_u32_u24 v28, 43691, v27')
        h('v_lshrrev_b32 v28, 19, v28')
        h('v_mul_u32_u24 v29, 12, v28')
        h('v_sub_u32 v29, v27, v29')
        h('v_lshrrev_b32 v30, 2, v29')
        h('v_lshlrev_b32 v30, 10, v30')
        h('v_and_b32 v31, 3, v29')
        h('v_lshlrev_b32 v31, 4, v31')
        h('v_mul_u32_u24 v32, 3072, v28')
        h(f'v_add3_u32 v{VW[p]}, v32, v30, v31')
        if p: h(f'v_subrev_u32 v{VW[p]}, {1024*p}, v{VW[p]}')
        h('v_mul_u32_u24 v32, 2752, v28')
        h('v_lshlrev_b32 v31, 4, v29')
        h(f'v_add_u32 v{VW1[p]}, v32, v31')
        if p: h(f'v_subrev_u32 v{VW1[p]}, {1024*p}, v{VW1[p]}')
    h('s_lshl_b32 s50, s38, 17')
    h('s_lshl_b32 s51, s37, 15')
    h('s_add_u32 s50, s50, s51')
    h('s_mul_i32 s51, s37, 49152')
    h('s_lshl_b32 s52, s39, 6')
    h('s_add_u32 s51, s51, s52')
    h('s_mul_i32 s52, s37, 44032')
    h('s_lshl_b32 s53, s48, 6')
    h('s_add_u32 s52, s52, s53')
    h('s_lshl_b32 s53, s37, 12')
    h('s_mul_i32 s54, s37, 3072')
    h('s_lshl_b32 s56, s48, 6')
    h('s_and_b32 s58, s39, 3')
    h('s_lshl_b32 s58, s58, 1')
    h('s_add_u32 s58, s58, s38')
    h('s_and_b32 s58, s58, 7')
    h('s_waitcnt lgkmcnt(0)')
    srd(h,sX,pX,2048*512*2); srd(h,sWQ,pWQ,512*1536*2)
    def dmaA(st):
        slot=A_SLOT[st]*SLOT; L=[]
        L.append((f's_add_u32 s61, s58, {st}',None))
        L.append(('s_and_b32 s61, s61, 7',None))
        L.append((f's_add_u32 m0, s53, {slot}',None))
        L.append(('s_lshl_b32 s55, s61, 7',None))
        L.append(('s_add_u32 s55, s55, s50',None))
        for i in range(4):
            L.append((f'buffer_load_dwordx4 v{VX[i]}, {SR(sX)}, s55 offen offset:{1024*i} lds',f'A{st}'))
        L.append((f's_add_u32 m0, s54, {slot+XS}',None))
        L.append((f's_mul_i32 s55, s61, {64*3072}',None))
        L.append(('s_add_u32 s55, s55, s51',None))
        for p in range(3):
            L.append((f'buffer_load_dwordx4 v{VW[p]}, {SR(sWQ)}, s55 offen offset:{1024*p} lds',f'A{st}'))
        return L
    def dmaB(st):
        L=[]
        L.append((f's_add_u32 s61, s58, {st}',None))
        L.append(('s_and_b32 s61, s61, 7',None))
        L.append((f's_add_u32 m0, s54, {W1_ADDR[st]}',None))
        L.append((f's_mul_i32 s55, s61, {64*2752}',None))
        L.append(('s_add_u32 s55, s55, s52',None))
        for p in range(3):
            L.append((f'buffer_load_dwordx4 v{VW1[p]}, {SR(sW1)}, s55 offen offset:{1024*p} lds',f'B{st}'))
        return L
    def emit(e, dmas):
        for (ins,tag) in dmas:
            if tag: e.vm(tag,ins)
            else: e(ins)
    stamp(h,1)
    NINIT=3
    for o_ in OPT:
        if o_.startswith('NI='): NINIT=int(o_[3:])
    for st in range(NINIT): emit(h,dmaA(st))
    stamp(h,2)
    srd(h,sW1,pW1,512*1376*2); srd(h,sWS,pWS,WS_SIZE); srd(h,sB1,pB1,1376*2)
    h(f's_load_dwordx2 s[64:65], s[{pWS}:{pWS+1}], 0')
    common_lds_addr(h)
    h('v_lshlrev_b32 v27, 2, v1')
    h.vm('b1', f'buffer_load_dword v31, v27, {SR(sB1)}, s56 offen')
    h('s_cmp_eq_u32 s37, 3')
    h('s_cselect_b32 s57, 0, s37')
    h('s_lshl_b32 s3, s57, 6')
    h(f's_add_u32 s3, s3, {XS}')
    h('v_add_u32 v17, s3, v16')
    PAT=112; ONES=8; SUMA=[116,120]; GRA=[124,104]; CSA=108
    h('v_and_b32 v27, 15, v1')
    h('v_bfe_u32 v28, v1, 4, 1')
    h('v_cmp_eq_u32 vcc, v27, v28')
    h('v_mov_b32 v29, 0x3f803f80')
    h('s_nop 0')
    h(f'v_cndmask_b32 v{PAT}, 0, v29, vcc')
    for r in range(1,4): h(f'v_mov_b32 v{PAT+r}, v{PAT}')
    for r in range(4): h(f'v_mov_b32 v{ONES+r}, v29')
    for b in SUMA+GRA+[CSA]:
        for r in range(4): h(f'v_mov_b32 v{b+r}, 0')
    h('v_lshrrev_b32 v28, 4, v1')
    h('v_bfe_u32 v29, v1, 1, 3')
    h('v_xor_b32 v28, v28, v29')
    h('v_lshlrev_b32 v28, 4, v28')
    h('v_lshlrev_b32 v27, 7, v27')
    h('s_lshl_b32 s3, s37, 12')
    h('v_add3_u32 v5, v27, v28, s3')
    h('v_xor_b32 v6, 64, v5')
    TMP=40; XS16=56
    h('s_waitcnt lgkmcnt(0)')
    h('s_add_u32 s64, s64, 0x7f4a7c15')
    h('s_addc_u32 s65, s65, 0x9e3779b9')
    h(f's_mov_b32 s59, {SLOT}')
    h(f's_mov_b32 s60, {(-4*SLOT)&0xffffffff:#x}')
    if NINIT==3: sched={0:dmaA(3)+dmaA(4), 1:dmaB(0), 2:dmaA(5), 3:dmaA(6), 4:dmaA(7), 5:dmaB(1)+dmaB(2), 6:dmaB(3)+dmaB(4), 7:dmaB(5)+dmaB(6)}
    elif NINIT==2: sched={0:dmaA(2)+dmaA(3), 1:dmaA(4)+dmaB(0), 2:dmaA(5), 3:dmaA(6), 4:dmaA(7), 5:dmaB(1)+dmaB(2), 6:dmaB(3)+dmaB(4), 7:dmaB(5)+dmaB(6)}
    else: sched={0:dmaA(1)+dmaA(2), 1:dmaA(3)+dmaA(4), 2:dmaA(5)+dmaB(0), 3:dmaA(6), 4:dmaA(7), 5:dmaB(1)+dmaB(2), 6:dmaB(3)+dmaB(4), 7:dmaB(5)+dmaB(6)}
    for st in range(8):
        if st==5: fstamp(h,0)
        h.wait_vm(f'A{st}')
        if st==5: fstamp(h,1)
        h('s_barrier')
        if st==5: fstamp(h,2)
        if st==0: stamp(h,3)
        dm=sched[st]
        for u in range(2):
            for kk in range(2):
                h(f'ds_read_b128 {R(XS16+8*u+4*kk,4)}, v{5+kk} offset:{2048*u}')
        for ks in range(4):
            for e in range(2):
                h(f'ds_read_b64_tr_b16 {R(TMP+4*ks+2*e,2)}, v17 offset:{ks*3072+e*768}')
        if st==5: fstamp(h,3)
        k=0; nv=0
        while nv<2 and k<len(dm):
            if dm[k][1]: h.vm(dm[k][1],dm[k][0]); nv+=1
            else: h(dm[k][0])
            k+=1
        val=[]
        for u in range(2):
            for kk in range(2):
                x=XS16+8*u+4*kk
                if 'nostat' not in OPT: val.append(f'v_mfma_f32_16x16x32_bf16 {R(SUMA[u],4)}, {R(ONES,4)}, {R(x,4)}, {R(SUMA[u],4)}')
                val.append(f'ds_read_b128 {R(XF+16*st+4*(2*u+kk),4)}, v{12+2*u+kk}')
                if 'nostat' not in OPT: val.append(f'v_mfma_f32_16x16x32_bf16 {R(GRA[u],4)}, {R(x,4)}, {R(x,4)}, {R(GRA[u],4)}')
        val.append('s_waitcnt lgkmcnt(4)')
        for ks in range(4):
            if 'nostat' not in OPT: val.append(f'v_mfma_f32_16x16x32_bf16 {R(CSA,4)}, {R(TMP+4*ks,4)}, {R(PAT,4)}, {R(CSA,4)}')
        if st<7:
            d=(A_SLOT[st+1]-A_SLOT[st])*SLOT
            sr='s59' if d==SLOT else 's60'
            for r in (12,13,14,15,17,5,6): val.append(f'v_add_u32 v{r}, {sr}, v{r}')
        if st==5: fstamp(h,4)
        h('s_waitcnt lgkmcnt(8)')
        if st==5: fstamp(h,5)
        rest=dm[k:]; vi=0; fs_=6
        for (ins,tag) in rest:
            if tag:
                for _ in range(2):
                    if vi<len(val): h(val[vi]); vi+=1
                h.vm(tag,ins)
                if st==5: fstamp(h,fs_); fs_+=1
            else: h(ins)
        while vi<len(val):
            h(val[vi]); vi+=1
            if st==5 and val[vi-1].startswith('s_waitcnt'): fstamp(h,fs_); fs_+=1
        if st==5: fstamp(h,fs_); fs_+=1
        if st==6: fstamp(h,15)
    h('s_waitcnt lgkmcnt(0)')
    h('v_and_b32 v27, 3, v1')
    h('v_cmp_eq_u32 vcc, 1, v27')
    h('v_cmp_eq_u32 s[66:67], 2, v27')
    h('v_cmp_eq_u32 s[68:69], 3, v27')
    h('v_and_b32 v28, 15, v1')
    h('v_lshlrev_b32 v28, 2, v28')
    h('s_lshl_b32 s3, s37, 7')
    h('v_add_u32 v28, s3, v28')
    h(f'v_add_u32 v28, {L_A}, v28')
    for u in range(2):
        gr=GRA[u]; q=32+2*u
        h(f'v_cndmask_b32 v{q}, v{gr}, v{gr+1}, vcc')
        h(f'v_cndmask_b32 v{q}, v{q}, v{gr+2}, s[66:67]')
        h(f'v_cndmask_b32 v{q}, v{q}, v{gr+3}, s[68:69]')
    for u in range(2):
        q=32+2*u; m=SUMA[u]
        h(f'v_mul_f32 v{m}, {f2u(1/512):#x}, v{m}')
        h(f'v_mul_f32 v{q}, {f2u(1/512):#x}, v{q}')
    for u in range(2):
        q=32+2*u; m=SUMA[u]
        h(f'v_fma_f32 v{q}, -v{m}, v{m}, v{q}')
        h(f'v_max_f32 v{q}, 0, v{q}')
        h(f'v_add_f32 v{q+1}, {f2u(1e-5):#x}, v{q}')
    for u in range(2):
        q=32+2*u
        h(f'v_rsq_f32 v{q+1}, v{q+1}')
    h('s_nop 0')
    for u in range(2):
        q=32+2*u; m=SUMA[u]
        h(f'v_mul_f32 v{m+1}, v{q+1}, v{q+1}')
        h(f'v_mul_f32 v{m+1}, v{m+1}, v{q}')
        h(f'v_add_f32 v{m+1}, {f2u(1e-5):#x}, v{m+1}')
    for u in range(2):
        m=SUMA[u]
        h(f'v_rsq_f32 v{m+1}, v{m+1}')
    h('s_mov_b32 s66, 0x00f0000f')
    h('s_mov_b32 s67, 0xf0000f00')
    for u in range(2):
        q=32+2*u; m=SUMA[u]
        h(f'v_mul_f32 v{m+2}, v{m+1}, v{q+1}')
        h(f'v_mul_f32 v{m+3}, v{m+2}, v{m}')
    h('s_mov_b64 exec, s[66:67]')
    for u in range(2):
        q=32+2*u; m=SUMA[u]
        h(f'ds_write_b32 v28, v{q+1} offset:{64*u}')
        h(f'ds_write_b32 v28, v{m} offset:{64*u+L_MU-L_A}')
        h(f'ds_write_b32 v28, v{m+2} offset:{64*u+L_A2-L_A}')
        h(f'ds_write_b32 v28, v{m+3} offset:{64*u+L_A2M-L_A}')
    h('s_mov_b64 exec, -1')
    h('v_and_b32 v29, 15, v1')
    h('v_lshlrev_b32 v29, 6, v29')
    h('v_lshrrev_b32 v30, 4, v1')
    h('v_lshlrev_b32 v30, 4, v30')
    h('s_lshl_b32 s55, s57, 7')
    h('v_add3_u32 v29, v29, v30, s55')
    h(f'v_add_u32 v29, {L_CS}, v29')
    h('s_mov_b32 s62, 0x00030003')
    h('s_mov_b32 s63, 0x00030003')
    h('s_mov_b64 exec, s[62:63]')
    h(f'ds_write_b128 v29, {R(CSA,4)}')
    h('s_mov_b64 exec, -1')
    h('v_lshlrev_b32 v27, 2, v3')
    h('v_add_u32 v28, s3, v27')
    h(f'v_add_u32 v28, {L_A2}, v28')
    h('s_waitcnt lgkmcnt(0)')
    h('ds_read_b32 v38, v28')
    h(f'ds_read_b32 v30, v28 offset:{L_A2M-L_A2}')
    h.wait_vm('b1')
    h('v_lshlrev_b32 v34, 16, v31')
    h('v_and_b32 v35, 0xffff0000, v31')
    h('v_lshlrev_b32 v28, 3, v1')
    h(f'v_add_u32 v28, {L_B1}, v28')
    h('v_cmp_gt_u32 vcc, 48, v1')
    h('s_and_saveexec_b64 s[66:67], vcc')
    h('ds_write_b64 v28, v[34:35]')
    h('s_mov_b64 exec, s[66:67]')
    ACC=[64,80,96]
    for r in range(64,112): h(f'v_mov_b32 v{r}, 0')
    FS=[40,52,112]
    TS=[57,59,60]
    for sl in range(3):
        h(f's_add_u32 s3, s37, {sl}')
        h('s_cmp_ge_u32 s3, 3')
        h('s_cselect_b32 s55, 3, 0')
        h('s_sub_u32 s3, s3, s55')
        h('s_cmp_ge_u32 s3, 3')
        h('s_cselect_b32 s55, 3, 0')
        h('s_sub_u32 s3, s3, s55')
        h(f's_mov_b32 s{TS[sl]}, s3')
        h('s_lshl_b32 s3, s3, 6')
        h(f'v_add_u32 v{12+sl}, s3, v16')
    PAT2=8; CS1A=124
    for r in range(4):
        h(f'v_mov_b32 v{PAT2+r}, v{PAT}')
        h(f'v_mov_b32 v{CS1A+r}, 0')
    cur=[0]
    def setbase(st):
        d=W1_ADDR[st]-cur[0]
        if d:
            for sl in range(3): h(f'v_add_u32 v{12+sl}, {d&0xffffffff:#x}, v{12+sl}')
        cur[0]=W1_ADDR[st]
    def readsB(n):
        st,ks=divmod(n,4); fs=FS[n%3]
        if ks==0: setbase(st)
        for sl in range(3):
            for e in range(2):
                h(f'ds_read_b64_tr_b16 {R(fs+4*sl+2*e,2)}, v{12+sl} offset:{ks*3072+e*768}')
    def mfmaB(n):
        fs=FS[n%3]
        for sl in range(3):
            h(f'v_mfma_f32_32x32x16_bf16 {R(ACC[sl],16)}, {R(fs+4*sl,4)}, {R(XF+4*n,4)}, {R(ACC[sl],16)}')
            if sl==1:
                h(f'v_mfma_f32_16x16x32_bf16 {R(CS1A,4)}, {R(fs,4)}, {R(PAT2,4)}, {R(CS1A,4)}')
    h(f'v_mov_b32 v17, {L_CNT+12}')
    h('v_mov_b32 v7, 1')
    h.wait_vm(['B0','B1'])
    h('s_waitcnt lgkmcnt(0)')
    stamp(h,4)
    h('s_barrier')
    bar={8:['B2','B3','B4','B5'], 24:['B6','B7']}
    emit(h,dmaB(7))
    readsB(0); readsB(1)
    for n in range(32):
        m=n+2
        if m+1 in bar:
            h.wait_vm(bar[m+1])
            gbar_arrive(h, 17, 7)
        if m<32 and m in bar:
            gbar_wait(h, 17, 6, 4 if m==8 else 8)
            readsB(m)
        elif m<32:
            h('s_waitcnt lgkmcnt(6)')
            readsB(m)
        elif m==32:
            h('s_waitcnt lgkmcnt(6)')
        else:
            h('s_waitcnt lgkmcnt(0)')
        mfmaB(n)
    h('v_and_b32 v29, 15, v1')
    h('v_lshlrev_b32 v29, 6, v29')
    h('v_lshrrev_b32 v27, 4, v1')
    h('v_lshlrev_b32 v27, 4, v27')
    h(f's_lshl_b32 s55, s{TS[0]}, 7')
    h('v_add3_u32 v29, v29, v27, s55')
    h(f'v_add_u32 v29, {L_CS1}, v29')
    h('s_nop 1')
    h('s_mov_b64 exec, s[62:63]')
    h(f'ds_write_b128 v29, {R(CS1A,4)}')
    h('s_mov_b64 exec, -1')
    h('s_waitcnt lgkmcnt(0)')
    gbar_arrive(h, 17, 7)
    stamp(h,5)
    gbar_wait(h, 17, 6, 12)
    C1=-2*1.4426950408889634*0.7978845608028654
    C2=C1*0.044715
    h(f's_mov_b32 s66, {f2u(C2):#x}')
    h(f'v_mov_b32 v32, {f2u(C1):#x}')
    h('v_lshlrev_b32 v23, 4, v4')
    h('v_lshlrev_b32 v28, 4, v1')
    h('s_lshl_b32 s53, s38, 2')
    h('s_add_u32 s53, s53, s37')
    h('s_mul_i32 s53, s53, 86')
    CSR=[128,160,192]; B1R=[144,176,208]
    for sl in range(3):
        h(f's_lshl_b32 s3, s{TS[sl]}, 7')
        h('v_add_u32 v24, s3, v23')
        h(f'v_add_u32 v24, {L_CS1}, v24')
        for gg in range(4):
            h(f'ds_read_b128 {R(CSR[sl]+4*gg,4)}, v24 offset:{8*gg*4}')
            h(f'ds_read_b128 {R(B1R[sl]+4*gg,4)}, v24 offset:{8*gg*4+L_B1-L_CS1}')
        if sl==0: h('s_waitcnt lgkmcnt(0)')
    for sl in range(3):
        acc=ACC[sl]; cs=CSR[sl]; b1=B1R[sl]
        lab=f'K_SKIP{sl}'
        h(f's_cmp_ge_u32 s{TS[sl]}, s49')
        h(f's_cbranch_scc1 {lab}')
        h(f's_add_u32 s54, s48, s{TS[sl]}')
        h('s_lshl_b32 s54, s54, 1')
        h('s_add_u32 s54, s54, s53')
        h('s_lshl_b32 s54, s54, 10')
        h(f's_add_u32 s54, s54, {WS_H}')
        if sl==1: h('s_waitcnt lgkmcnt(0)')
        for r in range(16): h(f'v_fma_f32 v{b1+r}, -v{cs+r}, v30, v{b1+r}')
        for r in range(16): h(f'v_fma_f32 v{acc+r}, v{acc+r}, v38, v{b1+r}')
        for r in range(16): h(f'v_mul_f32 v{cs+r}, v{acc+r}, v{acc+r}')
        for r in range(16): h(f'v_fma_f32 v{cs+r}, v{cs+r}, s66, v32')
        for r in range(16): h(f'v_mul_f32 v{cs+r}, v{cs+r}, v{acc+r}')
        for r in range(16): h(f'v_exp_f32 v{cs+r}, v{cs+r}')
        for r in range(16): h(f'v_add_f32 v{cs+r}, 1.0, v{cs+r}')
        for r in range(16): h(f'v_rcp_f32 v{cs+r}, v{cs+r}')
        for r in range(16): h(f'v_mul_f32 v{acc+r}, v{acc+r}, v{cs+r}')
        for i in range(8): h(f'v_cvt_pk_bf16_f32 v{b1+i}, v{acc+2*i}, v{acc+2*i+1}')
        h(f'buffer_store_dwordx4 {R(b1,4)}, v28, {W_}, s54 offen sc1')
        h(f'buffer_store_dwordx4 {R(b1+4,4)}, v28, {W_}, s54 offen offset:1024 sc1')
        h.label(lab)
    stamp(h,6)
    h('s_waitcnt vmcnt(0)')
    h.vmq=[]
    h('s_lshl_b32 s48, s38, 4')
    h('s_add_u32 s48, s48, s39')
    h('s_lshl_b32 s48, s48, 7')
    h(f's_add_u32 s48, s48, {F_2}')
    signal(h, L_CNT+4, 3, 's48', 40)

    h('s_setprio 2' if 'g2hi' in OPT else 's_setprio 0')
    h('s_and_b32 s52, s2, 7')
    h('s_lshr_b32 s53, s2, 3')
    h('s_and_b32 s54, s53, 3')
    h('s_lshl_b32 s52, s52, 2')
    h('s_add_u32 s58, s52, s54')
    h('s_lshr_b32 s59, s53, 2')
    h('v_lshlrev_b32 v5, 4, v1')
    h('v_lshlrev_b32 v8, 7, v1')
    sWw=24
    h('s_lshr_b32 s52, s2, 3')
    h('s_lshl_b32 s52, s52, 2')
    h('s_add_u32 s52, s52, s37')
    h('s_lshl_b32 s52, s52, 14')
    h(f's_cmp_ge_u32 s52, {1376*1024}')
    h(f's_cselect_b32 s{sWw}, s{pWO}, s{pW2}')
    h(f's_cselect_b32 s{sWw+1}, s{pWO+1}, s{pW2+1}')
    h(f's_cselect_b32 s53, {1376*1024}, 0')
    h('s_sub_u32 s52, s52, s53')
    h('s_cmp_eq_u32 s53, 0')
    h(f's_mov_b32 s26, {512*512*2}')
    h(f's_cselect_b32 s26, {1376*512*2}, s26')
    h(f's_mov_b32 s{sWw+3}, 0x00020000')
    for k in range(0 if 'nowarm' in OPT else 16):
        h(f'buffer_load_dwordx4 v[40:43], v5, {SR(sWw)}, s52 offen offset:{1024*(k%4)}')
        if k%4==3: h('s_add_u32 s52, s52, 4096')
    sW2=24
    h('s_lshr_b32 s52, s58, 1')
    h('s_lshl_b32 s52, s52, 11')
    h(f's_add_u32 s52, s52, {F_2}')
    stamp(h,7)
    poll_wg(h, 16, 'v8', 's52', 26, 4, L_CNT+20)
    stamp(h,8)
    srd(h,sW2,pW2,1376*512*2)
    h('s_sub_u32 s60, s36, 4')
    h('s_mul_i32 s61, s60, 22')
    h('s_cmp_eq_u32 s60, 3')
    h('s_cselect_b32 s52, 1, 0')
    h('s_sub_u32 s61, s61, s52')
    h('s_cmp_lt_u32 s60, 2')
    h('s_cselect_b32 s62, 22, 21')
    h('s_lshl_b32 s63, s59, 1')
    h('s_and_b32 s52, s58, 3')
    h('s_add_u32 s63, s63, s52')
    h('s_sub_u32 s57, s62, s63')
    h('s_add_u32 s61, s61, s63')
    h('s_lshl_b32 s52, s58, 1')
    h('s_mul_i32 s52, s52, 86')
    h('s_add_u32 s52, s52, s61')
    h('s_lshl_b32 s52, s52, 10')
    h(f's_add_u32 s52, s52, {WS_H}')
    h('s_lshl_b32 s54, s61, 14')
    h('s_lshl_b32 s55, s59, 7')
    h('s_add_u32 s54, s54, s55')
    h('s_lshl_b32 s56, s62, 10')
    h('s_lshl_b32 s53, s62, 14')
    h('s_mov_b32 s50, s57')
    h(f's_mul_i32 s55, s60, {RINGSZ}')
    h(f's_add_u32 s55, s55, {L_RING}')
    def wdma_voff(e):
        e('v_lshrrev_b32 v10, 3, v1')
        e('v_lshlrev_b32 v10, 10, v10')
        e('v_and_b32 v11, 7, v1')
        e('v_bfe_u32 v12, v1, 4, 1')
        e('v_lshlrev_b32 v12, 2, v12')
        e('v_xor_b32 v11, v11, v12')
        e('v_lshlrev_b32 v11, 4, v11')
        e('v_add_u32 v10, v10, v11')
        e('v_add_u32 v11, 7168, v10')
    wdma_voff(h)
    h(f'v_add_u32 v17, {86*1024}, v5')
    def tr_addr(e, dst, base_s):
        e('v_bfe_u32 v13, v1, 2, 2')
        e('v_lshlrev_b32 v14, 2, v4')
        e('v_add_u32 v14, v14, v13')
        e('v_lshlrev_b32 v14, 7, v14')
        e('v_bfe_u32 v15, v1, 4, 1')
        e('v_lshlrev_b32 v15, 1, v15')
        e('v_and_b32 v16, 1, v1')
        e('v_add_u32 v15, v15, v16')
        e('v_lshrrev_b32 v13, 1, v13')
        e('v_lshlrev_b32 v13, 2, v13')
        e('v_xor_b32 v15, v15, v13')
        e('v_lshlrev_b32 v15, 4, v15')
        e('v_bfe_u32 v16, v1, 1, 1')
        e('v_lshlrev_b32 v16, 3, v16')
        e('v_add3_u32 v14, v14, v15, v16')
        e(f'v_add_u32 v{dst}, {base_s}, v14')
        e(f'v_xor_b32 v{dst+1}, 64, v{dst}')
    tr_addr(h, 18, 's55')
    GA=[[192,208],[224,240]]
    XR=[48+8*i for i in range(XD)]
    WB=[24,32]
    def x_issue(i):
        b=XR[i%XD]
        h.vm(f'X{i}', f'buffer_load_dwordx4 {R(b,4)}, v5, {W_}, s52 offen sc1')
        h.vm(f'X{i}', f'buffer_load_dwordx4 {R(b+4,4)}, v17, {W_}, s52 offen sc1')
        h('s_add_u32 s52, s52, 1024')
        h('s_sub_u32 s57, s57, 1')
        h('s_cmp_eq_u32 s57, 0')
        h('s_cselect_b32 s63, s56, 0')
        h('s_sub_u32 s52, s52, s63')
    def w_issue(i):
        h(f's_add_u32 m0, s55, {(i%WD)*2048}')
        h('s_sub_u32 s50, s50, 1')
        h.vm(f'W{i}', f'buffer_load_dwordx4 v10, {SR(sW2)}, s54 offen lds')
        h.vm(f'W{i}', f'buffer_load_dwordx4 v11, {SR(sW2)}, s54 offen offset:1024 lds')
        h('s_add_u32 s54, s54, 16384')
        h('s_cmp_eq_u32 s50, 0')
        h('s_cselect_b32 s63, s53, 0')
        h('s_sub_u32 s54, s54, s63')
    def g2_wread(i):
        for ct in range(2):
            for e in range(2):
                h(f'ds_read_b64_tr_b16 {R(WB[i%2]+4*ct+2*e,2)}, v{18+ct} offset:{(i%WD)*2048+e*1024}')
    if 'nog2' in OPT: h('s_branch K_G2_DONE')
    h.vmq=[]
    for i in range(XD):
        if i<WD: w_issue(i)
        x_issue(i)
    for tt in range(2):
        for ct in range(2):
            for r in range(16): h(f'v_mov_b32 v{GA[tt][ct]+r}, 0')
    lab=newlab('G2W'); done=newlab('G2WD')
    h(f'v_mov_b32 v12, {L_CNT+G2CNT}')
    h.label(lab)
    h('ds_read_b32 v13, v12')
    h('s_waitcnt lgkmcnt(0)')
    h('v_readfirstlane_b32 s3, v13')
    h('s_nop 0')
    h(f's_cmp_ge_u32 s3, {G2TGT}')
    h(f's_cbranch_scc1 {done}')
    h('s_sleep 4')
    h(f's_branch {lab}')
    h.label(done)
    h('s_setprio 2')
    stamp(h,9)
    h.wait_vm('W0')
    g2_wread(0)
    NK=22
    for i in range(NK):
        if i+1<NK:
            h.wait_vm([f'W{i+1}'])
            g2_wread(i+1)
            h.wait_vm([f'X{i}'])
            h('s_waitcnt lgkmcnt(4)')
        else:
            h.wait_vm([f'X{i}'])
            h('s_waitcnt lgkmcnt(0)')
            h('s_cmp_eq_u32 s62, 21')
            h('s_cbranch_scc1 K_G2_DONE')
        b=XR[i%XD]
        for tt in range(2):
            for ct in range(2):
                h(f'v_mfma_f32_32x32x16_bf16 {R(GA[tt][ct],16)}, {R(WB[i%2]+4*ct,4)}, {R(b+4*tt,4)}, {R(GA[tt][ct],16)}')
        if i+WD<NK: w_issue(i+WD)
        if i+XD<NK: x_issue(i+XD)
    h.label('K_G2_DONE')
    h('s_waitcnt vmcnt(0) lgkmcnt(0)')
    stamp(h,11)
    h('s_nop 7')
    for tt in range(2):
        for ct in range(2):
            qd=tt+2*ct
            lab=newlab('GXS')
            h(f's_cmp_eq_u32 s60, {qd}')
            h(f's_cbranch_scc1 {lab}')
            h(f's_sub_u32 s52, {qd+3}, s60')
            h('s_and_b32 s52, s52, 3')
            h('s_lshl_b32 s52, s52, 12')
            h('s_add_u32 s52, s52, s55')
            h('v_add_u32 v14, s52, v5')
            for k in range(4): h(f'ds_write_b128 v14, {R(GA[tt][ct]+4*k,4)} offset:{1024*k}')
            h.label(lab)
    for tt in range(2):
        for ct in range(2):
            qd=tt+2*ct
            if qd==0: continue
            lab=newlab('GXK')
            h(f's_cmp_lg_u32 s60, {qd}')
            h(f's_cbranch_scc1 {lab}')
            h('s_waitcnt lgkmcnt(0)')
            for r in range(16): h(f'v_mov_b32 v{192+r}, v{GA[tt][ct]+r}')
            h.label(lab)
    def att_ids(e):
        e('s_and_b32 s48, s2, 7')
        e('s_lshr_b32 s49, s2, 3')
        e('s_and_b32 s50, s49, 3')
        e('s_lshl_b32 s48, s48, 2')
        e('s_add_u32 s38, s48, s50')
        e('s_lshr_b32 s39, s49, 2')
    h(f'v_mov_b32 v12, {L_CNT+12}')
    h('v_mov_b32 v13, 1')
    h('s_waitcnt lgkmcnt(0)')
    gbar_arrive(h, 12, 13)
    gbar_wait(h, 12, 13, 16)
    for sl in range(3):
        h(f's_sub_u32 s52, s60, {sl+1}')
        h('s_and_b32 s52, s52, 3')
        h(f's_mul_i32 s52, s52, {RINGSZ}')
        h(f's_add_u32 s52, s52, {L_RING+4096*sl}')
        h('v_add_u32 v14, s52, v5')
        for k in range(4): h(f'ds_read_b128 {R(128+16*sl+4*k,4)}, v14 offset:{1024*k}')
    h('s_waitcnt lgkmcnt(0)')
    for sl in range(3):
        for r in range(16): h(f'v_add_f32 v{192+r}, v{192+r}, v{128+16*sl+r}')
    h('s_branch K_TAIL')

    a2=Asm()
    a2.label('K_ATT')
    a2('s_setprio 1')
    att_ids(a2)
    a2('v_lshlrev_b32 v5, 4, v1')
    a2('v_lshlrev_b32 v6, 8, v4')
    a2('v_and_b32 v7, 15, v1')
    a2('v_lshlrev_b32 v7, 4, v7')
    a2('v_add_u32 v6, v6, v7')
    a2('v_lshlrev_b32 v8, 7, v1')
    a2('v_lshlrev_b32 v9, 2, v1')
    a2('s_lshl_b32 s44, s38, 16')
    a2('s_lshl_b32 s46, s39, 13')
    a2('s_add_u32 s46, s46, s44')
    a2(f's_add_u32 s46, s46, {WS_Q}')
    a2('s_lshl_b32 s47, s36, 14')
    a2('s_add_u32 s47, s47, s44')
    a2(f's_add_u32 s48, s47, {WS_V}')
    a2(f's_add_u32 s47, s47, {WS_K}')
    a2('s_mov_b32 s40, s47')
    a2('s_mov_b32 s41, s48')
    a2('s_lshr_b32 s49, s38, 1')
    a2('s_mul_i32 s49, s49, 1536')
    a2(f's_add_u32 s49, s49, {WS_N}')
    a2('s_mov_b32 s50, 0x0000ffff')
    a2('s_mov_b32 s51, 0x0000ffff')
    KB=[80,84,88,92]; VB=[96,104,112,120]; QF=48
    SA,SB=10,26
    OA=[128+16*i for i in range(8)]; IDX=44
    a2('s_lshr_b32 s52, s38, 1')
    a2('s_lshl_b32 s52, s52, 11')
    a2(f's_add_u32 s52, s52, {F_1}')
    stamp(a2,7)
    poll_wg(a2, 16, 'v8', 's52', 18, 0, L_CNT+24)
    stamp(a2,8)
    for k,(rg) in enumerate((42,43,45,46,47,41)):
        a2.vm('N', f'buffer_load_dword v{rg}, v9, {W_}, s49 offen offset:{256*k} sc1')
    def loadkv(b):
        a2.vm('KV', f'buffer_load_dwordx4 {R(KB[b],4)}, v5, {W_}, s47 offen sc1')
        a2('s_mov_b64 exec, s[50:51]')
        a2.vm('KV', f'buffer_load_dwordx4 {R(VB[b],4)}, v6, {W_}, s48 offen sc1')
        a2.vm('KV', f'buffer_load_dwordx4 {R(VB[b]+4,4)}, v6, {W_}, s48 offen offset:512 sc1')
        a2('s_mov_b64 exec, -1')
        a2('s_add_u32 s47, s47, 1024')
        a2('s_add_u32 s48, s48, 1024')
    if 'allones' in OPT:
        a2(f'v_mov_b32 v{IDX}, 0x3f803f80')
    else:
        a2('v_and_b32 v12, 27, v3')
        a2('v_cmp_eq_u32 vcc, 16, v12')
        a2('v_mov_b32 v12, 0x3f803f80')
        a2('s_nop 0')
        a2(f'v_cndmask_b32 v{IDX}, 0, v12, vcc')
    for b in VB:
        for r in range(8): a2(f'v_mov_b32 v{b+r}, v{IDX}')
    a2(f'v_mov_b32 v{IDX}, 0xdddddddd')
    for i in range(4):
        a2.vm('Q', f'buffer_load_dwordx4 {R(QF+4*i,4)}, v5, {W_}, s46 offen offset:{1024*i} sc1')
    loadkv(0)
    a2('s_add_u32 s46, s46, 4096')
    for i in range(4,8):
        a2.vm('Q', f'buffer_load_dwordx4 {R(QF+4*i,4)}, v5, {W_}, s46 offen offset:{1024*(i-4)} sc1')
    loadkv(1); loadkv(2)
    for o in OA:
        for r in range(16): a2(f'v_mov_b32 v{o+r}, 0')
    a2.wait_vm('N')
    NR=(42,43,45,46,47,41)
    for sh in (1,2,4,8):
        for r in NR: a2(f'v_max_f32_dpp v{r}, v{r}, v{r} row_shr:{sh} row_mask:0xf bank_mask:0xf')
    for r in NR: a2(f'v_max_f32_dpp v{r}, v{r}, v{r} row_bcast:15 row_mask:0xa bank_mask:0xf')
    for r in NR: a2(f'v_max_f32_dpp v{r}, v{r}, v{r} row_bcast:31 row_mask:0xc bank_mask:0xf')
    a2('v_add_f32 v42, v42, v43')
    a2('v_add_f32 v45, v45, v46')
    a2('v_max_f32 v47, v47, v41')
    a2('v_mul_f32 v42, v42, v45')
    a2(f'v_mul_f32 v42, {f2u(1.05):#x}, v42')
    a2(f'v_mov_b32 v43, {f2u(T_LOG2*T_LOG2):#x}')
    a2(f'v_mov_b32 v45, {f2u(2.0**60):#x}')
    a2('v_cmp_le_f32 vcc, v42, v43')
    a2('v_cmp_le_f32 s[56:57], v47, v45')
    a2('s_nop 1')
    a2('s_and_b64 vcc, vcc, s[56:57]')
    a2('s_bitcmp1_b64 vcc, 63')
    a2('s_cbranch_scc0 K_SLOW')
    def qk(kb, i, dst): return f'v_mfma_f32_32x32x16_bf16 {R(dst,16)}, {R(KB[kb],4)}, {R(QF+4*i,4)}, 0'
    def pv(kb, i, half, src): return f'v_smfmac_f32_32x32x32_bf16 {R(OA[i],16)}, {R(VB[kb]+4*half,4)}, {R(src+8*half,8)}, v{IDX}'
    a2('s_waitcnt vmcnt(6)')
    stamp(a2,9)
    a2(qk(0,0,SA))
    for r in range(8,16): a2(f'v_mov_b32 v{SB+r}, 0')
    a2('s_mov_b32 s42, 0')
    a2('s_nop 3')
    a2.label('K_ATT_LOOP')
    for n in range(32):
        kb,i=divmod(n,8)
        sa=SA if n%2==0 else SB
        sb=SB if n%2==0 else SA
        ex=[f'v_exp_f32 v{sa+r}, v{sa+r}' for r in range(16)]
        if 'noexp' in OPT: ex=[f'v_mov_b32 v{sa+r}, v{sa+r}' for r in range(16)]
        for e in ex[0:2]: a2(e)
        pkb,pi=divmod((n-1)%32,8)
        if 'nopv' not in OPT: a2(pv(pkb,pi,1,sb))
        if i==0 and 'noload' not in OPT: loadkv((kb+3)%4)
        for e in ex[2:5]: a2(e)
        nkb,ni=divmod((n+1)%32,8)
        if i==7: a2('s_waitcnt vmcnt(6)')
        if 'noqk' not in OPT: a2(qk(nkb,ni,sb))
        for e in ex[5:11]: a2(e)
        if 'nopv' not in OPT: a2(pv(kb,i,0,sa))
        for e in ex[11:16]: a2(e)
    a2('s_add_u32 s42, s42, 1')
    G2AT=4
    for o_ in OPT:
        if o_.startswith('AT='): G2AT=int(o_[3:])
    lab=newlab('G2S')
    a2(f's_cmp_eq_u32 s42, {G2AT}')
    a2(f's_cbranch_scc0 {lab}')
    a2(f'v_mov_b32 v42, {L_CNT+G2CNT}')
    a2('v_mov_b32 v43, 1')
    gbar_arrive(a2, 42, 43)
    a2.label(lab)
    a2('s_cmp_lt_u32 s42, 4')
    a2('s_cbranch_scc1 K_ATT_LOOP')
    a2('s_nop 1')
    a2(pv(3,7,1,SB))
    a2.label('K_ATT_DONE')
    stamp(a2,10)
    a2.vmq=[]
    a2(f'v_mov_b32 v12, {L_CNT+12}')
    gbar_wait(a2, 12, 13, 12)
    for p_ in range(4):
        lab=newlab('RS')
        a2(f's_cmp_eq_u32 s36, {p_}')
        a2(f's_cbranch_scc1 {lab}')
        a2(f's_sub_u32 s52, s36, {p_+1}')
        a2('s_and_b32 s52, s52, 3')
        a2('s_mul_i32 s52, s52, 2304')
        a2(f's_add_u32 s52, s52, {2*p_*3*2304}')
        a2('v_add_u32 v12, s52, v5')
        a2('v_add_u32 v13, s52, v9')
        for t_ in range(2):
            i=2*p_+t_; off=t_*3*2304
            a2(f'ds_write_b128 v12, {R(OA[i],4)} offset:{off}')
            a2(f'ds_write_b128 v12, {R(OA[i]+4,4)} offset:{off+1024}')
            a2(f'ds_write_b32 v13, v{OA[i]+8} offset:{off+2048}')
        a2.label(lab)
    a2('s_and_b32 s52, s2, 7')
    a2('s_lshr_b32 s53, s2, 3')
    a2('s_and_b32 s54, s53, 3')
    a2('s_lshl_b32 s52, s52, 2')
    a2('s_add_u32 s58, s52, s54')
    a2('s_lshr_b32 s59, s53, 2')
    a2(f'v_mov_b32 v20, {L_CNT+28}')
    a2('v_mov_b32 v21, 1')
    a2('s_waitcnt lgkmcnt(0)')
    gbar_arrive(a2, 20, 21)
    gbar_wait(a2, 20, 22, 4)
    stamp(a2,12)
    a2('s_waitcnt vmcnt(0)')
    for p_ in range(4):
        lab=newlab('RM')
        a2(f's_cmp_lg_u32 s36, {p_}')
        a2(f's_cbranch_scc1 {lab}')
        for t_ in range(2):
            for r in range(9): a2(f'v_mov_b32 v{32+48*t_+r}, v{OA[2*p_+t_]+r}')
        a2.label(lab)
    a2(f's_mul_i32 s53, s36, {6*2304}')
    a2('v_add_u32 v14, s53, v5')
    a2('v_add_u32 v15, s53, v9')
    for t_ in range(2):
        for k in range(3):
            b=32+48*t_+12*(k+1); off=(t_*3+k)*2304
            a2(f'ds_read_b128 {R(b,4)}, v14 offset:{off}')
            a2(f'ds_read_b128 {R(b+4,4)}, v14 offset:{off+1024}')
            a2(f'ds_read_b32 v{b+8}, v15 offset:{off+2048}')
    a2('s_lshl_b32 s53, s39, 3')
    a2('s_lshl_b32 s52, s36, 1')
    a2('s_add_u32 s53, s53, s52')
    a2('s_lshl_b32 s53, s53, 5')
    a2('s_add_u32 s53, s53, s38')
    a2('s_lshl_b32 s53, s53, 10')
    a2(f's_add_u32 s53, s53, {WS_O}')
    for t_ in range(2):
        b=32+48*t_
        if t_==0: a2('s_waitcnt lgkmcnt(9)')
        if t_==1: a2('s_waitcnt lgkmcnt(0)'); gbar_arrive(a2, 20, 21)
        for sl in range(1,4):
            for r in range(9): a2(f'v_add_f32 v{b+r}, v{b+r}, v{b+12*sl+r}')
        a2(f'v_rcp_f32 v{b+9}, v{b+8}')
        a2('s_nop 0')
        for r in range(8): a2(f'v_mul_f32 v{b+r}, v{b+r}, v{b+9}')
        for i in range(4): a2(f'v_cvt_pk_bf16_f32 v{b+12+i}, v{b+2*i}, v{b+2*i+1}')
        a2(f'buffer_store_dwordx4 {R(b+12,4)}, v5, {W_}, s53 offen sc1')
        if t_==0: a2(f's_add_u32 s53, s53, {32*1024}')
    ACC3=192
    for r in range(16): a2(f'v_mov_b32 v{ACC3+r}, 0')
    a2('s_lshl_b32 s52, s39, 5')
    a2('s_add_u32 s52, s52, s38')
    a2('s_lshl_b32 s52, s52, 7')
    a2(f's_add_u32 s52, s52, {F_3}')
    a2('s_waitcnt vmcnt(0)')
    signal(a2, L_CNT+8, 3, 's52', 46)
    gbar_wait(a2, 20, 22, 8)
    sWO=24
    srd(a2,sWO,pWO,512*512*2)
    wdma_voff(a2)
    a2('s_lshl_b32 s52, s36, 17')
    a2('s_lshl_b32 s53, s59, 7')
    a2('s_add_u32 s52, s52, s53')
    a2('s_lshl_b32 s53, s36, 14')
    for i in range(8):
        a2(f's_add_u32 m0, s53, {L_WO+2048*i}')
        a2('s_nop 0')
        a2(f'buffer_load_dwordx4 v10, {SR(sWO)}, s52 offen lds')
        a2(f'buffer_load_dwordx4 v11, {SR(sWO)}, s52 offen offset:1024 lds')
        a2('s_add_u32 s52, s52, 16384')
    a2.label('K_TAIL')
    a2('s_setprio 0')
    a2('v_lshlrev_b32 v8, 7, v1')
    sOUT,sB2,sX2=32,40,44
    srd(a2,sOUT,pOUT,2048*512*2); srd(a2,sB2,pB2,512*2); srd(a2,sX2,pX,2048*512*2)
    a2('s_and_b32 s50, s36, 1')
    a2('s_bfe_u32 s51, s36, 0x10001')
    a2('s_lshr_b32 s49, s36, 2')
    a2('s_lshl_b32 s60, s58, 6')
    a2('s_lshl_b32 s61, s50, 5')
    a2('s_add_u32 s60, s60, s61')
    a2('v_add_u32 v20, s60, v3')
    a2('v_lshlrev_b32 v20, 10, v20')
    a2('s_lshl_b32 s60, s59, 6')
    a2('s_lshl_b32 s61, s51, 5')
    a2('s_add_u32 s60, s60, s61')
    a2('s_lshl_b32 s61, s49, 4')
    a2('s_add_u32 s60, s60, s61')
    a2('v_lshlrev_b32 v21, 3, v4')
    a2('v_add_u32 v21, s60, v21')
    a2('v_lshlrev_b32 v21, 1, v21')
    a2('v_add_u32 v20, v20, v21')
    a2(f'buffer_load_dwordx4 v[52:55], v20, {SR(sX2)}, 0 offen')
    a2(f'buffer_load_dwordx4 v[56:59], v21, {SR(sB2)}, 0 offen')
    a2('s_lshl_b32 s52, s51, 6')
    a2(f's_lshl_b32 s53, s49, 15')
    a2(f's_add_u32 s53, s53, {L_WO}')
    tr_addr(a2, 18, 's53')
    a2('v_xor_b32 v18, s52, v18')
    a2('s_lshl_b32 s52, s50, 15')
    a2('s_lshl_b32 s53, s49, 14')
    a2('s_add_u32 s52, s52, s53')
    a2(f's_add_u32 s52, s52, {L_OX}')
    a2('v_add_u32 v19, s52, v5')
    a2('s_bfe_u32 s56, s36, 0x10001')
    a2('s_lshl_b32 s56, s56, 4')
    a2('s_lshr_b32 s57, s36, 2')
    a2('s_lshl_b32 s57, s57, 1')
    a2('s_add_u32 s56, s56, s57')
    a2('s_lshl_b32 s57, s58, 1')
    a2('s_add_u32 s57, s57, s50')
    a2('s_lshl_b32 s57, s57, 5')
    a2('s_add_u32 s57, s57, s56')
    a2('s_lshl_b32 s57, s57, 10')
    a2(f's_add_u32 s57, s57, {WS_O}')
    a2('s_lshl_b32 s60, s50, 5')
    a2('s_add_u32 s60, s60, s56')
    a2('s_lshl_b32 s60, s60, 10')
    a2(f's_add_u32 s60, s60, {L_OX}')
    a2('s_lshr_b32 s52, s58, 2')
    a2('s_lshl_b32 s52, s52, 12')
    a2(f's_add_u32 s52, s52, {F_3}')
    stamp(a2,13)
    a2('s_waitcnt vmcnt(0)')
    a2('s_cmp_eq_u32 s36, 0')
    a2('s_cbranch_scc0 K_S3W')
    poll(a2, 32, 'v8', 's52', 46)
    a2.label('K_S3W')
    a2.vmq=[]
    a2('s_barrier')
    stamp(a2,14)
    a2('s_cmp_eq_u32 s2, 0')
    a2('s_cbranch_scc0 K_NOE')
    a2('s_cmp_eq_u32 s36, 0')
    a2('s_cbranch_scc0 K_NOE')
    a2('v_mov_b32 v60, s64'); a2('v_mov_b32 v61, s65'); a2('v_mov_b32 v62, 0')
    a2('s_mov_b64 exec, 1')
    a2(f'buffer_store_dwordx2 v[60:61], v62, {W_}, 0 offen')
    a2('s_mov_b64 exec, -1')
    a2.label('K_NOE')
    for s_ in range(4):
        a2(f's_add_u32 m0, s60, {4096*s_}')
        a2(f's_add_u32 s55, s57, {4096*s_}')
        a2.vm(f'O{s_}', f'buffer_load_dwordx4 v5, {W_}, s55 offen sc1 lds')
        a2.vm(f'O{s_}', f'buffer_load_dwordx4 v5, {W_}, s55 offen offset:1024 sc1 lds')
    FX=[64,68,72,76]; FW=[80,84,88,92]
    for s_ in range(4):
        a2.wait_vm(f'O{s_}')
        a2('s_barrier')
        for k in range(4):
            ks=4*s_+k
            a2(f'ds_read_b128 {R(FX[k],4)}, v19 offset:{ks*1024}')
            a2(f'ds_read_b64_tr_b16 {R(FW[k],2)}, v18 offset:{ks*2048}')
            a2(f'ds_read_b64_tr_b16 {R(FW[k]+2,2)}, v18 offset:{ks*2048+1024}')
        for k in range(4):
            a2(f's_waitcnt lgkmcnt({3*(3-k)})')
            a2(f'v_mfma_f32_32x32x16_bf16 {R(ACC3,16)}, {R(FW[k],4)}, {R(FX[k],4)}, {R(ACC3,16)}')
    stamp(a2,15)
    a2('s_and_b32 s52, s36, 3')
    a2('s_lshl_b32 s52, s52, 12')
    a2('s_lshl_b32 s53, s49, 11')
    a2('s_add_u32 s54, s52, s53')
    a2('s_xor_b32 s53, s53, 2048')
    a2('s_add_u32 s55, s52, s53')
    a2(f's_add_u32 s54, s54, {L_EX}')
    a2(f's_add_u32 s55, s55, {L_EX}')
    a2('v_add_u32 v22, s54, v5')
    a2('v_add_u32 v23, s55, v5')
    a2('s_nop 7')
    a2('s_cmp_eq_u32 s49, 0')
    a2('s_cbranch_scc1 K_KH0')
    a2(f'ds_write_b128 v22, {R(ACC3,4)}')
    a2(f'ds_write_b128 v22, {R(ACC3+4,4)} offset:1024')
    a2('s_waitcnt lgkmcnt(0)')
    for r in range(8): a2(f'v_mov_b32 v{ACC3+r}, v{ACC3+8+r}')
    a2('s_branch K_EX')
    a2.label('K_KH0')
    a2(f'ds_write_b128 v22, {R(ACC3+8,4)}')
    a2(f'ds_write_b128 v22, {R(ACC3+12,4)} offset:1024')
    a2.label('K_EX')
    a2('s_waitcnt lgkmcnt(0)')
    a2('s_barrier')
    a2('ds_read_b128 v[64:67], v23')
    a2('ds_read_b128 v[68:71], v23 offset:1024')
    for i in range(4):
        a2(f'v_lshlrev_b32 v{72+2*i}, 16, v{52+i}')
        a2(f'v_and_b32 v{73+2*i}, 0xffff0000, v{52+i}')
        a2(f'v_lshlrev_b32 v{80+2*i}, 16, v{56+i}')
        a2(f'v_and_b32 v{81+2*i}, 0xffff0000, v{56+i}')
    for r in range(8): a2(f'v_add_f32 v{72+r}, v{72+r}, v{80+r}')
    a2('s_waitcnt lgkmcnt(0)')
    for r in range(8): a2(f'v_add_f32 v{ACC3+r}, v{ACC3+r}, v{64+r}')
    for r in range(8): a2(f'v_add_f32 v{ACC3+r}, v{ACC3+r}, v{72+r}')
    for i in range(4): a2(f'v_cvt_pk_bf16_f32 v{64+i}, v{ACC3+2*i}, v{ACC3+2*i+1}')
    a2(f'buffer_store_dwordx4 v[64:67], v20, {SR(sOUT)}, 0 offen')
    if STAMP and ('rt' in OPT or 'span' in OPT) and 'dbg' not in OPT:
        a2('s_memrealtime s[92:93]'); a2('s_memtime s[100:101]')
    stamp_flush(a2,16)
    stamp_dbg(a2)
    a2('s_endpgm')
    a2.label('K_SLOW')
    a2('s_waitcnt vmcnt(0)')
    MX=116
    a2('s_mov_b32 s58, s40')
    for i in range(8): a2(f'v_mov_b32 v{MX+i}, 0xff800000')
    a2('s_mov_b32 s59, 0')
    a2.label('K_S1')
    a2(f'buffer_load_dwordx4 {R(KB[0],4)}, v5, {W_}, s58 offen sc1')
    a2('s_waitcnt vmcnt(0)')
    for i in range(8):
        a2(f'v_mfma_f32_32x32x16_bf16 {R(SA,16)}, {R(KB[0],4)}, {R(QF+4*i,4)}, 0')
        a2('s_nop 7'); a2('s_nop 7')
        for r in range(0,16,2): a2(f'v_max3_f32 v{MX+i}, v{MX+i}, v{SA+r}, v{SA+r+1}')
    a2('s_add_u32 s58, s58, 1024')
    a2('s_add_u32 s59, s59, 1')
    a2('s_cmp_lt_u32 s59, 16')
    a2('s_cbranch_scc1 K_S1')
    for i in range(8): a2(f'v_mov_b32 v{SA+i}, v{MX+i}')
    a2('s_nop 1')
    for i in range(8): a2(f'v_permlane32_swap_b32 v{MX+i}, v{SA+i}')
    a2('s_nop 1')
    for i in range(8): a2(f'v_max_f32 v{MX+i}, v{MX+i}, v{SA+i}')
    a2(f'v_mov_b32 v12, {L_CNT+12}')
    gbar_wait(a2, 12, 13, 12)
    a2('s_lshl_b32 s53, s36, 11')
    a2(f's_add_u32 s53, s53, {L_MX}')
    a2('v_add_u32 v42, s53, v9')
    for i in range(8): a2(f'ds_write_b32 v42, v{MX+i} offset:{256*i}')
    a2(f'v_mov_b32 v12, {L_CNT+16}')
    a2('v_mov_b32 v13, 1')
    a2('s_waitcnt lgkmcnt(0)')
    gbar_arrive(a2, 12, 13)
    gbar_wait(a2, 12, 13, 4)
    a2(f'v_add_u32 v42, {L_MX}, v9')
    for q in range(4):
        for i in range(8): a2(f'ds_read_b32 v{SA+i}, v42 offset:{2048*q+256*i}')
        a2('s_waitcnt lgkmcnt(0)')
        for i in range(8): a2(f'v_max_f32 v{MX+i}, v{MX+i}, v{SA+i}')
    a2('s_mov_b32 s58, s40'); a2('s_mov_b32 s60, s41')
    a2('s_mov_b32 s59, 0')
    a2.label('K_S2')
    a2(f'buffer_load_dwordx4 {R(KB[0],4)}, v5, {W_}, s58 offen sc1')
    a2('s_mov_b64 exec, s[50:51]')
    a2(f'buffer_load_dwordx4 {R(VB[0],4)}, v6, {W_}, s60 offen sc1')
    a2(f'buffer_load_dwordx4 {R(VB[0]+4,4)}, v6, {W_}, s60 offen offset:512 sc1')
    a2('s_mov_b64 exec, -1')
    a2('s_waitcnt vmcnt(0)')
    for i in range(8):
        a2(f'v_mfma_f32_32x32x16_bf16 {R(SA,16)}, {R(KB[0],4)}, {R(QF+4*i,4)}, 0')
        a2('s_nop 7'); a2('s_nop 7')
        for r in range(16): a2(f'v_sub_f32 v{SA+r}, v{SA+r}, v{MX+i}')
        for r in range(16): a2(f'v_exp_f32 v{SA+r}, v{SA+r}')
        a2('s_nop 1')
        a2(f'v_smfmac_f32_32x32x32_bf16 {R(OA[i],16)}, {R(VB[0],4)}, {R(SA,8)}, v{IDX}')
        a2(f'v_smfmac_f32_32x32x32_bf16 {R(OA[i],16)}, {R(VB[0]+4,4)}, {R(SA+8,8)}, v{IDX}')
        a2('s_nop 7')
    a2('s_add_u32 s58, s58, 1024')
    a2('s_add_u32 s60, s60, 1024')
    a2('s_add_u32 s59, s59, 1')
    a2('s_cmp_lt_u32 s59, 16')
    a2('s_cbranch_scc1 K_S2')
    a2(f'v_mov_b32 v42, {L_CNT+G2CNT}')
    a2('v_mov_b32 v43, 1')
    gbar_arrive(a2, 42, 43)
    a2('s_nop 7')
    a2('s_branch K_ATT_DONE')
    return a.text()+'\n'+g.text()+'\n'+h.text()+'\n'+a2.text()+'\nK_END:\n  s_endpgm\n'

HEADER=open('cdna_kernels/'+NAME+'.s.ref').read().split('; Override launch geometry')[0]
def assemble(body):
    n=NAME+'_kernel'
    return HEADER+f'''; @launch grid=(256,1,1) block=(512,1,1) lds={LDS_TOTAL}
.amdgcn_target "amdgcn-amd-amdhsa--gfx950"
.text
.globl {n}
.p2align 8
.type {n},@function
{n}:
{body}
.section .rodata,"a"
.p2align 6
.amdhsa_kernel {n}
  .amdhsa_next_free_vgpr 256
  .amdhsa_next_free_sgpr 102
  .amdhsa_accum_offset 256
  .amdhsa_group_segment_fixed_size 0
  .amdhsa_kernarg_size 88
  .amdhsa_user_sgpr_count 2
  .amdhsa_user_sgpr_kernarg_segment_ptr 1
  .amdhsa_system_sgpr_workgroup_id_x 1
  .amdhsa_float_denorm_mode_32 3
.end_amdhsa_kernel
'''
if __name__=='__main__':
    outp=sys.argv[1]
    if 'stamp' in sys.argv: STAMP=True
    OPT.update(sys.argv[2:])
    for o_ in list(OPT):
        if o_.startswith('PD='): POLLD=int(o_[3:])
    open(outp,'w').write(assemble(gen()))
    print('wrote',outp)
```

```python
import sys, struct
NAME='parallel_sum__softmax_full_mha__mixer_channel_mlp__prompt'

WS_F = 0
F_1, F_2, F_3 = 32768, 65536, 98304
WS_N = 256<<10
WS_Q = 1<<20
WS_K = 3<<20
WS_V = 5<<20
WS_O = 7<<20
WS_H = 9<<20
WS_T = 15<<20
WS_SIZE = 16<<20
QSCALE = 0.25*1.4426950408889634
T_LOG2 = 48.0
SPIN_MAX = 1<<20
POLLD = 1

def f2u(f): return struct.unpack('<I', struct.pack('<f', f))[0]

STAMP=False
OPT=set()
class Asm:
    def __init__(self):
        self.L=[]; self.vmq=[]
    def __call__(self, s): self.L.append('  '+s)
    def c(self, s): self.L.append('  ; '+s)
    def label(self, n): self.L.append(n+':')
    def vm(self, tag, s):
        self.vmq.append(tag); self(s)
    def wait_vm(self, tags):
        if isinstance(tags,str): tags=[tags]
        idx=[i for i,t in enumerate(self.vmq) if t in tags]
        if not idx: return
        last=max(idx); n=len(self.vmq)-1-last
        assert n<=63
        self(f's_waitcnt vmcnt({n})')
        self.vmq=self.vmq[last+1:]
    def wait_vm_all(self):
        self('s_waitcnt vmcnt(0)'); self.vmq=[]
    def text(self): return '\n'.join(self.L)

RTMAP={3:1, 9:2, 10:4}
def fstamp(a, i):
    if STAMP and 'fine' in OPT: a(f's_memtime s[{70+2*i}:{71+2*i}]')
def stamp(a, i):
    if STAMP:
        if 'span' in OPT: return
        if 'fine' in OPT: return
        if 'rt' in OPT and i in (1,2,4) : return
        a(f's_memtime s[{70+2*i}:{71+2*i}]')
        if 'rt' in OPT and i in RTMAP:
            j=RTMAP[i]; a(f's_memrealtime s[{70+2*j}:{71+2*j}]')
def stamp_flush(a, n):
    if not STAMP: return
    a('s_waitcnt vmcnt(0) lgkmcnt(0)')
    a('s_lshl_b32 s69, s2, 3')
    a('s_add_u32 s69, s69, s36')
    a('s_lshl_b32 s69, s69, 6')
    a(f's_add_u32 s69, s69, {WS_T}')
    a('v_mov_b32 v2, 0')
    for i in range(n):
        a(f'v_mov_b32 v3, s{70+2*i}')
        a('s_mov_b64 exec, 1')
        a(f'buffer_store_dword v3, v2, s[28:31], s69 offen offset:{4*i}')
        a('s_mov_b64 exec, -1')
        a('s_nop 1')

def stamp_dbg(a):
    if not (STAMP and 'dbg' in OPT): return
    lab=newlab('DBG')
    a('s_cmp_eq_u32 s2, 37')
    a(f's_cbranch_scc0 {lab}')
    a('s_cmp_eq_u32 s36, 0')
    a(f's_cbranch_scc0 {lab}')
    a('s_load_dwordx2 s[66:67], s[0:1], 72')
    a('s_memrealtime s[92:93]')
    a('s_memtime s[100:101]')
    a('s_waitcnt lgkmcnt(0)')
    a('s_sub_u32 s92, s92, s82')
    a('s_add_u32 s92, s92, s70')
    if 'rt' in OPT:
        for j in (1,2,4):
            a(f's_sub_u32 s{70+2*j}, s{70+2*j}, s82'); a(f's_add_u32 s{70+2*j}, s{70+2*j}, s70')
    a('s_mov_b32 s82, s70')
    a('s_mov_b32 s40, s66'); a('s_mov_b32 s41, s67'); a('s_mov_b32 s42, 256'); a('s_mov_b32 s43, 0x00020000')
    a('v_mov_b32 v2, 0')
    a('s_mov_b64 exec, 1')
    for i in range(16):
        a(f's_sub_u32 s3, s{70+2*i}, s70')
        a('v_mov_b32 v3, s3')
        a(f'buffer_store_dword v3, v2, s[40:43], 0 offen offset:{4*i}')
        a('s_nop 1')
    a('s_mov_b64 exec, -1')
    a.label(lab)

def R(a,n=1): return f'v{a}' if n==1 else f'v[{a}:{a+n-1}]'
def SR(a): return f's[{a}:{a+3}]'
def srd(a, d, ptr, size):
    a(f's_mov_b32 s{d}, s{ptr}')
    a(f's_mov_b32 s{d+1}, s{ptr+1}')
    a(f's_mov_b32 s{d+2}, {size}')
    a(f's_mov_b32 s{d+3}, 0x00020000')
def pk(op, d, a_, b_, c_=None, bsel=None, csel=None, neg=None):
    ops=[a_,b_]+([c_] if c_ is not None else [])
    n=len(ops)
    txt=[ (f'v[{o}:{o+1}]' if isinstance(o,int) else o) for o in ops]
    hi=[1]*n
    if bsel=='lo': hi[1]=0
    if csel=='lo': hi[2]=0
    s_=f'v_pk_{op}_f32 v[{d}:{d+1}], '+', '.join(txt)
    if hi!=[1]*n: s_+=' op_sel_hi:['+','.join(map(str,hi))+']'
    if neg: s_+=' '+neg
    return s_

pX,pWQ,pWO,pW1,pB1,pW2,pB2,pOUT,pWS = 4,6,8,12,14,16,18,20,22
sWS=28
W_=SR(sWS)

SLOT=28672; XS=16384; WST=12288
W1_SPARE=5*SLOT
SCR=W1_SPARE+WST
L_A=SCR; L_MU=SCR+512; L_CS=SCR+1024; L_CS1=SCR+1536; L_B1=SCR+2048; L_A2=SCR+2560; L_A2M=SCR+3072
L_CNT=SCR+4096
LDS_TOTAL=163840
W1_ADDR=[W1_SPARE, 3*SLOT, 3*SLOT+WST, 4*SLOT, 4*SLOT+WST, 0, WST, SLOT]
A_SLOT=[0,1,2,3,4,0,1,2]
L_RED=0
L_RING=73728
RINGSZ=20480; WD=10; XD=18
L_MX=0
G2CNT=32; G2TGT=4
L_WO=0
L_OX=65536
L_EX=131072

uid=[0]
def newlab(p):
    uid[0]+=1; return f'{p}_{uid[0]}'

def poll(a, nl, voff, soff, vt):
    PD=POLLD
    lab=newlab('POLL'); done=newlab('POLLD')
    mask=(1<<nl)-1
    a(f's_mov_b32 s66, {mask:#x}')
    a('s_mov_b32 s67, 0')
    a(f's_mov_b32 s68, {SPIN_MAX}')
    a('s_waitcnt vmcnt(0)')
    a('s_mov_b64 exec, s[66:67]')
    for k in range(PD-1):
        a(f'buffer_load_dwordx2 v[{vt+2*k}:{vt+2*k+1}], {voff}, {W_}, {soff} offen sc1')
        if PD>1: a('s_sleep 2')
    a.label(lab)
    for k in range(PD):
        kn=(k+PD-1)%PD
        a(f'buffer_load_dwordx2 v[{vt+2*kn}:{vt+2*kn+1}], {voff}, {W_}, {soff} offen sc1')
        a(f's_waitcnt vmcnt({PD-1})')
        a(f'v_cmp_eq_u64 vcc, s[64:65], v[{vt+2*k}:{vt+2*k+1}]')
        a('s_sub_u32 s68, s68, 1')
        a('s_cmp_eq_u32 s68, 0')
        a(f's_cbranch_scc1 {done}')
        a('s_cmp_eq_u64 vcc, s[66:67]')
        a(f's_cbranch_scc1 {done}')
        a('s_sleep 2')
    a(f's_branch {lab}')
    a.label(done)
    a('s_mov_b64 exec, -1')
    a.vmq=[]

def poll_wg(a, nl, voff, soff, vt, leader, lds_addr):
    oth=newlab('PWO'); done=newlab('PWD')
    va=vt+2*POLLD
    a(f'v_mov_b32 v{va}, {lds_addr}')
    a(f's_cmp_eq_u32 s36, {leader}')
    a(f's_cbranch_scc0 {oth}')
    poll(a, nl, voff, soff, vt)
    a(f'v_mov_b32 v{va+1}, 1')
    a('s_mov_b64 exec, 1')
    a(f'ds_write_b32 v{va}, v{va+1}')
    a('s_mov_b64 exec, -1')
    a(f's_branch {done}')
    a.label(oth)
    lab=newlab('PWL')
    a.label(lab)
    a(f'ds_read_b32 v{va+1}, v{va}')
    a('s_waitcnt lgkmcnt(0)')
    a(f'v_readfirstlane_b32 s66, v{va+1}')
    a('s_nop 0')
    a('s_cmp_eq_u32 s66, 0')
    a(f's_cbranch_scc0 {done}')
    a('s_sleep 1')
    a(f's_branch {lab}')
    a.label(done)
    a.vmq=[]

def signal(a, cnt_addr, last, flag_soff, vt):
    skip=newlab('SIG')
    a(f'v_mov_b32 v{vt}, {cnt_addr}')
    a(f'v_mov_b32 v{vt+1}, 1')
    a('s_mov_b64 exec, 1')
    a(f'ds_add_rtn_u32 v{vt+2}, v{vt}, v{vt+1}')
    a('s_waitcnt lgkmcnt(0)')
    a(f'v_readfirstlane_b32 s66, v{vt+2}')
    a(f'v_mov_b32 v{vt}, s64')
    a(f'v_mov_b32 v{vt+1}, s65')
    a(f'v_mov_b32 v{vt+2}, 0')
    a(f's_cmp_eq_u32 s66, {last}')
    a(f's_cbranch_scc0 {skip}')
    a(f'buffer_store_dwordx2 v[{vt}:{vt+1}], v{vt+2}, {W_}, {flag_soff} offen sc1')
    a.label(skip)
    a('s_mov_b64 exec, -1')

def gbar_arrive(a, vaddr, vone):
    a('s_mov_b64 exec, 1')
    a(f'ds_add_u32 v{vaddr}, v{vone}')
    a('s_mov_b64 exec, -1')
def gbar_wait(a, vaddr, vt, target):
    lab=newlab('GB')
    a.label(lab)
    a(f'ds_read_b32 v{vt}, v{vaddr}')
    a('s_waitcnt lgkmcnt(0)')
    a(f'v_readfirstlane_b32 s3, v{vt}')
    a('s_nop 0')
    a(f's_cmp_ge_u32 s3, {target}')
    a(f's_cbranch_scc0 {lab}')

def gen():
    a=Asm()
    a('s_cmp_ge_u32 s2, 256')
    a('s_cbranch_scc1 K_END')
    stamp(a,0)
    if STAMP and ('dbg' in OPT or 'rt' in OPT or 'span' in OPT): a('s_memrealtime s[82:83]')
    a('s_load_dwordx16 s[4:19], s[0:1], 0')
    a('s_load_dwordx2 s[20:21], s[0:1], 64')
    a('s_load_dwordx2 s[22:23], s[0:1], 80')
    a('v_and_b32 v1, 63, v0')
    a('v_lshrrev_b32 v2, 6, v0')
    a('s_and_b32 s48, s2, 7')
    a('v_readfirstlane_b32 s36, v2')
    a('s_lshr_b32 s49, s2, 3')
    a('s_and_b32 s50, s48, 1')
    a('s_lshr_b32 s51, s48, 1')
    a('s_lshl_b32 s50, s50, 3')
    a('s_and_b32 s52, s49, 7')
    a('s_add_u32 s38, s50, s52')
    a('s_lshl_b32 s51, s51, 2')
    a('s_lshr_b32 s52, s49, 3')
    a('s_add_u32 s39, s51, s52')
    a('s_and_b32 s37, s36, 3')
    a('v_and_b32 v3, 31, v1')
    a('v_lshrrev_b32 v4, 5, v1')
    a('s_cmp_ge_u32 s36, 4')
    a('s_cbranch_scc0 K_G0')

    def common_lds_addr(e):
        e('v_bfe_u32 v5, v1, 1, 3')
        e('v_xor_b32 v5, v5, v4')
        e('v_lshlrev_b32 v5, 4, v5')
        e('s_lshl_b32 s3, s37, 12')
        e('v_lshlrev_b32 v6, 7, v3')
        e('v_add3_u32 v12, v6, v5, s3')
        e('v_xor_b32 v13, 32, v12')
        e('v_xor_b32 v14, 64, v12')
        e('v_xor_b32 v15, 0x60, v12')
        e('v_lshlrev_b32 v6, 3, v4')
        e('v_bfe_u32 v7, v1, 2, 2')
        e('v_add_u32 v6, v6, v7')
        e('v_mul_u32_u24 v6, 192, v6')
        e('v_bfe_u32 v7, v1, 4, 1')
        e('v_lshlrev_b32 v7, 5, v7')
        e('v_and_b32 v8, 3, v1')
        e('v_lshlrev_b32 v8, 3, v8')
        e('v_add3_u32 v16, v6, v7, v8')

    g=Asm()
    g.label('K_G0')
    accQ,accK,accV=64,80,96
    FS0=[128,144,160,176]
    g('s_getpc_b64 s[62:63]')
    g.label('PF_0')
    g('s_sub_u32 s62, s62, PF_0-K_START')
    g('s_subb_u32 s63, s63, 0')
    g('s_lshr_b32 s60, s2, 3')
    g('s_and_b32 s60, s60, 7')
    g('s_lshl_b32 s60, s60, 2')
    g('s_add_u32 s60, s60, s37')
    g('s_lshl_b32 s60, s60, 10')
    g('v_lshlrev_b32 v9, 4, v1')
    g('v_add_u32 v9, s60, v9')
    g('v_min_u32 v10, K_END-K_START-16, v9')
    g('global_load_dwordx4 v[200:203], v10, s[62:63]')
    g('v_add_u32 v9, 0x8000, v9')
    g('v_min_u32 v10, K_END-K_START-16, v9')
    g('global_load_dwordx4 v[204:207], v10, s[62:63]')
    common_lds_addr(g)
    for r in range(64,112): g(f'v_mov_b32 v{r}, 0')
    g(f'v_add_u32 v17, {XS}, v16')
    g(f's_mov_b32 s56, {(-4*SLOT)&0xffffffff:#x}')
    g(f's_mov_b32 s57, {SLOT}')
    g(f'v_lshlrev_b32 v18, 2, v1')
    g(f'v_add_u32 v18, {L_CNT}, v18')
    g('v_mov_b32 v19, 0')
    g('s_mov_b64 exec, 0xffff')
    g('ds_write_b32 v18, v19')
    g('s_mov_b64 exec, -1')
    g('s_lshl_b32 s48, s37, 7')
    g('v_lshlrev_b32 v20, 2, v3')
    g('v_add_u32 v20, s48, v20')
    g(f'v_add_u32 v20, {L_A}, v20')
    g('v_lshlrev_b32 v23, 4, v4')
    g(f'v_add_u32 v24, {L_CS}, v23')
    g('v_lshlrev_b32 v25, 2, v3')
    g(f'v_add_u32 v25, {L_CS+64*4}, v25')
    g('v_add_u32 v27, s48, v23')
    g(f'v_add_u32 v27, {L_A}, v27')
    g('s_lshl_b32 s49, s38, 2')
    g('s_add_u32 s49, s49, s37')
    g('s_lshl_b32 s50, s49, 10')
    g('s_lshl_b32 s51, s39, 17')
    g('s_add_u32 s50, s50, s51')
    g(f's_add_u32 s52, s50, {WS_K}')
    g(f's_add_u32 s53, s50, {WS_K+65536}')
    g(f's_add_u32 s54, s50, {WS_V}')
    g(f's_add_u32 s51, s50, {WS_Q+65536}')
    g(f's_add_u32 s50, s50, {WS_Q}')
    g('v_lshlrev_b32 v28, 4, v1')
    g('v_and_b32 v29, 0x13, v3')
    g('v_bfe_u32 v30, v3, 2, 1')
    g('v_lshlrev_b32 v30, 3, v30')
    g('v_bfe_u32 v31, v3, 3, 1')
    g('v_lshlrev_b32 v31, 2, v31')
    g('v_or3_b32 v29, v29, v30, v31')
    g('v_lshlrev_b32 v30, 5, v4')
    g('v_add_u32 v29, v29, v30')
    g('v_lshlrev_b32 v29, 4, v29')
    g('v_bfe_u32 v30, v3, 4, 1')
    g('v_lshlrev_b32 v30, 16, v30')
    g('v_lshlrev_b32 v31, 8, v4')
    g('v_and_b32 v32, 15, v3')
    g('v_lshlrev_b32 v32, 4, v32')
    g('v_add3_u32 v30, v30, v31, v32')
    g('s_mul_i32 s55, s39, 1536')
    g('s_lshl_b32 s58, s49, 2')
    g('s_add_u32 s55, s55, s58')
    g(f's_add_u32 s55, s55, {WS_N}')
    g('v_lshlrev_b32 v31, 8, v4')
    g('s_waitcnt lgkmcnt(0)')
    srd(g,sWS,pWS,WS_SIZE)
    g(f's_load_dwordx2 s[64:65], s[{pWS}:{pWS+1}], 0')
    if 'tlb' in OPT:
        g('v_mov_b32 v40, 0')
        g('v_mov_b32 v41, 0')
        g('s_mov_b64 exec, 1')
        for sreg in ('s50','s52','s54'):
            g(f'buffer_store_dword v40, v41, {W_}, {sreg} offen sc1')
        g(f'buffer_store_dword v40, v41, {W_}, s55 offen sc1')
        g('s_mov_b64 exec, -1')
        g('v_lshlrev_b32 v41, 21, v1')
        g(f's_mov_b32 s40, s{pW2}'); g(f's_mov_b32 s41, s{pW2+1}'); g(f's_mov_b32 s42, {1376*512*2}'); g('s_mov_b32 s43, 0x00020000')
        g('buffer_load_dword v208, v41, s[40:43], 0 offen')
        g(f's_mov_b32 s44, s{pWO}'); g(f's_mov_b32 s45, s{pWO+1}'); g(f's_mov_b32 s46, {512*512*2}'); g('s_mov_b32 s47, 0x00020000')
        g('buffer_load_dword v209, v41, s[44:47], 0 offen')
        g(f's_mov_b32 s40, s{pOUT}'); g(f's_mov_b32 s41, s{pOUT+1}'); g(f's_mov_b32 s42, {2048*512*2}')
        g('buffer_load_dword v210, v41, s[40:43], 0 offen')
    def readlist(set_, ks):
        L=[f'ds_read_b128 {R(set_,4)}, v{12+ks}']
        for t in range(3):
            for e in range(2):
                L.append(f'ds_read_b64_tr_b16 {R(set_+4+4*t+2*e,2)}, v17 offset:{ks*3072+e*768+t*64}')
        return L
    def mfmalist(set_):
        return [f'v_mfma_f32_32x32x16_bf16 {R(accQ,16)}, {R(set_+4,4)}, {R(set_,4)}, {R(accQ,16)}',
                f'v_mfma_f32_32x32x16_bf16 {R(accK,16)}, {R(set_+8,4)}, {R(set_,4)}, {R(accK,16)}',
                f'v_mfma_f32_32x32x16_bf16 {R(accV,16)}, {R(set_,4)}, {R(set_+12,4)}, {R(accV,16)}']
    g('s_waitcnt lgkmcnt(0)')
    g('s_add_u32 s64, s64, 0x7f4a7c15')
    g('s_addc_u32 s65, s65, 0x9e3779b9')
    stamp(g,1)
    for st in range(8):
        if st==5: fstamp(g,0)
        g('s_barrier')
        if st==5: fstamp(g,1)
        if st==6: fstamp(g,10)
        if st==0: stamp(g,2)
        for ks in range(4):
            rl=readlist(FS0[ks],ks); ml=mfmalist(FS0[(ks+2)%4])
            if st==5: fstamp(g,2+2*ks)
            if st==0 and ks<2:
                for r_ in rl: g(r_)
                continue
            g('s_waitcnt lgkmcnt(7)')
            if st==5: fstamp(g,3+2*ks)
            g(ml[0]); g(rl[0]); g(rl[1]); g(rl[2])
            g(ml[1]); g(rl[3]); g(rl[4])
            if 'noq' not in OPT: g(ml[2])
            g(rl[5]); g(rl[6])
        if st<7:
            sr='s57' if A_SLOT[st+1]>A_SLOT[st] else 's56'
            for r in (12,13,14,15,17): g(f'v_add_u32 v{r}, {sr}, v{r}')
    g('s_waitcnt lgkmcnt(7)')
    for m in mfmalist(FS0[2]): g(m)
    g('s_waitcnt lgkmcnt(0)')
    for m in mfmalist(FS0[3]): g(m)
    stamp(g,3)
    g('s_barrier')
    g('s_setprio 3')
    CSQ=128; CSK=144; AV=160; MV=176
    g('ds_read_b32 v21, v20')
    g(f'ds_read_b32 v22, v20 offset:{L_MU-L_A}')
    for gg in range(4): g(f'ds_read_b128 {R(CSK+4*gg,4)}, v24 offset:{(32+8*gg)*4}')
    g('ds_read_b32 v26, v25')
    for gg in range(4): g(f'ds_read_b128 {R(MV+4*gg,4)}, v27 offset:{8*gg*4+L_MU-L_A}')
    for gg in range(4): g(f'ds_read_b128 {R(AV+4*gg,4)}, v27 offset:{8*gg*4}')
    g('s_waitcnt lgkmcnt(13)')
    g('v_mul_f32 v38, v21, v22')
    g(f'v_mul_f32 v34, {f2u(QSCALE):#x}, v21')
    g('v_sub_f32 v38, 0, v38')
    g(f'v_mul_f32 v36, {f2u(QSCALE):#x}, v38')
    g('s_waitcnt lgkmcnt(9)')
    for r in range(16): g(f'v_mul_f32 v{CSK+r}, v38, v{CSK+r}')
    for r in range(16): g(f'v_fmac_f32 v{CSK+r}, v21, v{accK+r}')
    for i in range(8): g(f'v_cvt_pk_bf16_f32 v{accK+i}, v{CSK+2*i}, v{CSK+2*i+1}')
    g(f'buffer_store_dwordx4 {R(accK,4)}, v29, {W_}, s52 offen sc1')
    g(f'buffer_store_dwordx4 {R(accK+4,4)}, v29, {W_}, s53 offen sc1')
    for gg in range(4): g(f'ds_read_b128 {R(CSQ+4*gg,4)}, v24 offset:{(8*gg)*4}')
    g('s_waitcnt lgkmcnt(8)')
    g('v_sub_f32 v26, 0, v26')
    g('s_waitcnt lgkmcnt(4)')
    for r in range(16): g(f'v_fmac_f32 v{accV+r}, v26, v{MV+r}')
    for r in range(16): g(f'v_mul_f32 v{accV+r}, v{accV+r}, v{AV+r}')
    for i in range(8): g(f'v_cvt_pk_bf16_f32 v{AV+i}, v{accV+2*i}, v{accV+2*i+1}')
    g(f'buffer_store_dwordx4 {R(AV,4)}, v30, {W_}, s54 offen sc1')
    g(f'buffer_store_dwordx4 {R(AV+4,4)}, v30, {W_}, s54 offen offset:512 sc1')
    g('s_waitcnt lgkmcnt(0)')
    for r in range(16): g(f'v_mul_f32 v{CSQ+r}, v36, v{CSQ+r}')
    for r in range(16): g(f'v_fmac_f32 v{CSQ+r}, v34, v{accQ+r}')
    for i in range(8): g(f'v_cvt_pk_bf16_f32 v{accQ+i}, v{CSQ+2*i}, v{CSQ+2*i+1}')
    g(f'buffer_store_dwordx4 {R(accQ,4)}, v28, {W_}, s50 offen sc1')
    g(f'buffer_store_dwordx4 {R(accQ+4,4)}, v28, {W_}, s51 offen sc1')
    for (b,src) in ((42,CSK),(46,CSQ)):
        g(f'v_mul_f32 v{b}, v{src}, v{src}'); g(f'v_mul_f32 v{b+1}, v{src+8}, v{src+8}')
        for i in range(1,8):
            g(f'v_fmac_f32 v{b}, v{src+i}, v{src+i}'); g(f'v_fmac_f32 v{b+1}, v{src+8+i}, v{src+8+i}')
    g(f'v_max3_f32 v38, |v{accV}|, |v{accV+1}|, |v{accV+2}|')
    g('v_max_f32 v34, v42, v43')
    g('v_max_f32 v35, v46, v47')
    for r in range(3,15,2): g(f'v_max3_f32 v38, v38, |v{accV+r}|, |v{accV+r+1}|')
    g(f'v_max_f32 v36, v38, |v{accV+15}|')
    g('s_nop 1')
    for sh in (1,2,4,8):
        for r in (34,35,36): g(f'v_max_f32_dpp v{r}, v{r}, v{r} row_shr:{sh} row_mask:0xf bank_mask:0xf')
    for r in (34,35,36): g(f'v_max_f32_dpp v{r}, v{r}, v{r} row_bcast:15 row_mask:0xa bank_mask:0xf')
    g('s_nop 1')
    g('s_mov_b32 s66, 0x80000000')
    g('s_mov_b32 s67, 0x80000000')
    g('s_mov_b64 exec, s[66:67]')
    g(f'buffer_store_dword v34, v31, {W_}, s55 offen sc1')
    g(f'buffer_store_dword v35, v31, {W_}, s55 offen offset:512 sc1')
    g(f'buffer_store_dword v36, v31, {W_}, s55 offen offset:1024 sc1')
    g('s_mov_b64 exec, -1')
    stamp(g,4)
    g('s_setprio 0')
    g('s_waitcnt vmcnt(0)')
    g('s_lshl_b32 s48, s39, 4')
    g('s_add_u32 s48, s48, s38')
    g('s_lshl_b32 s48, s48, 7')
    g(f's_add_u32 s48, s48, {F_1}')
    signal(g, L_CNT, 3, 's48', 40)
    stamp(g,5)

    h=Asm()
    h.label('K_G1')
    h('s_setprio 2')
    sX,sWQ,sW1,sB1=24,32,40,44
    XF=128
    h('s_mul_i32 s50, s39, 3')
    h('s_lshl_b32 s51, s39, 1')
    h('s_add_u32 s51, s51, 11')
    h('s_cmp_lt_u32 s39, 11')
    h('s_cselect_b32 s48, s50, s51')
    h('s_cselect_b32 s49, 3, 2')
    h('v_lshrrev_b32 v20, 3, v1')
    h('v_and_b32 v21, 7, v1')
    h('v_lshrrev_b32 v22, 4, v1')
    h('v_xor_b32 v21, v21, v22')
    h('v_lshlrev_b32 v20, 10, v20')
    h('v_lshlrev_b32 v22, 4, v21')
    h('v_add_u32 v2, v20, v22')
    h('v_xor_b32 v22, 64, v22')
    h('v_add_u32 v22, 7168, v22')
    h('v_add_u32 v18, v20, v22')
    h('v_add_u32 v19, 14336, v2')
    h('v_add_u32 v20, 14336, v18')
    VX=[2,18,19,20]
    VW=[21,22,23]; VW1=[24,25,26]
    for p in range(3):
        h(f'v_add_u32 v27, {64*p}, v1')
        h('v_mul_u32_u24 v28, 43691, v27')
        h('v_lshrrev_b32 v28, 19, v28')
        h('v_mul_u32_u24 v29, 12, v28')
        h('v_sub_u32 v29, v27, v29')
        h('v_lshrrev_b32 v30, 2, v29')
        h('v_lshlrev_b32 v30, 10, v30')
        h('v_and_b32 v31, 3, v29')
        h('v_lshlrev_b32 v31, 4, v31')
        h('v_mul_u32_u24 v32, 3072, v28')
        h(f'v_add3_u32 v{VW[p]}, v32, v30, v31')
        if p: h(f'v_subrev_u32 v{VW[p]}, {1024*p}, v{VW[p]}')
        h('v_mul_u32_u24 v32, 2752, v28')
        h('v_lshlrev_b32 v31, 4, v29')
        h(f'v_add_u32 v{VW1[p]}, v32, v31')
        if p: h(f'v_subrev_u32 v{VW1[p]}, {1024*p}, v{VW1[p]}')
    h('s_lshl_b32 s50, s38, 17')
    h('s_lshl_b32 s51, s37, 15')
    h('s_add_u32 s50, s50, s51')
    h('s_mul_i32 s51, s37, 49152')
    h('s_lshl_b32 s52, s39, 6')
    h('s_add_u32 s51, s51, s52')
    h('s_mul_i32 s52, s37, 44032')
    h('s_lshl_b32 s53, s48, 6')
    h('s_add_u32 s52, s52, s53')
    h('s_lshl_b32 s53, s37, 12')
    h('s_mul_i32 s54, s37, 3072')
    h('s_lshl_b32 s56, s48, 6')
    h('s_and_b32 s58, s39, 3')
    h('s_lshl_b32 s58, s58, 1')
    h('s_add_u32 s58, s58, s38')
    h('s_and_b32 s58, s58, 7')
    h('s_waitcnt lgkmcnt(0)')
    srd(h,sX,pX,2048*512*2); srd(h,sWQ,pWQ,512*1536*2)
    def dmaA(st):
        slot=A_SLOT[st]*SLOT; L=[]
        L.append((f's_add_u32 s61, s58, {st}',None))
        L.append(('s_and_b32 s61, s61, 7',None))
        L.append((f's_add_u32 m0, s53, {slot}',None))
        L.append(('s_lshl_b32 s55, s61, 7',None))
        L.append(('s_add_u32 s55, s55, s50',None))
        for i in range(4):
            L.append((f'buffer_load_dwordx4 v{VX[i]}, {SR(sX)}, s55 offen offset:{1024*i} lds',f'A{st}'))
        L.append((f's_add_u32 m0, s54, {slot+XS}',None))
        L.append((f's_mul_i32 s55, s61, {64*3072}',None))
        L.append(('s_add_u32 s55, s55, s51',None))
        for p in range(3):
            L.append((f'buffer_load_dwordx4 v{VW[p]}, {SR(sWQ)}, s55 offen offset:{1024*p} lds',f'A{st}'))
        return L
    def dmaB(st):
        L=[]
        L.append((f's_add_u32 s61, s58, {st}',None))
        L.append(('s_and_b32 s61, s61, 7',None))
        L.append((f's_add_u32 m0, s54, {W1_ADDR[st]}',None))
        L.append((f's_mul_i32 s55, s61, {64*2752}',None))
        L.append(('s_add_u32 s55, s55, s52',None))
        for p in range(3):
            L.append((f'buffer_load_dwordx4 v{VW1[p]}, {SR(sW1)}, s55 offen offset:{1024*p} lds',f'B{st}'))
        return L
    def emit(e, dmas):
        for (ins,tag) in dmas:
            if tag: e.vm(tag,ins)
            else: e(ins)
    stamp(h,1)
    NINIT=3
    for o_ in OPT:
        if o_.startswith('NI='): NINIT=int(o_[3:])
    for st in range(NINIT): emit(h,dmaA(st))
    stamp(h,2)
    srd(h,sW1,pW1,512*1376*2); srd(h,sWS,pWS,WS_SIZE); srd(h,sB1,pB1,1376*2)
    h(f's_load_dwordx2 s[64:65], s[{pWS}:{pWS+1}], 0')
    common_lds_addr(h)
    h('v_lshlrev_b32 v27, 2, v1')
    h.vm('b1', f'buffer_load_dword v31, v27, {SR(sB1)}, s56 offen')
    h('s_cmp_eq_u32 s37, 3')
    h('s_cselect_b32 s57, 0, s37')
    h('s_lshl_b32 s3, s57, 6')
    h(f's_add_u32 s3, s3, {XS}')
    h('v_add_u32 v17, s3, v16')
    PAT=112; ONES=8; SUMA=[116,120]; GRA=[124,104]; CSA=108
    h('v_and_b32 v27, 15, v1')
    h('v_bfe_u32 v28, v1, 4, 1')
    h('v_cmp_eq_u32 vcc, v27, v28')
    h('v_mov_b32 v29, 0x3f803f80')
    h('s_nop 0')
    h(f'v_cndmask_b32 v{PAT}, 0, v29, vcc')
    for r in range(1,4): h(f'v_mov_b32 v{PAT+r}, v{PAT}')
    for r in range(4): h(f'v_mov_b32 v{ONES+r}, v29')
    for b in SUMA+GRA+[CSA]:
        for r in range(4): h(f'v_mov_b32 v{b+r}, 0')
    h('v_lshrrev_b32 v28, 4, v1')
    h('v_bfe_u32 v29, v1, 1, 3')
    h('v_xor_b32 v28, v28, v29')
    h('v_lshlrev_b32 v28, 4, v28')
    h('v_lshlrev_b32 v27, 7, v27')
    h('s_lshl_b32 s3, s37, 12')
    h('v_add3_u32 v5, v27, v28, s3')
    h('v_xor_b32 v6, 64, v5')
    TMP=40; XS16=56
    h('s_waitcnt lgkmcnt(0)')
    h('s_add_u32 s64, s64, 0x7f4a7c15')
    h('s_addc_u32 s65, s65, 0x9e3779b9')
    h(f's_mov_b32 s59, {SLOT}')
    h(f's_mov_b32 s60, {(-4*SLOT)&0xffffffff:#x}')
    if NINIT==3: sched={0:dmaA(3)+dmaA(4), 1:dmaB(0), 2:dmaA(5), 3:dmaA(6), 4:dmaA(7), 5:dmaB(1)+dmaB(2), 6:dmaB(3)+dmaB(4), 7:dmaB(5)+dmaB(6)}
    elif NINIT==2: sched={0:dmaA(2)+dmaA(3), 1:dmaA(4)+dmaB(0), 2:dmaA(5), 3:dmaA(6), 4:dmaA(7), 5:dmaB(1)+dmaB(2), 6:dmaB(3)+dmaB(4), 7:dmaB(5)+dmaB(6)}
    else: sched={0:dmaA(1)+dmaA(2), 1:dmaA(3)+dmaA(4), 2:dmaA(5)+dmaB(0), 3:dmaA(6), 4:dmaA(7), 5:dmaB(1)+dmaB(2), 6:dmaB(3)+dmaB(4), 7:dmaB(5)+dmaB(6)}
    for st in range(8):
        if st==5: fstamp(h,0)
        h.wait_vm(f'A{st}')
        if st==5: fstamp(h,1)
        h('s_barrier')
        if st==5: fstamp(h,2)
        if st==0: stamp(h,3)
        dm=sched[st]
        for u in range(2):
            for kk in range(2):
                h(f'ds_read_b128 {R(XS16+8*u+4*kk,4)}, v{5+kk} offset:{2048*u}')
        for ks in range(4):
            for e in range(2):
                h(f'ds_read_b64_tr_b16 {R(TMP+4*ks+2*e,2)}, v17 offset:{ks*3072+e*768}')
        if st==5: fstamp(h,3)
        k=0; nv=0
        while nv<2 and k<len(dm):
            if dm[k][1]: h.vm(dm[k][1],dm[k][0]); nv+=1
            else: h(dm[k][0])
            k+=1
        val=[]
        for u in range(2):
            for kk in range(2):
                x=XS16+8*u+4*kk
                if 'nostat' not in OPT: val.append(f'v_mfma_f32_16x16x32_bf16 {R(SUMA[u],4)}, {R(ONES,4)}, {R(x,4)}, {R(SUMA[u],4)}')
                val.append(f'ds_read_b128 {R(XF+16*st+4*(2*u+kk),4)}, v{12+2*u+kk}')
                if 'nostat' not in OPT: val.append(f'v_mfma_f32_16x16x32_bf16 {R(GRA[u],4)}, {R(x,4)}, {R(x,4)}, {R(GRA[u],4)}')
        val.append('s_waitcnt lgkmcnt(4)')
        for ks in range(4):
            if 'nostat' not in OPT: val.append(f'v_mfma_f32_16x16x32_bf16 {R(CSA,4)}, {R(TMP+4*ks,4)}, {R(PAT,4)}, {R(CSA,4)}')
        if st<7:
            d=(A_SLOT[st+1]-A_SLOT[st])*SLOT
            sr='s59' if d==SLOT else 's60'
            for r in (12,13,14,15,17,5,6): val.append(f'v_add_u32 v{r}, {sr}, v{r}')
        if st==5: fstamp(h,4)
        h('s_waitcnt lgkmcnt(8)')
        if st==5: fstamp(h,5)
        rest=dm[k:]; vi=0; fs_=6
        for (ins,tag) in rest:
            if tag:
                for _ in range(2):
                    if vi<len(val): h(val[vi]); vi+=1
                h.vm(tag,ins)
                if st==5: fstamp(h,fs_); fs_+=1
            else: h(ins)
        while vi<len(val):
            h(val[vi]); vi+=1
            if st==5 and val[vi-1].startswith('s_waitcnt'): fstamp(h,fs_); fs_+=1
        if st==5: fstamp(h,fs_); fs_+=1
        if st==6: fstamp(h,15)
    h('s_waitcnt lgkmcnt(0)')
    h('v_and_b32 v27, 3, v1')
    h('v_cmp_eq_u32 vcc, 1, v27')
    h('v_cmp_eq_u32 s[66:67], 2, v27')
    h('v_cmp_eq_u32 s[68:69], 3, v27')
    h('v_and_b32 v28, 15, v1')
    h('v_lshlrev_b32 v28, 2, v28')
    h('s_lshl_b32 s3, s37, 7')
    h('v_add_u32 v28, s3, v28')
    h(f'v_add_u32 v28, {L_A}, v28')
    for u in range(2):
        gr=GRA[u]; q=32+2*u
        h(f'v_cndmask_b32 v{q}, v{gr}, v{gr+1}, vcc')
        h(f'v_cndmask_b32 v{q}, v{q}, v{gr+2}, s[66:67]')
        h(f'v_cndmask_b32 v{q}, v{q}, v{gr+3}, s[68:69]')
    for u in range(2):
        q=32+2*u; m=SUMA[u]
        h(f'v_mul_f32 v{m}, {f2u(1/512):#x}, v{m}')
        h(f'v_mul_f32 v{q}, {f2u(1/512):#x}, v{q}')
    for u in range(2):
        q=32+2*u; m=SUMA[u]
        h(f'v_fma_f32 v{q}, -v{m}, v{m}, v{q}')
        h(f'v_max_f32 v{q}, 0, v{q}')
        h(f'v_add_f32 v{q+1}, {f2u(1e-5):#x}, v{q}')
    for u in range(2):
        q=32+2*u
        h(f'v_rsq_f32 v{q+1}, v{q+1}')
    h('s_nop 0')
    for u in range(2):
        q=32+2*u; m=SUMA[u]
        h(f'v_mul_f32 v{m+1}, v{q+1}, v{q+1}')
        h(f'v_mul_f32 v{m+1}, v{m+1}, v{q}')
        h(f'v_add_f32 v{m+1}, {f2u(1e-5):#x}, v{m+1}')
    for u in range(2):
        m=SUMA[u]
        h(f'v_rsq_f32 v{m+1}, v{m+1}')
    h('s_mov_b32 s66, 0x00f0000f')
    h('s_mov_b32 s67, 0xf0000f00')
    for u in range(2):
        q=32+2*u; m=SUMA[u]
        h(f'v_mul_f32 v{m+2}, v{m+1}, v{q+1}')
        h(f'v_mul_f32 v{m+3}, v{m+2}, v{m}')
    h('s_mov_b64 exec, s[66:67]')
    for u in range(2):
        q=32+2*u; m=SUMA[u]
        h(f'ds_write_b32 v28, v{q+1} offset:{64*u}')
        h(f'ds_write_b32 v28, v{m} offset:{64*u+L_MU-L_A}')
        h(f'ds_write_b32 v28, v{m+2} offset:{64*u+L_A2-L_A}')
        h(f'ds_write_b32 v28, v{m+3} offset:{64*u+L_A2M-L_A}')
    h('s_mov_b64 exec, -1')
    h('v_and_b32 v29, 15, v1')
    h('v_lshlrev_b32 v29, 6, v29')
    h('v_lshrrev_b32 v30, 4, v1')
    h('v_lshlrev_b32 v30, 4, v30')
    h('s_lshl_b32 s55, s57, 7')
    h('v_add3_u32 v29, v29, v30, s55')
    h(f'v_add_u32 v29, {L_CS}, v29')
    h('s_mov_b32 s62, 0x00030003')
    h('s_mov_b32 s63, 0x00030003')
    h('s_mov_b64 exec, s[62:63]')
    h(f'ds_write_b128 v29, {R(CSA,4)}')
    h('s_mov_b64 exec, -1')
    h('v_lshlrev_b32 v27, 2, v3')
    h('v_add_u32 v28, s3, v27')
    h(f'v_add_u32 v28, {L_A2}, v28')
    h('s_waitcnt lgkmcnt(0)')
    h('ds_read_b32 v38, v28')
    h(f'ds_read_b32 v30, v28 offset:{L_A2M-L_A2}')
    h.wait_vm('b1')
    h('v_lshlrev_b32 v34, 16, v31')
    h('v_and_b32 v35, 0xffff0000, v31')
    h('v_lshlrev_b32 v28, 3, v1')
    h(f'v_add_u32 v28, {L_B1}, v28')
    h('v_cmp_gt_u32 vcc, 48, v1')
    h('s_and_saveexec_b64 s[66:67], vcc')
    h('ds_write_b64 v28, v[34:35]')
    h('s_mov_b64 exec, s[66:67]')
    ACC=[64,80,96]
    for r in range(64,112): h(f'v_mov_b32 v{r}, 0')
    FS=[40,52,112]
    TS=[57,59,60]
    for sl in range(3):
        h(f's_add_u32 s3, s37, {sl}')
        h('s_cmp_ge_u32 s3, 3')
        h('s_cselect_b32 s55, 3, 0')
        h('s_sub_u32 s3, s3, s55')
        h('s_cmp_ge_u32 s3, 3')
        h('s_cselect_b32 s55, 3, 0')
        h('s_sub_u32 s3, s3, s55')
        h(f's_mov_b32 s{TS[sl]}, s3')
        h('s_lshl_b32 s3, s3, 6')
        h(f'v_add_u32 v{12+sl}, s3, v16')
    PAT2=8; CS1A=124
    for r in range(4):
        h(f'v_mov_b32 v{PAT2+r}, v{PAT}')
        h(f'v_mov_b32 v{CS1A+r}, 0')
    cur=[0]
    def setbase(st):
        d=W1_ADDR[st]-cur[0]
        if d:
            for sl in range(3): h(f'v_add_u32 v{12+sl}, {d&0xffffffff:#x}, v{12+sl}')
        cur[0]=W1_ADDR[st]
    def readsB(n):
        st,ks=divmod(n,4); fs=FS[n%3]
        if ks==0: setbase(st)
        for sl in range(3):
            for e in range(2):
                h(f'ds_read_b64_tr_b16 {R(fs+4*sl+2*e,2)}, v{12+sl} offset:{ks*3072+e*768}')
    def mfmaB(n):
        fs=FS[n%3]
        for sl in range(3):
            h(f'v_mfma_f32_32x32x16_bf16 {R(ACC[sl],16)}, {R(fs+4*sl,4)}, {R(XF+4*n,4)}, {R(ACC[sl],16)}')
            if sl==1:
                h(f'v_mfma_f32_16x16x32_bf16 {R(CS1A,4)}, {R(fs,4)}, {R(PAT2,4)}, {R(CS1A,4)}')
    h(f'v_mov_b32 v17, {L_CNT+12}')
    h('v_mov_b32 v7, 1')
    h.wait_vm(['B0','B1'])
    h('s_waitcnt lgkmcnt(0)')
    stamp(h,4)
    h('s_barrier')
    bar={8:['B2','B3','B4','B5'], 24:['B6','B7']}
    emit(h,dmaB(7))
    readsB(0); readsB(1)
    for n in range(32):
        m=n+2
        if m+1 in bar:
            h.wait_vm(bar[m+1])
            gbar_arrive(h, 17, 7)
        if m<32 and m in bar:
            gbar_wait(h, 17, 6, 4 if m==8 else 8)
            readsB(m)
        elif m<32:
            h('s_waitcnt lgkmcnt(6)')
            readsB(m)
        elif m==32:
            h('s_waitcnt lgkmcnt(6)')
        else:
            h('s_waitcnt lgkmcnt(0)')
        mfmaB(n)
    h('v_and_b32 v29, 15, v1')
    h('v_lshlrev_b32 v29, 6, v29')
    h('v_lshrrev_b32 v27, 4, v1')
    h('v_lshlrev_b32 v27, 4, v27')
    h(f's_lshl_b32 s55, s{TS[0]}, 7')
    h('v_add3_u32 v29, v29, v27, s55')
    h(f'v_add_u32 v29, {L_CS1}, v29')
    h('s_nop 1')
    h('s_mov_b64 exec, s[62:63]')
    h(f'ds_write_b128 v29, {R(CS1A,4)}')
    h('s_mov_b64 exec, -1')
    h('s_waitcnt lgkmcnt(0)')
    gbar_arrive(h, 17, 7)
    stamp(h,5)
    gbar_wait(h, 17, 6, 12)
    C1=-2*1.4426950408889634*0.7978845608028654
    C2=C1*0.044715
    h(f's_mov_b32 s66, {f2u(C2):#x}')
    h(f'v_mov_b32 v32, {f2u(C1):#x}')
    h('v_lshlrev_b32 v23, 4, v4')
    h('v_lshlrev_b32 v28, 4, v1')
    h('s_lshl_b32 s53, s38, 2')
    h('s_add_u32 s53, s53, s37')
    h('s_mul_i32 s53, s53, 86')
    CSR=[128,160,192]; B1R=[144,176,208]
    for sl in range(3):
        h(f's_lshl_b32 s3, s{TS[sl]}, 7')
        h('v_add_u32 v24, s3, v23')
        h(f'v_add_u32 v24, {L_CS1}, v24')
        for gg in range(4):
            h(f'ds_read_b128 {R(CSR[sl]+4*gg,4)}, v24 offset:{8*gg*4}')
            h(f'ds_read_b128 {R(B1R[sl]+4*gg,4)}, v24 offset:{8*gg*4+L_B1-L_CS1}')
        if sl==0: h('s_waitcnt lgkmcnt(0)')
    for sl in range(3):
        acc=ACC[sl]; cs=CSR[sl]; b1=B1R[sl]
        lab=f'K_SKIP{sl}'
        h(f's_cmp_ge_u32 s{TS[sl]}, s49')
        h(f's_cbranch_scc1 {lab}')
        h(f's_add_u32 s54, s48, s{TS[sl]}')
        h('s_lshl_b32 s54, s54, 1')
        h('s_add_u32 s54, s54, s53')
        h('s_lshl_b32 s54, s54, 10')
        h(f's_add_u32 s54, s54, {WS_H}')
        if sl==1: h('s_waitcnt lgkmcnt(0)')
        for r in range(16): h(f'v_fma_f32 v{b1+r}, -v{cs+r}, v30, v{b1+r}')
        for r in range(16): h(f'v_fma_f32 v{acc+r}, v{acc+r}, v38, v{b1+r}')
        for r in range(16): h(f'v_mul_f32 v{cs+r}, v{acc+r}, v{acc+r}')
        for r in range(16): h(f'v_fma_f32 v{cs+r}, v{cs+r}, s66, v32')
        for r in range(16): h(f'v_mul_f32 v{cs+r}, v{cs+r}, v{acc+r}')
        for r in range(16): h(f'v_exp_f32 v{cs+r}, v{cs+r}')
        for r in range(16): h(f'v_add_f32 v{cs+r}, 1.0, v{cs+r}')
        for r in range(16): h(f'v_rcp_f32 v{cs+r}, v{cs+r}')
        for r in range(16): h(f'v_mul_f32 v{acc+r}, v{acc+r}, v{cs+r}')
        for i in range(8): h(f'v_cvt_pk_bf16_f32 v{b1+i}, v{acc+2*i}, v{acc+2*i+1}')
        h(f'buffer_store_dwordx4 {R(b1,4)}, v28, {W_}, s54 offen sc1')
        h(f'buffer_store_dwordx4 {R(b1+4,4)}, v28, {W_}, s54 offen offset:1024 sc1')
        h.label(lab)
    stamp(h,6)
    h('s_waitcnt vmcnt(0)')
    h.vmq=[]
    h('s_lshl_b32 s48, s38, 4')
    h('s_add_u32 s48, s48, s39')
    h('s_lshl_b32 s48, s48, 7')
    h(f's_add_u32 s48, s48, {F_2}')
    signal(h, L_CNT+4, 3, 's48', 40)

    h('s_setprio 2' if 'g2hi' in OPT else 's_setprio 0')
    h('s_and_b32 s52, s2, 7')
    h('s_lshr_b32 s53, s2, 3')
    h('s_and_b32 s54, s53, 3')
    h('s_lshl_b32 s52, s52, 2')
    h('s_add_u32 s58, s52, s54')
    h('s_lshr_b32 s59, s53, 2')
    h('v_lshlrev_b32 v5, 4, v1')
    h('v_lshlrev_b32 v8, 7, v1')
    sWw=24
    h('s_lshr_b32 s52, s2, 3')
    h('s_lshl_b32 s52, s52, 2')
    h('s_add_u32 s52, s52, s37')
    h('s_lshl_b32 s52, s52, 14')
    h(f's_cmp_ge_u32 s52, {1376*1024}')
    h(f's_cselect_b32 s{sWw}, s{pWO}, s{pW2}')
    h(f's_cselect_b32 s{sWw+1}, s{pWO+1}, s{pW2+1}')
    h(f's_cselect_b32 s53, {1376*1024}, 0')
    h('s_sub_u32 s52, s52, s53')
    h('s_cmp_eq_u32 s53, 0')
    h(f's_mov_b32 s26, {512*512*2}')
    h(f's_cselect_b32 s26, {1376*512*2}, s26')
    h(f's_mov_b32 s{sWw+3}, 0x00020000')
    for k in range(0 if 'nowarm' in OPT else 16):
        h(f'buffer_load_dwordx4 v[40:43], v5, {SR(sWw)}, s52 offen offset:{1024*(k%4)}')
        if k%4==3: h('s_add_u32 s52, s52, 4096')
    sW2=24
    h('s_lshr_b32 s52, s58, 1')
    h('s_lshl_b32 s52, s52, 11')
    h(f's_add_u32 s52, s52, {F_2}')
    stamp(h,7)
    poll_wg(h, 16, 'v8', 's52', 26, 4, L_CNT+20)
    stamp(h,8)
    srd(h,sW2,pW2,1376*512*2)
    h('s_sub_u32 s60, s36, 4')
    h('s_mul_i32 s61, s60, 22')
    h('s_cmp_eq_u32 s60, 3')
    h('s_cselect_b32 s52, 1, 0')
    h('s_sub_u32 s61, s61, s52')
    h('s_cmp_lt_u32 s60, 2')
    h('s_cselect_b32 s62, 22, 21')
    h('s_lshl_b32 s63, s59, 1')
    h('s_and_b32 s52, s58, 3')
    h('s_add_u32 s63, s63, s52')
    h('s_sub_u32 s57, s62, s63')
    h('s_add_u32 s61, s61, s63')
    h('s_lshl_b32 s52, s58, 1')
    h('s_mul_i32 s52, s52, 86')
    h('s_add_u32 s52, s52, s61')
    h('s_lshl_b32 s52, s52, 10')
    h(f's_add_u32 s52, s52, {WS_H}')
    h('s_lshl_b32 s54, s61, 14')
    h('s_lshl_b32 s55, s59, 7')
    h('s_add_u32 s54, s54, s55')
    h('s_lshl_b32 s56, s62, 10')
    h('s_lshl_b32 s53, s62, 14')
    h('s_mov_b32 s50, s57')
    h(f's_mul_i32 s55, s60, {RINGSZ}')
    h(f's_add_u32 s55, s55, {L_RING}')
    def wdma_voff(e):
        e('v_lshrrev_b32 v10, 3, v1')
        e('v_lshlrev_b32 v10, 10, v10')
        e('v_and_b32 v11, 7, v1')
        e('v_bfe_u32 v12, v1, 4, 1')
        e('v_lshlrev_b32 v12, 2, v12')
        e('v_xor_b32 v11, v11, v12')
        e('v_lshlrev_b32 v11, 4, v11')
        e('v_add_u32 v10, v10, v11')
        e('v_add_u32 v11, 7168, v10')
    wdma_voff(h)
    h(f'v_add_u32 v17, {86*1024}, v5')
    def tr_addr(e, dst, base_s):
        e('v_bfe_u32 v13, v1, 2, 2')
        e('v_lshlrev_b32 v14, 2, v4')
        e('v_add_u32 v14, v14, v13')
        e('v_lshlrev_b32 v14, 7, v14')
        e('v_bfe_u32 v15, v1, 4, 1')
        e('v_lshlrev_b32 v15, 1, v15')
        e('v_and_b32 v16, 1, v1')
        e('v_add_u32 v15, v15, v16')
        e('v_lshrrev_b32 v13, 1, v13')
        e('v_lshlrev_b32 v13, 2, v13')
        e('v_xor_b32 v15, v15, v13')
        e('v_lshlrev_b32 v15, 4, v15')
        e('v_bfe_u32 v16, v1, 1, 1')
        e('v_lshlrev_b32 v16, 3, v16')
        e('v_add3_u32 v14, v14, v15, v16')
        e(f'v_add_u32 v{dst}, {base_s}, v14')
        e(f'v_xor_b32 v{dst+1}, 64, v{dst}')
    tr_addr(h, 18, 's55')
    GA=[[192,208],[224,240]]
    XR=[48+8*i for i in range(XD)]
    WB=[24,32]
    def x_issue(i):
        b=XR[i%XD]
        h.vm(f'X{i}', f'buffer_load_dwordx4 {R(b,4)}, v5, {W_}, s52 offen sc1')
        h.vm(f'X{i}', f'buffer_load_dwordx4 {R(b+4,4)}, v17, {W_}, s52 offen sc1')
        h('s_add_u32 s52, s52, 1024')
        h('s_sub_u32 s57, s57, 1')
        h('s_cmp_eq_u32 s57, 0')
        h('s_cselect_b32 s63, s56, 0')
        h('s_sub_u32 s52, s52, s63')
    def w_issue(i):
        h(f's_add_u32 m0, s55, {(i%WD)*2048}')
        h('s_sub_u32 s50, s50, 1')
        h.vm(f'W{i}', f'buffer_load_dwordx4 v10, {SR(sW2)}, s54 offen lds')
        h.vm(f'W{i}', f'buffer_load_dwordx4 v11, {SR(sW2)}, s54 offen offset:1024 lds')
        h('s_add_u32 s54, s54, 16384')
        h('s_cmp_eq_u32 s50, 0')
        h('s_cselect_b32 s63, s53, 0')
        h('s_sub_u32 s54, s54, s63')
    def g2_wread(i):
        for ct in range(2):
            for e in range(2):
                h(f'ds_read_b64_tr_b16 {R(WB[i%2]+4*ct+2*e,2)}, v{18+ct} offset:{(i%WD)*2048+e*1024}')
    if 'nog2' in OPT: h('s_branch K_G2_DONE')
    h.vmq=[]
    for i in range(XD):
        if i<WD: w_issue(i)
        x_issue(i)
    for tt in range(2):
        for ct in range(2):
            for r in range(16): h(f'v_mov_b32 v{GA[tt][ct]+r}, 0')
    lab=newlab('G2W'); done=newlab('G2WD')
    h(f'v_mov_b32 v12, {L_CNT+G2CNT}')
    h.label(lab)
    h('ds_read_b32 v13, v12')
    h('s_waitcnt lgkmcnt(0)')
    h('v_readfirstlane_b32 s3, v13')
    h('s_nop 0')
    h(f's_cmp_ge_u32 s3, {G2TGT}')
    h(f's_cbranch_scc1 {done}')
    h('s_sleep 4')
    h(f's_branch {lab}')
    h.label(done)
    h('s_setprio 2')
    stamp(h,9)
    h.wait_vm('W0')
    g2_wread(0)
    NK=22
    for i in range(NK):
        if i+1<NK:
            h.wait_vm([f'W{i+1}'])
            g2_wread(i+1)
            h.wait_vm([f'X{i}'])
            h('s_waitcnt lgkmcnt(4)')
        else:
            h.wait_vm([f'X{i}'])
            h('s_waitcnt lgkmcnt(0)')
            h('s_cmp_eq_u32 s62, 21')
            h('s_cbranch_scc1 K_G2_DONE')
        b=XR[i%XD]
        for tt in range(2):
            for ct in range(2):
                h(f'v_mfma_f32_32x32x16_bf16 {R(GA[tt][ct],16)}, {R(WB[i%2]+4*ct,4)}, {R(b+4*tt,4)}, {R(GA[tt][ct],16)}')
        if i+WD<NK: w_issue(i+WD)
        if i+XD<NK: x_issue(i+XD)
    h.label('K_G2_DONE')
    h('s_waitcnt vmcnt(0) lgkmcnt(0)')
    stamp(h,11)
    h('s_nop 7')
    for tt in range(2):
        for ct in range(2):
            qd=tt+2*ct
            lab=newlab('GXS')
            h(f's_cmp_eq_u32 s60, {qd}')
            h(f's_cbranch_scc1 {lab}')
            h(f's_sub_u32 s52, {qd+3}, s60')
            h('s_and_b32 s52, s52, 3')
            h('s_lshl_b32 s52, s52, 12')
            h('s_add_u32 s52, s52, s55')
            h('v_add_u32 v14, s52, v5')
            for k in range(4): h(f'ds_write_b128 v14, {R(GA[tt][ct]+4*k,4)} offset:{1024*k}')
            h.label(lab)
    for tt in range(2):
        for ct in range(2):
            qd=tt+2*ct
            if qd==0: continue
            lab=newlab('GXK')
            h(f's_cmp_lg_u32 s60, {qd}')
            h(f's_cbranch_scc1 {lab}')
            h('s_waitcnt lgkmcnt(0)')
            for r in range(16): h(f'v_mov_b32 v{192+r}, v{GA[tt][ct]+r}')
            h.label(lab)
    def att_ids(e):
        e('s_and_b32 s48, s2, 7')
        e('s_lshr_b32 s49, s2, 3')
        e('s_and_b32 s50, s49, 3')
        e('s_lshl_b32 s48, s48, 2')
        e('s_add_u32 s38, s48, s50')
        e('s_lshr_b32 s39, s49, 2')
    h(f'v_mov_b32 v12, {L_CNT+12}')
    h('v_mov_b32 v13, 1')
    h('s_waitcnt lgkmcnt(0)')
    gbar_arrive(h, 12, 13)
    gbar_wait(h, 12, 13, 16)
    for sl in range(3):
        h(f's_sub_u32 s52, s60, {sl+1}')
        h('s_and_b32 s52, s52, 3')
        h(f's_mul_i32 s52, s52, {RINGSZ}')
        h(f's_add_u32 s52, s52, {L_RING+4096*sl}')
        h('v_add_u32 v14, s52, v5')
        for k in range(4): h(f'ds_read_b128 {R(128+16*sl+4*k,4)}, v14 offset:{1024*k}')
    h('s_waitcnt lgkmcnt(0)')
    for sl in range(3):
        for r in range(16): h(f'v_add_f32 v{192+r}, v{192+r}, v{128+16*sl+r}')
    h('s_branch K_TAIL')

    a2=Asm()
    a2.label('K_ATT')
    a2('s_setprio 1')
    att_ids(a2)
    a2('v_lshlrev_b32 v5, 4, v1')
    a2('v_lshlrev_b32 v6, 8, v4')
    a2('v_and_b32 v7, 15, v1')
    a2('v_lshlrev_b32 v7, 4, v7')
    a2('v_add_u32 v6, v6, v7')
    a2('v_lshlrev_b32 v8, 7, v1')
    a2('v_lshlrev_b32 v9, 2, v1')
    a2('s_lshl_b32 s44, s38, 16')
    a2('s_lshl_b32 s46, s39, 13')
    a2('s_add_u32 s46, s46, s44')
    a2(f's_add_u32 s46, s46, {WS_Q}')
    a2('s_lshl_b32 s47, s36, 14')
    a2('s_add_u32 s47, s47, s44')
    a2(f's_add_u32 s48, s47, {WS_V}')
    a2(f's_add_u32 s47, s47, {WS_K}')
    a2('s_mov_b32 s40, s47')
    a2('s_mov_b32 s41, s48')
    a2('s_lshr_b32 s49, s38, 1')
    a2('s_mul_i32 s49, s49, 1536')
    a2(f's_add_u32 s49, s49, {WS_N}')
    a2('s_mov_b32 s50, 0x0000ffff')
    a2('s_mov_b32 s51, 0x0000ffff')
    KB=[80,84,88,92]; VB=[96,104,112,120]; QF=48
    SA,SB=10,26
    OA=[128+16*i for i in range(8)]; IDX=44
    a2('s_lshr_b32 s52, s38, 1')
    a2('s_lshl_b32 s52, s52, 11')
    a2(f's_add_u32 s52, s52, {F_1}')
    stamp(a2,7)
    poll_wg(a2, 16, 'v8', 's52', 18, 0, L_CNT+24)
    stamp(a2,8)
    for k,(rg) in enumerate((42,43,45,46,47,41)):
        a2.vm('N', f'buffer_load_dword v{rg}, v9, {W_}, s49 offen offset:{256*k} sc1')
    def loadkv(b):
        a2.vm('KV', f'buffer_load_dwordx4 {R(KB[b],4)}, v5, {W_}, s47 offen sc1')
        a2('s_mov_b64 exec, s[50:51]')
        a2.vm('KV', f'buffer_load_dwordx4 {R(VB[b],4)}, v6, {W_}, s48 offen sc1')
        a2.vm('KV', f'buffer_load_dwordx4 {R(VB[b]+4,4)}, v6, {W_}, s48 offen offset:512 sc1')
        a2('s_mov_b64 exec, -1')
        a2('s_add_u32 s47, s47, 1024')
        a2('s_add_u32 s48, s48, 1024')
    if 'allones' in OPT:
        a2(f'v_mov_b32 v{IDX}, 0x3f803f80')
    else:
        a2('v_and_b32 v12, 27, v3')
        a2('v_cmp_eq_u32 vcc, 16, v12')
        a2('v_mov_b32 v12, 0x3f803f80')
        a2('s_nop 0')
        a2(f'v_cndmask_b32 v{IDX}, 0, v12, vcc')
    for b in VB:
        for r in range(8): a2(f'v_mov_b32 v{b+r}, v{IDX}')
    a2(f'v_mov_b32 v{IDX}, 0xdddddddd')
    for i in range(4):
        a2.vm('Q', f'buffer_load_dwordx4 {R(QF+4*i,4)}, v5, {W_}, s46 offen offset:{1024*i} sc1')
    loadkv(0)
    a2('s_add_u32 s46, s46, 4096')
    for i in range(4,8):
        a2.vm('Q', f'buffer_load_dwordx4 {R(QF+4*i,4)}, v5, {W_}, s46 offen offset:{1024*(i-4)} sc1')
    loadkv(1); loadkv(2)
    for o in OA:
        for r in range(16): a2(f'v_mov_b32 v{o+r}, 0')
    a2.wait_vm('N')
    NR=(42,43,45,46,47,41)
    for sh in (1,2,4,8):
        for r in NR: a2(f'v_max_f32_dpp v{r}, v{r}, v{r} row_shr:{sh} row_mask:0xf bank_mask:0xf')
    for r in NR: a2(f'v_max_f32_dpp v{r}, v{r}, v{r} row_bcast:15 row_mask:0xa bank_mask:0xf')
    for r in NR: a2(f'v_max_f32_dpp v{r}, v{r}, v{r} row_bcast:31 row_mask:0xc bank_mask:0xf')
    a2('v_add_f32 v42, v42, v43')
    a2('v_add_f32 v45, v45, v46')
    a2('v_max_f32 v47, v47, v41')
    a2('v_mul_f32 v42, v42, v45')
    a2(f'v_mul_f32 v42, {f2u(1.05):#x}, v42')
    a2(f'v_mov_b32 v43, {f2u(T_LOG2*T_LOG2):#x}')
    a2(f'v_mov_b32 v45, {f2u(2.0**60):#x}')
    a2('v_cmp_le_f32 vcc, v42, v43')
    a2('v_cmp_le_f32 s[56:57], v47, v45')
    a2('s_nop 1')
    a2('s_and_b64 vcc, vcc, s[56:57]')
    a2('s_bitcmp1_b64 vcc, 63')
    a2('s_cbranch_scc0 K_SLOW')
    def qk(kb, i, dst): return f'v_mfma_f32_32x32x16_bf16 {R(dst,16)}, {R(KB[kb],4)}, {R(QF+4*i,4)}, 0'
    def pv(kb, i, half, src): return f'v_smfmac_f32_32x32x32_bf16 {R(OA[i],16)}, {R(VB[kb]+4*half,4)}, {R(src+8*half,8)}, v{IDX}'
    a2('s_waitcnt vmcnt(6)')
    stamp(a2,9)
    a2(qk(0,0,SA))
    for r in range(8,16): a2(f'v_mov_b32 v{SB+r}, 0')
    a2('s_mov_b32 s42, 0')
    a2('s_nop 3')
    a2.label('K_ATT_LOOP')
    for n in range(32):
        kb,i=divmod(n,8)
        sa=SA if n%2==0 else SB
        sb=SB if n%2==0 else SA
        ex=[f'v_exp_f32 v{sa+r}, v{sa+r}' for r in range(16)]
        if 'noexp' in OPT: ex=[f'v_mov_b32 v{sa+r}, v{sa+r}' for r in range(16)]
        for e in ex[0:2]: a2(e)
        pkb,pi=divmod((n-1)%32,8)
        if 'nopv' not in OPT: a2(pv(pkb,pi,1,sb))
        if i==0 and 'noload' not in OPT: loadkv((kb+3)%4)
        for e in ex[2:5]: a2(e)
        nkb,ni=divmod((n+1)%32,8)
        if i==7: a2('s_waitcnt vmcnt(6)')
        if 'noqk' not in OPT: a2(qk(nkb,ni,sb))
        for e in ex[5:11]: a2(e)
        if 'nopv' not in OPT: a2(pv(kb,i,0,sa))
        for e in ex[11:16]: a2(e)
    a2('s_add_u32 s42, s42, 1')
    G2AT=4
    for o_ in OPT:
        if o_.startswith('AT='): G2AT=int(o_[3:])
    lab=newlab('G2S')
    a2(f's_cmp_eq_u32 s42, {G2AT}')
    a2(f's_cbranch_scc0 {lab}')
    a2(f'v_mov_b32 v42, {L_CNT+G2CNT}')
    a2('v_mov_b32 v43, 1')
    gbar_arrive(a2, 42, 43)
    a2.label(lab)
    a2('s_cmp_lt_u32 s42, 4')
    a2('s_cbranch_scc1 K_ATT_LOOP')
    a2('s_nop 1')
    a2(pv(3,7,1,SB))
    a2.label('K_ATT_DONE')
    stamp(a2,10)
    a2.vmq=[]
    a2(f'v_mov_b32 v12, {L_CNT+12}')
    gbar_wait(a2, 12, 13, 12)
    for p_ in range(4):
        lab=newlab('RS')
        a2(f's_cmp_eq_u32 s36, {p_}')
        a2(f's_cbranch_scc1 {lab}')
        a2(f's_sub_u32 s52, s36, {p_+1}')
        a2('s_and_b32 s52, s52, 3')
        a2('s_mul_i32 s52, s52, 2304')
        a2(f's_add_u32 s52, s52, {2*p_*3*2304}')
        a2('v_add_u32 v12, s52, v5')
        a2('v_add_u32 v13, s52, v9')
        for t_ in range(2):
            i=2*p_+t_; off=t_*3*2304
            a2(f'ds_write_b128 v12, {R(OA[i],4)} offset:{off}')
            a2(f'ds_write_b128 v12, {R(OA[i]+4,4)} offset:{off+1024}')
            a2(f'ds_write_b32 v13, v{OA[i]+8} offset:{off+2048}')
        a2.label(lab)
    a2('s_and_b32 s52, s2, 7')
    a2('s_lshr_b32 s53, s2, 3')
    a2('s_and_b32 s54, s53, 3')
    a2('s_lshl_b32 s52, s52, 2')
    a2('s_add_u32 s58, s52, s54')
    a2('s_lshr_b32 s59, s53, 2')
    a2(f'v_mov_b32 v20, {L_CNT+28}')
    a2('v_mov_b32 v21, 1')
    a2('s_waitcnt lgkmcnt(0)')
    gbar_arrive(a2, 20, 21)
    gbar_wait(a2, 20, 22, 4)
    stamp(a2,12)
    a2('s_waitcnt vmcnt(0)')
    for p_ in range(4):
        lab=newlab('RM')
        a2(f's_cmp_lg_u32 s36, {p_}')
        a2(f's_cbranch_scc1 {lab}')
        for t_ in range(2):
            for r in range(9): a2(f'v_mov_b32 v{32+48*t_+r}, v{OA[2*p_+t_]+r}')
        a2.label(lab)
    a2(f's_mul_i32 s53, s36, {6*2304}')
    a2('v_add_u32 v14, s53, v5')
    a2('v_add_u32 v15, s53, v9')
    for t_ in range(2):
        for k in range(3):
            b=32+48*t_+12*(k+1); off=(t_*3+k)*2304
            a2(f'ds_read_b128 {R(b,4)}, v14 offset:{off}')
            a2(f'ds_read_b128 {R(b+4,4)}, v14 offset:{off+1024}')
            a2(f'ds_read_b32 v{b+8}, v15 offset:{off+2048}')
    a2('s_lshl_b32 s53, s39, 3')
    a2('s_lshl_b32 s52, s36, 1')
    a2('s_add_u32 s53, s53, s52')
    a2('s_lshl_b32 s53, s53, 5')
    a2('s_add_u32 s53, s53, s38')
    a2('s_lshl_b32 s53, s53, 10')
    a2(f's_add_u32 s53, s53, {WS_O}')
    for t_ in range(2):
        b=32+48*t_
        if t_==0: a2('s_waitcnt lgkmcnt(9)')
        if t_==1: a2('s_waitcnt lgkmcnt(0)'); gbar_arrive(a2, 20, 21)
        for sl in range(1,4):
            for r in range(9): a2(f'v_add_f32 v{b+r}, v{b+r}, v{b+12*sl+r}')
        a2(f'v_rcp_f32 v{b+9}, v{b+8}')
        a2('s_nop 0')
        for r in range(8): a2(f'v_mul_f32 v{b+r}, v{b+r}, v{b+9}')
        for i in range(4): a2(f'v_cvt_pk_bf16_f32 v{b+12+i}, v{b+2*i}, v{b+2*i+1}')
        a2(f'buffer_store_dwordx4 {R(b+12,4)}, v5, {W_}, s53 offen sc1')
        if t_==0: a2(f's_add_u32 s53, s53, {32*1024}')
    ACC3=192
    for r in range(16): a2(f'v_mov_b32 v{ACC3+r}, 0')
    a2('s_lshl_b32 s52, s39, 5')
    a2('s_add_u32 s52, s52, s38')
    a2('s_lshl_b32 s52, s52, 7')
    a2(f's_add_u32 s52, s52, {F_3}')
    a2('s_waitcnt vmcnt(0)')
    signal(a2, L_CNT+8, 3, 's52', 46)
    gbar_wait(a2, 20, 22, 8)
    sWO=24
    srd(a2,sWO,pWO,512*512*2)
    wdma_voff(a2)
    a2('s_lshl_b32 s52, s36, 17')
    a2('s_lshl_b32 s53, s59, 7')
    a2('s_add_u32 s52, s52, s53')
    a2('s_lshl_b32 s53, s36, 14')
    for i in range(8):
        a2(f's_add_u32 m0, s53, {L_WO+2048*i}')
        a2('s_nop 0')
        a2(f'buffer_load_dwordx4 v10, {SR(sWO)}, s52 offen lds')
        a2(f'buffer_load_dwordx4 v11, {SR(sWO)}, s52 offen offset:1024 lds')
        a2('s_add_u32 s52, s52, 16384')
    a2.label('K_TAIL')
    a2('s_setprio 0')
    a2('v_lshlrev_b32 v8, 7, v1')
    sOUT,sB2,sX2=32,40,44
    srd(a2,sOUT,pOUT,2048*512*2); srd(a2,sB2,pB2,512*2); srd(a2,sX2,pX,2048*512*2)
    a2('s_and_b32 s50, s36, 1')
    a2('s_bfe_u32 s51, s36, 0x10001')
    a2('s_lshr_b32 s49, s36, 2')
    a2('s_lshl_b32 s60, s58, 6')
    a2('s_lshl_b32 s61, s50, 5')
    a2('s_add_u32 s60, s60, s61')
    a2('v_add_u32 v20, s60, v3')
    a2('v_lshlrev_b32 v20, 10, v20')
    a2('s_lshl_b32 s60, s59, 6')
    a2('s_lshl_b32 s61, s51, 5')
    a2('s_add_u32 s60, s60, s61')
    a2('s_lshl_b32 s61, s49, 4')
    a2('s_add_u32 s60, s60, s61')
    a2('v_lshlrev_b32 v21, 3, v4')
    a2('v_add_u32 v21, s60, v21')
    a2('v_lshlrev_b32 v21, 1, v21')
    a2('v_add_u32 v20, v20, v21')
    a2(f'buffer_load_dwordx4 v[52:55], v20, {SR(sX2)}, 0 offen')
    a2(f'buffer_load_dwordx4 v[56:59], v21, {SR(sB2)}, 0 offen')
    a2('s_lshl_b32 s52, s51, 6')
    a2(f's_lshl_b32 s53, s49, 15')
    a2(f's_add_u32 s53, s53, {L_WO}')
    tr_addr(a2, 18, 's53')
    a2('v_xor_b32 v18, s52, v18')
    a2('s_lshl_b32 s52, s50, 15')
    a2('s_lshl_b32 s53, s49, 14')
    a2('s_add_u32 s52, s52, s53')
    a2(f's_add_u32 s52, s52, {L_OX}')
    a2('v_add_u32 v19, s52, v5')
    a2('s_bfe_u32 s56, s36, 0x10001')
    a2('s_lshl_b32 s56, s56, 4')
    a2('s_lshr_b32 s57, s36, 2')
    a2('s_lshl_b32 s57, s57, 1')
    a2('s_add_u32 s56, s56, s57')
    a2('s_lshl_b32 s57, s58, 1')
    a2('s_add_u32 s57, s57, s50')
    a2('s_lshl_b32 s57, s57, 5')
    a2('s_add_u32 s57, s57, s56')
    a2('s_lshl_b32 s57, s57, 10')
    a2(f's_add_u32 s57, s57, {WS_O}')
    a2('s_lshl_b32 s60, s50, 5')
    a2('s_add_u32 s60, s60, s56')
    a2('s_lshl_b32 s60, s60, 10')
    a2(f's_add_u32 s60, s60, {L_OX}')
    a2('s_lshr_b32 s52, s58, 2')
    a2('s_lshl_b32 s52, s52, 12')
    a2(f's_add_u32 s52, s52, {F_3}')
    stamp(a2,13)
    a2('s_waitcnt vmcnt(0)')
    a2('s_cmp_eq_u32 s36, 0')
    a2('s_cbranch_scc0 K_S3W')
    poll(a2, 32, 'v8', 's52', 46)
    a2.label('K_S3W')
    a2.vmq=[]
    a2('s_barrier')
    stamp(a2,14)
    a2('s_cmp_eq_u32 s2, 0')
    a2('s_cbranch_scc0 K_NOE')
    a2('s_cmp_eq_u32 s36, 0')
    a2('s_cbranch_scc0 K_NOE')
    a2('v_mov_b32 v60, s64'); a2('v_mov_b32 v61, s65'); a2('v_mov_b32 v62, 0')
    a2('s_mov_b64 exec, 1')
    a2(f'buffer_store_dwordx2 v[60:61], v62, {W_}, 0 offen')
    a2('s_mov_b64 exec, -1')
    a2.label('K_NOE')
    for s_ in range(4):
        a2(f's_add_u32 m0, s60, {4096*s_}')
        a2(f's_add_u32 s55, s57, {4096*s_}')
        a2.vm(f'O{s_}', f'buffer_load_dwordx4 v5, {W_}, s55 offen sc1 lds')
        a2.vm(f'O{s_}', f'buffer_load_dwordx4 v5, {W_}, s55 offen offset:1024 sc1 lds')
    FX=[64,68,72,76]; FW=[80,84,88,92]
    for s_ in range(4):
        a2.wait_vm(f'O{s_}')
        a2('s_barrier')
        for k in range(4):
            ks=4*s_+k
            a2(f'ds_read_b128 {R(FX[k],4)}, v19 offset:{ks*1024}')
            a2(f'ds_read_b64_tr_b16 {R(FW[k],2)}, v18 offset:{ks*2048}')
            a2(f'ds_read_b64_tr_b16 {R(FW[k]+2,2)}, v18 offset:{ks*2048+1024}')
        for k in range(4):
            a2(f's_waitcnt lgkmcnt({3*(3-k)})')
            a2(f'v_mfma_f32_32x32x16_bf16 {R(ACC3,16)}, {R(FW[k],4)}, {R(FX[k],4)}, {R(ACC3,16)}')
    stamp(a2,15)
    a2('s_and_b32 s52, s36, 3')
    a2('s_lshl_b32 s52, s52, 12')
    a2('s_lshl_b32 s53, s49, 11')
    a2('s_add_u32 s54, s52, s53')
    a2('s_xor_b32 s53, s53, 2048')
    a2('s_add_u32 s55, s52, s53')
    a2(f's_add_u32 s54, s54, {L_EX}')
    a2(f's_add_u32 s55, s55, {L_EX}')
    a2('v_add_u32 v22, s54, v5')
    a2('v_add_u32 v23, s55, v5')
    a2('s_nop 7')
    a2('s_cmp_eq_u32 s49, 0')
    a2('s_cbranch_scc1 K_KH0')
    a2(f'ds_write_b128 v22, {R(ACC3,4)}')
    a2(f'ds_write_b128 v22, {R(ACC3+4,4)} offset:1024')
    a2('s_waitcnt lgkmcnt(0)')
    for r in range(8): a2(f'v_mov_b32 v{ACC3+r}, v{ACC3+8+r}')
    a2('s_branch K_EX')
    a2.label('K_KH0')
    a2(f'ds_write_b128 v22, {R(ACC3+8,4)}')
    a2(f'ds_write_b128 v22, {R(ACC3+12,4)} offset:1024')
    a2.label('K_EX')
    a2('s_waitcnt lgkmcnt(0)')
    a2('s_barrier')
    a2('ds_read_b128 v[64:67], v23')
    a2('ds_read_b128 v[68:71], v23 offset:1024')
    for i in range(4):
        a2(f'v_lshlrev_b32 v{72+2*i}, 16, v{52+i}')
        a2(f'v_and_b32 v{73+2*i}, 0xffff0000, v{52+i}')
        a2(f'v_lshlrev_b32 v{80+2*i}, 16, v{56+i}')
        a2(f'v_and_b32 v{81+2*i}, 0xffff0000, v{56+i}')
    for r in range(8): a2(f'v_add_f32 v{72+r}, v{72+r}, v{80+r}')
    a2('s_waitcnt lgkmcnt(0)')
    for r in range(8): a2(f'v_add_f32 v{ACC3+r}, v{ACC3+r}, v{64+r}')
    for r in range(8): a2(f'v_add_f32 v{ACC3+r}, v{ACC3+r}, v{72+r}')
    for i in range(4): a2(f'v_cvt_pk_bf16_f32 v{64+i}, v{ACC3+2*i}, v{ACC3+2*i+1}')
    a2(f'buffer_store_dwordx4 v[64:67], v20, {SR(sOUT)}, 0 offen'+(' sc1' if 'outsc1' in OPT else ' nt' if 'outnt' in OPT else ''))
    if STAMP and ('rt' in OPT or 'span' in OPT) and 'dbg' not in OPT:
        a2('s_memrealtime s[92:93]'); a2('s_memtime s[100:101]')
    stamp_flush(a2,16)
    stamp_dbg(a2)
    a2('s_endpgm')
    a2.label('K_SLOW')
    a2('s_waitcnt vmcnt(0)')
    MX=116
    a2('s_mov_b32 s58, s40')
    for i in range(8): a2(f'v_mov_b32 v{MX+i}, 0xff800000')
    a2('s_mov_b32 s59, 0')
    a2.label('K_S1')
    a2(f'buffer_load_dwordx4 {R(KB[0],4)}, v5, {W_}, s58 offen sc1')
    a2('s_waitcnt vmcnt(0)')
    for i in range(8):
        a2(f'v_mfma_f32_32x32x16_bf16 {R(SA,16)}, {R(KB[0],4)}, {R(QF+4*i,4)}, 0')
        a2('s_nop 7'); a2('s_nop 7')
        for r in range(0,16,2): a2(f'v_max3_f32 v{MX+i}, v{MX+i}, v{SA+r}, v{SA+r+1}')
    a2('s_add_u32 s58, s58, 1024')
    a2('s_add_u32 s59, s59, 1')
    a2('s_cmp_lt_u32 s59, 16')
    a2('s_cbranch_scc1 K_S1')
    for i in range(8): a2(f'v_mov_b32 v{SA+i}, v{MX+i}')
    a2('s_nop 1')
    for i in range(8): a2(f'v_permlane32_swap_b32 v{MX+i}, v{SA+i}')
    a2('s_nop 1')
    for i in range(8): a2(f'v_max_f32 v{MX+i}, v{MX+i}, v{SA+i}')
    a2(f'v_mov_b32 v12, {L_CNT+12}')
    gbar_wait(a2, 12, 13, 12)
    a2('s_lshl_b32 s53, s36, 11')
    a2(f's_add_u32 s53, s53, {L_MX}')
    a2('v_add_u32 v42, s53, v9')
    for i in range(8): a2(f'ds_write_b32 v42, v{MX+i} offset:{256*i}')
    a2(f'v_mov_b32 v12, {L_CNT+16}')
    a2('v_mov_b32 v13, 1')
    a2('s_waitcnt lgkmcnt(0)')
    gbar_arrive(a2, 12, 13)
    gbar_wait(a2, 12, 13, 4)
    a2(f'v_add_u32 v42, {L_MX}, v9')
    for q in range(4):
        for i in range(8): a2(f'ds_read_b32 v{SA+i}, v42 offset:{2048*q+256*i}')
        a2('s_waitcnt lgkmcnt(0)')
        for i in range(8): a2(f'v_max_f32 v{MX+i}, v{MX+i}, v{SA+i}')
    a2('s_mov_b32 s58, s40'); a2('s_mov_b32 s60, s41')
    a2('s_mov_b32 s59, 0')
    a2.label('K_S2')
    a2(f'buffer_load_dwordx4 {R(KB[0],4)}, v5, {W_}, s58 offen sc1')
    a2('s_mov_b64 exec, s[50:51]')
    a2(f'buffer_load_dwordx4 {R(VB[0],4)}, v6, {W_}, s60 offen sc1')
    a2(f'buffer_load_dwordx4 {R(VB[0]+4,4)}, v6, {W_}, s60 offen offset:512 sc1')
    a2('s_mov_b64 exec, -1')
    a2('s_waitcnt vmcnt(0)')
    for i in range(8):
        a2(f'v_mfma_f32_32x32x16_bf16 {R(SA,16)}, {R(KB[0],4)}, {R(QF+4*i,4)}, 0')
        a2('s_nop 7'); a2('s_nop 7')
        for r in range(16): a2(f'v_sub_f32 v{SA+r}, v{SA+r}, v{MX+i}')
        for r in range(16): a2(f'v_exp_f32 v{SA+r}, v{SA+r}')
        a2('s_nop 1')
        a2(f'v_smfmac_f32_32x32x32_bf16 {R(OA[i],16)}, {R(VB[0],4)}, {R(SA,8)}, v{IDX}')
        a2(f'v_smfmac_f32_32x32x32_bf16 {R(OA[i],16)}, {R(VB[0]+4,4)}, {R(SA+8,8)}, v{IDX}')
        a2('s_nop 7')
    a2('s_add_u32 s58, s58, 1024')
    a2('s_add_u32 s60, s60, 1024')
    a2('s_add_u32 s59, s59, 1')
    a2('s_cmp_lt_u32 s59, 16')
    a2('s_cbranch_scc1 K_S2')
    a2(f'v_mov_b32 v42, {L_CNT+G2CNT}')
    a2('v_mov_b32 v43, 1')
    gbar_arrive(a2, 42, 43)
    a2('s_nop 7')
    a2('s_branch K_ATT_DONE')
    return 'K_START:\n'+a.text()+'\n'+h.text()+'\n'+g.text()+'\n'+a2.text()+'\nK_END:\n  s_endpgm\n'

HEADER=open('cdna_kernels/'+NAME+'.s.ref').read().split('; Override launch geometry')[0]
def assemble(body):
    n=NAME+'_kernel'
    return HEADER+f'''; @launch grid=(256,1,1) block=(512,1,1) lds={LDS_TOTAL}
.amdgcn_target "amdgcn-amd-amdhsa--gfx950"
.text
.globl {n}
.p2align 8
.type {n},@function
{n}:
{body}
.section .rodata,"a"
.p2align 6
.amdhsa_kernel {n}
  .amdhsa_next_free_vgpr 256
  .amdhsa_next_free_sgpr 102
  .amdhsa_accum_offset 256
  .amdhsa_group_segment_fixed_size 0
  .amdhsa_kernarg_size 88
  .amdhsa_user_sgpr_count 2
  .amdhsa_user_sgpr_kernarg_segment_ptr 1
  .amdhsa_system_sgpr_workgroup_id_x 1
  .amdhsa_float_denorm_mode_32 3
.end_amdhsa_kernel
'''
if __name__=='__main__':
    outp=sys.argv[1]
    if 'stamp' in sys.argv: STAMP=True
    OPT.update(sys.argv[2:])
    for o_ in list(OPT):
        if o_.startswith('PD='): POLLD=int(o_[3:])
    open(outp,'w').write(assemble(gen()))
    print('wrote',outp)
```

```python
import sys, struct
NAME='parallel_sum__softmax_full_mha__mixer_channel_mlp__prompt'

WS_F = 0
F_1, F_2, F_3 = 32768, 65536, 98304
WS_N = 256<<10
WS_Q = 1<<20
WS_K = 3<<20
WS_V = 5<<20
WS_O = 7<<20
WS_H = 9<<20
WS_T = 15<<20
WS_SIZE = 16<<20
QSCALE = 0.25*1.4426950408889634
T_LOG2 = 48.0
SPIN_MAX = 1<<20
POLLD = 1

def f2u(f): return struct.unpack('<I', struct.pack('<f', f))[0]

STAMP=False
OPT=set()
class Asm:
    def __init__(self):
        self.L=[]; self.vmq=[]; self.lgq=[]
    def __call__(self, s): self.L.append('  '+s)
    def c(self, s): self.L.append('  ; '+s)
    def label(self, n): self.L.append(n+':')
    def vm(self, tag, s):
        self.vmq.append(tag); self(s)
    def wait_vm(self, tags):
        if isinstance(tags,str): tags=[tags]
        idx=[i for i,t in enumerate(self.vmq) if t in tags]
        if not idx: return
        last=max(idx); n=len(self.vmq)-1-last
        assert n<=63
        self(f's_waitcnt vmcnt({n})')
        self.vmq=self.vmq[last+1:]
    def lg(self, tag, s):
        self.lgq.append(tag); self(s)
    def wait_lg(self, tags):
        if isinstance(tags,str): tags=[tags]
        idx=[i for i,t in enumerate(self.lgq) if t in tags]
        if not idx: return
        last=max(idx); n=len(self.lgq)-1-last
        if n<=15: self(f's_waitcnt lgkmcnt({n})')
        self.lgq=self.lgq[last+1:]
    def wait_vm_all(self):
        self('s_waitcnt vmcnt(0)'); self.vmq=[]
    def text(self): return '\n'.join(self.L)

RTMAP={3:1, 9:2, 10:4}
def fstamp(a, i):
    if STAMP and 'fine' in OPT and 'fe' not in OPT: a(f's_memtime s[{70+2*i}:{71+2*i}]')
def estamp(a, i):
    if STAMP and 'fe' in OPT: a(f's_memtime s[{70+2*i}:{71+2*i}]')
def stamp(a, i):
    if STAMP:
        if 'span' in OPT: return
        if 'fine' in OPT: return
        if 'rt' in OPT and i in (1,2,4) : return
        if 'abs' in OPT:
            a(f's_memrealtime s[{70+2*i}:{71+2*i}]'); return
        a(f's_memtime s[{70+2*i}:{71+2*i}]')
        if 'rt' in OPT and i in RTMAP:
            j=RTMAP[i]; a(f's_memrealtime s[{70+2*j}:{71+2*j}]')
def stamp_flush(a, n):
    if not STAMP: return
    a('s_waitcnt vmcnt(0) lgkmcnt(0)')
    a('s_lshl_b32 s69, s2, 3')
    a('s_add_u32 s69, s69, s36')
    a('s_lshl_b32 s69, s69, 6')
    a(f's_add_u32 s69, s69, {WS_T}')
    a('v_mov_b32 v2, 0')
    for i in range(n):
        a(f'v_mov_b32 v3, s{70+2*i}')
        a('s_mov_b64 exec, 1')
        a(f'buffer_store_dword v3, v2, s[28:31], s69 offen offset:{4*i}')
        a('s_mov_b64 exec, -1')
        a('s_nop 1')

def stamp_dbg(a):
    if not (STAMP and 'dbg' in OPT): return
    lab=newlab('DBG')
    a('s_cmp_eq_u32 s2, 37')
    a(f's_cbranch_scc0 {lab}')
    a('s_cmp_eq_u32 s36, 0')
    a(f's_cbranch_scc0 {lab}')
    a('s_load_dwordx2 s[66:67], s[0:1], 72')
    a('s_memrealtime s[92:93]')
    a('s_memtime s[100:101]')
    a('s_waitcnt lgkmcnt(0)')
    a('s_sub_u32 s92, s92, s82')
    a('s_add_u32 s92, s92, s70')
    if 'rt' in OPT:
        for j in (1,2,4):
            a(f's_sub_u32 s{70+2*j}, s{70+2*j}, s82'); a(f's_add_u32 s{70+2*j}, s{70+2*j}, s70')
    a('s_mov_b32 s82, s70')
    a('s_mov_b32 s40, s66'); a('s_mov_b32 s41, s67'); a('s_mov_b32 s42, 256'); a('s_mov_b32 s43, 0x00020000')
    a('v_mov_b32 v2, 0')
    a('s_mov_b64 exec, 1')
    for i in range(16):
        a(f's_sub_u32 s3, s{70+2*i}, s70')
        a('v_mov_b32 v3, s3')
        a(f'buffer_store_dword v3, v2, s[40:43], 0 offen offset:{4*i}')
        a('s_nop 1')
    a('s_mov_b64 exec, -1')
    a.label(lab)

def R(a,n=1): return f'v{a}' if n==1 else f'v[{a}:{a+n-1}]'
def SR(a): return f's[{a}:{a+3}]'
def srd(a, d, ptr, size):
    a(f's_mov_b32 s{d}, s{ptr}')
    a(f's_mov_b32 s{d+1}, s{ptr+1}')
    a(f's_mov_b32 s{d+2}, {size}')
    a(f's_mov_b32 s{d+3}, 0x00020000')
def pk(op, d, a_, b_, c_=None, bsel=None, csel=None, neg=None):
    ops=[a_,b_]+([c_] if c_ is not None else [])
    n=len(ops)
    txt=[ (f'v[{o}:{o+1}]' if isinstance(o,int) else o) for o in ops]
    hi=[1]*n
    if bsel=='lo': hi[1]=0
    if csel=='lo': hi[2]=0
    s_=f'v_pk_{op}_f32 v[{d}:{d+1}], '+', '.join(txt)
    if hi!=[1]*n: s_+=' op_sel_hi:['+','.join(map(str,hi))+']'
    if neg: s_+=' '+neg
    return s_

pX,pWQ,pWO,pW1,pB1,pW2,pB2,pOUT,pWS = 4,6,8,12,14,16,18,20,22
sWS=28
W_=SR(sWS)

SLOT=28672; XS=16384; WST=12288
W1_SPARE=5*SLOT
SCR=W1_SPARE+WST
L_A=SCR; L_MU=SCR+512; L_CS=SCR+1024; L_CS1=SCR+1536; L_B1=SCR+2048; L_A2=SCR+2560; L_A2M=SCR+3072
L_CNT=SCR+4096
LDS_TOTAL=163840
W1_ADDR=[W1_SPARE, 3*SLOT, 3*SLOT+WST, 4*SLOT, 4*SLOT+WST, 0, WST, SLOT]
A_SLOT=[0,1,2,3,4,0,1,2]
L_RED=0
L_RING=73728
RINGSZ=20480; WD=10; XD=18
L_MX=57344
G2CNT=32; G2TGT=4
L_WO=0
L_OX=65536
L_EX=131072

uid=[0]
def newlab(p):
    uid[0]+=1; return f'{p}_{uid[0]}'

def poll(a, nl, voff, soff, vt):
    PD=POLLD
    lab=newlab('POLL'); done=newlab('POLLD')
    mask=(1<<nl)-1
    a(f's_mov_b32 s66, {mask:#x}')
    a('s_mov_b32 s67, 0')
    a(f's_mov_b32 s68, {SPIN_MAX}')
    a('s_waitcnt vmcnt(0)')
    a('s_mov_b64 exec, s[66:67]')
    for k in range(PD-1):
        a(f'buffer_load_dwordx2 v[{vt+2*k}:{vt+2*k+1}], {voff}, {W_}, {soff} offen sc1')
        if PD>1: a('s_sleep 2')
    a.label(lab)
    for k in range(PD):
        kn=(k+PD-1)%PD
        a(f'buffer_load_dwordx2 v[{vt+2*kn}:{vt+2*kn+1}], {voff}, {W_}, {soff} offen sc1')
        a(f's_waitcnt vmcnt({PD-1})')
        a(f'v_cmp_eq_u64 vcc, s[64:65], v[{vt+2*k}:{vt+2*k+1}]')
        a('s_sub_u32 s68, s68, 1')
        a('s_cmp_eq_u32 s68, 0')
        a(f's_cbranch_scc1 {done}')
        a('s_cmp_eq_u64 vcc, s[66:67]')
        a(f's_cbranch_scc1 {done}')
        a('s_sleep 2')
    a(f's_branch {lab}')
    a.label(done)
    a('s_mov_b64 exec, -1')
    a.vmq=[]

def poll_wg(a, nl, voff, soff, vt, leader, lds_addr):
    oth=newlab('PWO'); done=newlab('PWD')
    va=vt+2*POLLD
    a(f'v_mov_b32 v{va}, {lds_addr}')
    a(f's_cmp_eq_u32 s36, {leader}')
    a(f's_cbranch_scc0 {oth}')
    poll(a, nl, voff, soff, vt)
    a(f'v_mov_b32 v{va+1}, 1')
    a('s_mov_b64 exec, 1')
    a(f'ds_write_b32 v{va}, v{va+1}')
    a('s_mov_b64 exec, -1')
    a('s_waitcnt lgkmcnt(0)')
    a('s_wakeup')
    a(f's_branch {done}')
    a.label(oth)
    lab=newlab('PWL')
    a.label(lab)
    a(f'ds_read_b32 v{va+1}, v{va}')
    a('s_waitcnt lgkmcnt(0)')
    a(f'v_readfirstlane_b32 s66, v{va+1}')
    a('s_nop 0')
    a('s_cmp_eq_u32 s66, 0')
    a(f's_cbranch_scc0 {done}')
    a('s_sleep 8')
    a(f's_branch {lab}')
    a.label(done)
    a.vmq=[]

def signal(a, cnt_addr, last, flag_soff, vt):
    skip=newlab('SIG')
    a(f'v_mov_b32 v{vt}, {cnt_addr}')
    a(f'v_mov_b32 v{vt+1}, 1')
    a('s_mov_b64 exec, 1')
    a(f'ds_add_rtn_u32 v{vt+2}, v{vt}, v{vt+1}')
    a('s_waitcnt lgkmcnt(0)')
    a(f'v_readfirstlane_b32 s66, v{vt+2}')
    a(f'v_mov_b32 v{vt}, s64')
    a(f'v_mov_b32 v{vt+1}, s65')
    a(f'v_mov_b32 v{vt+2}, 0')
    a(f's_cmp_eq_u32 s66, {last}')
    a(f's_cbranch_scc0 {skip}')
    a(f'buffer_store_dwordx2 v[{vt}:{vt+1}], v{vt+2}, {W_}, {flag_soff} offen sc1')
    a.label(skip)
    a('s_mov_b64 exec, -1')

def gbar_arrive(a, vaddr, vone):
    a('s_mov_b64 exec, 1')
    a(f'ds_add_u32 v{vaddr}, v{vone}')
    a('s_mov_b64 exec, -1')
def gbar_wait(a, vaddr, vt, target):
    lab=newlab('GB')
    a.label(lab)
    a(f'ds_read_b32 v{vt}, v{vaddr}')
    a('s_waitcnt lgkmcnt(0)')
    a(f'v_readfirstlane_b32 s3, v{vt}')
    a('s_nop 0')
    a(f's_cmp_ge_u32 s3, {target}')
    a(f's_cbranch_scc0 {lab}')

def gen():
    a=Asm()
    a('s_cmp_ge_u32 s2, 256')
    a('s_cbranch_scc1 K_END')
    stamp(a,0)
    if STAMP and ('dbg' in OPT or 'rt' in OPT or 'span' in OPT): a('s_memrealtime s[82:83]')
    a('s_load_dwordx16 s[4:19], s[0:1], 0')
    a('s_load_dwordx2 s[20:21], s[0:1], 64')
    a('s_load_dwordx2 s[22:23], s[0:1], 80')
    a('v_and_b32 v1, 63, v0')
    a('v_lshrrev_b32 v2, 6, v0')
    a('s_and_b32 s48, s2, 7')
    a('v_readfirstlane_b32 s36, v2')
    a('s_lshr_b32 s49, s2, 3')
    a('s_and_b32 s50, s48, 1')
    a('s_lshr_b32 s51, s48, 1')
    a('s_lshl_b32 s50, s50, 3')
    a('s_and_b32 s52, s49, 7')
    a('s_add_u32 s38, s50, s52')
    a('s_lshl_b32 s51, s51, 2')
    a('s_lshr_b32 s52, s49, 3')
    a('s_add_u32 s39, s51, s52')
    a('s_and_b32 s37, s36, 3')
    a('v_and_b32 v3, 31, v1')
    a('v_lshrrev_b32 v4, 5, v1')
    a('s_cmp_ge_u32 s36, 4')
    a('s_cbranch_scc1 K_G1')
    a('s_getpc_b64 s[62:63]')
    a.label('PF_0')
    a('s_sub_u32 s62, s62, PF_0-K_START')
    a('s_subb_u32 s63, s63, 0')
    a('s_lshr_b32 s60, s2, 3')
    a('s_and_b32 s60, s60, 7')
    a('s_lshl_b32 s60, s60, 2')
    a('s_add_u32 s60, s60, s37')
    a('s_lshl_b32 s60, s60, 10')
    a('v_lshlrev_b32 v9, 4, v1')
    a('v_add_u32 v9, s60, v9')
    a('v_min_u32 v10, K_END-K_START-16, v9')
    a('global_load_dwordx4 v[200:203], v10, s[62:63]')
    a('v_add_u32 v9, 0x8000, v9')
    a('v_min_u32 v10, K_END-K_START-16, v9')
    a('global_load_dwordx4 v[204:207], v10, s[62:63]')
    a('s_branch K_G0')

    def common_lds_addr(e):
        e('v_bfe_u32 v5, v1, 1, 3')
        e('v_xor_b32 v5, v5, v4')
        e('v_lshlrev_b32 v5, 4, v5')
        e('s_lshl_b32 s3, s37, 12')
        e('v_lshlrev_b32 v6, 7, v3')
        e('v_add3_u32 v12, v6, v5, s3')
        e('v_xor_b32 v13, 32, v12')
        e('v_xor_b32 v14, 64, v12')
        e('v_xor_b32 v15, 0x60, v12')
        e('v_lshlrev_b32 v6, 3, v4')
        e('v_bfe_u32 v7, v1, 2, 2')
        e('v_add_u32 v6, v6, v7')
        e('v_mul_u32_u24 v6, 192, v6')
        e('v_bfe_u32 v7, v1, 4, 1')
        e('v_lshlrev_b32 v7, 5, v7')
        e('v_and_b32 v8, 3, v1')
        e('v_lshlrev_b32 v8, 3, v8')
        e('v_add3_u32 v16, v6, v7, v8')

    g=Asm()
    g.label('K_G0')
    accQ,accK,accV=64,80,96
    FS0=[128,144,160,176]
    common_lds_addr(g)
    for r in range(64,112): g(f'v_mov_b32 v{r}, 0')
    g(f'v_add_u32 v17, {XS}, v16')
    g(f's_mov_b32 s56, {(-4*SLOT)&0xffffffff:#x}')
    g(f's_mov_b32 s57, {SLOT}')
    g(f'v_lshlrev_b32 v18, 2, v1')
    g(f'v_add_u32 v18, {L_CNT}, v18')
    g('v_mov_b32 v19, 0')
    g('s_mov_b64 exec, 0xffff')
    g('ds_write_b32 v18, v19')
    g('s_mov_b64 exec, -1')
    g('s_lshl_b32 s48, s37, 7')
    g('v_lshlrev_b32 v20, 2, v3')
    g('v_add_u32 v20, s48, v20')
    g(f'v_add_u32 v20, {L_A}, v20')
    g('v_lshlrev_b32 v23, 4, v4')
    g(f'v_add_u32 v24, {L_CS}, v23')
    g('v_lshlrev_b32 v25, 2, v3')
    g(f'v_add_u32 v25, {L_CS+64*4}, v25')
    g('v_add_u32 v27, s48, v23')
    g(f'v_add_u32 v27, {L_A}, v27')
    g('s_lshl_b32 s49, s38, 2')
    g('s_add_u32 s49, s49, s37')
    g('s_lshl_b32 s50, s49, 10')
    g('s_lshl_b32 s51, s39, 17')
    g('s_add_u32 s50, s50, s51')
    g(f's_add_u32 s52, s50, {WS_K}')
    g(f's_add_u32 s53, s50, {WS_K+65536}')
    g(f's_add_u32 s54, s50, {WS_V}')
    g(f's_add_u32 s51, s50, {WS_Q+65536}')
    g(f's_add_u32 s50, s50, {WS_Q}')
    g('v_lshlrev_b32 v28, 4, v1')
    g('v_and_b32 v29, 0x13, v3')
    g('v_bfe_u32 v30, v3, 2, 1')
    g('v_lshlrev_b32 v30, 3, v30')
    g('v_bfe_u32 v31, v3, 3, 1')
    g('v_lshlrev_b32 v31, 2, v31')
    g('v_or3_b32 v29, v29, v30, v31')
    g('v_lshlrev_b32 v30, 5, v4')
    g('v_add_u32 v29, v29, v30')
    g('v_lshlrev_b32 v29, 4, v29')
    g('v_bfe_u32 v30, v3, 4, 1')
    g('v_lshlrev_b32 v30, 16, v30')
    g('v_lshlrev_b32 v31, 8, v4')
    g('v_and_b32 v32, 15, v3')
    g('v_lshlrev_b32 v32, 4, v32')
    g('v_add3_u32 v30, v30, v31, v32')
    g('s_mul_i32 s55, s39, 1536')
    g('s_lshl_b32 s58, s49, 2')
    g('s_add_u32 s55, s55, s58')
    g(f's_add_u32 s55, s55, {WS_N}')
    g('v_lshlrev_b32 v31, 8, v4')
    g('s_waitcnt lgkmcnt(0)')
    srd(g,sWS,pWS,WS_SIZE)
    g(f's_load_dwordx2 s[64:65], s[{pWS}:{pWS+1}], 0')
    if 'tlb' in OPT:
        g('v_mov_b32 v40, 0')
        g('v_mov_b32 v41, 0')
        g('s_mov_b64 exec, 1')
        for sreg in ('s50','s52','s54'):
            g(f'buffer_store_dword v40, v41, {W_}, {sreg} offen sc1')
        g(f'buffer_store_dword v40, v41, {W_}, s55 offen sc1')
        g('s_mov_b64 exec, -1')
        g('v_lshlrev_b32 v41, 21, v1')
        g(f's_mov_b32 s40, s{pW2}'); g(f's_mov_b32 s41, s{pW2+1}'); g(f's_mov_b32 s42, {1376*512*2}'); g('s_mov_b32 s43, 0x00020000')
        g('buffer_load_dword v208, v41, s[40:43], 0 offen')
        g(f's_mov_b32 s44, s{pWO}'); g(f's_mov_b32 s45, s{pWO+1}'); g(f's_mov_b32 s46, {512*512*2}'); g('s_mov_b32 s47, 0x00020000')
        g('buffer_load_dword v209, v41, s[44:47], 0 offen')
        g(f's_mov_b32 s40, s{pOUT}'); g(f's_mov_b32 s41, s{pOUT+1}'); g(f's_mov_b32 s42, {2048*512*2}')
        g('buffer_load_dword v210, v41, s[40:43], 0 offen')
    def readlist(set_, ks):
        L=[f'ds_read_b128 {R(set_,4)}, v{12+ks}']
        for t in range(3):
            for e in range(2):
                L.append(f'ds_read_b64_tr_b16 {R(set_+4+4*t+2*e,2)}, v17 offset:{ks*3072+e*768+t*64}')
        return L
    def mfmalist(set_):
        return [f'v_mfma_f32_32x32x16_bf16 {R(accQ,16)}, {R(set_+4,4)}, {R(set_,4)}, {R(accQ,16)}',
                f'v_mfma_f32_32x32x16_bf16 {R(accK,16)}, {R(set_+8,4)}, {R(set_,4)}, {R(accK,16)}',
                f'v_mfma_f32_32x32x16_bf16 {R(accV,16)}, {R(set_,4)}, {R(set_+12,4)}, {R(accV,16)}']
    g('s_waitcnt lgkmcnt(0)')
    g('s_add_u32 s64, s64, 0x7f4a7c15')
    g('s_addc_u32 s65, s65, 0x9e3779b9')
    stamp(g,1)
    for st in range(8):
        if st==5: fstamp(g,0)
        g('s_barrier')
        if st==5: fstamp(g,1)
        if st==6: fstamp(g,10)
        if st==0: stamp(g,2)
        for ks in range(4):
            rl=readlist(FS0[ks],ks); ml=mfmalist(FS0[(ks+2)%4])
            if st==5: fstamp(g,2+2*ks)
            if st==0 and ks<2:
                for r_ in rl: g(r_)
                continue
            g('s_waitcnt lgkmcnt(7)')
            if st==5: fstamp(g,3+2*ks)
            g(ml[0]); g(rl[0]); g(rl[1]); g(rl[2])
            g(ml[1]); g(rl[3]); g(rl[4])
            if 'noq' not in OPT: g(ml[2])
            g(rl[5]); g(rl[6])
        if st<7:
            sr='s57' if A_SLOT[st+1]>A_SLOT[st] else 's56'
            for r in (12,13,14,15,17): g(f'v_add_u32 v{r}, {sr}, v{r}')
    g('s_waitcnt lgkmcnt(7)')
    for m in mfmalist(FS0[2]): g(m)
    g('s_waitcnt lgkmcnt(0)')
    for m in mfmalist(FS0[3]): g(m)
    stamp(g,3)
    estamp(g,0)
    g('s_barrier')
    g('s_setprio 3')
    estamp(g,1)
    CSQ=128; CSK=144; AV=160; MV=176
    g('ds_read_b32 v21, v20')
    g(f'ds_read_b32 v22, v20 offset:{L_MU-L_A}')
    for gg in range(4): g(f'ds_read_b128 {R(CSK+4*gg,4)}, v24 offset:{(32+8*gg)*4}')
    g('ds_read_b32 v26, v25')
    for gg in range(4): g(f'ds_read_b128 {R(MV+4*gg,4)}, v27 offset:{8*gg*4+L_MU-L_A}')
    for gg in range(4): g(f'ds_read_b128 {R(AV+4*gg,4)}, v27 offset:{8*gg*4}')
    g('s_waitcnt lgkmcnt(13)')
    g('v_mul_f32 v38, v21, v22')
    g(f'v_mul_f32 v34, {f2u(QSCALE):#x}, v21')
    g('v_sub_f32 v38, 0, v38')
    g(f'v_mul_f32 v36, {f2u(QSCALE):#x}, v38')
    g('s_waitcnt lgkmcnt(9)')
    estamp(g,2)
    for r in range(16): g(f'v_mul_f32 v{CSK+r}, v38, v{CSK+r}')
    for r in range(16): g(f'v_fmac_f32 v{CSK+r}, v21, v{accK+r}')
    for i in range(8): g(f'v_cvt_pk_bf16_f32 v{accK+i}, v{CSK+2*i}, v{CSK+2*i+1}')
    estamp(g,3)
    g(f'buffer_store_dwordx4 {R(accK,4)}, v29, {W_}, s52 offen sc1')
    g(f'buffer_store_dwordx4 {R(accK+4,4)}, v29, {W_}, s53 offen sc1')
    estamp(g,4)
    for gg in range(4): g(f'ds_read_b128 {R(CSQ+4*gg,4)}, v24 offset:{(8*gg)*4}')
    g('s_waitcnt lgkmcnt(8)')
    g('v_sub_f32 v26, 0, v26')
    g('s_waitcnt lgkmcnt(4)')
    for r in range(16): g(f'v_fmac_f32 v{accV+r}, v26, v{MV+r}')
    for r in range(16): g(f'v_mul_f32 v{accV+r}, v{accV+r}, v{AV+r}')
    for i in range(8): g(f'v_cvt_pk_bf16_f32 v{AV+i}, v{accV+2*i}, v{accV+2*i+1}')
    estamp(g,5)
    g(f'buffer_store_dwordx4 {R(AV,4)}, v30, {W_}, s54 offen sc1')
    g(f'buffer_store_dwordx4 {R(AV+4,4)}, v30, {W_}, s54 offen offset:512 sc1')
    g('s_waitcnt lgkmcnt(0)')
    estamp(g,6)
    for r in range(16): g(f'v_mul_f32 v{CSQ+r}, v36, v{CSQ+r}')
    for r in range(16): g(f'v_fmac_f32 v{CSQ+r}, v34, v{accQ+r}')
    for i in range(8): g(f'v_cvt_pk_bf16_f32 v{accQ+i}, v{CSQ+2*i}, v{CSQ+2*i+1}')
    g(f'buffer_store_dwordx4 {R(accQ,4)}, v28, {W_}, s50 offen sc1')
    g(f'buffer_store_dwordx4 {R(accQ+4,4)}, v28, {W_}, s51 offen sc1')
    estamp(g,7)
    for (b,src) in ((42,CSK),(46,CSQ)):
        g(f'v_mul_f32 v{b}, v{src}, v{src}'); g(f'v_mul_f32 v{b+1}, v{src+8}, v{src+8}')
        for i in range(1,8):
            g(f'v_fmac_f32 v{b}, v{src+i}, v{src+i}'); g(f'v_fmac_f32 v{b+1}, v{src+8+i}, v{src+8+i}')
    g(f'v_max3_f32 v38, |v{accV}|, |v{accV+1}|, |v{accV+2}|')
    g('v_max_f32 v34, v42, v43')
    g('v_max_f32 v35, v46, v47')
    for r in range(3,15,2): g(f'v_max3_f32 v38, v38, |v{accV+r}|, |v{accV+r+1}|')
    g(f'v_max_f32 v36, v38, |v{accV+15}|')
    g('s_nop 1')
    for sh in (1,2,4,8):
        for r in (34,35,36): g(f'v_max_f32_dpp v{r}, v{r}, v{r} row_shr:{sh} row_mask:0xf bank_mask:0xf')
    for r in (34,35,36): g(f'v_max_f32_dpp v{r}, v{r}, v{r} row_bcast:15 row_mask:0xa bank_mask:0xf')
    g('s_nop 1')
    estamp(g,8)
    g('s_mov_b32 s66, 0x80000000')
    g('s_mov_b32 s67, 0x80000000')
    g('s_mov_b64 exec, s[66:67]')
    g(f'buffer_store_dword v34, v31, {W_}, s55 offen sc1')
    g(f'buffer_store_dword v35, v31, {W_}, s55 offen offset:512 sc1')
    g(f'buffer_store_dword v36, v31, {W_}, s55 offen offset:1024 sc1')
    g('s_mov_b64 exec, -1')
    stamp(g,4)
    estamp(g,9)
    g('s_setprio 0')
    g('s_waitcnt vmcnt(0)')
    estamp(g,10)
    g('s_lshl_b32 s48, s39, 4')
    g('s_add_u32 s48, s48, s38')
    g('s_lshl_b32 s48, s48, 7')
    g(f's_add_u32 s48, s48, {F_1}')
    signal(g, L_CNT, 3, 's48', 40)
    stamp(g,5)

    h=Asm()
    h.label('K_G1')
    h('s_setprio 2')
    sX,sWQ,sW1,sB1=24,32,40,44
    XF=128
    h('v_lshrrev_b32 v20, 3, v1')
    h('v_and_b32 v21, 7, v1')
    h('v_lshrrev_b32 v22, 4, v1')
    h('v_xor_b32 v21, v21, v22')
    h('v_lshlrev_b32 v20, 10, v20')
    h('v_lshlrev_b32 v22, 4, v21')
    h('v_add_u32 v2, v20, v22')
    h('v_xor_b32 v22, 64, v22')
    h('v_add_u32 v22, 7168, v22')
    h('v_add_u32 v18, v20, v22')
    h('v_add_u32 v19, 14336, v2')
    h('v_add_u32 v20, 14336, v18')
    VX=[2,18,19,20]
    VW=[21,22,23]; VW1=[24,25,26]
    h('s_lshl_b32 s50, s38, 17')
    h('s_lshl_b32 s51, s37, 15')
    h('s_add_u32 s50, s50, s51')
    h('s_lshl_b32 s53, s37, 12')
    h('s_and_b32 s58, s39, 3')
    h('s_lshl_b32 s58, s58, 1')
    h('s_add_u32 s58, s58, s38')
    h('s_and_b32 s58, s58, 7')
    def dmaX(st):
        slot=A_SLOT[st]*SLOT; L=[]
        L.append((f's_add_u32 s61, s58, {st}',None))
        L.append(('s_and_b32 s61, s61, 7',None))
        L.append((f's_add_u32 m0, s53, {slot}',None))
        L.append(('s_lshl_b32 s55, s61, 7',None))
        L.append(('s_add_u32 s55, s55, s50',None))
        for i in range(4):
            L.append((f'buffer_load_dwordx4 v{VX[i]}, {SR(sX)}, s55 offen offset:{1024*i} lds',f'A{st}'))
        return L
    def emit(e, dmas):
        for (ins,tag) in dmas:
            if tag: e.vm(tag,ins)
            else: e(ins)
    h('s_waitcnt lgkmcnt(0)')
    srd(h,sX,pX,2048*512*2)
    emit(h,dmaX(0))
    for p in range(3):
        h(f'v_add_u32 v27, {64*p}, v1')
        h('v_mul_u32_u24 v28, 43691, v27')
        h('v_lshrrev_b32 v28, 19, v28')
        h('v_mul_u32_u24 v29, 12, v28')
        h('v_sub_u32 v29, v27, v29')
        h('v_lshrrev_b32 v30, 2, v29')
        h('v_lshlrev_b32 v30, 10, v30')
        h('v_and_b32 v31, 3, v29')
        h('v_lshlrev_b32 v31, 4, v31')
        h('v_mul_u32_u24 v32, 3072, v28')
        h(f'v_add3_u32 v{VW[p]}, v32, v30, v31')
        if p: h(f'v_subrev_u32 v{VW[p]}, {1024*p}, v{VW[p]}')
        h(f'v_mov_b32 v{33+2*p}, v28')
        h(f'v_mov_b32 v{34+2*p}, v29')
    h('s_mul_i32 s51, s37, 49152')
    h('s_lshl_b32 s52, s39, 6')
    h('s_add_u32 s51, s51, s52')
    h('s_mul_i32 s54, s37, 3072')
    srd(h,sWQ,pWQ,512*1536*2)
    def dmaW(st):
        slot=A_SLOT[st]*SLOT; L=[]
        L.append((f's_add_u32 s61, s58, {st}',None))
        L.append(('s_and_b32 s61, s61, 7',None))
        L.append((f's_add_u32 m0, s54, {slot+XS}',None))
        L.append((f's_mul_i32 s55, s61, {64*3072}',None))
        L.append(('s_add_u32 s55, s55, s51',None))
        for p in range(3):
            L.append((f'buffer_load_dwordx4 v{VW[p]}, {SR(sWQ)}, s55 offen offset:{1024*p} lds',f'A{st}'))
        return L
    emit(h,dmaW(0))
    for p in range(3):
        h(f'v_mul_u32_u24 v32, 2752, v{33+2*p}')
        h(f'v_lshlrev_b32 v31, 4, v{34+2*p}')
        h(f'v_add_u32 v{VW1[p]}, v32, v31')
        if p: h(f'v_subrev_u32 v{VW1[p]}, {1024*p}, v{VW1[p]}')
    h('s_mul_i32 s52, s39, 3')
    h('s_lshl_b32 s56, s39, 1')
    h('s_add_u32 s56, s56, 11')
    h('s_cmp_lt_u32 s39, 11')
    h('s_cselect_b32 s48, s52, s56')
    h('s_cselect_b32 s49, 3, 2')
    h('s_mul_i32 s52, s37, 44032')
    h('s_lshl_b32 s56, s48, 6')
    h('s_add_u32 s52, s52, s56')
    def dmaA(st): return dmaX(st)+dmaW(st)
    def dmaB(st):
        L=[]
        L.append((f's_add_u32 s61, s58, {st}',None))
        L.append(('s_and_b32 s61, s61, 7',None))
        L.append((f's_add_u32 m0, s54, {W1_ADDR[st]}',None))
        L.append((f's_mul_i32 s55, s61, {64*2752}',None))
        L.append(('s_add_u32 s55, s55, s52',None))
        for p in range(3):
            L.append((f'buffer_load_dwordx4 v{VW1[p]}, {SR(sW1)}, s55 offen offset:{1024*p} lds',f'B{st}'))
        return L
    stamp(h,1)
    NINIT=3
    for o_ in OPT:
        if o_.startswith('NI='): NINIT=int(o_[3:])
    for st in range(1,NINIT): emit(h,dmaA(st))
    stamp(h,2)
    srd(h,sW1,pW1,512*1376*2); srd(h,sWS,pWS,WS_SIZE); srd(h,sB1,pB1,1376*2)
    h(f's_load_dwordx2 s[64:65], s[{pWS}:{pWS+1}], 0')
    common_lds_addr(h)
    h('v_lshlrev_b32 v27, 2, v1')
    h.vm('b1', f'buffer_load_dword v31, v27, {SR(sB1)}, s56 offen')
    h('s_cmp_eq_u32 s37, 3')
    h('s_cselect_b32 s57, 0, s37')
    h('s_lshl_b32 s3, s57, 6')
    h(f's_add_u32 s3, s3, {XS}')
    h('v_add_u32 v17, s3, v16')
    PAT=112; ONES=8; SUMA=[116,120]; GRA=[124,104]; CSA=108
    h('v_and_b32 v27, 15, v1')
    h('v_bfe_u32 v28, v1, 4, 1')
    h('v_cmp_eq_u32 vcc, v27, v28')
    h('v_mov_b32 v29, 0x3f803f80')
    h('s_nop 0')
    h(f'v_cndmask_b32 v{PAT}, 0, v29, vcc')
    for r in range(1,4): h(f'v_mov_b32 v{PAT+r}, v{PAT}')
    for r in range(4): h(f'v_mov_b32 v{ONES+r}, v29')
    SIDX=99; SPA=100
    h('v_and_b32 v30, 1, v1')
    h('v_cmp_eq_u32 vcc, 1, v30')
    h('v_mov_b32 v30, 0x44444444')
    h('v_mov_b32 v32, 0xeeeeeeee')
    h(f'v_cndmask_b32 v{SIDX}, v30, v32, vcc')
    h('v_and_b32 v30, 14, v1')
    h('v_cmp_eq_u32 vcc, 0, v30')
    h('v_cmp_eq_u32 s[66:67], 2, v30')
    h('s_nop 0')
    h(f'v_cndmask_b32 v{SPA}, 0, v29, vcc')
    h(f'v_cndmask_b32 v{SPA+2}, 0, v29, s[66:67]')
    h(f'v_mov_b32 v{SPA+1}, v{SPA}')
    h(f'v_mov_b32 v{SPA+3}, v{SPA+2}')
    for b in SUMA+GRA+[CSA]:
        for r in range(4): h(f'v_mov_b32 v{b+r}, 0')
    h('v_lshrrev_b32 v28, 4, v1')
    h('v_bfe_u32 v29, v1, 1, 3')
    h('v_xor_b32 v28, v28, v29')
    h('v_lshlrev_b32 v28, 4, v28')
    h('v_lshlrev_b32 v27, 7, v27')
    h('s_lshl_b32 s3, s37, 12')
    h('v_add3_u32 v5, v27, v28, s3')
    h('v_xor_b32 v6, 64, v5')
    TMP=40; XS16=56
    h('v_and_b32 v27, 3, v1')
    h('v_cmp_eq_u32 s[66:67], 1, v27')
    h('v_cmp_eq_u32 s[68:69], 2, v27')
    h('v_cmp_eq_u32 s[44:45], 3, v27')
    h('s_mov_b32 s46, 0x00f0000f')
    h('s_mov_b32 s47, 0xf0000f00')
    h('v_and_b32 v28, 15, v1')
    h('v_lshlrev_b32 v28, 2, v28')
    h('s_lshl_b32 s3, s37, 7')
    h('v_add_u32 v28, s3, v28')
    h(f'v_add_u32 v28, {L_A}, v28')
    h('v_lshlrev_b32 v29, 2, v1')
    h('s_lshl_b32 s55, s57, 7')
    h(f's_add_u32 s55, s55, {L_CS}')
    h('v_add_u32 v29, s55, v29')
    h('s_waitcnt lgkmcnt(0)')
    h('s_add_u32 s64, s64, 0x7f4a7c15')
    h('s_addc_u32 s65, s65, 0x9e3779b9')
    h(f's_mov_b32 s59, {SLOT}')
    h(f's_mov_b32 s60, {(-4*SLOT)&0xffffffff:#x}')
    if NINIT==3: sched={0:dmaA(3)+dmaA(4), 1:dmaB(0), 2:dmaA(5), 3:dmaA(6), 4:dmaA(7), 5:dmaB(1)+dmaB(2), 6:dmaB(3)+dmaB(4), 7:[]}
    elif NINIT==2: sched={0:dmaA(2)+dmaA(3), 1:dmaA(4)+dmaB(0), 2:dmaA(5), 3:dmaA(6), 4:dmaA(7), 5:dmaB(1)+dmaB(2), 6:dmaB(3)+dmaB(4), 7:[]}
    else: sched={0:dmaA(1)+dmaA(2), 1:dmaA(3)+dmaA(4), 2:dmaA(5)+dmaB(0), 3:dmaA(6), 4:dmaA(7), 5:dmaB(1)+dmaB(2), 6:dmaB(3)+dmaB(4), 7:[]}
    for st in range(8):
        if st==5: fstamp(h,0)
        h.wait_vm(f'A{st}')
        if st==5: fstamp(h,1)
        h('s_barrier')
        if st==5: fstamp(h,2)
        if st==0: stamp(h,3)
        dm=sched[st]
        for u in range(2):
            for kk in range(2):
                h(f'ds_read_b128 {R(XS16+8*u+4*kk,4)}, v{5+kk} offset:{2048*u}')
        for ks in range(4):
            for e in range(2):
                h(f'ds_read_b64_tr_b16 {R(TMP+4*ks+2*e,2)}, v17 offset:{ks*3072+e*768}')
        if st==5: fstamp(h,3)
        k=0; nv=0
        while nv<2 and k<len(dm):
            if dm[k][1]: h.vm(dm[k][1],dm[k][0]); nv+=1
            else: h(dm[k][0])
            k+=1
        val=[]
        for u in range(2):
            val.append(f'v_smfmac_f32_16x16x64_bf16 {R(SUMA[u],4)}, {R(ONES,4)}, {R(XS16+8*u,8)}, v{SIDX}')
            for kk in range(2):
                x=XS16+8*u+4*kk
                val.append(f'ds_read_b128 {R(XF+16*st+4*(2*u+kk),4)}, v{12+2*u+kk}')
                val.append(f'v_mfma_f32_16x16x32_bf16 {R(GRA[u],4)}, {R(x,4)}, {R(x,4)}, {R(GRA[u],4)}')
        val.append('s_waitcnt lgkmcnt(4)')
        for p_ in range(2):
            val.append(f'v_smfmac_f32_16x16x64_bf16 {R(CSA,4)}, {R(SPA,4)}, {R(TMP+8*p_,8)}, v{SIDX}')
        if st<7:
            d=(A_SLOT[st+1]-A_SLOT[st])*SLOT
            sr='s59' if d==SLOT else 's60'
            for r in (12,13,14,15,17,5,6): val.append(f'v_add_u32 v{r}, {sr}, v{r}')
        if st==5: fstamp(h,4)
        h('s_waitcnt lgkmcnt(8)')
        if st==5: fstamp(h,5)
        rest=dm[k:]; vi=0; fs_=6
        for (ins,tag) in rest:
            if tag:
                for _ in range(2):
                    if vi<len(val): h(val[vi]); vi+=1
                h.vm(tag,ins)
                if st==5: fstamp(h,fs_); fs_+=1
            else: h(ins)
        while vi<len(val):
            h(val[vi]); vi+=1
            if st==5 and val[vi-1].startswith('s_waitcnt'): fstamp(h,fs_); fs_+=1
        if st==5: fstamp(h,fs_); fs_+=1
        if st==6: fstamp(h,15)
    h('s_waitcnt lgkmcnt(0)')
    h('s_nop 1')
    for u in range(2):
        gr=GRA[u]; q=32+2*u
        h(f'v_cndmask_b32 v{q}, v{gr}, v{gr+1}, s[66:67]')
        h(f'v_cndmask_b32 v{q}, v{q}, v{gr+2}, s[68:69]')
        h(f'v_cndmask_b32 v{q}, v{q}, v{gr+3}, s[44:45]')
    for u in range(2):
        q=32+2*u; m=SUMA[u]
        h(f'v_add_f32 v{m}, v{m}, v{m+1}')
        h(f'v_mul_f32 v{q}, {f2u(1/512):#x}, v{q}')
        h(f'v_mul_f32 v{m}, {f2u(1/512):#x}, v{m}')
    h(f'v_add_f32 v{CSA}, v{CSA}, v{CSA+1}')
    h(f'v_add_f32 v{CSA+2}, v{CSA+2}, v{CSA+3}')
    for u in range(2):
        q=32+2*u; m=SUMA[u]
        h(f'v_fma_f32 v{q}, -v{m}, v{m}, v{q}')
        h(f'v_max_f32 v{q}, 0, v{q}')
        h(f'v_add_f32 v{q+1}, {f2u(1e-5):#x}, v{q}')
    h('s_mov_b64 exec, 0xffff')
    h(f'ds_write_b32 v29, v{CSA}')
    h(f'ds_write_b32 v29, v{CSA+2} offset:64')
    h('s_mov_b64 exec, -1')
    for u in range(2):
        q=32+2*u
        h(f'v_rsq_f32 v{q+1}, v{q+1}')
    h('s_mov_b64 exec, s[46:47]')
    for u in range(2):
        q=32+2*u; m=SUMA[u]
        h(f'ds_write_b32 v28, v{m} offset:{64*u+L_MU-L_A}')
        h(f'ds_write_b32 v28, v{q+1} offset:{64*u}')
    h('s_mov_b64 exec, -1')
    h('s_waitcnt lgkmcnt(0)')
    stamp(h,4)
    h('s_barrier')
    emit(h,dmaB(5)+dmaB(6)+dmaB(7))
    for u in range(2):
        q=32+2*u; m=SUMA[u]
        h(f'v_mul_f32 v{m+1}, v{q+1}, v{q+1}')
        h(f'v_mul_f32 v{m+1}, v{m+1}, v{q}')
        h(f'v_add_f32 v{m+1}, {f2u(1e-5):#x}, v{m+1}')
    for u in range(2):
        m=SUMA[u]
        h(f'v_rsq_f32 v{m+1}, v{m+1}')
    h('s_lshl_b32 s3, s37, 7')
    h('v_lshlrev_b32 v27, 2, v3')
    for u in range(2):
        q=32+2*u; m=SUMA[u]
        h(f'v_mul_f32 v{m+2}, v{m+1}, v{q+1}')
        h(f'v_mul_f32 v{m+3}, v{m+2}, v{m}')
    h('s_mov_b64 exec, s[46:47]')
    for u in range(2):
        m=SUMA[u]
        h(f'ds_write_b32 v28, v{m+2} offset:{64*u+L_A2-L_A}')
        h(f'ds_write_b32 v28, v{m+3} offset:{64*u+L_A2M-L_A}')
    h('s_mov_b64 exec, -1')
    h('v_add_u32 v28, s3, v27')
    h(f'v_add_u32 v28, {L_A2}, v28')
    h('s_waitcnt lgkmcnt(0)')
    h('ds_read_b32 v38, v28')
    h(f'ds_read_b32 v30, v28 offset:{L_A2M-L_A2}')
    h('v_lshlrev_b32 v34, 16, v31')
    h('v_and_b32 v35, 0xffff0000, v31')
    h('v_lshlrev_b32 v28, 3, v1')
    h(f'v_add_u32 v28, {L_B1}, v28')
    h('v_cmp_gt_u32 vcc, 48, v1')
    h('s_and_saveexec_b64 s[66:67], vcc')
    h('ds_write_b64 v28, v[34:35]')
    h('s_mov_b64 exec, s[66:67]')
    h('s_mov_b32 s62, 0x00030003')
    h('s_mov_b32 s63, 0x00030003')
    ACC=[64,80,96]
    TS=[57,59,60]
    for sl in range(3):
        h(f's_add_u32 s3, s37, {sl}')
        h('s_cmp_ge_u32 s3, 3')
        h('s_cselect_b32 s55, 3, 0')
        h('s_sub_u32 s3, s3, s55')
        h('s_cmp_ge_u32 s3, 3')
        h('s_cselect_b32 s55, 3, 0')
        h('s_sub_u32 s3, s3, s55')
        h(f's_mov_b32 s{TS[sl]}, s3')
    SPB=8; SIB=5; CS1A=124
    for r in range(4): h(f'v_mov_b32 v{SPB+r}, v{SPA+r}')
    h(f'v_mov_b32 v{SIB}, v{SIDX}')
    for r in range(4): h(f'v_mov_b32 v{CS1A+r}, 0')
    for r in range(64,112): h(f'v_mov_b32 v{r}, 0')
    h(f's_lshl_b32 s3, s{TS[0]}, 6')
    h('v_add_u32 v12, s3, v16')
    h('v_add_u32 v13, 86016, v12')
    h('v_add_u32 v14, 126976, v12')
    def waddr(n,e):
        st,ks=divmod(n,4); base=W1_ADDR[st]
        if base<65536-12288: reg,rel=12,base
        elif base<126976: reg,rel=13,base-86016
        else: reg,rel=14,base-126976
        return reg, rel+ks*3072+e*768
    FSET=[40,44,48,52]
    C1=-2*1.4426950408889634*0.7978845608028654
    C2=C1*0.044715
    h(f's_mov_b32 s66, {f2u(C2):#x}')
    h(f'v_mov_b32 v32, {f2u(C1):#x}')
    h('v_lshlrev_b32 v23, 4, v4')
    h('v_lshlrev_b32 v15, 4, v1')
    h('s_lshl_b32 s53, s38, 2')
    h('s_add_u32 s53, s53, s37')
    h('s_mul_i32 s53, s53, 86')
    SO=[67,68,69]
    CA=[33,34,35]
    for sl in range(3):
        h(f's_add_u32 s54, s48, s{TS[sl]}')
        h('s_lshl_b32 s54, s54, 1')
        h('s_add_u32 s54, s54, s53')
        h('s_lshl_b32 s54, s54, 10')
        h(f's_add_u32 s54, s54, {WS_H}')
        h(f's_cmp_ge_u32 s{TS[sl]}, s49')
        h(f's_cselect_b32 s{SO[sl]}, 0x7ff00000, s54')
        h(f's_lshl_b32 s3, s{TS[sl]}, 7')
        h(f'v_add_u32 v{CA[sl]}, s3, v23')
        h(f'v_add_u32 v{CA[sl]}, {L_CS1}, v{CA[sl]}')
    h('v_lshlrev_b32 v29, 2, v1')
    h(f's_lshl_b32 s55, s{TS[0]}, 7')
    h(f's_add_u32 s55, s55, {L_CS1}')
    h('v_add_u32 v29, s55, v29')
    h(f'v_mov_b32 v17, {L_CNT+12}')
    h('v_mov_b32 v7, 1')
    h.wait_vm(['B0','B1'])
    h('s_waitcnt lgkmcnt(0)')
    gbar_arrive(h, 17, 7)
    gbar_wait(h, 17, 6, 4)
    h.lgq=[]
    bar={8:(['B2','B3','B4'],8), 20:(['B5','B6','B7'],12)}
    NM=96
    def wreads(m):
        sl,n=divmod(m,32); fs=FSET[m%4]
        if n==0 and sl>0:
            h(f's_sub_u32 s3, s{TS[sl]}, s{TS[sl-1]}')
            h('s_lshl_b32 s3, s3, 6')
            for rg in (12,13,14): h(f'v_add_u32 v{rg}, s3, v{rg}')
        if sl==0 and n in bar:
            gbar_wait(h, 17, 6, bar[n][1]); h.lgq=[]
        for e in range(2):
            reg,off=waddr(n,e)
            h.lg(f'W{m}', f'ds_read_b64_tr_b16 {R(fs+2*e,2)}, v{reg} offset:{off}')
    TCS=[112,56]; TB1=[120,18]
    def ureads(sl,hf,k):
        cs=TCS[k%2]; b1=TB1[k%2]; q=[]
        for gg in range(2):
            q.append((4,'lg',(f'G{sl}{hf}', f'ds_read_b128 {R(cs+4*gg,4)}, v{CA[sl]} offset:{(16*hf+8*gg)*4}'),0))
            q.append((4,'lg',(f'G{sl}{hf}', f'ds_read_b128 {R(b1+4*gg,4)}, v{CA[sl]} offset:{(16*hf+8*gg)*4+L_B1-L_CS1}'),0))
        return q
    def ucomp(sl,hf,k,mmin):
        cs=TCS[k%2]; b1=TB1[k%2]; acc=ACC[sl]+8*hf; q=[]
        q.append((0,'wait',f'G{sl}{hf}',mmin))
        for r in range(8): q.append((4,'i',f'v_fma_f32 v{b1+r}, -v{cs+r}, v30, v{b1+r}',mmin))
        for r in range(8): q.append((4,'i',f'v_fma_f32 v{acc+r}, v{acc+r}, v38, v{b1+r}',mmin))
        for r in range(8): q.append((4,'i',f'v_mul_f32 v{cs+r}, v{acc+r}, v{acc+r}',mmin))
        for r in range(8): q.append((4,'i',f'v_fma_f32 v{cs+r}, v{cs+r}, s66, v32',mmin))
        for r in range(8): q.append((4,'i',f'v_mul_f32 v{cs+r}, v{cs+r}, v{acc+r}',mmin))
        for r in range(8): q.append((8,'i',f'v_exp_f32 v{cs+r}, v{cs+r}',mmin))
        for r in range(8): q.append((4,'i',f'v_add_f32 v{cs+r}, 1.0, v{cs+r}',mmin))
        for r in range(8): q.append((8,'i',f'v_rcp_f32 v{cs+r}, v{cs+r}',mmin))
        for r in range(8): q.append((4,'i',f'v_mul_f32 v{acc+r}, v{acc+r}, v{cs+r}',mmin))
        for i in range(4): q.append((4,'i',f'v_cvt_pk_bf16_f32 v{b1+i}, v{acc+2*i}, v{acc+2*i+1}',mmin))
        q.append((4,'i',f'buffer_store_dwordx4 {R(b1,4)}, v15, {W_}, s{SO[sl]} offen offset:{1024*hf} sc1',mmin))
        q.append((0,'i','s_nop 1',mmin))
        return q
    queue=[]
    def drain(budget, m):
        while queue and budget>0 and queue[0][3]<=m:
            c,kind,p,_=queue.pop(0)
            if kind=='lg': h.lg(p[0],p[1])
            elif kind=='wait': h.wait_lg(p)
            elif kind=='gbar': gbar_wait(h, 17, 6, p); h.lgq=[]
            else: h(p)
            budget-=c
    for m in range(3): wreads(m)
    uk=0
    for m in range(NM):
        sl,n=divmod(m,32)
        if sl==0 and (n+4) in bar:
            h.wait_vm(bar[n+4][0]); gbar_arrive(h, 17, 7); h.lgq.append('CNT')
        h.wait_lg(f'W{m}')
        fs=FSET[m%4]
        h(f'v_mfma_f32_32x32x16_bf16 {R(ACC[sl],16)}, {R(fs,4)}, {R(XF+4*n,4)}, {R(ACC[sl],16)}')
        if sl==0 and n%2==1:
            h(f'v_smfmac_f32_16x16x64_bf16 {R(CS1A,4)}, {R(SPB,4)}, {R(FSET[(m-1)%4],8)}, v{SIB}')
        if m+3<NM: wreads(m+3)
        if m==33:
            h('s_nop 3')
            h(f'v_add_f32 v{CS1A}, v{CS1A}, v{CS1A+1}')
            h(f'v_add_f32 v{CS1A+2}, v{CS1A+2}, v{CS1A+3}')
            h('s_mov_b64 exec, 0xffff')
            h.lg('CSW', f'ds_write_b32 v29, v{CS1A}')
            h.lg('CSW', f'ds_write_b32 v29, v{CS1A+2} offset:64')
            h('s_mov_b64 exec, -1')
            h.wait_lg('CSW')
            gbar_arrive(h, 17, 7); h.lgq.append('CNT')
            stamp(h,5)
            queue+=ureads(0,0,0)+ureads(0,1,1)+ucomp(0,0,0,35)
            queue+=[(0,'gbar',16,0)]+ureads(1,0,2)+ucomp(0,1,1,35)
            queue+=ureads(1,1,3)+ucomp(1,0,2,66)
            queue+=ureads(2,0,4)+ucomp(1,1,3,66)
            queue+=ureads(2,1,5)+ucomp(2,0,4,99)+ucomp(2,1,5,99)
        if m>=33: drain(16, m)
    gbar_arrive(h, 17, 7); h.lgq.append('CNT')
    h('s_nop 7')
    drain(1<<30, 1000)
    stamp(h,6)
    h('s_waitcnt vmcnt(0)')
    h.vmq=[]
    h('s_lshl_b32 s48, s38, 4')
    h('s_add_u32 s48, s48, s39')
    h('s_lshl_b32 s48, s48, 7')
    h(f's_add_u32 s48, s48, {F_2}')
    signal(h, L_CNT+4, 3, 's48', 40)

    h('s_setprio 2' if 'g2hi' in OPT else 's_setprio 0')
    h('s_and_b32 s52, s2, 7')
    h('s_lshr_b32 s53, s2, 3')
    h('s_and_b32 s54, s53, 3')
    h('s_lshl_b32 s52, s52, 2')
    h('s_add_u32 s58, s52, s54')
    h('s_lshr_b32 s59, s53, 2')
    h('v_lshlrev_b32 v5, 4, v1')
    h('v_lshlrev_b32 v8, 7, v1')
    sWw=24
    h('s_lshr_b32 s52, s2, 3')
    h('s_lshl_b32 s52, s52, 2')
    h('s_add_u32 s52, s52, s37')
    h('s_lshl_b32 s52, s52, 14')
    h(f's_cmp_ge_u32 s52, {1376*1024}')
    h(f's_cselect_b32 s{sWw}, s{pWO}, s{pW2}')
    h(f's_cselect_b32 s{sWw+1}, s{pWO+1}, s{pW2+1}')
    h(f's_cselect_b32 s53, {1376*1024}, 0')
    h('s_sub_u32 s52, s52, s53')
    h('s_cmp_eq_u32 s53, 0')
    h(f's_mov_b32 s26, {512*512*2}')
    h(f's_cselect_b32 s26, {1376*512*2}, s26')
    h(f's_mov_b32 s{sWw+3}, 0x00020000')
    for k in range(0 if 'nowarm' in OPT else 16):
        h(f'buffer_load_dwordx4 v[40:43], v5, {SR(sWw)}, s52 offen offset:{1024*(k%4)}')
        if k%4==3: h('s_add_u32 s52, s52, 4096')
    sW2=24
    h('s_lshr_b32 s52, s58, 1')
    h('s_lshl_b32 s52, s52, 11')
    h(f's_add_u32 s52, s52, {F_2}')
    stamp(h,7)
    poll_wg(h, 16, 'v8', 's52', 26, 4, L_CNT+20)
    stamp(h,8)
    srd(h,sW2,pW2,1376*512*2)
    h('s_sub_u32 s60, s36, 4')
    h('s_mul_i32 s61, s60, 22')
    h('s_cmp_eq_u32 s60, 3')
    h('s_cselect_b32 s52, 1, 0')
    h('s_sub_u32 s61, s61, s52')
    h('s_cmp_lt_u32 s60, 2')
    h('s_cselect_b32 s62, 22, 21')
    h('s_lshl_b32 s63, s59, 1')
    h('s_and_b32 s52, s58, 3')
    h('s_add_u32 s63, s63, s52')
    h('s_sub_u32 s57, s62, s63')
    h('s_add_u32 s61, s61, s63')
    h('s_lshl_b32 s52, s58, 1')
    h('s_mul_i32 s52, s52, 86')
    h('s_add_u32 s52, s52, s61')
    h('s_lshl_b32 s52, s52, 10')
    h(f's_add_u32 s52, s52, {WS_H}')
    h('s_lshl_b32 s54, s61, 14')
    h('s_lshl_b32 s55, s59, 7')
    h('s_add_u32 s54, s54, s55')
    h('s_lshl_b32 s56, s62, 10')
    h('s_lshl_b32 s53, s62, 14')
    h('s_mov_b32 s50, s57')
    h(f's_mul_i32 s55, s60, {RINGSZ}')
    h(f's_add_u32 s55, s55, {L_RING}')
    def wdma_voff(e):
        e('v_lshrrev_b32 v10, 3, v1')
        e('v_lshlrev_b32 v10, 10, v10')
        e('v_and_b32 v11, 7, v1')
        e('v_bfe_u32 v12, v1, 4, 1')
        e('v_lshlrev_b32 v12, 2, v12')
        e('v_xor_b32 v11, v11, v12')
        e('v_lshlrev_b32 v11, 4, v11')
        e('v_add_u32 v10, v10, v11')
        e('v_add_u32 v11, 7168, v10')
    wdma_voff(h)
    h(f'v_add_u32 v17, {86*1024}, v5')
    def tr_addr(e, dst, base_s):
        e('v_bfe_u32 v13, v1, 2, 2')
        e('v_lshlrev_b32 v14, 2, v4')
        e('v_add_u32 v14, v14, v13')
        e('v_lshlrev_b32 v14, 7, v14')
        e('v_bfe_u32 v15, v1, 4, 1')
        e('v_lshlrev_b32 v15, 1, v15')
        e('v_and_b32 v16, 1, v1')
        e('v_add_u32 v15, v15, v16')
        e('v_lshrrev_b32 v13, 1, v13')
        e('v_lshlrev_b32 v13, 2, v13')
        e('v_xor_b32 v15, v15, v13')
        e('v_lshlrev_b32 v15, 4, v15')
        e('v_bfe_u32 v16, v1, 1, 1')
        e('v_lshlrev_b32 v16, 3, v16')
        e('v_add3_u32 v14, v14, v15, v16')
        e(f'v_add_u32 v{dst}, {base_s}, v14')
        e(f'v_xor_b32 v{dst+1}, 64, v{dst}')
    tr_addr(h, 18, 's55')
    GA=[[192,208],[224,240]]
    XR=[48+8*i for i in range(XD)]
    WB=[24,32]
    def x_issue(i):
        b=XR[i%XD]
        h.vm(f'X{i}', f'buffer_load_dwordx4 {R(b,4)}, v5, {W_}, s52 offen sc1')
        h.vm(f'X{i}', f'buffer_load_dwordx4 {R(b+4,4)}, v17, {W_}, s52 offen sc1')
        h('s_add_u32 s52, s52, 1024')
        h('s_sub_u32 s57, s57, 1')
        h('s_cmp_eq_u32 s57, 0')
        h('s_cselect_b32 s63, s56, 0')
        h('s_sub_u32 s52, s52, s63')
    def w_issue(i):
        h(f's_add_u32 m0, s55, {(i%WD)*2048}')
        h('s_sub_u32 s50, s50, 1')
        h.vm(f'W{i}', f'buffer_load_dwordx4 v10, {SR(sW2)}, s54 offen lds')
        h.vm(f'W{i}', f'buffer_load_dwordx4 v11, {SR(sW2)}, s54 offen offset:1024 lds')
        h('s_add_u32 s54, s54, 16384')
        h('s_cmp_eq_u32 s50, 0')
        h('s_cselect_b32 s63, s53, 0')
        h('s_sub_u32 s54, s54, s63')
    def g2_wread(i):
        for ct in range(2):
            for e in range(2):
                h(f'ds_read_b64_tr_b16 {R(WB[i%2]+4*ct+2*e,2)}, v{18+ct} offset:{(i%WD)*2048+e*1024}')
    if 'nog2' in OPT: h('s_branch K_G2_DONE')
    h.vmq=[]
    for i in range(XD):
        if i<WD: w_issue(i)
        x_issue(i)
    for tt in range(2):
        for ct in range(2):
            for r in range(16): h(f'v_mov_b32 v{GA[tt][ct]+r}, 0')
    if 'now2warm' not in OPT:
        h('s_mov_b32 s48, s54'); h('s_mov_b32 s49, s50')
        h.wait_vm('X8')
        for i in range(WD,22):
            h.vm('L2', f'buffer_load_dwordx4 v[40:43], v10, {SR(sW2)}, s48 offen')
            h.vm('L2', f'buffer_load_dwordx4 v[40:43], v11, {SR(sW2)}, s48 offen offset:1024')
            h('s_add_u32 s48, s48, 16384')
            h('s_sub_u32 s49, s49, 1')
            h('s_cmp_eq_u32 s49, 0')
            h('s_cselect_b32 s63, s53, 0')
            h('s_sub_u32 s48, s48, s63')
    lab=newlab('G2W'); done=newlab('G2WD')
    h(f'v_mov_b32 v12, {L_CNT+G2CNT}')
    h.label(lab)
    h('ds_read_b32 v13, v12')
    h('s_waitcnt lgkmcnt(0)')
    h('v_readfirstlane_b32 s3, v13')
    h('s_nop 0')
    h(f's_cmp_ge_u32 s3, {G2TGT}')
    h(f's_cbranch_scc1 {done}')
    h('s_sleep 16')
    h(f's_branch {lab}')
    h.label(done)
    h('s_setprio 2')
    stamp(h,9)
    h.wait_vm_all()
    g2_wread(0)
    NK=22
    for i in range(NK):
        if i+1<NK:
            h.wait_vm([f'W{i+1}'])
            g2_wread(i+1)
            h.wait_vm([f'X{i}'])
            h('s_waitcnt lgkmcnt(4)')
        else:
            h.wait_vm([f'X{i}'])
            h('s_waitcnt lgkmcnt(0)')
            h('s_cmp_eq_u32 s62, 21')
            h('s_cbranch_scc1 K_G2_DONE')
        b=XR[i%XD]
        for tt in range(2):
            for ct in range(2):
                h(f'v_mfma_f32_32x32x16_bf16 {R(GA[tt][ct],16)}, {R(WB[i%2]+4*ct,4)}, {R(b+4*tt,4)}, {R(GA[tt][ct],16)}')
        if i+WD<NK: w_issue(i+WD)
        if i+XD<NK: x_issue(i+XD)
    h.label('K_G2_DONE')
    h('s_waitcnt vmcnt(0) lgkmcnt(0)')
    stamp(h,11)
    h('s_nop 7')
    for tt in range(2):
        for ct in range(2):
            qd=tt+2*ct
            lab=newlab('GXS')
            h(f's_cmp_eq_u32 s60, {qd}')
            h(f's_cbranch_scc1 {lab}')
            h(f's_sub_u32 s52, {qd+3}, s60')
            h('s_and_b32 s52, s52, 3')
            h('s_lshl_b32 s52, s52, 12')
            h('s_add_u32 s52, s52, s55')
            h('v_add_u32 v14, s52, v5')
            for k in range(4): h(f'ds_write_b128 v14, {R(GA[tt][ct]+4*k,4)} offset:{1024*k}')
            h.label(lab)
    for tt in range(2):
        for ct in range(2):
            qd=tt+2*ct
            if qd==0: continue
            lab=newlab('GXK')
            h(f's_cmp_lg_u32 s60, {qd}')
            h(f's_cbranch_scc1 {lab}')
            h('s_waitcnt lgkmcnt(0)')
            for r in range(16): h(f'v_mov_b32 v{192+r}, v{GA[tt][ct]+r}')
            h.label(lab)
    def att_ids(e):
        e('s_and_b32 s48, s2, 7')
        e('s_lshr_b32 s49, s2, 3')
        e('s_and_b32 s50, s49, 3')
        e('s_lshl_b32 s48, s48, 2')
        e('s_add_u32 s38, s48, s50')
        e('s_lshr_b32 s39, s49, 2')
    h(f'v_mov_b32 v12, {L_CNT+12}')
    h('v_mov_b32 v13, 1')
    h('s_waitcnt lgkmcnt(0)')
    gbar_arrive(h, 12, 13)
    gbar_wait(h, 12, 13, 24)
    for sl in range(3):
        h(f's_sub_u32 s52, s60, {sl+1}')
        h('s_and_b32 s52, s52, 3')
        h(f's_mul_i32 s52, s52, {RINGSZ}')
        h(f's_add_u32 s52, s52, {L_RING+4096*sl}')
        h('v_add_u32 v14, s52, v5')
        for k in range(4): h(f'ds_read_b128 {R(128+16*sl+4*k,4)}, v14 offset:{1024*k}')
    h('s_waitcnt lgkmcnt(0)')
    for sl in range(3):
        for r in range(16): h(f'v_add_f32 v{192+r}, v{192+r}, v{128+16*sl+r}')
    h('s_branch K_TAIL')

    a2=Asm()
    a2.label('K_ATT')
    a2('s_setprio 1')
    att_ids(a2)
    a2('v_lshlrev_b32 v5, 4, v1')
    a2('v_lshlrev_b32 v6, 8, v4')
    a2('v_and_b32 v7, 15, v1')
    a2('v_lshlrev_b32 v7, 4, v7')
    a2('v_add_u32 v6, v6, v7')
    a2('v_lshlrev_b32 v8, 7, v1')
    a2('v_lshlrev_b32 v9, 2, v1')
    a2('s_lshl_b32 s44, s38, 16')
    a2('s_lshl_b32 s46, s39, 13')
    a2('s_add_u32 s46, s46, s44')
    a2(f's_add_u32 s46, s46, {WS_Q}')
    a2('s_lshl_b32 s47, s36, 14')
    a2('s_add_u32 s47, s47, s44')
    a2(f's_add_u32 s48, s47, {WS_V}')
    a2(f's_add_u32 s47, s47, {WS_K}')
    a2('s_mov_b32 s40, s47')
    a2('s_mov_b32 s41, s48')
    a2('s_lshr_b32 s49, s38, 1')
    a2('s_mul_i32 s49, s49, 1536')
    a2(f's_add_u32 s49, s49, {WS_N}')
    a2('s_mov_b32 s50, 0x0000ffff')
    a2('s_mov_b32 s51, 0x0000ffff')
    KB=[80,84,88,92]; VB=[96,104,112,120]; QF=48
    SA,SB=10,26
    OA=[128+16*i for i in range(8)]; IDX=44
    a2('v_and_b32 v12, 27, v3')
    a2('v_cmp_eq_u32 vcc, 16, v12')
    a2('v_mov_b32 v12, 0x3f803f80')
    a2('s_nop 0')
    a2(f'v_cndmask_b32 v{IDX}, 0, v12, vcc')
    for b in VB:
        for r in range(8): a2(f'v_mov_b32 v{b+r}, v{IDX}')
    a2(f'v_mov_b32 v{IDX}, 0xdddddddd')
    for o in OA:
        for r in range(16): a2(f'v_mov_b32 v{o+r}, 0')
    for r in range(8,16): a2(f'v_mov_b32 v{SB+r}, 0')
    for p_ in range(4):
        a2(f's_sub_u32 s52, s36, {p_+1}')
        a2('s_and_b32 s52, s52, 3')
        a2('s_mul_i32 s52, s52, 2304')
        a2(f's_add_u32 s{56+p_}, s52, {2*p_*3*2304}')
    a2('s_lshl_b32 s52, s36, 1')
    a2('s_lshl_b32 s52, 3, s52')
    a2('s_xor_b32 s45, s52, 0xff')
    a2('s_lshr_b32 s52, s38, 1')
    a2('s_lshl_b32 s52, s52, 11')
    a2(f's_add_u32 s52, s52, {F_1}')
    stamp(a2,7)
    poll_wg(a2, 16, 'v8', 's52', 18, 0, L_CNT+24)
    stamp(a2,8)
    def loadkv(b, ko):
        a2.vm('KV', f'buffer_load_dwordx4 {R(KB[b],4)}, v5, {W_}, s47 offen offset:{1024*ko} sc1')
        a2('s_mov_b64 exec, s[50:51]')
        a2.vm('KV', f'buffer_load_dwordx4 {R(VB[b],4)}, v6, {W_}, s48 offen offset:{1024*ko} sc1')
        a2.vm('KV', f'buffer_load_dwordx4 {R(VB[b]+4,4)}, v6, {W_}, s48 offen offset:{1024*ko+512} sc1')
        a2('s_mov_b64 exec, -1')
    for i in range(4):
        a2.vm('Q', f'buffer_load_dwordx4 {R(QF+4*i,4)}, v5, {W_}, s46 offen offset:{1024*i} sc1')
    loadkv(0,0)
    a2('s_add_u32 s46, s46, 4096')
    for i in range(4,8):
        a2.vm('Q', f'buffer_load_dwordx4 {R(QF+4*i,4)}, v5, {W_}, s46 offen offset:{1024*(i-4)} sc1')
    NR=(42,43,45,46,47,2)
    for k,rg in enumerate(NR):
        a2.vm('N', f'buffer_load_dword v{rg}, v9, {W_}, s49 offen offset:{256*k} sc1')
    loadkv(1,1); loadkv(2,2)
    a2('s_add_u32 s47, s47, 3072')
    a2('s_add_u32 s48, s48, 3072')
    def qk(kb, i, dst): return f'v_mfma_f32_32x32x16_bf16 {R(dst,16)}, {R(KB[kb],4)}, {R(QF+4*i,4)}, 0'
    def pv(kb, i, half, src): return f'v_smfmac_f32_32x32x32_bf16 {R(OA[i],16)}, {R(VB[kb]+4*half,4)}, {R(src+8*half,8)}, v{IDX}'
    a2('s_mov_b32 s42, 0')
    a2('s_mov_b32 s43, 0')
    a2('s_waitcnt vmcnt(12)')
    stamp(a2,9)
    a2(qk(0,0,SA))
    a2('s_nop 7'); a2('s_nop 3')
    a2.label('K_ATT_LOOP')
    ool=Asm()
    def red_write(i, inline=False):
        lab=newlab('RW'); back=newlab('RWB')
        e=a2 if inline else ool
        a2(f's_bitcmp1_b32 s43, {i}')
        if inline: a2(f's_cbranch_scc0 {back}')
        else:
            a2(f's_cbranch_scc1 {lab}'); ool.label(lab)
        p_=i>>1; off=(i&1)*3*2304
        e(f'v_add_u32 v42, s{56+p_}, v5')
        e(f'v_add_u32 v43, s{56+p_}, v9')
        e(f'ds_write_b128 v42, {R(OA[i],4)} offset:{off}')
        e(f'ds_write_b128 v42, {R(OA[i]+4,4)} offset:{off+1024}')
        e(f'ds_write_b32 v43, v{OA[i]+8} offset:{off+2048}')
        if not inline: ool(f's_branch {back}')
        a2.label(back)
    for n in range(32):
        kb,i=divmod(n,8)
        sa=SA if n%2==0 else SB
        sb=SB if n%2==0 else SA
        ex=[f'v_exp_f32 v{sa+r}, v{sa+r}' for r in range(16)]
        if 'noexp' in OPT: ex=[f'v_mov_b32 v{sa+r}, v{sa+r}' for r in range(16)]
        for e in ex[0:2]: a2(e)
        pkb,pi=divmod((n-1)%32,8)
        if 'nopv' not in OPT: a2(pv(pkb,pi,1,sb))
        if i==0 and 'noload' not in OPT: loadkv((kb+3)%4, kb)
        if kb==1 and i==1:
            lab=newlab('CHK'); back=newlab('CHKB')
            a2('s_cmp_eq_u32 s42, 0')
            a2(f's_cbranch_scc1 {lab}')
            ool.label(lab)
            for sh in (1,2,4,8):
                for r in NR: ool(f'v_max_f32_dpp v{r}, v{r}, v{r} row_shr:{sh} row_mask:0xf bank_mask:0xf')
            for r in NR: ool(f'v_max_f32_dpp v{r}, v{r}, v{r} row_bcast:15 row_mask:0xa bank_mask:0xf')
            for r in NR: ool(f'v_max_f32_dpp v{r}, v{r}, v{r} row_bcast:31 row_mask:0xc bank_mask:0xf')
            ool('v_add_f32 v42, v42, v43')
            ool('v_add_f32 v45, v45, v46')
            ool('v_max_f32 v47, v47, v2')
            ool('v_mul_f32 v42, v42, v45')
            ool(f'v_mul_f32 v42, {f2u(1.05):#x}, v42')
            ool(f'v_mov_b32 v43, {f2u(T_LOG2*T_LOG2):#x}')
            ool(f'v_mov_b32 v45, {f2u(2.0**60):#x}')
            ool('v_cmp_le_f32 vcc, v42, v43')
            ool('v_cmp_le_f32 s[52:53], v47, v45')
            ool('s_nop 1')
            ool('s_and_b64 vcc, vcc, s[52:53]')
            ool('s_bitcmp1_b64 vcc, 63')
            ool('s_cbranch_scc0 K_SLOW')
            ool(f'v_mov_b32 v42, {L_CNT+12}')
            gbar_wait(ool, 42, 43, 20)
            ool(f's_branch {back}')
            a2.label(back)
        for e in ex[2:5]: a2(e)
        nkb,ni=divmod((n+1)%32,8)
        if i==7: a2('s_waitcnt vmcnt(6)')
        if 'noqk' not in OPT: a2(qk(nkb,ni,sb))
        for e in ex[5:11]: a2(e)
        if 'nopv' not in OPT: a2(pv(kb,i,0,sa))
        if kb==3 and i>=2: red_write(i-2)
        for e in ex[11:16]: a2(e)
    a2('s_add_u32 s47, s47, 4096')
    a2('s_add_u32 s48, s48, 4096')
    a2('s_add_u32 s42, s42, 1')
    a2('s_cmp_eq_u32 s42, 3')
    a2('s_cselect_b32 s43, s45, 0')
    a2('s_cmp_lt_u32 s42, 4')
    a2('s_cbranch_scc1 K_ATT_LOOP')
    a2('s_nop 1')
    a2(pv(3,7,1,SB))
    a2(f'v_mov_b32 v46, {L_CNT+G2CNT}')
    a2('v_mov_b32 v47, 1')
    gbar_arrive(a2, 46, 47)
    a2('s_mov_b32 s43, s45')
    red_write(6, True)
    a2('s_waitcnt lgkmcnt(0)')
    a2('s_wakeup')
    a2('s_nop 3')
    red_write(7, True)
    a2('s_branch K_ATT_RED')
    a2.label('K_ATT_DONE')
    a2('s_mov_b32 s43, s45')
    for i in range(8): red_write(i, True)
    a2.label('K_ATT_RED')
    stamp(a2,10)
    a2.vmq=[]
    a2('s_and_b32 s52, s2, 7')
    a2('s_lshr_b32 s53, s2, 3')
    a2('s_and_b32 s54, s53, 3')
    a2('s_lshl_b32 s52, s52, 2')
    a2('s_add_u32 s58, s52, s54')
    a2('s_lshr_b32 s59, s53, 2')
    a2(f'v_mov_b32 v20, {L_CNT+28}')
    a2('v_mov_b32 v21, 1')
    a2('s_waitcnt lgkmcnt(0)')
    gbar_arrive(a2, 20, 21)
    gbar_wait(a2, 20, 22, 4)
    stamp(a2,12)
    a2('s_waitcnt vmcnt(0)')
    for p_ in range(4):
        lab=newlab('RM')
        a2(f's_cmp_lg_u32 s36, {p_}')
        a2(f's_cbranch_scc1 {lab}')
        for t_ in range(2):
            for r in range(9): a2(f'v_mov_b32 v{32+48*t_+r}, v{OA[2*p_+t_]+r}')
        a2.label(lab)
    a2(f's_mul_i32 s53, s36, {6*2304}')
    a2('v_add_u32 v14, s53, v5')
    a2('v_add_u32 v15, s53, v9')
    for t_ in range(2):
        for k in range(3):
            b=32+48*t_+12*(k+1); off=(t_*3+k)*2304
            a2(f'ds_read_b128 {R(b,4)}, v14 offset:{off}')
            a2(f'ds_read_b128 {R(b+4,4)}, v14 offset:{off+1024}')
            a2(f'ds_read_b32 v{b+8}, v15 offset:{off+2048}')
    a2('s_lshl_b32 s53, s39, 3')
    a2('s_lshl_b32 s52, s36, 1')
    a2('s_add_u32 s53, s53, s52')
    a2('s_lshl_b32 s53, s53, 5')
    a2('s_add_u32 s53, s53, s38')
    a2('s_lshl_b32 s53, s53, 10')
    a2(f's_add_u32 s53, s53, {WS_O}')
    for t_ in range(2):
        b=32+48*t_
        if t_==0: a2('s_waitcnt lgkmcnt(9)')
        if t_==1: a2('s_waitcnt lgkmcnt(0)'); gbar_arrive(a2, 20, 21)
        for sl in range(1,4):
            for r in range(9): a2(f'v_add_f32 v{b+r}, v{b+r}, v{b+12*sl+r}')
        a2(f'v_rcp_f32 v{b+9}, v{b+8}')
        a2('s_nop 0')
        for r in range(8): a2(f'v_mul_f32 v{b+r}, v{b+r}, v{b+9}')
        for i in range(4): a2(f'v_cvt_pk_bf16_f32 v{b+12+i}, v{b+2*i}, v{b+2*i+1}')
        a2(f'buffer_store_dwordx4 {R(b+12,4)}, v5, {W_}, s53 offen sc1')
        if t_==0: a2(f's_add_u32 s53, s53, {32*1024}')
    ACC3=192
    for r in range(16): a2(f'v_mov_b32 v{ACC3+r}, 0')
    a2('s_lshl_b32 s52, s39, 5')
    a2('s_add_u32 s52, s52, s38')
    a2('s_lshl_b32 s52, s52, 7')
    a2(f's_add_u32 s52, s52, {F_3}')
    a2('s_waitcnt vmcnt(0)')
    signal(a2, L_CNT+8, 3, 's52', 46)
    if 'abs' in OPT: stamp(a2,11)
    gbar_wait(a2, 20, 22, 8)
    sWO=24
    srd(a2,sWO,pWO,512*512*2)
    wdma_voff(a2)
    a2('s_lshl_b32 s52, s36, 17')
    a2('s_lshl_b32 s53, s59, 7')
    a2('s_add_u32 s52, s52, s53')
    a2('s_lshl_b32 s53, s36, 14')
    for i in range(8):
        a2(f's_add_u32 m0, s53, {L_WO+2048*i}')
        a2('s_nop 0')
        a2(f'buffer_load_dwordx4 v10, {SR(sWO)}, s52 offen lds')
        a2(f'buffer_load_dwordx4 v11, {SR(sWO)}, s52 offen offset:1024 lds')
        a2('s_add_u32 s52, s52, 16384')
    a2.label('K_TAIL')
    a2('s_setprio 0')
    a2('v_lshlrev_b32 v8, 7, v1')
    sOUT,sB2,sX2=32,40,44
    srd(a2,sOUT,pOUT,2048*512*2); srd(a2,sB2,pB2,512*2); srd(a2,sX2,pX,2048*512*2)
    a2('s_and_b32 s50, s36, 1')
    a2('s_bfe_u32 s51, s36, 0x10001')
    a2('s_lshr_b32 s49, s36, 2')
    a2('s_lshl_b32 s60, s58, 6')
    a2('s_lshl_b32 s61, s50, 5')
    a2('s_add_u32 s60, s60, s61')
    a2('v_add_u32 v20, s60, v3')
    a2('v_lshlrev_b32 v20, 10, v20')
    a2('s_lshl_b32 s60, s59, 6')
    a2('s_lshl_b32 s61, s51, 5')
    a2('s_add_u32 s60, s60, s61')
    a2('s_lshl_b32 s61, s49, 4')
    a2('s_add_u32 s60, s60, s61')
    a2('v_lshlrev_b32 v21, 3, v4')
    a2('v_add_u32 v21, s60, v21')
    a2('v_lshlrev_b32 v21, 1, v21')
    a2('v_add_u32 v20, v20, v21')
    a2(f'buffer_load_dwordx4 v[52:55], v20, {SR(sX2)}, 0 offen')
    a2(f'buffer_load_dwordx4 v[56:59], v21, {SR(sB2)}, 0 offen')
    a2('s_lshl_b32 s52, s51, 6')
    a2(f's_lshl_b32 s53, s49, 15')
    a2(f's_add_u32 s53, s53, {L_WO}')
    tr_addr(a2, 18, 's53')
    a2('v_xor_b32 v18, s52, v18')
    a2('s_lshl_b32 s52, s50, 15')
    a2('s_lshl_b32 s53, s49, 14')
    a2('s_add_u32 s52, s52, s53')
    a2(f's_add_u32 s52, s52, {L_OX}')
    a2('v_add_u32 v19, s52, v5')
    a2('s_bfe_u32 s56, s36, 0x10001')
    a2('s_lshl_b32 s56, s56, 4')
    a2('s_lshr_b32 s57, s36, 2')
    a2('s_lshl_b32 s57, s57, 1')
    a2('s_add_u32 s56, s56, s57')
    a2('s_lshl_b32 s57, s58, 1')
    a2('s_add_u32 s57, s57, s50')
    a2('s_lshl_b32 s57, s57, 5')
    a2('s_add_u32 s57, s57, s56')
    a2('s_lshl_b32 s57, s57, 10')
    a2(f's_add_u32 s57, s57, {WS_O}')
    a2('s_lshl_b32 s60, s50, 5')
    a2('s_add_u32 s60, s60, s56')
    a2('s_lshl_b32 s60, s60, 10')
    a2(f's_add_u32 s60, s60, {L_OX}')
    a2('s_lshr_b32 s52, s58, 2')
    a2('s_lshl_b32 s52, s52, 12')
    a2(f's_add_u32 s52, s52, {F_3}')
    stamp(a2,13)
    a2('s_waitcnt vmcnt(0)')
    a2('s_cmp_eq_u32 s36, 0')
    a2('s_cbranch_scc0 K_S3W')
    poll(a2, 32, 'v8', 's52', 46)
    a2.label('K_S3W')
    a2.vmq=[]
    a2('s_barrier')
    stamp(a2,14)
    a2('s_cmp_eq_u32 s2, 0')
    a2('s_cbranch_scc0 K_NOE')
    a2('s_cmp_eq_u32 s36, 0')
    a2('s_cbranch_scc0 K_NOE')
    a2('v_mov_b32 v60, s64'); a2('v_mov_b32 v61, s65'); a2('v_mov_b32 v62, 0')
    a2('s_mov_b64 exec, 1')
    a2(f'buffer_store_dwordx2 v[60:61], v62, {W_}, 0 offen')
    a2('s_mov_b64 exec, -1')
    a2.label('K_NOE')
    for s_ in range(4):
        a2(f's_add_u32 m0, s60, {4096*s_}')
        a2(f's_add_u32 s55, s57, {4096*s_}')
        a2.vm(f'O{s_}', f'buffer_load_dwordx4 v5, {W_}, s55 offen sc1 lds')
        a2.vm(f'O{s_}', f'buffer_load_dwordx4 v5, {W_}, s55 offen offset:1024 sc1 lds')
    FX=[64,68,72,76]; FW=[80,84,88,92]
    for s_ in range(4):
        a2.wait_vm(f'O{s_}')
        a2('s_barrier')
        for k in range(4):
            ks=4*s_+k
            a2(f'ds_read_b128 {R(FX[k],4)}, v19 offset:{ks*1024}')
            a2(f'ds_read_b64_tr_b16 {R(FW[k],2)}, v18 offset:{ks*2048}')
            a2(f'ds_read_b64_tr_b16 {R(FW[k]+2,2)}, v18 offset:{ks*2048+1024}')
        for k in range(4):
            a2(f's_waitcnt lgkmcnt({3*(3-k)})')
            a2(f'v_mfma_f32_32x32x16_bf16 {R(ACC3,16)}, {R(FW[k],4)}, {R(FX[k],4)}, {R(ACC3,16)}')
    stamp(a2,15)
    a2('s_and_b32 s52, s36, 3')
    a2('s_lshl_b32 s52, s52, 12')
    a2('s_lshl_b32 s53, s49, 11')
    a2('s_add_u32 s54, s52, s53')
    a2('s_xor_b32 s53, s53, 2048')
    a2('s_add_u32 s55, s52, s53')
    a2(f's_add_u32 s54, s54, {L_EX}')
    a2(f's_add_u32 s55, s55, {L_EX}')
    a2('v_add_u32 v22, s54, v5')
    a2('v_add_u32 v23, s55, v5')
    a2('s_nop 7')
    a2('s_cmp_eq_u32 s49, 0')
    a2('s_cbranch_scc1 K_KH0')
    a2(f'ds_write_b128 v22, {R(ACC3,4)}')
    a2(f'ds_write_b128 v22, {R(ACC3+4,4)} offset:1024')
    a2('s_waitcnt lgkmcnt(0)')
    for r in range(8): a2(f'v_mov_b32 v{ACC3+r}, v{ACC3+8+r}')
    a2('s_branch K_EX')
    a2.label('K_KH0')
    a2(f'ds_write_b128 v22, {R(ACC3+8,4)}')
    a2(f'ds_write_b128 v22, {R(ACC3+12,4)} offset:1024')
    a2.label('K_EX')
    a2('s_waitcnt lgkmcnt(0)')
    a2('s_barrier')
    a2('ds_read_b128 v[64:67], v23')
    a2('ds_read_b128 v[68:71], v23 offset:1024')
    for i in range(4):
        a2(f'v_lshlrev_b32 v{72+2*i}, 16, v{52+i}')
        a2(f'v_and_b32 v{73+2*i}, 0xffff0000, v{52+i}')
        a2(f'v_lshlrev_b32 v{80+2*i}, 16, v{56+i}')
        a2(f'v_and_b32 v{81+2*i}, 0xffff0000, v{56+i}')
    for r in range(8): a2(f'v_add_f32 v{72+r}, v{72+r}, v{80+r}')
    a2('s_waitcnt lgkmcnt(0)')
    for r in range(8): a2(f'v_add_f32 v{ACC3+r}, v{ACC3+r}, v{64+r}')
    for r in range(8): a2(f'v_add_f32 v{ACC3+r}, v{ACC3+r}, v{72+r}')
    for i in range(4): a2(f'v_cvt_pk_bf16_f32 v{64+i}, v{ACC3+2*i}, v{ACC3+2*i+1}')
    a2(f'buffer_store_dwordx4 v[64:67], v20, {SR(sOUT)}, 0 offen'+(' sc1' if 'outsc1' in OPT else ' nt' if 'outnt' in OPT else ''))
    if STAMP and ('rt' in OPT or 'span' in OPT) and 'dbg' not in OPT:
        a2('s_memrealtime s[92:93]'); a2('s_memtime s[100:101]')
    if 'abs' in OPT:
        a2('s_cmp_lt_u32 s36, 4'); a2('s_cbranch_scc0 K_NOABS'); stamp(a2,6); a2.label('K_NOABS')
    stamp_flush(a2,16)
    stamp_dbg(a2)
    a2('s_endpgm')
    a2.label('K_SLOW')
    a2('s_waitcnt vmcnt(0)')
    a2('s_nop 7'); a2('s_nop 7')
    for o in OA:
        for r in range(16): a2(f'v_mov_b32 v{o+r}, 0')
    MX=116
    a2('s_mov_b32 s61, s40')
    for i in range(8): a2(f'v_mov_b32 v{MX+i}, 0xff800000')
    a2('s_mov_b32 s62, 0')
    a2.label('K_S1')
    a2(f'buffer_load_dwordx4 {R(KB[0],4)}, v5, {W_}, s61 offen sc1')
    a2('s_waitcnt vmcnt(0)')
    for i in range(8):
        a2(f'v_mfma_f32_32x32x16_bf16 {R(SA,16)}, {R(KB[0],4)}, {R(QF+4*i,4)}, 0')
        a2('s_nop 7'); a2('s_nop 7')
        for r in range(0,16,2): a2(f'v_max3_f32 v{MX+i}, v{MX+i}, v{SA+r}, v{SA+r+1}')
    a2('s_add_u32 s61, s61, 1024')
    a2('s_add_u32 s62, s62, 1')
    a2('s_cmp_lt_u32 s62, 16')
    a2('s_cbranch_scc1 K_S1')
    for i in range(8): a2(f'v_mov_b32 v{SA+i}, v{MX+i}')
    a2('s_nop 1')
    for i in range(8): a2(f'v_permlane32_swap_b32 v{MX+i}, v{SA+i}')
    a2('s_nop 1')
    for i in range(8): a2(f'v_max_f32 v{MX+i}, v{MX+i}, v{SA+i}')
    a2(f'v_mov_b32 v12, {L_CNT+12}')
    gbar_wait(a2, 12, 13, 20)
    a2('s_lshl_b32 s53, s36, 11')
    a2(f's_add_u32 s53, s53, {L_MX}')
    a2('v_add_u32 v42, s53, v9')
    for i in range(8): a2(f'ds_write_b32 v42, v{MX+i} offset:{256*i}')
    a2(f'v_mov_b32 v12, {L_CNT+16}')
    a2('v_mov_b32 v13, 1')
    a2('s_waitcnt lgkmcnt(0)')
    gbar_arrive(a2, 12, 13)
    gbar_wait(a2, 12, 13, 4)
    a2(f'v_add_u32 v42, {L_MX}, v9')
    for q in range(4):
        for i in range(8): a2(f'ds_read_b32 v{SA+i}, v42 offset:{2048*q+256*i}')
        a2('s_waitcnt lgkmcnt(0)')
        for i in range(8): a2(f'v_max_f32 v{MX+i}, v{MX+i}, v{SA+i}')
    a2('s_mov_b32 s61, s40'); a2('s_mov_b32 s60, s41')
    a2('s_mov_b32 s62, 0')
    a2.label('K_S2')
    a2(f'buffer_load_dwordx4 {R(KB[0],4)}, v5, {W_}, s61 offen sc1')
    a2('s_mov_b64 exec, s[50:51]')
    a2(f'buffer_load_dwordx4 {R(VB[0],4)}, v6, {W_}, s60 offen sc1')
    a2(f'buffer_load_dwordx4 {R(VB[0]+4,4)}, v6, {W_}, s60 offen offset:512 sc1')
    a2('s_mov_b64 exec, -1')
    a2('s_waitcnt vmcnt(0)')
    for i in range(8):
        a2(f'v_mfma_f32_32x32x16_bf16 {R(SA,16)}, {R(KB[0],4)}, {R(QF+4*i,4)}, 0')
        a2('s_nop 7'); a2('s_nop 7')
        for r in range(16): a2(f'v_sub_f32 v{SA+r}, v{SA+r}, v{MX+i}')
        for r in range(16): a2(f'v_exp_f32 v{SA+r}, v{SA+r}')
        a2('s_nop 1')
        a2(f'v_smfmac_f32_32x32x32_bf16 {R(OA[i],16)}, {R(VB[0],4)}, {R(SA,8)}, v{IDX}')
        a2(f'v_smfmac_f32_32x32x32_bf16 {R(OA[i],16)}, {R(VB[0]+4,4)}, {R(SA+8,8)}, v{IDX}')
        a2('s_nop 7')
    a2('s_add_u32 s61, s61, 1024')
    a2('s_add_u32 s60, s60, 1024')
    a2('s_add_u32 s62, s62, 1')
    a2('s_cmp_lt_u32 s62, 16')
    a2('s_cbranch_scc1 K_S2')
    a2(f'v_mov_b32 v42, {L_CNT+G2CNT}')
    a2('v_mov_b32 v43, 1')
    gbar_arrive(a2, 42, 43)
    a2('s_waitcnt lgkmcnt(0)')
    a2('s_wakeup')
    a2('s_nop 7')
    a2('s_branch K_ATT_DONE')
    return 'K_START:\n'+a.text()+'\n'+h.text()+'\n'+g.text()+'\n'+a2.text()+'\n'+ool.text()+'\nK_END:\n  s_endpgm\n'

HEADER=open('cdna_kernels/'+NAME+'.s.ref').read().split('; Override launch geometry')[0]
def assemble(body):
    n=NAME+'_kernel'
    return HEADER+f'''; @launch grid=(256,1,1) block=(512,1,1) lds={LDS_TOTAL}
.amdgcn_target "amdgcn-amd-amdhsa--gfx950"
.text
.globl {n}
.p2align 8
.type {n},@function
{n}:
{body}
.section .rodata,"a"
.p2align 6
.amdhsa_kernel {n}
  .amdhsa_next_free_vgpr 256
  .amdhsa_next_free_sgpr 102
  .amdhsa_accum_offset 256
  .amdhsa_group_segment_fixed_size 0
  .amdhsa_kernarg_size 88
  .amdhsa_user_sgpr_count 2
  .amdhsa_user_sgpr_kernarg_segment_ptr 1
  .amdhsa_system_sgpr_workgroup_id_x 1
  .amdhsa_float_denorm_mode_32 3
.end_amdhsa_kernel
'''
if __name__=='__main__':
    outp=sys.argv[1]
    if 'stamp' in sys.argv: STAMP=True
    OPT.update(sys.argv[2:])
    for o_ in list(OPT):
        if o_.startswith('PD='): POLLD=int(o_[3:])
    open(outp,'w').write(assemble(gen()))
    print('wrote',outp)
```

```python
import sys, struct
NAME='parallel_sum__softmax_full_mha__mixer_channel_mlp__prompt'

WS_F = 0
F_1, F_2, F_3 = 32768, 65536, 98304
WS_N = 256<<10
WS_Q = 1<<20
WS_K = 3<<20
WS_V = 5<<20
WS_O = 7<<20
WS_H = 9<<20
WS_T = 15<<20
WS_SIZE = 16<<20
QSCALE = 0.25*1.4426950408889634
T_LOG2 = 48.0
SPIN_MAX = 1<<20
POLLD = 1

def f2u(f): return struct.unpack('<I', struct.pack('<f', f))[0]

STAMP=False
OPT=set()
class Asm:
    def __init__(self):
        self.L=[]; self.vmq=[]; self.lgq=[]
    def __call__(self, s): self.L.append('  '+s)
    def c(self, s): self.L.append('  ; '+s)
    def label(self, n): self.L.append(n+':')
    def vm(self, tag, s):
        self.vmq.append(tag); self(s)
    def wait_vm(self, tags):
        if isinstance(tags,str): tags=[tags]
        idx=[i for i,t in enumerate(self.vmq) if t in tags]
        if not idx: return
        last=max(idx); n=len(self.vmq)-1-last
        assert n<=63
        self(f's_waitcnt vmcnt({n})')
        self.vmq=self.vmq[last+1:]
    def lg(self, tag, s):
        self.lgq.append(tag); self(s)
    def wait_lg(self, tags):
        if isinstance(tags,str): tags=[tags]
        idx=[i for i,t in enumerate(self.lgq) if t in tags]
        if not idx: return
        last=max(idx); n=len(self.lgq)-1-last
        if n<=15: self(f's_waitcnt lgkmcnt({n})')
        self.lgq=self.lgq[last+1:]
    def wait_vm_all(self):
        self('s_waitcnt vmcnt(0)'); self.vmq=[]
    def text(self): return '\n'.join(self.L)

RTMAP={3:1, 9:2, 10:4}
def fstamp(a, i):
    if STAMP and 'fine' in OPT and 'fe' not in OPT: a(f's_memtime s[{70+2*i}:{71+2*i}]')
def estamp(a, i):
    if STAMP and 'fe' in OPT: a(f's_memtime s[{70+2*i}:{71+2*i}]')
def stamp(a, i):
    if STAMP:
        if 'span' in OPT: return
        if 'fine' in OPT: return
        if 'rt' in OPT and i in (1,2,4) : return
        if 'abs' in OPT:
            a(f's_memrealtime s[{70+2*i}:{71+2*i}]'); return
        a(f's_memtime s[{70+2*i}:{71+2*i}]')
        if 'rt' in OPT and i in RTMAP:
            j=RTMAP[i]; a(f's_memrealtime s[{70+2*j}:{71+2*j}]')
def stamp_flush(a, n):
    if not STAMP: return
    a('s_waitcnt vmcnt(0) lgkmcnt(0)')
    a('s_lshl_b32 s69, s2, 3')
    a('s_add_u32 s69, s69, s36')
    a('s_lshl_b32 s69, s69, 6')
    a(f's_add_u32 s69, s69, {WS_T}')
    a('v_mov_b32 v2, 0')
    for i in range(n):
        a(f'v_mov_b32 v3, s{70+2*i}')
        a('s_mov_b64 exec, 1')
        a(f'buffer_store_dword v3, v2, s[28:31], s69 offen offset:{4*i}')
        a('s_mov_b64 exec, -1')
        a('s_nop 1')

def stamp_dbg(a):
    if not (STAMP and 'dbg' in OPT): return
    lab=newlab('DBG')
    a('s_cmp_eq_u32 s2, 37')
    a(f's_cbranch_scc0 {lab}')
    a('s_cmp_eq_u32 s36, 0')
    a(f's_cbranch_scc0 {lab}')
    a('s_load_dwordx2 s[66:67], s[0:1], 72')
    a('s_memrealtime s[92:93]')
    a('s_memtime s[100:101]')
    a('s_waitcnt lgkmcnt(0)')
    a('s_sub_u32 s92, s92, s82')
    a('s_add_u32 s92, s92, s70')
    if 'rt' in OPT:
        for j in (1,2,4):
            a(f's_sub_u32 s{70+2*j}, s{70+2*j}, s82'); a(f's_add_u32 s{70+2*j}, s{70+2*j}, s70')
    a('s_mov_b32 s82, s70')
    a('s_mov_b32 s40, s66'); a('s_mov_b32 s41, s67'); a('s_mov_b32 s42, 256'); a('s_mov_b32 s43, 0x00020000')
    a('v_mov_b32 v2, 0')
    a('s_mov_b64 exec, 1')
    for i in range(16):
        a(f's_sub_u32 s3, s{70+2*i}, s70')
        a('v_mov_b32 v3, s3')
        a(f'buffer_store_dword v3, v2, s[40:43], 0 offen offset:{4*i}')
        a('s_nop 1')
    a('s_mov_b64 exec, -1')
    a.label(lab)

def R(a,n=1): return f'v{a}' if n==1 else f'v[{a}:{a+n-1}]'
def SR(a): return f's[{a}:{a+3}]'
def srd(a, d, ptr, size):
    a(f's_mov_b32 s{d}, s{ptr}')
    a(f's_mov_b32 s{d+1}, s{ptr+1}')
    a(f's_mov_b32 s{d+2}, {size}')
    a(f's_mov_b32 s{d+3}, 0x00020000')
def pk(op, d, a_, b_, c_=None, bsel=None, csel=None, neg=None):
    ops=[a_,b_]+([c_] if c_ is not None else [])
    n=len(ops)
    txt=[ (f'v[{o}:{o+1}]' if isinstance(o,int) else o) for o in ops]
    hi=[1]*n
    if bsel=='lo': hi[1]=0
    if csel=='lo': hi[2]=0
    s_=f'v_pk_{op}_f32 v[{d}:{d+1}], '+', '.join(txt)
    if hi!=[1]*n: s_+=' op_sel_hi:['+','.join(map(str,hi))+']'
    if neg: s_+=' '+neg
    return s_

pX,pWQ,pWO,pW1,pB1,pW2,pB2,pOUT,pWS = 4,6,8,12,14,16,18,20,22
sWS=28
W_=SR(sWS)

SLOT=28672; XS=16384; WST=12288
W1_SPARE=5*SLOT
SCR=W1_SPARE+WST
L_A=SCR; L_MU=SCR+512; L_CS=SCR+1024; L_CS1=SCR+1536; L_B1=SCR+2048; L_A2=SCR+2560; L_A2M=SCR+3072
L_CNT=SCR+4096
LDS_TOTAL=163840
W1_ADDR=[W1_SPARE, 3*SLOT, 3*SLOT+WST, 4*SLOT, 4*SLOT+WST, 0, WST, SLOT]
A_SLOT=[0,1,2,3,4,0,1,2]
L_RED=0
L_RING=73728
RINGSZ=20480; WD=10; XD=18
L_MX=57344
G2CNT=32; G2TGT=4
L_WO=0
L_OX=65536
L_EX=131072

uid=[0]
def newlab(p):
    uid[0]+=1; return f'{p}_{uid[0]}'

def poll(a, nl, voff, soff, vt):
    PD=POLLD
    lab=newlab('POLL'); done=newlab('POLLD')
    mask=(1<<nl)-1
    a(f's_mov_b32 s66, {mask:#x}')
    a('s_mov_b32 s67, 0')
    a(f's_mov_b32 s68, {SPIN_MAX}')
    a('s_waitcnt vmcnt(0)')
    a('s_mov_b64 exec, s[66:67]')
    for k in range(PD-1):
        a(f'buffer_load_dwordx2 v[{vt+2*k}:{vt+2*k+1}], {voff}, {W_}, {soff} offen sc1')
        if PD>1: a('s_sleep 2')
    a.label(lab)
    for k in range(PD):
        kn=(k+PD-1)%PD
        a(f'buffer_load_dwordx2 v[{vt+2*kn}:{vt+2*kn+1}], {voff}, {W_}, {soff} offen sc1')
        a(f's_waitcnt vmcnt({PD-1})')
        a(f'v_cmp_eq_u64 vcc, s[64:65], v[{vt+2*k}:{vt+2*k+1}]')
        a('s_sub_u32 s68, s68, 1')
        a('s_cmp_eq_u32 s68, 0')
        a(f's_cbranch_scc1 {done}')
        a('s_cmp_eq_u64 vcc, s[66:67]')
        a(f's_cbranch_scc1 {done}')
        a('s_sleep 2')
    a(f's_branch {lab}')
    a.label(done)
    a('s_mov_b64 exec, -1')
    a.vmq=[]

def poll_wg(a, nl, voff, soff, vt, leader, lds_addr):
    oth=newlab('PWO'); done=newlab('PWD')
    va=vt+2*POLLD
    a(f'v_mov_b32 v{va}, {lds_addr}')
    a(f's_cmp_eq_u32 s36, {leader}')
    a(f's_cbranch_scc0 {oth}')
    poll(a, nl, voff, soff, vt)
    a(f'v_mov_b32 v{va+1}, 1')
    a('s_mov_b64 exec, 1')
    a(f'ds_write_b32 v{va}, v{va+1}')
    a('s_mov_b64 exec, -1')
    a('s_waitcnt lgkmcnt(0)')
    a('s_wakeup')
    a(f's_branch {done}')
    a.label(oth)
    lab=newlab('PWL')
    a.label(lab)
    a(f'ds_read_b32 v{va+1}, v{va}')
    a('s_waitcnt lgkmcnt(0)')
    a(f'v_readfirstlane_b32 s66, v{va+1}')
    a('s_nop 0')
    a('s_cmp_eq_u32 s66, 0')
    a(f's_cbranch_scc0 {done}')
    a('s_sleep 8')
    a(f's_branch {lab}')
    a.label(done)
    a.vmq=[]

def signal(a, cnt_addr, last, flag_soff, vt):
    skip=newlab('SIG')
    a(f'v_mov_b32 v{vt}, {cnt_addr}')
    a(f'v_mov_b32 v{vt+1}, 1')
    a('s_mov_b64 exec, 1')
    a(f'ds_add_rtn_u32 v{vt+2}, v{vt}, v{vt+1}')
    a('s_waitcnt lgkmcnt(0)')
    a(f'v_readfirstlane_b32 s66, v{vt+2}')
    a(f'v_mov_b32 v{vt}, s64')
    a(f'v_mov_b32 v{vt+1}, s65')
    a(f'v_mov_b32 v{vt+2}, 0')
    a(f's_cmp_eq_u32 s66, {last}')
    a(f's_cbranch_scc0 {skip}')
    a(f'buffer_store_dwordx2 v[{vt}:{vt+1}], v{vt+2}, {W_}, {flag_soff} offen sc1')
    a.label(skip)
    a('s_mov_b64 exec, -1')

def gbar_arrive(a, vaddr, vone):
    a('s_mov_b64 exec, 1')
    a(f'ds_add_u32 v{vaddr}, v{vone}')
    a('s_mov_b64 exec, -1')
def gbar_wait(a, vaddr, vt, target):
    lab=newlab('GB')
    a.label(lab)
    a(f'ds_read_b32 v{vt}, v{vaddr}')
    a('s_waitcnt lgkmcnt(0)')
    a(f'v_readfirstlane_b32 s3, v{vt}')
    a('s_nop 0')
    a(f's_cmp_ge_u32 s3, {target}')
    a(f's_cbranch_scc0 {lab}')

def gen():
    a=Asm()
    a('s_cmp_ge_u32 s2, 256')
    a('s_cbranch_scc1 K_END')
    stamp(a,0)
    if STAMP and ('dbg' in OPT or 'rt' in OPT or 'span' in OPT): a('s_memrealtime s[82:83]')
    a('s_load_dwordx16 s[4:19], s[0:1], 0')
    a('s_load_dwordx2 s[20:21], s[0:1], 64')
    a('s_load_dwordx2 s[22:23], s[0:1], 80')
    a('v_and_b32 v1, 63, v0')
    a('v_lshrrev_b32 v2, 6, v0')
    a('s_and_b32 s48, s2, 7')
    a('v_readfirstlane_b32 s36, v2')
    a('s_lshr_b32 s49, s2, 3')
    a('s_and_b32 s50, s48, 1')
    a('s_lshr_b32 s51, s48, 1')
    a('s_lshl_b32 s50, s50, 3')
    a('s_and_b32 s52, s49, 7')
    a('s_add_u32 s38, s50, s52')
    a('s_lshl_b32 s51, s51, 2')
    a('s_lshr_b32 s52, s49, 3')
    a('s_add_u32 s39, s51, s52')
    a('s_and_b32 s37, s36, 3')
    a('v_and_b32 v3, 31, v1')
    a('v_lshrrev_b32 v4, 5, v1')
    a('s_cmp_ge_u32 s36, 4')
    a('s_cbranch_scc1 K_G1')
    a('s_getpc_b64 s[62:63]')
    a.label('PF_0')
    a('s_sub_u32 s62, s62, PF_0-K_START')
    a('s_subb_u32 s63, s63, 0')
    a('s_lshr_b32 s60, s2, 3')
    a('s_and_b32 s60, s60, 7')
    a('s_lshl_b32 s60, s60, 2')
    a('s_add_u32 s60, s60, s37')
    a('s_lshl_b32 s60, s60, 10')
    a('v_lshlrev_b32 v9, 4, v1')
    a('v_add_u32 v9, s60, v9')
    a('v_min_u32 v10, K_END-K_START-16, v9')
    a('global_load_dwordx4 v[200:203], v10, s[62:63]')
    a('v_add_u32 v9, 0x8000, v9')
    a('v_min_u32 v10, K_END-K_START-16, v9')
    a('global_load_dwordx4 v[204:207], v10, s[62:63]')
    a('s_branch K_G0')

    def common_lds_addr(e):
        e('v_bfe_u32 v5, v1, 1, 3')
        e('v_xor_b32 v5, v5, v4')
        e('v_lshlrev_b32 v5, 4, v5')
        e('s_lshl_b32 s3, s37, 12')
        e('v_lshlrev_b32 v6, 7, v3')
        e('v_add3_u32 v12, v6, v5, s3')
        e('v_xor_b32 v13, 32, v12')
        e('v_xor_b32 v14, 64, v12')
        e('v_xor_b32 v15, 0x60, v12')
        e('v_lshlrev_b32 v6, 3, v4')
        e('v_bfe_u32 v7, v1, 2, 2')
        e('v_add_u32 v6, v6, v7')
        e('v_mul_u32_u24 v6, 192, v6')
        e('v_bfe_u32 v7, v1, 4, 1')
        e('v_lshlrev_b32 v7, 5, v7')
        e('v_and_b32 v8, 3, v1')
        e('v_lshlrev_b32 v8, 3, v8')
        e('v_add3_u32 v16, v6, v7, v8')

    g=Asm()
    g.label('K_G0')
    accQ,accK,accV=64,80,96
    FS0=[128,144,160,176]
    common_lds_addr(g)
    for r in range(64,112): g(f'v_mov_b32 v{r}, 0')
    g(f'v_add_u32 v17, {XS}, v16')
    g(f's_mov_b32 s56, {(-4*SLOT)&0xffffffff:#x}')
    g(f's_mov_b32 s57, {SLOT}')
    g(f'v_lshlrev_b32 v18, 2, v1')
    g(f'v_add_u32 v18, {L_CNT}, v18')
    g('v_mov_b32 v19, 0')
    g('s_mov_b64 exec, 0xffff')
    g('ds_write_b32 v18, v19')
    g('s_mov_b64 exec, -1')
    g('s_lshl_b32 s48, s37, 7')
    g('v_lshlrev_b32 v20, 2, v3')
    g('v_add_u32 v20, s48, v20')
    g(f'v_add_u32 v20, {L_A}, v20')
    g('v_lshlrev_b32 v23, 4, v4')
    g(f'v_add_u32 v24, {L_CS}, v23')
    g('v_lshlrev_b32 v25, 2, v3')
    g(f'v_add_u32 v25, {L_CS+64*4}, v25')
    g('v_add_u32 v27, s48, v23')
    g(f'v_add_u32 v27, {L_A}, v27')
    g('s_lshl_b32 s49, s38, 2')
    g('s_add_u32 s49, s49, s37')
    g('s_lshl_b32 s50, s49, 10')
    g('s_lshl_b32 s51, s39, 17')
    g('s_add_u32 s50, s50, s51')
    g(f's_add_u32 s52, s50, {WS_K}')
    g(f's_add_u32 s53, s50, {WS_K+65536}')
    g(f's_add_u32 s54, s50, {WS_V}')
    g(f's_add_u32 s51, s50, {WS_Q+65536}')
    g(f's_add_u32 s50, s50, {WS_Q}')
    g('v_lshlrev_b32 v28, 4, v1')
    g('v_and_b32 v29, 0x13, v3')
    g('v_bfe_u32 v30, v3, 2, 1')
    g('v_lshlrev_b32 v30, 3, v30')
    g('v_bfe_u32 v31, v3, 3, 1')
    g('v_lshlrev_b32 v31, 2, v31')
    g('v_or3_b32 v29, v29, v30, v31')
    g('v_lshlrev_b32 v30, 5, v4')
    g('v_add_u32 v29, v29, v30')
    g('v_lshlrev_b32 v29, 4, v29')
    g('v_bfe_u32 v30, v3, 4, 1')
    g('v_lshlrev_b32 v30, 16, v30')
    g('v_lshlrev_b32 v31, 8, v4')
    g('v_and_b32 v32, 15, v3')
    g('v_lshlrev_b32 v32, 4, v32')
    g('v_add3_u32 v30, v30, v31, v32')
    g('s_mul_i32 s55, s39, 1536')
    g('s_lshl_b32 s58, s49, 2')
    g('s_add_u32 s55, s55, s58')
    g(f's_add_u32 s55, s55, {WS_N}')
    g('v_lshlrev_b32 v31, 8, v4')
    g('s_waitcnt lgkmcnt(0)')
    srd(g,sWS,pWS,WS_SIZE)
    g(f's_load_dwordx2 s[64:65], s[{pWS}:{pWS+1}], 0')
    if 'tlb' in OPT:
        g('v_mov_b32 v40, 0')
        g('v_mov_b32 v41, 0')
        g('s_mov_b64 exec, 1')
        for sreg in ('s50','s52','s54'):
            g(f'buffer_store_dword v40, v41, {W_}, {sreg} offen sc1')
        g(f'buffer_store_dword v40, v41, {W_}, s55 offen sc1')
        g('s_mov_b64 exec, -1')
        g('v_lshlrev_b32 v41, 21, v1')
        g(f's_mov_b32 s40, s{pW2}'); g(f's_mov_b32 s41, s{pW2+1}'); g(f's_mov_b32 s42, {1376*512*2}'); g('s_mov_b32 s43, 0x00020000')
        g('buffer_load_dword v208, v41, s[40:43], 0 offen')
        g(f's_mov_b32 s44, s{pWO}'); g(f's_mov_b32 s45, s{pWO+1}'); g(f's_mov_b32 s46, {512*512*2}'); g('s_mov_b32 s47, 0x00020000')
        g('buffer_load_dword v209, v41, s[44:47], 0 offen')
        g(f's_mov_b32 s40, s{pOUT}'); g(f's_mov_b32 s41, s{pOUT+1}'); g(f's_mov_b32 s42, {2048*512*2}')
        g('buffer_load_dword v210, v41, s[40:43], 0 offen')
    def readlist(set_, ks):
        L=[f'ds_read_b128 {R(set_,4)}, v{12+ks}']
        for t in range(3):
            for e in range(2):
                L.append(f'ds_read_b64_tr_b16 {R(set_+4+4*t+2*e,2)}, v17 offset:{ks*3072+e*768+t*64}')
        return L
    def mfmalist(set_):
        return [f'v_mfma_f32_32x32x16_bf16 {R(accQ,16)}, {R(set_+4,4)}, {R(set_,4)}, {R(accQ,16)}',
                f'v_mfma_f32_32x32x16_bf16 {R(accK,16)}, {R(set_+8,4)}, {R(set_,4)}, {R(accK,16)}',
                f'v_mfma_f32_32x32x16_bf16 {R(accV,16)}, {R(set_,4)}, {R(set_+12,4)}, {R(accV,16)}']
    g('s_waitcnt lgkmcnt(0)')
    g('s_add_u32 s64, s64, 0x7f4a7c15')
    g('s_addc_u32 s65, s65, 0x9e3779b9')
    stamp(g,1)
    for st in range(8):
        if st==5: fstamp(g,0)
        g('s_barrier')
        if st==5: fstamp(g,1)
        if st==6: fstamp(g,10)
        if st==0: stamp(g,2)
        for ks in range(4):
            rl=readlist(FS0[ks],ks); ml=mfmalist(FS0[(ks+2)%4])
            if st==5: fstamp(g,2+2*ks)
            if st==0 and ks<2:
                for r_ in rl: g(r_)
                continue
            g('s_waitcnt lgkmcnt(7)')
            if st==5: fstamp(g,3+2*ks)
            g(ml[0]); g(rl[0]); g(rl[1]); g(rl[2])
            g(ml[1]); g(rl[3]); g(rl[4])
            if 'noq' not in OPT: g(ml[2])
            g(rl[5]); g(rl[6])
        if st<7:
            sr='s57' if A_SLOT[st+1]>A_SLOT[st] else 's56'
            for r in (12,13,14,15,17): g(f'v_add_u32 v{r}, {sr}, v{r}')
    g('s_waitcnt lgkmcnt(7)')
    for m in mfmalist(FS0[2]): g(m)
    g('s_waitcnt lgkmcnt(0)')
    for m in mfmalist(FS0[3]): g(m)
    stamp(g,3)
    estamp(g,0)
    g('s_barrier')
    g('s_setprio 3')
    estamp(g,1)
    CSQ=128; CSK=144; AV=160; MV=176
    g('ds_read_b32 v21, v20')
    g(f'ds_read_b32 v22, v20 offset:{L_MU-L_A}')
    for gg in range(4): g(f'ds_read_b128 {R(CSK+4*gg,4)}, v24 offset:{(32+8*gg)*4}')
    g('ds_read_b32 v26, v25')
    for gg in range(4): g(f'ds_read_b128 {R(MV+4*gg,4)}, v27 offset:{8*gg*4+L_MU-L_A}')
    for gg in range(4): g(f'ds_read_b128 {R(AV+4*gg,4)}, v27 offset:{8*gg*4}')
    g('s_waitcnt lgkmcnt(13)')
    g('v_mul_f32 v38, v21, v22')
    g(f'v_mul_f32 v34, {f2u(QSCALE):#x}, v21')
    g('v_sub_f32 v38, 0, v38')
    g(f'v_mul_f32 v36, {f2u(QSCALE):#x}, v38')
    g('s_waitcnt lgkmcnt(9)')
    estamp(g,2)
    for r in range(16): g(f'v_mul_f32 v{CSK+r}, v38, v{CSK+r}')
    for r in range(16): g(f'v_fmac_f32 v{CSK+r}, v21, v{accK+r}')
    for i in range(8): g(f'v_cvt_pk_bf16_f32 v{accK+i}, v{CSK+2*i}, v{CSK+2*i+1}')
    estamp(g,3)
    g(f'buffer_store_dwordx4 {R(accK,4)}, v29, {W_}, s52 offen sc1')
    g(f'buffer_store_dwordx4 {R(accK+4,4)}, v29, {W_}, s53 offen sc1')
    estamp(g,4)
    for gg in range(4): g(f'ds_read_b128 {R(CSQ+4*gg,4)}, v24 offset:{(8*gg)*4}')
    g('s_waitcnt lgkmcnt(8)')
    g('v_sub_f32 v26, 0, v26')
    g('s_waitcnt lgkmcnt(4)')
    for r in range(16): g(f'v_fmac_f32 v{accV+r}, v26, v{MV+r}')
    for r in range(16): g(f'v_mul_f32 v{accV+r}, v{accV+r}, v{AV+r}')
    for i in range(8): g(f'v_cvt_pk_bf16_f32 v{AV+i}, v{accV+2*i}, v{accV+2*i+1}')
    estamp(g,5)
    g(f'buffer_store_dwordx4 {R(AV,4)}, v30, {W_}, s54 offen sc1')
    g(f'buffer_store_dwordx4 {R(AV+4,4)}, v30, {W_}, s54 offen offset:512 sc1')
    g('s_waitcnt lgkmcnt(0)')
    estamp(g,6)
    for r in range(16): g(f'v_mul_f32 v{CSQ+r}, v36, v{CSQ+r}')
    for r in range(16): g(f'v_fmac_f32 v{CSQ+r}, v34, v{accQ+r}')
    for i in range(8): g(f'v_cvt_pk_bf16_f32 v{accQ+i}, v{CSQ+2*i}, v{CSQ+2*i+1}')
    g(f'buffer_store_dwordx4 {R(accQ,4)}, v28, {W_}, s50 offen sc1')
    g(f'buffer_store_dwordx4 {R(accQ+4,4)}, v28, {W_}, s51 offen sc1')
    estamp(g,7)
    for (b,src) in ((42,CSK),(46,CSQ)):
        g(f'v_mul_f32 v{b}, v{src}, v{src}'); g(f'v_mul_f32 v{b+1}, v{src+8}, v{src+8}')
        for i in range(1,8):
            g(f'v_fmac_f32 v{b}, v{src+i}, v{src+i}'); g(f'v_fmac_f32 v{b+1}, v{src+8+i}, v{src+8+i}')
    g(f'v_max3_f32 v38, |v{accV}|, |v{accV+1}|, |v{accV+2}|')
    g('v_max_f32 v34, v42, v43')
    g('v_max_f32 v35, v46, v47')
    for r in range(3,15,2): g(f'v_max3_f32 v38, v38, |v{accV+r}|, |v{accV+r+1}|')
    g(f'v_max_f32 v36, v38, |v{accV+15}|')
    g('s_nop 1')
    for sh in (1,2,4,8):
        for r in (34,35,36): g(f'v_max_f32_dpp v{r}, v{r}, v{r} row_shr:{sh} row_mask:0xf bank_mask:0xf')
    for r in (34,35,36): g(f'v_max_f32_dpp v{r}, v{r}, v{r} row_bcast:15 row_mask:0xa bank_mask:0xf')
    g('s_nop 1')
    estamp(g,8)
    g('s_mov_b32 s66, 0x80000000')
    g('s_mov_b32 s67, 0x80000000')
    g('s_mov_b64 exec, s[66:67]')
    g(f'buffer_store_dword v34, v31, {W_}, s55 offen sc1')
    g(f'buffer_store_dword v35, v31, {W_}, s55 offen offset:512 sc1')
    g(f'buffer_store_dword v36, v31, {W_}, s55 offen offset:1024 sc1')
    g('s_mov_b64 exec, -1')
    stamp(g,4)
    estamp(g,9)
    g('s_setprio 0')
    g('s_waitcnt vmcnt(0)')
    estamp(g,10)
    g('s_lshl_b32 s48, s39, 4')
    g('s_add_u32 s48, s48, s38')
    g('s_lshl_b32 s48, s48, 7')
    g(f's_add_u32 s48, s48, {F_1}')
    signal(g, L_CNT, 3, 's48', 40)
    stamp(g,5)

    h=Asm()
    h.label('K_G1')
    h('s_setprio 2')
    sX,sWQ,sW1,sB1=24,32,40,44
    XF=128
    h('v_lshrrev_b32 v20, 3, v1')
    h('v_and_b32 v21, 7, v1')
    h('v_lshrrev_b32 v22, 4, v1')
    h('v_xor_b32 v21, v21, v22')
    h('v_lshlrev_b32 v20, 10, v20')
    h('v_lshlrev_b32 v22, 4, v21')
    h('v_add_u32 v2, v20, v22')
    h('v_xor_b32 v22, 64, v22')
    h('v_add_u32 v22, 7168, v22')
    h('v_add_u32 v18, v20, v22')
    h('v_add_u32 v19, 14336, v2')
    h('v_add_u32 v20, 14336, v18')
    VX=[2,18,19,20]
    VW=[21,22,23]; VW1=[24,25,26]
    h('s_lshl_b32 s50, s38, 17')
    h('s_lshl_b32 s51, s37, 15')
    h('s_add_u32 s50, s50, s51')
    h('s_lshl_b32 s53, s37, 12')
    h('s_and_b32 s58, s39, 3')
    h('s_lshl_b32 s58, s58, 1')
    h('s_add_u32 s58, s58, s38')
    h('s_and_b32 s58, s58, 7')
    def dmaX(st):
        slot=A_SLOT[st]*SLOT; L=[]
        L.append((f's_add_u32 s61, s58, {st}',None))
        L.append(('s_and_b32 s61, s61, 7',None))
        L.append((f's_add_u32 m0, s53, {slot}',None))
        L.append(('s_lshl_b32 s55, s61, 7',None))
        L.append(('s_add_u32 s55, s55, s50',None))
        for i in range(4):
            L.append((f'buffer_load_dwordx4 v{VX[i]}, {SR(sX)}, s55 offen offset:{1024*i} lds',f'A{st}'))
        return L
    def emit(e, dmas):
        for (ins,tag) in dmas:
            if tag: e.vm(tag,ins)
            else: e(ins)
    h('s_waitcnt lgkmcnt(0)')
    srd(h,sX,pX,2048*512*2)
    emit(h,dmaX(0))
    for p in range(3):
        h(f'v_add_u32 v27, {64*p}, v1')
        h('v_mul_u32_u24 v28, 43691, v27')
        h('v_lshrrev_b32 v28, 19, v28')
        h('v_mul_u32_u24 v29, 12, v28')
        h('v_sub_u32 v29, v27, v29')
        h('v_lshrrev_b32 v30, 2, v29')
        h('v_lshlrev_b32 v30, 10, v30')
        h('v_and_b32 v31, 3, v29')
        h('v_lshlrev_b32 v31, 4, v31')
        h('v_mul_u32_u24 v32, 3072, v28')
        h(f'v_add3_u32 v{VW[p]}, v32, v30, v31')
        if p: h(f'v_subrev_u32 v{VW[p]}, {1024*p}, v{VW[p]}')
        h(f'v_mov_b32 v{33+2*p}, v28')
        h(f'v_mov_b32 v{34+2*p}, v29')
    h('s_mul_i32 s51, s37, 49152')
    h('s_lshl_b32 s52, s39, 6')
    h('s_add_u32 s51, s51, s52')
    h('s_mul_i32 s54, s37, 3072')
    srd(h,sWQ,pWQ,512*1536*2)
    def dmaW(st):
        slot=A_SLOT[st]*SLOT; L=[]
        L.append((f's_add_u32 s61, s58, {st}',None))
        L.append(('s_and_b32 s61, s61, 7',None))
        L.append((f's_add_u32 m0, s54, {slot+XS}',None))
        L.append((f's_mul_i32 s55, s61, {64*3072}',None))
        L.append(('s_add_u32 s55, s55, s51',None))
        for p in range(3):
            L.append((f'buffer_load_dwordx4 v{VW[p]}, {SR(sWQ)}, s55 offen offset:{1024*p} lds',f'A{st}'))
        return L
    emit(h,dmaW(0))
    for p in range(3):
        h(f'v_mul_u32_u24 v32, 2752, v{33+2*p}')
        h(f'v_lshlrev_b32 v31, 4, v{34+2*p}')
        h(f'v_add_u32 v{VW1[p]}, v32, v31')
        if p: h(f'v_subrev_u32 v{VW1[p]}, {1024*p}, v{VW1[p]}')
    h('s_mul_i32 s52, s39, 3')
    h('s_lshl_b32 s56, s39, 1')
    h('s_add_u32 s56, s56, 11')
    h('s_cmp_lt_u32 s39, 11')
    h('s_cselect_b32 s48, s52, s56')
    h('s_cselect_b32 s49, 3, 2')
    h('s_mul_i32 s52, s37, 44032')
    h('s_lshl_b32 s56, s48, 6')
    h('s_add_u32 s52, s52, s56')
    def dmaA(st): return dmaX(st)+dmaW(st)
    def dmaB(st):
        L=[]
        L.append((f's_add_u32 s61, s58, {st}',None))
        L.append(('s_and_b32 s61, s61, 7',None))
        L.append((f's_add_u32 m0, s54, {W1_ADDR[st]}',None))
        L.append((f's_mul_i32 s55, s61, {64*2752}',None))
        L.append(('s_add_u32 s55, s55, s52',None))
        for p in range(3):
            L.append((f'buffer_load_dwordx4 v{VW1[p]}, {SR(sW1)}, s55 offen offset:{1024*p} lds',f'B{st}'))
        return L
    stamp(h,1)
    NINIT=3
    for o_ in OPT:
        if o_.startswith('NI='): NINIT=int(o_[3:])
    for st in range(1,NINIT): emit(h,dmaA(st))
    stamp(h,2)
    srd(h,sW1,pW1,512*1376*2); srd(h,sWS,pWS,WS_SIZE); srd(h,sB1,pB1,1376*2)
    h(f's_load_dwordx2 s[64:65], s[{pWS}:{pWS+1}], 0')
    common_lds_addr(h)
    h('v_lshlrev_b32 v27, 2, v1')
    h.vm('b1', f'buffer_load_dword v31, v27, {SR(sB1)}, s56 offen')
    h('s_cmp_eq_u32 s37, 3')
    h('s_cselect_b32 s57, 0, s37')
    h('s_lshl_b32 s3, s57, 6')
    h(f's_add_u32 s3, s3, {XS}')
    h('v_add_u32 v17, s3, v16')
    PAT=112; ONES=8; SUMA=[116,120]; GRA=[124,104]; CSA=108
    h('v_and_b32 v27, 15, v1')
    h('v_bfe_u32 v28, v1, 4, 1')
    h('v_cmp_eq_u32 vcc, v27, v28')
    h('v_mov_b32 v29, 0x3f803f80')
    h('s_nop 0')
    h(f'v_cndmask_b32 v{PAT}, 0, v29, vcc')
    for r in range(1,4): h(f'v_mov_b32 v{PAT+r}, v{PAT}')
    for r in range(4): h(f'v_mov_b32 v{ONES+r}, v29')
    SIDX=99; SPA=100
    h('v_and_b32 v30, 1, v1')
    h('v_cmp_eq_u32 vcc, 1, v30')
    h('v_mov_b32 v30, 0x44444444')
    h('v_mov_b32 v32, 0xeeeeeeee')
    h(f'v_cndmask_b32 v{SIDX}, v30, v32, vcc')
    h('v_and_b32 v30, 14, v1')
    h('v_cmp_eq_u32 vcc, 0, v30')
    h('v_cmp_eq_u32 s[66:67], 2, v30')
    h('s_nop 0')
    h(f'v_cndmask_b32 v{SPA}, 0, v29, vcc')
    h(f'v_cndmask_b32 v{SPA+2}, 0, v29, s[66:67]')
    h(f'v_mov_b32 v{SPA+1}, v{SPA}')
    h(f'v_mov_b32 v{SPA+3}, v{SPA+2}')
    for b in SUMA+GRA+[CSA]:
        for r in range(4): h(f'v_mov_b32 v{b+r}, 0')
    h('v_lshrrev_b32 v28, 4, v1')
    h('v_bfe_u32 v29, v1, 1, 3')
    h('v_xor_b32 v28, v28, v29')
    h('v_lshlrev_b32 v28, 4, v28')
    h('v_lshlrev_b32 v27, 7, v27')
    h('s_lshl_b32 s3, s37, 12')
    h('v_add3_u32 v5, v27, v28, s3')
    h('v_xor_b32 v6, 64, v5')
    TMP=40; XS16=56
    h('v_and_b32 v27, 3, v1')
    h('v_cmp_eq_u32 s[66:67], 1, v27')
    h('v_cmp_eq_u32 s[68:69], 2, v27')
    h('v_cmp_eq_u32 s[44:45], 3, v27')
    h('s_mov_b32 s46, 0x00f0000f')
    h('s_mov_b32 s47, 0xf0000f00')
    h('v_and_b32 v28, 15, v1')
    h('v_lshlrev_b32 v28, 2, v28')
    h('s_lshl_b32 s3, s37, 7')
    h('v_add_u32 v28, s3, v28')
    h(f'v_add_u32 v28, {L_A}, v28')
    h('v_lshlrev_b32 v29, 2, v1')
    h('s_lshl_b32 s55, s57, 7')
    h(f's_add_u32 s55, s55, {L_CS}')
    h('v_add_u32 v29, s55, v29')
    h('s_waitcnt lgkmcnt(0)')
    h('s_add_u32 s64, s64, 0x7f4a7c15')
    h('s_addc_u32 s65, s65, 0x9e3779b9')
    h(f's_mov_b32 s59, {SLOT}')
    h(f's_mov_b32 s60, {(-4*SLOT)&0xffffffff:#x}')
    if NINIT==3: sched={0:dmaA(3)+dmaA(4), 1:dmaB(0), 2:dmaA(5), 3:dmaA(6), 4:dmaA(7), 5:dmaB(1)+dmaB(2), 6:dmaB(3)+dmaB(4), 7:[]}
    elif NINIT==2: sched={0:dmaA(2)+dmaA(3), 1:dmaA(4)+dmaB(0), 2:dmaA(5), 3:dmaA(6), 4:dmaA(7), 5:dmaB(1)+dmaB(2), 6:dmaB(3)+dmaB(4), 7:[]}
    else: sched={0:dmaA(1)+dmaA(2), 1:dmaA(3)+dmaA(4), 2:dmaA(5)+dmaB(0), 3:dmaA(6), 4:dmaA(7), 5:dmaB(1)+dmaB(2), 6:dmaB(3)+dmaB(4), 7:[]}
    for st in range(8):
        if st==5: fstamp(h,0)
        h.wait_vm(f'A{st}')
        if st==5: fstamp(h,1)
        h('s_barrier')
        if st==5: fstamp(h,2)
        if st==0: stamp(h,3)
        dm=sched[st]
        for u in range(2):
            for kk in range(2):
                h(f'ds_read_b128 {R(XS16+8*u+4*kk,4)}, v{5+kk} offset:{2048*u}')
        for ks in range(4):
            for e in range(2):
                h(f'ds_read_b64_tr_b16 {R(TMP+4*ks+2*e,2)}, v17 offset:{ks*3072+e*768}')
        if st==5: fstamp(h,3)
        k=0; nv=0
        while nv<2 and k<len(dm):
            if dm[k][1]: h.vm(dm[k][1],dm[k][0]); nv+=1
            else: h(dm[k][0])
            k+=1
        val=[]
        for u in range(2):
            val.append(f'v_smfmac_f32_16x16x64_bf16 {R(SUMA[u],4)}, {R(ONES,4)}, {R(XS16+8*u,8)}, v{SIDX}')
            for kk in range(2):
                x=XS16+8*u+4*kk
                val.append(f'ds_read_b128 {R(XF+16*st+4*(2*u+kk),4)}, v{12+2*u+kk}')
                val.append(f'v_mfma_f32_16x16x32_bf16 {R(GRA[u],4)}, {R(x,4)}, {R(x,4)}, {R(GRA[u],4)}')
        val.append('s_waitcnt lgkmcnt(4)')
        for p_ in range(2):
            val.append(f'v_smfmac_f32_16x16x64_bf16 {R(CSA,4)}, {R(SPA,4)}, {R(TMP+8*p_,8)}, v{SIDX}')
        if st<7:
            d=(A_SLOT[st+1]-A_SLOT[st])*SLOT
            sr='s59' if d==SLOT else 's60'
            for r in (12,13,14,15,17,5,6): val.append(f'v_add_u32 v{r}, {sr}, v{r}')
        if st==5: fstamp(h,4)
        h('s_waitcnt lgkmcnt(8)')
        if st==5: fstamp(h,5)
        rest=dm[k:]; vi=0; fs_=6
        for (ins,tag) in rest:
            if tag:
                for _ in range(2):
                    if vi<len(val): h(val[vi]); vi+=1
                h.vm(tag,ins)
                if st==5: fstamp(h,fs_); fs_+=1
            else: h(ins)
        while vi<len(val):
            h(val[vi]); vi+=1
            if st==5 and val[vi-1].startswith('s_waitcnt'): fstamp(h,fs_); fs_+=1
        if st==5: fstamp(h,fs_); fs_+=1
        if st==6: fstamp(h,15)
    h('s_waitcnt lgkmcnt(0)')
    h('s_nop 1')
    for u in range(2):
        gr=GRA[u]; q=32+2*u
        h(f'v_cndmask_b32 v{q}, v{gr}, v{gr+1}, s[66:67]')
        h(f'v_cndmask_b32 v{q}, v{q}, v{gr+2}, s[68:69]')
        h(f'v_cndmask_b32 v{q}, v{q}, v{gr+3}, s[44:45]')
    for u in range(2):
        q=32+2*u; m=SUMA[u]
        h(f'v_add_f32 v{m}, v{m}, v{m+1}')
        h(f'v_mul_f32 v{q}, {f2u(1/512):#x}, v{q}')
        h(f'v_mul_f32 v{m}, {f2u(1/512):#x}, v{m}')
    h(f'v_add_f32 v{CSA}, v{CSA}, v{CSA+1}')
    h(f'v_add_f32 v{CSA+2}, v{CSA+2}, v{CSA+3}')
    for u in range(2):
        q=32+2*u; m=SUMA[u]
        h(f'v_fma_f32 v{q}, -v{m}, v{m}, v{q}')
        h(f'v_max_f32 v{q}, 0, v{q}')
        h(f'v_add_f32 v{q+1}, {f2u(1e-5):#x}, v{q}')
    h('s_mov_b64 exec, 0xffff')
    h(f'ds_write_b32 v29, v{CSA}')
    h(f'ds_write_b32 v29, v{CSA+2} offset:64')
    h('s_mov_b64 exec, -1')
    for u in range(2):
        q=32+2*u
        h(f'v_rsq_f32 v{q+1}, v{q+1}')
    h('s_mov_b64 exec, s[46:47]')
    for u in range(2):
        q=32+2*u; m=SUMA[u]
        h(f'ds_write_b32 v28, v{m} offset:{64*u+L_MU-L_A}')
        h(f'ds_write_b32 v28, v{q+1} offset:{64*u}')
    h('s_mov_b64 exec, -1')
    h('s_waitcnt lgkmcnt(0)')
    stamp(h,4)
    h('s_barrier')
    emit(h,dmaB(5)+dmaB(6)+dmaB(7))
    for u in range(2):
        q=32+2*u; m=SUMA[u]
        h(f'v_mul_f32 v{m+1}, v{q+1}, v{q+1}')
        h(f'v_mul_f32 v{m+1}, v{m+1}, v{q}')
        h(f'v_add_f32 v{m+1}, {f2u(1e-5):#x}, v{m+1}')
    for u in range(2):
        m=SUMA[u]
        h(f'v_rsq_f32 v{m+1}, v{m+1}')
    h('s_lshl_b32 s3, s37, 7')
    h('v_lshlrev_b32 v27, 2, v3')
    for u in range(2):
        q=32+2*u; m=SUMA[u]
        h(f'v_mul_f32 v{m+2}, v{m+1}, v{q+1}')
        h(f'v_mul_f32 v{m+3}, v{m+2}, v{m}')
    h('s_mov_b64 exec, s[46:47]')
    for u in range(2):
        m=SUMA[u]
        h(f'ds_write_b32 v28, v{m+2} offset:{64*u+L_A2-L_A}')
        h(f'ds_write_b32 v28, v{m+3} offset:{64*u+L_A2M-L_A}')
    h('s_mov_b64 exec, -1')
    h('v_add_u32 v28, s3, v27')
    h(f'v_add_u32 v28, {L_A2}, v28')
    h('s_waitcnt lgkmcnt(0)')
    h('ds_read_b32 v38, v28')
    h(f'ds_read_b32 v30, v28 offset:{L_A2M-L_A2}')
    h('v_lshlrev_b32 v34, 16, v31')
    h('v_and_b32 v35, 0xffff0000, v31')
    h('v_lshlrev_b32 v28, 3, v1')
    h(f'v_add_u32 v28, {L_B1}, v28')
    h('v_cmp_gt_u32 vcc, 48, v1')
    h('s_and_saveexec_b64 s[66:67], vcc')
    h('ds_write_b64 v28, v[34:35]')
    h('s_mov_b64 exec, s[66:67]')
    h('s_mov_b32 s62, 0x00030003')
    h('s_mov_b32 s63, 0x00030003')
    ACC=[64,80,96]
    TS=[57,59,60]
    for sl in range(3):
        h(f's_add_u32 s3, s37, {sl}')
        h('s_cmp_ge_u32 s3, 3')
        h('s_cselect_b32 s55, 3, 0')
        h('s_sub_u32 s3, s3, s55')
        h('s_cmp_ge_u32 s3, 3')
        h('s_cselect_b32 s55, 3, 0')
        h('s_sub_u32 s3, s3, s55')
        h(f's_mov_b32 s{TS[sl]}, s3')
    SPB=8; SIB=5; CS1A=124
    for r in range(4): h(f'v_mov_b32 v{SPB+r}, v{SPA+r}')
    h(f'v_mov_b32 v{SIB}, v{SIDX}')
    for r in range(4): h(f'v_mov_b32 v{CS1A+r}, 0')
    for r in range(64,112): h(f'v_mov_b32 v{r}, 0')
    h(f's_lshl_b32 s3, s{TS[0]}, 6')
    h('v_add_u32 v12, s3, v16')
    h('v_add_u32 v13, 86016, v12')
    h('v_add_u32 v14, 126976, v12')
    def waddr(n,e):
        st,ks=divmod(n,4); base=W1_ADDR[st]
        if base<65536-12288: reg,rel=12,base
        elif base<126976: reg,rel=13,base-86016
        else: reg,rel=14,base-126976
        return reg, rel+ks*3072+e*768
    FSET=[40,44,48,52]
    C1=-2*1.4426950408889634*0.7978845608028654
    C2=C1*0.044715
    h(f's_mov_b32 s66, {f2u(C2):#x}')
    h(f'v_mov_b32 v32, {f2u(C1):#x}')
    h('v_lshlrev_b32 v23, 4, v4')
    h('v_lshlrev_b32 v15, 4, v1')
    h('s_lshl_b32 s53, s38, 2')
    h('s_add_u32 s53, s53, s37')
    h('s_mul_i32 s53, s53, 86')
    SO=[67,68,69]
    CA=[33,34,35]
    for sl in range(3):
        h(f's_add_u32 s54, s48, s{TS[sl]}')
        h('s_lshl_b32 s54, s54, 1')
        h('s_add_u32 s54, s54, s53')
        h('s_lshl_b32 s54, s54, 10')
        h(f's_add_u32 s54, s54, {WS_H}')
        h(f's_cmp_ge_u32 s{TS[sl]}, s49')
        h(f's_cselect_b32 s{SO[sl]}, 0x7ff00000, s54')
        h(f's_lshl_b32 s3, s{TS[sl]}, 7')
        h(f'v_add_u32 v{CA[sl]}, s3, v23')
        h(f'v_add_u32 v{CA[sl]}, {L_CS1}, v{CA[sl]}')
    h('v_lshlrev_b32 v29, 2, v1')
    h(f's_lshl_b32 s55, s{TS[0]}, 7')
    h(f's_add_u32 s55, s55, {L_CS1}')
    h('v_add_u32 v29, s55, v29')
    h(f'v_mov_b32 v17, {L_CNT+12}')
    h('v_mov_b32 v7, 1')
    h.wait_vm(['B0','B1'])
    h('s_waitcnt lgkmcnt(0)')
    gbar_arrive(h, 17, 7)
    gbar_wait(h, 17, 6, 4)
    h.lgq=[]
    bar={8:(['B2','B3','B4'],8), 20:(['B5','B6','B7'],12)}
    NM=96
    def wreads(m):
        sl,n=divmod(m,32); fs=FSET[m%4]
        if n==0 and sl>0:
            h(f's_sub_u32 s3, s{TS[sl]}, s{TS[sl-1]}')
            h('s_lshl_b32 s3, s3, 6')
            for rg in (12,13,14): h(f'v_add_u32 v{rg}, s3, v{rg}')
        if sl==0 and n in bar:
            gbar_wait(h, 17, 6, bar[n][1]); h.lgq=[]
        for e in range(2):
            reg,off=waddr(n,e)
            h.lg(f'W{m}', f'ds_read_b64_tr_b16 {R(fs+2*e,2)}, v{reg} offset:{off}')
    TCS=[112,56]; TB1=[120,18]
    def ureads(sl,hf,k):
        cs=TCS[k%2]; b1=TB1[k%2]; q=[]
        for gg in range(2):
            q.append((4,'lg',(f'G{sl}{hf}', f'ds_read_b128 {R(cs+4*gg,4)}, v{CA[sl]} offset:{(16*hf+8*gg)*4}'),0))
            q.append((4,'lg',(f'G{sl}{hf}', f'ds_read_b128 {R(b1+4*gg,4)}, v{CA[sl]} offset:{(16*hf+8*gg)*4+L_B1-L_CS1}'),0))
        return q
    def ucomp(sl,hf,k,mmin):
        cs=TCS[k%2]; b1=TB1[k%2]; acc=ACC[sl]+8*hf; q=[]
        q.append((0,'wait',f'G{sl}{hf}',mmin))
        for r in range(8): q.append((4,'i',f'v_fma_f32 v{b1+r}, -v{cs+r}, v30, v{b1+r}',mmin))
        for r in range(8): q.append((4,'i',f'v_fma_f32 v{acc+r}, v{acc+r}, v38, v{b1+r}',mmin))
        for r in range(8): q.append((4,'i',f'v_mul_f32 v{cs+r}, v{acc+r}, v{acc+r}',mmin))
        for r in range(8): q.append((4,'i',f'v_fma_f32 v{cs+r}, v{cs+r}, s66, v32',mmin))
        for r in range(8): q.append((4,'i',f'v_mul_f32 v{cs+r}, v{cs+r}, v{acc+r}',mmin))
        for r in range(8): q.append((8,'i',f'v_exp_f32 v{cs+r}, v{cs+r}',mmin))
        for r in range(8): q.append((4,'i',f'v_add_f32 v{cs+r}, 1.0, v{cs+r}',mmin))
        for r in range(8): q.append((8,'i',f'v_rcp_f32 v{cs+r}, v{cs+r}',mmin))
        for r in range(8): q.append((4,'i',f'v_mul_f32 v{acc+r}, v{acc+r}, v{cs+r}',mmin))
        for i in range(4): q.append((4,'i',f'v_cvt_pk_bf16_f32 v{b1+i}, v{acc+2*i}, v{acc+2*i+1}',mmin))
        q.append((4,'i',f'buffer_store_dwordx4 {R(b1,4)}, v15, {W_}, s{SO[sl]} offen offset:{1024*hf} sc1',mmin))
        q.append((0,'i','s_nop 1',mmin))
        return q
    queue=[]
    def drain(budget, m):
        while queue and budget>0 and queue[0][3]<=m:
            c,kind,p,_=queue.pop(0)
            if kind=='lg': h.lg(p[0],p[1])
            elif kind=='wait': h.wait_lg(p)
            elif kind=='gbar': gbar_wait(h, 17, 6, p); h.lgq=[]
            else: h(p)
            budget-=c
    for m in range(3): wreads(m)
    uk=0
    for m in range(NM):
        sl,n=divmod(m,32)
        if sl==0 and (n+4) in bar:
            h.wait_vm(bar[n+4][0]); gbar_arrive(h, 17, 7); h.lgq.append('CNT')
        h.wait_lg(f'W{m}')
        fs=FSET[m%4]
        h(f'v_mfma_f32_32x32x16_bf16 {R(ACC[sl],16)}, {R(fs,4)}, {R(XF+4*n,4)}, {R(ACC[sl],16)}')
        if sl==0 and n%2==1:
            h(f'v_smfmac_f32_16x16x64_bf16 {R(CS1A,4)}, {R(SPB,4)}, {R(FSET[(m-1)%4],8)}, v{SIB}')
        if m+3<NM: wreads(m+3)
        if m==33:
            h('s_nop 3')
            h(f'v_add_f32 v{CS1A}, v{CS1A}, v{CS1A+1}')
            h(f'v_add_f32 v{CS1A+2}, v{CS1A+2}, v{CS1A+3}')
            h('s_mov_b64 exec, 0xffff')
            h.lg('CSW', f'ds_write_b32 v29, v{CS1A}')
            h.lg('CSW', f'ds_write_b32 v29, v{CS1A+2} offset:64')
            h('s_mov_b64 exec, -1')
            h.wait_lg('CSW')
            gbar_arrive(h, 17, 7); h.lgq.append('CNT')
            stamp(h,5)
            queue+=ureads(0,0,0)+ureads(0,1,1)+ucomp(0,0,0,35)
            queue+=[(0,'gbar',16,0)]+ureads(1,0,2)+ucomp(0,1,1,35)
            queue+=ureads(1,1,3)+ucomp(1,0,2,66)
            queue+=ureads(2,0,4)+ucomp(1,1,3,66)
            queue+=ureads(2,1,5)+ucomp(2,0,4,99)+ucomp(2,1,5,99)
        if m>=33: drain(16, m)
    gbar_arrive(h, 17, 7); h.lgq.append('CNT')
    h('s_nop 7')
    drain(1<<30, 1000)
    stamp(h,6)
    h('s_waitcnt vmcnt(0)')
    h.vmq=[]
    h('s_lshl_b32 s48, s38, 4')
    h('s_add_u32 s48, s48, s39')
    h('s_lshl_b32 s48, s48, 7')
    h(f's_add_u32 s48, s48, {F_2}')
    signal(h, L_CNT+4, 3, 's48', 40)

    h('s_setprio 2' if 'g2hi' in OPT else 's_setprio 0')
    h('s_and_b32 s52, s2, 7')
    h('s_lshr_b32 s53, s2, 3')
    h('s_and_b32 s54, s53, 3')
    h('s_lshl_b32 s52, s52, 2')
    h('s_add_u32 s58, s52, s54')
    h('s_lshr_b32 s59, s53, 2')
    h('v_lshlrev_b32 v5, 4, v1')
    h('v_lshlrev_b32 v8, 7, v1')
    sWw=24
    h('s_lshr_b32 s52, s2, 3')
    h('s_lshl_b32 s52, s52, 2')
    h('s_add_u32 s52, s52, s37')
    h('s_lshl_b32 s52, s52, 14')
    h(f's_cmp_ge_u32 s52, {1376*1024}')
    h(f's_cselect_b32 s{sWw}, s{pWO}, s{pW2}')
    h(f's_cselect_b32 s{sWw+1}, s{pWO+1}, s{pW2+1}')
    h(f's_cselect_b32 s53, {1376*1024}, 0')
    h('s_sub_u32 s52, s52, s53')
    h('s_cmp_eq_u32 s53, 0')
    h(f's_mov_b32 s26, {512*512*2}')
    h(f's_cselect_b32 s26, {1376*512*2}, s26')
    h(f's_mov_b32 s{sWw+3}, 0x00020000')
    for k in range(0 if 'nowarm' in OPT else 16):
        h(f'buffer_load_dwordx4 v[40:43], v5, {SR(sWw)}, s52 offen offset:{1024*(k%4)}')
        if k%4==3: h('s_add_u32 s52, s52, 4096')
    sW2=24
    h('s_lshr_b32 s52, s58, 1')
    h('s_lshl_b32 s52, s52, 11')
    h(f's_add_u32 s52, s52, {F_2}')
    stamp(h,7)
    poll_wg(h, 16, 'v8', 's52', 26, 4, L_CNT+20)
    stamp(h,8)
    srd(h,sW2,pW2,1376*512*2)
    h('s_sub_u32 s60, s36, 4')
    h('s_mul_i32 s61, s60, 22')
    h('s_cmp_eq_u32 s60, 3')
    h('s_cselect_b32 s52, 1, 0')
    h('s_sub_u32 s61, s61, s52')
    h('s_cmp_lt_u32 s60, 2')
    h('s_cselect_b32 s62, 22, 21')
    h('s_lshl_b32 s63, s59, 1')
    h('s_and_b32 s52, s58, 3')
    h('s_add_u32 s63, s63, s52')
    h('s_sub_u32 s57, s62, s63')
    h('s_add_u32 s61, s61, s63')
    h('s_lshl_b32 s52, s58, 1')
    h('s_mul_i32 s52, s52, 86')
    h('s_add_u32 s52, s52, s61')
    h('s_lshl_b32 s52, s52, 10')
    h(f's_add_u32 s52, s52, {WS_H}')
    h('s_lshl_b32 s54, s61, 14')
    h('s_lshl_b32 s55, s59, 7')
    h('s_add_u32 s54, s54, s55')
    h('s_lshl_b32 s56, s62, 10')
    h('s_lshl_b32 s53, s62, 14')
    h('s_mov_b32 s50, s57')
    h(f's_mul_i32 s55, s60, {RINGSZ}')
    h(f's_add_u32 s55, s55, {L_RING}')
    def wdma_voff(e):
        e('v_lshrrev_b32 v10, 3, v1')
        e('v_lshlrev_b32 v10, 10, v10')
        e('v_and_b32 v11, 7, v1')
        e('v_bfe_u32 v12, v1, 4, 1')
        e('v_lshlrev_b32 v12, 2, v12')
        e('v_xor_b32 v11, v11, v12')
        e('v_lshlrev_b32 v11, 4, v11')
        e('v_add_u32 v10, v10, v11')
        e('v_add_u32 v11, 7168, v10')
    wdma_voff(h)
    h(f'v_add_u32 v17, {86*1024}, v5')
    def tr_addr(e, dst, base_s):
        e('v_bfe_u32 v13, v1, 2, 2')
        e('v_lshlrev_b32 v14, 2, v4')
        e('v_add_u32 v14, v14, v13')
        e('v_lshlrev_b32 v14, 7, v14')
        e('v_bfe_u32 v15, v1, 4, 1')
        e('v_lshlrev_b32 v15, 1, v15')
        e('v_and_b32 v16, 1, v1')
        e('v_add_u32 v15, v15, v16')
        e('v_lshrrev_b32 v13, 1, v13')
        e('v_lshlrev_b32 v13, 2, v13')
        e('v_xor_b32 v15, v15, v13')
        e('v_lshlrev_b32 v15, 4, v15')
        e('v_bfe_u32 v16, v1, 1, 1')
        e('v_lshlrev_b32 v16, 3, v16')
        e('v_add3_u32 v14, v14, v15, v16')
        e(f'v_add_u32 v{dst}, {base_s}, v14')
        e(f'v_xor_b32 v{dst+1}, 64, v{dst}')
    tr_addr(h, 18, 's55')
    def tail_prep(e):
        e('s_and_b32 s37, s36, 1')
        e('s_bfe_u32 s38, s36, 0x10001')
        e('s_lshr_b32 s39, s36, 2')
        srd(e,32,pOUT,2048*512*2)
        e('s_lshl_b32 s3, s58, 6')
        e('s_lshl_b32 s42, s37, 5')
        e('s_add_u32 s3, s3, s42')
        e('v_add_u32 v20, s3, v3')
        e('v_lshlrev_b32 v20, 10, v20')
        e('s_lshl_b32 s3, s59, 6')
        e('s_lshl_b32 s42, s38, 5')
        e('s_add_u32 s3, s3, s42')
        e('s_lshl_b32 s42, s39, 4')
        e('s_add_u32 s3, s3, s42')
        e('v_lshlrev_b32 v21, 3, v4')
        e('v_add_u32 v21, s3, v21')
        e('v_lshlrev_b32 v21, 1, v21')
        e('v_add_u32 v20, v20, v21')
        srd(e,44,pX,2048*512*2)
        e(f'buffer_load_dwordx4 v[24:27], v20, {SR(44)}, 0 offen')
        srd(e,44,pB2,512*2)
        e(f'buffer_load_dwordx4 v[28:31], v21, {SR(44)}, 0 offen')
        e('s_lshl_b32 s3, s39, 15')
        e(f's_add_u32 s3, s3, {L_WO}')
        tr_addr(e, 21, 's3')
        e('s_lshl_b32 s3, s38, 6')
        e('v_xor_b32 v21, s3, v21')
        e('s_lshl_b32 s3, s37, 15')
        e('s_lshl_b32 s42, s39, 14')
        e('s_add_u32 s3, s3, s42')
        e(f's_add_u32 s3, s3, {L_OX}')
        e('v_add_u32 v22, s3, v5')
        e('s_lshl_b32 s3, s38, 4')
        e('s_lshl_b32 s42, s39, 1')
        e('s_add_u32 s3, s3, s42')
        e('s_lshl_b32 s40, s58, 1')
        e('s_add_u32 s40, s40, s37')
        e('s_lshl_b32 s40, s40, 5')
        e('s_add_u32 s40, s40, s3')
        e('s_lshl_b32 s40, s40, 10')
        e(f's_add_u32 s40, s40, {WS_O}')
        e('s_lshl_b32 s41, s37, 5')
        e('s_add_u32 s41, s41, s3')
        e('s_lshl_b32 s41, s41, 10')
        e(f's_add_u32 s41, s41, {L_OX}')
        e('s_and_b32 s3, s36, 3')
        e('s_lshl_b32 s3, s3, 12')
        e(f's_add_u32 s3, s3, {L_EX}')
        e('s_lshl_b32 s42, s39, 11')
        e('s_add_u32 s43, s3, s42')
        e('v_add_u32 v23, s43, v5')
        e('s_xor_b32 s42, s42, 2048')
        e('s_add_u32 s43, s3, s42')
        e('v_add_u32 v6, s43, v5')
        e('s_lshr_b32 s42, s58, 2')
        e('s_lshl_b32 s42, s42, 12')
        e(f's_add_u32 s42, s42, {F_3}')
        e('s_waitcnt vmcnt(0)')
        for i in range(4):
            e(f'v_lshlrev_b32 v{40+2*i}, 16, v{24+i}')
            e(f'v_and_b32 v{41+2*i}, 0xffff0000, v{24+i}')
        for i in range(4):
            e(f'v_lshlrev_b32 v{24}, 16, v{28+i}')
            e(f'v_and_b32 v{25}, 0xffff0000, v{28+i}')
            e(f'v_add_f32 v{40+2*i}, v{40+2*i}, v24')
            e(f'v_add_f32 v{41+2*i}, v{41+2*i}, v25')
        e.vmq=[]
    GA=[[192,208],[224,240]]
    XR=[48+8*i for i in range(XD)]
    WB=[24,32]
    def x_issue(i):
        b=XR[i%XD]
        h.vm(f'X{i}', f'buffer_load_dwordx4 {R(b,4)}, v5, {W_}, s52 offen sc1')
        h.vm(f'X{i}', f'buffer_load_dwordx4 {R(b+4,4)}, v17, {W_}, s52 offen sc1')
        h('s_add_u32 s52, s52, 1024')
        h('s_sub_u32 s57, s57, 1')
        h('s_cmp_eq_u32 s57, 0')
        h('s_cselect_b32 s63, s56, 0')
        h('s_sub_u32 s52, s52, s63')
    def w_issue(i):
        h(f's_add_u32 m0, s55, {(i%WD)*2048}')
        h('s_sub_u32 s50, s50, 1')
        h.vm(f'W{i}', f'buffer_load_dwordx4 v10, {SR(sW2)}, s54 offen lds')
        h.vm(f'W{i}', f'buffer_load_dwordx4 v11, {SR(sW2)}, s54 offen offset:1024 lds')
        h('s_add_u32 s54, s54, 16384')
        h('s_cmp_eq_u32 s50, 0')
        h('s_cselect_b32 s63, s53, 0')
        h('s_sub_u32 s54, s54, s63')
    def g2_wread(i):
        for ct in range(2):
            for e in range(2):
                h(f'ds_read_b64_tr_b16 {R(WB[i%2]+4*ct+2*e,2)}, v{18+ct} offset:{(i%WD)*2048+e*1024}')
    if 'nog2' in OPT: h('s_branch K_G2_DONE')
    h.vmq=[]
    THR=6
    for o_ in OPT:
        if o_.startswith('THR='): THR=int(o_[4:])
    for i in range(XD):
        if i<WD: w_issue(i)
        x_issue(i)
        if THR<63 and len(h.vmq)>THR:
            h(f's_waitcnt vmcnt({THR-4 if THR>4 else 0})'); h.vmq=h.vmq[len(h.vmq)-(THR-4 if THR>4 else 0):] if THR>4 else []
    for tt in range(2):
        for ct in range(2):
            for r in range(16): h(f'v_mov_b32 v{GA[tt][ct]+r}, 0')
    if 'now2warm' not in OPT:
        h('s_mov_b32 s48, s54'); h('s_mov_b32 s49, s50')
        for i in range(WD,22):
            if i%2==0: h.wait_vm_all()
            h.vm('L2', f'buffer_load_dwordx4 v[40:43], v10, {SR(sW2)}, s48 offen')
            h.vm('L2', f'buffer_load_dwordx4 v[40:43], v11, {SR(sW2)}, s48 offen offset:1024')
            h('s_add_u32 s48, s48, 16384')
            h('s_sub_u32 s49, s49, 1')
            h('s_cmp_eq_u32 s49, 0')
            h('s_cselect_b32 s63, s53, 0')
            h('s_sub_u32 s48, s48, s63')
    h.wait_vm_all()
    tail_prep(h)
    lab=newlab('G2W'); done=newlab('G2WD')
    h(f'v_mov_b32 v12, {L_CNT+G2CNT}')
    h.label(lab)
    h('ds_read_b32 v13, v12')
    h('s_waitcnt lgkmcnt(0)')
    h('v_readfirstlane_b32 s3, v13')
    h('s_nop 0')
    h(f's_cmp_ge_u32 s3, {G2TGT}')
    h(f's_cbranch_scc1 {done}')
    h('s_sleep 16')
    h(f's_branch {lab}')
    h.label(done)
    h('s_setprio 2')
    stamp(h,9)
    h.wait_vm_all()
    g2_wread(0)
    NK=22
    for i in range(NK):
        if i+1<NK:
            h.wait_vm([f'W{i+1}'])
            g2_wread(i+1)
            h.wait_vm([f'X{i}'])
            h('s_waitcnt lgkmcnt(4)')
        else:
            h.wait_vm([f'X{i}'])
            h('s_waitcnt lgkmcnt(0)')
            h('s_cmp_eq_u32 s62, 21')
            h('s_cbranch_scc1 K_G2_DONE')
        b=XR[i%XD]
        for tt in range(2):
            for ct in range(2):
                h(f'v_mfma_f32_32x32x16_bf16 {R(GA[tt][ct],16)}, {R(WB[i%2]+4*ct,4)}, {R(b+4*tt,4)}, {R(GA[tt][ct],16)}')
        if i+WD<NK: w_issue(i+WD)
        if i+XD<NK: x_issue(i+XD)
    h.label('K_G2_DONE')
    h('s_waitcnt vmcnt(0) lgkmcnt(0)')
    stamp(h,11)
    h('s_nop 7')
    for tt in range(2):
        for ct in range(2):
            qd=tt+2*ct
            lab=newlab('GXS')
            h(f's_cmp_eq_u32 s60, {qd}')
            h(f's_cbranch_scc1 {lab}')
            h(f's_sub_u32 s52, {qd+3}, s60')
            h('s_and_b32 s52, s52, 3')
            h('s_lshl_b32 s52, s52, 12')
            h('s_add_u32 s52, s52, s55')
            h('v_add_u32 v14, s52, v5')
            for k in range(4): h(f'ds_write_b128 v14, {R(GA[tt][ct]+4*k,4)} offset:{1024*k}')
            h.label(lab)
    def att_ids(e):
        e('s_and_b32 s48, s2, 7')
        e('s_lshr_b32 s49, s2, 3')
        e('s_and_b32 s50, s49, 3')
        e('s_lshl_b32 s48, s48, 2')
        e('s_add_u32 s38, s48, s50')
        e('s_lshr_b32 s39, s49, 2')
    h(f'v_mov_b32 v12, {L_CNT+12}')
    h('v_mov_b32 v13, 1')
    h('s_waitcnt lgkmcnt(0)')
    gbar_arrive(h, 12, 13)
    gbar_wait(h, 12, 13, 24)
    for sl in range(3):
        h(f's_sub_u32 s52, s60, {sl+1}')
        h('s_and_b32 s52, s52, 3')
        h(f's_mul_i32 s52, s52, {RINGSZ}')
        h(f's_add_u32 s52, s52, {L_RING+4096*sl}')
        h('v_add_u32 v14, s52, v5')
        for k in range(4): h(f'ds_read_b128 {R(128+16*sl+4*k,4)}, v14 offset:{1024*k}')
    h('s_waitcnt lgkmcnt(8)')
    gxe=newlab('GXE')
    for qd in range(4):
        lab=newlab('GXQ')
        tt,ct=qd&1,qd>>1
        if qd<3:
            h(f's_cmp_lg_u32 s60, {qd}')
            h(f's_cbranch_scc1 {lab}')
        for r in range(16): h(f'v_add_f32 v{192+r}, v{GA[tt][ct]+r}, v{128+r}')
        if qd<3:
            h(f's_branch {gxe}')
            h.label(lab)
    h.label(gxe)
    h('s_waitcnt lgkmcnt(4)')
    for r in range(16): h(f'v_add_f32 v{192+r}, v{192+r}, v{144+r}')
    h('s_waitcnt lgkmcnt(0)')
    for r in range(16): h(f'v_add_f32 v{192+r}, v{192+r}, v{160+r}')
    h('s_branch K_TAIL')

    a2=Asm()
    a2.label('K_ATT')
    a2('s_setprio 1')
    att_ids(a2)
    a2('v_lshlrev_b32 v5, 4, v1')
    a2('v_lshlrev_b32 v6, 8, v4')
    a2('v_and_b32 v7, 15, v1')
    a2('v_lshlrev_b32 v7, 4, v7')
    a2('v_add_u32 v6, v6, v7')
    a2('v_lshlrev_b32 v8, 7, v1')
    a2('v_lshlrev_b32 v9, 2, v1')
    a2('s_lshl_b32 s44, s38, 16')
    a2('s_lshl_b32 s46, s39, 13')
    a2('s_add_u32 s46, s46, s44')
    a2(f's_add_u32 s46, s46, {WS_Q}')
    a2('s_lshl_b32 s47, s36, 14')
    a2('s_add_u32 s47, s47, s44')
    a2(f's_add_u32 s48, s47, {WS_V}')
    a2(f's_add_u32 s47, s47, {WS_K}')
    a2('s_mov_b32 s40, s47')
    a2('s_mov_b32 s41, s48')
    a2('s_lshr_b32 s49, s38, 1')
    a2('s_mul_i32 s49, s49, 1536')
    a2(f's_add_u32 s49, s49, {WS_N}')
    a2('s_mov_b32 s50, 0x0000ffff')
    a2('s_mov_b32 s51, 0x0000ffff')
    KB=[80,84,88,92]; VB=[96,104,112,120]; QF=48
    SA,SB=10,26
    OA=[128+16*i for i in range(8)]; IDX=44
    a2('v_and_b32 v12, 27, v3')
    a2('v_cmp_eq_u32 vcc, 16, v12')
    a2('v_mov_b32 v12, 0x3f803f80')
    a2('s_nop 0')
    a2(f'v_cndmask_b32 v{IDX}, 0, v12, vcc')
    for b in VB:
        for r in range(8): a2(f'v_mov_b32 v{b+r}, v{IDX}')
    a2(f'v_mov_b32 v{IDX}, 0xdddddddd')
    for o in OA:
        for r in range(16): a2(f'v_mov_b32 v{o+r}, 0')
    for r in range(8,16): a2(f'v_mov_b32 v{SB+r}, 0')
    for p_ in range(4):
        a2(f's_sub_u32 s52, s36, {p_+1}')
        a2('s_and_b32 s52, s52, 3')
        a2('s_mul_i32 s52, s52, 2304')
        a2(f's_add_u32 s{56+p_}, s52, {2*p_*3*2304}')
    a2('s_lshl_b32 s52, s36, 1')
    a2('s_lshl_b32 s52, 3, s52')
    a2('s_xor_b32 s45, s52, 0xff')
    a2('s_lshr_b32 s52, s38, 1')
    a2('s_lshl_b32 s52, s52, 11')
    a2(f's_add_u32 s52, s52, {F_1}')
    stamp(a2,7)
    poll_wg(a2, 16, 'v8', 's52', 18, 0, L_CNT+24)
    stamp(a2,8)
    def loadkv(b, ko):
        a2.vm('KV', f'buffer_load_dwordx4 {R(KB[b],4)}, v5, {W_}, s47 offen offset:{1024*ko} sc1')
        a2('s_mov_b64 exec, s[50:51]')
        a2.vm('KV', f'buffer_load_dwordx4 {R(VB[b],4)}, v6, {W_}, s48 offen offset:{1024*ko} sc1')
        a2.vm('KV', f'buffer_load_dwordx4 {R(VB[b]+4,4)}, v6, {W_}, s48 offen offset:{1024*ko+512} sc1')
        a2('s_mov_b64 exec, -1')
    for i in range(4):
        a2.vm('Q', f'buffer_load_dwordx4 {R(QF+4*i,4)}, v5, {W_}, s46 offen offset:{1024*i} sc1')
    loadkv(0,0)
    a2('s_add_u32 s46, s46, 4096')
    for i in range(4,8):
        a2.vm('Q', f'buffer_load_dwordx4 {R(QF+4*i,4)}, v5, {W_}, s46 offen offset:{1024*(i-4)} sc1')
    NR=(42,43,45,46,47,2)
    for k,rg in enumerate(NR):
        a2.vm('N', f'buffer_load_dword v{rg}, v9, {W_}, s49 offen offset:{256*k} sc1')
    loadkv(1,1); loadkv(2,2)
    a2('s_add_u32 s47, s47, 3072')
    a2('s_add_u32 s48, s48, 3072')
    def qk(kb, i, dst): return f'v_mfma_f32_32x32x16_bf16 {R(dst,16)}, {R(KB[kb],4)}, {R(QF+4*i,4)}, 0'
    def pv(kb, i, half, src): return f'v_smfmac_f32_32x32x32_bf16 {R(OA[i],16)}, {R(VB[kb]+4*half,4)}, {R(src+8*half,8)}, v{IDX}'
    a2('s_mov_b32 s42, 0')
    a2('s_mov_b32 s43, 0')
    a2('s_waitcnt vmcnt(12)')
    stamp(a2,9)
    a2(qk(0,0,SA))
    a2('s_nop 7'); a2('s_nop 3')
    a2.label('K_ATT_LOOP')
    G2N=4; G2P=3
    for o_ in OPT:
        if o_.startswith('G2N='): G2N=int(o_[4:])
        if o_.startswith('G2P='): G2P=int(o_[4:])
    ool=Asm()
    def red_write(i, inline=False):
        lab=newlab('RW'); back=newlab('RWB')
        e=a2 if inline else ool
        a2(f's_bitcmp1_b32 s43, {i}')
        if inline: a2(f's_cbranch_scc0 {back}')
        else:
            a2(f's_cbranch_scc1 {lab}'); ool.label(lab)
        p_=i>>1; off=(i&1)*3*2304
        e(f'v_add_u32 v42, s{56+p_}, v5')
        e(f'v_add_u32 v43, s{56+p_}, v9')
        e(f'ds_write_b128 v42, {R(OA[i],4)} offset:{off}')
        e(f'ds_write_b128 v42, {R(OA[i]+4,4)} offset:{off+1024}')
        e(f'ds_write_b32 v43, v{OA[i]+8} offset:{off+2048}')
        if not inline: ool(f's_branch {back}')
        a2.label(back)
    for n in range(32):
        kb,i=divmod(n,8)
        sa=SA if n%2==0 else SB
        sb=SB if n%2==0 else SA
        ex=[f'v_exp_f32 v{sa+r}, v{sa+r}' for r in range(16)]
        if 'noexp' in OPT: ex=[f'v_mov_b32 v{sa+r}, v{sa+r}' for r in range(16)]
        for e in ex[0:2]: a2(e)
        pkb,pi=divmod((n-1)%32,8)
        if 'nopv' not in OPT: a2(pv(pkb,pi,1,sb))
        if i==0 and 'noload' not in OPT: loadkv((kb+3)%4, kb)
        if kb==1 and i==1:
            lab=newlab('CHK'); back=newlab('CHKB')
            a2('s_cmp_eq_u32 s42, 0')
            a2(f's_cbranch_scc1 {lab}')
            ool.label(lab)
            for sh in (1,2,4,8):
                for r in NR: ool(f'v_max_f32_dpp v{r}, v{r}, v{r} row_shr:{sh} row_mask:0xf bank_mask:0xf')
            for r in NR: ool(f'v_max_f32_dpp v{r}, v{r}, v{r} row_bcast:15 row_mask:0xa bank_mask:0xf')
            for r in NR: ool(f'v_max_f32_dpp v{r}, v{r}, v{r} row_bcast:31 row_mask:0xc bank_mask:0xf')
            ool('v_add_f32 v42, v42, v43')
            ool('v_add_f32 v45, v45, v46')
            ool('v_max_f32 v47, v47, v2')
            ool('v_mul_f32 v42, v42, v45')
            ool(f'v_mul_f32 v42, {f2u(1.05):#x}, v42')
            ool(f'v_mov_b32 v43, {f2u(T_LOG2*T_LOG2):#x}')
            ool(f'v_mov_b32 v45, {f2u(2.0**60):#x}')
            ool('v_cmp_le_f32 vcc, v42, v43')
            ool('v_cmp_le_f32 s[52:53], v47, v45')
            ool('s_nop 1')
            ool('s_and_b64 vcc, vcc, s[52:53]')
            ool('s_bitcmp1_b64 vcc, 63')
            ool('s_cbranch_scc0 K_SLOW')
            ool(f'v_mov_b32 v42, {L_CNT+12}')
            gbar_wait(ool, 42, 43, 20)
            ool(f's_branch {back}')
            a2.label(back)
        for e in ex[2:5]: a2(e)
        nkb,ni=divmod((n+1)%32,8)
        if i==7: a2('s_waitcnt vmcnt(6)')
        if 'noqk' not in OPT: a2(qk(nkb,ni,sb))
        for e in ex[5:11]: a2(e)
        if 'nopv' not in OPT: a2(pv(kb,i,0,sa))
        if kb==3 and i>=2: red_write(i-2)
        if n==G2N:
            lab=newlab('G2E'); back=newlab('G2EB')
            a2(f's_cmp_eq_u32 s42, {G2P}')
            a2(f's_cbranch_scc1 {lab}')
            ool.label(lab)
            ool(f'v_mov_b32 v46, {L_CNT+G2CNT}')
            ool('v_mov_b32 v47, 1')
            gbar_arrive(ool, 46, 47)
            ool('s_waitcnt lgkmcnt(0)')
            ool('s_wakeup')
            ool(f's_branch {back}')
            a2.label(back)
        for e in ex[11:16]: a2(e)
    a2('s_add_u32 s47, s47, 4096')
    a2('s_add_u32 s48, s48, 4096')
    a2('s_add_u32 s42, s42, 1')
    a2('s_cmp_eq_u32 s42, 3')
    a2('s_cselect_b32 s43, s45, 0')
    a2('s_cmp_lt_u32 s42, 4')
    a2('s_cbranch_scc1 K_ATT_LOOP')
    a2('s_nop 1')
    a2(pv(3,7,1,SB))
    if G2N>31:
        a2(f'v_mov_b32 v46, {L_CNT+G2CNT}')
        a2('v_mov_b32 v47, 1')
        gbar_arrive(a2, 46, 47)
        a2('s_mov_b32 s43, s45')
        red_write(6, True)
        a2('s_waitcnt lgkmcnt(0)')
        a2('s_wakeup')
        a2('s_nop 3')
    else:
        a2('s_mov_b32 s43, s45')
        red_write(6, True)
        a2('s_nop 7'); a2('s_nop 1')
    red_write(7, True)
    a2('s_branch K_ATT_RED')
    a2.label('K_ATT_DONE')
    a2('s_mov_b32 s43, s45')
    for i in range(8): red_write(i, True)
    a2.label('K_ATT_RED')
    a2('s_setprio 3')
    stamp(a2,10)
    a2.vmq=[]
    a2('s_and_b32 s52, s2, 7')
    a2('s_lshr_b32 s53, s2, 3')
    a2('s_and_b32 s54, s53, 3')
    a2('s_lshl_b32 s52, s52, 2')
    a2('s_add_u32 s58, s52, s54')
    a2('s_lshr_b32 s59, s53, 2')
    a2(f'v_mov_b32 v20, {L_CNT+28}')
    a2('v_mov_b32 v21, 1')
    a2('s_waitcnt lgkmcnt(0)')
    gbar_arrive(a2, 20, 21)
    gbar_wait(a2, 20, 22, 4)
    stamp(a2,12)
    a2('s_waitcnt vmcnt(0)')
    for p_ in range(4):
        lab=newlab('RM')
        a2(f's_cmp_lg_u32 s36, {p_}')
        a2(f's_cbranch_scc1 {lab}')
        for t_ in range(2):
            for r in range(9): a2(f'v_mov_b32 v{32+48*t_+r}, v{OA[2*p_+t_]+r}')
        a2.label(lab)
    a2(f's_mul_i32 s53, s36, {6*2304}')
    a2('v_add_u32 v14, s53, v5')
    a2('v_add_u32 v15, s53, v9')
    for t_ in range(2):
        for k in range(3):
            b=32+48*t_+12*(k+1); off=(t_*3+k)*2304
            a2(f'ds_read_b128 {R(b,4)}, v14 offset:{off}')
            a2(f'ds_read_b128 {R(b+4,4)}, v14 offset:{off+1024}')
            a2(f'ds_read_b32 v{b+8}, v15 offset:{off+2048}')
    a2('s_lshl_b32 s53, s39, 3')
    a2('s_lshl_b32 s52, s36, 1')
    a2('s_add_u32 s53, s53, s52')
    a2('s_lshl_b32 s53, s53, 5')
    a2('s_add_u32 s53, s53, s38')
    a2('s_lshl_b32 s53, s53, 10')
    a2(f's_add_u32 s53, s53, {WS_O}')
    for t_ in range(2):
        b=32+48*t_
        if t_==0: a2('s_waitcnt lgkmcnt(9)')
        if t_==1: a2('s_waitcnt lgkmcnt(0)'); gbar_arrive(a2, 20, 21)
        for sl in range(1,4):
            for r in range(9): a2(f'v_add_f32 v{b+r}, v{b+r}, v{b+12*sl+r}')
        a2(f'v_rcp_f32 v{b+9}, v{b+8}')
        a2('s_nop 0')
        for r in range(8): a2(f'v_mul_f32 v{b+r}, v{b+r}, v{b+9}')
        for i in range(4): a2(f'v_cvt_pk_bf16_f32 v{b+12+i}, v{b+2*i}, v{b+2*i+1}')
        a2(f'buffer_store_dwordx4 {R(b+12,4)}, v5, {W_}, s53 offen sc1')
        if t_==0: a2(f's_add_u32 s53, s53, {32*1024}')
    ACC3=192
    for r in range(16): a2(f'v_mov_b32 v{ACC3+r}, 0')
    a2('s_lshl_b32 s52, s39, 5')
    a2('s_add_u32 s52, s52, s38')
    a2('s_lshl_b32 s52, s52, 7')
    a2(f's_add_u32 s52, s52, {F_3}')
    a2('s_waitcnt vmcnt(0)')
    signal(a2, L_CNT+8, 3, 's52', 46)
    if 'abs' in OPT: stamp(a2,11)
    a2('s_setprio 0')
    tail_prep(a2)
    a2('s_cmp_eq_u32 s36, 0')
    a2('s_cbranch_scc1 K_TAIL')
    a2(f'v_mov_b32 v12, {L_CNT+28}')
    gbar_wait(a2, 12, 13, 8)
    sWO=24
    srd(a2,sWO,pWO,512*512*2)
    wdma_voff(a2)
    a2('s_sub_u32 s54, s36, 1')
    a2('s_lshl_b32 s52, s54, 14')
    a2('s_lshl_b32 s53, s59, 7')
    a2('s_add_u32 s52, s52, s53')
    a2('s_lshl_b32 s53, s54, 11')
    for i in range(11):
        a2(f's_add_u32 m0, s53, {L_WO+3*2048*i}')
        a2('s_nop 0')
        a2(f'buffer_load_dwordx4 v10, {SR(sWO)}, s52 offen lds')
        a2(f'buffer_load_dwordx4 v11, {SR(sWO)}, s52 offen offset:1024 lds')
        a2(f's_add_u32 s52, s52, {3*16384}')
    a2.label('K_TAIL')
    a2('s_setprio 0')
    a2('v_lshlrev_b32 v8, 7, v1')
    stamp(a2,13)
    a2('s_cmp_eq_u32 s36, 0')
    a2('s_cbranch_scc0 K_S3W')
    poll(a2, 32, 'v8', 's42', 48)
    a2.label('K_S3W')
    a2('s_waitcnt vmcnt(0)')
    a2.vmq=[]
    a2('s_barrier')
    stamp(a2,14)
    for s_ in range(4):
        a2(f's_add_u32 m0, s41, {4096*s_}')
        a2(f's_add_u32 s55, s40, {4096*s_}')
        a2.vm(f'O{s_}', f'buffer_load_dwordx4 v5, {W_}, s55 offen sc1 lds')
        a2.vm(f'O{s_}', f'buffer_load_dwordx4 v5, {W_}, s55 offen offset:1024 sc1 lds')
    a2('s_cmp_eq_u32 s2, 0')
    a2('s_cbranch_scc0 K_NOE')
    a2('s_cmp_eq_u32 s36, 0')
    a2('s_cbranch_scc0 K_NOE')
    a2('v_mov_b32 v60, s64'); a2('v_mov_b32 v61, s65'); a2('v_mov_b32 v62, 0')
    a2('s_mov_b64 exec, 1')
    a2(f'buffer_store_dwordx2 v[60:61], v62, {W_}, 0 offen')
    a2('s_mov_b64 exec, -1')
    a2('s_waitcnt vmcnt(0)')
    a2.label('K_NOE')
    FX=[64,68,72,76]; FW=[80,84,88,92]
    for s_ in range(4):
        a2.wait_vm(f'O{s_}')
        a2('s_barrier')
        for k in range(4):
            ks=4*s_+k
            a2(f'ds_read_b128 {R(FX[k],4)}, v22 offset:{ks*1024}')
            a2(f'ds_read_b64_tr_b16 {R(FW[k],2)}, v21 offset:{ks*2048}')
            a2(f'ds_read_b64_tr_b16 {R(FW[k]+2,2)}, v21 offset:{ks*2048+1024}')
        for k in range(4):
            a2(f's_waitcnt lgkmcnt({3*(3-k)})')
            a2(f'v_mfma_f32_32x32x16_bf16 {R(ACC3,16)}, {R(FW[k],4)}, {R(FX[k],4)}, {R(ACC3,16)}')
    stamp(a2,15)
    a2('s_cmp_eq_u32 s39, 0')
    a2('s_cbranch_scc1 K_KH0')
    a2('s_nop 7'); a2('s_nop 3')
    a2(f'ds_write_b128 v23, {R(ACC3,4)}')
    a2(f'ds_write_b128 v23, {R(ACC3+4,4)} offset:1024')
    for r in range(8): a2(f'v_add_f32 v{40+r}, v{40+r}, v{ACC3+8+r}')
    a2('s_branch K_EX')
    a2.label('K_KH0')
    a2('s_nop 7'); a2('s_nop 3')
    a2(f'ds_write_b128 v23, {R(ACC3+8,4)}')
    a2(f'ds_write_b128 v23, {R(ACC3+12,4)} offset:1024')
    for r in range(8): a2(f'v_add_f32 v{40+r}, v{40+r}, v{ACC3+r}')
    a2.label('K_EX')
    a2('s_waitcnt lgkmcnt(0)')
    a2('s_barrier')
    a2('ds_read_b128 v[64:67], v6')
    a2('ds_read_b128 v[68:71], v6 offset:1024')
    a2('s_waitcnt lgkmcnt(0)')
    for r in range(8): a2(f'v_add_f32 v{40+r}, v{40+r}, v{64+r}')
    for i in range(4): a2(f'v_cvt_pk_bf16_f32 v{64+i}, v{40+2*i}, v{41+2*i}')
    a2(f'buffer_store_dwordx4 v[64:67], v20, {SR(32)}, 0 offen')
    if STAMP and ('rt' in OPT or 'span' in OPT) and 'dbg' not in OPT:
        a2('s_memrealtime s[92:93]'); a2('s_memtime s[100:101]')
    if 'abs' in OPT:
        a2('s_cmp_lt_u32 s36, 4'); a2('s_cbranch_scc0 K_NOABS'); stamp(a2,6); a2.label('K_NOABS')
    stamp_flush(a2,16)
    stamp_dbg(a2)
    a2('s_endpgm')
    a2.label('K_SLOW')
    a2('s_waitcnt vmcnt(0)')
    a2('s_nop 7'); a2('s_nop 7')
    for o in OA:
        for r in range(16): a2(f'v_mov_b32 v{o+r}, 0')
    MX=116
    a2('s_mov_b32 s61, s40')
    for i in range(8): a2(f'v_mov_b32 v{MX+i}, 0xff800000')
    a2('s_mov_b32 s62, 0')
    a2.label('K_S1')
    a2(f'buffer_load_dwordx4 {R(KB[0],4)}, v5, {W_}, s61 offen sc1')
    a2('s_waitcnt vmcnt(0)')
    for i in range(8):
        a2(f'v_mfma_f32_32x32x16_bf16 {R(SA,16)}, {R(KB[0],4)}, {R(QF+4*i,4)}, 0')
        a2('s_nop 7'); a2('s_nop 7')
        for r in range(0,16,2): a2(f'v_max3_f32 v{MX+i}, v{MX+i}, v{SA+r}, v{SA+r+1}')
    a2('s_add_u32 s61, s61, 1024')
    a2('s_add_u32 s62, s62, 1')
    a2('s_cmp_lt_u32 s62, 16')
    a2('s_cbranch_scc1 K_S1')
    for i in range(8): a2(f'v_mov_b32 v{SA+i}, v{MX+i}')
    a2('s_nop 1')
    for i in range(8): a2(f'v_permlane32_swap_b32 v{MX+i}, v{SA+i}')
    a2('s_nop 1')
    for i in range(8): a2(f'v_max_f32 v{MX+i}, v{MX+i}, v{SA+i}')
    a2(f'v_mov_b32 v12, {L_CNT+12}')
    gbar_wait(a2, 12, 13, 20)
    a2('s_lshl_b32 s53, s36, 11')
    a2(f's_add_u32 s53, s53, {L_MX}')
    a2('v_add_u32 v42, s53, v9')
    for i in range(8): a2(f'ds_write_b32 v42, v{MX+i} offset:{256*i}')
    a2(f'v_mov_b32 v12, {L_CNT+16}')
    a2('v_mov_b32 v13, 1')
    a2('s_waitcnt lgkmcnt(0)')
    gbar_arrive(a2, 12, 13)
    gbar_wait(a2, 12, 13, 4)
    a2(f'v_add_u32 v42, {L_MX}, v9')
    for q in range(4):
        for i in range(8): a2(f'ds_read_b32 v{SA+i}, v42 offset:{2048*q+256*i}')
        a2('s_waitcnt lgkmcnt(0)')
        for i in range(8): a2(f'v_max_f32 v{MX+i}, v{MX+i}, v{SA+i}')
    a2('s_mov_b32 s61, s40'); a2('s_mov_b32 s60, s41')
    a2('s_mov_b32 s62, 0')
    a2.label('K_S2')
    a2(f'buffer_load_dwordx4 {R(KB[0],4)}, v5, {W_}, s61 offen sc1')
    a2('s_mov_b64 exec, s[50:51]')
    a2(f'buffer_load_dwordx4 {R(VB[0],4)}, v6, {W_}, s60 offen sc1')
    a2(f'buffer_load_dwordx4 {R(VB[0]+4,4)}, v6, {W_}, s60 offen offset:512 sc1')
    a2('s_mov_b64 exec, -1')
    a2('s_waitcnt vmcnt(0)')
    for i in range(8):
        a2(f'v_mfma_f32_32x32x16_bf16 {R(SA,16)}, {R(KB[0],4)}, {R(QF+4*i,4)}, 0')
        a2('s_nop 7'); a2('s_nop 7')
        for r in range(16): a2(f'v_sub_f32 v{SA+r}, v{SA+r}, v{MX+i}')
        for r in range(16): a2(f'v_exp_f32 v{SA+r}, v{SA+r}')
        a2('s_nop 1')
        a2(f'v_smfmac_f32_32x32x32_bf16 {R(OA[i],16)}, {R(VB[0],4)}, {R(SA,8)}, v{IDX}')
        a2(f'v_smfmac_f32_32x32x32_bf16 {R(OA[i],16)}, {R(VB[0]+4,4)}, {R(SA+8,8)}, v{IDX}')
        a2('s_nop 7')
    a2('s_add_u32 s61, s61, 1024')
    a2('s_add_u32 s60, s60, 1024')
    a2('s_add_u32 s62, s62, 1')
    a2('s_cmp_lt_u32 s62, 16')
    a2('s_cbranch_scc1 K_S2')
    a2(f'v_mov_b32 v42, {L_CNT+G2CNT}')
    a2('v_mov_b32 v43, 1')
    gbar_arrive(a2, 42, 43)
    a2('s_waitcnt lgkmcnt(0)')
    a2('s_wakeup')
    a2('s_nop 7')
    a2('s_branch K_ATT_DONE')
    return 'K_START:\n'+a.text()+'\n'+h.text()+'\n'+g.text()+'\n'+a2.text()+'\n'+ool.text()+'\nK_END:\n  s_endpgm\n'

HEADER=open('cdna_kernels/'+NAME+'.s.ref').read().split('; Override launch geometry')[0]
def assemble(body):
    n=NAME+'_kernel'
    return HEADER+f'''; @launch grid=(256,1,1) block=(512,1,1) lds={LDS_TOTAL}
.amdgcn_target "amdgcn-amd-amdhsa--gfx950"
.text
.globl {n}
.p2align 8
.type {n},@function
{n}:
{body}
.section .rodata,"a"
.p2align 6
.amdhsa_kernel {n}
  .amdhsa_next_free_vgpr 256
  .amdhsa_next_free_sgpr 102
  .amdhsa_accum_offset 256
  .amdhsa_group_segment_fixed_size 0
  .amdhsa_kernarg_size 88
  .amdhsa_user_sgpr_count 2
  .amdhsa_user_sgpr_kernarg_segment_ptr 1
  .amdhsa_system_sgpr_workgroup_id_x 1
  .amdhsa_float_denorm_mode_32 3
.end_amdhsa_kernel
'''
if __name__=='__main__':
    outp=sys.argv[1]
    if 'stamp' in sys.argv: STAMP=True
    OPT.update(sys.argv[2:])
    for o_ in list(OPT):
        if o_.startswith('PD='): POLLD=int(o_[3:])
    open(outp,'w').write(assemble(gen()))
    print('wrote',outp)
```

```python
import sys, struct
NAME='parallel_sum__softmax_full_mha__mixer_channel_mlp__prompt'

WS_F = 0
F_1, F_2, F_3 = 32768, 65536, 98304
WS_N = 256<<10
WS_Q = 1<<20
WS_K = 3<<20
WS_V = 5<<20
WS_O = 7<<20
WS_H = 9<<20
WS_T = 15<<20
WS_SIZE = 16<<20
QSCALE = 0.25*1.4426950408889634
T_LOG2 = 48.0
SPIN_MAX = 1<<20
POLLD = 1

def f2u(f): return struct.unpack('<I', struct.pack('<f', f))[0]

STAMP=False
OPT=set()
class Asm:
    def __init__(self):
        self.L=[]; self.vmq=[]; self.lgq=[]
    def __call__(self, s): self.L.append('  '+s)
    def c(self, s): self.L.append('  ; '+s)
    def label(self, n): self.L.append(n+':')
    def vm(self, tag, s):
        self.vmq.append(tag); self(s)
    def wait_vm(self, tags):
        if isinstance(tags,str): tags=[tags]
        idx=[i for i,t in enumerate(self.vmq) if t in tags]
        if not idx: return
        last=max(idx); n=len(self.vmq)-1-last
        assert n<=63
        self(f's_waitcnt vmcnt({n})')
        self.vmq=self.vmq[last+1:]
    def lg(self, tag, s):
        self.lgq.append(tag); self(s)
    def wait_lg(self, tags):
        if isinstance(tags,str): tags=[tags]
        idx=[i for i,t in enumerate(self.lgq) if t in tags]
        if not idx: return
        last=max(idx); n=len(self.lgq)-1-last
        if n<=15: self(f's_waitcnt lgkmcnt({n})')
        self.lgq=self.lgq[last+1:]
    def wait_vm_all(self):
        self('s_waitcnt vmcnt(0)'); self.vmq=[]
    def text(self): return '\n'.join(self.L)

RTMAP={3:1, 9:2, 10:4}
def fstamp(a, i):
    if STAMP and 'fine' in OPT and 'fe' not in OPT: a(f's_memtime s[{70+2*i}:{71+2*i}]')
def estamp(a, i):
    if STAMP and 'fe' in OPT: a(f's_memtime s[{70+2*i}:{71+2*i}]')
def stamp(a, i):
    if STAMP:
        if 'span' in OPT: return
        if 'fine' in OPT: return
        if 'rt' in OPT and i in (1,2,4) : return
        if 'abs' in OPT:
            a(f's_memrealtime s[{70+2*i}:{71+2*i}]'); return
        a(f's_memtime s[{70+2*i}:{71+2*i}]')
        if 'rt' in OPT and i in RTMAP:
            j=RTMAP[i]; a(f's_memrealtime s[{70+2*j}:{71+2*j}]')
def stamp_flush(a, n):
    if not STAMP: return
    a('s_waitcnt vmcnt(0) lgkmcnt(0)')
    a('s_lshl_b32 s69, s2, 3')
    a('s_add_u32 s69, s69, s36')
    a('s_lshl_b32 s69, s69, 6')
    a(f's_add_u32 s69, s69, {WS_T}')
    a('v_mov_b32 v2, 0')
    for i in range(n):
        a(f'v_mov_b32 v3, s{70+2*i}')
        a('s_mov_b64 exec, 1')
        a(f'buffer_store_dword v3, v2, s[28:31], s69 offen offset:{4*i}')
        a('s_mov_b64 exec, -1')
        a('s_nop 1')

def stamp_dbg(a):
    if not (STAMP and 'dbg' in OPT): return
    lab=newlab('DBG')
    a('s_cmp_eq_u32 s2, 37')
    a(f's_cbranch_scc0 {lab}')
    a('s_cmp_eq_u32 s36, 0')
    a(f's_cbranch_scc0 {lab}')
    a('s_load_dwordx2 s[66:67], s[0:1], 72')
    a('s_memrealtime s[92:93]')
    a('s_memtime s[100:101]')
    a('s_waitcnt lgkmcnt(0)')
    a('s_sub_u32 s92, s92, s82')
    a('s_add_u32 s92, s92, s70')
    if 'rt' in OPT:
        for j in (1,2,4):
            a(f's_sub_u32 s{70+2*j}, s{70+2*j}, s82'); a(f's_add_u32 s{70+2*j}, s{70+2*j}, s70')
    a('s_mov_b32 s82, s70')
    a('s_mov_b32 s40, s66'); a('s_mov_b32 s41, s67'); a('s_mov_b32 s42, 256'); a('s_mov_b32 s43, 0x00020000')
    a('v_mov_b32 v2, 0')
    a('s_mov_b64 exec, 1')
    for i in range(16):
        a(f's_sub_u32 s3, s{70+2*i}, s70')
        a('v_mov_b32 v3, s3')
        a(f'buffer_store_dword v3, v2, s[40:43], 0 offen offset:{4*i}')
        a('s_nop 1')
    a('s_mov_b64 exec, -1')
    a.label(lab)

def R(a,n=1): return f'v{a}' if n==1 else f'v[{a}:{a+n-1}]'
def SR(a): return f's[{a}:{a+3}]'
def srd(a, d, ptr, size):
    a(f's_mov_b32 s{d}, s{ptr}')
    a(f's_mov_b32 s{d+1}, s{ptr+1}')
    a(f's_mov_b32 s{d+2}, {size}')
    a(f's_mov_b32 s{d+3}, 0x00020000')
def pk(op, d, a_, b_, c_=None, bsel=None, csel=None, neg=None):
    ops=[a_,b_]+([c_] if c_ is not None else [])
    n=len(ops)
    txt=[ (f'v[{o}:{o+1}]' if isinstance(o,int) else o) for o in ops]
    hi=[1]*n
    if bsel=='lo': hi[1]=0
    if csel=='lo': hi[2]=0
    s_=f'v_pk_{op}_f32 v[{d}:{d+1}], '+', '.join(txt)
    if hi!=[1]*n: s_+=' op_sel_hi:['+','.join(map(str,hi))+']'
    if neg: s_+=' '+neg
    return s_

pX,pWQ,pWO,pW1,pB1,pW2,pB2,pOUT,pWS = 4,6,8,12,14,16,18,20,22
sWS=28
W_=SR(sWS)

SLOT=28672; XS=16384; WST=12288
W1_SPARE=5*SLOT
SCR=W1_SPARE+WST
L_A=SCR; L_MU=SCR+512; L_CS=SCR+1024; L_CS1=SCR+1536; L_B1=SCR+2048; L_A2=SCR+2560; L_A2M=SCR+3072
L_CNT=SCR+4096
LDS_TOTAL=163840
W1_ADDR=[W1_SPARE, 3*SLOT, 3*SLOT+WST, 4*SLOT, 4*SLOT+WST, 0, WST, SLOT]
A_SLOT=[0,1,2,3,4,0,1,2]
L_RED=0
L_RING=73728
RINGSZ=20480; WD=10; XD=18
L_MX=57344
G2CNT=32; G2TGT=4
L_WO=0
L_OX=65536
L_EX=131072

uid=[0]
def newlab(p):
    uid[0]+=1; return f'{p}_{uid[0]}'

def poll(a, nl, voff, soff, vt):
    PD=POLLD
    lab=newlab('POLL'); done=newlab('POLLD')
    mask=(1<<nl)-1
    a(f's_mov_b32 s66, {mask:#x}')
    a('s_mov_b32 s67, 0')
    a(f's_mov_b32 s68, {SPIN_MAX}')
    a('s_waitcnt vmcnt(0)')
    a('s_mov_b64 exec, s[66:67]')
    for k in range(PD-1):
        a(f'buffer_load_dwordx2 v[{vt+2*k}:{vt+2*k+1}], {voff}, {W_}, {soff} offen sc1')
        if PD>1: a('s_sleep 2')
    a.label(lab)
    for k in range(PD):
        kn=(k+PD-1)%PD
        a(f'buffer_load_dwordx2 v[{vt+2*kn}:{vt+2*kn+1}], {voff}, {W_}, {soff} offen sc1')
        a(f's_waitcnt vmcnt({PD-1})')
        a(f'v_cmp_eq_u64 vcc, s[64:65], v[{vt+2*k}:{vt+2*k+1}]')
        a('s_sub_u32 s68, s68, 1')
        a('s_cmp_eq_u32 s68, 0')
        a(f's_cbranch_scc1 {done}')
        a('s_cmp_eq_u64 vcc, s[66:67]')
        a(f's_cbranch_scc1 {done}')
        a('s_sleep 2')
    a(f's_branch {lab}')
    a.label(done)
    a('s_mov_b64 exec, -1')
    a.vmq=[]

def poll_wg(a, nl, voff, soff, vt, leader, lds_addr):
    oth=newlab('PWO'); done=newlab('PWD')
    va=vt+2*POLLD
    a(f'v_mov_b32 v{va}, {lds_addr}')
    a(f's_cmp_eq_u32 s36, {leader}')
    a(f's_cbranch_scc0 {oth}')
    poll(a, nl, voff, soff, vt)
    a(f'v_mov_b32 v{va+1}, 1')
    a('s_mov_b64 exec, 1')
    a(f'ds_write_b32 v{va}, v{va+1}')
    a('s_mov_b64 exec, -1')
    a('s_waitcnt lgkmcnt(0)')
    a('s_wakeup')
    a(f's_branch {done}')
    a.label(oth)
    lab=newlab('PWL')
    a.label(lab)
    a(f'ds_read_b32 v{va+1}, v{va}')
    a('s_waitcnt lgkmcnt(0)')
    a(f'v_readfirstlane_b32 s66, v{va+1}')
    a('s_nop 0')
    a('s_cmp_eq_u32 s66, 0')
    a(f's_cbranch_scc0 {done}')
    a('s_sleep 8')
    a(f's_branch {lab}')
    a.label(done)
    a.vmq=[]

def signal(a, cnt_addr, last, flag_soff, vt):
    skip=newlab('SIG')
    a(f'v_mov_b32 v{vt}, {cnt_addr}')
    a(f'v_mov_b32 v{vt+1}, 1')
    a('s_mov_b64 exec, 1')
    a(f'ds_add_rtn_u32 v{vt+2}, v{vt}, v{vt+1}')
    a('s_waitcnt lgkmcnt(0)')
    a(f'v_readfirstlane_b32 s66, v{vt+2}')
    a(f'v_mov_b32 v{vt}, s64')
    a(f'v_mov_b32 v{vt+1}, s65')
    a(f'v_mov_b32 v{vt+2}, 0')
    a(f's_cmp_eq_u32 s66, {last}')
    a(f's_cbranch_scc0 {skip}')
    a(f'buffer_store_dwordx2 v[{vt}:{vt+1}], v{vt+2}, {W_}, {flag_soff} offen sc1')
    a.label(skip)
    a('s_mov_b64 exec, -1')

def gbar_arrive(a, vaddr, vone):
    a('s_mov_b64 exec, 1')
    a(f'ds_add_u32 v{vaddr}, v{vone}')
    a('s_mov_b64 exec, -1')
def gbar_wait(a, vaddr, vt, target):
    lab=newlab('GB')
    a.label(lab)
    a(f'ds_read_b32 v{vt}, v{vaddr}')
    a('s_waitcnt lgkmcnt(0)')
    a(f'v_readfirstlane_b32 s3, v{vt}')
    a('s_nop 0')
    a(f's_cmp_ge_u32 s3, {target}')
    a(f's_cbranch_scc0 {lab}')

def gen():
    a=Asm()
    a('s_cmp_ge_u32 s2, 256')
    a('s_cbranch_scc1 K_END')
    stamp(a,0)
    if STAMP and ('dbg' in OPT or 'rt' in OPT or 'span' in OPT): a('s_memrealtime s[82:83]')
    a('s_load_dwordx16 s[4:19], s[0:1], 0')
    a('s_load_dwordx2 s[20:21], s[0:1], 64')
    a('s_load_dwordx2 s[22:23], s[0:1], 80')
    a('v_and_b32 v1, 63, v0')
    a('v_lshrrev_b32 v2, 6, v0')
    a('s_and_b32 s48, s2, 7')
    a('v_readfirstlane_b32 s36, v2')
    a('s_lshr_b32 s49, s2, 3')
    a('s_and_b32 s50, s48, 1')
    a('s_lshr_b32 s51, s48, 1')
    a('s_lshl_b32 s50, s50, 3')
    a('s_and_b32 s52, s49, 7')
    a('s_add_u32 s38, s50, s52')
    a('s_lshl_b32 s51, s51, 2')
    a('s_lshr_b32 s52, s49, 3')
    a('s_add_u32 s39, s51, s52')
    a('s_and_b32 s37, s36, 3')
    a('v_and_b32 v3, 31, v1')
    a('v_lshrrev_b32 v4, 5, v1')
    a('s_cmp_ge_u32 s36, 4')
    a('s_cbranch_scc1 K_G1')
    a('s_getpc_b64 s[62:63]')
    a.label('PF_0')
    a('s_sub_u32 s62, s62, PF_0-K_START')
    a('s_subb_u32 s63, s63, 0')
    a('s_lshr_b32 s60, s2, 3')
    a('s_and_b32 s60, s60, 7')
    a('s_lshl_b32 s60, s60, 2')
    a('s_add_u32 s60, s60, s37')
    a('s_lshl_b32 s60, s60, 10')
    a('v_lshlrev_b32 v9, 4, v1')
    a('v_add_u32 v9, s60, v9')
    a('v_min_u32 v10, K_END-K_START-16, v9')
    a('global_load_dwordx4 v[200:203], v10, s[62:63]')
    a('v_add_u32 v9, 0x8000, v9')
    a('v_min_u32 v10, K_END-K_START-16, v9')
    a('global_load_dwordx4 v[204:207], v10, s[62:63]')
    a('s_branch K_G0')

    def common_lds_addr(e):
        e('v_bfe_u32 v5, v1, 1, 3')
        e('v_xor_b32 v5, v5, v4')
        e('v_lshlrev_b32 v5, 4, v5')
        e('s_lshl_b32 s3, s37, 12')
        e('v_lshlrev_b32 v6, 7, v3')
        e('v_add3_u32 v12, v6, v5, s3')
        e('v_xor_b32 v13, 32, v12')
        e('v_xor_b32 v14, 64, v12')
        e('v_xor_b32 v15, 0x60, v12')
        e('v_lshlrev_b32 v6, 3, v4')
        e('v_bfe_u32 v7, v1, 2, 2')
        e('v_add_u32 v6, v6, v7')
        e('v_mul_u32_u24 v6, 192, v6')
        e('v_bfe_u32 v7, v1, 4, 1')
        e('v_lshlrev_b32 v7, 5, v7')
        e('v_and_b32 v8, 3, v1')
        e('v_lshlrev_b32 v8, 3, v8')
        e('v_add3_u32 v16, v6, v7, v8')

    g=Asm()
    g.label('K_G0')
    accQ,accK,accV=64,80,96
    FS0=[128,144,160,176]
    common_lds_addr(g)
    for r in range(64,112): g(f'v_mov_b32 v{r}, 0')
    g(f'v_add_u32 v17, {XS}, v16')
    g(f's_mov_b32 s56, {(-4*SLOT)&0xffffffff:#x}')
    g(f's_mov_b32 s57, {SLOT}')
    g(f'v_lshlrev_b32 v18, 2, v1')
    g(f'v_add_u32 v18, {L_CNT}, v18')
    g('v_mov_b32 v19, 0')
    g('s_mov_b64 exec, 0xffff')
    g('ds_write_b32 v18, v19')
    g('s_mov_b64 exec, -1')
    g('s_lshl_b32 s48, s37, 7')
    g('v_lshlrev_b32 v20, 2, v3')
    g('v_add_u32 v20, s48, v20')
    g(f'v_add_u32 v20, {L_A}, v20')
    g('v_lshlrev_b32 v23, 4, v4')
    g(f'v_add_u32 v24, {L_CS}, v23')
    g('v_lshlrev_b32 v25, 2, v3')
    g(f'v_add_u32 v25, {L_CS+64*4}, v25')
    g('v_add_u32 v27, s48, v23')
    g(f'v_add_u32 v27, {L_A}, v27')
    g('s_lshl_b32 s49, s38, 2')
    g('s_add_u32 s49, s49, s37')
    g('s_lshl_b32 s50, s49, 10')
    g('s_lshl_b32 s51, s39, 17')
    g('s_add_u32 s50, s50, s51')
    g(f's_add_u32 s52, s50, {WS_K}')
    g(f's_add_u32 s53, s50, {WS_K+65536}')
    g(f's_add_u32 s54, s50, {WS_V}')
    g(f's_add_u32 s51, s50, {WS_Q+65536}')
    g(f's_add_u32 s50, s50, {WS_Q}')
    g('v_lshlrev_b32 v28, 4, v1')
    g('v_and_b32 v29, 0x13, v3')
    g('v_bfe_u32 v30, v3, 2, 1')
    g('v_lshlrev_b32 v30, 3, v30')
    g('v_bfe_u32 v31, v3, 3, 1')
    g('v_lshlrev_b32 v31, 2, v31')
    g('v_or3_b32 v29, v29, v30, v31')
    g('v_lshlrev_b32 v30, 5, v4')
    g('v_add_u32 v29, v29, v30')
    g('v_lshlrev_b32 v29, 4, v29')
    g('v_bfe_u32 v30, v3, 4, 1')
    g('v_lshlrev_b32 v30, 16, v30')
    g('v_lshlrev_b32 v31, 8, v4')
    g('v_and_b32 v32, 15, v3')
    g('v_lshlrev_b32 v32, 4, v32')
    g('v_add3_u32 v30, v30, v31, v32')
    g('s_mul_i32 s55, s39, 1536')
    g('s_lshl_b32 s58, s49, 2')
    g('s_add_u32 s55, s55, s58')
    g(f's_add_u32 s55, s55, {WS_N}')
    g('v_lshlrev_b32 v31, 8, v4')
    g('s_waitcnt lgkmcnt(0)')
    srd(g,sWS,pWS,WS_SIZE)
    g(f's_load_dwordx2 s[64:65], s[{pWS}:{pWS+1}], 0')
    if 'tlb' in OPT:
        g('v_mov_b32 v40, 0')
        g('v_mov_b32 v41, 0')
        g('s_mov_b64 exec, 1')
        for sreg in ('s50','s52','s54'):
            g(f'buffer_store_dword v40, v41, {W_}, {sreg} offen sc1')
        g(f'buffer_store_dword v40, v41, {W_}, s55 offen sc1')
        g('s_mov_b64 exec, -1')
        g('v_lshlrev_b32 v41, 21, v1')
        g(f's_mov_b32 s40, s{pW2}'); g(f's_mov_b32 s41, s{pW2+1}'); g(f's_mov_b32 s42, {1376*512*2}'); g('s_mov_b32 s43, 0x00020000')
        g('buffer_load_dword v208, v41, s[40:43], 0 offen')
        g(f's_mov_b32 s44, s{pWO}'); g(f's_mov_b32 s45, s{pWO+1}'); g(f's_mov_b32 s46, {512*512*2}'); g('s_mov_b32 s47, 0x00020000')
        g('buffer_load_dword v209, v41, s[44:47], 0 offen')
        g(f's_mov_b32 s40, s{pOUT}'); g(f's_mov_b32 s41, s{pOUT+1}'); g(f's_mov_b32 s42, {2048*512*2}')
        g('buffer_load_dword v210, v41, s[40:43], 0 offen')
    def readlist(set_, ks):
        L=[f'ds_read_b128 {R(set_,4)}, v{12+ks}']
        for t in range(3):
            for e in range(2):
                L.append(f'ds_read_b64_tr_b16 {R(set_+4+4*t+2*e,2)}, v17 offset:{ks*3072+e*768+t*64}')
        return L
    def mfmalist(set_):
        return [f'v_mfma_f32_32x32x16_bf16 {R(accQ,16)}, {R(set_+4,4)}, {R(set_,4)}, {R(accQ,16)}',
                f'v_mfma_f32_32x32x16_bf16 {R(accK,16)}, {R(set_+8,4)}, {R(set_,4)}, {R(accK,16)}',
                f'v_mfma_f32_32x32x16_bf16 {R(accV,16)}, {R(set_,4)}, {R(set_+12,4)}, {R(accV,16)}']
    g('s_waitcnt lgkmcnt(0)')
    g('s_add_u32 s64, s64, 0x7f4a7c15')
    g('s_addc_u32 s65, s65, 0x9e3779b9')
    stamp(g,1)
    for st in range(8):
        if st==5: fstamp(g,0)
        g('s_barrier')
        if st==5: fstamp(g,1)
        if st==6: fstamp(g,10)
        if st==0: stamp(g,2)
        for ks in range(4):
            rl=readlist(FS0[ks],ks); ml=mfmalist(FS0[(ks+2)%4])
            if st==5: fstamp(g,2+2*ks)
            if st==0 and ks<2:
                for r_ in rl: g(r_)
                continue
            g('s_waitcnt lgkmcnt(7)')
            if st==5: fstamp(g,3+2*ks)
            g(ml[0]); g(rl[0]); g(rl[1]); g(rl[2])
            g(ml[1]); g(rl[3]); g(rl[4])
            if 'noq' not in OPT: g(ml[2])
            g(rl[5]); g(rl[6])
        if st<7:
            sr='s57' if A_SLOT[st+1]>A_SLOT[st] else 's56'
            for r in (12,13,14,15,17): g(f'v_add_u32 v{r}, {sr}, v{r}')
    g('s_waitcnt lgkmcnt(7)')
    for m in mfmalist(FS0[2]): g(m)
    g('s_waitcnt lgkmcnt(0)')
    for m in mfmalist(FS0[3]): g(m)
    stamp(g,3)
    estamp(g,0)
    g('s_barrier')
    g('s_setprio 3')
    estamp(g,1)
    CSQ=128; CSK=144; AV=160; MV=176
    g('ds_read_b32 v21, v20')
    g(f'ds_read_b32 v22, v20 offset:{L_MU-L_A}')
    for gg in range(4): g(f'ds_read_b128 {R(CSK+4*gg,4)}, v24 offset:{(32+8*gg)*4}')
    g('ds_read_b32 v26, v25')
    for gg in range(4): g(f'ds_read_b128 {R(MV+4*gg,4)}, v27 offset:{8*gg*4+L_MU-L_A}')
    for gg in range(4): g(f'ds_read_b128 {R(AV+4*gg,4)}, v27 offset:{8*gg*4}')
    g('s_waitcnt lgkmcnt(13)')
    g('v_mul_f32 v38, v21, v22')
    g(f'v_mul_f32 v34, {f2u(QSCALE):#x}, v21')
    g('v_sub_f32 v38, 0, v38')
    g(f'v_mul_f32 v36, {f2u(QSCALE):#x}, v38')
    g('s_waitcnt lgkmcnt(9)')
    estamp(g,2)
    for r in range(16): g(f'v_mul_f32 v{CSK+r}, v38, v{CSK+r}')
    for r in range(16): g(f'v_fmac_f32 v{CSK+r}, v21, v{accK+r}')
    for i in range(8): g(f'v_cvt_pk_bf16_f32 v{accK+i}, v{CSK+2*i}, v{CSK+2*i+1}')
    estamp(g,3)
    g(f'buffer_store_dwordx4 {R(accK,4)}, v29, {W_}, s52 offen sc1')
    g(f'buffer_store_dwordx4 {R(accK+4,4)}, v29, {W_}, s53 offen sc1')
    estamp(g,4)
    for gg in range(4): g(f'ds_read_b128 {R(CSQ+4*gg,4)}, v24 offset:{(8*gg)*4}')
    g('s_waitcnt lgkmcnt(8)')
    g('v_sub_f32 v26, 0, v26')
    g('s_waitcnt lgkmcnt(4)')
    for r in range(16): g(f'v_fmac_f32 v{accV+r}, v26, v{MV+r}')
    for r in range(16): g(f'v_mul_f32 v{accV+r}, v{accV+r}, v{AV+r}')
    for i in range(8): g(f'v_cvt_pk_bf16_f32 v{AV+i}, v{accV+2*i}, v{accV+2*i+1}')
    estamp(g,5)
    g(f'buffer_store_dwordx4 {R(AV,4)}, v30, {W_}, s54 offen sc1')
    g(f'buffer_store_dwordx4 {R(AV+4,4)}, v30, {W_}, s54 offen offset:512 sc1')
    g('s_waitcnt lgkmcnt(0)')
    estamp(g,6)
    for r in range(16): g(f'v_mul_f32 v{CSQ+r}, v36, v{CSQ+r}')
    for r in range(16): g(f'v_fmac_f32 v{CSQ+r}, v34, v{accQ+r}')
    for i in range(8): g(f'v_cvt_pk_bf16_f32 v{accQ+i}, v{CSQ+2*i}, v{CSQ+2*i+1}')
    g(f'buffer_store_dwordx4 {R(accQ,4)}, v28, {W_}, s50 offen sc1')
    g(f'buffer_store_dwordx4 {R(accQ+4,4)}, v28, {W_}, s51 offen sc1')
    estamp(g,7)
    for (b,src) in ((42,CSK),(46,CSQ)):
        g(f'v_mul_f32 v{b}, v{src}, v{src}'); g(f'v_mul_f32 v{b+1}, v{src+8}, v{src+8}')
        for i in range(1,8):
            g(f'v_fmac_f32 v{b}, v{src+i}, v{src+i}'); g(f'v_fmac_f32 v{b+1}, v{src+8+i}, v{src+8+i}')
    g(f'v_max3_f32 v38, |v{accV}|, |v{accV+1}|, |v{accV+2}|')
    g('v_max_f32 v34, v42, v43')
    g('v_max_f32 v35, v46, v47')
    for r in range(3,15,2): g(f'v_max3_f32 v38, v38, |v{accV+r}|, |v{accV+r+1}|')
    g(f'v_max_f32 v36, v38, |v{accV+15}|')
    g('s_nop 1')
    for sh in (1,2,4,8):
        for r in (34,35,36): g(f'v_max_f32_dpp v{r}, v{r}, v{r} row_shr:{sh} row_mask:0xf bank_mask:0xf')
    for r in (34,35,36): g(f'v_max_f32_dpp v{r}, v{r}, v{r} row_bcast:15 row_mask:0xa bank_mask:0xf')
    g('s_nop 1')
    estamp(g,8)
    g('s_mov_b32 s66, 0x80000000')
    g('s_mov_b32 s67, 0x80000000')
    g('s_mov_b64 exec, s[66:67]')
    g(f'buffer_store_dword v34, v31, {W_}, s55 offen sc1')
    g(f'buffer_store_dword v35, v31, {W_}, s55 offen offset:512 sc1')
    g(f'buffer_store_dword v36, v31, {W_}, s55 offen offset:1024 sc1')
    g('s_mov_b64 exec, -1')
    stamp(g,4)
    estamp(g,9)
    g('s_setprio 0')
    g('s_waitcnt vmcnt(0)')
    estamp(g,10)
    g('s_lshl_b32 s48, s39, 4')
    g('s_add_u32 s48, s48, s38')
    g('s_lshl_b32 s48, s48, 7')
    g(f's_add_u32 s48, s48, {F_1}')
    signal(g, L_CNT, 3, 's48', 40)
    stamp(g,5)

    h=Asm()
    h.label('K_G1')
    h('s_setprio 2')
    sX,sWQ,sW1,sB1=24,32,40,44
    XF=128
    h('v_lshrrev_b32 v20, 3, v1')
    h('v_and_b32 v21, 7, v1')
    h('v_lshrrev_b32 v22, 4, v1')
    h('v_xor_b32 v21, v21, v22')
    h('v_lshlrev_b32 v20, 10, v20')
    h('v_lshlrev_b32 v22, 4, v21')
    h('v_add_u32 v2, v20, v22')
    h('v_xor_b32 v22, 64, v22')
    h('v_add_u32 v22, 7168, v22')
    h('v_add_u32 v18, v20, v22')
    h('v_add_u32 v19, 14336, v2')
    h('v_add_u32 v20, 14336, v18')
    VX=[2,18,19,20]
    VW=[21,22,23]; VW1=[24,25,26]
    h('s_lshl_b32 s50, s38, 17')
    h('s_lshl_b32 s51, s37, 15')
    h('s_add_u32 s50, s50, s51')
    h('s_lshl_b32 s53, s37, 12')
    h('s_and_b32 s58, s39, 3')
    h('s_lshl_b32 s58, s58, 1')
    h('s_add_u32 s58, s58, s38')
    h('s_and_b32 s58, s58, 7')
    def dmaX(st):
        slot=A_SLOT[st]*SLOT; L=[]
        L.append((f's_add_u32 s61, s58, {st}',None))
        L.append(('s_and_b32 s61, s61, 7',None))
        L.append((f's_add_u32 m0, s53, {slot}',None))
        L.append(('s_lshl_b32 s55, s61, 7',None))
        L.append(('s_add_u32 s55, s55, s50',None))
        for i in range(4):
            L.append((f'buffer_load_dwordx4 v{VX[i]}, {SR(sX)}, s55 offen offset:{1024*i} lds',f'A{st}'))
        return L
    def emit(e, dmas):
        for (ins,tag) in dmas:
            if tag: e.vm(tag,ins)
            else: e(ins)
    h('s_waitcnt lgkmcnt(0)')
    srd(h,sX,pX,2048*512*2)
    emit(h,dmaX(0))
    for p in range(3):
        h(f'v_add_u32 v27, {64*p}, v1')
        h('v_mul_u32_u24 v28, 43691, v27')
        h('v_lshrrev_b32 v28, 19, v28')
        h('v_mul_u32_u24 v29, 12, v28')
        h('v_sub_u32 v29, v27, v29')
        h('v_lshrrev_b32 v30, 2, v29')
        h('v_lshlrev_b32 v30, 10, v30')
        h('v_and_b32 v31, 3, v29')
        h('v_lshlrev_b32 v31, 4, v31')
        h('v_mul_u32_u24 v32, 3072, v28')
        h(f'v_add3_u32 v{VW[p]}, v32, v30, v31')
        if p: h(f'v_subrev_u32 v{VW[p]}, {1024*p}, v{VW[p]}')
        h(f'v_mov_b32 v{33+2*p}, v28')
        h(f'v_mov_b32 v{34+2*p}, v29')
    h('s_mul_i32 s51, s37, 49152')
    h('s_lshl_b32 s52, s39, 6')
    h('s_add_u32 s51, s51, s52')
    h('s_mul_i32 s54, s37, 3072')
    srd(h,sWQ,pWQ,512*1536*2)
    def dmaW(st):
        slot=A_SLOT[st]*SLOT; L=[]
        L.append((f's_add_u32 s61, s58, {st}',None))
        L.append(('s_and_b32 s61, s61, 7',None))
        L.append((f's_add_u32 m0, s54, {slot+XS}',None))
        L.append((f's_mul_i32 s55, s61, {64*3072}',None))
        L.append(('s_add_u32 s55, s55, s51',None))
        for p in range(3):
            L.append((f'buffer_load_dwordx4 v{VW[p]}, {SR(sWQ)}, s55 offen offset:{1024*p} lds',f'A{st}'))
        return L
    emit(h,dmaW(0))
    for p in range(3):
        h(f'v_mul_u32_u24 v32, 2752, v{33+2*p}')
        h(f'v_lshlrev_b32 v31, 4, v{34+2*p}')
        h(f'v_add_u32 v{VW1[p]}, v32, v31')
        if p: h(f'v_subrev_u32 v{VW1[p]}, {1024*p}, v{VW1[p]}')
    h('s_mul_i32 s52, s39, 3')
    h('s_lshl_b32 s56, s39, 1')
    h('s_add_u32 s56, s56, 11')
    h('s_cmp_lt_u32 s39, 11')
    h('s_cselect_b32 s48, s52, s56')
    h('s_cselect_b32 s49, 3, 2')
    h('s_mul_i32 s52, s37, 44032')
    h('s_lshl_b32 s56, s48, 6')
    h('s_add_u32 s52, s52, s56')
    def dmaA(st): return dmaX(st)+dmaW(st)
    def dmaB(st):
        L=[]
        L.append((f's_add_u32 s61, s58, {st}',None))
        L.append(('s_and_b32 s61, s61, 7',None))
        L.append((f's_add_u32 m0, s54, {W1_ADDR[st]}',None))
        L.append((f's_mul_i32 s55, s61, {64*2752}',None))
        L.append(('s_add_u32 s55, s55, s52',None))
        for p in range(3):
            L.append((f'buffer_load_dwordx4 v{VW1[p]}, {SR(sW1)}, s55 offen offset:{1024*p} lds',f'B{st}'))
        return L
    stamp(h,1)
    NINIT=3
    for o_ in OPT:
        if o_.startswith('NI='): NINIT=int(o_[3:])
    for st in range(1,NINIT): emit(h,dmaA(st))
    stamp(h,2)
    srd(h,sW1,pW1,512*1376*2); srd(h,sWS,pWS,WS_SIZE); srd(h,sB1,pB1,1376*2)
    h(f's_load_dwordx2 s[64:65], s[{pWS}:{pWS+1}], 0')
    common_lds_addr(h)
    h('v_lshlrev_b32 v27, 2, v1')
    h.vm('b1', f'buffer_load_dword v31, v27, {SR(sB1)}, s56 offen')
    h('s_cmp_eq_u32 s37, 3')
    h('s_cselect_b32 s57, 0, s37')
    h('s_lshl_b32 s3, s57, 6')
    h(f's_add_u32 s3, s3, {XS}')
    h('v_add_u32 v17, s3, v16')
    PAT=112; ONES=8; SUMA=[116,120]; GRA=[124,104]; CSA=108
    h('v_and_b32 v27, 15, v1')
    h('v_bfe_u32 v28, v1, 4, 1')
    h('v_cmp_eq_u32 vcc, v27, v28')
    h('v_mov_b32 v29, 0x3f803f80')
    h('s_nop 0')
    h(f'v_cndmask_b32 v{PAT}, 0, v29, vcc')
    for r in range(1,4): h(f'v_mov_b32 v{PAT+r}, v{PAT}')
    for r in range(4): h(f'v_mov_b32 v{ONES+r}, v29')
    SIDX=99; SPA=100
    h('v_and_b32 v30, 1, v1')
    h('v_cmp_eq_u32 vcc, 1, v30')
    h('v_mov_b32 v30, 0x44444444')
    h('v_mov_b32 v32, 0xeeeeeeee')
    h(f'v_cndmask_b32 v{SIDX}, v30, v32, vcc')
    h('v_and_b32 v30, 14, v1')
    h('v_cmp_eq_u32 vcc, 0, v30')
    h('v_cmp_eq_u32 s[66:67], 2, v30')
    h('s_nop 0')
    h(f'v_cndmask_b32 v{SPA}, 0, v29, vcc')
    h(f'v_cndmask_b32 v{SPA+2}, 0, v29, s[66:67]')
    h(f'v_mov_b32 v{SPA+1}, v{SPA}')
    h(f'v_mov_b32 v{SPA+3}, v{SPA+2}')
    for b in SUMA+GRA+[CSA]:
        for r in range(4): h(f'v_mov_b32 v{b+r}, 0')
    h('v_lshrrev_b32 v28, 4, v1')
    h('v_bfe_u32 v29, v1, 1, 3')
    h('v_xor_b32 v28, v28, v29')
    h('v_lshlrev_b32 v28, 4, v28')
    h('v_lshlrev_b32 v27, 7, v27')
    h('s_lshl_b32 s3, s37, 12')
    h('v_add3_u32 v5, v27, v28, s3')
    h('v_xor_b32 v6, 64, v5')
    TMP=40; XS16=56
    h('v_and_b32 v27, 3, v1')
    h('v_cmp_eq_u32 s[66:67], 1, v27')
    h('v_cmp_eq_u32 s[68:69], 2, v27')
    h('v_cmp_eq_u32 s[44:45], 3, v27')
    h('s_mov_b32 s46, 0x00f0000f')
    h('s_mov_b32 s47, 0xf0000f00')
    h('v_and_b32 v28, 15, v1')
    h('v_lshlrev_b32 v28, 2, v28')
    h('s_lshl_b32 s3, s37, 7')
    h('v_add_u32 v28, s3, v28')
    h(f'v_add_u32 v28, {L_A}, v28')
    h('v_lshlrev_b32 v29, 2, v1')
    h('s_lshl_b32 s55, s57, 7')
    h(f's_add_u32 s55, s55, {L_CS}')
    h('v_add_u32 v29, s55, v29')
    h('s_waitcnt lgkmcnt(0)')
    h('s_add_u32 s64, s64, 0x7f4a7c15')
    h('s_addc_u32 s65, s65, 0x9e3779b9')
    h(f's_mov_b32 s59, {SLOT}')
    h(f's_mov_b32 s60, {(-4*SLOT)&0xffffffff:#x}')
    if NINIT==3: sched={0:dmaA(3)+dmaA(4), 1:dmaB(0), 2:dmaA(5), 3:dmaA(6), 4:dmaA(7), 5:dmaB(1)+dmaB(2), 6:dmaB(3)+dmaB(4), 7:[]}
    elif NINIT==2: sched={0:dmaA(2)+dmaA(3), 1:dmaA(4)+dmaB(0), 2:dmaA(5), 3:dmaA(6), 4:dmaA(7), 5:dmaB(1)+dmaB(2), 6:dmaB(3)+dmaB(4), 7:[]}
    else: sched={0:dmaA(1)+dmaA(2), 1:dmaA(3)+dmaA(4), 2:dmaA(5)+dmaB(0), 3:dmaA(6), 4:dmaA(7), 5:dmaB(1)+dmaB(2), 6:dmaB(3)+dmaB(4), 7:[]}
    for st in range(8):
        if st==5: fstamp(h,0)
        h.wait_vm(f'A{st}')
        if st==5: fstamp(h,1)
        h('s_barrier')
        if st==5: fstamp(h,2)
        if st==0: stamp(h,3)
        dm=sched[st]
        for u in range(2):
            for kk in range(2):
                h(f'ds_read_b128 {R(XS16+8*u+4*kk,4)}, v{5+kk} offset:{2048*u}')
        for ks in range(4):
            for e in range(2):
                h(f'ds_read_b64_tr_b16 {R(TMP+4*ks+2*e,2)}, v17 offset:{ks*3072+e*768}')
        if st==5: fstamp(h,3)
        k=0; nv=0
        while nv<2 and k<len(dm):
            if dm[k][1]: h.vm(dm[k][1],dm[k][0]); nv+=1
            else: h(dm[k][0])
            k+=1
        val=[]
        for u in range(2):
            val.append(f'v_smfmac_f32_16x16x64_bf16 {R(SUMA[u],4)}, {R(ONES,4)}, {R(XS16+8*u,8)}, v{SIDX}')
            for kk in range(2):
                x=XS16+8*u+4*kk
                val.append(f'ds_read_b128 {R(XF+16*st+4*(2*u+kk),4)}, v{12+2*u+kk}')
                val.append(f'v_mfma_f32_16x16x32_bf16 {R(GRA[u],4)}, {R(x,4)}, {R(x,4)}, {R(GRA[u],4)}')
        val.append('s_waitcnt lgkmcnt(4)')
        for p_ in range(2):
            val.append(f'v_smfmac_f32_16x16x64_bf16 {R(CSA,4)}, {R(SPA,4)}, {R(TMP+8*p_,8)}, v{SIDX}')
        if st<7:
            d=(A_SLOT[st+1]-A_SLOT[st])*SLOT
            sr='s59' if d==SLOT else 's60'
            for r in (12,13,14,15,17,5,6): val.append(f'v_add_u32 v{r}, {sr}, v{r}')
        if st==5: fstamp(h,4)
        h('s_waitcnt lgkmcnt(8)')
        if st==5: fstamp(h,5)
        rest=dm[k:]; vi=0; fs_=6
        for (ins,tag) in rest:
            if tag:
                for _ in range(2):
                    if vi<len(val): h(val[vi]); vi+=1
                h.vm(tag,ins)
                if st==5: fstamp(h,fs_); fs_+=1
            else: h(ins)
        while vi<len(val):
            h(val[vi]); vi+=1
            if st==5 and val[vi-1].startswith('s_waitcnt'): fstamp(h,fs_); fs_+=1
        if st==5: fstamp(h,fs_); fs_+=1
        if st==6: fstamp(h,15)
    h('s_waitcnt lgkmcnt(0)')
    h('s_nop 1')
    for u in range(2):
        gr=GRA[u]; q=32+2*u
        h(f'v_cndmask_b32 v{q}, v{gr}, v{gr+1}, s[66:67]')
        h(f'v_cndmask_b32 v{q}, v{q}, v{gr+2}, s[68:69]')
        h(f'v_cndmask_b32 v{q}, v{q}, v{gr+3}, s[44:45]')
    for u in range(2):
        q=32+2*u; m=SUMA[u]
        h(f'v_add_f32 v{m}, v{m}, v{m+1}')
        h(f'v_mul_f32 v{q}, {f2u(1/512):#x}, v{q}')
        h(f'v_mul_f32 v{m}, {f2u(1/512):#x}, v{m}')
    h(f'v_add_f32 v{CSA}, v{CSA}, v{CSA+1}')
    h(f'v_add_f32 v{CSA+2}, v{CSA+2}, v{CSA+3}')
    for u in range(2):
        q=32+2*u; m=SUMA[u]
        h(f'v_fma_f32 v{q}, -v{m}, v{m}, v{q}')
        h(f'v_max_f32 v{q}, 0, v{q}')
        h(f'v_add_f32 v{q+1}, {f2u(1e-5):#x}, v{q}')
    h('s_mov_b64 exec, 0xffff')
    h(f'ds_write_b32 v29, v{CSA}')
    h(f'ds_write_b32 v29, v{CSA+2} offset:64')
    h('s_mov_b64 exec, -1')
    for u in range(2):
        q=32+2*u
        h(f'v_rsq_f32 v{q+1}, v{q+1}')
    h('s_mov_b64 exec, s[46:47]')
    for u in range(2):
        q=32+2*u; m=SUMA[u]
        h(f'ds_write_b32 v28, v{m} offset:{64*u+L_MU-L_A}')
        h(f'ds_write_b32 v28, v{q+1} offset:{64*u}')
    h('s_mov_b64 exec, -1')
    h('s_waitcnt lgkmcnt(0)')
    stamp(h,4)
    h('s_barrier')
    emit(h,dmaB(5)+dmaB(6)+dmaB(7))
    for u in range(2):
        q=32+2*u; m=SUMA[u]
        h(f'v_mul_f32 v{m+1}, v{q+1}, v{q+1}')
        h(f'v_mul_f32 v{m+1}, v{m+1}, v{q}')
        h(f'v_add_f32 v{m+1}, {f2u(1e-5):#x}, v{m+1}')
    for u in range(2):
        m=SUMA[u]
        h(f'v_rsq_f32 v{m+1}, v{m+1}')
    h('s_lshl_b32 s3, s37, 7')
    h('v_lshlrev_b32 v27, 2, v3')
    for u in range(2):
        q=32+2*u; m=SUMA[u]
        h(f'v_mul_f32 v{m+2}, v{m+1}, v{q+1}')
        h(f'v_mul_f32 v{m+3}, v{m+2}, v{m}')
    h('s_mov_b64 exec, s[46:47]')
    for u in range(2):
        m=SUMA[u]
        h(f'ds_write_b32 v28, v{m+2} offset:{64*u+L_A2-L_A}')
        h(f'ds_write_b32 v28, v{m+3} offset:{64*u+L_A2M-L_A}')
    h('s_mov_b64 exec, -1')
    h('v_add_u32 v28, s3, v27')
    h(f'v_add_u32 v28, {L_A2}, v28')
    h('s_waitcnt lgkmcnt(0)')
    h('ds_read_b32 v38, v28')
    h(f'ds_read_b32 v30, v28 offset:{L_A2M-L_A2}')
    h('v_lshlrev_b32 v34, 16, v31')
    h('v_and_b32 v35, 0xffff0000, v31')
    h('v_lshlrev_b32 v28, 3, v1')
    h(f'v_add_u32 v28, {L_B1}, v28')
    h('v_cmp_gt_u32 vcc, 48, v1')
    h('s_and_saveexec_b64 s[66:67], vcc')
    h('ds_write_b64 v28, v[34:35]')
    h('s_mov_b64 exec, s[66:67]')
    h('s_mov_b32 s62, 0x00030003')
    h('s_mov_b32 s63, 0x00030003')
    ACC=[64,80,96]
    TS=[57,59,60]
    for sl in range(3):
        h(f's_add_u32 s3, s37, {sl}')
        h('s_cmp_ge_u32 s3, 3')
        h('s_cselect_b32 s55, 3, 0')
        h('s_sub_u32 s3, s3, s55')
        h('s_cmp_ge_u32 s3, 3')
        h('s_cselect_b32 s55, 3, 0')
        h('s_sub_u32 s3, s3, s55')
        h(f's_mov_b32 s{TS[sl]}, s3')
    SPB=8; SIB=5; CS1A=124
    for r in range(4): h(f'v_mov_b32 v{SPB+r}, v{SPA+r}')
    h(f'v_mov_b32 v{SIB}, v{SIDX}')
    for r in range(4): h(f'v_mov_b32 v{CS1A+r}, 0')
    for r in range(64,112): h(f'v_mov_b32 v{r}, 0')
    h(f's_lshl_b32 s3, s{TS[0]}, 6')
    h('v_add_u32 v12, s3, v16')
    h('v_add_u32 v13, 86016, v12')
    h('v_add_u32 v14, 126976, v12')
    def waddr(n,e):
        st,ks=divmod(n,4); base=W1_ADDR[st]
        if base<65536-12288: reg,rel=12,base
        elif base<126976: reg,rel=13,base-86016
        else: reg,rel=14,base-126976
        return reg, rel+ks*3072+e*768
    FSET=[40,44,48,52]
    C1=-2*1.4426950408889634*0.7978845608028654
    C2=C1*0.044715
    h(f's_mov_b32 s66, {f2u(C2):#x}')
    h(f'v_mov_b32 v32, {f2u(C1):#x}')
    h('v_lshlrev_b32 v23, 4, v4')
    h('v_lshlrev_b32 v15, 4, v1')
    h('s_lshl_b32 s53, s38, 2')
    h('s_add_u32 s53, s53, s37')
    h('s_mul_i32 s53, s53, 86')
    SO=[67,68,69]
    CA=[33,34,35]
    for sl in range(3):
        h(f's_add_u32 s54, s48, s{TS[sl]}')
        h('s_lshl_b32 s54, s54, 1')
        h('s_add_u32 s54, s54, s53')
        h('s_lshl_b32 s54, s54, 10')
        h(f's_add_u32 s54, s54, {WS_H}')
        h(f's_cmp_ge_u32 s{TS[sl]}, s49')
        h(f's_cselect_b32 s{SO[sl]}, 0x7ff00000, s54')
        h(f's_lshl_b32 s3, s{TS[sl]}, 7')
        h(f'v_add_u32 v{CA[sl]}, s3, v23')
        h(f'v_add_u32 v{CA[sl]}, {L_CS1}, v{CA[sl]}')
    h('v_lshlrev_b32 v29, 2, v1')
    h(f's_lshl_b32 s55, s{TS[0]}, 7')
    h(f's_add_u32 s55, s55, {L_CS1}')
    h('v_add_u32 v29, s55, v29')
    h(f'v_mov_b32 v17, {L_CNT+12}')
    h('v_mov_b32 v7, 1')
    h.wait_vm(['B0','B1'])
    h('s_waitcnt lgkmcnt(0)')
    gbar_arrive(h, 17, 7)
    gbar_wait(h, 17, 6, 4)
    h.lgq=[]
    bar={8:(['B2','B3','B4'],8), 20:(['B5','B6','B7'],12)}
    NM=96
    def wreads(m):
        sl,n=divmod(m,32); fs=FSET[m%4]
        if n==0 and sl>0:
            h(f's_sub_u32 s3, s{TS[sl]}, s{TS[sl-1]}')
            h('s_lshl_b32 s3, s3, 6')
            for rg in (12,13,14): h(f'v_add_u32 v{rg}, s3, v{rg}')
        if sl==0 and n in bar:
            gbar_wait(h, 17, 6, bar[n][1]); h.lgq=[]
        for e in range(2):
            reg,off=waddr(n,e)
            h.lg(f'W{m}', f'ds_read_b64_tr_b16 {R(fs+2*e,2)}, v{reg} offset:{off}')
    TCS=[112,56]; TB1=[120,18]
    def ureads(sl,hf,k):
        cs=TCS[k%2]; b1=TB1[k%2]; q=[]
        for gg in range(2):
            q.append((4,'lg',(f'G{sl}{hf}', f'ds_read_b128 {R(cs+4*gg,4)}, v{CA[sl]} offset:{(16*hf+8*gg)*4}'),0))
            q.append((4,'lg',(f'G{sl}{hf}', f'ds_read_b128 {R(b1+4*gg,4)}, v{CA[sl]} offset:{(16*hf+8*gg)*4+L_B1-L_CS1}'),0))
        return q
    def ucomp(sl,hf,k,mmin):
        cs=TCS[k%2]; b1=TB1[k%2]; acc=ACC[sl]+8*hf; q=[]
        q.append((0,'wait',f'G{sl}{hf}',mmin))
        for r in range(8): q.append((4,'i',f'v_fma_f32 v{b1+r}, -v{cs+r}, v30, v{b1+r}',mmin))
        for r in range(8): q.append((4,'i',f'v_fma_f32 v{acc+r}, v{acc+r}, v38, v{b1+r}',mmin))
        for r in range(8): q.append((4,'i',f'v_mul_f32 v{cs+r}, v{acc+r}, v{acc+r}',mmin))
        for r in range(8): q.append((4,'i',f'v_fma_f32 v{cs+r}, v{cs+r}, s66, v32',mmin))
        for r in range(8): q.append((4,'i',f'v_mul_f32 v{cs+r}, v{cs+r}, v{acc+r}',mmin))
        for r in range(8): q.append((8,'i',f'v_exp_f32 v{cs+r}, v{cs+r}',mmin))
        for r in range(8): q.append((4,'i',f'v_add_f32 v{cs+r}, 1.0, v{cs+r}',mmin))
        for r in range(8): q.append((8,'i',f'v_rcp_f32 v{cs+r}, v{cs+r}',mmin))
        for r in range(8): q.append((4,'i',f'v_mul_f32 v{acc+r}, v{acc+r}, v{cs+r}',mmin))
        if 'lateh' in OPT:
            for i in range(4): q.append((4,'i',f'v_cvt_pk_bf16_f32 v{acc+i}, v{acc+2*i}, v{acc+2*i+1}',mmin))
            return q
        for i in range(4): q.append((4,'i',f'v_cvt_pk_bf16_f32 v{b1+i}, v{acc+2*i}, v{acc+2*i+1}',mmin))
        q.append((4,'i',f'buffer_store_dwordx4 {R(b1,4)}, v15, {W_}, s{SO[sl]} offen offset:{1024*hf} sc1',mmin))
        q.append((0,'i','s_nop 1',mmin))
        return q
    queue=[]
    def drain(budget, m):
        while queue and budget>0 and queue[0][3]<=m:
            c,kind,p,_=queue.pop(0)
            if kind=='lg': h.lg(p[0],p[1])
            elif kind=='wait': h.wait_lg(p)
            elif kind=='gbar': gbar_wait(h, 17, 6, p); h.lgq=[]
            else: h(p)
            budget-=c
    for m in range(3): wreads(m)
    uk=0
    for m in range(NM):
        sl,n=divmod(m,32)
        if sl==0 and (n+4) in bar:
            h.wait_vm(bar[n+4][0]); gbar_arrive(h, 17, 7); h.lgq.append('CNT')
        h.wait_lg(f'W{m}')
        fs=FSET[m%4]
        h(f'v_mfma_f32_32x32x16_bf16 {R(ACC[sl],16)}, {R(fs,4)}, {R(XF+4*n,4)}, {R(ACC[sl],16)}')
        if sl==0 and n%2==1:
            h(f'v_smfmac_f32_16x16x64_bf16 {R(CS1A,4)}, {R(SPB,4)}, {R(FSET[(m-1)%4],8)}, v{SIB}')
        if m+3<NM: wreads(m+3)
        if m==33:
            h('s_nop 3')
            h(f'v_add_f32 v{CS1A}, v{CS1A}, v{CS1A+1}')
            h(f'v_add_f32 v{CS1A+2}, v{CS1A+2}, v{CS1A+3}')
            h('s_mov_b64 exec, 0xffff')
            h.lg('CSW', f'ds_write_b32 v29, v{CS1A}')
            h.lg('CSW', f'ds_write_b32 v29, v{CS1A+2} offset:64')
            h('s_mov_b64 exec, -1')
            h.wait_lg('CSW')
            gbar_arrive(h, 17, 7); h.lgq.append('CNT')
            stamp(h,5)
            queue+=ureads(0,0,0)+ureads(0,1,1)+ucomp(0,0,0,35)
            queue+=[(0,'gbar',16,0)]+ureads(1,0,2)+ucomp(0,1,1,35)
            queue+=ureads(1,1,3)+ucomp(1,0,2,66)
            queue+=ureads(2,0,4)+ucomp(1,1,3,66)
            queue+=ureads(2,1,5)+ucomp(2,0,4,99)+ucomp(2,1,5,99)
        if m>=33: drain(16, m)
    gbar_arrive(h, 17, 7); h.lgq.append('CNT')
    h('s_nop 7')
    drain(1<<30, 1000)
    if 'lateh' in OPT:
        lab=newlab('HW'); done=newlab('HWD')
        h(f'v_mov_b32 v12, {L_CNT+24}')
        h.label(lab)
        h('ds_read_b32 v13, v12')
        h('s_waitcnt lgkmcnt(0)')
        h('v_readfirstlane_b32 s3, v13')
        h('s_nop 0')
        h('s_cmp_eq_u32 s3, 0')
        h(f's_cbranch_scc0 {done}')
        h('s_sleep 8')
        h(f's_branch {lab}')
        h.label(done)
        for sl in range(3):
            for hf in range(2):
                h(f'buffer_store_dwordx4 {R(ACC[sl]+8*hf,4)}, v15, {W_}, s{SO[sl]} offen offset:{1024*hf} sc1')
    stamp(h,6)
    h('s_waitcnt vmcnt(0)')
    h.vmq=[]
    h('s_lshl_b32 s48, s38, 4')
    h('s_add_u32 s48, s48, s39')
    h('s_lshl_b32 s48, s48, 7')
    h(f's_add_u32 s48, s48, {F_2}')
    signal(h, L_CNT+4, 3, 's48', 40)

    h('s_setprio 2' if 'g2hi' in OPT else 's_setprio 0')
    h('s_and_b32 s52, s2, 7')
    h('s_lshr_b32 s53, s2, 3')
    h('s_and_b32 s54, s53, 3')
    h('s_lshl_b32 s52, s52, 2')
    h('s_add_u32 s58, s52, s54')
    h('s_lshr_b32 s59, s53, 2')
    h('v_lshlrev_b32 v5, 4, v1')
    h('v_lshlrev_b32 v8, 7, v1')
    sWw=24
    h('s_lshr_b32 s52, s2, 3')
    h('s_lshl_b32 s52, s52, 2')
    h('s_add_u32 s52, s52, s37')
    h('s_lshl_b32 s52, s52, 14')
    h(f's_cmp_ge_u32 s52, {1376*1024}')
    h(f's_cselect_b32 s{sWw}, s{pWO}, s{pW2}')
    h(f's_cselect_b32 s{sWw+1}, s{pWO+1}, s{pW2+1}')
    h(f's_cselect_b32 s53, {1376*1024}, 0')
    h('s_sub_u32 s52, s52, s53')
    h('s_cmp_eq_u32 s53, 0')
    h(f's_mov_b32 s26, {512*512*2}')
    h(f's_cselect_b32 s26, {1376*512*2}, s26')
    h(f's_mov_b32 s{sWw+3}, 0x00020000')
    for k in range(0 if 'nowarm' in OPT else 16):
        h(f'buffer_load_dwordx4 v[40:43], v5, {SR(sWw)}, s52 offen offset:{1024*(k%4)}')
        if k%4==3: h('s_add_u32 s52, s52, 4096')
    sW2=24
    h('s_lshr_b32 s52, s58, 1')
    h('s_lshl_b32 s52, s52, 11')
    h(f's_add_u32 s52, s52, {F_2}')
    stamp(h,7)
    poll_wg(h, 16, 'v8', 's52', 26, 4, L_CNT+20)
    stamp(h,8)
    srd(h,sW2,pW2,1376*512*2)
    h('s_sub_u32 s60, s36, 4')
    h('s_mul_i32 s61, s60, 22')
    h('s_cmp_eq_u32 s60, 3')
    h('s_cselect_b32 s52, 1, 0')
    h('s_sub_u32 s61, s61, s52')
    h('s_cmp_lt_u32 s60, 2')
    h('s_cselect_b32 s62, 22, 21')
    h('s_lshl_b32 s63, s59, 1')
    h('s_and_b32 s52, s58, 3')
    h('s_add_u32 s63, s63, s52')
    h('s_sub_u32 s57, s62, s63')
    h('s_add_u32 s61, s61, s63')
    h('s_lshl_b32 s52, s58, 1')
    h('s_mul_i32 s52, s52, 86')
    h('s_add_u32 s52, s52, s61')
    h('s_lshl_b32 s52, s52, 10')
    h(f's_add_u32 s52, s52, {WS_H}')
    h('s_lshl_b32 s54, s61, 14')
    h('s_lshl_b32 s55, s59, 7')
    h('s_add_u32 s54, s54, s55')
    h('s_lshl_b32 s56, s62, 10')
    h('s_lshl_b32 s53, s62, 14')
    h('s_mov_b32 s50, s57')
    h(f's_mul_i32 s55, s60, {RINGSZ}')
    h(f's_add_u32 s55, s55, {L_RING}')
    def wdma_voff(e):
        e('v_lshrrev_b32 v10, 3, v1')
        e('v_lshlrev_b32 v10, 10, v10')
        e('v_and_b32 v11, 7, v1')
        e('v_bfe_u32 v12, v1, 4, 1')
        e('v_lshlrev_b32 v12, 2, v12')
        e('v_xor_b32 v11, v11, v12')
        e('v_lshlrev_b32 v11, 4, v11')
        e('v_add_u32 v10, v10, v11')
        e('v_add_u32 v11, 7168, v10')
    wdma_voff(h)
    h(f'v_add_u32 v17, {86*1024}, v5')
    def tr_addr(e, dst, base_s):
        e('v_bfe_u32 v13, v1, 2, 2')
        e('v_lshlrev_b32 v14, 2, v4')
        e('v_add_u32 v14, v14, v13')
        e('v_lshlrev_b32 v14, 7, v14')
        e('v_bfe_u32 v15, v1, 4, 1')
        e('v_lshlrev_b32 v15, 1, v15')
        e('v_and_b32 v16, 1, v1')
        e('v_add_u32 v15, v15, v16')
        e('v_lshrrev_b32 v13, 1, v13')
        e('v_lshlrev_b32 v13, 2, v13')
        e('v_xor_b32 v15, v15, v13')
        e('v_lshlrev_b32 v15, 4, v15')
        e('v_bfe_u32 v16, v1, 1, 1')
        e('v_lshlrev_b32 v16, 3, v16')
        e('v_add3_u32 v14, v14, v15, v16')
        e(f'v_add_u32 v{dst}, {base_s}, v14')
        e(f'v_xor_b32 v{dst+1}, 64, v{dst}')
    tr_addr(h, 18, 's55')
    def tail_prep(e):
        e('s_and_b32 s37, s36, 1')
        e('s_bfe_u32 s38, s36, 0x10001')
        e('s_lshr_b32 s39, s36, 2')
        srd(e,32,pOUT,2048*512*2)
        e('s_lshl_b32 s3, s58, 6')
        e('s_lshl_b32 s42, s37, 5')
        e('s_add_u32 s3, s3, s42')
        e('v_add_u32 v20, s3, v3')
        e('v_lshlrev_b32 v20, 10, v20')
        e('s_lshl_b32 s3, s59, 6')
        e('s_lshl_b32 s42, s38, 5')
        e('s_add_u32 s3, s3, s42')
        e('s_lshl_b32 s42, s39, 4')
        e('s_add_u32 s3, s3, s42')
        e('v_lshlrev_b32 v21, 3, v4')
        e('v_add_u32 v21, s3, v21')
        e('v_lshlrev_b32 v21, 1, v21')
        e('v_add_u32 v20, v20, v21')
        srd(e,44,pX,2048*512*2)
        e(f'buffer_load_dwordx4 v[24:27], v20, {SR(44)}, 0 offen')
        srd(e,44,pB2,512*2)
        e(f'buffer_load_dwordx4 v[28:31], v21, {SR(44)}, 0 offen')
        e('s_lshl_b32 s3, s39, 15')
        e(f's_add_u32 s3, s3, {L_WO}')
        tr_addr(e, 21, 's3')
        e('s_lshl_b32 s3, s38, 6')
        e('v_xor_b32 v21, s3, v21')
        e('s_lshl_b32 s3, s37, 15')
        e('s_lshl_b32 s42, s39, 14')
        e('s_add_u32 s3, s3, s42')
        e(f's_add_u32 s3, s3, {L_OX}')
        e('v_add_u32 v22, s3, v5')
        e('s_lshl_b32 s3, s38, 4')
        e('s_lshl_b32 s42, s39, 1')
        e('s_add_u32 s3, s3, s42')
        e('s_lshl_b32 s40, s58, 1')
        e('s_add_u32 s40, s40, s37')
        e('s_lshl_b32 s40, s40, 5')
        e('s_add_u32 s40, s40, s3')
        e('s_lshl_b32 s40, s40, 10')
        e(f's_add_u32 s40, s40, {WS_O}')
        e('s_lshl_b32 s41, s37, 5')
        e('s_add_u32 s41, s41, s3')
        e('s_lshl_b32 s41, s41, 10')
        e(f's_add_u32 s41, s41, {L_OX}')
        e('s_and_b32 s3, s36, 3')
        e('s_lshl_b32 s3, s3, 12')
        e(f's_add_u32 s3, s3, {L_EX}')
        e('s_lshl_b32 s42, s39, 11')
        e('s_add_u32 s43, s3, s42')
        e('v_add_u32 v23, s43, v5')
        e('s_xor_b32 s42, s42, 2048')
        e('s_add_u32 s43, s3, s42')
        e('v_add_u32 v6, s43, v5')
        e('s_lshr_b32 s42, s58, 2')
        e('s_lshl_b32 s42, s42, 12')
        e(f's_add_u32 s42, s42, {F_3}')
        e('s_waitcnt vmcnt(0)')
        for i in range(4):
            e(f'v_lshlrev_b32 v{40+2*i}, 16, v{24+i}')
            e(f'v_and_b32 v{41+2*i}, 0xffff0000, v{24+i}')
        for i in range(4):
            e(f'v_lshlrev_b32 v{24}, 16, v{28+i}')
            e(f'v_and_b32 v{25}, 0xffff0000, v{28+i}')
            e(f'v_add_f32 v{40+2*i}, v{40+2*i}, v24')
            e(f'v_add_f32 v{41+2*i}, v{41+2*i}, v25')
        e.vmq=[]
    GA=[[192,208],[224,240]]
    XR=[48+8*i for i in range(XD)]
    WB=[24,32]
    def x_issue(i):
        b=XR[i%XD]
        h.vm(f'X{i}', f'buffer_load_dwordx4 {R(b,4)}, v5, {W_}, s52 offen sc1')
        h.vm(f'X{i}', f'buffer_load_dwordx4 {R(b+4,4)}, v17, {W_}, s52 offen sc1')
        h('s_add_u32 s52, s52, 1024')
        h('s_sub_u32 s57, s57, 1')
        h('s_cmp_eq_u32 s57, 0')
        h('s_cselect_b32 s63, s56, 0')
        h('s_sub_u32 s52, s52, s63')
    def w_issue(i):
        h(f's_add_u32 m0, s55, {(i%WD)*2048}')
        h('s_sub_u32 s50, s50, 1')
        h.vm(f'W{i}', f'buffer_load_dwordx4 v10, {SR(sW2)}, s54 offen lds')
        h.vm(f'W{i}', f'buffer_load_dwordx4 v11, {SR(sW2)}, s54 offen offset:1024 lds')
        h('s_add_u32 s54, s54, 16384')
        h('s_cmp_eq_u32 s50, 0')
        h('s_cselect_b32 s63, s53, 0')
        h('s_sub_u32 s54, s54, s63')
    def g2_wread(i):
        for ct in range(2):
            for e in range(2):
                h(f'ds_read_b64_tr_b16 {R(WB[i%2]+4*ct+2*e,2)}, v{18+ct} offset:{(i%WD)*2048+e*1024}')
    if 'nog2' in OPT: h('s_branch K_G2_DONE')
    h.vmq=[]
    THR=6
    for o_ in OPT:
        if o_.startswith('THR='): THR=int(o_[4:])
    for i in range(XD):
        if i<WD: w_issue(i)
        x_issue(i)
        if THR<63 and len(h.vmq)>THR:
            h(f's_waitcnt vmcnt({THR-4 if THR>4 else 0})'); h.vmq=h.vmq[len(h.vmq)-(THR-4 if THR>4 else 0):] if THR>4 else []
    for tt in range(2):
        for ct in range(2):
            for r in range(16): h(f'v_mov_b32 v{GA[tt][ct]+r}, 0')
    if 'now2warm' not in OPT:
        h('s_mov_b32 s48, s54'); h('s_mov_b32 s49, s50')
        for i in range(WD,22):
            if i%2==0: h.wait_vm_all()
            h.vm('L2', f'buffer_load_dwordx4 v[40:43], v10, {SR(sW2)}, s48 offen')
            h.vm('L2', f'buffer_load_dwordx4 v[40:43], v11, {SR(sW2)}, s48 offen offset:1024')
            h('s_add_u32 s48, s48, 16384')
            h('s_sub_u32 s49, s49, 1')
            h('s_cmp_eq_u32 s49, 0')
            h('s_cselect_b32 s63, s53, 0')
            h('s_sub_u32 s48, s48, s63')
    h.wait_vm_all()
    tail_prep(h)
    lab=newlab('G2W'); done=newlab('G2WD')
    h(f'v_mov_b32 v12, {L_CNT+G2CNT}')
    h.label(lab)
    h('ds_read_b32 v13, v12')
    h('s_waitcnt lgkmcnt(0)')
    h('v_readfirstlane_b32 s3, v13')
    h('s_nop 0')
    h(f's_cmp_ge_u32 s3, {G2TGT}')
    h(f's_cbranch_scc1 {done}')
    h('s_sleep 16')
    h(f's_branch {lab}')
    h.label(done)
    h('s_setprio 2')
    stamp(h,9)
    h.wait_vm_all()
    g2_wread(0)
    NK=22
    for i in range(NK):
        if i+1<NK:
            h.wait_vm([f'W{i+1}'])
            g2_wread(i+1)
            h.wait_vm([f'X{i}'])
            h('s_waitcnt lgkmcnt(4)')
        else:
            h.wait_vm([f'X{i}'])
            h('s_waitcnt lgkmcnt(0)')
            h('s_cmp_eq_u32 s62, 21')
            h('s_cbranch_scc1 K_G2_DONE')
        b=XR[i%XD]
        for tt in range(2):
            for ct in range(2):
                h(f'v_mfma_f32_32x32x16_bf16 {R(GA[tt][ct],16)}, {R(WB[i%2]+4*ct,4)}, {R(b+4*tt,4)}, {R(GA[tt][ct],16)}')
        if i+WD<NK: w_issue(i+WD)
        if i+XD<NK: x_issue(i+XD)
    h.label('K_G2_DONE')
    h('s_waitcnt vmcnt(0) lgkmcnt(0)')
    stamp(h,11)
    h('s_nop 7')
    for tt in range(2):
        for ct in range(2):
            qd=tt+2*ct
            lab=newlab('GXS')
            h(f's_cmp_eq_u32 s60, {qd}')
            h(f's_cbranch_scc1 {lab}')
            h(f's_sub_u32 s52, {qd+3}, s60')
            h('s_and_b32 s52, s52, 3')
            h('s_lshl_b32 s52, s52, 12')
            h('s_add_u32 s52, s52, s55')
            h('v_add_u32 v14, s52, v5')
            for k in range(4): h(f'ds_write_b128 v14, {R(GA[tt][ct]+4*k,4)} offset:{1024*k}')
            h.label(lab)
    def att_ids(e):
        e('s_and_b32 s48, s2, 7')
        e('s_lshr_b32 s49, s2, 3')
        e('s_and_b32 s50, s49, 3')
        e('s_lshl_b32 s48, s48, 2')
        e('s_add_u32 s38, s48, s50')
        e('s_lshr_b32 s39, s49, 2')
    h(f'v_mov_b32 v12, {L_CNT+12}')
    h('v_mov_b32 v13, 1')
    h('s_waitcnt lgkmcnt(0)')
    gbar_arrive(h, 12, 13)
    gbar_wait(h, 12, 13, 24)
    for sl in range(3):
        h(f's_sub_u32 s52, s60, {sl+1}')
        h('s_and_b32 s52, s52, 3')
        h(f's_mul_i32 s52, s52, {RINGSZ}')
        h(f's_add_u32 s52, s52, {L_RING+4096*sl}')
        h('v_add_u32 v14, s52, v5')
        for k in range(4): h(f'ds_read_b128 {R(128+16*sl+4*k,4)}, v14 offset:{1024*k}')
    h('s_waitcnt lgkmcnt(8)')
    gxe=newlab('GXE')
    for qd in range(4):
        lab=newlab('GXQ')
        tt,ct=qd&1,qd>>1
        if qd<3:
            h(f's_cmp_lg_u32 s60, {qd}')
            h(f's_cbranch_scc1 {lab}')
        for r in range(16): h(f'v_add_f32 v{192+r}, v{GA[tt][ct]+r}, v{128+r}')
        if qd<3:
            h(f's_branch {gxe}')
            h.label(lab)
    h.label(gxe)
    h('s_waitcnt lgkmcnt(4)')
    for r in range(16): h(f'v_add_f32 v{192+r}, v{192+r}, v{144+r}')
    h('s_waitcnt lgkmcnt(0)')
    for r in range(16): h(f'v_add_f32 v{192+r}, v{192+r}, v{160+r}')
    h('s_branch K_TAIL')

    a2=Asm()
    a2.label('K_ATT')
    a2('s_setprio 1')
    att_ids(a2)
    a2('v_lshlrev_b32 v5, 4, v1')
    a2('v_lshlrev_b32 v6, 8, v4')
    a2('v_and_b32 v7, 15, v1')
    a2('v_lshlrev_b32 v7, 4, v7')
    a2('v_add_u32 v6, v6, v7')
    a2('v_lshlrev_b32 v8, 7, v1')
    a2('v_lshlrev_b32 v9, 2, v1')
    a2('s_lshl_b32 s44, s38, 16')
    a2('s_lshl_b32 s46, s39, 13')
    a2('s_add_u32 s46, s46, s44')
    a2(f's_add_u32 s46, s46, {WS_Q}')
    a2('s_lshl_b32 s47, s36, 14')
    a2('s_add_u32 s47, s47, s44')
    a2(f's_add_u32 s48, s47, {WS_V}')
    a2(f's_add_u32 s47, s47, {WS_K}')
    a2('s_mov_b32 s40, s47')
    a2('s_mov_b32 s41, s48')
    a2('s_lshr_b32 s49, s38, 1')
    a2('s_mul_i32 s49, s49, 1536')
    a2(f's_add_u32 s49, s49, {WS_N}')
    a2('s_mov_b32 s50, 0x0000ffff')
    a2('s_mov_b32 s51, 0x0000ffff')
    KB=[80,84,88,92]; VB=[96,104,112,120]; QF=48
    SA,SB=10,26
    OA=[128+16*i for i in range(8)]; IDX=44
    a2('v_and_b32 v12, 27, v3')
    a2('v_cmp_eq_u32 vcc, 16, v12')
    a2('v_mov_b32 v12, 0x3f803f80')
    a2('s_nop 0')
    a2(f'v_cndmask_b32 v{IDX}, 0, v12, vcc')
    for b in VB:
        for r in range(8): a2(f'v_mov_b32 v{b+r}, v{IDX}')
    a2(f'v_mov_b32 v{IDX}, 0xdddddddd')
    for o in OA:
        for r in range(16): a2(f'v_mov_b32 v{o+r}, 0')
    for r in range(8,16): a2(f'v_mov_b32 v{SB+r}, 0')
    for p_ in range(4):
        a2(f's_sub_u32 s52, s36, {p_+1}')
        a2('s_and_b32 s52, s52, 3')
        a2('s_mul_i32 s52, s52, 2304')
        a2(f's_add_u32 s{56+p_}, s52, {2*p_*3*2304}')
    a2('s_lshl_b32 s52, s36, 1')
    a2('s_lshl_b32 s52, 3, s52')
    a2('s_xor_b32 s45, s52, 0xff')
    a2('s_lshr_b32 s52, s38, 1')
    a2('s_lshl_b32 s52, s52, 11')
    a2(f's_add_u32 s52, s52, {F_1}')
    stamp(a2,7)
    poll_wg(a2, 16, 'v8', 's52', 18, 0, L_CNT+24)
    stamp(a2,8)
    def loadkv(b, ko):
        a2.vm('KV', f'buffer_load_dwordx4 {R(KB[b],4)}, v5, {W_}, s47 offen offset:{1024*ko} sc1')
        a2('s_mov_b64 exec, s[50:51]')
        a2.vm('KV', f'buffer_load_dwordx4 {R(VB[b],4)}, v6, {W_}, s48 offen offset:{1024*ko} sc1')
        a2.vm('KV', f'buffer_load_dwordx4 {R(VB[b]+4,4)}, v6, {W_}, s48 offen offset:{1024*ko+512} sc1')
        a2('s_mov_b64 exec, -1')
    a2.vm('KV', f'buffer_load_dwordx4 {R(KB[0],4)}, v5, {W_}, s47 offen sc1')
    a2.vm('Q', f'buffer_load_dwordx4 {R(QF,4)}, v5, {W_}, s46 offen sc1')
    a2('s_mov_b64 exec, s[50:51]')
    a2.vm('KV', f'buffer_load_dwordx4 {R(VB[0],4)}, v6, {W_}, s48 offen sc1')
    a2.vm('KV', f'buffer_load_dwordx4 {R(VB[0]+4,4)}, v6, {W_}, s48 offen offset:512 sc1')
    a2('s_mov_b64 exec, -1')
    for i in range(1,4):
        a2.vm('Q', f'buffer_load_dwordx4 {R(QF+4*i,4)}, v5, {W_}, s46 offen offset:{1024*i} sc1')
    a2('s_add_u32 s46, s46, 4096')
    for i in range(4,8):
        a2.vm('Q', f'buffer_load_dwordx4 {R(QF+4*i,4)}, v5, {W_}, s46 offen offset:{1024*(i-4)} sc1')
    NR=(42,43,45,46,47,2)
    for k,rg in enumerate(NR):
        a2.vm('N', f'buffer_load_dword v{rg}, v9, {W_}, s49 offen offset:{256*k} sc1')
    loadkv(1,1); loadkv(2,2)
    a2('s_add_u32 s47, s47, 3072')
    a2('s_add_u32 s48, s48, 3072')
    def qk(kb, i, dst): return f'v_mfma_f32_32x32x16_bf16 {R(dst,16)}, {R(KB[kb],4)}, {R(QF+4*i,4)}, 0'
    def pv(kb, i, half, src): return f'v_smfmac_f32_32x32x32_bf16 {R(OA[i],16)}, {R(VB[kb]+4*half,4)}, {R(src+8*half,8)}, v{IDX}'
    a2('s_mov_b32 s42, 0')
    a2('s_mov_b32 s43, 0')
    a2('s_waitcnt vmcnt(21)')
    stamp(a2,9)
    a2(qk(0,0,SA))
    a2('s_nop 7'); a2('s_nop 3')
    a2.label('K_ATT_LOOP')
    G2N=4; G2P=3
    for o_ in OPT:
        if o_.startswith('G2N='): G2N=int(o_[4:])
        if o_.startswith('G2P='): G2P=int(o_[4:])
    ool=Asm()
    def red_write(i, inline=False):
        lab=newlab('RW'); back=newlab('RWB')
        e=a2 if inline else ool
        a2(f's_bitcmp1_b32 s43, {i}')
        if inline: a2(f's_cbranch_scc0 {back}')
        else:
            a2(f's_cbranch_scc1 {lab}'); ool.label(lab)
        p_=i>>1; off=(i&1)*3*2304
        e(f'v_add_u32 v42, s{56+p_}, v5')
        e(f'v_add_u32 v43, s{56+p_}, v9')
        e(f'ds_write_b128 v42, {R(OA[i],4)} offset:{off}')
        e(f'ds_write_b128 v42, {R(OA[i]+4,4)} offset:{off+1024}')
        e(f'ds_write_b32 v43, v{OA[i]+8} offset:{off+2048}')
        if not inline: ool(f's_branch {back}')
        a2.label(back)
    for n in range(32):
        kb,i=divmod(n,8)
        sa=SA if n%2==0 else SB
        sb=SB if n%2==0 else SA
        ex=[f'v_exp_f32 v{sa+r}, v{sa+r}' for r in range(16)]
        if 'noexp' in OPT: ex=[f'v_mov_b32 v{sa+r}, v{sa+r}' for r in range(16)]
        for e in ex[0:2]: a2(e)
        pkb,pi=divmod((n-1)%32,8)
        if 'nopv' not in OPT: a2(pv(pkb,pi,1,sb))
        if i==0 and 'noload' not in OPT: loadkv((kb+3)%4, kb)
        if kb==1 and i==1:
            lab=newlab('CHK'); back=newlab('CHKB')
            a2('s_cmp_eq_u32 s42, 0')
            a2(f's_cbranch_scc1 {lab}')
            ool.label(lab)
            for sh in (1,2,4,8):
                for r in NR: ool(f'v_max_f32_dpp v{r}, v{r}, v{r} row_shr:{sh} row_mask:0xf bank_mask:0xf')
            for r in NR: ool(f'v_max_f32_dpp v{r}, v{r}, v{r} row_bcast:15 row_mask:0xa bank_mask:0xf')
            for r in NR: ool(f'v_max_f32_dpp v{r}, v{r}, v{r} row_bcast:31 row_mask:0xc bank_mask:0xf')
            ool('v_add_f32 v42, v42, v43')
            ool('v_add_f32 v45, v45, v46')
            ool('v_max_f32 v47, v47, v2')
            ool('v_mul_f32 v42, v42, v45')
            ool(f'v_mul_f32 v42, {f2u(1.05):#x}, v42')
            ool(f'v_mov_b32 v43, {f2u(T_LOG2*T_LOG2):#x}')
            ool(f'v_mov_b32 v45, {f2u(2.0**60):#x}')
            ool('v_cmp_le_f32 vcc, v42, v43')
            ool('v_cmp_le_f32 s[52:53], v47, v45')
            ool('s_nop 1')
            ool('s_and_b64 vcc, vcc, s[52:53]')
            ool('s_bitcmp1_b64 vcc, 63')
            ool('s_cbranch_scc0 K_SLOW')
            ool(f'v_mov_b32 v42, {L_CNT+12}')
            gbar_wait(ool, 42, 43, 20)
            ool(f's_branch {back}')
            a2.label(back)
        for e in ex[2:5]: a2(e)
        nkb,ni=divmod((n+1)%32,8)
        if i==7: a2('s_waitcnt vmcnt(6)')
        if kb==0 and i<7: a2(f's_waitcnt vmcnt({21-i})')
        if 'noqk' not in OPT: a2(qk(nkb,ni,sb))
        for e in ex[5:11]: a2(e)
        if n==0: a2('s_waitcnt vmcnt(22)')
        if 'nopv' not in OPT: a2(pv(kb,i,0,sa))
        if kb==3 and i>=2: red_write(i-2)
        if n==G2N:
            lab=newlab('G2E'); back=newlab('G2EB')
            a2(f's_cmp_eq_u32 s42, {G2P}')
            a2(f's_cbranch_scc1 {lab}')
            ool.label(lab)
            ool(f'v_mov_b32 v46, {L_CNT+G2CNT}')
            ool('v_mov_b32 v47, 1')
            gbar_arrive(ool, 46, 47)
            ool('s_waitcnt lgkmcnt(0)')
            ool('s_wakeup')
            ool(f's_branch {back}')
            a2.label(back)
        for e in ex[11:16]: a2(e)
    a2('s_add_u32 s47, s47, 4096')
    a2('s_add_u32 s48, s48, 4096')
    a2('s_add_u32 s42, s42, 1')
    a2('s_cmp_eq_u32 s42, 3')
    a2('s_cselect_b32 s43, s45, 0')
    a2('s_cmp_lt_u32 s42, 4')
    a2('s_cbranch_scc1 K_ATT_LOOP')
    a2('s_nop 1')
    a2(pv(3,7,1,SB))
    if G2N>31:
        a2(f'v_mov_b32 v46, {L_CNT+G2CNT}')
        a2('v_mov_b32 v47, 1')
        gbar_arrive(a2, 46, 47)
        a2('s_mov_b32 s43, s45')
        red_write(6, True)
        a2('s_waitcnt lgkmcnt(0)')
        a2('s_wakeup')
        a2('s_nop 3')
    else:
        a2('s_mov_b32 s43, s45')
        red_write(6, True)
        a2('s_nop 7'); a2('s_nop 1')
    red_write(7, True)
    a2('s_branch K_ATT_RED')
    a2.label('K_ATT_DONE')
    a2('s_mov_b32 s43, s45')
    for i in range(8): red_write(i, True)
    a2.label('K_ATT_RED')
    a2('s_setprio 3')
    stamp(a2,10)
    a2.vmq=[]
    a2('s_and_b32 s52, s2, 7')
    a2('s_lshr_b32 s53, s2, 3')
    a2('s_and_b32 s54, s53, 3')
    a2('s_lshl_b32 s52, s52, 2')
    a2('s_add_u32 s58, s52, s54')
    a2('s_lshr_b32 s59, s53, 2')
    a2(f'v_mov_b32 v78, {L_CNT+28}')
    a2('v_mov_b32 v79, 1')
    a2(f's_mul_i32 s53, s36, {6*2304}')
    a2('v_add_u32 v2, s53, v5')
    a2('v_add_u32 v7, s53, v9')
    a2('s_waitcnt lgkmcnt(0)')
    gbar_arrive(a2, 78, 79)
    a2('s_lshl_b32 s53, s39, 3')
    a2('s_lshl_b32 s52, s36, 1')
    a2('s_add_u32 s53, s53, s52')
    a2('s_lshl_b32 s53, s53, 5')
    a2('s_add_u32 s53, s53, s38')
    a2('s_lshl_b32 s53, s53, 10')
    a2(f's_add_u32 s53, s53, {WS_O}')
    gbar_wait(a2, 78, 77, 4)
    stamp(a2,12)
    RB=[[10,22,32],[44,56,68]]
    for t_ in range(2):
        for k in range(3):
            b=RB[t_][k]; off=(t_*3+k)*2304
            a2(f'ds_read_b128 {R(b,4)}, v2 offset:{off}')
            a2(f'ds_read_b128 {R(b+4,4)}, v2 offset:{off+1024}')
            a2(f'ds_read_b32 v{b+8}, v7 offset:{off+2048}')
    for t_ in range(2):
        b=RB[t_][0]
        if t_==0: a2('s_waitcnt lgkmcnt(9)')
        if t_==1: a2('s_waitcnt lgkmcnt(0)'); gbar_arrive(a2, 78, 79)
        e_=newlab('RFE')
        for p_ in range(4):
            lab=newlab('RFQ')
            if p_<3:
                a2(f's_cmp_lg_u32 s36, {p_}'); a2(f's_cbranch_scc1 {lab}')
            for r in range(9): a2(f'v_add_f32 v{b+r}, v{OA[2*p_+t_]+r}, v{b+r}')
            if p_<3:
                a2(f's_branch {e_}'); a2.label(lab)
        a2.label(e_)
        for k in (1,2):
            for r in range(9): a2(f'v_add_f32 v{b+r}, v{b+r}, v{RB[t_][k]+r}')
        a2(f'v_rcp_f32 v{b+9}, v{b+8}')
        a2('s_nop 0')
        for r in range(8): a2(f'v_mul_f32 v{b+r}, v{b+r}, v{b+9}')
        c=RB[t_][1]
        for i in range(4): a2(f'v_cvt_pk_bf16_f32 v{c+i}, v{b+2*i}, v{b+2*i+1}')
        a2(f'buffer_store_dwordx4 {R(c,4)}, v5, {W_}, s53 offen sc1')
        if t_==0: a2(f's_add_u32 s53, s53, {32*1024}')
    ACC3=192
    for r in range(16): a2(f'v_mov_b32 v{ACC3+r}, 0')
    a2('s_lshl_b32 s52, s39, 5')
    a2('s_add_u32 s52, s52, s38')
    a2('s_lshl_b32 s52, s52, 7')
    a2(f's_add_u32 s52, s52, {F_3}')
    a2('s_waitcnt vmcnt(0)')
    signal(a2, L_CNT+8, 3, 's52', 46)
    if 'abs' in OPT: stamp(a2,11)
    a2('s_setprio 0')
    tail_prep(a2)
    a2('s_cmp_eq_u32 s36, 0')
    a2('s_cbranch_scc1 K_TAIL')
    a2(f'v_mov_b32 v12, {L_CNT+28}')
    gbar_wait(a2, 12, 13, 8)
    sWO=24
    srd(a2,sWO,pWO,512*512*2)
    wdma_voff(a2)
    a2('s_sub_u32 s54, s36, 1')
    a2('s_lshl_b32 s52, s54, 14')
    a2('s_lshl_b32 s53, s59, 7')
    a2('s_add_u32 s52, s52, s53')
    a2('s_lshl_b32 s53, s54, 11')
    for i in range(11):
        a2(f's_add_u32 m0, s53, {L_WO+3*2048*i}')
        a2('s_nop 0')
        a2(f'buffer_load_dwordx4 v10, {SR(sWO)}, s52 offen lds')
        a2(f'buffer_load_dwordx4 v11, {SR(sWO)}, s52 offen offset:1024 lds')
        a2(f's_add_u32 s52, s52, {3*16384}')
    a2.label('K_TAIL')
    a2('s_setprio 0')
    a2('v_lshlrev_b32 v8, 7, v1')
    stamp(a2,13)
    a2('s_cmp_eq_u32 s36, 0')
    a2('s_cbranch_scc0 K_S3W')
    poll(a2, 32, 'v8', 's42', 48)
    a2.label('K_S3W')
    a2('s_waitcnt vmcnt(0)')
    a2.vmq=[]
    a2('s_barrier')
    stamp(a2,14)
    for s_ in range(4):
        a2(f's_add_u32 m0, s41, {4096*s_}')
        a2(f's_add_u32 s55, s40, {4096*s_}')
        a2.vm(f'O{s_}', f'buffer_load_dwordx4 v5, {W_}, s55 offen sc1 lds')
        a2.vm(f'O{s_}', f'buffer_load_dwordx4 v5, {W_}, s55 offen offset:1024 sc1 lds')
    a2('s_cmp_eq_u32 s2, 0')
    a2('s_cbranch_scc0 K_NOE')
    a2('s_cmp_eq_u32 s36, 0')
    a2('s_cbranch_scc0 K_NOE')
    a2('v_mov_b32 v60, s64'); a2('v_mov_b32 v61, s65'); a2('v_mov_b32 v62, 0')
    a2('s_mov_b64 exec, 1')
    a2(f'buffer_store_dwordx2 v[60:61], v62, {W_}, 0 offen')
    a2('s_mov_b64 exec, -1')
    a2('s_waitcnt vmcnt(0)')
    a2.label('K_NOE')
    FX=[64,68,72,76]; FW=[80,84,88,92]
    for s_ in range(4):
        a2.wait_vm(f'O{s_}')
        a2('s_barrier')
        for k in range(4):
            ks=4*s_+k
            a2(f'ds_read_b128 {R(FX[k],4)}, v22 offset:{ks*1024}')
            a2(f'ds_read_b64_tr_b16 {R(FW[k],2)}, v21 offset:{ks*2048}')
            a2(f'ds_read_b64_tr_b16 {R(FW[k]+2,2)}, v21 offset:{ks*2048+1024}')
        for k in range(4):
            a2(f's_waitcnt lgkmcnt({3*(3-k)})')
            a2(f'v_mfma_f32_32x32x16_bf16 {R(ACC3,16)}, {R(FW[k],4)}, {R(FX[k],4)}, {R(ACC3,16)}')
    stamp(a2,15)
    a2('s_cmp_eq_u32 s39, 0')
    a2('s_cbranch_scc1 K_KH0')
    a2('s_nop 7'); a2('s_nop 3')
    a2(f'ds_write_b128 v23, {R(ACC3,4)}')
    a2(f'ds_write_b128 v23, {R(ACC3+4,4)} offset:1024')
    for r in range(8): a2(f'v_add_f32 v{40+r}, v{40+r}, v{ACC3+8+r}')
    a2('s_branch K_EX')
    a2.label('K_KH0')
    a2('s_nop 7'); a2('s_nop 3')
    a2(f'ds_write_b128 v23, {R(ACC3+8,4)}')
    a2(f'ds_write_b128 v23, {R(ACC3+12,4)} offset:1024')
    for r in range(8): a2(f'v_add_f32 v{40+r}, v{40+r}, v{ACC3+r}')
    a2.label('K_EX')
    a2('s_waitcnt lgkmcnt(0)')
    a2('s_barrier')
    a2('ds_read_b128 v[64:67], v6')
    a2('ds_read_b128 v[68:71], v6 offset:1024')
    a2('s_waitcnt lgkmcnt(0)')
    for r in range(8): a2(f'v_add_f32 v{40+r}, v{40+r}, v{64+r}')
    for i in range(4): a2(f'v_cvt_pk_bf16_f32 v{64+i}, v{40+2*i}, v{41+2*i}')
    a2(f'buffer_store_dwordx4 v[64:67], v20, {SR(32)}, 0 offen')
    if STAMP and ('rt' in OPT or 'span' in OPT) and 'dbg' not in OPT:
        a2('s_memrealtime s[92:93]'); a2('s_memtime s[100:101]')
    if 'abs' in OPT:
        a2('s_cmp_lt_u32 s36, 4'); a2('s_cbranch_scc0 K_NOABS'); stamp(a2,6); a2.label('K_NOABS')
    stamp_flush(a2,16)
    stamp_dbg(a2)
    a2('s_endpgm')
    a2.label('K_SLOW')
    a2('s_waitcnt vmcnt(0)')
    a2('s_nop 7'); a2('s_nop 7')
    for o in OA:
        for r in range(16): a2(f'v_mov_b32 v{o+r}, 0')
    MX=116
    a2('s_mov_b32 s61, s40')
    for i in range(8): a2(f'v_mov_b32 v{MX+i}, 0xff800000')
    a2('s_mov_b32 s62, 0')
    a2.label('K_S1')
    a2(f'buffer_load_dwordx4 {R(KB[0],4)}, v5, {W_}, s61 offen sc1')
    a2('s_waitcnt vmcnt(0)')
    for i in range(8):
        a2(f'v_mfma_f32_32x32x16_bf16 {R(SA,16)}, {R(KB[0],4)}, {R(QF+4*i,4)}, 0')
        a2('s_nop 7'); a2('s_nop 7')
        for r in range(0,16,2): a2(f'v_max3_f32 v{MX+i}, v{MX+i}, v{SA+r}, v{SA+r+1}')
    a2('s_add_u32 s61, s61, 1024')
    a2('s_add_u32 s62, s62, 1')
    a2('s_cmp_lt_u32 s62, 16')
    a2('s_cbranch_scc1 K_S1')
    for i in range(8): a2(f'v_mov_b32 v{SA+i}, v{MX+i}')
    a2('s_nop 1')
    for i in range(8): a2(f'v_permlane32_swap_b32 v{MX+i}, v{SA+i}')
    a2('s_nop 1')
    for i in range(8): a2(f'v_max_f32 v{MX+i}, v{MX+i}, v{SA+i}')
    a2(f'v_mov_b32 v12, {L_CNT+12}')
    gbar_wait(a2, 12, 13, 20)
    a2('s_lshl_b32 s53, s36, 11')
    a2(f's_add_u32 s53, s53, {L_MX}')
    a2('v_add_u32 v42, s53, v9')
    for i in range(8): a2(f'ds_write_b32 v42, v{MX+i} offset:{256*i}')
    a2(f'v_mov_b32 v12, {L_CNT+16}')
    a2('v_mov_b32 v13, 1')
    a2('s_waitcnt lgkmcnt(0)')
    gbar_arrive(a2, 12, 13)
    gbar_wait(a2, 12, 13, 4)
    a2(f'v_add_u32 v42, {L_MX}, v9')
    for q in range(4):
        for i in range(8): a2(f'ds_read_b32 v{SA+i}, v42 offset:{2048*q+256*i}')
        a2('s_waitcnt lgkmcnt(0)')
        for i in range(8): a2(f'v_max_f32 v{MX+i}, v{MX+i}, v{SA+i}')
    a2('s_mov_b32 s61, s40'); a2('s_mov_b32 s60, s41')
    a2('s_mov_b32 s62, 0')
    a2.label('K_S2')
    a2(f'buffer_load_dwordx4 {R(KB[0],4)}, v5, {W_}, s61 offen sc1')
    a2('s_mov_b64 exec, s[50:51]')
    a2(f'buffer_load_dwordx4 {R(VB[0],4)}, v6, {W_}, s60 offen sc1')
    a2(f'buffer_load_dwordx4 {R(VB[0]+4,4)}, v6, {W_}, s60 offen offset:512 sc1')
    a2('s_mov_b64 exec, -1')
    a2('s_waitcnt vmcnt(0)')
    for i in range(8):
        a2(f'v_mfma_f32_32x32x16_bf16 {R(SA,16)}, {R(KB[0],4)}, {R(QF+4*i,4)}, 0')
        a2('s_nop 7'); a2('s_nop 7')
        for r in range(16): a2(f'v_sub_f32 v{SA+r}, v{SA+r}, v{MX+i}')
        for r in range(16): a2(f'v_exp_f32 v{SA+r}, v{SA+r}')
        a2('s_nop 1')
        a2(f'v_smfmac_f32_32x32x32_bf16 {R(OA[i],16)}, {R(VB[0],4)}, {R(SA,8)}, v{IDX}')
        a2(f'v_smfmac_f32_32x32x32_bf16 {R(OA[i],16)}, {R(VB[0]+4,4)}, {R(SA+8,8)}, v{IDX}')
        a2('s_nop 7')
    a2('s_add_u32 s61, s61, 1024')
    a2('s_add_u32 s60, s60, 1024')
    a2('s_add_u32 s62, s62, 1')
    a2('s_cmp_lt_u32 s62, 16')
    a2('s_cbranch_scc1 K_S2')
    a2(f'v_mov_b32 v42, {L_CNT+G2CNT}')
    a2('v_mov_b32 v43, 1')
    gbar_arrive(a2, 42, 43)
    a2('s_waitcnt lgkmcnt(0)')
    a2('s_wakeup')
    a2('s_nop 7')
    a2('s_branch K_ATT_DONE')
    return 'K_START:\n'+a.text()+'\n'+h.text()+'\n'+g.text()+'\n'+a2.text()+'\n'+ool.text()+'\nK_END:\n  s_endpgm\n'

HEADER=open('cdna_kernels/'+NAME+'.s.ref').read().split('; Override launch geometry')[0]
def assemble(body):
    n=NAME+'_kernel'
    return HEADER+f'''; @launch grid=(256,1,1) block=(512,1,1) lds={LDS_TOTAL}
.amdgcn_target "amdgcn-amd-amdhsa--gfx950"
.text
.globl {n}
.p2align 8
.type {n},@function
{n}:
{body}
.section .rodata,"a"
.p2align 6
.amdhsa_kernel {n}
  .amdhsa_next_free_vgpr 256
  .amdhsa_next_free_sgpr 102
  .amdhsa_accum_offset 256
  .amdhsa_group_segment_fixed_size 0
  .amdhsa_kernarg_size 88
  .amdhsa_user_sgpr_count 2
  .amdhsa_user_sgpr_kernarg_segment_ptr 1
  .amdhsa_system_sgpr_workgroup_id_x 1
  .amdhsa_float_denorm_mode_32 3
.end_amdhsa_kernel
'''
if __name__=='__main__':
    outp=sys.argv[1]
    if 'stamp' in sys.argv: STAMP=True
    OPT.update(sys.argv[2:])
    for o_ in list(OPT):
        if o_.startswith('PD='): POLLD=int(o_[3:])
    open(outp,'w').write(assemble(gen()))
    print('wrote',outp)
```

```python
import sys, struct
NAME='parallel_sum__softmax_full_mha__mixer_channel_mlp__prompt'

WS_F = 0
F_1, F_2, F_3 = 32768, 65536, 98304
WS_N = 256<<10
WS_Q = 1<<20
WS_K = 3<<20
WS_V = 5<<20
WS_O = 7<<20
WS_H = 9<<20
WS_T = 15<<20
WS_SIZE = 16<<20
QSCALE = 0.25*1.4426950408889634
T_LOG2 = 48.0
SPIN_MAX = 1<<20
POLLD = 1

def f2u(f): return struct.unpack('<I', struct.pack('<f', f))[0]

STAMP=False
OPT=set()
class Asm:
    def __init__(self):
        self.L=[]; self.vmq=[]; self.lgq=[]
    def __call__(self, s): self.L.append('  '+s)
    def c(self, s): self.L.append('  ; '+s)
    def label(self, n): self.L.append(n+':')
    def vm(self, tag, s):
        self.vmq.append(tag); self(s)
    def wait_vm(self, tags):
        if isinstance(tags,str): tags=[tags]
        idx=[i for i,t in enumerate(self.vmq) if t in tags]
        if not idx: return
        last=max(idx); n=len(self.vmq)-1-last
        assert n<=63
        self(f's_waitcnt vmcnt({n})')
        self.vmq=self.vmq[last+1:]
    def lg(self, tag, s):
        self.lgq.append(tag); self(s)
    def wait_lg(self, tags):
        if isinstance(tags,str): tags=[tags]
        idx=[i for i,t in enumerate(self.lgq) if t in tags]
        if not idx: return
        last=max(idx); n=len(self.lgq)-1-last
        if n<=15: self(f's_waitcnt lgkmcnt({n})')
        self.lgq=self.lgq[last+1:]
    def wait_vm_all(self):
        self('s_waitcnt vmcnt(0)'); self.vmq=[]
    def text(self): return '\n'.join(self.L)

RTMAP={3:1, 9:2, 10:4}
def fstamp(a, i):
    if STAMP and 'fine' in OPT and 'fe' not in OPT: a(f's_memtime s[{70+2*i}:{71+2*i}]')
def estamp(a, i):
    if STAMP and 'fe' in OPT: a(f's_memtime s[{70+2*i}:{71+2*i}]')
def stamp(a, i):
    if STAMP:
        if 'span' in OPT: return
        if 'fine' in OPT: return
        if 'rt' in OPT and i in (1,2,4) : return
        if 'abs' in OPT:
            a(f's_memrealtime s[{70+2*i}:{71+2*i}]'); return
        a(f's_memtime s[{70+2*i}:{71+2*i}]')
        if 'rt' in OPT and i in RTMAP:
            j=RTMAP[i]; a(f's_memrealtime s[{70+2*j}:{71+2*j}]')
def stamp_flush(a, n):
    if not STAMP: return
    a('s_waitcnt vmcnt(0) lgkmcnt(0)')
    a('s_lshl_b32 s69, s2, 3')
    a('s_add_u32 s69, s69, s36')
    a('s_lshl_b32 s69, s69, 6')
    a(f's_add_u32 s69, s69, {WS_T}')
    a('v_mov_b32 v2, 0')
    for i in range(n):
        a(f'v_mov_b32 v3, s{70+2*i}')
        a('s_mov_b64 exec, 1')
        a(f'buffer_store_dword v3, v2, s[28:31], s69 offen offset:{4*i}')
        a('s_mov_b64 exec, -1')
        a('s_nop 1')

def stamp_dbg(a):
    if not (STAMP and 'dbg' in OPT): return
    lab=newlab('DBG')
    a('s_cmp_eq_u32 s2, 37')
    a(f's_cbranch_scc0 {lab}')
    a('s_cmp_eq_u32 s36, 0')
    a(f's_cbranch_scc0 {lab}')
    a('s_load_dwordx2 s[66:67], s[0:1], 72')
    if 'abs' in OPT:
        a('s_waitcnt lgkmcnt(0)')
    else:
        a('s_memrealtime s[92:93]')
        a('s_memtime s[100:101]')
        a('s_waitcnt lgkmcnt(0)')
        a('s_sub_u32 s92, s92, s82')
        a('s_add_u32 s92, s92, s70')
    if 'rt' in OPT:
        for j in (1,2,4):
            a(f's_sub_u32 s{70+2*j}, s{70+2*j}, s82'); a(f's_add_u32 s{70+2*j}, s{70+2*j}, s70')
    if 'abs' not in OPT: a('s_mov_b32 s82, s70')
    a('s_mov_b32 s40, s66'); a('s_mov_b32 s41, s67'); a('s_mov_b32 s42, 256'); a('s_mov_b32 s43, 0x00020000')
    a('v_mov_b32 v2, 0')
    a('s_mov_b64 exec, 1')
    for i in range(16):
        a(f's_sub_u32 s3, s{70+2*i}, s70')
        a('v_mov_b32 v3, s3')
        a(f'buffer_store_dword v3, v2, s[40:43], 0 offen offset:{4*i}')
        a('s_nop 1')
    a('s_mov_b64 exec, -1')
    a.label(lab)

def R(a,n=1): return f'v{a}' if n==1 else f'v[{a}:{a+n-1}]'
def SR(a): return f's[{a}:{a+3}]'
def srd(a, d, ptr, size):
    a(f's_mov_b32 s{d}, s{ptr}')
    a(f's_mov_b32 s{d+1}, s{ptr+1}')
    a(f's_mov_b32 s{d+2}, {size}')
    a(f's_mov_b32 s{d+3}, 0x00020000')
def pk(op, d, a_, b_, c_=None, bsel=None, csel=None, neg=None):
    ops=[a_,b_]+([c_] if c_ is not None else [])
    n=len(ops)
    txt=[ (f'v[{o}:{o+1}]' if isinstance(o,int) else o) for o in ops]
    hi=[1]*n
    if bsel=='lo': hi[1]=0
    if csel=='lo': hi[2]=0
    s_=f'v_pk_{op}_f32 v[{d}:{d+1}], '+', '.join(txt)
    if hi!=[1]*n: s_+=' op_sel_hi:['+','.join(map(str,hi))+']'
    if neg: s_+=' '+neg
    return s_

pX,pWQ,pWO,pW1,pB1,pW2,pB2,pOUT,pWS = 4,6,8,12,14,16,18,20,22
sWS=28
W_=SR(sWS)

SLOT=28672; XS=16384; WST=12288
W1_SPARE=5*SLOT
SCR=W1_SPARE+WST
L_A=SCR; L_MU=SCR+512; L_CS=SCR+1024; L_CS1=SCR+1536; L_B1=SCR+2048; L_A2=SCR+2560; L_A2M=SCR+3072
L_CNT=SCR+4096
LDS_TOTAL=163840
W1_ADDR=[W1_SPARE, 3*SLOT, 3*SLOT+WST, 4*SLOT, 4*SLOT+WST, 0, WST, SLOT]
A_SLOT=[0,1,2,3,4,0,1,2]
L_RED=0
L_RING=73728
RINGSZ=20480; WD=10; XD=18
L_MX=57344
G2CNT=32; G2TGT=4
L_WO=0
L_OX=65536
L_EX=131072

uid=[0]
def newlab(p):
    uid[0]+=1; return f'{p}_{uid[0]}'

def poll(a, nl, voff, soff, vt):
    PD=POLLD
    lab=newlab('POLL'); done=newlab('POLLD')
    mask=(1<<nl)-1
    a(f's_mov_b32 s66, {mask:#x}')
    a('s_mov_b32 s67, 0')
    a(f's_mov_b32 s68, {SPIN_MAX}')
    a('s_waitcnt vmcnt(0)')
    a('s_mov_b64 exec, s[66:67]')
    for k in range(PD-1):
        a(f'buffer_load_dwordx2 v[{vt+2*k}:{vt+2*k+1}], {voff}, {W_}, {soff} offen sc1')
        if PD>1: a('s_sleep 2')
    a.label(lab)
    for k in range(PD):
        kn=(k+PD-1)%PD
        a(f'buffer_load_dwordx2 v[{vt+2*kn}:{vt+2*kn+1}], {voff}, {W_}, {soff} offen sc1')
        a(f's_waitcnt vmcnt({PD-1})')
        a(f'v_cmp_eq_u64 vcc, s[64:65], v[{vt+2*k}:{vt+2*k+1}]')
        a('s_sub_u32 s68, s68, 1')
        a('s_cmp_eq_u32 s68, 0')
        a(f's_cbranch_scc1 {done}')
        a('s_cmp_eq_u64 vcc, s[66:67]')
        a(f's_cbranch_scc1 {done}')
        a('s_sleep 2')
    a(f's_branch {lab}')
    a.label(done)
    a('s_mov_b64 exec, -1')
    a.vmq=[]

def poll_wg(a, nl, voff, soff, vt, leader, lds_addr):
    oth=newlab('PWO'); done=newlab('PWD')
    va=vt+2*POLLD
    a(f'v_mov_b32 v{va}, {lds_addr}')
    a(f's_cmp_eq_u32 s36, {leader}')
    a(f's_cbranch_scc0 {oth}')
    poll(a, nl, voff, soff, vt)
    a(f'v_mov_b32 v{va+1}, 1')
    a('s_mov_b64 exec, 1')
    a(f'ds_write_b32 v{va}, v{va+1}')
    a('s_mov_b64 exec, -1')
    a('s_waitcnt lgkmcnt(0)')
    a('s_wakeup')
    a(f's_branch {done}')
    a.label(oth)
    lab=newlab('PWL')
    a.label(lab)
    a(f'ds_read_b32 v{va+1}, v{va}')
    a('s_waitcnt lgkmcnt(0)')
    a(f'v_readfirstlane_b32 s66, v{va+1}')
    a('s_nop 0')
    a('s_cmp_eq_u32 s66, 0')
    a(f's_cbranch_scc0 {done}')
    a('s_sleep 8')
    a(f's_branch {lab}')
    a.label(done)
    a.vmq=[]

def signal(a, cnt_addr, last, flag_soff, vt):
    skip=newlab('SIG')
    a(f'v_mov_b32 v{vt}, {cnt_addr}')
    a(f'v_mov_b32 v{vt+1}, 1')
    a('s_mov_b64 exec, 1')
    a(f'ds_add_rtn_u32 v{vt+2}, v{vt}, v{vt+1}')
    a('s_waitcnt lgkmcnt(0)')
    a(f'v_readfirstlane_b32 s66, v{vt+2}')
    a(f'v_mov_b32 v{vt}, s64')
    a(f'v_mov_b32 v{vt+1}, s65')
    a(f'v_mov_b32 v{vt+2}, 0')
    a(f's_cmp_eq_u32 s66, {last}')
    a(f's_cbranch_scc0 {skip}')
    a(f'buffer_store_dwordx2 v[{vt}:{vt+1}], v{vt+2}, {W_}, {flag_soff} offen sc1')
    a.label(skip)
    a('s_mov_b64 exec, -1')

def gbar_arrive(a, vaddr, vone):
    a('s_mov_b64 exec, 1')
    a(f'ds_add_u32 v{vaddr}, v{vone}')
    a('s_mov_b64 exec, -1')
def gbar_wait(a, vaddr, vt, target):
    lab=newlab('GB')
    a.label(lab)
    a(f'ds_read_b32 v{vt}, v{vaddr}')
    a('s_waitcnt lgkmcnt(0)')
    a(f'v_readfirstlane_b32 s3, v{vt}')
    a('s_nop 0')
    a(f's_cmp_ge_u32 s3, {target}')
    a(f's_cbranch_scc0 {lab}')

def gen():
    a=Asm()
    a('s_cmp_ge_u32 s2, 256')
    a('s_cbranch_scc1 K_END')
    stamp(a,0)
    if STAMP and ('dbg' in OPT or 'rt' in OPT or 'span' in OPT) and 'abs' not in OPT: a('s_memrealtime s[82:83]')
    a('s_load_dwordx16 s[4:19], s[0:1], 0')
    a('s_load_dwordx2 s[20:21], s[0:1], 64')
    a('s_load_dwordx2 s[22:23], s[0:1], 80')
    a('v_and_b32 v1, 63, v0')
    a('v_lshrrev_b32 v2, 6, v0')
    a('s_and_b32 s48, s2, 7')
    a('v_readfirstlane_b32 s36, v2')
    a('s_lshr_b32 s49, s2, 3')
    a('s_and_b32 s50, s48, 1')
    a('s_lshr_b32 s51, s48, 1')
    a('s_lshl_b32 s50, s50, 3')
    a('s_and_b32 s52, s49, 7')
    a('s_add_u32 s38, s50, s52')
    a('s_lshl_b32 s51, s51, 2')
    a('s_lshr_b32 s52, s49, 3')
    a('s_add_u32 s39, s51, s52')
    a('s_and_b32 s37, s36, 3')
    a('v_and_b32 v3, 31, v1')
    a('v_lshrrev_b32 v4, 5, v1')
    a('s_cmp_ge_u32 s36, 4')
    a('s_cbranch_scc1 K_G1')
    a('s_getpc_b64 s[62:63]')
    a.label('PF_0')
    a('s_sub_u32 s62, s62, PF_0-K_START')
    a('s_subb_u32 s63, s63, 0')
    a('s_lshr_b32 s60, s2, 3')
    a('s_and_b32 s60, s60, 7')
    a('s_lshl_b32 s60, s60, 2')
    a('s_add_u32 s60, s60, s37')
    a('s_lshl_b32 s60, s60, 10')
    a('v_lshlrev_b32 v9, 4, v1')
    a('v_add_u32 v9, s60, v9')
    a('v_min_u32 v10, K_END-K_START-16, v9')
    a('global_load_dwordx4 v[200:203], v10, s[62:63]')
    a('v_add_u32 v9, 0x8000, v9')
    a('v_min_u32 v10, K_END-K_START-16, v9')
    a('global_load_dwordx4 v[204:207], v10, s[62:63]')
    a('s_branch K_G0')

    def common_lds_addr(e):
        e('v_bfe_u32 v5, v1, 1, 3')
        e('v_xor_b32 v5, v5, v4')
        e('v_lshlrev_b32 v5, 4, v5')
        e('s_lshl_b32 s3, s37, 12')
        e('v_lshlrev_b32 v6, 7, v3')
        e('v_add3_u32 v12, v6, v5, s3')
        e('v_xor_b32 v13, 32, v12')
        e('v_xor_b32 v14, 64, v12')
        e('v_xor_b32 v15, 0x60, v12')
        e('v_lshlrev_b32 v6, 3, v4')
        e('v_bfe_u32 v7, v1, 2, 2')
        e('v_add_u32 v6, v6, v7')
        e('v_mul_u32_u24 v6, 192, v6')
        e('v_bfe_u32 v7, v1, 4, 1')
        e('v_lshlrev_b32 v7, 5, v7')
        e('v_and_b32 v8, 3, v1')
        e('v_lshlrev_b32 v8, 3, v8')
        e('v_add3_u32 v16, v6, v7, v8')

    g=Asm()
    g.label('K_G0')
    accQ,accK,accV=64,80,96
    FS0=[128,144,160,176]
    common_lds_addr(g)
    for r in range(64,112): g(f'v_mov_b32 v{r}, 0')
    g(f'v_add_u32 v17, {XS}, v16')
    g(f's_mov_b32 s56, {(-4*SLOT)&0xffffffff:#x}')
    g(f's_mov_b32 s57, {SLOT}')
    g(f'v_lshlrev_b32 v18, 2, v1')
    g(f'v_add_u32 v18, {L_CNT}, v18')
    g('v_mov_b32 v19, 0')
    g('s_mov_b64 exec, 0xffff')
    g('ds_write_b32 v18, v19')
    g('s_mov_b64 exec, -1')
    g('s_lshl_b32 s48, s37, 7')
    g('v_lshlrev_b32 v20, 2, v3')
    g('v_add_u32 v20, s48, v20')
    g(f'v_add_u32 v20, {L_A}, v20')
    g('v_lshlrev_b32 v23, 4, v4')
    g(f'v_add_u32 v24, {L_CS}, v23')
    g('v_lshlrev_b32 v25, 2, v3')
    g(f'v_add_u32 v25, {L_CS+64*4}, v25')
    g('v_add_u32 v27, s48, v23')
    g(f'v_add_u32 v27, {L_A}, v27')
    g('s_lshl_b32 s49, s38, 2')
    g('s_add_u32 s49, s49, s37')
    g('s_lshl_b32 s50, s49, 10')
    g('s_lshl_b32 s51, s39, 17')
    g('s_add_u32 s50, s50, s51')
    g(f's_add_u32 s52, s50, {WS_K}')
    g(f's_add_u32 s53, s50, {WS_K+65536}')
    g(f's_add_u32 s54, s50, {WS_V}')
    g(f's_add_u32 s51, s50, {WS_Q+65536}')
    g(f's_add_u32 s50, s50, {WS_Q}')
    g('v_lshlrev_b32 v28, 4, v1')
    g('v_and_b32 v29, 0x13, v3')
    g('v_bfe_u32 v30, v3, 2, 1')
    g('v_lshlrev_b32 v30, 3, v30')
    g('v_bfe_u32 v31, v3, 3, 1')
    g('v_lshlrev_b32 v31, 2, v31')
    g('v_or3_b32 v29, v29, v30, v31')
    g('v_lshlrev_b32 v30, 5, v4')
    g('v_add_u32 v29, v29, v30')
    g('v_lshlrev_b32 v29, 4, v29')
    g('v_bfe_u32 v30, v3, 4, 1')
    g('v_lshlrev_b32 v30, 16, v30')
    g('v_lshlrev_b32 v31, 8, v4')
    g('v_and_b32 v32, 15, v3')
    g('v_lshlrev_b32 v32, 4, v32')
    g('v_add3_u32 v30, v30, v31, v32')
    g('s_mul_i32 s55, s39, 1536')
    g('s_lshl_b32 s58, s49, 2')
    g('s_add_u32 s55, s55, s58')
    g(f's_add_u32 s55, s55, {WS_N}')
    g('v_lshlrev_b32 v31, 8, v4')
    g('s_waitcnt lgkmcnt(0)')
    srd(g,sWS,pWS,WS_SIZE)
    g(f's_load_dwordx2 s[64:65], s[{pWS}:{pWS+1}], 0')
    if 'tlb' in OPT:
        g('v_mov_b32 v40, 0')
        g('v_mov_b32 v41, 0')
        g('s_mov_b64 exec, 1')
        for sreg in ('s50','s52','s54'):
            g(f'buffer_store_dword v40, v41, {W_}, {sreg} offen sc1')
        g(f'buffer_store_dword v40, v41, {W_}, s55 offen sc1')
        g('s_mov_b64 exec, -1')
        g('v_lshlrev_b32 v41, 21, v1')
        g(f's_mov_b32 s40, s{pW2}'); g(f's_mov_b32 s41, s{pW2+1}'); g(f's_mov_b32 s42, {1376*512*2}'); g('s_mov_b32 s43, 0x00020000')
        g('buffer_load_dword v208, v41, s[40:43], 0 offen')
        g(f's_mov_b32 s44, s{pWO}'); g(f's_mov_b32 s45, s{pWO+1}'); g(f's_mov_b32 s46, {512*512*2}'); g('s_mov_b32 s47, 0x00020000')
        g('buffer_load_dword v209, v41, s[44:47], 0 offen')
        g(f's_mov_b32 s40, s{pOUT}'); g(f's_mov_b32 s41, s{pOUT+1}'); g(f's_mov_b32 s42, {2048*512*2}')
        g('buffer_load_dword v210, v41, s[40:43], 0 offen')
    def readlist(set_, ks):
        L=[f'ds_read_b128 {R(set_,4)}, v{12+ks}']
        for t in range(3):
            for e in range(2):
                L.append(f'ds_read_b64_tr_b16 {R(set_+4+4*t+2*e,2)}, v17 offset:{ks*3072+e*768+t*64}')
        return L
    def mfmalist(set_):
        return [f'v_mfma_f32_32x32x16_bf16 {R(accQ,16)}, {R(set_+4,4)}, {R(set_,4)}, {R(accQ,16)}',
                f'v_mfma_f32_32x32x16_bf16 {R(accK,16)}, {R(set_+8,4)}, {R(set_,4)}, {R(accK,16)}',
                f'v_mfma_f32_32x32x16_bf16 {R(accV,16)}, {R(set_,4)}, {R(set_+12,4)}, {R(accV,16)}']
    g('s_waitcnt lgkmcnt(0)')
    g('s_add_u32 s64, s64, 0x7f4a7c15')
    g('s_addc_u32 s65, s65, 0x9e3779b9')
    stamp(g,1)
    for st in range(8):
        if st==5: fstamp(g,0)
        g('s_barrier')
        if st==5: fstamp(g,1)
        if st==6: fstamp(g,10)
        if st==0: stamp(g,2)
        for ks in range(4):
            rl=readlist(FS0[ks],ks); ml=mfmalist(FS0[(ks+2)%4])
            if st==5: fstamp(g,2+2*ks)
            if st==0 and ks<2:
                for r_ in rl: g(r_)
                continue
            g('s_waitcnt lgkmcnt(7)')
            if st==5: fstamp(g,3+2*ks)
            g(ml[0]); g(rl[0]); g(rl[1]); g(rl[2])
            g(ml[1]); g(rl[3]); g(rl[4])
            if 'noq' not in OPT: g(ml[2])
            g(rl[5]); g(rl[6])
        if st<7:
            sr='s57' if A_SLOT[st+1]>A_SLOT[st] else 's56'
            for r in (12,13,14,15,17): g(f'v_add_u32 v{r}, {sr}, v{r}')
    g('s_waitcnt lgkmcnt(7)')
    for m in mfmalist(FS0[2]): g(m)
    g('s_waitcnt lgkmcnt(0)')
    for m in mfmalist(FS0[3]): g(m)
    stamp(g,3)
    estamp(g,0)
    g('s_barrier')
    g('s_setprio 3')
    estamp(g,1)
    CSQ=128; CSK=144; AV=160; MV=176
    g('ds_read_b32 v21, v20')
    g(f'ds_read_b32 v22, v20 offset:{L_MU-L_A}')
    for gg in range(4): g(f'ds_read_b128 {R(CSK+4*gg,4)}, v24 offset:{(32+8*gg)*4}')
    g('ds_read_b32 v26, v25')
    for gg in range(4): g(f'ds_read_b128 {R(MV+4*gg,4)}, v27 offset:{8*gg*4+L_MU-L_A}')
    for gg in range(4): g(f'ds_read_b128 {R(AV+4*gg,4)}, v27 offset:{8*gg*4}')
    g('s_waitcnt lgkmcnt(13)')
    g('v_mul_f32 v38, v21, v22')
    g(f'v_mul_f32 v34, {f2u(QSCALE):#x}, v21')
    g('v_sub_f32 v38, 0, v38')
    g(f'v_mul_f32 v36, {f2u(QSCALE):#x}, v38')
    g('s_waitcnt lgkmcnt(9)')
    estamp(g,2)
    for r in range(16): g(f'v_mul_f32 v{CSK+r}, v38, v{CSK+r}')
    for r in range(16): g(f'v_fmac_f32 v{CSK+r}, v21, v{accK+r}')
    for i in range(8): g(f'v_cvt_pk_bf16_f32 v{accK+i}, v{CSK+2*i}, v{CSK+2*i+1}')
    estamp(g,3)
    g(f'buffer_store_dwordx4 {R(accK,4)}, v29, {W_}, s52 offen sc1')
    g(f'buffer_store_dwordx4 {R(accK+4,4)}, v29, {W_}, s53 offen sc1')
    estamp(g,4)
    for gg in range(4): g(f'ds_read_b128 {R(CSQ+4*gg,4)}, v24 offset:{(8*gg)*4}')
    g('s_waitcnt lgkmcnt(8)')
    g('v_sub_f32 v26, 0, v26')
    g('s_waitcnt lgkmcnt(4)')
    for r in range(16): g(f'v_fmac_f32 v{accV+r}, v26, v{MV+r}')
    for r in range(16): g(f'v_mul_f32 v{accV+r}, v{accV+r}, v{AV+r}')
    for i in range(8): g(f'v_cvt_pk_bf16_f32 v{AV+i}, v{accV+2*i}, v{accV+2*i+1}')
    estamp(g,5)
    g(f'buffer_store_dwordx4 {R(AV,4)}, v30, {W_}, s54 offen sc1')
    g(f'buffer_store_dwordx4 {R(AV+4,4)}, v30, {W_}, s54 offen offset:512 sc1')
    g('s_waitcnt lgkmcnt(0)')
    estamp(g,6)
    for r in range(16): g(f'v_mul_f32 v{CSQ+r}, v36, v{CSQ+r}')
    for r in range(16): g(f'v_fmac_f32 v{CSQ+r}, v34, v{accQ+r}')
    for i in range(8): g(f'v_cvt_pk_bf16_f32 v{accQ+i}, v{CSQ+2*i}, v{CSQ+2*i+1}')
    g(f'buffer_store_dwordx4 {R(accQ,4)}, v28, {W_}, s50 offen sc1')
    g(f'buffer_store_dwordx4 {R(accQ+4,4)}, v28, {W_}, s51 offen sc1')
    estamp(g,7)
    for (b,src) in ((42,CSK),(46,CSQ)):
        g(f'v_mul_f32 v{b}, v{src}, v{src}'); g(f'v_mul_f32 v{b+1}, v{src+8}, v{src+8}')
        for i in range(1,8):
            g(f'v_fmac_f32 v{b}, v{src+i}, v{src+i}'); g(f'v_fmac_f32 v{b+1}, v{src+8+i}, v{src+8+i}')
    g(f'v_max3_f32 v38, |v{accV}|, |v{accV+1}|, |v{accV+2}|')
    g('v_max_f32 v34, v42, v43')
    g('v_max_f32 v35, v46, v47')
    for r in range(3,15,2): g(f'v_max3_f32 v38, v38, |v{accV+r}|, |v{accV+r+1}|')
    g(f'v_max_f32 v36, v38, |v{accV+15}|')
    g('s_nop 1')
    for sh in (1,2,4,8):
        for r in (34,35,36): g(f'v_max_f32_dpp v{r}, v{r}, v{r} row_shr:{sh} row_mask:0xf bank_mask:0xf')
    for r in (34,35,36): g(f'v_max_f32_dpp v{r}, v{r}, v{r} row_bcast:15 row_mask:0xa bank_mask:0xf')
    g('s_nop 1')
    estamp(g,8)
    g('s_mov_b32 s66, 0x80000000')
    g('s_mov_b32 s67, 0x80000000')
    g('s_mov_b64 exec, s[66:67]')
    g(f'buffer_store_dword v34, v31, {W_}, s55 offen sc1')
    g(f'buffer_store_dword v35, v31, {W_}, s55 offen offset:512 sc1')
    g(f'buffer_store_dword v36, v31, {W_}, s55 offen offset:1024 sc1')
    g('s_mov_b64 exec, -1')
    stamp(g,4)
    estamp(g,9)
    g('s_setprio 0')
    g('s_waitcnt vmcnt(0)')
    estamp(g,10)
    g('s_lshl_b32 s48, s39, 4')
    g('s_add_u32 s48, s48, s38')
    g('s_lshl_b32 s48, s48, 7')
    g(f's_add_u32 s48, s48, {F_1}')
    signal(g, L_CNT, 3, 's48', 40)
    stamp(g,5)

    h=Asm()
    h.label('K_G1')
    h('s_setprio 2')
    sX,sWQ,sW1,sB1=24,32,40,44
    XF=128
    h('v_lshrrev_b32 v20, 3, v1')
    h('v_and_b32 v21, 7, v1')
    h('v_lshrrev_b32 v22, 4, v1')
    h('v_xor_b32 v21, v21, v22')
    h('v_lshlrev_b32 v20, 10, v20')
    h('v_lshlrev_b32 v22, 4, v21')
    h('v_add_u32 v2, v20, v22')
    h('v_xor_b32 v22, 64, v22')
    h('v_add_u32 v22, 7168, v22')
    h('v_add_u32 v18, v20, v22')
    h('v_add_u32 v19, 14336, v2')
    h('v_add_u32 v20, 14336, v18')
    VX=[2,18,19,20]
    VW=[21,22,23]; VW1=[24,25,26]
    h('s_lshl_b32 s50, s38, 17')
    h('s_lshl_b32 s51, s37, 15')
    h('s_add_u32 s50, s50, s51')
    h('s_lshl_b32 s53, s37, 12')
    h('s_and_b32 s58, s39, 3')
    h('s_lshl_b32 s58, s58, 1')
    h('s_add_u32 s58, s58, s38')
    h('s_and_b32 s58, s58, 7')
    def dmaX(st):
        slot=A_SLOT[st]*SLOT; L=[]
        L.append((f's_add_u32 s61, s58, {st}',None))
        L.append(('s_and_b32 s61, s61, 7',None))
        L.append((f's_add_u32 m0, s53, {slot}',None))
        L.append(('s_lshl_b32 s55, s61, 7',None))
        L.append(('s_add_u32 s55, s55, s50',None))
        for i in range(4):
            L.append((f'buffer_load_dwordx4 v{VX[i]}, {SR(sX)}, s55 offen offset:{1024*i} lds',f'A{st}'))
        return L
    def emit(e, dmas):
        for (ins,tag) in dmas:
            if tag: e.vm(tag,ins)
            else: e(ins)
    h('s_waitcnt lgkmcnt(0)')
    srd(h,sX,pX,2048*512*2)
    emit(h,dmaX(0))
    for p in range(3):
        h(f'v_add_u32 v27, {64*p}, v1')
        h('v_mul_u32_u24 v28, 43691, v27')
        h('v_lshrrev_b32 v28, 19, v28')
        h('v_mul_u32_u24 v29, 12, v28')
        h('v_sub_u32 v29, v27, v29')
        h('v_lshrrev_b32 v30, 2, v29')
        h('v_lshlrev_b32 v30, 10, v30')
        h('v_and_b32 v31, 3, v29')
        h('v_lshlrev_b32 v31, 4, v31')
        h('v_mul_u32_u24 v32, 3072, v28')
        h(f'v_add3_u32 v{VW[p]}, v32, v30, v31')
        if p: h(f'v_subrev_u32 v{VW[p]}, {1024*p}, v{VW[p]}')
        h(f'v_mov_b32 v{33+2*p}, v28')
        h(f'v_mov_b32 v{34+2*p}, v29')
    h('s_mul_i32 s51, s37, 49152')
    h('s_lshl_b32 s52, s39, 6')
    h('s_add_u32 s51, s51, s52')
    h('s_mul_i32 s54, s37, 3072')
    srd(h,sWQ,pWQ,512*1536*2)
    def dmaW(st):
        slot=A_SLOT[st]*SLOT; L=[]
        L.append((f's_add_u32 s61, s58, {st}',None))
        L.append(('s_and_b32 s61, s61, 7',None))
        L.append((f's_add_u32 m0, s54, {slot+XS}',None))
        L.append((f's_mul_i32 s55, s61, {64*3072}',None))
        L.append(('s_add_u32 s55, s55, s51',None))
        for p in range(3):
            L.append((f'buffer_load_dwordx4 v{VW[p]}, {SR(sWQ)}, s55 offen offset:{1024*p} lds',f'A{st}'))
        return L
    emit(h,dmaW(0))
    for p in range(3):
        h(f'v_mul_u32_u24 v32, 2752, v{33+2*p}')
        h(f'v_lshlrev_b32 v31, 4, v{34+2*p}')
        h(f'v_add_u32 v{VW1[p]}, v32, v31')
        if p: h(f'v_subrev_u32 v{VW1[p]}, {1024*p}, v{VW1[p]}')
    h('s_mul_i32 s52, s39, 3')
    h('s_lshl_b32 s56, s39, 1')
    h('s_add_u32 s56, s56, 11')
    h('s_cmp_lt_u32 s39, 11')
    h('s_cselect_b32 s48, s52, s56')
    h('s_cselect_b32 s49, 3, 2')
    h('s_mul_i32 s52, s37, 44032')
    h('s_lshl_b32 s56, s48, 6')
    h('s_add_u32 s52, s52, s56')
    def dmaA(st): return dmaX(st)+dmaW(st)
    def dmaB(st):
        L=[]
        L.append((f's_add_u32 s61, s58, {st}',None))
        L.append(('s_and_b32 s61, s61, 7',None))
        L.append((f's_add_u32 m0, s54, {W1_ADDR[st]}',None))
        L.append((f's_mul_i32 s55, s61, {64*2752}',None))
        L.append(('s_add_u32 s55, s55, s52',None))
        for p in range(3):
            L.append((f'buffer_load_dwordx4 v{VW1[p]}, {SR(sW1)}, s55 offen offset:{1024*p} lds',f'B{st}'))
        return L
    stamp(h,1)
    NINIT=3
    for o_ in OPT:
        if o_.startswith('NI='): NINIT=int(o_[3:])
    for st in range(1,NINIT): emit(h,dmaA(st))
    stamp(h,2)
    srd(h,sW1,pW1,512*1376*2); srd(h,sWS,pWS,WS_SIZE); srd(h,sB1,pB1,1376*2)
    h(f's_load_dwordx2 s[64:65], s[{pWS}:{pWS+1}], 0')
    common_lds_addr(h)
    h('v_lshlrev_b32 v27, 2, v1')
    h.vm('b1', f'buffer_load_dword v31, v27, {SR(sB1)}, s56 offen')
    h('s_cmp_eq_u32 s37, 3')
    h('s_cselect_b32 s57, 0, s37')
    h('s_lshl_b32 s3, s57, 6')
    h(f's_add_u32 s3, s3, {XS}')
    h('v_add_u32 v17, s3, v16')
    PAT=112; ONES=8; SUMA=[116,120]; GRA=[124,104]; CSA=108
    h('v_and_b32 v27, 15, v1')
    h('v_bfe_u32 v28, v1, 4, 1')
    h('v_cmp_eq_u32 vcc, v27, v28')
    h('v_mov_b32 v29, 0x3f803f80')
    h('s_nop 0')
    h(f'v_cndmask_b32 v{PAT}, 0, v29, vcc')
    for r in range(1,4): h(f'v_mov_b32 v{PAT+r}, v{PAT}')
    for r in range(4): h(f'v_mov_b32 v{ONES+r}, v29')
    SIDX=99; SPA=100
    h('v_and_b32 v30, 1, v1')
    h('v_cmp_eq_u32 vcc, 1, v30')
    h('v_mov_b32 v30, 0x44444444')
    h('v_mov_b32 v32, 0xeeeeeeee')
    h(f'v_cndmask_b32 v{SIDX}, v30, v32, vcc')
    h('v_and_b32 v30, 14, v1')
    h('v_cmp_eq_u32 vcc, 0, v30')
    h('v_cmp_eq_u32 s[66:67], 2, v30')
    h('s_nop 0')
    h(f'v_cndmask_b32 v{SPA}, 0, v29, vcc')
    h(f'v_cndmask_b32 v{SPA+2}, 0, v29, s[66:67]')
    h(f'v_mov_b32 v{SPA+1}, v{SPA}')
    h(f'v_mov_b32 v{SPA+3}, v{SPA+2}')
    for b in SUMA+GRA+[CSA]:
        for r in range(4): h(f'v_mov_b32 v{b+r}, 0')
    h('v_lshrrev_b32 v28, 4, v1')
    h('v_bfe_u32 v29, v1, 1, 3')
    h('v_xor_b32 v28, v28, v29')
    h('v_lshlrev_b32 v28, 4, v28')
    h('v_lshlrev_b32 v27, 7, v27')
    h('s_lshl_b32 s3, s37, 12')
    h('v_add3_u32 v5, v27, v28, s3')
    h('v_xor_b32 v6, 64, v5')
    TMP=40; XS16=56
    h('v_and_b32 v27, 3, v1')
    h('v_cmp_eq_u32 s[66:67], 1, v27')
    h('v_cmp_eq_u32 s[68:69], 2, v27')
    h('v_cmp_eq_u32 s[44:45], 3, v27')
    h('s_mov_b32 s46, 0x00f0000f')
    h('s_mov_b32 s47, 0xf0000f00')
    h('v_and_b32 v28, 15, v1')
    h('v_lshlrev_b32 v28, 2, v28')
    h('s_lshl_b32 s3, s37, 7')
    h('v_add_u32 v28, s3, v28')
    h(f'v_add_u32 v28, {L_A}, v28')
    h('v_lshlrev_b32 v29, 2, v1')
    h('s_lshl_b32 s55, s57, 7')
    h(f's_add_u32 s55, s55, {L_CS}')
    h('v_add_u32 v29, s55, v29')
    h('s_waitcnt lgkmcnt(0)')
    h('s_add_u32 s64, s64, 0x7f4a7c15')
    h('s_addc_u32 s65, s65, 0x9e3779b9')
    h(f's_mov_b32 s59, {SLOT}')
    h(f's_mov_b32 s60, {(-4*SLOT)&0xffffffff:#x}')
    if NINIT==3: sched={0:dmaA(3)+dmaA(4), 1:dmaB(0), 2:dmaA(5), 3:dmaA(6), 4:dmaA(7), 5:dmaB(1)+dmaB(2), 6:dmaB(3)+dmaB(4), 7:(dmaB(5)+dmaB(6) if 'b5early' in OPT else [])}
    elif NINIT==2: sched={0:dmaA(2)+dmaA(3), 1:dmaA(4)+dmaB(0), 2:dmaA(5), 3:dmaA(6), 4:dmaA(7), 5:dmaB(1)+dmaB(2), 6:dmaB(3)+dmaB(4), 7:(dmaB(5)+dmaB(6) if 'b5early' in OPT else [])}
    else: sched={0:dmaA(1)+dmaA(2), 1:dmaA(3)+dmaA(4), 2:dmaA(5)+dmaB(0), 3:dmaA(6), 4:dmaA(7), 5:dmaB(1)+dmaB(2), 6:dmaB(3)+dmaB(4), 7:(dmaB(5)+dmaB(6) if 'b5early' in OPT else [])}
    for st in range(8):
        if st==5: fstamp(h,0)
        h.wait_vm(f'A{st}')
        if st==5: fstamp(h,1)
        h('s_barrier')
        if st==5: fstamp(h,2)
        if st==0: stamp(h,3)
        dm=sched[st]
        for u in range(2):
            for kk in range(2):
                h(f'ds_read_b128 {R(XS16+8*u+4*kk,4)}, v{5+kk} offset:{2048*u}')
        for ks in range(4):
            for e in range(2):
                h(f'ds_read_b64_tr_b16 {R(TMP+4*ks+2*e,2)}, v17 offset:{ks*3072+e*768}')
        if st==5: fstamp(h,3)
        k=0; nv=0
        while nv<2 and k<len(dm):
            if dm[k][1]: h.vm(dm[k][1],dm[k][0]); nv+=1
            else: h(dm[k][0])
            k+=1
        val=[]
        for u in range(2):
            val.append(f'v_smfmac_f32_16x16x64_bf16 {R(SUMA[u],4)}, {R(ONES,4)}, {R(XS16+8*u,8)}, v{SIDX}')
            for kk in range(2):
                x=XS16+8*u+4*kk
                val.append(f'ds_read_b128 {R(XF+16*st+4*(2*u+kk),4)}, v{12+2*u+kk}')
                val.append(f'v_mfma_f32_16x16x32_bf16 {R(GRA[u],4)}, {R(x,4)}, {R(x,4)}, {R(GRA[u],4)}')
        val.append('s_waitcnt lgkmcnt(4)')
        for p_ in range(2):
            val.append(f'v_smfmac_f32_16x16x64_bf16 {R(CSA,4)}, {R(SPA,4)}, {R(TMP+8*p_,8)}, v{SIDX}')
        if st<7:
            d=(A_SLOT[st+1]-A_SLOT[st])*SLOT
            sr='s59' if d==SLOT else 's60'
            for r in (12,13,14,15,17,5,6): val.append(f'v_add_u32 v{r}, {sr}, v{r}')
        if st==5: fstamp(h,4)
        h('s_waitcnt lgkmcnt(8)')
        if st==5: fstamp(h,5)
        rest=dm[k:]; vi=0; fs_=6
        for (ins,tag) in rest:
            if tag:
                for _ in range(2):
                    if vi<len(val): h(val[vi]); vi+=1
                h.vm(tag,ins)
                if st==5: fstamp(h,fs_); fs_+=1
            else: h(ins)
        while vi<len(val):
            h(val[vi]); vi+=1
            if st==5 and val[vi-1].startswith('s_waitcnt'): fstamp(h,fs_); fs_+=1
        if st==5: fstamp(h,fs_); fs_+=1
        if st==6: fstamp(h,15)
    h('s_waitcnt lgkmcnt(0)')
    h('s_nop 1')
    for u in range(2):
        gr=GRA[u]; q=32+2*u
        h(f'v_cndmask_b32 v{q}, v{gr}, v{gr+1}, s[66:67]')
        h(f'v_cndmask_b32 v{q}, v{q}, v{gr+2}, s[68:69]')
        h(f'v_cndmask_b32 v{q}, v{q}, v{gr+3}, s[44:45]')
    for u in range(2):
        q=32+2*u; m=SUMA[u]
        h(f'v_add_f32 v{m}, v{m}, v{m+1}')
        h(f'v_mul_f32 v{q}, {f2u(1/512):#x}, v{q}')
        h(f'v_mul_f32 v{m}, {f2u(1/512):#x}, v{m}')
    h(f'v_add_f32 v{CSA}, v{CSA}, v{CSA+1}')
    h(f'v_add_f32 v{CSA+2}, v{CSA+2}, v{CSA+3}')
    for u in range(2):
        q=32+2*u; m=SUMA[u]
        h(f'v_fma_f32 v{q}, -v{m}, v{m}, v{q}')
        h(f'v_max_f32 v{q}, 0, v{q}')
        h(f'v_add_f32 v{q+1}, {f2u(1e-5):#x}, v{q}')
    h('s_mov_b64 exec, 0xffff')
    h(f'ds_write_b32 v29, v{CSA}')
    h(f'ds_write_b32 v29, v{CSA+2} offset:64')
    h('s_mov_b64 exec, -1')
    for u in range(2):
        q=32+2*u
        h(f'v_rsq_f32 v{q+1}, v{q+1}')
    h('s_mov_b64 exec, s[46:47]')
    for u in range(2):
        q=32+2*u; m=SUMA[u]
        h(f'ds_write_b32 v28, v{m} offset:{64*u+L_MU-L_A}')
        h(f'ds_write_b32 v28, v{q+1} offset:{64*u}')
    h('s_mov_b64 exec, -1')
    h('s_waitcnt lgkmcnt(0)')
    stamp(h,4)
    h('s_barrier')
    emit(h,(dmaB(7) if 'b5early' in OPT else dmaB(5)+dmaB(6)+dmaB(7)))
    for u in range(2):
        q=32+2*u; m=SUMA[u]
        h(f'v_mul_f32 v{m+1}, v{q+1}, v{q+1}')
        h(f'v_mul_f32 v{m+1}, v{m+1}, v{q}')
        h(f'v_add_f32 v{m+1}, {f2u(1e-5):#x}, v{m+1}')
    for u in range(2):
        m=SUMA[u]
        h(f'v_rsq_f32 v{m+1}, v{m+1}')
    h('s_lshl_b32 s3, s37, 7')
    h('v_lshlrev_b32 v27, 2, v3')
    for u in range(2):
        q=32+2*u; m=SUMA[u]
        h(f'v_mul_f32 v{m+2}, v{m+1}, v{q+1}')
        h(f'v_mul_f32 v{m+3}, v{m+2}, v{m}')
    h('s_mov_b64 exec, s[46:47]')
    for u in range(2):
        m=SUMA[u]
        h(f'ds_write_b32 v28, v{m+2} offset:{64*u+L_A2-L_A}')
        h(f'ds_write_b32 v28, v{m+3} offset:{64*u+L_A2M-L_A}')
    h('s_mov_b64 exec, -1')
    h('v_add_u32 v28, s3, v27')
    h(f'v_add_u32 v28, {L_A2}, v28')
    h('s_waitcnt lgkmcnt(0)')
    h('ds_read_b32 v38, v28')
    h(f'ds_read_b32 v30, v28 offset:{L_A2M-L_A2}')
    h('v_lshlrev_b32 v34, 16, v31')
    h('v_and_b32 v35, 0xffff0000, v31')
    h('v_lshlrev_b32 v28, 3, v1')
    h(f'v_add_u32 v28, {L_B1}, v28')
    h('v_cmp_gt_u32 vcc, 48, v1')
    h('s_and_saveexec_b64 s[66:67], vcc')
    h('ds_write_b64 v28, v[34:35]')
    h('s_mov_b64 exec, s[66:67]')
    h('s_mov_b32 s62, 0x00030003')
    h('s_mov_b32 s63, 0x00030003')
    ACC=[64,80,96]
    TS=[57,59,60]
    for sl in range(3):
        h(f's_add_u32 s3, s37, {sl}')
        h('s_cmp_ge_u32 s3, 3')
        h('s_cselect_b32 s55, 3, 0')
        h('s_sub_u32 s3, s3, s55')
        h('s_cmp_ge_u32 s3, 3')
        h('s_cselect_b32 s55, 3, 0')
        h('s_sub_u32 s3, s3, s55')
        h(f's_mov_b32 s{TS[sl]}, s3')
    SPB=8; SIB=5; CS1A=124
    for r in range(4): h(f'v_mov_b32 v{SPB+r}, v{SPA+r}')
    h(f'v_mov_b32 v{SIB}, v{SIDX}')
    for r in range(4): h(f'v_mov_b32 v{CS1A+r}, 0')
    for r in range(64,112): h(f'v_mov_b32 v{r}, 0')
    h(f's_lshl_b32 s3, s{TS[0]}, 6')
    h('v_add_u32 v12, s3, v16')
    h('v_add_u32 v13, 86016, v12')
    h('v_add_u32 v14, 126976, v12')
    def waddr(n,e):
        st,ks=divmod(n,4); base=W1_ADDR[st]
        if base<65536-12288: reg,rel=12,base
        elif base<126976: reg,rel=13,base-86016
        else: reg,rel=14,base-126976
        return reg, rel+ks*3072+e*768
    FSET=[40,44,48,52]
    C1=-2*1.4426950408889634*0.7978845608028654
    C2=C1*0.044715
    h(f's_mov_b32 s66, {f2u(C2):#x}')
    h(f'v_mov_b32 v32, {f2u(C1):#x}')
    h('v_lshlrev_b32 v23, 4, v4')
    h('v_lshlrev_b32 v15, 4, v1')
    h('s_lshl_b32 s53, s38, 2')
    h('s_add_u32 s53, s53, s37')
    h('s_mul_i32 s53, s53, 86')
    SO=[67,68,69]
    CA=[33,34,35]
    for sl in range(3):
        h(f's_add_u32 s54, s48, s{TS[sl]}')
        h('s_lshl_b32 s54, s54, 1')
        h('s_add_u32 s54, s54, s53')
        h('s_lshl_b32 s54, s54, 10')
        h(f's_add_u32 s54, s54, {WS_H}')
        h(f's_cmp_ge_u32 s{TS[sl]}, s49')
        h(f's_cselect_b32 s{SO[sl]}, 0x7ff00000, s54')
        h(f's_lshl_b32 s3, s{TS[sl]}, 7')
        h(f'v_add_u32 v{CA[sl]}, s3, v23')
        h(f'v_add_u32 v{CA[sl]}, {L_CS1}, v{CA[sl]}')
    h('v_lshlrev_b32 v29, 2, v1')
    h(f's_lshl_b32 s55, s{TS[0]}, 7')
    h(f's_add_u32 s55, s55, {L_CS1}')
    h('v_add_u32 v29, s55, v29')
    h(f'v_mov_b32 v17, {L_CNT+12}')
    h('v_mov_b32 v7, 1')
    h.wait_vm(['B0','B1'])
    h('s_waitcnt lgkmcnt(0)')
    gbar_arrive(h, 17, 7)
    gbar_wait(h, 17, 6, 4)
    h.lgq=[]
    bar={8:(['B2','B3','B4'],8), 20:(['B5','B6','B7'],12)}
    NM=96
    def wreads(m):
        sl,n=divmod(m,32); fs=FSET[m%4]
        if n==0 and sl>0:
            h(f's_sub_u32 s3, s{TS[sl]}, s{TS[sl-1]}')
            h('s_lshl_b32 s3, s3, 6')
            for rg in (12,13,14): h(f'v_add_u32 v{rg}, s3, v{rg}')
        if sl==0 and n in bar:
            gbar_wait(h, 17, 6, bar[n][1]); h.lgq=[]
        for e in range(2):
            reg,off=waddr(n,e)
            h.lg(f'W{m}', f'ds_read_b64_tr_b16 {R(fs+2*e,2)}, v{reg} offset:{off}')
    TCS=[112,56]; TB1=[120,18]
    def ureads(sl,hf,k):
        cs=TCS[k%2]; b1=TB1[k%2]; q=[]
        for gg in range(2):
            q.append((4,'lg',(f'G{sl}{hf}', f'ds_read_b128 {R(cs+4*gg,4)}, v{CA[sl]} offset:{(16*hf+8*gg)*4}'),0))
            q.append((4,'lg',(f'G{sl}{hf}', f'ds_read_b128 {R(b1+4*gg,4)}, v{CA[sl]} offset:{(16*hf+8*gg)*4+L_B1-L_CS1}'),0))
        return q
    def ucomp(sl,hf,k,mmin):
        cs=TCS[k%2]; b1=TB1[k%2]; acc=ACC[sl]+8*hf; q=[]
        q.append((0,'wait',f'G{sl}{hf}',mmin))
        for r in range(8): q.append((4,'i',f'v_fma_f32 v{b1+r}, -v{cs+r}, v30, v{b1+r}',mmin))
        for r in range(8): q.append((4,'i',f'v_fma_f32 v{acc+r}, v{acc+r}, v38, v{b1+r}',mmin))
        for r in range(8): q.append((4,'i',f'v_mul_f32 v{cs+r}, v{acc+r}, v{acc+r}',mmin))
        for r in range(8): q.append((4,'i',f'v_fma_f32 v{cs+r}, v{cs+r}, s66, v32',mmin))
        for r in range(8): q.append((4,'i',f'v_mul_f32 v{cs+r}, v{cs+r}, v{acc+r}',mmin))
        for r in range(8): q.append((8,'i',f'v_exp_f32 v{cs+r}, v{cs+r}',mmin))
        for r in range(8): q.append((4,'i',f'v_add_f32 v{cs+r}, 1.0, v{cs+r}',mmin))
        for r in range(8): q.append((8,'i',f'v_rcp_f32 v{cs+r}, v{cs+r}',mmin))
        for r in range(8): q.append((4,'i',f'v_mul_f32 v{acc+r}, v{acc+r}, v{cs+r}',mmin))
        if 'lateh' in OPT:
            for i in range(4): q.append((4,'i',f'v_cvt_pk_bf16_f32 v{acc+i}, v{acc+2*i}, v{acc+2*i+1}',mmin))
            return q
        for i in range(4): q.append((4,'i',f'v_cvt_pk_bf16_f32 v{b1+i}, v{acc+2*i}, v{acc+2*i+1}',mmin))
        q.append((4,'i',f'buffer_store_dwordx4 {R(b1,4)}, v15, {W_}, s{SO[sl]} offen offset:{1024*hf} sc1',mmin))
        q.append((0,'i','s_nop 1',mmin))
        return q
    queue=[]
    def drain(budget, m):
        while queue and budget>0 and queue[0][3]<=m:
            c,kind,p,_=queue.pop(0)
            if kind=='lg': h.lg(p[0],p[1])
            elif kind=='wait': h.wait_lg(p)
            elif kind=='gbar': gbar_wait(h, 17, 6, p); h.lgq=[]
            else: h(p)
            budget-=c
    for m in range(3): wreads(m)
    uk=0
    for m in range(NM):
        sl,n=divmod(m,32)
        if sl==0 and (n+4) in bar:
            h.wait_vm(bar[n+4][0]); gbar_arrive(h, 17, 7); h.lgq.append('CNT')
        h.wait_lg(f'W{m}')
        fs=FSET[m%4]
        h(f'v_mfma_f32_32x32x16_bf16 {R(ACC[sl],16)}, {R(fs,4)}, {R(XF+4*n,4)}, {R(ACC[sl],16)}')
        if sl==0 and n%2==1:
            h(f'v_smfmac_f32_16x16x64_bf16 {R(CS1A,4)}, {R(SPB,4)}, {R(FSET[(m-1)%4],8)}, v{SIB}')
        if m+3<NM: wreads(m+3)
        if m==33:
            h('s_nop 3')
            h(f'v_add_f32 v{CS1A}, v{CS1A}, v{CS1A+1}')
            h(f'v_add_f32 v{CS1A+2}, v{CS1A+2}, v{CS1A+3}')
            h('s_mov_b64 exec, 0xffff')
            h.lg('CSW', f'ds_write_b32 v29, v{CS1A}')
            h.lg('CSW', f'ds_write_b32 v29, v{CS1A+2} offset:64')
            h('s_mov_b64 exec, -1')
            h.wait_lg('CSW')
            gbar_arrive(h, 17, 7); h.lgq.append('CNT')
            stamp(h,5)
            queue+=ureads(0,0,0)+ureads(0,1,1)+ucomp(0,0,0,35)
            queue+=[(0,'gbar',16,0)]+ureads(1,0,2)+ucomp(0,1,1,35)
            queue+=ureads(1,1,3)+ucomp(1,0,2,66)
            queue+=ureads(2,0,4)+ucomp(1,1,3,66)
            queue+=ureads(2,1,5)+ucomp(2,0,4,99)+ucomp(2,1,5,99)
        if m>=33: drain(16, m)
    gbar_arrive(h, 17, 7); h.lgq.append('CNT')
    h('s_nop 7')
    drain(1<<30, 1000)
    if 'lateh' in OPT:
        lab=newlab('HW'); done=newlab('HWD')
        h(f'v_mov_b32 v12, {L_CNT+24}')
        h.label(lab)
        h('ds_read_b32 v13, v12')
        h('s_waitcnt lgkmcnt(0)')
        h('v_readfirstlane_b32 s3, v13')
        h('s_nop 0')
        h('s_cmp_eq_u32 s3, 0')
        h(f's_cbranch_scc0 {done}')
        h('s_sleep 8')
        h(f's_branch {lab}')
        h.label(done)
        for sl in range(3):
            for hf in range(2):
                h(f'buffer_store_dwordx4 {R(ACC[sl]+8*hf,4)}, v15, {W_}, s{SO[sl]} offen offset:{1024*hf} sc1')
    stamp(h,6)
    h('s_waitcnt vmcnt(0)')
    h.vmq=[]
    h('s_lshl_b32 s48, s38, 4')
    h('s_add_u32 s48, s48, s39')
    h('s_lshl_b32 s48, s48, 7')
    h(f's_add_u32 s48, s48, {F_2}')
    signal(h, L_CNT+4, 3, 's48', 40)

    h('s_setprio 2' if 'g2hi' in OPT else 's_setprio 0')
    h('s_and_b32 s52, s2, 7')
    h('s_lshr_b32 s53, s2, 3')
    h('s_and_b32 s54, s53, 3')
    h('s_lshl_b32 s52, s52, 2')
    h('s_add_u32 s58, s52, s54')
    h('s_lshr_b32 s59, s53, 2')
    h('v_lshlrev_b32 v5, 4, v1')
    h('v_lshlrev_b32 v8, 7, v1')
    sWw=24
    h('s_lshr_b32 s52, s2, 3')
    h('s_lshl_b32 s52, s52, 2')
    h('s_add_u32 s52, s52, s37')
    h('s_lshl_b32 s52, s52, 14')
    h(f's_cmp_ge_u32 s52, {1376*1024}')
    h(f's_cselect_b32 s{sWw}, s{pWO}, s{pW2}')
    h(f's_cselect_b32 s{sWw+1}, s{pWO+1}, s{pW2+1}')
    h(f's_cselect_b32 s53, {1376*1024}, 0')
    h('s_sub_u32 s52, s52, s53')
    h('s_cmp_eq_u32 s53, 0')
    h(f's_mov_b32 s26, {512*512*2}')
    h(f's_cselect_b32 s26, {1376*512*2}, s26')
    h(f's_mov_b32 s{sWw+3}, 0x00020000')
    for k in range(0 if 'nowarm' in OPT else 16):
        h(f'buffer_load_dwordx4 v[40:43], v5, {SR(sWw)}, s52 offen offset:{1024*(k%4)}')
        if k%4==3: h('s_add_u32 s52, s52, 4096')
    sW2=24
    h('s_lshr_b32 s52, s58, 1')
    h('s_lshl_b32 s52, s52, 11')
    h(f's_add_u32 s52, s52, {F_2}')
    stamp(h,7)
    poll_wg(h, 16, 'v8', 's52', 26, 4, L_CNT+20)
    stamp(h,8)
    srd(h,sW2,pW2,1376*512*2)
    h('s_sub_u32 s60, s36, 4')
    h('s_mul_i32 s61, s60, 22')
    h('s_cmp_eq_u32 s60, 3')
    h('s_cselect_b32 s52, 1, 0')
    h('s_sub_u32 s61, s61, s52')
    h('s_cmp_lt_u32 s60, 2')
    h('s_cselect_b32 s62, 22, 21')
    h('s_lshl_b32 s63, s59, 1')
    h('s_and_b32 s52, s58, 3')
    h('s_add_u32 s63, s63, s52')
    h('s_sub_u32 s57, s62, s63')
    h('s_add_u32 s61, s61, s63')
    h('s_lshl_b32 s52, s58, 1')
    h('s_mul_i32 s52, s52, 86')
    h('s_add_u32 s52, s52, s61')
    h('s_lshl_b32 s52, s52, 10')
    h(f's_add_u32 s52, s52, {WS_H}')
    h('s_lshl_b32 s54, s61, 14')
    h('s_lshl_b32 s55, s59, 7')
    h('s_add_u32 s54, s54, s55')
    h('s_lshl_b32 s56, s62, 10')
    h('s_lshl_b32 s53, s62, 14')
    h('s_mov_b32 s50, s57')
    h(f's_mul_i32 s55, s60, {RINGSZ}')
    h(f's_add_u32 s55, s55, {L_RING}')
    def wdma_voff(e):
        e('v_lshrrev_b32 v10, 3, v1')
        e('v_lshlrev_b32 v10, 10, v10')
        e('v_and_b32 v11, 7, v1')
        e('v_bfe_u32 v12, v1, 4, 1')
        e('v_lshlrev_b32 v12, 2, v12')
        e('v_xor_b32 v11, v11, v12')
        e('v_lshlrev_b32 v11, 4, v11')
        e('v_add_u32 v10, v10, v11')
        e('v_add_u32 v11, 7168, v10')
    wdma_voff(h)
    h(f'v_add_u32 v17, {86*1024}, v5')
    def tr_addr(e, dst, base_s):
        e('v_bfe_u32 v13, v1, 2, 2')
        e('v_lshlrev_b32 v14, 2, v4')
        e('v_add_u32 v14, v14, v13')
        e('v_lshlrev_b32 v14, 7, v14')
        e('v_bfe_u32 v15, v1, 4, 1')
        e('v_lshlrev_b32 v15, 1, v15')
        e('v_and_b32 v16, 1, v1')
        e('v_add_u32 v15, v15, v16')
        e('v_lshrrev_b32 v13, 1, v13')
        e('v_lshlrev_b32 v13, 2, v13')
        e('v_xor_b32 v15, v15, v13')
        e('v_lshlrev_b32 v15, 4, v15')
        e('v_bfe_u32 v16, v1, 1, 1')
        e('v_lshlrev_b32 v16, 3, v16')
        e('v_add3_u32 v14, v14, v15, v16')
        e(f'v_add_u32 v{dst}, {base_s}, v14')
        e(f'v_xor_b32 v{dst+1}, 64, v{dst}')
    tr_addr(h, 18, 's55')
    def tail_prep(e):
        e('s_and_b32 s37, s36, 1')
        e('s_bfe_u32 s38, s36, 0x10001')
        e('s_lshr_b32 s39, s36, 2')
        srd(e,32,pOUT,2048*512*2)
        e('s_lshl_b32 s3, s58, 6')
        e('s_lshl_b32 s42, s37, 5')
        e('s_add_u32 s3, s3, s42')
        e('v_add_u32 v20, s3, v3')
        e('v_lshlrev_b32 v20, 10, v20')
        e('s_lshl_b32 s3, s59, 6')
        e('s_lshl_b32 s42, s38, 5')
        e('s_add_u32 s3, s3, s42')
        e('s_lshl_b32 s42, s39, 4')
        e('s_add_u32 s3, s3, s42')
        e('v_lshlrev_b32 v21, 3, v4')
        e('v_add_u32 v21, s3, v21')
        e('v_lshlrev_b32 v21, 1, v21')
        e('v_add_u32 v20, v20, v21')
        srd(e,44,pX,2048*512*2)
        e(f'buffer_load_dwordx4 v[24:27], v20, {SR(44)}, 0 offen')
        srd(e,44,pB2,512*2)
        e(f'buffer_load_dwordx4 v[28:31], v21, {SR(44)}, 0 offen')
        e('s_lshl_b32 s3, s39, 15')
        e(f's_add_u32 s3, s3, {L_WO}')
        tr_addr(e, 21, 's3')
        e('s_lshl_b32 s3, s38, 6')
        e('v_xor_b32 v21, s3, v21')
        e('s_lshl_b32 s3, s37, 15')
        e('s_lshl_b32 s42, s39, 14')
        e('s_add_u32 s3, s3, s42')
        e(f's_add_u32 s3, s3, {L_OX}')
        e('v_add_u32 v22, s3, v5')
        e('s_lshl_b32 s3, s38, 4')
        e('s_lshl_b32 s42, s39, 1')
        e('s_add_u32 s3, s3, s42')
        e('s_lshl_b32 s40, s58, 1')
        e('s_add_u32 s40, s40, s37')
        e('s_lshl_b32 s40, s40, 5')
        e('s_add_u32 s40, s40, s3')
        e('s_lshl_b32 s40, s40, 10')
        e(f's_add_u32 s40, s40, {WS_O}')
        e('s_lshl_b32 s41, s37, 5')
        e('s_add_u32 s41, s41, s3')
        e('s_lshl_b32 s41, s41, 10')
        e(f's_add_u32 s41, s41, {L_OX}')
        e('s_and_b32 s3, s36, 3')
        e('s_lshl_b32 s3, s3, 12')
        e(f's_add_u32 s3, s3, {L_EX}')
        e('s_lshl_b32 s42, s39, 11')
        e('s_add_u32 s43, s3, s42')
        e('v_add_u32 v23, s43, v5')
        e('s_xor_b32 s42, s42, 2048')
        e('s_add_u32 s43, s3, s42')
        e('v_add_u32 v6, s43, v5')
        e('s_lshr_b32 s42, s58, 2')
        e('s_lshl_b32 s42, s42, 12')
        e(f's_add_u32 s42, s42, {F_3}')
        e('s_waitcnt vmcnt(0)')
        for i in range(4):
            e(f'v_lshlrev_b32 v{40+2*i}, 16, v{24+i}')
            e(f'v_and_b32 v{41+2*i}, 0xffff0000, v{24+i}')
        for i in range(4):
            e(f'v_lshlrev_b32 v{24}, 16, v{28+i}')
            e(f'v_and_b32 v{25}, 0xffff0000, v{28+i}')
            e(f'v_add_f32 v{40+2*i}, v{40+2*i}, v24')
            e(f'v_add_f32 v{41+2*i}, v{41+2*i}, v25')
        e.vmq=[]
    GA=[[192,208],[224,240]]
    XR=[48+8*i for i in range(XD)]
    WB=[24,32]
    def x_issue(i):
        b=XR[i%XD]
        h.vm(f'X{i}', f'buffer_load_dwordx4 {R(b,4)}, v5, {W_}, s52 offen sc1')
        h.vm(f'X{i}', f'buffer_load_dwordx4 {R(b+4,4)}, v17, {W_}, s52 offen sc1')
        h('s_add_u32 s52, s52, 1024')
        h('s_sub_u32 s57, s57, 1')
        h('s_cmp_eq_u32 s57, 0')
        h('s_cselect_b32 s63, s56, 0')
        h('s_sub_u32 s52, s52, s63')
    def w_issue(i):
        h(f's_add_u32 m0, s55, {(i%WD)*2048}')
        h('s_sub_u32 s50, s50, 1')
        h.vm(f'W{i}', f'buffer_load_dwordx4 v10, {SR(sW2)}, s54 offen lds')
        h.vm(f'W{i}', f'buffer_load_dwordx4 v11, {SR(sW2)}, s54 offen offset:1024 lds')
        h('s_add_u32 s54, s54, 16384')
        h('s_cmp_eq_u32 s50, 0')
        h('s_cselect_b32 s63, s53, 0')
        h('s_sub_u32 s54, s54, s63')
    def g2_wread(i):
        for ct in range(2):
            for e in range(2):
                h(f'ds_read_b64_tr_b16 {R(WB[i%2]+4*ct+2*e,2)}, v{18+ct} offset:{(i%WD)*2048+e*1024}')
    if 'nog2' in OPT: h('s_branch K_G2_DONE')
    h.vmq=[]
    THR=6
    for o_ in OPT:
        if o_.startswith('THR='): THR=int(o_[4:])
    for i in range(XD):
        if i<WD: w_issue(i)
        x_issue(i)
        if THR<63 and len(h.vmq)>THR:
            h(f's_waitcnt vmcnt({THR-4 if THR>4 else 0})'); h.vmq=h.vmq[len(h.vmq)-(THR-4 if THR>4 else 0):] if THR>4 else []
    for tt in range(2):
        for ct in range(2):
            for r in range(16): h(f'v_mov_b32 v{GA[tt][ct]+r}, 0')
    if 'now2warm' not in OPT:
        h('s_mov_b32 s48, s54'); h('s_mov_b32 s49, s50')
        for i in range(WD,22):
            if i%2==0: h.wait_vm_all()
            h.vm('L2', f'buffer_load_dwordx4 v[40:43], v10, {SR(sW2)}, s48 offen')
            h.vm('L2', f'buffer_load_dwordx4 v[40:43], v11, {SR(sW2)}, s48 offen offset:1024')
            h('s_add_u32 s48, s48, 16384')
            h('s_sub_u32 s49, s49, 1')
            h('s_cmp_eq_u32 s49, 0')
            h('s_cselect_b32 s63, s53, 0')
            h('s_sub_u32 s48, s48, s63')
    h.wait_vm_all()
    tail_prep(h)
    lab=newlab('G2W'); done=newlab('G2WD')
    h(f'v_mov_b32 v12, {L_CNT+G2CNT}')
    h.label(lab)
    h('ds_read_b32 v13, v12')
    h('s_waitcnt lgkmcnt(0)')
    h('v_readfirstlane_b32 s3, v13')
    h('s_nop 0')
    h(f's_cmp_ge_u32 s3, {G2TGT}')
    h(f's_cbranch_scc1 {done}')
    h('s_sleep 16')
    h(f's_branch {lab}')
    h.label(done)
    h('s_setprio 2')
    stamp(h,9)
    h.wait_vm_all()
    g2_wread(0)
    NK=22
    for i in range(NK):
        if i+1<NK:
            h.wait_vm([f'W{i+1}'])
            g2_wread(i+1)
            h.wait_vm([f'X{i}'])
            h('s_waitcnt lgkmcnt(4)')
        else:
            h.wait_vm([f'X{i}'])
            h('s_waitcnt lgkmcnt(0)')
            h('s_cmp_eq_u32 s62, 21')
            h('s_cbranch_scc1 K_G2_DONE')
        b=XR[i%XD]
        for tt in range(2):
            for ct in range(2):
                h(f'v_mfma_f32_32x32x16_bf16 {R(GA[tt][ct],16)}, {R(WB[i%2]+4*ct,4)}, {R(b+4*tt,4)}, {R(GA[tt][ct],16)}')
        if i+WD<NK: w_issue(i+WD)
        if i+XD<NK: x_issue(i+XD)
    h.label('K_G2_DONE')
    h('s_waitcnt vmcnt(0) lgkmcnt(0)')
    stamp(h,11)
    h('s_nop 7')
    for tt in range(2):
        for ct in range(2):
            qd=tt+2*ct
            lab=newlab('GXS')
            h(f's_cmp_eq_u32 s60, {qd}')
            h(f's_cbranch_scc1 {lab}')
            h(f's_sub_u32 s52, {qd+3}, s60')
            h('s_and_b32 s52, s52, 3')
            h('s_lshl_b32 s52, s52, 12')
            h('s_add_u32 s52, s52, s55')
            h('v_add_u32 v14, s52, v5')
            for k in range(4): h(f'ds_write_b128 v14, {R(GA[tt][ct]+4*k,4)} offset:{1024*k}')
            h.label(lab)
    def att_ids(e):
        e('s_and_b32 s48, s2, 7')
        e('s_lshr_b32 s49, s2, 3')
        e('s_and_b32 s50, s49, 3')
        e('s_lshl_b32 s48, s48, 2')
        e('s_add_u32 s38, s48, s50')
        e('s_lshr_b32 s39, s49, 2')
    h(f'v_mov_b32 v12, {L_CNT+12}')
    h('v_mov_b32 v13, 1')
    h('s_waitcnt lgkmcnt(0)')
    gbar_arrive(h, 12, 13)
    gbar_wait(h, 12, 13, 24)
    for sl in range(3):
        h(f's_sub_u32 s52, s60, {sl+1}')
        h('s_and_b32 s52, s52, 3')
        h(f's_mul_i32 s52, s52, {RINGSZ}')
        h(f's_add_u32 s52, s52, {L_RING+4096*sl}')
        h('v_add_u32 v14, s52, v5')
        for k in range(4): h(f'ds_read_b128 {R(128+16*sl+4*k,4)}, v14 offset:{1024*k}')
    h('s_waitcnt lgkmcnt(8)')
    gxe=newlab('GXE')
    for qd in range(4):
        lab=newlab('GXQ')
        tt,ct=qd&1,qd>>1
        if qd<3:
            h(f's_cmp_lg_u32 s60, {qd}')
            h(f's_cbranch_scc1 {lab}')
        for r in range(16): h(f'v_add_f32 v{192+r}, v{GA[tt][ct]+r}, v{128+r}')
        if qd<3:
            h(f's_branch {gxe}')
            h.label(lab)
    h.label(gxe)
    h('s_waitcnt lgkmcnt(4)')
    for r in range(16): h(f'v_add_f32 v{192+r}, v{192+r}, v{144+r}')
    h('s_waitcnt lgkmcnt(0)')
    for r in range(16): h(f'v_add_f32 v{192+r}, v{192+r}, v{160+r}')
    h('s_branch K_TAIL')

    a2=Asm()
    a2.label('K_ATT')
    a2('s_setprio 1')
    att_ids(a2)
    a2('v_lshlrev_b32 v5, 4, v1')
    a2('v_lshlrev_b32 v6, 8, v4')
    a2('v_and_b32 v7, 15, v1')
    a2('v_lshlrev_b32 v7, 4, v7')
    a2('v_add_u32 v6, v6, v7')
    a2('v_lshlrev_b32 v8, 7, v1')
    a2('v_lshlrev_b32 v9, 2, v1')
    a2('s_lshl_b32 s44, s38, 16')
    a2('s_lshl_b32 s46, s39, 13')
    a2('s_add_u32 s46, s46, s44')
    a2(f's_add_u32 s46, s46, {WS_Q}')
    a2('s_lshl_b32 s47, s36, 14')
    a2('s_add_u32 s47, s47, s44')
    a2(f's_add_u32 s48, s47, {WS_V}')
    a2(f's_add_u32 s47, s47, {WS_K}')
    a2('s_mov_b32 s40, s47')
    a2('s_mov_b32 s41, s48')
    a2('s_lshr_b32 s49, s38, 1')
    a2('s_mul_i32 s49, s49, 1536')
    a2(f's_add_u32 s49, s49, {WS_N}')
    a2('s_mov_b32 s50, 0x0000ffff')
    a2('s_mov_b32 s51, 0x0000ffff')
    KB=[80,84,88,92]; VB=[96,104,112,120]; QF=48
    SA,SB=10,26
    OA=[128+16*i for i in range(8)]; IDX=44
    a2('v_and_b32 v12, 27, v3')
    a2('v_cmp_eq_u32 vcc, 16, v12')
    a2('v_mov_b32 v12, 0x3f803f80')
    a2('s_nop 0')
    a2(f'v_cndmask_b32 v{IDX}, 0, v12, vcc')
    for b in VB:
        for r in range(8): a2(f'v_mov_b32 v{b+r}, v{IDX}')
    a2(f'v_mov_b32 v{IDX}, 0xdddddddd')
    for o in OA:
        for r in range(16): a2(f'v_mov_b32 v{o+r}, 0')
    for r in range(8,16): a2(f'v_mov_b32 v{SB+r}, 0')
    for p_ in range(4):
        a2(f's_sub_u32 s52, s36, {p_+1}')
        a2('s_and_b32 s52, s52, 3')
        a2('s_mul_i32 s52, s52, 2304')
        a2(f's_add_u32 s{56+p_}, s52, {2*p_*3*2304}')
    a2('s_lshl_b32 s52, s36, 1')
    a2('s_lshl_b32 s52, 3, s52')
    a2('s_xor_b32 s45, s52, 0xff')
    a2('s_lshr_b32 s52, s38, 1')
    a2('s_lshl_b32 s52, s52, 11')
    a2(f's_add_u32 s52, s52, {F_1}')
    stamp(a2,7)
    poll_wg(a2, 16, 'v8', 's52', 18, 0, L_CNT+24)
    stamp(a2,8)
    def loadkv(b, ko):
        a2.vm('KV', f'buffer_load_dwordx4 {R(KB[b],4)}, v5, {W_}, s47 offen offset:{1024*ko} sc1')
        a2('s_mov_b64 exec, s[50:51]')
        a2.vm('KV', f'buffer_load_dwordx4 {R(VB[b],4)}, v6, {W_}, s48 offen offset:{1024*ko} sc1')
        a2.vm('KV', f'buffer_load_dwordx4 {R(VB[b]+4,4)}, v6, {W_}, s48 offen offset:{1024*ko+512} sc1')
        a2('s_mov_b64 exec, -1')
    a2.vm('KV', f'buffer_load_dwordx4 {R(KB[0],4)}, v5, {W_}, s47 offen sc1')
    a2.vm('Q', f'buffer_load_dwordx4 {R(QF,4)}, v5, {W_}, s46 offen sc1')
    a2('s_mov_b64 exec, s[50:51]')
    a2.vm('KV', f'buffer_load_dwordx4 {R(VB[0],4)}, v6, {W_}, s48 offen sc1')
    a2.vm('KV', f'buffer_load_dwordx4 {R(VB[0]+4,4)}, v6, {W_}, s48 offen offset:512 sc1')
    a2('s_mov_b64 exec, -1')
    for i in range(1,4):
        a2.vm('Q', f'buffer_load_dwordx4 {R(QF+4*i,4)}, v5, {W_}, s46 offen offset:{1024*i} sc1')
    a2('s_add_u32 s46, s46, 4096')
    for i in range(4,8):
        a2.vm('Q', f'buffer_load_dwordx4 {R(QF+4*i,4)}, v5, {W_}, s46 offen offset:{1024*(i-4)} sc1')
    NR=(42,43,45,46,47,2)
    for k,rg in enumerate(NR):
        a2.vm('N', f'buffer_load_dword v{rg}, v9, {W_}, s49 offen offset:{256*k} sc1')
    loadkv(1,1); loadkv(2,2)
    a2('s_add_u32 s47, s47, 3072')
    a2('s_add_u32 s48, s48, 3072')
    def qk(kb, i, dst): return f'v_mfma_f32_32x32x16_bf16 {R(dst,16)}, {R(KB[kb],4)}, {R(QF+4*i,4)}, 0'
    def pv(kb, i, half, src): return f'v_smfmac_f32_32x32x32_bf16 {R(OA[i],16)}, {R(VB[kb]+4*half,4)}, {R(src+8*half,8)}, v{IDX}'
    a2('s_mov_b32 s42, 0')
    a2('s_mov_b32 s43, 0')
    a2('s_waitcnt vmcnt(21)')
    stamp(a2,9)
    a2(qk(0,0,SA))
    a2('s_nop 7'); a2('s_nop 3')
    a2.label('K_ATT_LOOP')
    G2N=4; G2P=3
    for o_ in OPT:
        if o_.startswith('G2N='): G2N=int(o_[4:])
        if o_.startswith('G2P='): G2P=int(o_[4:])
    ool=Asm()
    def red_write(i, inline=False):
        lab=newlab('RW'); back=newlab('RWB')
        e=a2 if inline else ool
        a2(f's_bitcmp1_b32 s43, {i}')
        if inline: a2(f's_cbranch_scc0 {back}')
        else:
            a2(f's_cbranch_scc1 {lab}'); ool.label(lab)
        p_=i>>1; off=(i&1)*3*2304
        e(f'v_add_u32 v42, s{56+p_}, v5')
        e(f'v_add_u32 v43, s{56+p_}, v9')
        e(f'ds_write_b128 v42, {R(OA[i],4)} offset:{off}')
        e(f'ds_write_b128 v42, {R(OA[i]+4,4)} offset:{off+1024}')
        e(f'ds_write_b32 v43, v{OA[i]+8} offset:{off+2048}')
        if not inline: ool(f's_branch {back}')
        a2.label(back)
    for n in range(32):
        kb,i=divmod(n,8)
        sa=SA if n%2==0 else SB
        sb=SB if n%2==0 else SA
        ex=[f'v_exp_f32 v{sa+r}, v{sa+r}' for r in range(16)]
        if 'noexp' in OPT: ex=[f'v_mov_b32 v{sa+r}, v{sa+r}' for r in range(16)]
        for e in ex[0:2]: a2(e)
        pkb,pi=divmod((n-1)%32,8)
        if 'nopv' not in OPT: a2(pv(pkb,pi,1,sb))
        if i==0 and 'noload' not in OPT: loadkv((kb+3)%4, kb)
        if kb==1 and i==1:
            lab=newlab('CHK'); back=newlab('CHKB')
            a2('s_cmp_eq_u32 s42, 0')
            a2(f's_cbranch_scc1 {lab}')
            ool.label(lab)
            for sh in (1,2,4,8):
                for r in NR: ool(f'v_max_f32_dpp v{r}, v{r}, v{r} row_shr:{sh} row_mask:0xf bank_mask:0xf')
            for r in NR: ool(f'v_max_f32_dpp v{r}, v{r}, v{r} row_bcast:15 row_mask:0xa bank_mask:0xf')
            for r in NR: ool(f'v_max_f32_dpp v{r}, v{r}, v{r} row_bcast:31 row_mask:0xc bank_mask:0xf')
            ool('v_add_f32 v42, v42, v43')
            ool('v_add_f32 v45, v45, v46')
            ool('v_max_f32 v47, v47, v2')
            ool('v_mul_f32 v42, v42, v45')
            ool(f'v_mul_f32 v42, {f2u(1.05):#x}, v42')
            ool(f'v_mov_b32 v43, {f2u(T_LOG2*T_LOG2):#x}')
            ool(f'v_mov_b32 v45, {f2u(2.0**60):#x}')
            ool('v_cmp_le_f32 vcc, v42, v43')
            ool('v_cmp_le_f32 s[52:53], v47, v45')
            ool('s_nop 1')
            ool('s_and_b64 vcc, vcc, s[52:53]')
            ool('s_bitcmp1_b64 vcc, 63')
            ool('s_cbranch_scc0 K_SLOW')
            ool(f'v_mov_b32 v42, {L_CNT+12}')
            gbar_wait(ool, 42, 43, 20)
            ool(f's_branch {back}')
            a2.label(back)
        for e in ex[2:5]: a2(e)
        nkb,ni=divmod((n+1)%32,8)
        if i==7: a2('s_waitcnt vmcnt(6)')
        if kb==0 and i<7: a2(f's_waitcnt vmcnt({21-i})')
        if 'noqk' not in OPT: a2(qk(nkb,ni,sb))
        for e in ex[5:11]: a2(e)
        if n==0: a2('s_waitcnt vmcnt(22)')
        if 'nopv' not in OPT: a2(pv(kb,i,0,sa))
        if kb==3 and i>=2: red_write(i-2)
        if n==G2N:
            lab=newlab('G2E'); back=newlab('G2EB')
            a2(f's_cmp_eq_u32 s42, {G2P}')
            a2(f's_cbranch_scc1 {lab}')
            ool.label(lab)
            ool(f'v_mov_b32 v46, {L_CNT+G2CNT}')
            ool('v_mov_b32 v47, 1')
            gbar_arrive(ool, 46, 47)
            ool('s_waitcnt lgkmcnt(0)')
            ool('s_wakeup')
            ool(f's_branch {back}')
            a2.label(back)
        for e in ex[11:16]: a2(e)
    a2('s_add_u32 s47, s47, 4096')
    a2('s_add_u32 s48, s48, 4096')
    a2('s_add_u32 s42, s42, 1')
    a2('s_cmp_eq_u32 s42, 3')
    a2('s_cselect_b32 s43, s45, 0')
    a2('s_cmp_lt_u32 s42, 4')
    a2('s_cbranch_scc1 K_ATT_LOOP')
    a2('s_nop 1')
    a2(pv(3,7,1,SB))
    if G2N>31:
        a2(f'v_mov_b32 v46, {L_CNT+G2CNT}')
        a2('v_mov_b32 v47, 1')
        gbar_arrive(a2, 46, 47)
        a2('s_mov_b32 s43, s45')
        red_write(6, True)
        a2('s_waitcnt lgkmcnt(0)')
        a2('s_wakeup')
        a2('s_nop 3')
    else:
        a2('s_mov_b32 s43, s45')
        red_write(6, True)
        a2('s_nop 7'); a2('s_nop 1')
    red_write(7, True)
    a2('s_branch K_ATT_RED')
    a2.label('K_ATT_DONE')
    a2('s_mov_b32 s43, s45')
    for i in range(8): red_write(i, True)
    a2.label('K_ATT_RED')
    a2('s_setprio 3')
    stamp(a2,10)
    a2.vmq=[]
    a2('s_and_b32 s52, s2, 7')
    a2('s_lshr_b32 s53, s2, 3')
    a2('s_and_b32 s54, s53, 3')
    a2('s_lshl_b32 s52, s52, 2')
    a2('s_add_u32 s58, s52, s54')
    a2('s_lshr_b32 s59, s53, 2')
    a2(f'v_mov_b32 v78, {L_CNT+28}')
    a2('v_mov_b32 v79, 1')
    a2(f's_mul_i32 s53, s36, {6*2304}')
    a2('v_add_u32 v2, s53, v5')
    a2('v_add_u32 v7, s53, v9')
    a2('s_waitcnt lgkmcnt(0)')
    gbar_arrive(a2, 78, 79)
    a2('s_lshl_b32 s53, s39, 3')
    a2('s_lshl_b32 s52, s36, 1')
    a2('s_add_u32 s53, s53, s52')
    a2('s_lshl_b32 s53, s53, 5')
    a2('s_add_u32 s53, s53, s38')
    a2('s_lshl_b32 s53, s53, 10')
    a2(f's_add_u32 s53, s53, {WS_O}')
    gbar_wait(a2, 78, 77, 4)
    stamp(a2,12)
    RB=[[10,22,32],[44,56,68]]
    for t_ in range(2):
        for k in range(3):
            b=RB[t_][k]; off=(t_*3+k)*2304
            a2(f'ds_read_b128 {R(b,4)}, v2 offset:{off}')
            a2(f'ds_read_b128 {R(b+4,4)}, v2 offset:{off+1024}')
            a2(f'ds_read_b32 v{b+8}, v7 offset:{off+2048}')
    for t_ in range(2):
        b=RB[t_][0]
        if t_==0: a2('s_waitcnt lgkmcnt(9)')
        if t_==1: a2('s_waitcnt lgkmcnt(0)'); gbar_arrive(a2, 78, 79)
        e_=newlab('RFE')
        for p_ in range(4):
            lab=newlab('RFQ')
            if p_<3:
                a2(f's_cmp_lg_u32 s36, {p_}'); a2(f's_cbranch_scc1 {lab}')
            for r in range(9): a2(f'v_add_f32 v{b+r}, v{OA[2*p_+t_]+r}, v{b+r}')
            if p_<3:
                a2(f's_branch {e_}'); a2.label(lab)
        a2.label(e_)
        for k in (1,2):
            for r in range(9): a2(f'v_add_f32 v{b+r}, v{b+r}, v{RB[t_][k]+r}')
        a2(f'v_rcp_f32 v{b+9}, v{b+8}')
        a2('s_nop 0')
        for r in range(8): a2(f'v_mul_f32 v{b+r}, v{b+r}, v{b+9}')
        c=RB[t_][1]
        for i in range(4): a2(f'v_cvt_pk_bf16_f32 v{c+i}, v{b+2*i}, v{b+2*i+1}')
        a2(f'buffer_store_dwordx4 {R(c,4)}, v5, {W_}, s53 offen sc1')
        if t_==0: a2(f's_add_u32 s53, s53, {32*1024}')
    ACC3=192
    for r in range(16): a2(f'v_mov_b32 v{ACC3+r}, 0')
    a2('s_lshl_b32 s52, s39, 5')
    a2('s_add_u32 s52, s52, s38')
    a2('s_lshl_b32 s52, s52, 7')
    a2(f's_add_u32 s52, s52, {F_3}')
    a2('s_waitcnt vmcnt(0)')
    signal(a2, L_CNT+8, 3, 's52', 46)
    if 'abs' in OPT: stamp(a2,11)
    a2('s_setprio 0')
    tail_prep(a2)
    a2('s_cmp_eq_u32 s36, 0')
    a2('s_cbranch_scc1 K_TAIL')
    a2(f'v_mov_b32 v12, {L_CNT+28}')
    gbar_wait(a2, 12, 13, 8)
    sWO=24
    srd(a2,sWO,pWO,512*512*2)
    wdma_voff(a2)
    a2('s_sub_u32 s54, s36, 1')
    a2('s_lshl_b32 s52, s54, 14')
    a2('s_lshl_b32 s53, s59, 7')
    a2('s_add_u32 s52, s52, s53')
    a2('s_lshl_b32 s53, s54, 11')
    for i in range(11):
        a2(f's_add_u32 m0, s53, {L_WO+3*2048*i}')
        a2('s_nop 0')
        a2(f'buffer_load_dwordx4 v10, {SR(sWO)}, s52 offen lds')
        a2(f'buffer_load_dwordx4 v11, {SR(sWO)}, s52 offen offset:1024 lds')
        a2(f's_add_u32 s52, s52, {3*16384}')
    a2.label('K_TAIL')
    a2('s_setprio 0')
    a2('v_lshlrev_b32 v8, 7, v1')
    stamp(a2,13)
    a2('s_cmp_eq_u32 s36, 0')
    a2('s_cbranch_scc0 K_S3W')
    poll(a2, 32, 'v8', 's42', 48)
    a2.label('K_S3W')
    a2('s_waitcnt vmcnt(0)')
    a2.vmq=[]
    a2('s_barrier')
    stamp(a2,14)
    for s_ in range(4):
        a2(f's_add_u32 m0, s41, {4096*s_}')
        a2(f's_add_u32 s55, s40, {4096*s_}')
        a2.vm(f'O{s_}', f'buffer_load_dwordx4 v5, {W_}, s55 offen sc1 lds')
        a2.vm(f'O{s_}', f'buffer_load_dwordx4 v5, {W_}, s55 offen offset:1024 sc1 lds')
    a2('s_cmp_eq_u32 s2, 0')
    a2('s_cbranch_scc0 K_NOE')
    a2('s_cmp_eq_u32 s36, 0')
    a2('s_cbranch_scc0 K_NOE')
    a2('v_mov_b32 v60, s64'); a2('v_mov_b32 v61, s65'); a2('v_mov_b32 v62, 0')
    a2('s_mov_b64 exec, 1')
    a2(f'buffer_store_dwordx2 v[60:61], v62, {W_}, 0 offen')
    a2('s_mov_b64 exec, -1')
    a2('s_waitcnt vmcnt(0)')
    a2.label('K_NOE')
    FX=[64,68,72,76]; FW=[80,84,88,92]
    for s_ in range(4):
        a2.wait_vm(f'O{s_}')
        a2('s_barrier')
        for k in range(4):
            ks=4*s_+k
            a2(f'ds_read_b128 {R(FX[k],4)}, v22 offset:{ks*1024}')
            a2(f'ds_read_b64_tr_b16 {R(FW[k],2)}, v21 offset:{ks*2048}')
            a2(f'ds_read_b64_tr_b16 {R(FW[k]+2,2)}, v21 offset:{ks*2048+1024}')
        for k in range(4):
            a2(f's_waitcnt lgkmcnt({3*(3-k)})')
            a2(f'v_mfma_f32_32x32x16_bf16 {R(ACC3,16)}, {R(FW[k],4)}, {R(FX[k],4)}, {R(ACC3,16)}')
    stamp(a2,15)
    a2('s_cmp_eq_u32 s39, 0')
    a2('s_cbranch_scc1 K_KH0')
    a2('s_nop 7'); a2('s_nop 3')
    a2(f'ds_write_b128 v23, {R(ACC3,4)}')
    a2(f'ds_write_b128 v23, {R(ACC3+4,4)} offset:1024')
    for r in range(8): a2(f'v_add_f32 v{40+r}, v{40+r}, v{ACC3+8+r}')
    a2('s_branch K_EX')
    a2.label('K_KH0')
    a2('s_nop 7'); a2('s_nop 3')
    a2(f'ds_write_b128 v23, {R(ACC3+8,4)}')
    a2(f'ds_write_b128 v23, {R(ACC3+12,4)} offset:1024')
    for r in range(8): a2(f'v_add_f32 v{40+r}, v{40+r}, v{ACC3+r}')
    a2.label('K_EX')
    a2('s_waitcnt lgkmcnt(0)')
    a2('s_barrier')
    a2('ds_read_b128 v[64:67], v6')
    a2('ds_read_b128 v[68:71], v6 offset:1024')
    a2('s_waitcnt lgkmcnt(0)')
    for r in range(8): a2(f'v_add_f32 v{40+r}, v{40+r}, v{64+r}')
    for i in range(4): a2(f'v_cvt_pk_bf16_f32 v{64+i}, v{40+2*i}, v{41+2*i}')
    a2(f'buffer_store_dwordx4 v[64:67], v20, {SR(32)}, 0 offen')
    if STAMP and ('rt' in OPT or 'span' in OPT) and 'dbg' not in OPT:
        a2('s_memrealtime s[92:93]'); a2('s_memtime s[100:101]')
    if 'abs' in OPT:
        a2('s_cmp_lt_u32 s36, 4'); a2('s_cbranch_scc0 K_NOABS'); stamp(a2,6); a2.label('K_NOABS')
    stamp_flush(a2,16)
    stamp_dbg(a2)
    a2('s_endpgm')
    a2.label('K_SLOW')
    a2('s_waitcnt vmcnt(0)')
    a2('s_nop 7'); a2('s_nop 7')
    for o in OA:
        for r in range(16): a2(f'v_mov_b32 v{o+r}, 0')
    MX=116
    a2('s_mov_b32 s61, s40')
    for i in range(8): a2(f'v_mov_b32 v{MX+i}, 0xff800000')
    a2('s_mov_b32 s62, 0')
    a2.label('K_S1')
    a2(f'buffer_load_dwordx4 {R(KB[0],4)}, v5, {W_}, s61 offen sc1')
    a2('s_waitcnt vmcnt(0)')
    for i in range(8):
        a2(f'v_mfma_f32_32x32x16_bf16 {R(SA,16)}, {R(KB[0],4)}, {R(QF+4*i,4)}, 0')
        a2('s_nop 7'); a2('s_nop 7')
        for r in range(0,16,2): a2(f'v_max3_f32 v{MX+i}, v{MX+i}, v{SA+r}, v{SA+r+1}')
    a2('s_add_u32 s61, s61, 1024')
    a2('s_add_u32 s62, s62, 1')
    a2('s_cmp_lt_u32 s62, 16')
    a2('s_cbranch_scc1 K_S1')
    for i in range(8): a2(f'v_mov_b32 v{SA+i}, v{MX+i}')
    a2('s_nop 1')
    for i in range(8): a2(f'v_permlane32_swap_b32 v{MX+i}, v{SA+i}')
    a2('s_nop 1')
    for i in range(8): a2(f'v_max_f32 v{MX+i}, v{MX+i}, v{SA+i}')
    a2(f'v_mov_b32 v12, {L_CNT+12}')
    gbar_wait(a2, 12, 13, 20)
    a2('s_lshl_b32 s53, s36, 11')
    a2(f's_add_u32 s53, s53, {L_MX}')
    a2('v_add_u32 v42, s53, v9')
    for i in range(8): a2(f'ds_write_b32 v42, v{MX+i} offset:{256*i}')
    a2(f'v_mov_b32 v12, {L_CNT+16}')
    a2('v_mov_b32 v13, 1')
    a2('s_waitcnt lgkmcnt(0)')
    gbar_arrive(a2, 12, 13)
    gbar_wait(a2, 12, 13, 4)
    a2(f'v_add_u32 v42, {L_MX}, v9')
    for q in range(4):
        for i in range(8): a2(f'ds_read_b32 v{SA+i}, v42 offset:{2048*q+256*i}')
        a2('s_waitcnt lgkmcnt(0)')
        for i in range(8): a2(f'v_max_f32 v{MX+i}, v{MX+i}, v{SA+i}')
    a2('s_mov_b32 s61, s40'); a2('s_mov_b32 s60, s41')
    a2('s_mov_b32 s62, 0')
    a2.label('K_S2')
    a2(f'buffer_load_dwordx4 {R(KB[0],4)}, v5, {W_}, s61 offen sc1')
    a2('s_mov_b64 exec, s[50:51]')
    a2(f'buffer_load_dwordx4 {R(VB[0],4)}, v6, {W_}, s60 offen sc1')
    a2(f'buffer_load_dwordx4 {R(VB[0]+4,4)}, v6, {W_}, s60 offen offset:512 sc1')
    a2('s_mov_b64 exec, -1')
    a2('s_waitcnt vmcnt(0)')
    for i in range(8):
        a2(f'v_mfma_f32_32x32x16_bf16 {R(SA,16)}, {R(KB[0],4)}, {R(QF+4*i,4)}, 0')
        a2('s_nop 7'); a2('s_nop 7')
        for r in range(16): a2(f'v_sub_f32 v{SA+r}, v{SA+r}, v{MX+i}')
        for r in range(16): a2(f'v_exp_f32 v{SA+r}, v{SA+r}')
        a2('s_nop 1')
        a2(f'v_smfmac_f32_32x32x32_bf16 {R(OA[i],16)}, {R(VB[0],4)}, {R(SA,8)}, v{IDX}')
        a2(f'v_smfmac_f32_32x32x32_bf16 {R(OA[i],16)}, {R(VB[0]+4,4)}, {R(SA+8,8)}, v{IDX}')
        a2('s_nop 7')
    a2('s_add_u32 s61, s61, 1024')
    a2('s_add_u32 s60, s60, 1024')
    a2('s_add_u32 s62, s62, 1')
    a2('s_cmp_lt_u32 s62, 16')
    a2('s_cbranch_scc1 K_S2')
    a2(f'v_mov_b32 v42, {L_CNT+G2CNT}')
    a2('v_mov_b32 v43, 1')
    gbar_arrive(a2, 42, 43)
    a2('s_waitcnt lgkmcnt(0)')
    a2('s_wakeup')
    a2('s_nop 7')
    a2('s_branch K_ATT_DONE')
    return 'K_START:\n'+a.text()+'\n'+h.text()+'\n'+g.text()+'\n'+a2.text()+'\n'+ool.text()+'\nK_END:\n  s_endpgm\n'

HEADER=open('cdna_kernels/'+NAME+'.s.ref').read().split('; Override launch geometry')[0]
def assemble(body):
    n=NAME+'_kernel'
    return HEADER+f'''; @launch grid=(256,1,1) block=(512,1,1) lds={LDS_TOTAL}
.amdgcn_target "amdgcn-amd-amdhsa--gfx950"
.text
.globl {n}
.p2align 8
.type {n},@function
{n}:
{body}
.section .rodata,"a"
.p2align 6
.amdhsa_kernel {n}
  .amdhsa_next_free_vgpr 256
  .amdhsa_next_free_sgpr 102
  .amdhsa_accum_offset 256
  .amdhsa_group_segment_fixed_size 0
  .amdhsa_kernarg_size 88
  .amdhsa_user_sgpr_count 2
  .amdhsa_user_sgpr_kernarg_segment_ptr 1
  .amdhsa_system_sgpr_workgroup_id_x 1
  .amdhsa_float_denorm_mode_32 3
.end_amdhsa_kernel
'''
if __name__=='__main__':
    outp=sys.argv[1]
    if 'stamp' in sys.argv: STAMP=True
    OPT.update(sys.argv[2:])
    for o_ in list(OPT):
        if o_.startswith('PD='): POLLD=int(o_[3:])
    open(outp,'w').write(assemble(gen()))
    print('wrote',outp)
```

```python
import sys, struct
NAME='parallel_sum__softmax_full_mha__mixer_channel_mlp__prompt'

WS_F = 0
F_1, F_2, F_3 = 32768, 65536, 98304
WS_N = 256<<10
WS_Q = 1<<20
WS_K = 3<<20
WS_V = 5<<20
WS_O = 7<<20
WS_H = 9<<20
WS_T = 15<<20
WS_SIZE = 16<<20
QSCALE = 0.25*1.4426950408889634
T_LOG2 = 48.0
SPIN_MAX = 1<<20
POLLD = 1

def f2u(f): return struct.unpack('<I', struct.pack('<f', f))[0]

STAMP=False
OPT=set()
class Asm:
    def __init__(self):
        self.L=[]; self.vmq=[]; self.lgq=[]
    def __call__(self, s): self.L.append('  '+s)
    def c(self, s): self.L.append('  ; '+s)
    def label(self, n): self.L.append(n+':')
    def vm(self, tag, s):
        self.vmq.append(tag); self(s)
    def wait_vm(self, tags):
        if isinstance(tags,str): tags=[tags]
        idx=[i for i,t in enumerate(self.vmq) if t in tags]
        if not idx: return
        last=max(idx); n=len(self.vmq)-1-last
        assert n<=63
        self(f's_waitcnt vmcnt({n})')
        self.vmq=self.vmq[last+1:]
    def lg(self, tag, s):
        self.lgq.append(tag); self(s)
    def wait_lg(self, tags):
        if isinstance(tags,str): tags=[tags]
        idx=[i for i,t in enumerate(self.lgq) if t in tags]
        if not idx: return
        last=max(idx); n=len(self.lgq)-1-last
        if n<=15: self(f's_waitcnt lgkmcnt({n})')
        self.lgq=self.lgq[last+1:]
    def wait_vm_all(self):
        self('s_waitcnt vmcnt(0)'); self.vmq=[]
    def text(self): return '\n'.join(self.L)

RTMAP={3:1, 9:2, 10:4}
def fstamp(a, i):
    if STAMP and 'fine' in OPT and 'fe' not in OPT: a(f's_memtime s[{70+2*i}:{71+2*i}]')
def estamp(a, i):
    if STAMP and 'fe' in OPT: a(f's_memtime s[{70+2*i}:{71+2*i}]')
def stamp(a, i):
    if STAMP:
        if 'stg' in OPT and i!=0: return
        if 'span' in OPT: return
        if 'fine' in OPT: return
        if 'rt' in OPT and i in (1,2,4) : return
        if 'abs' in OPT:
            a(f's_memrealtime s[{70+2*i}:{71+2*i}]'); return
        a(f's_memtime s[{70+2*i}:{71+2*i}]')
        if 'rt' in OPT and i in RTMAP:
            j=RTMAP[i]; a(f's_memrealtime s[{70+2*j}:{71+2*j}]')
def stamp_flush(a, n):
    if not STAMP: return
    a('s_waitcnt vmcnt(0) lgkmcnt(0)')
    a('s_lshl_b32 s69, s2, 3')
    a('s_add_u32 s69, s69, s36')
    a('s_lshl_b32 s69, s69, 6')
    a(f's_add_u32 s69, s69, {WS_T}')
    a('v_mov_b32 v2, 0')
    for i in range(n):
        a(f'v_mov_b32 v3, s{70+2*i}')
        a('s_mov_b64 exec, 1')
        a(f'buffer_store_dword v3, v2, s[28:31], s69 offen offset:{4*i}')
        a('s_mov_b64 exec, -1')
        a('s_nop 1')

def stamp_dbg(a):
    if not (STAMP and 'dbg' in OPT): return
    lab=newlab('DBG')
    a('s_cmp_eq_u32 s2, 37')
    a(f's_cbranch_scc0 {lab}')
    a('s_cmp_eq_u32 s36, 0')
    a(f's_cbranch_scc0 {lab}')
    a('s_load_dwordx2 s[66:67], s[0:1], 72')
    if 'abs' in OPT:
        a('s_waitcnt lgkmcnt(0)')
    else:
        a('s_memrealtime s[92:93]')
        a('s_memtime s[100:101]')
        a('s_waitcnt lgkmcnt(0)')
        a('s_sub_u32 s92, s92, s82')
        a('s_add_u32 s92, s92, s70')
    if 'rt' in OPT:
        for j in (1,2,4):
            a(f's_sub_u32 s{70+2*j}, s{70+2*j}, s82'); a(f's_add_u32 s{70+2*j}, s{70+2*j}, s70')
    if 'abs' not in OPT: a('s_mov_b32 s82, s70')
    a('s_mov_b32 s40, s66'); a('s_mov_b32 s41, s67'); a('s_mov_b32 s42, 256'); a('s_mov_b32 s43, 0x00020000')
    a('v_mov_b32 v2, 0')
    a('s_mov_b64 exec, 1')
    for i in range(16):
        a(f's_sub_u32 s3, s{70+2*i}, s70')
        a('v_mov_b32 v3, s3')
        a(f'buffer_store_dword v3, v2, s[40:43], 0 offen offset:{4*i}')
        a('s_nop 1')
    a('s_mov_b64 exec, -1')
    a.label(lab)

def R(a,n=1): return f'v{a}' if n==1 else f'v[{a}:{a+n-1}]'
def SR(a): return f's[{a}:{a+3}]'
def srd(a, d, ptr, size):
    a(f's_mov_b32 s{d}, s{ptr}')
    a(f's_mov_b32 s{d+1}, s{ptr+1}')
    a(f's_mov_b32 s{d+2}, {size}')
    a(f's_mov_b32 s{d+3}, 0x00020000')
def pk(op, d, a_, b_, c_=None, bsel=None, csel=None, neg=None):
    ops=[a_,b_]+([c_] if c_ is not None else [])
    n=len(ops)
    txt=[ (f'v[{o}:{o+1}]' if isinstance(o,int) else o) for o in ops]
    hi=[1]*n
    if bsel=='lo': hi[1]=0
    if csel=='lo': hi[2]=0
    s_=f'v_pk_{op}_f32 v[{d}:{d+1}], '+', '.join(txt)
    if hi!=[1]*n: s_+=' op_sel_hi:['+','.join(map(str,hi))+']'
    if neg: s_+=' '+neg
    return s_

pX,pWQ,pWO,pW1,pB1,pW2,pB2,pOUT,pWS = 4,6,8,12,14,16,18,20,22
sWS=28
W_=SR(sWS)

SLOT=28672; XS=16384; WST=12288
W1_SPARE=5*SLOT
SCR=W1_SPARE+WST
L_A=SCR; L_MU=SCR+512; L_CS=SCR+1024; L_CS1=SCR+1536; L_B1=SCR+2048; L_A2=SCR+2560; L_A2M=SCR+3072
L_CNT=SCR+4096
LDS_TOTAL=163840
W1_ADDR=[W1_SPARE, 3*SLOT, 3*SLOT+WST, 4*SLOT, 4*SLOT+WST, 0, WST, SLOT]
A_SLOT=[0,1,2,3,4,0,1,2]
L_RED=0
L_RING=73728
RINGSZ=20480; WD=10; XD=18
L_MX=57344
G2CNT=32; G2TGT=4
L_WO=0
L_OX=65536
L_EX=131072

uid=[0]
def newlab(p):
    uid[0]+=1; return f'{p}_{uid[0]}'

def poll(a, nl, voff, soff, vt):
    PD=POLLD
    lab=newlab('POLL'); done=newlab('POLLD')
    mask=(1<<nl)-1
    a(f's_mov_b32 s66, {mask:#x}')
    a('s_mov_b32 s67, 0')
    a(f's_mov_b32 s68, {SPIN_MAX}')
    a('s_waitcnt vmcnt(0)')
    a('s_mov_b64 exec, s[66:67]')
    for k in range(PD-1):
        a(f'buffer_load_dwordx2 v[{vt+2*k}:{vt+2*k+1}], {voff}, {W_}, {soff} offen sc1')
        if PD>1: a('s_sleep 2')
    a.label(lab)
    for k in range(PD):
        kn=(k+PD-1)%PD
        a(f'buffer_load_dwordx2 v[{vt+2*kn}:{vt+2*kn+1}], {voff}, {W_}, {soff} offen sc1')
        a(f's_waitcnt vmcnt({PD-1})')
        a(f'v_cmp_eq_u64 vcc, s[64:65], v[{vt+2*k}:{vt+2*k+1}]')
        a('s_sub_u32 s68, s68, 1')
        a('s_cmp_eq_u32 s68, 0')
        a(f's_cbranch_scc1 {done}')
        a('s_cmp_eq_u64 vcc, s[66:67]')
        a(f's_cbranch_scc1 {done}')
        a('s_sleep 2')
    a(f's_branch {lab}')
    a.label(done)
    a('s_mov_b64 exec, -1')
    a.vmq=[]

def poll_wg(a, nl, voff, soff, vt, leader, lds_addr):
    oth=newlab('PWO'); done=newlab('PWD')
    va=vt+2*POLLD
    a(f'v_mov_b32 v{va}, {lds_addr}')
    a(f's_cmp_eq_u32 s36, {leader}')
    a(f's_cbranch_scc0 {oth}')
    poll(a, nl, voff, soff, vt)
    a(f'v_mov_b32 v{va+1}, 1')
    a('s_mov_b64 exec, 1')
    a(f'ds_write_b32 v{va}, v{va+1}')
    a('s_mov_b64 exec, -1')
    a('s_waitcnt lgkmcnt(0)')
    a('s_wakeup')
    a(f's_branch {done}')
    a.label(oth)
    lab=newlab('PWL')
    a.label(lab)
    a(f'ds_read_b32 v{va+1}, v{va}')
    a('s_waitcnt lgkmcnt(0)')
    a(f'v_readfirstlane_b32 s66, v{va+1}')
    a('s_nop 0')
    a('s_cmp_eq_u32 s66, 0')
    a(f's_cbranch_scc0 {done}')
    a('s_sleep 8')
    a(f's_branch {lab}')
    a.label(done)
    a.vmq=[]

def signal(a, cnt_addr, last, flag_soff, vt):
    skip=newlab('SIG')
    a(f'v_mov_b32 v{vt}, {cnt_addr}')
    a(f'v_mov_b32 v{vt+1}, 1')
    a('s_mov_b64 exec, 1')
    a(f'ds_add_rtn_u32 v{vt+2}, v{vt}, v{vt+1}')
    a('s_waitcnt lgkmcnt(0)')
    a(f'v_readfirstlane_b32 s66, v{vt+2}')
    a(f'v_mov_b32 v{vt}, s64')
    a(f'v_mov_b32 v{vt+1}, s65')
    a(f'v_mov_b32 v{vt+2}, 0')
    a(f's_cmp_eq_u32 s66, {last}')
    a(f's_cbranch_scc0 {skip}')
    a(f'buffer_store_dwordx2 v[{vt}:{vt+1}], v{vt+2}, {W_}, {flag_soff} offen sc1')
    a.label(skip)
    a('s_mov_b64 exec, -1')

def gbar_arrive(a, vaddr, vone):
    a('s_mov_b64 exec, 1')
    a(f'ds_add_u32 v{vaddr}, v{vone}')
    a('s_mov_b64 exec, -1')
def gbar_wait(a, vaddr, vt, target):
    lab=newlab('GB')
    a.label(lab)
    a(f'ds_read_b32 v{vt}, v{vaddr}')
    a('s_waitcnt lgkmcnt(0)')
    a(f'v_readfirstlane_b32 s3, v{vt}')
    a('s_nop 0')
    a(f's_cmp_ge_u32 s3, {target}')
    a(f's_cbranch_scc0 {lab}')

def gen():
    a=Asm()
    a('s_cmp_ge_u32 s2, 256')
    a('s_cbranch_scc1 K_END')
    stamp(a,0)
    if STAMP and ('dbg' in OPT or 'rt' in OPT or 'span' in OPT) and 'abs' not in OPT: a('s_memrealtime s[82:83]')
    a('s_load_dwordx16 s[4:19], s[0:1], 0')
    a('s_load_dwordx2 s[20:21], s[0:1], 64')
    a('s_load_dwordx2 s[22:23], s[0:1], 80')
    a('v_and_b32 v1, 63, v0')
    a('v_lshrrev_b32 v2, 6, v0')
    a('s_and_b32 s48, s2, 7')
    a('v_readfirstlane_b32 s36, v2')
    a('s_lshr_b32 s49, s2, 3')
    a('s_and_b32 s50, s48, 1')
    a('s_lshr_b32 s51, s48, 1')
    a('s_lshl_b32 s50, s50, 3')
    a('s_and_b32 s52, s49, 7')
    a('s_add_u32 s38, s50, s52')
    a('s_lshl_b32 s51, s51, 2')
    a('s_lshr_b32 s52, s49, 3')
    a('s_add_u32 s39, s51, s52')
    a('s_and_b32 s37, s36, 3')
    a('v_and_b32 v3, 31, v1')
    a('v_lshrrev_b32 v4, 5, v1')
    a('s_cmp_ge_u32 s36, 4')
    a('s_cbranch_scc1 K_G1')
    a('s_getpc_b64 s[62:63]')
    a.label('PF_0')
    a('s_sub_u32 s62, s62, PF_0-K_START')
    a('s_subb_u32 s63, s63, 0')
    a('s_lshr_b32 s60, s2, 3')
    a('s_and_b32 s60, s60, 7')
    a('s_lshl_b32 s60, s60, 2')
    a('s_add_u32 s60, s60, s37')
    a('s_lshl_b32 s60, s60, 10')
    a('v_lshlrev_b32 v9, 4, v1')
    a('v_add_u32 v9, s60, v9')
    a('v_min_u32 v10, K_END-K_START-16, v9')
    a('global_load_dwordx4 v[200:203], v10, s[62:63]')
    a('v_add_u32 v9, 0x8000, v9')
    a('v_min_u32 v10, K_END-K_START-16, v9')
    a('global_load_dwordx4 v[204:207], v10, s[62:63]')
    a('s_branch K_G0')

    def common_lds_addr(e):
        e('v_bfe_u32 v5, v1, 1, 3')
        e('v_xor_b32 v5, v5, v4')
        e('v_lshlrev_b32 v5, 4, v5')
        e('s_lshl_b32 s3, s37, 12')
        e('v_lshlrev_b32 v6, 7, v3')
        e('v_add3_u32 v12, v6, v5, s3')
        e('v_xor_b32 v13, 32, v12')
        e('v_xor_b32 v14, 64, v12')
        e('v_xor_b32 v15, 0x60, v12')
        e('v_lshlrev_b32 v6, 3, v4')
        e('v_bfe_u32 v7, v1, 2, 2')
        e('v_add_u32 v6, v6, v7')
        e('v_mul_u32_u24 v6, 192, v6')
        e('v_bfe_u32 v7, v1, 4, 1')
        e('v_lshlrev_b32 v7, 5, v7')
        e('v_and_b32 v8, 3, v1')
        e('v_lshlrev_b32 v8, 3, v8')
        e('v_add3_u32 v16, v6, v7, v8')

    g=Asm()
    g.label('K_G0')
    accQ,accK,accV=64,80,96
    FS0=[128,144,160,176]
    common_lds_addr(g)
    for r in range(64,112): g(f'v_mov_b32 v{r}, 0')
    g(f'v_add_u32 v17, {XS}, v16')
    g(f's_mov_b32 s56, {(-4*SLOT)&0xffffffff:#x}')
    g(f's_mov_b32 s57, {SLOT}')
    g(f'v_lshlrev_b32 v18, 2, v1')
    g(f'v_add_u32 v18, {L_CNT}, v18')
    g('v_mov_b32 v19, 0')
    g('s_mov_b64 exec, 0xffff')
    g('ds_write_b32 v18, v19')
    g('s_mov_b64 exec, -1')
    g('s_lshl_b32 s48, s37, 7')
    g('v_lshlrev_b32 v20, 2, v3')
    g('v_add_u32 v20, s48, v20')
    g(f'v_add_u32 v20, {L_A}, v20')
    g('v_lshlrev_b32 v23, 4, v4')
    g(f'v_add_u32 v24, {L_CS}, v23')
    g('v_lshlrev_b32 v25, 2, v3')
    g(f'v_add_u32 v25, {L_CS+64*4}, v25')
    g('v_add_u32 v27, s48, v23')
    g(f'v_add_u32 v27, {L_A}, v27')
    g('s_lshl_b32 s49, s38, 2')
    g('s_add_u32 s49, s49, s37')
    g('s_lshl_b32 s50, s49, 10')
    g('s_lshl_b32 s51, s39, 17')
    g('s_add_u32 s50, s50, s51')
    g(f's_add_u32 s52, s50, {WS_K}')
    g(f's_add_u32 s53, s50, {WS_K+65536}')
    g(f's_add_u32 s54, s50, {WS_V}')
    g(f's_add_u32 s51, s50, {WS_Q+65536}')
    g(f's_add_u32 s50, s50, {WS_Q}')
    g('v_lshlrev_b32 v28, 4, v1')
    g('v_and_b32 v29, 0x13, v3')
    g('v_bfe_u32 v30, v3, 2, 1')
    g('v_lshlrev_b32 v30, 3, v30')
    g('v_bfe_u32 v31, v3, 3, 1')
    g('v_lshlrev_b32 v31, 2, v31')
    g('v_or3_b32 v29, v29, v30, v31')
    g('v_lshlrev_b32 v30, 5, v4')
    g('v_add_u32 v29, v29, v30')
    g('v_lshlrev_b32 v29, 4, v29')
    g('v_bfe_u32 v30, v3, 4, 1')
    g('v_lshlrev_b32 v30, 16, v30')
    g('v_lshlrev_b32 v31, 8, v4')
    g('v_and_b32 v32, 15, v3')
    g('v_lshlrev_b32 v32, 4, v32')
    g('v_add3_u32 v30, v30, v31, v32')
    g('s_mul_i32 s55, s39, 1536')
    g('s_lshl_b32 s58, s49, 2')
    g('s_add_u32 s55, s55, s58')
    g(f's_add_u32 s55, s55, {WS_N}')
    g('v_lshlrev_b32 v31, 8, v4')
    g('s_waitcnt lgkmcnt(0)')
    srd(g,sWS,pWS,WS_SIZE)
    g(f's_load_dwordx2 s[64:65], s[{pWS}:{pWS+1}], 0')
    if 'tlb' in OPT:
        g('v_mov_b32 v40, 0')
        g('v_mov_b32 v41, 0')
        g('s_mov_b64 exec, 1')
        for sreg in ('s50','s52','s54'):
            g(f'buffer_store_dword v40, v41, {W_}, {sreg} offen sc1')
        g(f'buffer_store_dword v40, v41, {W_}, s55 offen sc1')
        g('s_mov_b64 exec, -1')
        g('v_lshlrev_b32 v41, 21, v1')
        g(f's_mov_b32 s40, s{pW2}'); g(f's_mov_b32 s41, s{pW2+1}'); g(f's_mov_b32 s42, {1376*512*2}'); g('s_mov_b32 s43, 0x00020000')
        g('buffer_load_dword v208, v41, s[40:43], 0 offen')
        g(f's_mov_b32 s44, s{pWO}'); g(f's_mov_b32 s45, s{pWO+1}'); g(f's_mov_b32 s46, {512*512*2}'); g('s_mov_b32 s47, 0x00020000')
        g('buffer_load_dword v209, v41, s[44:47], 0 offen')
        g(f's_mov_b32 s40, s{pOUT}'); g(f's_mov_b32 s41, s{pOUT+1}'); g(f's_mov_b32 s42, {2048*512*2}')
        g('buffer_load_dword v210, v41, s[40:43], 0 offen')
    def readlist(set_, ks):
        L=[f'ds_read_b128 {R(set_,4)}, v{12+ks}']
        for t in range(3):
            for e in range(2):
                L.append(f'ds_read_b64_tr_b16 {R(set_+4+4*t+2*e,2)}, v17 offset:{ks*3072+e*768+t*64}')
        return L
    def mfmalist(set_):
        return [f'v_mfma_f32_32x32x16_bf16 {R(accQ,16)}, {R(set_+4,4)}, {R(set_,4)}, {R(accQ,16)}',
                f'v_mfma_f32_32x32x16_bf16 {R(accK,16)}, {R(set_+8,4)}, {R(set_,4)}, {R(accK,16)}',
                f'v_mfma_f32_32x32x16_bf16 {R(accV,16)}, {R(set_,4)}, {R(set_+12,4)}, {R(accV,16)}']
    g('s_waitcnt lgkmcnt(0)')
    g('s_add_u32 s64, s64, 0x7f4a7c15')
    g('s_addc_u32 s65, s65, 0x9e3779b9')
    stamp(g,1)
    for st in range(8):
        if st==5: fstamp(g,0)
        g('s_barrier')
        if st==5: fstamp(g,1)
        if st==6: fstamp(g,10)
        if st==0: stamp(g,2)
        for ks in range(4):
            rl=readlist(FS0[ks],ks); ml=mfmalist(FS0[(ks+2)%4])
            if st==5: fstamp(g,2+2*ks)
            if st==0 and ks<2:
                for r_ in rl: g(r_)
                continue
            g('s_waitcnt lgkmcnt(7)')
            if st==5: fstamp(g,3+2*ks)
            g(ml[0]); g(rl[0]); g(rl[1]); g(rl[2])
            g(ml[1]); g(rl[3]); g(rl[4])
            if 'noq' not in OPT: g(ml[2])
            g(rl[5]); g(rl[6])
        if st<7:
            sr='s57' if A_SLOT[st+1]>A_SLOT[st] else 's56'
            for r in (12,13,14,15,17): g(f'v_add_u32 v{r}, {sr}, v{r}')
    g('s_waitcnt lgkmcnt(7)')
    for m in mfmalist(FS0[2]): g(m)
    g('s_waitcnt lgkmcnt(0)')
    for m in mfmalist(FS0[3]): g(m)
    stamp(g,3)
    estamp(g,0)
    g('s_barrier')
    g('s_setprio 3')
    estamp(g,1)
    CSQ=128; CSK=144; AV=160; MV=176
    g('ds_read_b32 v21, v20')
    g(f'ds_read_b32 v22, v20 offset:{L_MU-L_A}')
    for gg in range(4): g(f'ds_read_b128 {R(CSK+4*gg,4)}, v24 offset:{(32+8*gg)*4}')
    g('ds_read_b32 v26, v25')
    for gg in range(4): g(f'ds_read_b128 {R(MV+4*gg,4)}, v27 offset:{8*gg*4+L_MU-L_A}')
    for gg in range(4): g(f'ds_read_b128 {R(AV+4*gg,4)}, v27 offset:{8*gg*4}')
    g('s_waitcnt lgkmcnt(13)')
    g('v_mul_f32 v38, v21, v22')
    g(f'v_mul_f32 v34, {f2u(QSCALE):#x}, v21')
    g('v_sub_f32 v38, 0, v38')
    g(f'v_mul_f32 v36, {f2u(QSCALE):#x}, v38')
    g('s_waitcnt lgkmcnt(9)')
    estamp(g,2)
    for r in range(16): g(f'v_mul_f32 v{CSK+r}, v38, v{CSK+r}')
    for r in range(16): g(f'v_fmac_f32 v{CSK+r}, v21, v{accK+r}')
    for i in range(8): g(f'v_cvt_pk_bf16_f32 v{accK+i}, v{CSK+2*i}, v{CSK+2*i+1}')
    estamp(g,3)
    g(f'buffer_store_dwordx4 {R(accK,4)}, v29, {W_}, s52 offen sc1')
    g(f'buffer_store_dwordx4 {R(accK+4,4)}, v29, {W_}, s53 offen sc1')
    estamp(g,4)
    for gg in range(4): g(f'ds_read_b128 {R(CSQ+4*gg,4)}, v24 offset:{(8*gg)*4}')
    g('s_waitcnt lgkmcnt(8)')
    g('v_sub_f32 v26, 0, v26')
    g('s_waitcnt lgkmcnt(4)')
    for r in range(16): g(f'v_fmac_f32 v{accV+r}, v26, v{MV+r}')
    for r in range(16): g(f'v_mul_f32 v{accV+r}, v{accV+r}, v{AV+r}')
    for i in range(8): g(f'v_cvt_pk_bf16_f32 v{AV+i}, v{accV+2*i}, v{accV+2*i+1}')
    estamp(g,5)
    g(f'buffer_store_dwordx4 {R(AV,4)}, v30, {W_}, s54 offen sc1')
    g(f'buffer_store_dwordx4 {R(AV+4,4)}, v30, {W_}, s54 offen offset:512 sc1')
    g('s_waitcnt lgkmcnt(0)')
    estamp(g,6)
    for r in range(16): g(f'v_mul_f32 v{CSQ+r}, v36, v{CSQ+r}')
    for r in range(16): g(f'v_fmac_f32 v{CSQ+r}, v34, v{accQ+r}')
    for i in range(8): g(f'v_cvt_pk_bf16_f32 v{accQ+i}, v{CSQ+2*i}, v{CSQ+2*i+1}')
    g(f'buffer_store_dwordx4 {R(accQ,4)}, v28, {W_}, s50 offen sc1')
    g(f'buffer_store_dwordx4 {R(accQ+4,4)}, v28, {W_}, s51 offen sc1')
    estamp(g,7)
    for (b,src) in ((42,CSK),(46,CSQ)):
        g(f'v_mul_f32 v{b}, v{src}, v{src}'); g(f'v_mul_f32 v{b+1}, v{src+8}, v{src+8}')
        for i in range(1,8):
            g(f'v_fmac_f32 v{b}, v{src+i}, v{src+i}'); g(f'v_fmac_f32 v{b+1}, v{src+8+i}, v{src+8+i}')
    g(f'v_max3_f32 v38, |v{accV}|, |v{accV+1}|, |v{accV+2}|')
    g('v_max_f32 v34, v42, v43')
    g('v_max_f32 v35, v46, v47')
    for r in range(3,15,2): g(f'v_max3_f32 v38, v38, |v{accV+r}|, |v{accV+r+1}|')
    g(f'v_max_f32 v36, v38, |v{accV+15}|')
    g('s_nop 1')
    for sh in (1,2,4,8):
        for r in (34,35,36): g(f'v_max_f32_dpp v{r}, v{r}, v{r} row_shr:{sh} row_mask:0xf bank_mask:0xf')
    for r in (34,35,36): g(f'v_max_f32_dpp v{r}, v{r}, v{r} row_bcast:15 row_mask:0xa bank_mask:0xf')
    g('s_nop 1')
    estamp(g,8)
    g('s_mov_b32 s66, 0x80000000')
    g('s_mov_b32 s67, 0x80000000')
    g('s_mov_b64 exec, s[66:67]')
    g(f'buffer_store_dword v34, v31, {W_}, s55 offen sc1')
    g(f'buffer_store_dword v35, v31, {W_}, s55 offen offset:512 sc1')
    g(f'buffer_store_dword v36, v31, {W_}, s55 offen offset:1024 sc1')
    g('s_mov_b64 exec, -1')
    stamp(g,4)
    estamp(g,9)
    g('s_setprio 0')
    g('s_waitcnt vmcnt(0)')
    estamp(g,10)
    g('s_lshl_b32 s48, s39, 4')
    g('s_add_u32 s48, s48, s38')
    g('s_lshl_b32 s48, s48, 7')
    g(f's_add_u32 s48, s48, {F_1}')
    signal(g, L_CNT, 3, 's48', 40)
    stamp(g,5)

    h=Asm()
    h.label('K_G1')
    h('s_setprio 2')
    sX,sWQ,sW1,sB1=24,32,40,44
    XF=128
    h('v_lshrrev_b32 v20, 3, v1')
    h('v_and_b32 v21, 7, v1')
    h('v_lshrrev_b32 v22, 4, v1')
    h('v_xor_b32 v21, v21, v22')
    h('v_lshlrev_b32 v20, 10, v20')
    h('v_lshlrev_b32 v22, 4, v21')
    h('v_add_u32 v2, v20, v22')
    h('v_xor_b32 v22, 64, v22')
    h('v_add_u32 v22, 7168, v22')
    h('v_add_u32 v18, v20, v22')
    h('v_add_u32 v19, 14336, v2')
    h('v_add_u32 v20, 14336, v18')
    VX=[2,18,19,20]
    VW=[21,22,23]; VW1=[24,25,26]
    h('s_lshl_b32 s50, s38, 17')
    h('s_lshl_b32 s51, s37, 15')
    h('s_add_u32 s50, s50, s51')
    h('s_lshl_b32 s53, s37, 12')
    h('s_and_b32 s58, s39, 3')
    h('s_lshl_b32 s58, s58, 1')
    h('s_add_u32 s58, s58, s38')
    h('s_and_b32 s58, s58, 7')
    def dmaX(st):
        slot=A_SLOT[st]*SLOT; L=[]
        L.append((f's_add_u32 s61, s58, {st}',None))
        L.append(('s_and_b32 s61, s61, 7',None))
        L.append((f's_add_u32 m0, s53, {slot}',None))
        L.append(('s_lshl_b32 s55, s61, 7',None))
        L.append(('s_add_u32 s55, s55, s50',None))
        for i in range(4):
            L.append((f'buffer_load_dwordx4 v{VX[i]}, {SR(sX)}, s55 offen offset:{1024*i} lds',f'A{st}'))
        return L
    def emit(e, dmas):
        for (ins,tag) in dmas:
            if tag: e.vm(tag,ins)
            else: e(ins)
    h('s_waitcnt lgkmcnt(0)')
    srd(h,sX,pX,2048*512*2)
    emit(h,dmaX(0))
    for p in range(3):
        h(f'v_add_u32 v27, {64*p}, v1')
        h('v_mul_u32_u24 v28, 43691, v27')
        h('v_lshrrev_b32 v28, 19, v28')
        h('v_mul_u32_u24 v29, 12, v28')
        h('v_sub_u32 v29, v27, v29')
        h('v_lshrrev_b32 v30, 2, v29')
        h('v_lshlrev_b32 v30, 10, v30')
        h('v_and_b32 v31, 3, v29')
        h('v_lshlrev_b32 v31, 4, v31')
        h('v_mul_u32_u24 v32, 3072, v28')
        h(f'v_add3_u32 v{VW[p]}, v32, v30, v31')
        if p: h(f'v_subrev_u32 v{VW[p]}, {1024*p}, v{VW[p]}')
        h(f'v_mov_b32 v{33+2*p}, v28')
        h(f'v_mov_b32 v{34+2*p}, v29')
    h('s_mul_i32 s51, s37, 49152')
    h('s_lshl_b32 s52, s39, 6')
    h('s_add_u32 s51, s51, s52')
    h('s_mul_i32 s54, s37, 3072')
    srd(h,sWQ,pWQ,512*1536*2)
    def dmaW(st):
        slot=A_SLOT[st]*SLOT; L=[]
        L.append((f's_add_u32 s61, s58, {st}',None))
        L.append(('s_and_b32 s61, s61, 7',None))
        L.append((f's_add_u32 m0, s54, {slot+XS}',None))
        L.append((f's_mul_i32 s55, s61, {64*3072}',None))
        L.append(('s_add_u32 s55, s55, s51',None))
        for p in range(3):
            L.append((f'buffer_load_dwordx4 v{VW[p]}, {SR(sWQ)}, s55 offen offset:{1024*p} lds',f'A{st}'))
        return L
    emit(h,dmaW(0))
    for p in range(3):
        h(f'v_mul_u32_u24 v32, 2752, v{33+2*p}')
        h(f'v_lshlrev_b32 v31, 4, v{34+2*p}')
        h(f'v_add_u32 v{VW1[p]}, v32, v31')
        if p: h(f'v_subrev_u32 v{VW1[p]}, {1024*p}, v{VW1[p]}')
    h('s_mul_i32 s52, s39, 3')
    h('s_lshl_b32 s56, s39, 1')
    h('s_add_u32 s56, s56, 11')
    h('s_cmp_lt_u32 s39, 11')
    h('s_cselect_b32 s48, s52, s56')
    h('s_cselect_b32 s49, 3, 2')
    h('s_mul_i32 s52, s37, 44032')
    h('s_lshl_b32 s56, s48, 6')
    h('s_add_u32 s52, s52, s56')
    def dmaA(st): return dmaX(st)+dmaW(st)
    def dmaB(st):
        L=[]
        L.append((f's_add_u32 s61, s58, {st}',None))
        L.append(('s_and_b32 s61, s61, 7',None))
        L.append((f's_add_u32 m0, s54, {W1_ADDR[st]}',None))
        L.append((f's_mul_i32 s55, s61, {64*2752}',None))
        L.append(('s_add_u32 s55, s55, s52',None))
        for p in range(3):
            L.append((f'buffer_load_dwordx4 v{VW1[p]}, {SR(sW1)}, s55 offen offset:{1024*p} lds',f'B{st}'))
        return L
    stamp(h,1)
    NINIT=3
    for o_ in OPT:
        if o_.startswith('NI='): NINIT=int(o_[3:])
    for st in range(1,NINIT): emit(h,dmaA(st))
    stamp(h,2)
    srd(h,sW1,pW1,512*1376*2); srd(h,sWS,pWS,WS_SIZE); srd(h,sB1,pB1,1376*2)
    h(f's_load_dwordx2 s[64:65], s[{pWS}:{pWS+1}], 0')
    common_lds_addr(h)
    h('v_lshlrev_b32 v27, 2, v1')
    h.vm('b1', f'buffer_load_dword v31, v27, {SR(sB1)}, s56 offen')
    h('s_cmp_eq_u32 s37, 3')
    h('s_cselect_b32 s57, 0, s37')
    h('s_lshl_b32 s3, s57, 6')
    h(f's_add_u32 s3, s3, {XS}')
    h('v_add_u32 v17, s3, v16')
    PAT=112; ONES=8; SUMA=[116,120]; GRA=[124,104]; CSA=108
    h('v_and_b32 v27, 15, v1')
    h('v_bfe_u32 v28, v1, 4, 1')
    h('v_cmp_eq_u32 vcc, v27, v28')
    h('v_mov_b32 v29, 0x3f803f80')
    h('s_nop 0')
    h(f'v_cndmask_b32 v{PAT}, 0, v29, vcc')
    for r in range(1,4): h(f'v_mov_b32 v{PAT+r}, v{PAT}')
    for r in range(4): h(f'v_mov_b32 v{ONES+r}, v29')
    SIDX=99; SPA=100
    h('v_and_b32 v30, 1, v1')
    h('v_cmp_eq_u32 vcc, 1, v30')
    h('v_mov_b32 v30, 0x44444444')
    h('v_mov_b32 v32, 0xeeeeeeee')
    h(f'v_cndmask_b32 v{SIDX}, v30, v32, vcc')
    h('v_and_b32 v30, 14, v1')
    h('v_cmp_eq_u32 vcc, 0, v30')
    h('v_cmp_eq_u32 s[66:67], 2, v30')
    h('s_nop 0')
    h(f'v_cndmask_b32 v{SPA}, 0, v29, vcc')
    h(f'v_cndmask_b32 v{SPA+2}, 0, v29, s[66:67]')
    h(f'v_mov_b32 v{SPA+1}, v{SPA}')
    h(f'v_mov_b32 v{SPA+3}, v{SPA+2}')
    for b in SUMA+GRA+[CSA]:
        for r in range(4): h(f'v_mov_b32 v{b+r}, 0')
    h('v_lshrrev_b32 v28, 4, v1')
    h('v_bfe_u32 v29, v1, 1, 3')
    h('v_xor_b32 v28, v28, v29')
    h('v_lshlrev_b32 v28, 4, v28')
    h('v_lshlrev_b32 v27, 7, v27')
    h('s_lshl_b32 s3, s37, 12')
    h('v_add3_u32 v5, v27, v28, s3')
    h('v_xor_b32 v6, 64, v5')
    TMP=40; XS16=56
    h('v_and_b32 v27, 3, v1')
    h('v_cmp_eq_u32 s[66:67], 1, v27')
    h('v_cmp_eq_u32 s[68:69], 2, v27')
    h('v_cmp_eq_u32 s[44:45], 3, v27')
    h('s_mov_b32 s46, 0x00f0000f')
    h('s_mov_b32 s47, 0xf0000f00')
    h('v_and_b32 v28, 15, v1')
    h('v_lshlrev_b32 v28, 2, v28')
    h('s_lshl_b32 s3, s37, 7')
    h('v_add_u32 v28, s3, v28')
    h(f'v_add_u32 v28, {L_A}, v28')
    h('v_lshlrev_b32 v29, 2, v1')
    h('s_lshl_b32 s55, s57, 7')
    h(f's_add_u32 s55, s55, {L_CS}')
    h('v_add_u32 v29, s55, v29')
    h('s_waitcnt lgkmcnt(0)')
    h('s_add_u32 s64, s64, 0x7f4a7c15')
    h('s_addc_u32 s65, s65, 0x9e3779b9')
    h(f's_mov_b32 s59, {SLOT}')
    h(f's_mov_b32 s60, {(-4*SLOT)&0xffffffff:#x}')
    if NINIT==3: sched={0:dmaA(3)+dmaA(4), 1:dmaB(0), 2:dmaA(5), 3:dmaA(6), 4:dmaA(7), 5:dmaB(1)+dmaB(2), 6:dmaB(3)+dmaB(4), 7:(dmaB(5)+dmaB(6) if 'b5early' in OPT else [])}
    elif NINIT==2 and 'smooth' in OPT: sched={0:dmaA(2), 1:dmaA(3), 2:dmaA(4), 3:dmaA(5), 4:dmaA(6), 5:dmaA(7)+dmaB(0), 6:dmaB(1)+dmaB(2), 7:[]}
    elif NINIT==2 and 'smooth2' in OPT: sched={0:dmaA(2), 1:dmaA(3), 2:dmaA(4)+dmaB(0), 3:dmaA(5), 4:dmaA(6), 5:dmaA(7), 6:dmaB(1)+dmaB(2), 7:dmaB(3)+dmaB(4)}
    elif NINIT==2: sched={0:dmaA(2)+dmaA(3), 1:dmaA(4)+dmaB(0), 2:dmaA(5), 3:dmaA(6), 4:dmaA(7), 5:dmaB(1)+dmaB(2), 6:dmaB(3)+dmaB(4), 7:(dmaB(5)+dmaB(6) if 'b5early' in OPT else [])}
    else: sched={0:dmaA(1)+dmaA(2), 1:dmaA(3)+dmaA(4), 2:dmaA(5)+dmaB(0), 3:dmaA(6), 4:dmaA(7), 5:dmaB(1)+dmaB(2), 6:dmaB(3)+dmaB(4), 7:(dmaB(5)+dmaB(6) if 'b5early' in OPT else [])}
    for st in range(8):
        if st==5: fstamp(h,0)
        if STAMP and 'stg' in OPT: h(f's_memrealtime s[{70+4*st}:{71+4*st}]') if st>0 else None
        h.wait_vm(f'A{st}')
        if STAMP and 'stg' in OPT and st>0: h(f's_memrealtime s[{72+4*st}:{73+4*st}]')
        if st==5: fstamp(h,1)
        h('s_barrier')
        if STAMP and 'stg' in OPT and st==0: h(f's_memrealtime s[72:73]')
        if st==5: fstamp(h,2)
        if st==0: stamp(h,3)
        dm=sched[st]
        for u in range(2):
            for kk in range(2):
                h(f'ds_read_b128 {R(XS16+8*u+4*kk,4)}, v{5+kk} offset:{2048*u}')
        for ks in range(4):
            for e in range(2):
                h(f'ds_read_b64_tr_b16 {R(TMP+4*ks+2*e,2)}, v17 offset:{ks*3072+e*768}')
        if st==5: fstamp(h,3)
        k=0; nv=0
        while nv<2 and k<len(dm):
            if dm[k][1]: h.vm(dm[k][1],dm[k][0]); nv+=1
            else: h(dm[k][0])
            k+=1
        val=[]
        for u in range(2):
            val.append(f'v_smfmac_f32_16x16x64_bf16 {R(SUMA[u],4)}, {R(ONES,4)}, {R(XS16+8*u,8)}, v{SIDX}')
            for kk in range(2):
                x=XS16+8*u+4*kk
                val.append(f'ds_read_b128 {R(XF+16*st+4*(2*u+kk),4)}, v{12+2*u+kk}')
                val.append(f'v_mfma_f32_16x16x32_bf16 {R(GRA[u],4)}, {R(x,4)}, {R(x,4)}, {R(GRA[u],4)}')
        val.append('s_waitcnt lgkmcnt(4)')
        for p_ in range(2):
            val.append(f'v_smfmac_f32_16x16x64_bf16 {R(CSA,4)}, {R(SPA,4)}, {R(TMP+8*p_,8)}, v{SIDX}')
        if st<7:
            d=(A_SLOT[st+1]-A_SLOT[st])*SLOT
            sr='s59' if d==SLOT else 's60'
            for r in (12,13,14,15,17,5,6): val.append(f'v_add_u32 v{r}, {sr}, v{r}')
        if st==5: fstamp(h,4)
        h('s_waitcnt lgkmcnt(8)')
        if st==5: fstamp(h,5)
        rest=dm[k:]; vi=0; fs_=6
        for (ins,tag) in rest:
            if tag:
                for _ in range(2):
                    if vi<len(val): h(val[vi]); vi+=1
                h.vm(tag,ins)
                if st==5: fstamp(h,fs_); fs_+=1
            else: h(ins)
        while vi<len(val):
            h(val[vi]); vi+=1
            if st==5 and val[vi-1].startswith('s_waitcnt'): fstamp(h,fs_); fs_+=1
        if st==5: fstamp(h,fs_); fs_+=1
        if st==6: fstamp(h,15)
    h('s_waitcnt lgkmcnt(0)')
    h('s_nop 1')
    for u in range(2):
        gr=GRA[u]; q=32+2*u
        h(f'v_cndmask_b32 v{q}, v{gr}, v{gr+1}, s[66:67]')
        h(f'v_cndmask_b32 v{q}, v{q}, v{gr+2}, s[68:69]')
        h(f'v_cndmask_b32 v{q}, v{q}, v{gr+3}, s[44:45]')
    for u in range(2):
        q=32+2*u; m=SUMA[u]
        h(f'v_add_f32 v{m}, v{m}, v{m+1}')
        h(f'v_mul_f32 v{q}, {f2u(1/512):#x}, v{q}')
        h(f'v_mul_f32 v{m}, {f2u(1/512):#x}, v{m}')
    h(f'v_add_f32 v{CSA}, v{CSA}, v{CSA+1}')
    h(f'v_add_f32 v{CSA+2}, v{CSA+2}, v{CSA+3}')
    for u in range(2):
        q=32+2*u; m=SUMA[u]
        h(f'v_fma_f32 v{q}, -v{m}, v{m}, v{q}')
        h(f'v_max_f32 v{q}, 0, v{q}')
        h(f'v_add_f32 v{q+1}, {f2u(1e-5):#x}, v{q}')
    h('s_mov_b64 exec, 0xffff')
    h(f'ds_write_b32 v29, v{CSA}')
    h(f'ds_write_b32 v29, v{CSA+2} offset:64')
    h('s_mov_b64 exec, -1')
    for u in range(2):
        q=32+2*u
        h(f'v_rsq_f32 v{q+1}, v{q+1}')
    h('s_mov_b64 exec, s[46:47]')
    for u in range(2):
        q=32+2*u; m=SUMA[u]
        h(f'ds_write_b32 v28, v{m} offset:{64*u+L_MU-L_A}')
        h(f'ds_write_b32 v28, v{q+1} offset:{64*u}')
    h('s_mov_b64 exec, -1')
    h('s_waitcnt lgkmcnt(0)')
    stamp(h,4)
    h('s_barrier')
    emit(h,(dmaB(7) if 'b5early' in OPT else dmaB(3)+dmaB(4)+dmaB(5)+dmaB(6)+dmaB(7) if 'smooth' in OPT else dmaB(5)+dmaB(6)+dmaB(7)))
    for u in range(2):
        q=32+2*u; m=SUMA[u]
        h(f'v_mul_f32 v{m+1}, v{q+1}, v{q+1}')
        h(f'v_mul_f32 v{m+1}, v{m+1}, v{q}')
        h(f'v_add_f32 v{m+1}, {f2u(1e-5):#x}, v{m+1}')
    for u in range(2):
        m=SUMA[u]
        h(f'v_rsq_f32 v{m+1}, v{m+1}')
    h('s_lshl_b32 s3, s37, 7')
    h('v_lshlrev_b32 v27, 2, v3')
    for u in range(2):
        q=32+2*u; m=SUMA[u]
        h(f'v_mul_f32 v{m+2}, v{m+1}, v{q+1}')
        h(f'v_mul_f32 v{m+3}, v{m+2}, v{m}')
    h('s_mov_b64 exec, s[46:47]')
    for u in range(2):
        m=SUMA[u]
        h(f'ds_write_b32 v28, v{m+2} offset:{64*u+L_A2-L_A}')
        h(f'ds_write_b32 v28, v{m+3} offset:{64*u+L_A2M-L_A}')
    h('s_mov_b64 exec, -1')
    h('v_add_u32 v28, s3, v27')
    h(f'v_add_u32 v28, {L_A2}, v28')
    h('s_waitcnt lgkmcnt(0)')
    h('ds_read_b32 v38, v28')
    h(f'ds_read_b32 v30, v28 offset:{L_A2M-L_A2}')
    h('v_lshlrev_b32 v34, 16, v31')
    h('v_and_b32 v35, 0xffff0000, v31')
    h('v_lshlrev_b32 v28, 3, v1')
    h(f'v_add_u32 v28, {L_B1}, v28')
    h('v_cmp_gt_u32 vcc, 48, v1')
    h('s_and_saveexec_b64 s[66:67], vcc')
    h('ds_write_b64 v28, v[34:35]')
    h('s_mov_b64 exec, s[66:67]')
    h('s_mov_b32 s62, 0x00030003')
    h('s_mov_b32 s63, 0x00030003')
    ACC=[64,80,96]
    TS=[57,59,60]
    for sl in range(3):
        h(f's_add_u32 s3, s37, {sl}')
        h('s_cmp_ge_u32 s3, 3')
        h('s_cselect_b32 s55, 3, 0')
        h('s_sub_u32 s3, s3, s55')
        h('s_cmp_ge_u32 s3, 3')
        h('s_cselect_b32 s55, 3, 0')
        h('s_sub_u32 s3, s3, s55')
        h(f's_mov_b32 s{TS[sl]}, s3')
    SPB=8; SIB=5; CS1A=124
    for r in range(4): h(f'v_mov_b32 v{SPB+r}, v{SPA+r}')
    h(f'v_mov_b32 v{SIB}, v{SIDX}')
    for r in range(4): h(f'v_mov_b32 v{CS1A+r}, 0')
    for r in range(64,112): h(f'v_mov_b32 v{r}, 0')
    h(f's_lshl_b32 s3, s{TS[0]}, 6')
    h('v_add_u32 v12, s3, v16')
    h('v_add_u32 v13, 86016, v12')
    h('v_add_u32 v14, 126976, v12')
    def waddr(n,e):
        st,ks=divmod(n,4); base=W1_ADDR[st]
        if base<65536-12288: reg,rel=12,base
        elif base<126976: reg,rel=13,base-86016
        else: reg,rel=14,base-126976
        return reg, rel+ks*3072+e*768
    FSET=[40,44,48,52]
    C1=-2*1.4426950408889634*0.7978845608028654
    C2=C1*0.044715
    h(f's_mov_b32 s66, {f2u(C2):#x}')
    h(f'v_mov_b32 v32, {f2u(C1):#x}')
    h('v_lshlrev_b32 v23, 4, v4')
    h('v_lshlrev_b32 v15, 4, v1')
    h('s_lshl_b32 s53, s38, 2')
    h('s_add_u32 s53, s53, s37')
    h('s_mul_i32 s53, s53, 86')
    SO=[67,68,69]
    CA=[33,34,35]
    for sl in range(3):
        h(f's_add_u32 s54, s48, s{TS[sl]}')
        h('s_lshl_b32 s54, s54, 1')
        h('s_add_u32 s54, s54, s53')
        h('s_lshl_b32 s54, s54, 10')
        h(f's_add_u32 s54, s54, {WS_H}')
        h(f's_cmp_ge_u32 s{TS[sl]}, s49')
        h(f's_cselect_b32 s{SO[sl]}, 0x7ff00000, s54')
        h(f's_lshl_b32 s3, s{TS[sl]}, 7')
        h(f'v_add_u32 v{CA[sl]}, s3, v23')
        h(f'v_add_u32 v{CA[sl]}, {L_CS1}, v{CA[sl]}')
    h('v_lshlrev_b32 v29, 2, v1')
    h(f's_lshl_b32 s55, s{TS[0]}, 7')
    h(f's_add_u32 s55, s55, {L_CS1}')
    h('v_add_u32 v29, s55, v29')
    h(f'v_mov_b32 v17, {L_CNT+12}')
    h('v_mov_b32 v7, 1')
    h.wait_vm(['B0','B1'])
    h('s_waitcnt lgkmcnt(0)')
    gbar_arrive(h, 17, 7)
    gbar_wait(h, 17, 6, 4)
    h.lgq=[]
    bar={8:(['B2','B3','B4'],8), 20:(['B5','B6','B7'],12)}
    NM=96
    def wreads(m):
        sl,n=divmod(m,32); fs=FSET[m%4]
        if n==0 and sl>0:
            h(f's_sub_u32 s3, s{TS[sl]}, s{TS[sl-1]}')
            h('s_lshl_b32 s3, s3, 6')
            for rg in (12,13,14): h(f'v_add_u32 v{rg}, s3, v{rg}')
        if sl==0 and n in bar:
            gbar_wait(h, 17, 6, bar[n][1]); h.lgq=[]
        for e in range(2):
            reg,off=waddr(n,e)
            h.lg(f'W{m}', f'ds_read_b64_tr_b16 {R(fs+2*e,2)}, v{reg} offset:{off}')
    TCS=[112,56]; TB1=[120,18]
    def ureads(sl,hf,k):
        cs=TCS[k%2]; b1=TB1[k%2]; q=[]
        for gg in range(2):
            q.append((4,'lg',(f'G{sl}{hf}', f'ds_read_b128 {R(cs+4*gg,4)}, v{CA[sl]} offset:{(16*hf+8*gg)*4}'),0))
            q.append((4,'lg',(f'G{sl}{hf}', f'ds_read_b128 {R(b1+4*gg,4)}, v{CA[sl]} offset:{(16*hf+8*gg)*4+L_B1-L_CS1}'),0))
        return q
    def ucomp(sl,hf,k,mmin):
        cs=TCS[k%2]; b1=TB1[k%2]; acc=ACC[sl]+8*hf; q=[]
        q.append((0,'wait',f'G{sl}{hf}',mmin))
        for r in range(8): q.append((4,'i',f'v_fma_f32 v{b1+r}, -v{cs+r}, v30, v{b1+r}',mmin))
        for r in range(8): q.append((4,'i',f'v_fma_f32 v{acc+r}, v{acc+r}, v38, v{b1+r}',mmin))
        for r in range(8): q.append((4,'i',f'v_mul_f32 v{cs+r}, v{acc+r}, v{acc+r}',mmin))
        for r in range(8): q.append((4,'i',f'v_fma_f32 v{cs+r}, v{cs+r}, s66, v32',mmin))
        for r in range(8): q.append((4,'i',f'v_mul_f32 v{cs+r}, v{cs+r}, v{acc+r}',mmin))
        for r in range(8): q.append((8,'i',f'v_exp_f32 v{cs+r}, v{cs+r}',mmin))
        for r in range(8): q.append((4,'i',f'v_add_f32 v{cs+r}, 1.0, v{cs+r}',mmin))
        for r in range(8): q.append((8,'i',f'v_rcp_f32 v{cs+r}, v{cs+r}',mmin))
        for r in range(8): q.append((4,'i',f'v_mul_f32 v{acc+r}, v{acc+r}, v{cs+r}',mmin))
        if 'lateh' in OPT:
            for i in range(4): q.append((4,'i',f'v_cvt_pk_bf16_f32 v{acc+i}, v{acc+2*i}, v{acc+2*i+1}',mmin))
            return q
        for i in range(4): q.append((4,'i',f'v_cvt_pk_bf16_f32 v{b1+i}, v{acc+2*i}, v{acc+2*i+1}',mmin))
        q.append((4,'i',f'buffer_store_dwordx4 {R(b1,4)}, v15, {W_}, s{SO[sl]} offen offset:{1024*hf} sc1',mmin))
        q.append((0,'i','s_nop 1',mmin))
        return q
    queue=[]
    def drain(budget, m):
        while queue and budget>0 and queue[0][3]<=m:
            c,kind,p,_=queue.pop(0)
            if kind=='lg': h.lg(p[0],p[1])
            elif kind=='wait': h.wait_lg(p)
            elif kind=='gbar': gbar_wait(h, 17, 6, p); h.lgq=[]
            else: h(p)
            budget-=c
    for m in range(3): wreads(m)
    uk=0
    for m in range(NM):
        sl,n=divmod(m,32)
        if sl==0 and (n+4) in bar:
            h.wait_vm(bar[n+4][0]); gbar_arrive(h, 17, 7); h.lgq.append('CNT')
        h.wait_lg(f'W{m}')
        fs=FSET[m%4]
        h(f'v_mfma_f32_32x32x16_bf16 {R(ACC[sl],16)}, {R(fs,4)}, {R(XF+4*n,4)}, {R(ACC[sl],16)}')
        if sl==0 and n%2==1:
            h(f'v_smfmac_f32_16x16x64_bf16 {R(CS1A,4)}, {R(SPB,4)}, {R(FSET[(m-1)%4],8)}, v{SIB}')
        if m+3<NM: wreads(m+3)
        if m==33:
            h('s_nop 3')
            h(f'v_add_f32 v{CS1A}, v{CS1A}, v{CS1A+1}')
            h(f'v_add_f32 v{CS1A+2}, v{CS1A+2}, v{CS1A+3}')
            h('s_mov_b64 exec, 0xffff')
            h.lg('CSW', f'ds_write_b32 v29, v{CS1A}')
            h.lg('CSW', f'ds_write_b32 v29, v{CS1A+2} offset:64')
            h('s_mov_b64 exec, -1')
            h.wait_lg('CSW')
            gbar_arrive(h, 17, 7); h.lgq.append('CNT')
            stamp(h,5)
            queue+=ureads(0,0,0)+ureads(0,1,1)+ucomp(0,0,0,35)
            queue+=[(0,'gbar',16,0)]+ureads(1,0,2)+ucomp(0,1,1,35)
            queue+=ureads(1,1,3)+ucomp(1,0,2,66)
            queue+=ureads(2,0,4)+ucomp(1,1,3,66)
            queue+=ureads(2,1,5)+ucomp(2,0,4,99)+ucomp(2,1,5,99)
        if m>=33: drain(16, m)
    gbar_arrive(h, 17, 7); h.lgq.append('CNT')
    h('s_nop 7')
    drain(1<<30, 1000)
    if 'lateh' in OPT:
        lab=newlab('HW'); done=newlab('HWD')
        h(f'v_mov_b32 v12, {L_CNT+24}')
        h.label(lab)
        h('ds_read_b32 v13, v12')
        h('s_waitcnt lgkmcnt(0)')
        h('v_readfirstlane_b32 s3, v13')
        h('s_nop 0')
        h('s_cmp_eq_u32 s3, 0')
        h(f's_cbranch_scc0 {done}')
        h('s_sleep 8')
        h(f's_branch {lab}')
        h.label(done)
        for sl in range(3):
            for hf in range(2):
                h(f'buffer_store_dwordx4 {R(ACC[sl]+8*hf,4)}, v15, {W_}, s{SO[sl]} offen offset:{1024*hf} sc1')
    stamp(h,6)
    h('s_waitcnt vmcnt(0)')
    h.vmq=[]
    h('s_lshl_b32 s48, s38, 4')
    h('s_add_u32 s48, s48, s39')
    h('s_lshl_b32 s48, s48, 7')
    h(f's_add_u32 s48, s48, {F_2}')
    signal(h, L_CNT+4, 3, 's48', 40)

    h('s_setprio 2' if 'g2hi' in OPT else 's_setprio 0')
    h('s_and_b32 s52, s2, 7')
    h('s_lshr_b32 s53, s2, 3')
    h('s_and_b32 s54, s53, 3')
    h('s_lshl_b32 s52, s52, 2')
    h('s_add_u32 s58, s52, s54')
    h('s_lshr_b32 s59, s53, 2')
    h('v_lshlrev_b32 v5, 4, v1')
    h('v_lshlrev_b32 v8, 7, v1')
    sWw=24
    h('s_lshr_b32 s52, s2, 3')
    h('s_lshl_b32 s52, s52, 2')
    h('s_add_u32 s52, s52, s37')
    h('s_lshl_b32 s52, s52, 14')
    h(f's_cmp_ge_u32 s52, {1376*1024}')
    h(f's_cselect_b32 s{sWw}, s{pWO}, s{pW2}')
    h(f's_cselect_b32 s{sWw+1}, s{pWO+1}, s{pW2+1}')
    h(f's_cselect_b32 s53, {1376*1024}, 0')
    h('s_sub_u32 s52, s52, s53')
    h('s_cmp_eq_u32 s53, 0')
    h(f's_mov_b32 s26, {512*512*2}')
    h(f's_cselect_b32 s26, {1376*512*2}, s26')
    h(f's_mov_b32 s{sWw+3}, 0x00020000')
    for k in range(0 if 'nowarm' in OPT else 16):
        h(f'buffer_load_dwordx4 v[40:43], v5, {SR(sWw)}, s52 offen offset:{1024*(k%4)}')
        if k%4==3: h('s_add_u32 s52, s52, 4096')
    sW2=24
    h('s_lshr_b32 s52, s58, 1')
    h('s_lshl_b32 s52, s52, 11')
    h(f's_add_u32 s52, s52, {F_2}')
    stamp(h,7)
    poll_wg(h, 16, 'v8', 's52', 26, 4, L_CNT+20)
    stamp(h,8)
    srd(h,sW2,pW2,1376*512*2)
    h('s_sub_u32 s60, s36, 4')
    h('s_mul_i32 s61, s60, 22')
    h('s_cmp_eq_u32 s60, 3')
    h('s_cselect_b32 s52, 1, 0')
    h('s_sub_u32 s61, s61, s52')
    h('s_cmp_lt_u32 s60, 2')
    h('s_cselect_b32 s62, 22, 21')
    h('s_lshl_b32 s63, s59, 1')
    h('s_and_b32 s52, s58, 3')
    h('s_add_u32 s63, s63, s52')
    h('s_sub_u32 s57, s62, s63')
    h('s_add_u32 s61, s61, s63')
    h('s_lshl_b32 s52, s58, 1')
    h('s_mul_i32 s52, s52, 86')
    h('s_add_u32 s52, s52, s61')
    h('s_lshl_b32 s52, s52, 10')
    h(f's_add_u32 s52, s52, {WS_H}')
    h('s_lshl_b32 s54, s61, 14')
    h('s_lshl_b32 s55, s59, 7')
    h('s_add_u32 s54, s54, s55')
    h('s_lshl_b32 s56, s62, 10')
    h('s_lshl_b32 s53, s62, 14')
    h('s_mov_b32 s50, s57')
    h(f's_mul_i32 s55, s60, {RINGSZ}')
    h(f's_add_u32 s55, s55, {L_RING}')
    def wdma_voff(e):
        e('v_lshrrev_b32 v10, 3, v1')
        e('v_lshlrev_b32 v10, 10, v10')
        e('v_and_b32 v11, 7, v1')
        e('v_bfe_u32 v12, v1, 4, 1')
        e('v_lshlrev_b32 v12, 2, v12')
        e('v_xor_b32 v11, v11, v12')
        e('v_lshlrev_b32 v11, 4, v11')
        e('v_add_u32 v10, v10, v11')
        e('v_add_u32 v11, 7168, v10')
    wdma_voff(h)
    h(f'v_add_u32 v17, {86*1024}, v5')
    def tr_addr(e, dst, base_s):
        e('v_bfe_u32 v13, v1, 2, 2')
        e('v_lshlrev_b32 v14, 2, v4')
        e('v_add_u32 v14, v14, v13')
        e('v_lshlrev_b32 v14, 7, v14')
        e('v_bfe_u32 v15, v1, 4, 1')
        e('v_lshlrev_b32 v15, 1, v15')
        e('v_and_b32 v16, 1, v1')
        e('v_add_u32 v15, v15, v16')
        e('v_lshrrev_b32 v13, 1, v13')
        e('v_lshlrev_b32 v13, 2, v13')
        e('v_xor_b32 v15, v15, v13')
        e('v_lshlrev_b32 v15, 4, v15')
        e('v_bfe_u32 v16, v1, 1, 1')
        e('v_lshlrev_b32 v16, 3, v16')
        e('v_add3_u32 v14, v14, v15, v16')
        e(f'v_add_u32 v{dst}, {base_s}, v14')
        e(f'v_xor_b32 v{dst+1}, 64, v{dst}')
    tr_addr(h, 18, 's55')
    def tail_prep(e):
        e('s_and_b32 s37, s36, 1')
        e('s_bfe_u32 s38, s36, 0x10001')
        e('s_lshr_b32 s39, s36, 2')
        srd(e,32,pOUT,2048*512*2)
        e('s_lshl_b32 s3, s58, 6')
        e('s_lshl_b32 s42, s37, 5')
        e('s_add_u32 s3, s3, s42')
        e('v_add_u32 v20, s3, v3')
        e('v_lshlrev_b32 v20, 10, v20')
        e('s_lshl_b32 s3, s59, 6')
        e('s_lshl_b32 s42, s38, 5')
        e('s_add_u32 s3, s3, s42')
        e('s_lshl_b32 s42, s39, 4')
        e('s_add_u32 s3, s3, s42')
        e('v_lshlrev_b32 v21, 3, v4')
        e('v_add_u32 v21, s3, v21')
        e('v_lshlrev_b32 v21, 1, v21')
        e('v_add_u32 v20, v20, v21')
        srd(e,44,pX,2048*512*2)
        e(f'buffer_load_dwordx4 v[24:27], v20, {SR(44)}, 0 offen')
        srd(e,44,pB2,512*2)
        e(f'buffer_load_dwordx4 v[28:31], v21, {SR(44)}, 0 offen')
        e('s_lshl_b32 s3, s39, 15')
        e(f's_add_u32 s3, s3, {L_WO}')
        tr_addr(e, 21, 's3')
        e('s_lshl_b32 s3, s38, 6')
        e('v_xor_b32 v21, s3, v21')
        e('s_lshl_b32 s3, s37, 15')
        e('s_lshl_b32 s42, s39, 14')
        e('s_add_u32 s3, s3, s42')
        e(f's_add_u32 s3, s3, {L_OX}')
        e('v_add_u32 v22, s3, v5')
        e('s_lshl_b32 s3, s38, 4')
        e('s_lshl_b32 s42, s39, 1')
        e('s_add_u32 s3, s3, s42')
        e('s_lshl_b32 s40, s58, 1')
        e('s_add_u32 s40, s40, s37')
        e('s_lshl_b32 s40, s40, 5')
        e('s_add_u32 s40, s40, s3')
        e('s_lshl_b32 s40, s40, 10')
        e(f's_add_u32 s40, s40, {WS_O}')
        e('s_lshl_b32 s41, s37, 5')
        e('s_add_u32 s41, s41, s3')
        e('s_lshl_b32 s41, s41, 10')
        e(f's_add_u32 s41, s41, {L_OX}')
        e('s_and_b32 s3, s36, 3')
        e('s_lshl_b32 s3, s3, 12')
        e(f's_add_u32 s3, s3, {L_EX}')
        e('s_lshl_b32 s42, s39, 11')
        e('s_add_u32 s43, s3, s42')
        e('v_add_u32 v23, s43, v5')
        e('s_xor_b32 s42, s42, 2048')
        e('s_add_u32 s43, s3, s42')
        e('v_add_u32 v6, s43, v5')
        e('s_lshr_b32 s42, s58, 2')
        e('s_lshl_b32 s42, s42, 12')
        e(f's_add_u32 s42, s42, {F_3}')
        e('s_waitcnt vmcnt(0)')
        for i in range(4):
            e(f'v_lshlrev_b32 v{40+2*i}, 16, v{24+i}')
            e(f'v_and_b32 v{41+2*i}, 0xffff0000, v{24+i}')
        for i in range(4):
            e(f'v_lshlrev_b32 v{24}, 16, v{28+i}')
            e(f'v_and_b32 v{25}, 0xffff0000, v{28+i}')
            e(f'v_add_f32 v{40+2*i}, v{40+2*i}, v24')
            e(f'v_add_f32 v{41+2*i}, v{41+2*i}, v25')
        e.vmq=[]
    GA=[[192,208],[224,240]]
    XR=[48+8*i for i in range(XD)]
    WB=[24,32]
    def x_issue(i):
        b=XR[i%XD]
        h.vm(f'X{i}', f'buffer_load_dwordx4 {R(b,4)}, v5, {W_}, s52 offen sc1')
        h.vm(f'X{i}', f'buffer_load_dwordx4 {R(b+4,4)}, v17, {W_}, s52 offen sc1')
        h('s_add_u32 s52, s52, 1024')
        h('s_sub_u32 s57, s57, 1')
        h('s_cmp_eq_u32 s57, 0')
        h('s_cselect_b32 s63, s56, 0')
        h('s_sub_u32 s52, s52, s63')
    def w_issue(i):
        h(f's_add_u32 m0, s55, {(i%WD)*2048}')
        h('s_sub_u32 s50, s50, 1')
        h.vm(f'W{i}', f'buffer_load_dwordx4 v10, {SR(sW2)}, s54 offen lds')
        h.vm(f'W{i}', f'buffer_load_dwordx4 v11, {SR(sW2)}, s54 offen offset:1024 lds')
        h('s_add_u32 s54, s54, 16384')
        h('s_cmp_eq_u32 s50, 0')
        h('s_cselect_b32 s63, s53, 0')
        h('s_sub_u32 s54, s54, s63')
    def g2_wread(i):
        for ct in range(2):
            for e in range(2):
                h(f'ds_read_b64_tr_b16 {R(WB[i%2]+4*ct+2*e,2)}, v{18+ct} offset:{(i%WD)*2048+e*1024}')
    if 'nog2' in OPT: h('s_branch K_G2_DONE')
    h.vmq=[]
    THR=4
    for o_ in OPT:
        if o_.startswith('THR='): THR=int(o_[4:])
    for i in range(XD):
        if i<WD: w_issue(i)
        x_issue(i)
        if THR<63 and len(h.vmq)>THR:
            h(f's_waitcnt vmcnt({THR-4 if THR>4 else 0})'); h.vmq=h.vmq[len(h.vmq)-(THR-4 if THR>4 else 0):] if THR>4 else []
    for tt in range(2):
        for ct in range(2):
            for r in range(16): h(f'v_mov_b32 v{GA[tt][ct]+r}, 0')
    if 'now2warm' not in OPT:
        h('s_mov_b32 s48, s54'); h('s_mov_b32 s49, s50')
        for i in range(WD,22):
            if i%2==0: h.wait_vm_all()
            h.vm('L2', f'buffer_load_dwordx4 v[40:43], v10, {SR(sW2)}, s48 offen')
            h.vm('L2', f'buffer_load_dwordx4 v[40:43], v11, {SR(sW2)}, s48 offen offset:1024')
            h('s_add_u32 s48, s48, 16384')
            h('s_sub_u32 s49, s49, 1')
            h('s_cmp_eq_u32 s49, 0')
            h('s_cselect_b32 s63, s53, 0')
            h('s_sub_u32 s48, s48, s63')
    h.wait_vm_all()
    tail_prep(h)
    lab=newlab('G2W'); done=newlab('G2WD')
    h(f'v_mov_b32 v12, {L_CNT+G2CNT}')
    h.label(lab)
    h('ds_read_b32 v13, v12')
    h('s_waitcnt lgkmcnt(0)')
    h('v_readfirstlane_b32 s3, v13')
    h('s_nop 0')
    h(f's_cmp_ge_u32 s3, {G2TGT}')
    h(f's_cbranch_scc1 {done}')
    h('s_sleep 16')
    h(f's_branch {lab}')
    h.label(done)
    h('s_setprio 2')
    stamp(h,9)
    h.wait_vm_all()
    g2_wread(0)
    NK=22
    for i in range(NK):
        if i+1<NK:
            h.wait_vm([f'W{i+1}'])
            g2_wread(i+1)
            h.wait_vm([f'X{i}'])
            h('s_waitcnt lgkmcnt(4)')
        else:
            h.wait_vm([f'X{i}'])
            h('s_waitcnt lgkmcnt(0)')
            h('s_cmp_eq_u32 s62, 21')
            h('s_cbranch_scc1 K_G2_DONE')
        b=XR[i%XD]
        for tt in range(2):
            for ct in range(2):
                h(f'v_mfma_f32_32x32x16_bf16 {R(GA[tt][ct],16)}, {R(WB[i%2]+4*ct,4)}, {R(b+4*tt,4)}, {R(GA[tt][ct],16)}')
        if i+WD<NK: w_issue(i+WD)
        if i+XD<NK: x_issue(i+XD)
    h.label('K_G2_DONE')
    h('s_waitcnt vmcnt(0) lgkmcnt(0)')
    stamp(h,11)
    h('s_nop 7')
    for tt in range(2):
        for ct in range(2):
            qd=tt+2*ct
            lab=newlab('GXS')
            h(f's_cmp_eq_u32 s60, {qd}')
            h(f's_cbranch_scc1 {lab}')
            h(f's_sub_u32 s52, {qd+3}, s60')
            h('s_and_b32 s52, s52, 3')
            h('s_lshl_b32 s52, s52, 12')
            h('s_add_u32 s52, s52, s55')
            h('v_add_u32 v14, s52, v5')
            for k in range(4): h(f'ds_write_b128 v14, {R(GA[tt][ct]+4*k,4)} offset:{1024*k}')
            h.label(lab)
    def att_ids(e):
        e('s_and_b32 s48, s2, 7')
        e('s_lshr_b32 s49, s2, 3')
        e('s_and_b32 s50, s49, 3')
        e('s_lshl_b32 s48, s48, 2')
        e('s_add_u32 s38, s48, s50')
        e('s_lshr_b32 s39, s49, 2')
    h(f'v_mov_b32 v12, {L_CNT+12}')
    h('v_mov_b32 v13, 1')
    h('s_waitcnt lgkmcnt(0)')
    gbar_arrive(h, 12, 13)
    gbar_wait(h, 12, 13, 24)
    for sl in range(3):
        h(f's_sub_u32 s52, s60, {sl+1}')
        h('s_and_b32 s52, s52, 3')
        h(f's_mul_i32 s52, s52, {RINGSZ}')
        h(f's_add_u32 s52, s52, {L_RING+4096*sl}')
        h('v_add_u32 v14, s52, v5')
        for k in range(4): h(f'ds_read_b128 {R(128+16*sl+4*k,4)}, v14 offset:{1024*k}')
    h('s_waitcnt lgkmcnt(8)')
    gxe=newlab('GXE')
    for qd in range(4):
        lab=newlab('GXQ')
        tt,ct=qd&1,qd>>1
        if qd<3:
            h(f's_cmp_lg_u32 s60, {qd}')
            h(f's_cbranch_scc1 {lab}')
        for r in range(16): h(f'v_add_f32 v{192+r}, v{GA[tt][ct]+r}, v{128+r}')
        if qd<3:
            h(f's_branch {gxe}')
            h.label(lab)
    h.label(gxe)
    h('s_waitcnt lgkmcnt(4)')
    for r in range(16): h(f'v_add_f32 v{192+r}, v{192+r}, v{144+r}')
    h('s_waitcnt lgkmcnt(0)')
    for r in range(16): h(f'v_add_f32 v{192+r}, v{192+r}, v{160+r}')
    h('s_branch K_TAIL')

    a2=Asm()
    a2.label('K_ATT')
    a2('s_setprio 1')
    att_ids(a2)
    a2('v_lshlrev_b32 v5, 4, v1')
    a2('v_lshlrev_b32 v6, 8, v4')
    a2('v_and_b32 v7, 15, v1')
    a2('v_lshlrev_b32 v7, 4, v7')
    a2('v_add_u32 v6, v6, v7')
    a2('v_lshlrev_b32 v8, 7, v1')
    a2('v_lshlrev_b32 v9, 2, v1')
    a2('s_lshl_b32 s44, s38, 16')
    a2('s_lshl_b32 s46, s39, 13')
    a2('s_add_u32 s46, s46, s44')
    a2(f's_add_u32 s46, s46, {WS_Q}')
    a2('s_lshl_b32 s47, s36, 14')
    a2('s_add_u32 s47, s47, s44')
    a2(f's_add_u32 s48, s47, {WS_V}')
    a2(f's_add_u32 s47, s47, {WS_K}')
    a2('s_mov_b32 s40, s47')
    a2('s_mov_b32 s41, s48')
    a2('s_lshr_b32 s49, s38, 1')
    a2('s_mul_i32 s49, s49, 1536')
    a2(f's_add_u32 s49, s49, {WS_N}')
    a2('s_mov_b32 s50, 0x0000ffff')
    a2('s_mov_b32 s51, 0x0000ffff')
    KB=[80,84,88,92]; VB=[96,104,112,120]; QF=48
    SA,SB=10,26
    OA=[128+16*i for i in range(8)]; IDX=44
    a2('v_and_b32 v12, 27, v3')
    a2('v_cmp_eq_u32 vcc, 16, v12')
    a2('v_mov_b32 v12, 0x3f803f80')
    a2('s_nop 0')
    a2(f'v_cndmask_b32 v{IDX}, 0, v12, vcc')
    for b in VB:
        for r in range(8): a2(f'v_mov_b32 v{b+r}, v{IDX}')
    a2(f'v_mov_b32 v{IDX}, 0xdddddddd')
    for o in OA:
        for r in range(16): a2(f'v_mov_b32 v{o+r}, 0')
    for r in range(8,16): a2(f'v_mov_b32 v{SB+r}, 0')
    for p_ in range(4):
        a2(f's_sub_u32 s52, s36, {p_+1}')
        a2('s_and_b32 s52, s52, 3')
        a2('s_mul_i32 s52, s52, 2304')
        a2(f's_add_u32 s{56+p_}, s52, {2*p_*3*2304}')
    a2('s_lshl_b32 s52, s36, 1')
    a2('s_lshl_b32 s52, 3, s52')
    a2('s_xor_b32 s45, s52, 0xff')
    a2('s_lshr_b32 s52, s38, 1')
    a2('s_lshl_b32 s52, s52, 11')
    a2(f's_add_u32 s52, s52, {F_1}')
    stamp(a2,7)
    poll_wg(a2, 16, 'v8', 's52', 18, 0, L_CNT+24)
    stamp(a2,8)
    def loadkv(b, ko):
        a2.vm('KV', f'buffer_load_dwordx4 {R(KB[b],4)}, v5, {W_}, s47 offen offset:{1024*ko} sc1')
        a2('s_mov_b64 exec, s[50:51]')
        a2.vm('KV', f'buffer_load_dwordx4 {R(VB[b],4)}, v6, {W_}, s48 offen offset:{1024*ko} sc1')
        a2.vm('KV', f'buffer_load_dwordx4 {R(VB[b]+4,4)}, v6, {W_}, s48 offen offset:{1024*ko+512} sc1')
        a2('s_mov_b64 exec, -1')
    a2.vm('KV', f'buffer_load_dwordx4 {R(KB[0],4)}, v5, {W_}, s47 offen sc1')
    a2.vm('Q', f'buffer_load_dwordx4 {R(QF,4)}, v5, {W_}, s46 offen sc1')
    a2('s_mov_b64 exec, s[50:51]')
    a2.vm('KV', f'buffer_load_dwordx4 {R(VB[0],4)}, v6, {W_}, s48 offen sc1')
    a2.vm('KV', f'buffer_load_dwordx4 {R(VB[0]+4,4)}, v6, {W_}, s48 offen offset:512 sc1')
    a2('s_mov_b64 exec, -1')
    for i in range(1,4):
        a2.vm('Q', f'buffer_load_dwordx4 {R(QF+4*i,4)}, v5, {W_}, s46 offen offset:{1024*i} sc1')
    a2('s_add_u32 s46, s46, 4096')
    for i in range(4,8):
        a2.vm('Q', f'buffer_load_dwordx4 {R(QF+4*i,4)}, v5, {W_}, s46 offen offset:{1024*(i-4)} sc1')
    NR=(42,43,45,46,47,2)
    for k,rg in enumerate(NR):
        a2.vm('N', f'buffer_load_dword v{rg}, v9, {W_}, s49 offen offset:{256*k} sc1')
    loadkv(1,1); loadkv(2,2)
    a2('s_add_u32 s47, s47, 3072')
    a2('s_add_u32 s48, s48, 3072')
    def qk(kb, i, dst): return f'v_mfma_f32_32x32x16_bf16 {R(dst,16)}, {R(KB[kb],4)}, {R(QF+4*i,4)}, 0'
    def pv(kb, i, half, src): return f'v_smfmac_f32_32x32x32_bf16 {R(OA[i],16)}, {R(VB[kb]+4*half,4)}, {R(src+8*half,8)}, v{IDX}'
    a2('s_mov_b32 s42, 0')
    a2('s_mov_b32 s43, 0')
    a2('s_waitcnt vmcnt(21)')
    stamp(a2,9)
    a2(qk(0,0,SA))
    a2('s_nop 7'); a2('s_nop 3')
    a2.label('K_ATT_LOOP')
    G2N=4; G2P=3
    for o_ in OPT:
        if o_.startswith('G2N='): G2N=int(o_[4:])
        if o_.startswith('G2P='): G2P=int(o_[4:])
    ool=Asm()
    def red_write(i, inline=False):
        lab=newlab('RW'); back=newlab('RWB')
        e=a2 if inline else ool
        a2(f's_bitcmp1_b32 s43, {i}')
        if inline: a2(f's_cbranch_scc0 {back}')
        else:
            a2(f's_cbranch_scc1 {lab}'); ool.label(lab)
        p_=i>>1; off=(i&1)*3*2304
        e(f'v_add_u32 v42, s{56+p_}, v5')
        e(f'v_add_u32 v43, s{56+p_}, v9')
        e(f'ds_write_b128 v42, {R(OA[i],4)} offset:{off}')
        e(f'ds_write_b128 v42, {R(OA[i]+4,4)} offset:{off+1024}')
        e(f'ds_write_b32 v43, v{OA[i]+8} offset:{off+2048}')
        if not inline: ool(f's_branch {back}')
        a2.label(back)
    for n in range(32):
        kb,i=divmod(n,8)
        sa=SA if n%2==0 else SB
        sb=SB if n%2==0 else SA
        ex=[f'v_exp_f32 v{sa+r}, v{sa+r}' for r in range(16)]
        if 'noexp' in OPT: ex=[f'v_mov_b32 v{sa+r}, v{sa+r}' for r in range(16)]
        for e in ex[0:2]: a2(e)
        pkb,pi=divmod((n-1)%32,8)
        if 'nopv' not in OPT: a2(pv(pkb,pi,1,sb))
        if i==0 and 'noload' not in OPT: loadkv((kb+3)%4, kb)
        if kb==1 and i==1:
            lab=newlab('CHK'); back=newlab('CHKB')
            a2('s_cmp_eq_u32 s42, 0')
            a2(f's_cbranch_scc1 {lab}')
            ool.label(lab)
            for sh in (1,2,4,8):
                for r in NR: ool(f'v_max_f32_dpp v{r}, v{r}, v{r} row_shr:{sh} row_mask:0xf bank_mask:0xf')
            for r in NR: ool(f'v_max_f32_dpp v{r}, v{r}, v{r} row_bcast:15 row_mask:0xa bank_mask:0xf')
            for r in NR: ool(f'v_max_f32_dpp v{r}, v{r}, v{r} row_bcast:31 row_mask:0xc bank_mask:0xf')
            ool('v_add_f32 v42, v42, v43')
            ool('v_add_f32 v45, v45, v46')
            ool('v_max_f32 v47, v47, v2')
            ool('v_mul_f32 v42, v42, v45')
            ool(f'v_mul_f32 v42, {f2u(1.05):#x}, v42')
            ool(f'v_mov_b32 v43, {f2u(T_LOG2*T_LOG2):#x}')
            ool(f'v_mov_b32 v45, {f2u(2.0**60):#x}')
            ool('v_cmp_le_f32 vcc, v42, v43')
            ool('v_cmp_le_f32 s[52:53], v47, v45')
            ool('s_nop 1')
            ool('s_and_b64 vcc, vcc, s[52:53]')
            ool('s_bitcmp1_b64 vcc, 63')
            ool('s_cbranch_scc0 K_SLOW')
            ool(f'v_mov_b32 v42, {L_CNT+12}')
            gbar_wait(ool, 42, 43, 20)
            ool(f's_branch {back}')
            a2.label(back)
        for e in ex[2:5]: a2(e)
        nkb,ni=divmod((n+1)%32,8)
        if i==7: a2('s_waitcnt vmcnt(6)')
        if kb==0 and i<7: a2(f's_waitcnt vmcnt({21-i})')
        if 'noqk' not in OPT: a2(qk(nkb,ni,sb))
        for e in ex[5:11]: a2(e)
        if n==0: a2('s_waitcnt vmcnt(22)')
        if 'nopv' not in OPT: a2(pv(kb,i,0,sa))
        if kb==3 and i>=2: red_write(i-2)
        if n==G2N:
            lab=newlab('G2E'); back=newlab('G2EB')
            a2(f's_cmp_eq_u32 s42, {G2P}')
            a2(f's_cbranch_scc1 {lab}')
            ool.label(lab)
            ool(f'v_mov_b32 v46, {L_CNT+G2CNT}')
            ool('v_mov_b32 v47, 1')
            gbar_arrive(ool, 46, 47)
            ool('s_waitcnt lgkmcnt(0)')
            ool('s_wakeup')
            ool(f's_branch {back}')
            a2.label(back)
        for e in ex[11:16]: a2(e)
    a2('s_add_u32 s47, s47, 4096')
    a2('s_add_u32 s48, s48, 4096')
    a2('s_add_u32 s42, s42, 1')
    a2('s_cmp_eq_u32 s42, 3')
    a2('s_cselect_b32 s43, s45, 0')
    a2('s_cmp_lt_u32 s42, 4')
    a2('s_cbranch_scc1 K_ATT_LOOP')
    a2('s_nop 1')
    a2(pv(3,7,1,SB))
    if G2N>31:
        a2(f'v_mov_b32 v46, {L_CNT+G2CNT}')
        a2('v_mov_b32 v47, 1')
        gbar_arrive(a2, 46, 47)
        a2('s_mov_b32 s43, s45')
        red_write(6, True)
        a2('s_waitcnt lgkmcnt(0)')
        a2('s_wakeup')
        a2('s_nop 3')
    else:
        a2('s_mov_b32 s43, s45')
        red_write(6, True)
        a2('s_nop 7'); a2('s_nop 1')
    red_write(7, True)
    a2('s_branch K_ATT_RED')
    a2.label('K_ATT_DONE')
    a2('s_mov_b32 s43, s45')
    for i in range(8): red_write(i, True)
    a2.label('K_ATT_RED')
    a2('s_setprio 3')
    stamp(a2,10)
    a2.vmq=[]
    a2('s_and_b32 s52, s2, 7')
    a2('s_lshr_b32 s53, s2, 3')
    a2('s_and_b32 s54, s53, 3')
    a2('s_lshl_b32 s52, s52, 2')
    a2('s_add_u32 s58, s52, s54')
    a2('s_lshr_b32 s59, s53, 2')
    a2(f'v_mov_b32 v78, {L_CNT+28}')
    a2('v_mov_b32 v79, 1')
    a2(f's_mul_i32 s53, s36, {6*2304}')
    a2('v_add_u32 v2, s53, v5')
    a2('v_add_u32 v7, s53, v9')
    a2('s_waitcnt lgkmcnt(0)')
    gbar_arrive(a2, 78, 79)
    a2('s_lshl_b32 s53, s39, 3')
    a2('s_lshl_b32 s52, s36, 1')
    a2('s_add_u32 s53, s53, s52')
    a2('s_lshl_b32 s53, s53, 5')
    a2('s_add_u32 s53, s53, s38')
    a2('s_lshl_b32 s53, s53, 10')
    a2(f's_add_u32 s53, s53, {WS_O}')
    gbar_wait(a2, 78, 77, 4)
    stamp(a2,12)
    RB=[[10,22,32],[44,56,68]]
    for t_ in range(2):
        for k in range(3):
            b=RB[t_][k]; off=(t_*3+k)*2304
            a2(f'ds_read_b128 {R(b,4)}, v2 offset:{off}')
            a2(f'ds_read_b128 {R(b+4,4)}, v2 offset:{off+1024}')
            a2(f'ds_read_b32 v{b+8}, v7 offset:{off+2048}')
    for t_ in range(2):
        b=RB[t_][0]
        if t_==0: a2('s_waitcnt lgkmcnt(9)')
        if t_==1: a2('s_waitcnt lgkmcnt(0)'); gbar_arrive(a2, 78, 79)
        e_=newlab('RFE')
        for p_ in range(4):
            lab=newlab('RFQ')
            if p_<3:
                a2(f's_cmp_lg_u32 s36, {p_}'); a2(f's_cbranch_scc1 {lab}')
            for r in range(9): a2(f'v_add_f32 v{b+r}, v{OA[2*p_+t_]+r}, v{b+r}')
            if p_<3:
                a2(f's_branch {e_}'); a2.label(lab)
        a2.label(e_)
        for k in (1,2):
            for r in range(9): a2(f'v_add_f32 v{b+r}, v{b+r}, v{RB[t_][k]+r}')
        a2(f'v_rcp_f32 v{b+9}, v{b+8}')
        a2('s_nop 0')
        for r in range(8): a2(f'v_mul_f32 v{b+r}, v{b+r}, v{b+9}')
        c=RB[t_][1]
        for i in range(4): a2(f'v_cvt_pk_bf16_f32 v{c+i}, v{b+2*i}, v{b+2*i+1}')
        a2(f'buffer_store_dwordx4 {R(c,4)}, v5, {W_}, s53 offen sc1')
        if t_==0: a2(f's_add_u32 s53, s53, {32*1024}')
    ACC3=192
    for r in range(16): a2(f'v_mov_b32 v{ACC3+r}, 0')
    a2('s_lshl_b32 s52, s39, 5')
    a2('s_add_u32 s52, s52, s38')
    a2('s_lshl_b32 s52, s52, 7')
    a2(f's_add_u32 s52, s52, {F_3}')
    a2('s_waitcnt vmcnt(0)')
    signal(a2, L_CNT+8, 3, 's52', 46)
    if 'abs' in OPT: stamp(a2,11)
    a2('s_setprio 0')
    tail_prep(a2)
    a2('s_cmp_eq_u32 s36, 0')
    a2('s_cbranch_scc1 K_TAIL')
    a2(f'v_mov_b32 v12, {L_CNT+28}')
    gbar_wait(a2, 12, 13, 8)
    sWO=24
    srd(a2,sWO,pWO,512*512*2)
    wdma_voff(a2)
    a2('s_sub_u32 s54, s36, 1')
    a2('s_lshl_b32 s52, s54, 14')
    a2('s_lshl_b32 s53, s59, 7')
    a2('s_add_u32 s52, s52, s53')
    a2('s_lshl_b32 s53, s54, 11')
    for i in range(11):
        a2(f's_add_u32 m0, s53, {L_WO+3*2048*i}')
        a2('s_nop 0')
        a2(f'buffer_load_dwordx4 v10, {SR(sWO)}, s52 offen lds')
        a2(f'buffer_load_dwordx4 v11, {SR(sWO)}, s52 offen offset:1024 lds')
        a2(f's_add_u32 s52, s52, {3*16384}')
    a2.label('K_TAIL')
    a2('s_setprio 0')
    a2('v_lshlrev_b32 v8, 7, v1')
    stamp(a2,13)
    a2('s_cmp_eq_u32 s36, 0')
    a2('s_cbranch_scc0 K_S3W')
    poll(a2, 32, 'v8', 's42', 48)
    a2.label('K_S3W')
    a2('s_waitcnt vmcnt(0)')
    a2.vmq=[]
    a2('s_barrier')
    stamp(a2,14)
    for s_ in range(4):
        a2(f's_add_u32 m0, s41, {4096*s_}')
        a2(f's_add_u32 s55, s40, {4096*s_}')
        a2.vm(f'O{s_}', f'buffer_load_dwordx4 v5, {W_}, s55 offen sc1 lds')
        a2.vm(f'O{s_}', f'buffer_load_dwordx4 v5, {W_}, s55 offen offset:1024 sc1 lds')
    a2('s_cmp_eq_u32 s2, 0')
    a2('s_cbranch_scc0 K_NOE')
    a2('s_cmp_eq_u32 s36, 0')
    a2('s_cbranch_scc0 K_NOE')
    a2('v_mov_b32 v60, s64'); a2('v_mov_b32 v61, s65'); a2('v_mov_b32 v62, 0')
    a2('s_mov_b64 exec, 1')
    a2(f'buffer_store_dwordx2 v[60:61], v62, {W_}, 0 offen')
    a2('s_mov_b64 exec, -1')
    a2('s_waitcnt vmcnt(0)')
    a2.label('K_NOE')
    FX=[64,68,72,76]; FW=[80,84,88,92]
    for s_ in range(4):
        a2.wait_vm(f'O{s_}')
        a2('s_barrier')
        for k in range(4):
            ks=4*s_+k
            a2(f'ds_read_b128 {R(FX[k],4)}, v22 offset:{ks*1024}')
            a2(f'ds_read_b64_tr_b16 {R(FW[k],2)}, v21 offset:{ks*2048}')
            a2(f'ds_read_b64_tr_b16 {R(FW[k]+2,2)}, v21 offset:{ks*2048+1024}')
        for k in range(4):
            a2(f's_waitcnt lgkmcnt({3*(3-k)})')
            a2(f'v_mfma_f32_32x32x16_bf16 {R(ACC3,16)}, {R(FW[k],4)}, {R(FX[k],4)}, {R(ACC3,16)}')
    stamp(a2,15)
    a2('s_cmp_eq_u32 s39, 0')
    a2('s_cbranch_scc1 K_KH0')
    a2('s_nop 7'); a2('s_nop 3')
    a2(f'ds_write_b128 v23, {R(ACC3,4)}')
    a2(f'ds_write_b128 v23, {R(ACC3+4,4)} offset:1024')
    for r in range(8): a2(f'v_add_f32 v{40+r}, v{40+r}, v{ACC3+8+r}')
    a2('s_branch K_EX')
    a2.label('K_KH0')
    a2('s_nop 7'); a2('s_nop 3')
    a2(f'ds_write_b128 v23, {R(ACC3+8,4)}')
    a2(f'ds_write_b128 v23, {R(ACC3+12,4)} offset:1024')
    for r in range(8): a2(f'v_add_f32 v{40+r}, v{40+r}, v{ACC3+r}')
    a2.label('K_EX')
    a2('s_waitcnt lgkmcnt(0)')
    a2('s_barrier')
    a2('ds_read_b128 v[64:67], v6')
    a2('ds_read_b128 v[68:71], v6 offset:1024')
    a2('s_waitcnt lgkmcnt(0)')
    for r in range(8): a2(f'v_add_f32 v{40+r}, v{40+r}, v{64+r}')
    for i in range(4): a2(f'v_cvt_pk_bf16_f32 v{64+i}, v{40+2*i}, v{41+2*i}')
    a2(f'buffer_store_dwordx4 v[64:67], v20, {SR(32)}, 0 offen')
    if STAMP and ('rt' in OPT or 'span' in OPT) and 'dbg' not in OPT:
        a2('s_memrealtime s[92:93]'); a2('s_memtime s[100:101]')
    if 'abs' in OPT:
        a2('s_cmp_lt_u32 s36, 4'); a2('s_cbranch_scc0 K_NOABS'); stamp(a2,6); a2.label('K_NOABS')
    stamp_flush(a2,16)
    stamp_dbg(a2)
    a2('s_endpgm')
    a2.label('K_SLOW')
    a2('s_waitcnt vmcnt(0)')
    a2('s_nop 7'); a2('s_nop 7')
    for o in OA:
        for r in range(16): a2(f'v_mov_b32 v{o+r}, 0')
    MX=116
    a2('s_mov_b32 s61, s40')
    for i in range(8): a2(f'v_mov_b32 v{MX+i}, 0xff800000')
    a2('s_mov_b32 s62, 0')
    a2.label('K_S1')
    a2(f'buffer_load_dwordx4 {R(KB[0],4)}, v5, {W_}, s61 offen sc1')
    a2('s_waitcnt vmcnt(0)')
    for i in range(8):
        a2(f'v_mfma_f32_32x32x16_bf16 {R(SA,16)}, {R(KB[0],4)}, {R(QF+4*i,4)}, 0')
        a2('s_nop 7'); a2('s_nop 7')
        for r in range(0,16,2): a2(f'v_max3_f32 v{MX+i}, v{MX+i}, v{SA+r}, v{SA+r+1}')
    a2('s_add_u32 s61, s61, 1024')
    a2('s_add_u32 s62, s62, 1')
    a2('s_cmp_lt_u32 s62, 16')
    a2('s_cbranch_scc1 K_S1')
    for i in range(8): a2(f'v_mov_b32 v{SA+i}, v{MX+i}')
    a2('s_nop 1')
    for i in range(8): a2(f'v_permlane32_swap_b32 v{MX+i}, v{SA+i}')
    a2('s_nop 1')
    for i in range(8): a2(f'v_max_f32 v{MX+i}, v{MX+i}, v{SA+i}')
    a2(f'v_mov_b32 v12, {L_CNT+12}')
    gbar_wait(a2, 12, 13, 20)
    a2('s_lshl_b32 s53, s36, 11')
    a2(f's_add_u32 s53, s53, {L_MX}')
    a2('v_add_u32 v42, s53, v9')
    for i in range(8): a2(f'ds_write_b32 v42, v{MX+i} offset:{256*i}')
    a2(f'v_mov_b32 v12, {L_CNT+16}')
    a2('v_mov_b32 v13, 1')
    a2('s_waitcnt lgkmcnt(0)')
    gbar_arrive(a2, 12, 13)
    gbar_wait(a2, 12, 13, 4)
    a2(f'v_add_u32 v42, {L_MX}, v9')
    for q in range(4):
        for i in range(8): a2(f'ds_read_b32 v{SA+i}, v42 offset:{2048*q+256*i}')
        a2('s_waitcnt lgkmcnt(0)')
        for i in range(8): a2(f'v_max_f32 v{MX+i}, v{MX+i}, v{SA+i}')
    a2('s_mov_b32 s61, s40'); a2('s_mov_b32 s60, s41')
    a2('s_mov_b32 s62, 0')
    a2.label('K_S2')
    a2(f'buffer_load_dwordx4 {R(KB[0],4)}, v5, {W_}, s61 offen sc1')
    a2('s_mov_b64 exec, s[50:51]')
    a2(f'buffer_load_dwordx4 {R(VB[0],4)}, v6, {W_}, s60 offen sc1')
    a2(f'buffer_load_dwordx4 {R(VB[0]+4,4)}, v6, {W_}, s60 offen offset:512 sc1')
    a2('s_mov_b64 exec, -1')
    a2('s_waitcnt vmcnt(0)')
    for i in range(8):
        a2(f'v_mfma_f32_32x32x16_bf16 {R(SA,16)}, {R(KB[0],4)}, {R(QF+4*i,4)}, 0')
        a2('s_nop 7'); a2('s_nop 7')
        for r in range(16): a2(f'v_sub_f32 v{SA+r}, v{SA+r}, v{MX+i}')
        for r in range(16): a2(f'v_exp_f32 v{SA+r}, v{SA+r}')
        a2('s_nop 1')
        a2(f'v_smfmac_f32_32x32x32_bf16 {R(OA[i],16)}, {R(VB[0],4)}, {R(SA,8)}, v{IDX}')
        a2(f'v_smfmac_f32_32x32x32_bf16 {R(OA[i],16)}, {R(VB[0]+4,4)}, {R(SA+8,8)}, v{IDX}')
        a2('s_nop 7')
    a2('s_add_u32 s61, s61, 1024')
    a2('s_add_u32 s60, s60, 1024')
    a2('s_add_u32 s62, s62, 1')
    a2('s_cmp_lt_u32 s62, 16')
    a2('s_cbranch_scc1 K_S2')
    a2(f'v_mov_b32 v42, {L_CNT+G2CNT}')
    a2('v_mov_b32 v43, 1')
    gbar_arrive(a2, 42, 43)
    a2('s_waitcnt lgkmcnt(0)')
    a2('s_wakeup')
    a2('s_nop 7')
    a2('s_branch K_ATT_DONE')
    return 'K_START:\n'+a.text()+'\n'+h.text()+'\n'+g.text()+'\n'+a2.text()+'\n'+ool.text()+'\nK_END:\n  s_endpgm\n'

HEADER=open('cdna_kernels/'+NAME+'.s.ref').read().split('; Override launch geometry')[0]
def assemble(body):
    n=NAME+'_kernel'
    return HEADER+f'''; @launch grid=(256,1,1) block=(512,1,1) lds={LDS_TOTAL}
.amdgcn_target "amdgcn-amd-amdhsa--gfx950"
.text
.globl {n}
.p2align 8
.type {n},@function
{n}:
{body}
.section .rodata,"a"
.p2align 6
.amdhsa_kernel {n}
  .amdhsa_next_free_vgpr 256
  .amdhsa_next_free_sgpr 102
  .amdhsa_accum_offset 256
  .amdhsa_group_segment_fixed_size 0
  .amdhsa_kernarg_size 88
  .amdhsa_user_sgpr_count 2
  .amdhsa_user_sgpr_kernarg_segment_ptr 1
  .amdhsa_system_sgpr_workgroup_id_x 1
  .amdhsa_float_denorm_mode_32 3
.end_amdhsa_kernel
'''
if __name__=='__main__':
    outp=sys.argv[1]
    if 'stamp' in sys.argv: STAMP=True
    OPT.update(sys.argv[2:])
    for o_ in list(OPT):
        if o_.startswith('PD='): POLLD=int(o_[3:])
    open(outp,'w').write(assemble(gen()))
    print('wrote',outp)
```

```python
import sys, struct
NAME='parallel_sum__softmax_full_mha__mixer_channel_mlp__prompt'

WS_F = 0
F_1, F_2, F_3 = 32768, 65536, 98304
WS_N = 256<<10
WS_Q = 1<<20
WS_K = 3<<20
WS_V = 5<<20
WS_O = 7<<20
WS_H = 9<<20
WS_T = 15<<20
WS_SIZE = 16<<20
QSCALE = 0.25*1.4426950408889634
T_LOG2 = 48.0
SPIN_MAX = 1<<20
POLLD = 1

def f2u(f): return struct.unpack('<I', struct.pack('<f', f))[0]

STAMP=False
OPT=set()
class Asm:
    def __init__(self):
        self.L=[]; self.vmq=[]; self.lgq=[]
    def __call__(self, s): self.L.append('  '+s)
    def c(self, s): self.L.append('  ; '+s)
    def label(self, n): self.L.append(n+':')
    def vm(self, tag, s):
        self.vmq.append(tag); self(s)
    def wait_vm(self, tags):
        if isinstance(tags,str): tags=[tags]
        idx=[i for i,t in enumerate(self.vmq) if t in tags]
        if not idx: return
        last=max(idx); n=len(self.vmq)-1-last
        assert n<=63
        self(f's_waitcnt vmcnt({n})')
        self.vmq=self.vmq[last+1:]
    def lg(self, tag, s):
        self.lgq.append(tag); self(s)
    def wait_lg(self, tags):
        if isinstance(tags,str): tags=[tags]
        idx=[i for i,t in enumerate(self.lgq) if t in tags]
        if not idx: return
        last=max(idx); n=len(self.lgq)-1-last
        if n<=15: self(f's_waitcnt lgkmcnt({n})')
        self.lgq=self.lgq[last+1:]
    def wait_vm_all(self):
        self('s_waitcnt vmcnt(0)'); self.vmq=[]
    def text(self): return '\n'.join(self.L)

RTMAP={3:1, 9:2, 10:4}
def fstamp(a, i):
    if STAMP and 'fine' in OPT and 'fe' not in OPT: a(f's_memtime s[{70+2*i}:{71+2*i}]')
def estamp(a, i):
    if STAMP and 'fe' in OPT: a(f's_memtime s[{70+2*i}:{71+2*i}]')
def stamp(a, i):
    if STAMP:
        if 'stg' in OPT and i!=0: return
        if 'span' in OPT: return
        if 'fine' in OPT: return
        if 'rt' in OPT and i in (1,2,4) : return
        if 'abs' in OPT:
            a(f's_memrealtime s[{70+2*i}:{71+2*i}]'); return
        a(f's_memtime s[{70+2*i}:{71+2*i}]')
        if 'rt' in OPT and i in RTMAP:
            j=RTMAP[i]; a(f's_memrealtime s[{70+2*j}:{71+2*j}]')
def stamp_flush(a, n):
    if not STAMP: return
    a('s_waitcnt vmcnt(0) lgkmcnt(0)')
    a('s_lshl_b32 s69, s2, 3')
    a('s_add_u32 s69, s69, s36')
    a('s_lshl_b32 s69, s69, 6')
    a(f's_add_u32 s69, s69, {WS_T}')
    a('v_mov_b32 v2, 0')
    for i in range(n):
        a(f'v_mov_b32 v3, s{70+2*i}')
        a('s_mov_b64 exec, 1')
        a(f'buffer_store_dword v3, v2, s[28:31], s69 offen offset:{4*i}')
        a('s_mov_b64 exec, -1')
        a('s_nop 1')

def stamp_dbg(a):
    if not (STAMP and 'dbg' in OPT): return
    lab=newlab('DBG')
    a('s_cmp_eq_u32 s2, 37')
    a(f's_cbranch_scc0 {lab}')
    a('s_cmp_eq_u32 s36, 0')
    a(f's_cbranch_scc0 {lab}')
    a('s_load_dwordx2 s[66:67], s[0:1], 72')
    if 'abs' in OPT:
        a('s_waitcnt lgkmcnt(0)')
    else:
        a('s_memrealtime s[92:93]')
        a('s_memtime s[100:101]')
        a('s_waitcnt lgkmcnt(0)')
        a('s_sub_u32 s92, s92, s82')
        a('s_add_u32 s92, s92, s70')
    if 'rt' in OPT:
        for j in (1,2,4):
            a(f's_sub_u32 s{70+2*j}, s{70+2*j}, s82'); a(f's_add_u32 s{70+2*j}, s{70+2*j}, s70')
    if 'abs' not in OPT: a('s_mov_b32 s82, s70')
    a('s_mov_b32 s40, s66'); a('s_mov_b32 s41, s67'); a('s_mov_b32 s42, 256'); a('s_mov_b32 s43, 0x00020000')
    a('v_mov_b32 v2, 0')
    a('s_mov_b64 exec, 1')
    for i in range(16):
        a(f's_sub_u32 s3, s{70+2*i}, s70')
        a('v_mov_b32 v3, s3')
        a(f'buffer_store_dword v3, v2, s[40:43], 0 offen offset:{4*i}')
        a('s_nop 1')
    a('s_mov_b64 exec, -1')
    a.label(lab)

def R(a,n=1): return f'v{a}' if n==1 else f'v[{a}:{a+n-1}]'
def SR(a): return f's[{a}:{a+3}]'
def srd(a, d, ptr, size):
    a(f's_mov_b32 s{d}, s{ptr}')
    a(f's_mov_b32 s{d+1}, s{ptr+1}')
    a(f's_mov_b32 s{d+2}, {size}')
    a(f's_mov_b32 s{d+3}, 0x00020000')
def pk(op, d, a_, b_, c_=None, bsel=None, csel=None, neg=None):
    ops=[a_,b_]+([c_] if c_ is not None else [])
    n=len(ops)
    txt=[ (f'v[{o}:{o+1}]' if isinstance(o,int) else o) for o in ops]
    hi=[1]*n
    if bsel=='lo': hi[1]=0
    if csel=='lo': hi[2]=0
    s_=f'v_pk_{op}_f32 v[{d}:{d+1}], '+', '.join(txt)
    if hi!=[1]*n: s_+=' op_sel_hi:['+','.join(map(str,hi))+']'
    if neg: s_+=' '+neg
    return s_

pX,pWQ,pWO,pW1,pB1,pW2,pB2,pOUT,pWS = 4,6,8,12,14,16,18,20,22
sWS=28
W_=SR(sWS)

SLOT=28672; XS=16384; WST=12288
W1_SPARE=5*SLOT
SCR=W1_SPARE+WST
L_A=SCR; L_MU=SCR+512; L_CS=SCR+1024; L_CS1=SCR+1536; L_B1=SCR+2048; L_A2=SCR+2560; L_A2M=SCR+3072
L_CNT=SCR+4096
LDS_TOTAL=163840
W1_ADDR=[W1_SPARE, 3*SLOT, 3*SLOT+WST, 4*SLOT, 4*SLOT+WST, 0, WST, SLOT]
A_SLOT=[0,1,2,3,4,0,1,2]
L_RED=0
L_RING=73728
RINGSZ=20480; WD=10; XD=18
L_MX=57344
G2CNT=32; G2TGT=4
L_WO=0
L_OX=65536
L_EX=131072

uid=[0]
def newlab(p):
    uid[0]+=1; return f'{p}_{uid[0]}'

def poll(a, nl, voff, soff, vt):
    PD=POLLD
    lab=newlab('POLL'); done=newlab('POLLD')
    mask=(1<<nl)-1
    a(f's_mov_b32 s66, {mask:#x}')
    a('s_mov_b32 s67, 0')
    a(f's_mov_b32 s68, {SPIN_MAX}')
    a('s_waitcnt vmcnt(0)')
    a('s_mov_b64 exec, s[66:67]')
    for k in range(PD-1):
        a(f'buffer_load_dwordx2 v[{vt+2*k}:{vt+2*k+1}], {voff}, {W_}, {soff} offen sc1')
        if PD>1: a('s_sleep 2')
    a.label(lab)
    for k in range(PD):
        kn=(k+PD-1)%PD
        a(f'buffer_load_dwordx2 v[{vt+2*kn}:{vt+2*kn+1}], {voff}, {W_}, {soff} offen sc1')
        a(f's_waitcnt vmcnt({PD-1})')
        a(f'v_cmp_eq_u64 vcc, s[64:65], v[{vt+2*k}:{vt+2*k+1}]')
        a('s_sub_u32 s68, s68, 1')
        a('s_cmp_eq_u32 s68, 0')
        a(f's_cbranch_scc1 {done}')
        a('s_cmp_eq_u64 vcc, s[66:67]')
        a(f's_cbranch_scc1 {done}')
        a('s_sleep 2')
    a(f's_branch {lab}')
    a.label(done)
    a('s_mov_b64 exec, -1')
    a.vmq=[]

def poll_wg(a, nl, voff, soff, vt, leader, lds_addr):
    oth=newlab('PWO'); done=newlab('PWD')
    va=vt+2*POLLD
    a(f'v_mov_b32 v{va}, {lds_addr}')
    a(f's_cmp_eq_u32 s36, {leader}')
    a(f's_cbranch_scc0 {oth}')
    poll(a, nl, voff, soff, vt)
    a(f'v_mov_b32 v{va+1}, 1')
    a('s_mov_b64 exec, 1')
    a(f'ds_write_b32 v{va}, v{va+1}')
    a('s_mov_b64 exec, -1')
    a('s_waitcnt lgkmcnt(0)')
    a('s_wakeup')
    a(f's_branch {done}')
    a.label(oth)
    lab=newlab('PWL')
    a.label(lab)
    a(f'ds_read_b32 v{va+1}, v{va}')
    a('s_waitcnt lgkmcnt(0)')
    a(f'v_readfirstlane_b32 s66, v{va+1}')
    a('s_nop 0')
    a('s_cmp_eq_u32 s66, 0')
    a(f's_cbranch_scc0 {done}')
    a('s_sleep 8')
    a(f's_branch {lab}')
    a.label(done)
    a.vmq=[]

def signal(a, cnt_addr, last, flag_soff, vt):
    skip=newlab('SIG')
    a(f'v_mov_b32 v{vt}, {cnt_addr}')
    a(f'v_mov_b32 v{vt+1}, 1')
    a('s_mov_b64 exec, 1')
    a(f'ds_add_rtn_u32 v{vt+2}, v{vt}, v{vt+1}')
    a('s_waitcnt lgkmcnt(0)')
    a(f'v_readfirstlane_b32 s66, v{vt+2}')
    a(f'v_mov_b32 v{vt}, s64')
    a(f'v_mov_b32 v{vt+1}, s65')
    a(f'v_mov_b32 v{vt+2}, 0')
    a(f's_cmp_eq_u32 s66, {last}')
    a(f's_cbranch_scc0 {skip}')
    a(f'buffer_store_dwordx2 v[{vt}:{vt+1}], v{vt+2}, {W_}, {flag_soff} offen sc1')
    a.label(skip)
    a('s_mov_b64 exec, -1')

def gbar_arrive(a, vaddr, vone):
    a('s_mov_b64 exec, 1')
    a(f'ds_add_u32 v{vaddr}, v{vone}')
    a('s_mov_b64 exec, -1')
def gbar_wait(a, vaddr, vt, target):
    lab=newlab('GB')
    a.label(lab)
    a(f'ds_read_b32 v{vt}, v{vaddr}')
    a('s_waitcnt lgkmcnt(0)')
    a(f'v_readfirstlane_b32 s3, v{vt}')
    a('s_nop 0')
    a(f's_cmp_ge_u32 s3, {target}')
    a(f's_cbranch_scc0 {lab}')

def gen():
    a=Asm()
    a('s_cmp_ge_u32 s2, 256')
    a('s_cbranch_scc1 K_END')
    stamp(a,0)
    if STAMP and ('dbg' in OPT or 'rt' in OPT or 'span' in OPT) and 'abs' not in OPT: a('s_memrealtime s[82:83]')
    a('s_load_dwordx16 s[4:19], s[0:1], 0')
    a('s_load_dwordx2 s[20:21], s[0:1], 64')
    a('s_load_dwordx2 s[22:23], s[0:1], 80')
    a('v_and_b32 v1, 63, v0')
    a('v_lshrrev_b32 v2, 6, v0')
    a('s_and_b32 s48, s2, 7')
    a('v_readfirstlane_b32 s36, v2')
    a('s_lshr_b32 s49, s2, 3')
    a('s_and_b32 s50, s48, 1')
    a('s_lshr_b32 s51, s48, 1')
    a('s_lshl_b32 s50, s50, 3')
    a('s_and_b32 s52, s49, 7')
    a('s_add_u32 s38, s50, s52')
    a('s_lshl_b32 s51, s51, 2')
    a('s_lshr_b32 s52, s49, 3')
    a('s_add_u32 s39, s51, s52')
    a('s_and_b32 s37, s36, 3')
    a('v_and_b32 v3, 31, v1')
    a('v_lshrrev_b32 v4, 5, v1')
    a('s_cmp_ge_u32 s36, 4')
    a('s_cbranch_scc1 K_G1')
    a('s_getpc_b64 s[62:63]')
    a.label('PF_0')
    a('s_sub_u32 s62, s62, PF_0-K_START')
    a('s_subb_u32 s63, s63, 0')
    a('s_lshr_b32 s60, s2, 3')
    a('s_and_b32 s60, s60, 7')
    a('s_lshl_b32 s60, s60, 2')
    a('s_add_u32 s60, s60, s37')
    a('s_lshl_b32 s60, s60, 10')
    a('v_lshlrev_b32 v9, 4, v1')
    a('v_add_u32 v9, s60, v9')
    a('v_min_u32 v10, K_END-K_START-16, v9')
    a('global_load_dwordx4 v[200:203], v10, s[62:63]')
    a('v_add_u32 v9, 0x8000, v9')
    a('v_min_u32 v10, K_END-K_START-16, v9')
    a('global_load_dwordx4 v[204:207], v10, s[62:63]')
    a('s_branch K_G0')

    def common_lds_addr(e):
        e('v_bfe_u32 v5, v1, 1, 3')
        e('v_xor_b32 v5, v5, v4')
        e('v_lshlrev_b32 v5, 4, v5')
        e('s_lshl_b32 s3, s37, 12')
        e('v_lshlrev_b32 v6, 7, v3')
        e('v_add3_u32 v12, v6, v5, s3')
        e('v_xor_b32 v13, 32, v12')
        e('v_xor_b32 v14, 64, v12')
        e('v_xor_b32 v15, 0x60, v12')
        e('v_lshlrev_b32 v6, 3, v4')
        e('v_bfe_u32 v7, v1, 2, 2')
        e('v_add_u32 v6, v6, v7')
        e('v_mul_u32_u24 v6, 192, v6')
        e('v_bfe_u32 v7, v1, 4, 1')
        e('v_lshlrev_b32 v7, 5, v7')
        e('v_and_b32 v8, 3, v1')
        e('v_lshlrev_b32 v8, 3, v8')
        e('v_add3_u32 v16, v6, v7, v8')

    g=Asm()
    g.label('K_G0')
    accQ,accK,accV=64,80,96
    FS0=[128,144,160,176]
    common_lds_addr(g)
    for r in range(64,112): g(f'v_mov_b32 v{r}, 0')
    g(f'v_add_u32 v17, {XS}, v16')
    g(f's_mov_b32 s56, {(-4*SLOT)&0xffffffff:#x}')
    g(f's_mov_b32 s57, {SLOT}')
    g(f'v_lshlrev_b32 v18, 2, v1')
    g(f'v_add_u32 v18, {L_CNT}, v18')
    g('v_mov_b32 v19, 0')
    g('s_mov_b64 exec, 0xffff')
    g('ds_write_b32 v18, v19')
    g('s_mov_b64 exec, -1')
    g('s_lshl_b32 s48, s37, 7')
    g('v_lshlrev_b32 v20, 2, v3')
    g('v_add_u32 v20, s48, v20')
    g(f'v_add_u32 v20, {L_A}, v20')
    g('v_lshlrev_b32 v23, 4, v4')
    g(f'v_add_u32 v24, {L_CS}, v23')
    g('v_lshlrev_b32 v25, 2, v3')
    g(f'v_add_u32 v25, {L_CS+64*4}, v25')
    g('v_add_u32 v27, s48, v23')
    g(f'v_add_u32 v27, {L_A}, v27')
    g('s_lshl_b32 s49, s38, 2')
    g('s_add_u32 s49, s49, s37')
    g('s_lshl_b32 s50, s49, 10')
    g('s_lshl_b32 s51, s39, 17')
    g('s_add_u32 s50, s50, s51')
    g(f's_add_u32 s52, s50, {WS_K}')
    g(f's_add_u32 s53, s50, {WS_K+65536}')
    g(f's_add_u32 s54, s50, {WS_V}')
    g(f's_add_u32 s51, s50, {WS_Q+65536}')
    g(f's_add_u32 s50, s50, {WS_Q}')
    g('v_lshlrev_b32 v28, 4, v1')
    g('v_and_b32 v29, 0x13, v3')
    g('v_bfe_u32 v30, v3, 2, 1')
    g('v_lshlrev_b32 v30, 3, v30')
    g('v_bfe_u32 v31, v3, 3, 1')
    g('v_lshlrev_b32 v31, 2, v31')
    g('v_or3_b32 v29, v29, v30, v31')
    g('v_lshlrev_b32 v30, 5, v4')
    g('v_add_u32 v29, v29, v30')
    g('v_lshlrev_b32 v29, 4, v29')
    g('v_bfe_u32 v30, v3, 4, 1')
    g('v_lshlrev_b32 v30, 16, v30')
    g('v_lshlrev_b32 v31, 8, v4')
    g('v_and_b32 v32, 15, v3')
    g('v_lshlrev_b32 v32, 4, v32')
    g('v_add3_u32 v30, v30, v31, v32')
    g('s_mul_i32 s55, s39, 1536')
    g('s_lshl_b32 s58, s49, 2')
    g('s_add_u32 s55, s55, s58')
    g(f's_add_u32 s55, s55, {WS_N}')
    g('v_lshlrev_b32 v31, 8, v4')
    g('s_waitcnt lgkmcnt(0)')
    srd(g,sWS,pWS,WS_SIZE)
    g(f's_load_dwordx2 s[64:65], s[{pWS}:{pWS+1}], 0')
    if 'tlb' in OPT:
        g('v_mov_b32 v40, 0')
        g('v_mov_b32 v41, 0')
        g('s_mov_b64 exec, 1')
        for sreg in ('s50','s52','s54'):
            g(f'buffer_store_dword v40, v41, {W_}, {sreg} offen sc1')
        g(f'buffer_store_dword v40, v41, {W_}, s55 offen sc1')
        g('s_mov_b64 exec, -1')
        g('v_lshlrev_b32 v41, 21, v1')
        g(f's_mov_b32 s40, s{pW2}'); g(f's_mov_b32 s41, s{pW2+1}'); g(f's_mov_b32 s42, {1376*512*2}'); g('s_mov_b32 s43, 0x00020000')
        g('buffer_load_dword v208, v41, s[40:43], 0 offen')
        g(f's_mov_b32 s44, s{pWO}'); g(f's_mov_b32 s45, s{pWO+1}'); g(f's_mov_b32 s46, {512*512*2}'); g('s_mov_b32 s47, 0x00020000')
        g('buffer_load_dword v209, v41, s[44:47], 0 offen')
        g(f's_mov_b32 s40, s{pOUT}'); g(f's_mov_b32 s41, s{pOUT+1}'); g(f's_mov_b32 s42, {2048*512*2}')
        g('buffer_load_dword v210, v41, s[40:43], 0 offen')
    def readlist(set_, ks):
        L=[f'ds_read_b128 {R(set_,4)}, v{12+ks}']
        for t in range(3):
            for e in range(2):
                L.append(f'ds_read_b64_tr_b16 {R(set_+4+4*t+2*e,2)}, v17 offset:{ks*3072+e*768+t*64}')
        return L
    def mfmalist(set_):
        return [f'v_mfma_f32_32x32x16_bf16 {R(accQ,16)}, {R(set_+4,4)}, {R(set_,4)}, {R(accQ,16)}',
                f'v_mfma_f32_32x32x16_bf16 {R(accK,16)}, {R(set_+8,4)}, {R(set_,4)}, {R(accK,16)}',
                f'v_mfma_f32_32x32x16_bf16 {R(accV,16)}, {R(set_,4)}, {R(set_+12,4)}, {R(accV,16)}']
    g('s_waitcnt lgkmcnt(0)')
    g('s_add_u32 s64, s64, 0x7f4a7c15')
    g('s_addc_u32 s65, s65, 0x9e3779b9')
    stamp(g,1)
    for st in range(8):
        if st==5: fstamp(g,0)
        g('s_barrier')
        if st==5: fstamp(g,1)
        if st==6: fstamp(g,10)
        if st==0: stamp(g,2)
        for ks in range(4):
            rl=readlist(FS0[ks],ks); ml=mfmalist(FS0[(ks+2)%4])
            if st==5: fstamp(g,2+2*ks)
            if st==0 and ks<2:
                for r_ in rl: g(r_)
                continue
            g('s_waitcnt lgkmcnt(7)')
            if st==5: fstamp(g,3+2*ks)
            g(ml[0]); g(rl[0]); g(rl[1]); g(rl[2])
            g(ml[1]); g(rl[3]); g(rl[4])
            if 'noq' not in OPT: g(ml[2])
            g(rl[5]); g(rl[6])
        if st<7:
            sr='s57' if A_SLOT[st+1]>A_SLOT[st] else 's56'
            for r in (12,13,14,15,17): g(f'v_add_u32 v{r}, {sr}, v{r}')
    g('s_waitcnt lgkmcnt(7)')
    for m in mfmalist(FS0[2]): g(m)
    g('s_waitcnt lgkmcnt(0)')
    for m in mfmalist(FS0[3]): g(m)
    stamp(g,3)
    estamp(g,0)
    g('s_barrier')
    g('s_setprio 3')
    estamp(g,1)
    CSQ=128; CSK=144; AV=160; MV=176
    g('ds_read_b32 v21, v20')
    g(f'ds_read_b32 v22, v20 offset:{L_MU-L_A}')
    for gg in range(4): g(f'ds_read_b128 {R(CSK+4*gg,4)}, v24 offset:{(32+8*gg)*4}')
    g('ds_read_b32 v26, v25')
    for gg in range(4): g(f'ds_read_b128 {R(MV+4*gg,4)}, v27 offset:{8*gg*4+L_MU-L_A}')
    for gg in range(4): g(f'ds_read_b128 {R(AV+4*gg,4)}, v27 offset:{8*gg*4}')
    g('s_waitcnt lgkmcnt(13)')
    g('v_mul_f32 v38, v21, v22')
    g(f'v_mul_f32 v34, {f2u(QSCALE):#x}, v21')
    g('v_sub_f32 v38, 0, v38')
    g(f'v_mul_f32 v36, {f2u(QSCALE):#x}, v38')
    g('s_waitcnt lgkmcnt(9)')
    estamp(g,2)
    for r in range(16): g(f'v_mul_f32 v{CSK+r}, v38, v{CSK+r}')
    for r in range(16): g(f'v_fmac_f32 v{CSK+r}, v21, v{accK+r}')
    for i in range(8): g(f'v_cvt_pk_bf16_f32 v{accK+i}, v{CSK+2*i}, v{CSK+2*i+1}')
    estamp(g,3)
    g(f'buffer_store_dwordx4 {R(accK,4)}, v29, {W_}, s52 offen sc1')
    g(f'buffer_store_dwordx4 {R(accK+4,4)}, v29, {W_}, s53 offen sc1')
    estamp(g,4)
    for gg in range(4): g(f'ds_read_b128 {R(CSQ+4*gg,4)}, v24 offset:{(8*gg)*4}')
    g('s_waitcnt lgkmcnt(8)')
    g('v_sub_f32 v26, 0, v26')
    g('s_waitcnt lgkmcnt(4)')
    for r in range(16): g(f'v_fmac_f32 v{accV+r}, v26, v{MV+r}')
    for r in range(16): g(f'v_mul_f32 v{accV+r}, v{accV+r}, v{AV+r}')
    for i in range(8): g(f'v_cvt_pk_bf16_f32 v{AV+i}, v{accV+2*i}, v{accV+2*i+1}')
    estamp(g,5)
    g(f'buffer_store_dwordx4 {R(AV,4)}, v30, {W_}, s54 offen sc1')
    g(f'buffer_store_dwordx4 {R(AV+4,4)}, v30, {W_}, s54 offen offset:512 sc1')
    g('s_waitcnt lgkmcnt(0)')
    estamp(g,6)
    for r in range(16): g(f'v_mul_f32 v{CSQ+r}, v36, v{CSQ+r}')
    for r in range(16): g(f'v_fmac_f32 v{CSQ+r}, v34, v{accQ+r}')
    for i in range(8): g(f'v_cvt_pk_bf16_f32 v{accQ+i}, v{CSQ+2*i}, v{CSQ+2*i+1}')
    g(f'buffer_store_dwordx4 {R(accQ,4)}, v28, {W_}, s50 offen sc1')
    g(f'buffer_store_dwordx4 {R(accQ+4,4)}, v28, {W_}, s51 offen sc1')
    estamp(g,7)
    for (b,src) in ((42,CSK),(46,CSQ)):
        g(f'v_mul_f32 v{b}, v{src}, v{src}'); g(f'v_mul_f32 v{b+1}, v{src+8}, v{src+8}')
        for i in range(1,8):
            g(f'v_fmac_f32 v{b}, v{src+i}, v{src+i}'); g(f'v_fmac_f32 v{b+1}, v{src+8+i}, v{src+8+i}')
    g(f'v_max3_f32 v38, |v{accV}|, |v{accV+1}|, |v{accV+2}|')
    g('v_max_f32 v34, v42, v43')
    g('v_max_f32 v35, v46, v47')
    for r in range(3,15,2): g(f'v_max3_f32 v38, v38, |v{accV+r}|, |v{accV+r+1}|')
    g(f'v_max_f32 v36, v38, |v{accV+15}|')
    g('s_nop 1')
    for sh in (1,2,4,8):
        for r in (34,35,36): g(f'v_max_f32_dpp v{r}, v{r}, v{r} row_shr:{sh} row_mask:0xf bank_mask:0xf')
    for r in (34,35,36): g(f'v_max_f32_dpp v{r}, v{r}, v{r} row_bcast:15 row_mask:0xa bank_mask:0xf')
    g('s_nop 1')
    estamp(g,8)
    g('s_mov_b32 s66, 0x80000000')
    g('s_mov_b32 s67, 0x80000000')
    g('s_mov_b64 exec, s[66:67]')
    g(f'buffer_store_dword v34, v31, {W_}, s55 offen sc1')
    g(f'buffer_store_dword v35, v31, {W_}, s55 offen offset:512 sc1')
    g(f'buffer_store_dword v36, v31, {W_}, s55 offen offset:1024 sc1')
    g('s_mov_b64 exec, -1')
    stamp(g,4)
    estamp(g,9)
    g('s_setprio 0')
    g('s_waitcnt vmcnt(0)')
    estamp(g,10)
    g('s_lshl_b32 s48, s39, 4')
    g('s_add_u32 s48, s48, s38')
    g('s_lshl_b32 s48, s48, 7')
    g(f's_add_u32 s48, s48, {F_1}')
    signal(g, L_CNT, 3, 's48', 40)
    stamp(g,5)

    h=Asm()
    h.label('K_G1')
    h('s_setprio 2')
    sX,sWQ,sW1,sB1=24,32,40,44
    XF=128
    h('v_lshrrev_b32 v20, 3, v1')
    h('v_and_b32 v21, 7, v1')
    h('v_lshrrev_b32 v22, 4, v1')
    h('v_xor_b32 v21, v21, v22')
    h('v_lshlrev_b32 v20, 10, v20')
    h('v_lshlrev_b32 v22, 4, v21')
    h('v_add_u32 v2, v20, v22')
    h('v_xor_b32 v22, 64, v22')
    h('v_add_u32 v22, 7168, v22')
    h('v_add_u32 v18, v20, v22')
    h('v_add_u32 v19, 14336, v2')
    h('v_add_u32 v20, 14336, v18')
    VX=[2,18,19,20]
    VW=[21,22,23]; VW1=[24,25,26]
    h('s_lshl_b32 s50, s38, 17')
    h('s_lshl_b32 s51, s37, 15')
    h('s_add_u32 s50, s50, s51')
    h('s_lshl_b32 s53, s37, 12')
    h('s_and_b32 s58, s39, 3')
    h('s_lshl_b32 s58, s58, 1')
    h('s_add_u32 s58, s58, s38')
    h('s_and_b32 s58, s58, 7')
    def dmaX(st):
        slot=A_SLOT[st]*SLOT; L=[]
        L.append((f's_add_u32 s61, s58, {st}',None))
        L.append(('s_and_b32 s61, s61, 7',None))
        L.append((f's_add_u32 m0, s53, {slot}',None))
        L.append(('s_lshl_b32 s55, s61, 7',None))
        L.append(('s_add_u32 s55, s55, s50',None))
        for i in range(4):
            L.append((f'buffer_load_dwordx4 v{VX[i]}, {SR(sX)}, s55 offen offset:{1024*i}{" nt" if "ntx" in OPT else ""} lds',f'A{st}'))
        return L
    def emit(e, dmas):
        for (ins,tag) in dmas:
            if tag: e.vm(tag,ins)
            else: e(ins)
    h('s_waitcnt lgkmcnt(0)')
    srd(h,sX,pX,2048*512*2)
    emit(h,dmaX(0))
    for p in range(3):
        h(f'v_add_u32 v27, {64*p}, v1')
        h('v_mul_u32_u24 v28, 43691, v27')
        h('v_lshrrev_b32 v28, 19, v28')
        h('v_mul_u32_u24 v29, 12, v28')
        h('v_sub_u32 v29, v27, v29')
        h('v_lshrrev_b32 v30, 2, v29')
        h('v_lshlrev_b32 v30, 10, v30')
        h('v_and_b32 v31, 3, v29')
        h('v_lshlrev_b32 v31, 4, v31')
        h('v_mul_u32_u24 v32, 3072, v28')
        h(f'v_add3_u32 v{VW[p]}, v32, v30, v31')
        if p: h(f'v_subrev_u32 v{VW[p]}, {1024*p}, v{VW[p]}')
        h(f'v_mov_b32 v{33+2*p}, v28')
        h(f'v_mov_b32 v{34+2*p}, v29')
    h('s_mul_i32 s51, s37, 49152')
    h('s_lshl_b32 s52, s39, 6')
    h('s_add_u32 s51, s51, s52')
    h('s_mul_i32 s54, s37, 3072')
    srd(h,sWQ,pWQ,512*1536*2)
    def dmaW(st):
        slot=A_SLOT[st]*SLOT; L=[]
        L.append((f's_add_u32 s61, s58, {st}',None))
        L.append(('s_and_b32 s61, s61, 7',None))
        L.append((f's_add_u32 m0, s54, {slot+XS}',None))
        L.append((f's_mul_i32 s55, s61, {64*3072}',None))
        L.append(('s_add_u32 s55, s55, s51',None))
        for p in range(3):
            L.append((f'buffer_load_dwordx4 v{VW[p]}, {SR(sWQ)}, s55 offen offset:{1024*p}{" nt" if "ntw" in OPT else ""} lds',f'A{st}'))
        return L
    emit(h,dmaW(0))
    for p in range(3):
        h(f'v_mul_u32_u24 v32, 2752, v{33+2*p}')
        h(f'v_lshlrev_b32 v31, 4, v{34+2*p}')
        h(f'v_add_u32 v{VW1[p]}, v32, v31')
        if p: h(f'v_subrev_u32 v{VW1[p]}, {1024*p}, v{VW1[p]}')
    h('s_mul_i32 s52, s39, 3')
    h('s_lshl_b32 s56, s39, 1')
    h('s_add_u32 s56, s56, 11')
    h('s_cmp_lt_u32 s39, 11')
    h('s_cselect_b32 s48, s52, s56')
    h('s_cselect_b32 s49, 3, 2')
    h('s_mul_i32 s52, s37, 44032')
    h('s_lshl_b32 s56, s48, 6')
    h('s_add_u32 s52, s52, s56')
    def dmaA(st): return dmaX(st)+dmaW(st)
    def dmaB(st):
        L=[]
        L.append((f's_add_u32 s61, s58, {st}',None))
        L.append(('s_and_b32 s61, s61, 7',None))
        L.append((f's_add_u32 m0, s54, {W1_ADDR[st]}',None))
        L.append((f's_mul_i32 s55, s61, {64*2752}',None))
        L.append(('s_add_u32 s55, s55, s52',None))
        for p in range(3):
            L.append((f'buffer_load_dwordx4 v{VW1[p]}, {SR(sW1)}, s55 offen offset:{1024*p}{" nt" if "ntw1" in OPT else ""} lds',f'B{st}'))
        return L
    stamp(h,1)
    NINIT=3
    for o_ in OPT:
        if o_.startswith('NI='): NINIT=int(o_[3:])
    for st in range(1,NINIT): emit(h,dmaA(st))
    stamp(h,2)
    srd(h,sW1,pW1,512*1376*2); srd(h,sWS,pWS,WS_SIZE); srd(h,sB1,pB1,1376*2)
    h(f's_load_dwordx2 s[64:65], s[{pWS}:{pWS+1}], 0')
    common_lds_addr(h)
    h('v_lshlrev_b32 v27, 2, v1')
    h.vm('b1', f'buffer_load_dword v31, v27, {SR(sB1)}, s56 offen')
    h('s_cmp_eq_u32 s37, 3')
    h('s_cselect_b32 s57, 0, s37')
    h('s_lshl_b32 s3, s57, 6')
    h(f's_add_u32 s3, s3, {XS}')
    h('v_add_u32 v17, s3, v16')
    PAT=112; ONES=8; SUMA=[116,120]; GRA=[124,104]; CSA=108
    h('v_and_b32 v27, 15, v1')
    h('v_bfe_u32 v28, v1, 4, 1')
    h('v_cmp_eq_u32 vcc, v27, v28')
    h('v_mov_b32 v29, 0x3f803f80')
    h('s_nop 0')
    h(f'v_cndmask_b32 v{PAT}, 0, v29, vcc')
    for r in range(1,4): h(f'v_mov_b32 v{PAT+r}, v{PAT}')
    for r in range(4): h(f'v_mov_b32 v{ONES+r}, v29')
    SIDX=99; SPA=100
    h('v_and_b32 v30, 1, v1')
    h('v_cmp_eq_u32 vcc, 1, v30')
    h('v_mov_b32 v30, 0x44444444')
    h('v_mov_b32 v32, 0xeeeeeeee')
    h(f'v_cndmask_b32 v{SIDX}, v30, v32, vcc')
    h('v_and_b32 v30, 14, v1')
    h('v_cmp_eq_u32 vcc, 0, v30')
    h('v_cmp_eq_u32 s[66:67], 2, v30')
    h('s_nop 0')
    h(f'v_cndmask_b32 v{SPA}, 0, v29, vcc')
    h(f'v_cndmask_b32 v{SPA+2}, 0, v29, s[66:67]')
    h(f'v_mov_b32 v{SPA+1}, v{SPA}')
    h(f'v_mov_b32 v{SPA+3}, v{SPA+2}')
    for b in SUMA+GRA+[CSA]:
        for r in range(4): h(f'v_mov_b32 v{b+r}, 0')
    h('v_lshrrev_b32 v28, 4, v1')
    h('v_bfe_u32 v29, v1, 1, 3')
    h('v_xor_b32 v28, v28, v29')
    h('v_lshlrev_b32 v28, 4, v28')
    h('v_lshlrev_b32 v27, 7, v27')
    h('s_lshl_b32 s3, s37, 12')
    h('v_add3_u32 v5, v27, v28, s3')
    h('v_xor_b32 v6, 64, v5')
    TMP=40; XS16=56
    h('v_and_b32 v27, 3, v1')
    h('v_cmp_eq_u32 s[66:67], 1, v27')
    h('v_cmp_eq_u32 s[68:69], 2, v27')
    h('v_cmp_eq_u32 s[44:45], 3, v27')
    h('s_mov_b32 s46, 0x00f0000f')
    h('s_mov_b32 s47, 0xf0000f00')
    h('v_and_b32 v28, 15, v1')
    h('v_lshlrev_b32 v28, 2, v28')
    h('s_lshl_b32 s3, s37, 7')
    h('v_add_u32 v28, s3, v28')
    h(f'v_add_u32 v28, {L_A}, v28')
    h('v_lshlrev_b32 v29, 2, v1')
    h('s_lshl_b32 s55, s57, 7')
    h(f's_add_u32 s55, s55, {L_CS}')
    h('v_add_u32 v29, s55, v29')
    h('s_waitcnt lgkmcnt(0)')
    h('s_add_u32 s64, s64, 0x7f4a7c15')
    h('s_addc_u32 s65, s65, 0x9e3779b9')
    h(f's_mov_b32 s59, {SLOT}')
    h(f's_mov_b32 s60, {(-4*SLOT)&0xffffffff:#x}')
    if NINIT==3: sched={0:dmaA(3)+dmaA(4), 1:dmaB(0), 2:dmaA(5), 3:dmaA(6), 4:dmaA(7), 5:dmaB(1)+dmaB(2), 6:dmaB(3)+dmaB(4), 7:(dmaB(5)+dmaB(6) if 'b5early' in OPT else [])}
    elif NINIT==2 and 'smooth' in OPT: sched={0:dmaA(2), 1:dmaA(3), 2:dmaA(4), 3:dmaA(5), 4:dmaA(6), 5:dmaA(7)+dmaB(0), 6:dmaB(1)+dmaB(2), 7:[]}
    elif NINIT==2 and 'smooth2' in OPT: sched={0:dmaA(2), 1:dmaA(3), 2:dmaA(4)+dmaB(0), 3:dmaA(5), 4:dmaA(6), 5:dmaA(7), 6:dmaB(1)+dmaB(2), 7:dmaB(3)+dmaB(4)}
    elif NINIT==2: sched={0:dmaA(2)+dmaA(3), 1:dmaA(4)+dmaB(0), 2:dmaA(5), 3:dmaA(6), 4:dmaA(7), 5:dmaB(1)+dmaB(2), 6:dmaB(3)+dmaB(4), 7:(dmaB(5)+dmaB(6) if 'b5early' in OPT else [])}
    else: sched={0:dmaA(1)+dmaA(2), 1:dmaA(3)+dmaA(4), 2:dmaA(5)+dmaB(0), 3:dmaA(6), 4:dmaA(7), 5:dmaB(1)+dmaB(2), 6:dmaB(3)+dmaB(4), 7:(dmaB(5)+dmaB(6) if 'b5early' in OPT else [])}
    for st in range(8):
        if st==5: fstamp(h,0)
        if STAMP and 'stg' in OPT: h(f's_memrealtime s[{70+4*st}:{71+4*st}]') if st>0 else None
        h.wait_vm(f'A{st}')
        if STAMP and 'stg' in OPT and st>0: h(f's_memrealtime s[{72+4*st}:{73+4*st}]')
        if st==5: fstamp(h,1)
        h('s_barrier')
        if STAMP and 'stg' in OPT and st==0: h(f's_memrealtime s[72:73]')
        if st==5: fstamp(h,2)
        if st==0: stamp(h,3)
        dm=sched[st]
        for u in range(2):
            for kk in range(2):
                h(f'ds_read_b128 {R(XS16+8*u+4*kk,4)}, v{5+kk} offset:{2048*u}')
        for ks in range(4):
            for e in range(2):
                h(f'ds_read_b64_tr_b16 {R(TMP+4*ks+2*e,2)}, v17 offset:{ks*3072+e*768}')
        if st==5: fstamp(h,3)
        k=0; nv=0
        while nv<2 and k<len(dm):
            if dm[k][1]: h.vm(dm[k][1],dm[k][0]); nv+=1
            else: h(dm[k][0])
            k+=1
        val=[]
        for u in range(2):
            val.append(f'v_smfmac_f32_16x16x64_bf16 {R(SUMA[u],4)}, {R(ONES,4)}, {R(XS16+8*u,8)}, v{SIDX}')
            for kk in range(2):
                x=XS16+8*u+4*kk
                val.append(f'ds_read_b128 {R(XF+16*st+4*(2*u+kk),4)}, v{12+2*u+kk}')
                val.append(f'v_mfma_f32_16x16x32_bf16 {R(GRA[u],4)}, {R(x,4)}, {R(x,4)}, {R(GRA[u],4)}')
        val.append('s_waitcnt lgkmcnt(4)')
        for p_ in range(2):
            val.append(f'v_smfmac_f32_16x16x64_bf16 {R(CSA,4)}, {R(SPA,4)}, {R(TMP+8*p_,8)}, v{SIDX}')
        if st<7:
            d=(A_SLOT[st+1]-A_SLOT[st])*SLOT
            sr='s59' if d==SLOT else 's60'
            for r in (12,13,14,15,17,5,6): val.append(f'v_add_u32 v{r}, {sr}, v{r}')
        if st==5: fstamp(h,4)
        h('s_waitcnt lgkmcnt(8)')
        if st==5: fstamp(h,5)
        rest=dm[k:]; vi=0; fs_=6
        for (ins,tag) in rest:
            if tag:
                for _ in range(2):
                    if vi<len(val): h(val[vi]); vi+=1
                h.vm(tag,ins)
                if st==5: fstamp(h,fs_); fs_+=1
            else: h(ins)
        while vi<len(val):
            h(val[vi]); vi+=1
            if st==5 and val[vi-1].startswith('s_waitcnt'): fstamp(h,fs_); fs_+=1
        if st==5: fstamp(h,fs_); fs_+=1
        if st==6: fstamp(h,15)
    h('s_waitcnt lgkmcnt(0)')
    h('s_nop 1')
    for u in range(2):
        gr=GRA[u]; q=32+2*u
        h(f'v_cndmask_b32 v{q}, v{gr}, v{gr+1}, s[66:67]')
        h(f'v_cndmask_b32 v{q}, v{q}, v{gr+2}, s[68:69]')
        h(f'v_cndmask_b32 v{q}, v{q}, v{gr+3}, s[44:45]')
    for u in range(2):
        q=32+2*u; m=SUMA[u]
        h(f'v_add_f32 v{m}, v{m}, v{m+1}')
        h(f'v_mul_f32 v{q}, {f2u(1/512):#x}, v{q}')
        h(f'v_mul_f32 v{m}, {f2u(1/512):#x}, v{m}')
    h(f'v_add_f32 v{CSA}, v{CSA}, v{CSA+1}')
    h(f'v_add_f32 v{CSA+2}, v{CSA+2}, v{CSA+3}')
    for u in range(2):
        q=32+2*u; m=SUMA[u]
        h(f'v_fma_f32 v{q}, -v{m}, v{m}, v{q}')
        h(f'v_max_f32 v{q}, 0, v{q}')
        h(f'v_add_f32 v{q+1}, {f2u(1e-5):#x}, v{q}')
    h('s_mov_b64 exec, 0xffff')
    h(f'ds_write_b32 v29, v{CSA}')
    h(f'ds_write_b32 v29, v{CSA+2} offset:64')
    h('s_mov_b64 exec, -1')
    for u in range(2):
        q=32+2*u
        h(f'v_rsq_f32 v{q+1}, v{q+1}')
    h('s_mov_b64 exec, s[46:47]')
    for u in range(2):
        q=32+2*u; m=SUMA[u]
        h(f'ds_write_b32 v28, v{m} offset:{64*u+L_MU-L_A}')
        h(f'ds_write_b32 v28, v{q+1} offset:{64*u}')
    h('s_mov_b64 exec, -1')
    h('s_waitcnt lgkmcnt(0)')
    stamp(h,4)
    h('s_barrier')
    emit(h,(dmaB(7) if 'b5early' in OPT else dmaB(3)+dmaB(4)+dmaB(5)+dmaB(6)+dmaB(7) if 'smooth' in OPT else dmaB(5)+dmaB(6)+dmaB(7)))
    for u in range(2):
        q=32+2*u; m=SUMA[u]
        h(f'v_mul_f32 v{m+1}, v{q+1}, v{q+1}')
        h(f'v_mul_f32 v{m+1}, v{m+1}, v{q}')
        h(f'v_add_f32 v{m+1}, {f2u(1e-5):#x}, v{m+1}')
    for u in range(2):
        m=SUMA[u]
        h(f'v_rsq_f32 v{m+1}, v{m+1}')
    h('s_lshl_b32 s3, s37, 7')
    h('v_lshlrev_b32 v27, 2, v3')
    for u in range(2):
        q=32+2*u; m=SUMA[u]
        h(f'v_mul_f32 v{m+2}, v{m+1}, v{q+1}')
        h(f'v_mul_f32 v{m+3}, v{m+2}, v{m}')
    h('s_mov_b64 exec, s[46:47]')
    for u in range(2):
        m=SUMA[u]
        h(f'ds_write_b32 v28, v{m+2} offset:{64*u+L_A2-L_A}')
        h(f'ds_write_b32 v28, v{m+3} offset:{64*u+L_A2M-L_A}')
    h('s_mov_b64 exec, -1')
    h('v_add_u32 v28, s3, v27')
    h(f'v_add_u32 v28, {L_A2}, v28')
    h('s_waitcnt lgkmcnt(0)')
    h('ds_read_b32 v38, v28')
    h(f'ds_read_b32 v30, v28 offset:{L_A2M-L_A2}')
    h('v_lshlrev_b32 v34, 16, v31')
    h('v_and_b32 v35, 0xffff0000, v31')
    h('v_lshlrev_b32 v28, 3, v1')
    h(f'v_add_u32 v28, {L_B1}, v28')
    h('v_cmp_gt_u32 vcc, 48, v1')
    h('s_and_saveexec_b64 s[66:67], vcc')
    h('ds_write_b64 v28, v[34:35]')
    h('s_mov_b64 exec, s[66:67]')
    h('s_mov_b32 s62, 0x00030003')
    h('s_mov_b32 s63, 0x00030003')
    ACC=[64,80,96]
    TS=[57,59,60]
    for sl in range(3):
        h(f's_add_u32 s3, s37, {sl}')
        h('s_cmp_ge_u32 s3, 3')
        h('s_cselect_b32 s55, 3, 0')
        h('s_sub_u32 s3, s3, s55')
        h('s_cmp_ge_u32 s3, 3')
        h('s_cselect_b32 s55, 3, 0')
        h('s_sub_u32 s3, s3, s55')
        h(f's_mov_b32 s{TS[sl]}, s3')
    SPB=8; SIB=5; CS1A=124
    for r in range(4): h(f'v_mov_b32 v{SPB+r}, v{SPA+r}')
    h(f'v_mov_b32 v{SIB}, v{SIDX}')
    for r in range(4): h(f'v_mov_b32 v{CS1A+r}, 0')
    for r in range(64,112): h(f'v_mov_b32 v{r}, 0')
    h(f's_lshl_b32 s3, s{TS[0]}, 6')
    h('v_add_u32 v12, s3, v16')
    h('v_add_u32 v13, 86016, v12')
    h('v_add_u32 v14, 126976, v12')
    def waddr(n,e):
        st,ks=divmod(n,4); base=W1_ADDR[st]
        if base<65536-12288: reg,rel=12,base
        elif base<126976: reg,rel=13,base-86016
        else: reg,rel=14,base-126976
        return reg, rel+ks*3072+e*768
    FSET=[40,44,48,52]
    C1=-2*1.4426950408889634*0.7978845608028654
    C2=C1*0.044715
    h(f's_mov_b32 s66, {f2u(C2):#x}')
    h(f'v_mov_b32 v32, {f2u(C1):#x}')
    h('v_lshlrev_b32 v23, 4, v4')
    h('v_lshlrev_b32 v15, 4, v1')
    h('s_lshl_b32 s53, s38, 2')
    h('s_add_u32 s53, s53, s37')
    h('s_mul_i32 s53, s53, 86')
    SO=[67,68,69]
    CA=[33,34,35]
    for sl in range(3):
        h(f's_add_u32 s54, s48, s{TS[sl]}')
        h('s_lshl_b32 s54, s54, 1')
        h('s_add_u32 s54, s54, s53')
        h('s_lshl_b32 s54, s54, 10')
        h(f's_add_u32 s54, s54, {WS_H}')
        h(f's_cmp_ge_u32 s{TS[sl]}, s49')
        h(f's_cselect_b32 s{SO[sl]}, 0x7ff00000, s54')
        h(f's_lshl_b32 s3, s{TS[sl]}, 7')
        h(f'v_add_u32 v{CA[sl]}, s3, v23')
        h(f'v_add_u32 v{CA[sl]}, {L_CS1}, v{CA[sl]}')
    h('v_lshlrev_b32 v29, 2, v1')
    h(f's_lshl_b32 s55, s{TS[0]}, 7')
    h(f's_add_u32 s55, s55, {L_CS1}')
    h('v_add_u32 v29, s55, v29')
    h(f'v_mov_b32 v17, {L_CNT+12}')
    h('v_mov_b32 v7, 1')
    h.wait_vm(['B0','B1'])
    h('s_waitcnt lgkmcnt(0)')
    gbar_arrive(h, 17, 7)
    gbar_wait(h, 17, 6, 4)
    h.lgq=[]
    bar={8:(['B2','B3','B4'],8), 20:(['B5','B6','B7'],12)}
    NM=96
    def wreads(m):
        sl,n=divmod(m,32); fs=FSET[m%4]
        if n==0 and sl>0:
            h(f's_sub_u32 s3, s{TS[sl]}, s{TS[sl-1]}')
            h('s_lshl_b32 s3, s3, 6')
            for rg in (12,13,14): h(f'v_add_u32 v{rg}, s3, v{rg}')
        if sl==0 and n in bar:
            gbar_wait(h, 17, 6, bar[n][1]); h.lgq=[]
        for e in range(2):
            reg,off=waddr(n,e)
            h.lg(f'W{m}', f'ds_read_b64_tr_b16 {R(fs+2*e,2)}, v{reg} offset:{off}')
    TCS=[112,56]; TB1=[120,18]
    def ureads(sl,hf,k):
        cs=TCS[k%2]; b1=TB1[k%2]; q=[]
        for gg in range(2):
            q.append((4,'lg',(f'G{sl}{hf}', f'ds_read_b128 {R(cs+4*gg,4)}, v{CA[sl]} offset:{(16*hf+8*gg)*4}'),0))
            q.append((4,'lg',(f'G{sl}{hf}', f'ds_read_b128 {R(b1+4*gg,4)}, v{CA[sl]} offset:{(16*hf+8*gg)*4+L_B1-L_CS1}'),0))
        return q
    def ucomp(sl,hf,k,mmin):
        cs=TCS[k%2]; b1=TB1[k%2]; acc=ACC[sl]+8*hf; q=[]
        q.append((0,'wait',f'G{sl}{hf}',mmin))
        for r in range(8): q.append((4,'i',f'v_fma_f32 v{b1+r}, -v{cs+r}, v30, v{b1+r}',mmin))
        for r in range(8): q.append((4,'i',f'v_fma_f32 v{acc+r}, v{acc+r}, v38, v{b1+r}',mmin))
        for r in range(8): q.append((4,'i',f'v_mul_f32 v{cs+r}, v{acc+r}, v{acc+r}',mmin))
        for r in range(8): q.append((4,'i',f'v_fma_f32 v{cs+r}, v{cs+r}, s66, v32',mmin))
        for r in range(8): q.append((4,'i',f'v_mul_f32 v{cs+r}, v{cs+r}, v{acc+r}',mmin))
        for r in range(8): q.append((8,'i',f'v_exp_f32 v{cs+r}, v{cs+r}',mmin))
        for r in range(8): q.append((4,'i',f'v_add_f32 v{cs+r}, 1.0, v{cs+r}',mmin))
        for r in range(8): q.append((8,'i',f'v_rcp_f32 v{cs+r}, v{cs+r}',mmin))
        for r in range(8): q.append((4,'i',f'v_mul_f32 v{acc+r}, v{acc+r}, v{cs+r}',mmin))
        if 'lateh' in OPT:
            for i in range(4): q.append((4,'i',f'v_cvt_pk_bf16_f32 v{acc+i}, v{acc+2*i}, v{acc+2*i+1}',mmin))
            return q
        for i in range(4): q.append((4,'i',f'v_cvt_pk_bf16_f32 v{b1+i}, v{acc+2*i}, v{acc+2*i+1}',mmin))
        q.append((4,'i',f'buffer_store_dwordx4 {R(b1,4)}, v15, {W_}, s{SO[sl]} offen offset:{1024*hf} sc1',mmin))
        q.append((0,'i','s_nop 1',mmin))
        return q
    queue=[]
    def drain(budget, m):
        while queue and budget>0 and queue[0][3]<=m:
            c,kind,p,_=queue.pop(0)
            if kind=='lg': h.lg(p[0],p[1])
            elif kind=='wait': h.wait_lg(p)
            elif kind=='gbar': gbar_wait(h, 17, 6, p); h.lgq=[]
            else: h(p)
            budget-=c
    for m in range(3): wreads(m)
    uk=0
    for m in range(NM):
        sl,n=divmod(m,32)
        if sl==0 and (n+4) in bar:
            h.wait_vm(bar[n+4][0]); gbar_arrive(h, 17, 7); h.lgq.append('CNT')
        h.wait_lg(f'W{m}')
        fs=FSET[m%4]
        h(f'v_mfma_f32_32x32x16_bf16 {R(ACC[sl],16)}, {R(fs,4)}, {R(XF+4*n,4)}, {R(ACC[sl],16)}')
        if sl==0 and n%2==1:
            h(f'v_smfmac_f32_16x16x64_bf16 {R(CS1A,4)}, {R(SPB,4)}, {R(FSET[(m-1)%4],8)}, v{SIB}')
        if m+3<NM: wreads(m+3)
        if m==33:
            h('s_nop 3')
            h(f'v_add_f32 v{CS1A}, v{CS1A}, v{CS1A+1}')
            h(f'v_add_f32 v{CS1A+2}, v{CS1A+2}, v{CS1A+3}')
            h('s_mov_b64 exec, 0xffff')
            h.lg('CSW', f'ds_write_b32 v29, v{CS1A}')
            h.lg('CSW', f'ds_write_b32 v29, v{CS1A+2} offset:64')
            h('s_mov_b64 exec, -1')
            h.wait_lg('CSW')
            gbar_arrive(h, 17, 7); h.lgq.append('CNT')
            stamp(h,5)
            queue+=ureads(0,0,0)+ureads(0,1,1)+ucomp(0,0,0,35)
            queue+=[(0,'gbar',16,0)]+ureads(1,0,2)+ucomp(0,1,1,35)
            queue+=ureads(1,1,3)+ucomp(1,0,2,66)
            queue+=ureads(2,0,4)+ucomp(1,1,3,66)
            queue+=ureads(2,1,5)+ucomp(2,0,4,99)+ucomp(2,1,5,99)
        if m>=33: drain(16, m)
    gbar_arrive(h, 17, 7); h.lgq.append('CNT')
    h('s_nop 7')
    drain(1<<30, 1000)
    if 'lateh' in OPT:
        lab=newlab('HW'); done=newlab('HWD')
        h(f'v_mov_b32 v12, {L_CNT+24}')
        h.label(lab)
        h('ds_read_b32 v13, v12')
        h('s_waitcnt lgkmcnt(0)')
        h('v_readfirstlane_b32 s3, v13')
        h('s_nop 0')
        h('s_cmp_eq_u32 s3, 0')
        h(f's_cbranch_scc0 {done}')
        h('s_sleep 8')
        h(f's_branch {lab}')
        h.label(done)
        for sl in range(3):
            for hf in range(2):
                h(f'buffer_store_dwordx4 {R(ACC[sl]+8*hf,4)}, v15, {W_}, s{SO[sl]} offen offset:{1024*hf} sc1')
    stamp(h,6)
    h('s_waitcnt vmcnt(0)')
    h.vmq=[]
    h('s_lshl_b32 s48, s38, 4')
    h('s_add_u32 s48, s48, s39')
    h('s_lshl_b32 s48, s48, 7')
    h(f's_add_u32 s48, s48, {F_2}')
    signal(h, L_CNT+4, 3, 's48', 40)

    h('s_setprio 2' if 'g2hi' in OPT else 's_setprio 0')
    h('s_and_b32 s52, s2, 7')
    h('s_lshr_b32 s53, s2, 3')
    h('s_and_b32 s54, s53, 3')
    h('s_lshl_b32 s52, s52, 2')
    h('s_add_u32 s58, s52, s54')
    h('s_lshr_b32 s59, s53, 2')
    h('v_lshlrev_b32 v5, 4, v1')
    h('v_lshlrev_b32 v8, 7, v1')
    sWw=24
    h('s_lshr_b32 s52, s2, 3')
    h('s_lshl_b32 s52, s52, 2')
    h('s_add_u32 s52, s52, s37')
    h('s_lshl_b32 s52, s52, 14')
    h(f's_cmp_ge_u32 s52, {1376*1024}')
    h(f's_cselect_b32 s{sWw}, s{pWO}, s{pW2}')
    h(f's_cselect_b32 s{sWw+1}, s{pWO+1}, s{pW2+1}')
    h(f's_cselect_b32 s53, {1376*1024}, 0')
    h('s_sub_u32 s52, s52, s53')
    h('s_cmp_eq_u32 s53, 0')
    h(f's_mov_b32 s26, {512*512*2}')
    h(f's_cselect_b32 s26, {1376*512*2}, s26')
    h(f's_mov_b32 s{sWw+3}, 0x00020000')
    for k in range(0 if 'nowarm' in OPT else 16):
        h(f'buffer_load_dwordx4 v[40:43], v5, {SR(sWw)}, s52 offen offset:{1024*(k%4)}')
        if k%4==3: h('s_add_u32 s52, s52, 4096')
    sW2=24
    h('s_lshr_b32 s52, s58, 1')
    h('s_lshl_b32 s52, s52, 11')
    h(f's_add_u32 s52, s52, {F_2}')
    stamp(h,7)
    poll_wg(h, 16, 'v8', 's52', 26, 4, L_CNT+20)
    stamp(h,8)
    srd(h,sW2,pW2,1376*512*2)
    h('s_sub_u32 s60, s36, 4')
    h('s_mul_i32 s61, s60, 22')
    h('s_cmp_eq_u32 s60, 3')
    h('s_cselect_b32 s52, 1, 0')
    h('s_sub_u32 s61, s61, s52')
    h('s_cmp_lt_u32 s60, 2')
    h('s_cselect_b32 s62, 22, 21')
    h('s_lshl_b32 s63, s59, 1')
    h('s_and_b32 s52, s58, 3')
    h('s_add_u32 s63, s63, s52')
    h('s_sub_u32 s57, s62, s63')
    h('s_add_u32 s61, s61, s63')
    h('s_lshl_b32 s52, s58, 1')
    h('s_mul_i32 s52, s52, 86')
    h('s_add_u32 s52, s52, s61')
    h('s_lshl_b32 s52, s52, 10')
    h(f's_add_u32 s52, s52, {WS_H}')
    h('s_lshl_b32 s54, s61, 14')
    h('s_lshl_b32 s55, s59, 7')
    h('s_add_u32 s54, s54, s55')
    h('s_lshl_b32 s56, s62, 10')
    h('s_lshl_b32 s53, s62, 14')
    h('s_mov_b32 s50, s57')
    h(f's_mul_i32 s55, s60, {RINGSZ}')
    h(f's_add_u32 s55, s55, {L_RING}')
    def wdma_voff(e):
        e('v_lshrrev_b32 v10, 3, v1')
        e('v_lshlrev_b32 v10, 10, v10')
        e('v_and_b32 v11, 7, v1')
        e('v_bfe_u32 v12, v1, 4, 1')
        e('v_lshlrev_b32 v12, 2, v12')
        e('v_xor_b32 v11, v11, v12')
        e('v_lshlrev_b32 v11, 4, v11')
        e('v_add_u32 v10, v10, v11')
        e('v_add_u32 v11, 7168, v10')
    wdma_voff(h)
    h(f'v_add_u32 v17, {86*1024}, v5')
    def tr_addr(e, dst, base_s):
        e('v_bfe_u32 v13, v1, 2, 2')
        e('v_lshlrev_b32 v14, 2, v4')
        e('v_add_u32 v14, v14, v13')
        e('v_lshlrev_b32 v14, 7, v14')
        e('v_bfe_u32 v15, v1, 4, 1')
        e('v_lshlrev_b32 v15, 1, v15')
        e('v_and_b32 v16, 1, v1')
        e('v_add_u32 v15, v15, v16')
        e('v_lshrrev_b32 v13, 1, v13')
        e('v_lshlrev_b32 v13, 2, v13')
        e('v_xor_b32 v15, v15, v13')
        e('v_lshlrev_b32 v15, 4, v15')
        e('v_bfe_u32 v16, v1, 1, 1')
        e('v_lshlrev_b32 v16, 3, v16')
        e('v_add3_u32 v14, v14, v15, v16')
        e(f'v_add_u32 v{dst}, {base_s}, v14')
        e(f'v_xor_b32 v{dst+1}, 64, v{dst}')
    tr_addr(h, 18, 's55')
    def tail_prep(e):
        e('s_and_b32 s37, s36, 1')
        e('s_bfe_u32 s38, s36, 0x10001')
        e('s_lshr_b32 s39, s36, 2')
        srd(e,32,pOUT,2048*512*2)
        e('s_lshl_b32 s3, s58, 6')
        e('s_lshl_b32 s42, s37, 5')
        e('s_add_u32 s3, s3, s42')
        e('v_add_u32 v20, s3, v3')
        e('v_lshlrev_b32 v20, 10, v20')
        e('s_lshl_b32 s3, s59, 6')
        e('s_lshl_b32 s42, s38, 5')
        e('s_add_u32 s3, s3, s42')
        e('s_lshl_b32 s42, s39, 4')
        e('s_add_u32 s3, s3, s42')
        e('v_lshlrev_b32 v21, 3, v4')
        e('v_add_u32 v21, s3, v21')
        e('v_lshlrev_b32 v21, 1, v21')
        e('v_add_u32 v20, v20, v21')
        srd(e,44,pX,2048*512*2)
        e(f'buffer_load_dwordx4 v[24:27], v20, {SR(44)}, 0 offen')
        srd(e,44,pB2,512*2)
        e(f'buffer_load_dwordx4 v[28:31], v21, {SR(44)}, 0 offen')
        e('s_lshl_b32 s3, s39, 15')
        e(f's_add_u32 s3, s3, {L_WO}')
        tr_addr(e, 21, 's3')
        e('s_lshl_b32 s3, s38, 6')
        e('v_xor_b32 v21, s3, v21')
        e('s_lshl_b32 s3, s37, 15')
        e('s_lshl_b32 s42, s39, 14')
        e('s_add_u32 s3, s3, s42')
        e(f's_add_u32 s3, s3, {L_OX}')
        e('v_add_u32 v22, s3, v5')
        e('s_lshl_b32 s3, s38, 4')
        e('s_lshl_b32 s42, s39, 1')
        e('s_add_u32 s3, s3, s42')
        e('s_lshl_b32 s40, s58, 1')
        e('s_add_u32 s40, s40, s37')
        e('s_lshl_b32 s40, s40, 5')
        e('s_add_u32 s40, s40, s3')
        e('s_lshl_b32 s40, s40, 10')
        e(f's_add_u32 s40, s40, {WS_O}')
        e('s_lshl_b32 s41, s37, 5')
        e('s_add_u32 s41, s41, s3')
        e('s_lshl_b32 s41, s41, 10')
        e(f's_add_u32 s41, s41, {L_OX}')
        e('s_and_b32 s3, s36, 3')
        e('s_lshl_b32 s3, s3, 12')
        e(f's_add_u32 s3, s3, {L_EX}')
        e('s_lshl_b32 s42, s39, 11')
        e('s_add_u32 s43, s3, s42')
        e('v_add_u32 v23, s43, v5')
        e('s_xor_b32 s42, s42, 2048')
        e('s_add_u32 s43, s3, s42')
        e('v_add_u32 v6, s43, v5')
        e('s_lshr_b32 s42, s58, 2')
        e('s_lshl_b32 s42, s42, 12')
        e(f's_add_u32 s42, s42, {F_3}')
        e('s_waitcnt vmcnt(0)')
        for i in range(4):
            e(f'v_lshlrev_b32 v{40+2*i}, 16, v{24+i}')
            e(f'v_and_b32 v{41+2*i}, 0xffff0000, v{24+i}')
        for i in range(4):
            e(f'v_lshlrev_b32 v{24}, 16, v{28+i}')
            e(f'v_and_b32 v{25}, 0xffff0000, v{28+i}')
            e(f'v_add_f32 v{40+2*i}, v{40+2*i}, v24')
            e(f'v_add_f32 v{41+2*i}, v{41+2*i}, v25')
        e.vmq=[]
    GA=[[192,208],[224,240]]
    XR=[48+8*i for i in range(XD)]
    WB=[24,32]
    def x_issue(i):
        b=XR[i%XD]
        h.vm(f'X{i}', f'buffer_load_dwordx4 {R(b,4)}, v5, {W_}, s52 offen sc1')
        h.vm(f'X{i}', f'buffer_load_dwordx4 {R(b+4,4)}, v17, {W_}, s52 offen sc1')
        h('s_add_u32 s52, s52, 1024')
        h('s_sub_u32 s57, s57, 1')
        h('s_cmp_eq_u32 s57, 0')
        h('s_cselect_b32 s63, s56, 0')
        h('s_sub_u32 s52, s52, s63')
    def w_issue(i):
        h(f's_add_u32 m0, s55, {(i%WD)*2048}')
        h('s_sub_u32 s50, s50, 1')
        nt2=' nt' if 'ntw2' in OPT else ''
        h.vm(f'W{i}', f'buffer_load_dwordx4 v10, {SR(sW2)}, s54 offen{nt2} lds')
        h.vm(f'W{i}', f'buffer_load_dwordx4 v11, {SR(sW2)}, s54 offen offset:1024{nt2} lds')
        h('s_add_u32 s54, s54, 16384')
        h('s_cmp_eq_u32 s50, 0')
        h('s_cselect_b32 s63, s53, 0')
        h('s_sub_u32 s54, s54, s63')
    def g2_wread(i):
        for ct in range(2):
            for e in range(2):
                h(f'ds_read_b64_tr_b16 {R(WB[i%2]+4*ct+2*e,2)}, v{18+ct} offset:{(i%WD)*2048+e*1024}')
    if 'nog2' in OPT: h('s_branch K_G2_DONE')
    h.vmq=[]
    THR=4
    for o_ in OPT:
        if o_.startswith('THR='): THR=int(o_[4:])
    for i in range(XD):
        if i<WD: w_issue(i)
        x_issue(i)
        if THR<63 and len(h.vmq)>THR:
            h(f's_waitcnt vmcnt({THR-4 if THR>4 else 0})'); h.vmq=h.vmq[len(h.vmq)-(THR-4 if THR>4 else 0):] if THR>4 else []
    for tt in range(2):
        for ct in range(2):
            for r in range(16): h(f'v_mov_b32 v{GA[tt][ct]+r}, 0')
    if 'now2warm' not in OPT:
        h('s_mov_b32 s48, s54'); h('s_mov_b32 s49, s50')
        for i in range(WD,22):
            if i%2==0: h.wait_vm_all()
            h.vm('L2', f'buffer_load_dwordx4 v[40:43], v10, {SR(sW2)}, s48 offen')
            h.vm('L2', f'buffer_load_dwordx4 v[40:43], v11, {SR(sW2)}, s48 offen offset:1024')
            h('s_add_u32 s48, s48, 16384')
            h('s_sub_u32 s49, s49, 1')
            h('s_cmp_eq_u32 s49, 0')
            h('s_cselect_b32 s63, s53, 0')
            h('s_sub_u32 s48, s48, s63')
    h.wait_vm_all()
    tail_prep(h)
    lab=newlab('G2W'); done=newlab('G2WD')
    h(f'v_mov_b32 v12, {L_CNT+G2CNT}')
    h.label(lab)
    h('ds_read_b32 v13, v12')
    h('s_waitcnt lgkmcnt(0)')
    h('v_readfirstlane_b32 s3, v13')
    h('s_nop 0')
    h(f's_cmp_ge_u32 s3, {G2TGT}')
    h(f's_cbranch_scc1 {done}')
    h('s_sleep 16')
    h(f's_branch {lab}')
    h.label(done)
    G2PR=2
    for o_ in OPT:
        if o_.startswith('G2PR='): G2PR=int(o_[5:])
    h(f's_setprio {G2PR}')
    stamp(h,9)
    h.wait_vm_all()
    g2_wread(0)
    NK=22
    for i in range(NK):
        if i+1<NK:
            h.wait_vm([f'W{i+1}'])
            g2_wread(i+1)
            h.wait_vm([f'X{i}'])
            h('s_waitcnt lgkmcnt(4)')
        else:
            h.wait_vm([f'X{i}'])
            h('s_waitcnt lgkmcnt(0)')
            h('s_cmp_eq_u32 s62, 21')
            h('s_cbranch_scc1 K_G2_DONE')
        b=XR[i%XD]
        for tt in range(2):
            for ct in range(2):
                h(f'v_mfma_f32_32x32x16_bf16 {R(GA[tt][ct],16)}, {R(WB[i%2]+4*ct,4)}, {R(b+4*tt,4)}, {R(GA[tt][ct],16)}')
        if i+WD<NK: w_issue(i+WD)
        if i+XD<NK: x_issue(i+XD)
    h.label('K_G2_DONE')
    h('s_waitcnt vmcnt(0) lgkmcnt(0)')
    stamp(h,11)
    h('s_nop 7')
    for tt in range(2):
        for ct in range(2):
            qd=tt+2*ct
            lab=newlab('GXS')
            h(f's_cmp_eq_u32 s60, {qd}')
            h(f's_cbranch_scc1 {lab}')
            h(f's_sub_u32 s52, {qd+3}, s60')
            h('s_and_b32 s52, s52, 3')
            h('s_lshl_b32 s52, s52, 12')
            h('s_add_u32 s52, s52, s55')
            h('v_add_u32 v14, s52, v5')
            for k in range(4): h(f'ds_write_b128 v14, {R(GA[tt][ct]+4*k,4)} offset:{1024*k}')
            h.label(lab)
    def att_ids(e):
        e('s_and_b32 s48, s2, 7')
        e('s_lshr_b32 s49, s2, 3')
        e('s_and_b32 s50, s49, 3')
        e('s_lshl_b32 s48, s48, 2')
        e('s_add_u32 s38, s48, s50')
        e('s_lshr_b32 s39, s49, 2')
    h(f'v_mov_b32 v12, {L_CNT+12}')
    h('v_mov_b32 v13, 1')
    h('s_waitcnt lgkmcnt(0)')
    gbar_arrive(h, 12, 13)
    gbar_wait(h, 12, 13, 24)
    for sl in range(3):
        h(f's_sub_u32 s52, s60, {sl+1}')
        h('s_and_b32 s52, s52, 3')
        h(f's_mul_i32 s52, s52, {RINGSZ}')
        h(f's_add_u32 s52, s52, {L_RING+4096*sl}')
        h('v_add_u32 v14, s52, v5')
        for k in range(4): h(f'ds_read_b128 {R(128+16*sl+4*k,4)}, v14 offset:{1024*k}')
    h('s_waitcnt lgkmcnt(8)')
    gxe=newlab('GXE')
    for qd in range(4):
        lab=newlab('GXQ')
        tt,ct=qd&1,qd>>1
        if qd<3:
            h(f's_cmp_lg_u32 s60, {qd}')
            h(f's_cbranch_scc1 {lab}')
        for r in range(16): h(f'v_add_f32 v{192+r}, v{GA[tt][ct]+r}, v{128+r}')
        if qd<3:
            h(f's_branch {gxe}')
            h.label(lab)
    h.label(gxe)
    h('s_waitcnt lgkmcnt(4)')
    for r in range(16): h(f'v_add_f32 v{192+r}, v{192+r}, v{144+r}')
    h('s_waitcnt lgkmcnt(0)')
    for r in range(16): h(f'v_add_f32 v{192+r}, v{192+r}, v{160+r}')
    h('s_branch K_TAIL')

    a2=Asm()
    a2.label('K_ATT')
    a2('s_setprio 1')
    att_ids(a2)
    a2('v_lshlrev_b32 v5, 4, v1')
    a2('v_lshlrev_b32 v6, 8, v4')
    a2('v_and_b32 v7, 15, v1')
    a2('v_lshlrev_b32 v7, 4, v7')
    a2('v_add_u32 v6, v6, v7')
    a2('v_lshlrev_b32 v8, 7, v1')
    a2('v_lshlrev_b32 v9, 2, v1')
    a2('s_lshl_b32 s44, s38, 16')
    a2('s_lshl_b32 s46, s39, 13')
    a2('s_add_u32 s46, s46, s44')
    a2(f's_add_u32 s46, s46, {WS_Q}')
    a2('s_lshl_b32 s47, s36, 14')
    a2('s_add_u32 s47, s47, s44')
    a2(f's_add_u32 s48, s47, {WS_V}')
    a2(f's_add_u32 s47, s47, {WS_K}')
    a2('s_mov_b32 s40, s47')
    a2('s_mov_b32 s41, s48')
    a2('s_lshr_b32 s49, s38, 1')
    a2('s_mul_i32 s49, s49, 1536')
    a2(f's_add_u32 s49, s49, {WS_N}')
    a2('s_mov_b32 s50, 0x0000ffff')
    a2('s_mov_b32 s51, 0x0000ffff')
    KB=[80,84,88,92]; VB=[96,104,112,120]; QF=48
    SA,SB=10,26
    OA=[128+16*i for i in range(8)]; IDX=44
    a2('v_and_b32 v12, 27, v3')
    a2('v_cmp_eq_u32 vcc, 16, v12')
    a2('v_mov_b32 v12, 0x3f803f80')
    a2('s_nop 0')
    a2(f'v_cndmask_b32 v{IDX}, 0, v12, vcc')
    for b in VB:
        for r in range(8): a2(f'v_mov_b32 v{b+r}, v{IDX}')
    a2(f'v_mov_b32 v{IDX}, 0xdddddddd')
    for o in OA:
        for r in range(16): a2(f'v_mov_b32 v{o+r}, 0')
    for r in range(8,16): a2(f'v_mov_b32 v{SB+r}, 0')
    for p_ in range(4):
        a2(f's_sub_u32 s52, s36, {p_+1}')
        a2('s_and_b32 s52, s52, 3')
        a2('s_mul_i32 s52, s52, 2304')
        a2(f's_add_u32 s{56+p_}, s52, {2*p_*3*2304}')
    a2('s_lshl_b32 s52, s36, 1')
    a2('s_lshl_b32 s52, 3, s52')
    a2('s_xor_b32 s45, s52, 0xff')
    a2('s_lshr_b32 s52, s38, 1')
    a2('s_lshl_b32 s52, s52, 11')
    a2(f's_add_u32 s52, s52, {F_1}')
    stamp(a2,7)
    poll_wg(a2, 16, 'v8', 's52', 18, 0, L_CNT+24)
    stamp(a2,8)
    def loadkv(b, ko):
        a2.vm('KV', f'buffer_load_dwordx4 {R(KB[b],4)}, v5, {W_}, s47 offen offset:{1024*ko} sc1')
        a2('s_mov_b64 exec, s[50:51]')
        a2.vm('KV', f'buffer_load_dwordx4 {R(VB[b],4)}, v6, {W_}, s48 offen offset:{1024*ko} sc1')
        a2.vm('KV', f'buffer_load_dwordx4 {R(VB[b]+4,4)}, v6, {W_}, s48 offen offset:{1024*ko+512} sc1')
        a2('s_mov_b64 exec, -1')
    a2.vm('KV', f'buffer_load_dwordx4 {R(KB[0],4)}, v5, {W_}, s47 offen sc1')
    a2.vm('Q', f'buffer_load_dwordx4 {R(QF,4)}, v5, {W_}, s46 offen sc1')
    a2('s_mov_b64 exec, s[50:51]')
    a2.vm('KV', f'buffer_load_dwordx4 {R(VB[0],4)}, v6, {W_}, s48 offen sc1')
    a2.vm('KV', f'buffer_load_dwordx4 {R(VB[0]+4,4)}, v6, {W_}, s48 offen offset:512 sc1')
    a2('s_mov_b64 exec, -1')
    for i in range(1,4):
        a2.vm('Q', f'buffer_load_dwordx4 {R(QF+4*i,4)}, v5, {W_}, s46 offen offset:{1024*i} sc1')
    a2('s_add_u32 s46, s46, 4096')
    for i in range(4,8):
        a2.vm('Q', f'buffer_load_dwordx4 {R(QF+4*i,4)}, v5, {W_}, s46 offen offset:{1024*(i-4)} sc1')
    NR=(42,43,45,46,47,2)
    for k,rg in enumerate(NR):
        a2.vm('N', f'buffer_load_dword v{rg}, v9, {W_}, s49 offen offset:{256*k} sc1')
    loadkv(1,1); loadkv(2,2)
    a2('s_add_u32 s47, s47, 3072')
    a2('s_add_u32 s48, s48, 3072')
    def qk(kb, i, dst): return f'v_mfma_f32_32x32x16_bf16 {R(dst,16)}, {R(KB[kb],4)}, {R(QF+4*i,4)}, 0'
    def pv(kb, i, half, src): return f'v_smfmac_f32_32x32x32_bf16 {R(OA[i],16)}, {R(VB[kb]+4*half,4)}, {R(src+8*half,8)}, v{IDX}'
    a2('s_mov_b32 s42, 0')
    a2('s_mov_b32 s43, 0')
    a2('s_waitcnt vmcnt(21)')
    stamp(a2,9)
    a2(qk(0,0,SA))
    a2('s_nop 7'); a2('s_nop 3')
    a2.label('K_ATT_LOOP')
    G2N=4; G2P=3
    for o_ in OPT:
        if o_.startswith('G2N='): G2N=int(o_[4:])
        if o_.startswith('G2P='): G2P=int(o_[4:])
    ool=Asm()
    def red_write(i, inline=False):
        lab=newlab('RW'); back=newlab('RWB')
        e=a2 if inline else ool
        a2(f's_bitcmp1_b32 s43, {i}')
        if inline: a2(f's_cbranch_scc0 {back}')
        else:
            a2(f's_cbranch_scc1 {lab}'); ool.label(lab)
        p_=i>>1; off=(i&1)*3*2304
        e(f'v_add_u32 v42, s{56+p_}, v5')
        e(f'v_add_u32 v43, s{56+p_}, v9')
        e(f'ds_write_b128 v42, {R(OA[i],4)} offset:{off}')
        e(f'ds_write_b128 v42, {R(OA[i]+4,4)} offset:{off+1024}')
        e(f'ds_write_b32 v43, v{OA[i]+8} offset:{off+2048}')
        if not inline: ool(f's_branch {back}')
        a2.label(back)
    for n in range(32):
        kb,i=divmod(n,8)
        sa=SA if n%2==0 else SB
        sb=SB if n%2==0 else SA
        ex=[f'v_exp_f32 v{sa+r}, v{sa+r}' for r in range(16)]
        if 'noexp' in OPT: ex=[f'v_mov_b32 v{sa+r}, v{sa+r}' for r in range(16)]
        for e in ex[0:2]: a2(e)
        pkb,pi=divmod((n-1)%32,8)
        if 'nopv' not in OPT: a2(pv(pkb,pi,1,sb))
        if i==0 and 'noload' not in OPT: loadkv((kb+3)%4, kb)
        if kb==1 and i==1:
            lab=newlab('CHK'); back=newlab('CHKB')
            a2('s_cmp_eq_u32 s42, 0')
            a2(f's_cbranch_scc1 {lab}')
            ool.label(lab)
            for sh in (1,2,4,8):
                for r in NR: ool(f'v_max_f32_dpp v{r}, v{r}, v{r} row_shr:{sh} row_mask:0xf bank_mask:0xf')
            for r in NR: ool(f'v_max_f32_dpp v{r}, v{r}, v{r} row_bcast:15 row_mask:0xa bank_mask:0xf')
            for r in NR: ool(f'v_max_f32_dpp v{r}, v{r}, v{r} row_bcast:31 row_mask:0xc bank_mask:0xf')
            ool('v_add_f32 v42, v42, v43')
            ool('v_add_f32 v45, v45, v46')
            ool('v_max_f32 v47, v47, v2')
            ool('v_mul_f32 v42, v42, v45')
            ool(f'v_mul_f32 v42, {f2u(1.05):#x}, v42')
            ool(f'v_mov_b32 v43, {f2u(T_LOG2*T_LOG2):#x}')
            ool(f'v_mov_b32 v45, {f2u(2.0**60):#x}')
            ool('v_cmp_le_f32 vcc, v42, v43')
            ool('v_cmp_le_f32 s[52:53], v47, v45')
            ool('s_nop 1')
            ool('s_and_b64 vcc, vcc, s[52:53]')
            ool('s_bitcmp1_b64 vcc, 63')
            ool('s_cbranch_scc0 K_SLOW')
            ool(f'v_mov_b32 v42, {L_CNT+12}')
            gbar_wait(ool, 42, 43, 20)
            ool(f's_branch {back}')
            a2.label(back)
        for e in ex[2:5]: a2(e)
        nkb,ni=divmod((n+1)%32,8)
        if i==7: a2('s_waitcnt vmcnt(6)')
        if kb==0 and i<7: a2(f's_waitcnt vmcnt({21-i})')
        if 'noqk' not in OPT: a2(qk(nkb,ni,sb))
        for e in ex[5:11]: a2(e)
        if n==0: a2('s_waitcnt vmcnt(22)')
        if 'nopv' not in OPT: a2(pv(kb,i,0,sa))
        if kb==3 and i>=2: red_write(i-2)
        if n==G2N:
            lab=newlab('G2E'); back=newlab('G2EB')
            a2(f's_cmp_eq_u32 s42, {G2P}')
            a2(f's_cbranch_scc1 {lab}')
            ool.label(lab)
            ool(f'v_mov_b32 v46, {L_CNT+G2CNT}')
            ool('v_mov_b32 v47, 1')
            gbar_arrive(ool, 46, 47)
            ool('s_waitcnt lgkmcnt(0)')
            ool('s_wakeup')
            ool(f's_branch {back}')
            a2.label(back)
        for e in ex[11:16]: a2(e)
    a2('s_add_u32 s47, s47, 4096')
    a2('s_add_u32 s48, s48, 4096')
    a2('s_add_u32 s42, s42, 1')
    a2('s_cmp_eq_u32 s42, 3')
    a2('s_cselect_b32 s43, s45, 0')
    a2('s_cmp_lt_u32 s42, 4')
    a2('s_cbranch_scc1 K_ATT_LOOP')
    a2('s_nop 1')
    a2(pv(3,7,1,SB))
    if G2N>31:
        a2(f'v_mov_b32 v46, {L_CNT+G2CNT}')
        a2('v_mov_b32 v47, 1')
        gbar_arrive(a2, 46, 47)
        a2('s_mov_b32 s43, s45')
        red_write(6, True)
        a2('s_waitcnt lgkmcnt(0)')
        a2('s_wakeup')
        a2('s_nop 3')
    else:
        a2('s_mov_b32 s43, s45')
        red_write(6, True)
        a2('s_nop 7'); a2('s_nop 1')
    red_write(7, True)
    a2('s_branch K_ATT_RED')
    a2.label('K_ATT_DONE')
    a2('s_mov_b32 s43, s45')
    for i in range(8): red_write(i, True)
    a2.label('K_ATT_RED')
    a2('s_setprio 3')
    stamp(a2,10)
    a2.vmq=[]
    a2('s_and_b32 s52, s2, 7')
    a2('s_lshr_b32 s53, s2, 3')
    a2('s_and_b32 s54, s53, 3')
    a2('s_lshl_b32 s52, s52, 2')
    a2('s_add_u32 s58, s52, s54')
    a2('s_lshr_b32 s59, s53, 2')
    a2(f'v_mov_b32 v78, {L_CNT+28}')
    a2('v_mov_b32 v79, 1')
    a2(f's_mul_i32 s53, s36, {6*2304}')
    a2('v_add_u32 v2, s53, v5')
    a2('v_add_u32 v7, s53, v9')
    a2('s_waitcnt lgkmcnt(0)')
    gbar_arrive(a2, 78, 79)
    a2('s_lshl_b32 s53, s39, 3')
    a2('s_lshl_b32 s52, s36, 1')
    a2('s_add_u32 s53, s53, s52')
    a2('s_lshl_b32 s53, s53, 5')
    a2('s_add_u32 s53, s53, s38')
    a2('s_lshl_b32 s53, s53, 10')
    a2(f's_add_u32 s53, s53, {WS_O}')
    gbar_wait(a2, 78, 77, 4)
    stamp(a2,12)
    RB=[[10,22,32],[44,56,68]]
    for t_ in range(2):
        for k in range(3):
            b=RB[t_][k]; off=(t_*3+k)*2304
            a2(f'ds_read_b128 {R(b,4)}, v2 offset:{off}')
            a2(f'ds_read_b128 {R(b+4,4)}, v2 offset:{off+1024}')
            a2(f'ds_read_b32 v{b+8}, v7 offset:{off+2048}')
    for t_ in range(2):
        b=RB[t_][0]
        if t_==0: a2('s_waitcnt lgkmcnt(9)')
        if t_==1: a2('s_waitcnt lgkmcnt(0)'); gbar_arrive(a2, 78, 79)
        e_=newlab('RFE')
        for p_ in range(4):
            lab=newlab('RFQ')
            if p_<3:
                a2(f's_cmp_lg_u32 s36, {p_}'); a2(f's_cbranch_scc1 {lab}')
            for r in range(9): a2(f'v_add_f32 v{b+r}, v{OA[2*p_+t_]+r}, v{b+r}')
            if p_<3:
                a2(f's_branch {e_}'); a2.label(lab)
        a2.label(e_)
        for k in (1,2):
            for r in range(9): a2(f'v_add_f32 v{b+r}, v{b+r}, v{RB[t_][k]+r}')
        a2(f'v_rcp_f32 v{b+9}, v{b+8}')
        a2('s_nop 0')
        for r in range(8): a2(f'v_mul_f32 v{b+r}, v{b+r}, v{b+9}')
        c=RB[t_][1]
        for i in range(4): a2(f'v_cvt_pk_bf16_f32 v{c+i}, v{b+2*i}, v{b+2*i+1}')
        a2(f'buffer_store_dwordx4 {R(c,4)}, v5, {W_}, s53 offen sc1')
        if t_==0: a2(f's_add_u32 s53, s53, {32*1024}')
    ACC3=192
    for r in range(16): a2(f'v_mov_b32 v{ACC3+r}, 0')
    a2('s_lshl_b32 s52, s39, 5')
    a2('s_add_u32 s52, s52, s38')
    a2('s_lshl_b32 s52, s52, 7')
    a2(f's_add_u32 s52, s52, {F_3}')
    a2('s_waitcnt vmcnt(0)')
    signal(a2, L_CNT+8, 3, 's52', 46)
    if 'abs' in OPT: stamp(a2,11)
    a2('s_setprio 0')
    tail_prep(a2)
    a2('s_cmp_eq_u32 s36, 0')
    a2('s_cbranch_scc1 K_TAIL')
    a2(f'v_mov_b32 v12, {L_CNT+28}')
    gbar_wait(a2, 12, 13, 8)
    sWO=24
    srd(a2,sWO,pWO,512*512*2)
    wdma_voff(a2)
    a2('s_sub_u32 s54, s36, 1')
    a2('s_lshl_b32 s52, s54, 14')
    a2('s_lshl_b32 s53, s59, 7')
    a2('s_add_u32 s52, s52, s53')
    a2('s_lshl_b32 s53, s54, 11')
    for i in range(11):
        a2(f's_add_u32 m0, s53, {L_WO+3*2048*i}')
        a2('s_nop 0')
        nto=' nt' if 'ntwo' in OPT else ''
        a2(f'buffer_load_dwordx4 v10, {SR(sWO)}, s52 offen{nto} lds')
        a2(f'buffer_load_dwordx4 v11, {SR(sWO)}, s52 offen offset:1024{nto} lds')
        a2(f's_add_u32 s52, s52, {3*16384}')
    a2.label('K_TAIL')
    a2('s_setprio 0')
    a2('v_lshlrev_b32 v8, 7, v1')
    stamp(a2,13)
    a2('s_cmp_eq_u32 s36, 0')
    a2('s_cbranch_scc0 K_S3W')
    poll(a2, 32, 'v8', 's42', 48)
    a2.label('K_S3W')
    a2('s_waitcnt vmcnt(0)')
    a2.vmq=[]
    a2('s_barrier')
    stamp(a2,14)
    for s_ in range(4):
        a2(f's_add_u32 m0, s41, {4096*s_}')
        a2(f's_add_u32 s55, s40, {4096*s_}')
        a2.vm(f'O{s_}', f'buffer_load_dwordx4 v5, {W_}, s55 offen sc1 lds')
        a2.vm(f'O{s_}', f'buffer_load_dwordx4 v5, {W_}, s55 offen offset:1024 sc1 lds')
    a2('s_cmp_eq_u32 s2, 0')
    a2('s_cbranch_scc0 K_NOE')
    a2('s_cmp_eq_u32 s36, 0')
    a2('s_cbranch_scc0 K_NOE')
    a2('v_mov_b32 v60, s64'); a2('v_mov_b32 v61, s65'); a2('v_mov_b32 v62, 0')
    a2('s_mov_b64 exec, 1')
    a2(f'buffer_store_dwordx2 v[60:61], v62, {W_}, 0 offen')
    a2('s_mov_b64 exec, -1')
    a2('s_waitcnt vmcnt(0)')
    a2.label('K_NOE')
    FX=[64,68,72,76]; FW=[80,84,88,92]
    for s_ in range(4):
        a2.wait_vm(f'O{s_}')
        a2('s_barrier')
        for k in range(4):
            ks=4*s_+k
            a2(f'ds_read_b128 {R(FX[k],4)}, v22 offset:{ks*1024}')
            a2(f'ds_read_b64_tr_b16 {R(FW[k],2)}, v21 offset:{ks*2048}')
            a2(f'ds_read_b64_tr_b16 {R(FW[k]+2,2)}, v21 offset:{ks*2048+1024}')
        for k in range(4):
            a2(f's_waitcnt lgkmcnt({3*(3-k)})')
            a2(f'v_mfma_f32_32x32x16_bf16 {R(ACC3,16)}, {R(FW[k],4)}, {R(FX[k],4)}, {R(ACC3,16)}')
    stamp(a2,15)
    a2('s_cmp_eq_u32 s39, 0')
    a2('s_cbranch_scc1 K_KH0')
    a2('s_nop 7'); a2('s_nop 3')
    a2(f'ds_write_b128 v23, {R(ACC3,4)}')
    a2(f'ds_write_b128 v23, {R(ACC3+4,4)} offset:1024')
    for r in range(8): a2(f'v_add_f32 v{40+r}, v{40+r}, v{ACC3+8+r}')
    a2('s_branch K_EX')
    a2.label('K_KH0')
    a2('s_nop 7'); a2('s_nop 3')
    a2(f'ds_write_b128 v23, {R(ACC3+8,4)}')
    a2(f'ds_write_b128 v23, {R(ACC3+12,4)} offset:1024')
    for r in range(8): a2(f'v_add_f32 v{40+r}, v{40+r}, v{ACC3+r}')
    a2.label('K_EX')
    a2('s_waitcnt lgkmcnt(0)')
    a2('s_barrier')
    a2('ds_read_b128 v[64:67], v6')
    a2('ds_read_b128 v[68:71], v6 offset:1024')
    a2('s_waitcnt lgkmcnt(0)')
    for r in range(8): a2(f'v_add_f32 v{40+r}, v{40+r}, v{64+r}')
    for i in range(4): a2(f'v_cvt_pk_bf16_f32 v{64+i}, v{40+2*i}, v{41+2*i}')
    a2(f'buffer_store_dwordx4 v[64:67], v20, {SR(32)}, 0 offen')
    if STAMP and ('rt' in OPT or 'span' in OPT) and 'dbg' not in OPT:
        a2('s_memrealtime s[92:93]'); a2('s_memtime s[100:101]')
    if 'abs' in OPT:
        a2('s_cmp_lt_u32 s36, 4'); a2('s_cbranch_scc0 K_NOABS'); stamp(a2,6); a2.label('K_NOABS')
    stamp_flush(a2,16)
    stamp_dbg(a2)
    a2('s_endpgm')
    a2.label('K_SLOW')
    a2('s_waitcnt vmcnt(0)')
    a2('s_nop 7'); a2('s_nop 7')
    for o in OA:
        for r in range(16): a2(f'v_mov_b32 v{o+r}, 0')
    MX=116
    a2('s_mov_b32 s61, s40')
    for i in range(8): a2(f'v_mov_b32 v{MX+i}, 0xff800000')
    a2('s_mov_b32 s62, 0')
    a2.label('K_S1')
    a2(f'buffer_load_dwordx4 {R(KB[0],4)}, v5, {W_}, s61 offen sc1')
    a2('s_waitcnt vmcnt(0)')
    for i in range(8):
        a2(f'v_mfma_f32_32x32x16_bf16 {R(SA,16)}, {R(KB[0],4)}, {R(QF+4*i,4)}, 0')
        a2('s_nop 7'); a2('s_nop 7')
        for r in range(0,16,2): a2(f'v_max3_f32 v{MX+i}, v{MX+i}, v{SA+r}, v{SA+r+1}')
    a2('s_add_u32 s61, s61, 1024')
    a2('s_add_u32 s62, s62, 1')
    a2('s_cmp_lt_u32 s62, 16')
    a2('s_cbranch_scc1 K_S1')
    for i in range(8): a2(f'v_mov_b32 v{SA+i}, v{MX+i}')
    a2('s_nop 1')
    for i in range(8): a2(f'v_permlane32_swap_b32 v{MX+i}, v{SA+i}')
    a2('s_nop 1')
    for i in range(8): a2(f'v_max_f32 v{MX+i}, v{MX+i}, v{SA+i}')
    a2(f'v_mov_b32 v12, {L_CNT+12}')
    gbar_wait(a2, 12, 13, 20)
    a2('s_lshl_b32 s53, s36, 11')
    a2(f's_add_u32 s53, s53, {L_MX}')
    a2('v_add_u32 v42, s53, v9')
    for i in range(8): a2(f'ds_write_b32 v42, v{MX+i} offset:{256*i}')
    a2(f'v_mov_b32 v12, {L_CNT+16}')
    a2('v_mov_b32 v13, 1')
    a2('s_waitcnt lgkmcnt(0)')
    gbar_arrive(a2, 12, 13)
    gbar_wait(a2, 12, 13, 4)
    a2(f'v_add_u32 v42, {L_MX}, v9')
    for q in range(4):
        for i in range(8): a2(f'ds_read_b32 v{SA+i}, v42 offset:{2048*q+256*i}')
        a2('s_waitcnt lgkmcnt(0)')
        for i in range(8): a2(f'v_max_f32 v{MX+i}, v{MX+i}, v{SA+i}')
    a2('s_mov_b32 s61, s40'); a2('s_mov_b32 s60, s41')
    a2('s_mov_b32 s62, 0')
    a2.label('K_S2')
    a2(f'buffer_load_dwordx4 {R(KB[0],4)}, v5, {W_}, s61 offen sc1')
    a2('s_mov_b64 exec, s[50:51]')
    a2(f'buffer_load_dwordx4 {R(VB[0],4)}, v6, {W_}, s60 offen sc1')
    a2(f'buffer_load_dwordx4 {R(VB[0]+4,4)}, v6, {W_}, s60 offen offset:512 sc1')
    a2('s_mov_b64 exec, -1')
    a2('s_waitcnt vmcnt(0)')
    for i in range(8):
        a2(f'v_mfma_f32_32x32x16_bf16 {R(SA,16)}, {R(KB[0],4)}, {R(QF+4*i,4)}, 0')
        a2('s_nop 7'); a2('s_nop 7')
        for r in range(16): a2(f'v_sub_f32 v{SA+r}, v{SA+r}, v{MX+i}')
        for r in range(16): a2(f'v_exp_f32 v{SA+r}, v{SA+r}')
        a2('s_nop 1')
        a2(f'v_smfmac_f32_32x32x32_bf16 {R(OA[i],16)}, {R(VB[0],4)}, {R(SA,8)}, v{IDX}')
        a2(f'v_smfmac_f32_32x32x32_bf16 {R(OA[i],16)}, {R(VB[0]+4,4)}, {R(SA+8,8)}, v{IDX}')
        a2('s_nop 7')
    a2('s_add_u32 s61, s61, 1024')
    a2('s_add_u32 s60, s60, 1024')
    a2('s_add_u32 s62, s62, 1')
    a2('s_cmp_lt_u32 s62, 16')
    a2('s_cbranch_scc1 K_S2')
    a2(f'v_mov_b32 v42, {L_CNT+G2CNT}')
    a2('v_mov_b32 v43, 1')
    gbar_arrive(a2, 42, 43)
    a2('s_waitcnt lgkmcnt(0)')
    a2('s_wakeup')
    a2('s_nop 7')
    a2('s_branch K_ATT_DONE')
    return 'K_START:\n'+a.text()+'\n'+h.text()+'\n'+g.text()+'\n'+a2.text()+'\n'+ool.text()+'\nK_END:\n  s_endpgm\n'

HEADER=open('cdna_kernels/'+NAME+'.s.ref').read().split('; Override launch geometry')[0]
def assemble(body):
    n=NAME+'_kernel'
    return HEADER+f'''; @launch grid=(256,1,1) block=(512,1,1) lds={LDS_TOTAL}
.amdgcn_target "amdgcn-amd-amdhsa--gfx950"
.text
.globl {n}
.p2align 8
.type {n},@function
{n}:
{body}
.section .rodata,"a"
.p2align 6
.amdhsa_kernel {n}
  .amdhsa_next_free_vgpr 256
  .amdhsa_next_free_sgpr 102
  .amdhsa_accum_offset 256
  .amdhsa_group_segment_fixed_size 0
  .amdhsa_kernarg_size 88
  .amdhsa_user_sgpr_count 2
  .amdhsa_user_sgpr_kernarg_segment_ptr 1
  .amdhsa_system_sgpr_workgroup_id_x 1
  .amdhsa_float_denorm_mode_32 3
.end_amdhsa_kernel
'''
if __name__=='__main__':
    outp=sys.argv[1]
    if 'stamp' in sys.argv: STAMP=True
    OPT.update(sys.argv[2:])
    for o_ in list(OPT):
        if o_.startswith('PD='): POLLD=int(o_[3:])
    open(outp,'w').write(assemble(gen()))
    print('wrote',outp)
```

```python
import sys, struct
NAME='parallel_sum__softmax_full_mha__mixer_channel_mlp__prompt'

WS_F = 0
F_1, F_2, F_3 = 32768, 65536, 98304
WS_N = 256<<10
WS_Q = 1<<20
WS_K = 3<<20
WS_V = 5<<20
WS_O = 7<<20
WS_H = 9<<20
WS_T = 15<<20
WS_SIZE = 16<<20
QSCALE = 0.25*1.4426950408889634
T_LOG2 = 48.0
SPIN_MAX = 1<<20
POLLD = 1

def f2u(f): return struct.unpack('<I', struct.pack('<f', f))[0]

STAMP=False
OPT=set()
class Asm:
    def __init__(self):
        self.L=[]; self.vmq=[]; self.lgq=[]
    def __call__(self, s): self.L.append('  '+s)
    def c(self, s): self.L.append('  ; '+s)
    def label(self, n): self.L.append(n+':')
    def vm(self, tag, s):
        self.vmq.append(tag); self(s)
    def wait_vm(self, tags):
        if isinstance(tags,str): tags=[tags]
        idx=[i for i,t in enumerate(self.vmq) if t in tags]
        if not idx: return
        last=max(idx); n=len(self.vmq)-1-last
        assert n<=63
        self(f's_waitcnt vmcnt({n})')
        self.vmq=self.vmq[last+1:]
    def lg(self, tag, s):
        self.lgq.append(tag); self(s)
    def wait_lg(self, tags):
        if isinstance(tags,str): tags=[tags]
        idx=[i for i,t in enumerate(self.lgq) if t in tags]
        if not idx: return
        last=max(idx); n=len(self.lgq)-1-last
        if n<=15: self(f's_waitcnt lgkmcnt({n})')
        self.lgq=self.lgq[last+1:]
    def wait_vm_all(self):
        self('s_waitcnt vmcnt(0)'); self.vmq=[]
    def text(self): return '\n'.join(self.L)

RTMAP={3:1, 9:2, 10:4}
def fstamp(a, i):
    if STAMP and 'fine' in OPT and 'fe' not in OPT: a(f's_memtime s[{70+2*i}:{71+2*i}]')
def estamp(a, i):
    if STAMP and 'fe' in OPT: a(f's_memtime s[{70+2*i}:{71+2*i}]')
def stamp(a, i):
    if STAMP:
        if 'stg' in OPT and i!=0: return
        if 'span' in OPT: return
        if 'fine' in OPT: return
        if 'rt' in OPT and i in (1,2,4) : return
        if 'abs' in OPT:
            a(f's_memrealtime s[{70+2*i}:{71+2*i}]'); return
        a(f's_memtime s[{70+2*i}:{71+2*i}]')
        if 'rt' in OPT and i in RTMAP:
            j=RTMAP[i]; a(f's_memrealtime s[{70+2*j}:{71+2*j}]')
def stamp_flush(a, n):
    if not STAMP: return
    a('s_waitcnt vmcnt(0) lgkmcnt(0)')
    a('s_lshl_b32 s69, s2, 3')
    a('s_add_u32 s69, s69, s36')
    a('s_lshl_b32 s69, s69, 6')
    a(f's_add_u32 s69, s69, {WS_T}')
    a('v_mov_b32 v2, 0')
    for i in range(n):
        a(f'v_mov_b32 v3, s{70+2*i}')
        a('s_mov_b64 exec, 1')
        a(f'buffer_store_dword v3, v2, s[28:31], s69 offen offset:{4*i}')
        a('s_mov_b64 exec, -1')
        a('s_nop 1')

def stamp_dbg(a):
    if not (STAMP and 'dbg' in OPT): return
    lab=newlab('DBG')
    a('s_cmp_eq_u32 s2, 37')
    a(f's_cbranch_scc0 {lab}')
    a('s_cmp_eq_u32 s36, 0')
    a(f's_cbranch_scc0 {lab}')
    a('s_load_dwordx2 s[66:67], s[0:1], 72')
    if 'abs' in OPT:
        a('s_waitcnt lgkmcnt(0)')
    else:
        a('s_memrealtime s[92:93]')
        a('s_memtime s[100:101]')
        a('s_waitcnt lgkmcnt(0)')
        a('s_sub_u32 s92, s92, s82')
        a('s_add_u32 s92, s92, s70')
    if 'rt' in OPT:
        for j in (1,2,4):
            a(f's_sub_u32 s{70+2*j}, s{70+2*j}, s82'); a(f's_add_u32 s{70+2*j}, s{70+2*j}, s70')
    if 'abs' not in OPT: a('s_mov_b32 s82, s70')
    a('s_mov_b32 s40, s66'); a('s_mov_b32 s41, s67'); a('s_mov_b32 s42, 256'); a('s_mov_b32 s43, 0x00020000')
    a('v_mov_b32 v2, 0')
    a('s_mov_b64 exec, 1')
    for i in range(16):
        a(f's_sub_u32 s3, s{70+2*i}, s70')
        a('v_mov_b32 v3, s3')
        a(f'buffer_store_dword v3, v2, s[40:43], 0 offen offset:{4*i}')
        a('s_nop 1')
    a('s_mov_b64 exec, -1')
    a.label(lab)

def R(a,n=1): return f'v{a}' if n==1 else f'v[{a}:{a+n-1}]'
def SR(a): return f's[{a}:{a+3}]'
def srd(a, d, ptr, size):
    a(f's_mov_b32 s{d}, s{ptr}')
    a(f's_mov_b32 s{d+1}, s{ptr+1}')
    a(f's_mov_b32 s{d+2}, {size}')
    a(f's_mov_b32 s{d+3}, 0x00020000')
def pk(op, d, a_, b_, c_=None, bsel=None, csel=None, neg=None):
    ops=[a_,b_]+([c_] if c_ is not None else [])
    n=len(ops)
    txt=[ (f'v[{o}:{o+1}]' if isinstance(o,int) else o) for o in ops]
    hi=[1]*n
    if bsel=='lo': hi[1]=0
    if csel=='lo': hi[2]=0
    s_=f'v_pk_{op}_f32 v[{d}:{d+1}], '+', '.join(txt)
    if hi!=[1]*n: s_+=' op_sel_hi:['+','.join(map(str,hi))+']'
    if neg: s_+=' '+neg
    return s_

pX,pWQ,pWO,pW1,pB1,pW2,pB2,pOUT,pWS = 4,6,8,12,14,16,18,20,22
sWS=28
W_=SR(sWS)

SLOT=28672; XS=16384; WST=12288
W1_SPARE=5*SLOT
SCR=W1_SPARE+WST
L_A=SCR; L_MU=SCR+512; L_CS=SCR+1024; L_CS1=SCR+1536; L_B1=SCR+2048; L_A2=SCR+2560; L_A2M=SCR+3072
L_CNT=SCR+4096
LDS_TOTAL=163840
W1_ADDR=[W1_SPARE, 3*SLOT, 3*SLOT+WST, 4*SLOT, 4*SLOT+WST, 0, WST, SLOT]
A_SLOT=[0,1,2,3,4,0,1,2]
L_RED=0
L_RING=73728
RINGSZ=20480; WD=10; XD=18
L_MX=57344
G2CNT=32; G2TGT=4
L_WO=0
L_OX=65536
L_EX=131072

uid=[0]
def newlab(p):
    uid[0]+=1; return f'{p}_{uid[0]}'

def poll(a, nl, voff, soff, vt, wide=False):
    PD=POLLD
    lab=newlab('POLL'); done=newlab('POLLD')
    mask=(1<<nl)-1
    a(f's_mov_b32 s66, {mask:#x}')
    a('s_mov_b32 s67, 0')
    a(f's_mov_b32 s68, {SPIN_MAX}')
    a('s_waitcnt vmcnt(0)')
    a('s_mov_b64 exec, s[66:67]')
    for k in range(PD-1):
        a(f'buffer_load_dwordx2 v[{vt+2*k}:{vt+2*k+1}], {voff}, {W_}, {soff} offen sc1')
        if PD>1: a('s_sleep 2')
    a.label(lab)
    for k in range(PD):
        kn=(k+PD-1)%PD
        if wide:
            assert PD==1
            a(f'buffer_load_dwordx4 v[{vt}:{vt+3}], {voff}, {W_}, {soff} offen sc1')
        else:
            a(f'buffer_load_dwordx2 v[{vt+2*kn}:{vt+2*kn+1}], {voff}, {W_}, {soff} offen sc1')
        a(f's_waitcnt vmcnt({PD-1})')
        a(f'v_cmp_eq_u64 vcc, s[64:65], v[{vt+2*k}:{vt+2*k+1}]')
        a('s_sub_u32 s68, s68, 1')
        a('s_cmp_eq_u32 s68, 0')
        a(f's_cbranch_scc1 {done}')
        a('s_cmp_eq_u64 vcc, s[66:67]')
        a(f's_cbranch_scc1 {done}')
        a('s_sleep 2')
    a(f's_branch {lab}')
    a.label(done)
    a('s_mov_b64 exec, -1')
    a.vmq=[]

def poll_wg(a, nl, voff, soff, vt, leader, lds_addr, bounds=False):
    oth=newlab('PWO'); done=newlab('PWD')
    va=vt+(4 if bounds else 2*POLLD)
    a(f'v_mov_b32 v{va}, {lds_addr}')
    a(f's_cmp_eq_u32 s36, {leader}')
    a(f's_cbranch_scc0 {oth}')
    poll(a, nl, voff, soff, vt, wide=bounds)
    a(f'v_mov_b32 v{va+1}, 1')
    a('s_mov_b64 exec, 1')
    a(f'ds_write_b32 v{va}, v{va+1}')
    a('s_mov_b64 exec, -1')
    a('s_waitcnt lgkmcnt(0)')
    a('s_wakeup')
    a(f's_branch {done}')
    a.label(oth)
    lab=newlab('PWL')
    a.label(lab)
    a(f'ds_read_b32 v{va+1}, v{va}')
    a('s_waitcnt lgkmcnt(0)')
    a(f'v_readfirstlane_b32 s66, v{va+1}')
    a('s_nop 0')
    a('s_cmp_eq_u32 s66, 0')
    a(f's_cbranch_scc0 {done}')
    a('s_sleep 8')
    a(f's_branch {lab}')
    a.label(done)
    a.vmq=[]

def bounds_decision(a, vt, leader):
    skip=newlab('BD'); va=vt+4
    a(f's_cmp_eq_u32 s36, {leader}')
    a(f's_cbranch_scc0 {skip}')
    k_,q_,v_=va+2,va+3,vt+3
    a(f'v_lshlrev_b32 v{k_}, 16, v{vt+2}')
    a(f'v_and_b32 v{q_}, 0xffff0000, v{vt+2}')
    a('s_nop 1')
    for sh in (1,2,4,8):
        for r in (k_,q_,v_): a(f'v_max_f32_dpp v{r}, v{r}, v{r} row_shr:{sh} row_mask:0xf bank_mask:0xf')
    a(f'v_mul_f32 v{k_}, v{k_}, v{q_}')
    a(f'v_mul_f32 v{k_}, {f2u(1.05):#x}, v{k_}')
    a(f'v_mov_b32 v{q_}, {f2u(T_LOG2*T_LOG2):#x}')
    a(f'v_cmp_le_f32 vcc, v{k_}, v{q_}')
    a(f'v_mov_b32 v{q_}, {f2u(2.0**60):#x}')
    a(f'v_cmp_le_f32 s[66:67], v{v_}, v{q_}')
    a(f'v_mov_b32 v{va}, {L_CNT+36}')
    a('s_nop 0')
    a('s_and_b64 vcc, vcc, s[66:67]')
    a('s_bitcmp1_b64 vcc, 15')
    a('s_cselect_b32 s66, 1, 2')
    a(f'v_mov_b32 v{va+1}, s66')
    a('s_mov_b64 exec, 1')
    a(f'ds_write_b32 v{va}, v{va+1}')
    a('s_mov_b64 exec, -1')
    a.label(skip)

def signal(a, cnt_addr, last, flag_soff, vt):
    skip=newlab('SIG')
    a(f'v_mov_b32 v{vt}, {cnt_addr}')
    a(f'v_mov_b32 v{vt+1}, 1')
    a('s_mov_b64 exec, 1')
    a(f'ds_add_rtn_u32 v{vt+2}, v{vt}, v{vt+1}')
    a('s_waitcnt lgkmcnt(0)')
    a(f'v_readfirstlane_b32 s66, v{vt+2}')
    a(f'v_mov_b32 v{vt}, s64')
    a(f'v_mov_b32 v{vt+1}, s65')
    a(f'v_mov_b32 v{vt+2}, 0')
    a(f's_cmp_eq_u32 s66, {last}')
    a(f's_cbranch_scc0 {skip}')
    a(f'buffer_store_dwordx2 v[{vt}:{vt+1}], v{vt+2}, {W_}, {flag_soff} offen sc1')
    a.label(skip)
    a('s_mov_b64 exec, -1')

def gbar_arrive(a, vaddr, vone):
    a('s_mov_b64 exec, 1')
    a(f'ds_add_u32 v{vaddr}, v{vone}')
    a('s_mov_b64 exec, -1')
def gbar_wait(a, vaddr, vt, target):
    lab=newlab('GB')
    a.label(lab)
    a(f'ds_read_b32 v{vt}, v{vaddr}')
    a('s_waitcnt lgkmcnt(0)')
    a(f'v_readfirstlane_b32 s3, v{vt}')
    a('s_nop 0')
    a(f's_cmp_ge_u32 s3, {target}')
    a(f's_cbranch_scc0 {lab}')

def gen():
    a=Asm()
    a('s_cmp_ge_u32 s2, 256')
    a('s_cbranch_scc1 K_END')
    stamp(a,0)
    if STAMP and ('dbg' in OPT or 'rt' in OPT or 'span' in OPT) and 'abs' not in OPT: a('s_memrealtime s[82:83]')
    a('s_load_dwordx16 s[4:19], s[0:1], 0')
    a('s_load_dwordx2 s[20:21], s[0:1], 64')
    a('s_load_dwordx2 s[22:23], s[0:1], 80')
    a('v_and_b32 v1, 63, v0')
    a('v_lshrrev_b32 v2, 6, v0')
    a('s_and_b32 s48, s2, 7')
    a('v_readfirstlane_b32 s36, v2')
    a('s_lshr_b32 s49, s2, 3')
    a('s_and_b32 s50, s48, 1')
    a('s_lshr_b32 s51, s48, 1')
    a('s_lshl_b32 s50, s50, 3')
    a('s_and_b32 s52, s49, 7')
    a('s_add_u32 s38, s50, s52')
    a('s_lshl_b32 s51, s51, 2')
    a('s_lshr_b32 s52, s49, 3')
    a('s_add_u32 s39, s51, s52')
    a('s_and_b32 s37, s36, 3')
    a('v_and_b32 v3, 31, v1')
    a('v_lshrrev_b32 v4, 5, v1')
    a('s_cmp_ge_u32 s36, 4')
    a('s_cbranch_scc1 K_G1')
    a('s_getpc_b64 s[62:63]')
    a.label('PF_0')
    a('s_sub_u32 s62, s62, PF_0-K_START')
    a('s_subb_u32 s63, s63, 0')
    a('s_lshr_b32 s60, s2, 3')
    a('s_and_b32 s60, s60, 7')
    a('s_lshl_b32 s60, s60, 2')
    a('s_add_u32 s60, s60, s37')
    a('s_lshl_b32 s60, s60, 10')
    a('v_lshlrev_b32 v9, 4, v1')
    a('v_add_u32 v9, s60, v9')
    a('v_min_u32 v10, K_END-K_START-16, v9')
    a('global_load_dwordx4 v[200:203], v10, s[62:63]')
    a('v_add_u32 v9, 0x8000, v9')
    a('v_min_u32 v10, K_END-K_START-16, v9')
    a('global_load_dwordx4 v[204:207], v10, s[62:63]')
    a('s_branch K_G0')

    def common_lds_addr(e):
        e('v_bfe_u32 v5, v1, 1, 3')
        e('v_xor_b32 v5, v5, v4')
        e('v_lshlrev_b32 v5, 4, v5')
        e('s_lshl_b32 s3, s37, 12')
        e('v_lshlrev_b32 v6, 7, v3')
        e('v_add3_u32 v12, v6, v5, s3')
        e('v_xor_b32 v13, 32, v12')
        e('v_xor_b32 v14, 64, v12')
        e('v_xor_b32 v15, 0x60, v12')
        e('v_lshlrev_b32 v6, 3, v4')
        e('v_bfe_u32 v7, v1, 2, 2')
        e('v_add_u32 v6, v6, v7')
        e('v_mul_u32_u24 v6, 192, v6')
        e('v_bfe_u32 v7, v1, 4, 1')
        e('v_lshlrev_b32 v7, 5, v7')
        e('v_and_b32 v8, 3, v1')
        e('v_lshlrev_b32 v8, 3, v8')
        e('v_add3_u32 v16, v6, v7, v8')

    g=Asm()
    g.label('K_G0')
    accQ,accK,accV=64,80,96
    FS0=[128,144,160,176]
    common_lds_addr(g)
    for r in range(64,112): g(f'v_mov_b32 v{r}, 0')
    g(f'v_add_u32 v17, {XS}, v16')
    g(f's_mov_b32 s56, {(-4*SLOT)&0xffffffff:#x}')
    g(f's_mov_b32 s57, {SLOT}')
    g(f'v_lshlrev_b32 v18, 2, v1')
    g(f'v_add_u32 v18, {L_CNT}, v18')
    g('v_mov_b32 v19, 0')
    g('s_mov_b64 exec, 0xffff')
    g('ds_write_b32 v18, v19')
    g('s_mov_b64 exec, -1')
    g('s_lshl_b32 s48, s37, 7')
    g('v_lshlrev_b32 v20, 2, v3')
    g('v_add_u32 v20, s48, v20')
    g(f'v_add_u32 v20, {L_A}, v20')
    g('v_lshlrev_b32 v23, 4, v4')
    g(f'v_add_u32 v24, {L_CS}, v23')
    g('v_lshlrev_b32 v25, 2, v3')
    g(f'v_add_u32 v25, {L_CS+64*4}, v25')
    g('v_add_u32 v27, s48, v23')
    g(f'v_add_u32 v27, {L_A}, v27')
    g('s_lshl_b32 s49, s38, 2')
    g('s_add_u32 s49, s49, s37')
    g('s_lshl_b32 s50, s49, 10')
    g('s_lshl_b32 s51, s39, 17')
    g('s_add_u32 s50, s50, s51')
    g(f's_add_u32 s52, s50, {WS_K}')
    g(f's_add_u32 s53, s50, {WS_K+65536}')
    g(f's_add_u32 s54, s50, {WS_V}')
    g(f's_add_u32 s51, s50, {WS_Q+65536}')
    g(f's_add_u32 s50, s50, {WS_Q}')
    g('v_lshlrev_b32 v28, 4, v1')
    g('v_and_b32 v29, 0x13, v3')
    g('v_bfe_u32 v30, v3, 2, 1')
    g('v_lshlrev_b32 v30, 3, v30')
    g('v_bfe_u32 v31, v3, 3, 1')
    g('v_lshlrev_b32 v31, 2, v31')
    g('v_or3_b32 v29, v29, v30, v31')
    g('v_lshlrev_b32 v30, 5, v4')
    g('v_add_u32 v29, v29, v30')
    g('v_lshlrev_b32 v29, 4, v29')
    g('v_bfe_u32 v30, v3, 4, 1')
    g('v_lshlrev_b32 v30, 16, v30')
    g('v_lshlrev_b32 v31, 8, v4')
    g('v_and_b32 v32, 15, v3')
    g('v_lshlrev_b32 v32, 4, v32')
    g('v_add3_u32 v30, v30, v31, v32')
    g('s_mul_i32 s55, s39, 1536')
    g('s_lshl_b32 s58, s49, 2')
    g('s_add_u32 s55, s55, s58')
    g(f's_add_u32 s55, s55, {WS_N}')
    g('v_lshlrev_b32 v31, 8, v4')
    g('s_waitcnt lgkmcnt(0)')
    srd(g,sWS,pWS,WS_SIZE)
    g(f's_load_dwordx2 s[64:65], s[{pWS}:{pWS+1}], 0')
    if 'tlb' in OPT:
        g('v_mov_b32 v40, 0')
        g('v_mov_b32 v41, 0')
        g('s_mov_b64 exec, 1')
        for sreg in ('s50','s52','s54'):
            g(f'buffer_store_dword v40, v41, {W_}, {sreg} offen sc1')
        g(f'buffer_store_dword v40, v41, {W_}, s55 offen sc1')
        g('s_mov_b64 exec, -1')
        g('v_lshlrev_b32 v41, 21, v1')
        g(f's_mov_b32 s40, s{pW2}'); g(f's_mov_b32 s41, s{pW2+1}'); g(f's_mov_b32 s42, {1376*512*2}'); g('s_mov_b32 s43, 0x00020000')
        g('buffer_load_dword v208, v41, s[40:43], 0 offen')
        g(f's_mov_b32 s44, s{pWO}'); g(f's_mov_b32 s45, s{pWO+1}'); g(f's_mov_b32 s46, {512*512*2}'); g('s_mov_b32 s47, 0x00020000')
        g('buffer_load_dword v209, v41, s[44:47], 0 offen')
        g(f's_mov_b32 s40, s{pOUT}'); g(f's_mov_b32 s41, s{pOUT+1}'); g(f's_mov_b32 s42, {2048*512*2}')
        g('buffer_load_dword v210, v41, s[40:43], 0 offen')
    def readlist(set_, ks):
        L=[f'ds_read_b128 {R(set_,4)}, v{12+ks}']
        for t in range(3):
            for e in range(2):
                L.append(f'ds_read_b64_tr_b16 {R(set_+4+4*t+2*e,2)}, v17 offset:{ks*3072+e*768+t*64}')
        return L
    def mfmalist(set_):
        return [f'v_mfma_f32_32x32x16_bf16 {R(accQ,16)}, {R(set_+4,4)}, {R(set_,4)}, {R(accQ,16)}',
                f'v_mfma_f32_32x32x16_bf16 {R(accK,16)}, {R(set_+8,4)}, {R(set_,4)}, {R(accK,16)}',
                f'v_mfma_f32_32x32x16_bf16 {R(accV,16)}, {R(set_,4)}, {R(set_+12,4)}, {R(accV,16)}']
    g('s_waitcnt lgkmcnt(0)')
    g('s_add_u32 s64, s64, 0x7f4a7c15')
    g('s_addc_u32 s65, s65, 0x9e3779b9')
    stamp(g,1)
    for st in range(8):
        if st==5: fstamp(g,0)
        g('s_barrier')
        if st==5: fstamp(g,1)
        if st==6: fstamp(g,10)
        if st==0: stamp(g,2)
        for ks in range(4):
            rl=readlist(FS0[ks],ks); ml=mfmalist(FS0[(ks+2)%4])
            if st==5: fstamp(g,2+2*ks)
            if st==0 and ks<2:
                for r_ in rl: g(r_)
                continue
            g('s_waitcnt lgkmcnt(7)')
            if st==5: fstamp(g,3+2*ks)
            g(ml[0]); g(rl[0]); g(rl[1]); g(rl[2])
            g(ml[1]); g(rl[3]); g(rl[4])
            if 'noq' not in OPT: g(ml[2])
            g(rl[5]); g(rl[6])
        if st<7:
            sr='s57' if A_SLOT[st+1]>A_SLOT[st] else 's56'
            for r in (12,13,14,15,17): g(f'v_add_u32 v{r}, {sr}, v{r}')
    g('s_waitcnt lgkmcnt(7)')
    for m in mfmalist(FS0[2]): g(m)
    g('s_waitcnt lgkmcnt(0)')
    for m in mfmalist(FS0[3]): g(m)
    stamp(g,3)
    estamp(g,0)
    g('s_barrier')
    g('s_setprio 3')
    estamp(g,1)
    CSQ=128; CSK=144; AV=160; MV=176
    g('ds_read_b32 v21, v20')
    g(f'ds_read_b32 v22, v20 offset:{L_MU-L_A}')
    for gg in range(4): g(f'ds_read_b128 {R(CSK+4*gg,4)}, v24 offset:{(32+8*gg)*4}')
    g('ds_read_b32 v26, v25')
    for gg in range(4): g(f'ds_read_b128 {R(MV+4*gg,4)}, v27 offset:{8*gg*4+L_MU-L_A}')
    for gg in range(4): g(f'ds_read_b128 {R(AV+4*gg,4)}, v27 offset:{8*gg*4}')
    g('s_waitcnt lgkmcnt(13)')
    g('v_mul_f32 v38, v21, v22')
    g(f'v_mul_f32 v34, {f2u(QSCALE):#x}, v21')
    g('v_sub_f32 v38, 0, v38')
    g(f'v_mul_f32 v36, {f2u(QSCALE):#x}, v38')
    g('s_waitcnt lgkmcnt(9)')
    estamp(g,2)
    for r in range(16): g(f'v_mul_f32 v{CSK+r}, v38, v{CSK+r}')
    for r in range(16): g(f'v_fmac_f32 v{CSK+r}, v21, v{accK+r}')
    for i in range(8): g(f'v_cvt_pk_bf16_f32 v{accK+i}, v{CSK+2*i}, v{CSK+2*i+1}')
    estamp(g,3)
    g(f'buffer_store_dwordx4 {R(accK,4)}, v29, {W_}, s52 offen sc1')
    g(f'buffer_store_dwordx4 {R(accK+4,4)}, v29, {W_}, s53 offen sc1')
    estamp(g,4)
    for gg in range(4): g(f'ds_read_b128 {R(CSQ+4*gg,4)}, v24 offset:{(8*gg)*4}')
    g('s_waitcnt lgkmcnt(8)')
    g('v_sub_f32 v26, 0, v26')
    g('s_waitcnt lgkmcnt(4)')
    for r in range(16): g(f'v_fmac_f32 v{accV+r}, v26, v{MV+r}')
    for r in range(16): g(f'v_mul_f32 v{accV+r}, v{accV+r}, v{AV+r}')
    for i in range(8): g(f'v_cvt_pk_bf16_f32 v{AV+i}, v{accV+2*i}, v{accV+2*i+1}')
    estamp(g,5)
    g(f'buffer_store_dwordx4 {R(AV,4)}, v30, {W_}, s54 offen sc1')
    g(f'buffer_store_dwordx4 {R(AV+4,4)}, v30, {W_}, s54 offen offset:512 sc1')
    g('s_waitcnt lgkmcnt(0)')
    estamp(g,6)
    for r in range(16): g(f'v_mul_f32 v{CSQ+r}, v36, v{CSQ+r}')
    for r in range(16): g(f'v_fmac_f32 v{CSQ+r}, v34, v{accQ+r}')
    for i in range(8): g(f'v_cvt_pk_bf16_f32 v{accQ+i}, v{CSQ+2*i}, v{CSQ+2*i+1}')
    g(f'buffer_store_dwordx4 {R(accQ,4)}, v28, {W_}, s50 offen sc1')
    g(f'buffer_store_dwordx4 {R(accQ+4,4)}, v28, {W_}, s51 offen sc1')
    estamp(g,7)
    for (b,src) in ((42,CSK),(46,CSQ)):
        g(f'v_mul_f32 v{b}, v{src}, v{src}'); g(f'v_mul_f32 v{b+1}, v{src+8}, v{src+8}')
        for i in range(1,8):
            g(f'v_fmac_f32 v{b}, v{src+i}, v{src+i}'); g(f'v_fmac_f32 v{b+1}, v{src+8+i}, v{src+8+i}')
    g(f'v_max3_f32 v38, |v{accV}|, |v{accV+1}|, |v{accV+2}|')
    g('v_max_f32 v34, v42, v43')
    g('v_max_f32 v35, v46, v47')
    for r in range(3,15,2): g(f'v_max3_f32 v38, v38, |v{accV+r}|, |v{accV+r+1}|')
    g(f'v_max_f32 v36, v38, |v{accV+15}|')
    g('s_nop 1')
    for sh in (1,2,4,8):
        for r in (34,35,36): g(f'v_max_f32_dpp v{r}, v{r}, v{r} row_shr:{sh} row_mask:0xf bank_mask:0xf')
    for r in (34,35,36): g(f'v_max_f32_dpp v{r}, v{r}, v{r} row_bcast:15 row_mask:0xa bank_mask:0xf')
    g('s_nop 1')
    estamp(g,8)
    stamp(g,4)
    for i in range(3): g(f'v_mov_b32 v{40+i}, v{34+i}')
    g('s_nop 1')
    for i in range(3): g(f'v_permlane32_swap_b32 v{34+i}, v{40+i}')
    g('s_nop 1')
    g('v_add_f32 v34, v34, v40')
    g('v_add_f32 v35, v35, v41')
    g('v_max_f32 v36, v36, v42')
    g(f'v_mov_b32 v40, {L_CNT+48}')
    g('s_mov_b32 s66, 0x80000000')
    g('s_mov_b32 s67, 0')
    g('s_mov_b64 exec, s[66:67]')
    g('ds_max_u32 v40, v34')
    g('ds_max_u32 v40, v35 offset:4')
    g('ds_max_u32 v40, v36 offset:8')
    g('s_mov_b64 exec, -1')
    g('s_setprio 0')
    g('s_lshl_b32 s48, s39, 4')
    g('s_add_u32 s48, s48, s38')
    g('s_lshl_b32 s48, s48, 7')
    g(f's_add_u32 s48, s48, {F_1}')
    g(f'v_mov_b32 v44, {L_CNT}')
    g('v_mov_b32 v45, 1')
    g('s_waitcnt vmcnt(0) lgkmcnt(0)')
    estamp(g,10)
    skip=newlab('SIG1')
    g('s_mov_b64 exec, 1')
    g('ds_add_rtn_u32 v46, v44, v45')
    g('ds_read_b128 v[48:51], v40')
    g('s_waitcnt lgkmcnt(0)')
    g('v_readfirstlane_b32 s66, v46')
    g('v_add_u32 v48, 0xffff, v48')
    g('v_add_u32 v49, 0xffff, v49')
    g('v_lshrrev_b32 v48, 16, v48')
    g('v_and_b32 v49, 0xffff0000, v49')
    g('v_or_b32 v54, v48, v49')
    g('v_mov_b32 v55, v50')
    g('v_mov_b32 v52, s64')
    g('v_mov_b32 v53, s65')
    g('v_mov_b32 v46, 0')
    g('s_cmp_eq_u32 s66, 3')
    g(f's_cbranch_scc0 {skip}')
    g(f'buffer_store_dwordx4 v[52:55], v46, {W_}, s48 offen sc1')
    g.label(skip)
    g('s_mov_b64 exec, -1')
    stamp(g,5)

    h=Asm()
    h.label('K_G1')
    h('s_setprio 2')
    sX,sWQ,sW1,sB1=24,32,40,44
    XF=128
    h('v_lshrrev_b32 v20, 3, v1')
    h('v_and_b32 v21, 7, v1')
    h('v_lshrrev_b32 v22, 4, v1')
    h('v_xor_b32 v21, v21, v22')
    h('v_lshlrev_b32 v20, 10, v20')
    h('v_lshlrev_b32 v22, 4, v21')
    h('v_add_u32 v2, v20, v22')
    h('v_xor_b32 v22, 64, v22')
    h('v_add_u32 v22, 7168, v22')
    h('v_add_u32 v18, v20, v22')
    h('v_add_u32 v19, 14336, v2')
    h('v_add_u32 v20, 14336, v18')
    VX=[2,18,19,20]
    VW=[21,22,23]; VW1=[24,25,26]
    h('s_lshl_b32 s50, s38, 17')
    h('s_lshl_b32 s51, s37, 15')
    h('s_add_u32 s50, s50, s51')
    h('s_lshl_b32 s53, s37, 12')
    h('s_and_b32 s58, s39, 3')
    h('s_lshl_b32 s58, s58, 1')
    h('s_add_u32 s58, s58, s38')
    h('s_and_b32 s58, s58, 7')
    def dmaX(st):
        slot=A_SLOT[st]*SLOT; L=[]
        L.append((f's_add_u32 s61, s58, {st}',None))
        L.append(('s_and_b32 s61, s61, 7',None))
        L.append((f's_add_u32 m0, s53, {slot}',None))
        L.append(('s_lshl_b32 s55, s61, 7',None))
        L.append(('s_add_u32 s55, s55, s50',None))
        for i in range(4):
            L.append((f'buffer_load_dwordx4 v{VX[i]}, {SR(sX)}, s55 offen offset:{1024*i}{" nt" if "ntx" in OPT else ""} lds',f'A{st}'))
        return L
    def emit(e, dmas):
        for (ins,tag) in dmas:
            if tag: e.vm(tag,ins)
            else: e(ins)
    h('s_waitcnt lgkmcnt(0)')
    srd(h,sX,pX,2048*512*2)
    emit(h,dmaX(0))
    for p in range(3):
        h(f'v_add_u32 v27, {64*p}, v1')
        h('v_mul_u32_u24 v28, 43691, v27')
        h('v_lshrrev_b32 v28, 19, v28')
        h('v_mul_u32_u24 v29, 12, v28')
        h('v_sub_u32 v29, v27, v29')
        h('v_lshrrev_b32 v30, 2, v29')
        h('v_lshlrev_b32 v30, 10, v30')
        h('v_and_b32 v31, 3, v29')
        h('v_lshlrev_b32 v31, 4, v31')
        h('v_mul_u32_u24 v32, 3072, v28')
        h(f'v_add3_u32 v{VW[p]}, v32, v30, v31')
        if p: h(f'v_subrev_u32 v{VW[p]}, {1024*p}, v{VW[p]}')
        h(f'v_mov_b32 v{33+2*p}, v28')
        h(f'v_mov_b32 v{34+2*p}, v29')
    h('s_mul_i32 s51, s37, 49152')
    h('s_lshl_b32 s52, s39, 6')
    h('s_add_u32 s51, s51, s52')
    h('s_mul_i32 s54, s37, 3072')
    srd(h,sWQ,pWQ,512*1536*2)
    def dmaW(st):
        slot=A_SLOT[st]*SLOT; L=[]
        L.append((f's_add_u32 s61, s58, {st}',None))
        L.append(('s_and_b32 s61, s61, 7',None))
        L.append((f's_add_u32 m0, s54, {slot+XS}',None))
        L.append((f's_mul_i32 s55, s61, {64*3072}',None))
        L.append(('s_add_u32 s55, s55, s51',None))
        for p in range(3):
            L.append((f'buffer_load_dwordx4 v{VW[p]}, {SR(sWQ)}, s55 offen offset:{1024*p}{" nt" if "ntw" in OPT else ""} lds',f'A{st}'))
        return L
    emit(h,dmaW(0))
    for p in range(3):
        h(f'v_mul_u32_u24 v32, 2752, v{33+2*p}')
        h(f'v_lshlrev_b32 v31, 4, v{34+2*p}')
        h(f'v_add_u32 v{VW1[p]}, v32, v31')
        if p: h(f'v_subrev_u32 v{VW1[p]}, {1024*p}, v{VW1[p]}')
    h('s_mul_i32 s52, s39, 3')
    h('s_lshl_b32 s56, s39, 1')
    h('s_add_u32 s56, s56, 11')
    h('s_cmp_lt_u32 s39, 11')
    h('s_cselect_b32 s48, s52, s56')
    h('s_cselect_b32 s49, 3, 2')
    h('s_mul_i32 s52, s37, 44032')
    h('s_lshl_b32 s56, s48, 6')
    h('s_add_u32 s52, s52, s56')
    def dmaA(st): return dmaX(st)+dmaW(st)
    def dmaB(st):
        L=[]
        L.append((f's_add_u32 s61, s58, {st}',None))
        L.append(('s_and_b32 s61, s61, 7',None))
        L.append((f's_add_u32 m0, s54, {W1_ADDR[st]}',None))
        L.append((f's_mul_i32 s55, s61, {64*2752}',None))
        L.append(('s_add_u32 s55, s55, s52',None))
        for p in range(3):
            L.append((f'buffer_load_dwordx4 v{VW1[p]}, {SR(sW1)}, s55 offen offset:{1024*p}{" nt" if "ntw1" in OPT else ""} lds',f'B{st}'))
        return L
    stamp(h,1)
    NINIT=3
    for o_ in OPT:
        if o_.startswith('NI='): NINIT=int(o_[3:])
    for st in range(1,NINIT): emit(h,dmaA(st))
    stamp(h,2)
    srd(h,sW1,pW1,512*1376*2); srd(h,sWS,pWS,WS_SIZE); srd(h,sB1,pB1,1376*2)
    h(f's_load_dwordx2 s[64:65], s[{pWS}:{pWS+1}], 0')
    common_lds_addr(h)
    h('v_lshlrev_b32 v27, 2, v1')
    h.vm('b1', f'buffer_load_dword v31, v27, {SR(sB1)}, s56 offen')
    h('s_cmp_eq_u32 s37, 3')
    h('s_cselect_b32 s57, 0, s37')
    h('s_lshl_b32 s3, s57, 6')
    h(f's_add_u32 s3, s3, {XS}')
    h('v_add_u32 v17, s3, v16')
    PAT=112; ONES=8; SUMA=[116,120]; GRA=[124,104]; CSA=108
    h('v_and_b32 v27, 15, v1')
    h('v_bfe_u32 v28, v1, 4, 1')
    h('v_cmp_eq_u32 vcc, v27, v28')
    h('v_mov_b32 v29, 0x3f803f80')
    h('s_nop 0')
    h(f'v_cndmask_b32 v{PAT}, 0, v29, vcc')
    for r in range(1,4): h(f'v_mov_b32 v{PAT+r}, v{PAT}')
    for r in range(4): h(f'v_mov_b32 v{ONES+r}, v29')
    SIDX=99; SPA=100
    h('v_and_b32 v30, 1, v1')
    h('v_cmp_eq_u32 vcc, 1, v30')
    h('v_mov_b32 v30, 0x44444444')
    h('v_mov_b32 v32, 0xeeeeeeee')
    h(f'v_cndmask_b32 v{SIDX}, v30, v32, vcc')
    h('v_and_b32 v30, 14, v1')
    h('v_cmp_eq_u32 vcc, 0, v30')
    h('v_cmp_eq_u32 s[66:67], 2, v30')
    h('s_nop 0')
    h(f'v_cndmask_b32 v{SPA}, 0, v29, vcc')
    h(f'v_cndmask_b32 v{SPA+2}, 0, v29, s[66:67]')
    h(f'v_mov_b32 v{SPA+1}, v{SPA}')
    h(f'v_mov_b32 v{SPA+3}, v{SPA+2}')
    for b in SUMA+GRA+[CSA]:
        for r in range(4): h(f'v_mov_b32 v{b+r}, 0')
    h('v_lshrrev_b32 v28, 4, v1')
    h('v_bfe_u32 v29, v1, 1, 3')
    h('v_xor_b32 v28, v28, v29')
    h('v_lshlrev_b32 v28, 4, v28')
    h('v_lshlrev_b32 v27, 7, v27')
    h('s_lshl_b32 s3, s37, 12')
    h('v_add3_u32 v5, v27, v28, s3')
    h('v_xor_b32 v6, 64, v5')
    TMP=40; XS16=56
    h('v_and_b32 v27, 3, v1')
    h('v_cmp_eq_u32 s[66:67], 1, v27')
    h('v_cmp_eq_u32 s[68:69], 2, v27')
    h('v_cmp_eq_u32 s[44:45], 3, v27')
    h('s_mov_b32 s46, 0x00f0000f')
    h('s_mov_b32 s47, 0xf0000f00')
    h('v_and_b32 v28, 15, v1')
    h('v_lshlrev_b32 v28, 2, v28')
    h('s_lshl_b32 s3, s37, 7')
    h('v_add_u32 v28, s3, v28')
    h(f'v_add_u32 v28, {L_A}, v28')
    h('v_lshlrev_b32 v29, 2, v1')
    h('s_lshl_b32 s55, s57, 7')
    h(f's_add_u32 s55, s55, {L_CS}')
    h('v_add_u32 v29, s55, v29')
    h('s_waitcnt lgkmcnt(0)')
    h('s_add_u32 s64, s64, 0x7f4a7c15')
    h('s_addc_u32 s65, s65, 0x9e3779b9')
    h(f's_mov_b32 s59, {SLOT}')
    h(f's_mov_b32 s60, {(-4*SLOT)&0xffffffff:#x}')
    if NINIT==3: sched={0:dmaA(3)+dmaA(4), 1:dmaB(0), 2:dmaA(5), 3:dmaA(6), 4:dmaA(7), 5:dmaB(1)+dmaB(2), 6:dmaB(3)+dmaB(4), 7:(dmaB(5)+dmaB(6) if 'b5early' in OPT else [])}
    elif NINIT==2 and 'smooth' in OPT: sched={0:dmaA(2), 1:dmaA(3), 2:dmaA(4), 3:dmaA(5), 4:dmaA(6), 5:dmaA(7)+dmaB(0), 6:dmaB(1)+dmaB(2), 7:[]}
    elif NINIT==2 and 'smooth2' in OPT: sched={0:dmaA(2), 1:dmaA(3), 2:dmaA(4)+dmaB(0), 3:dmaA(5), 4:dmaA(6), 5:dmaA(7), 6:dmaB(1)+dmaB(2), 7:dmaB(3)+dmaB(4)}
    elif NINIT==2: sched={0:dmaA(2)+dmaA(3), 1:dmaA(4)+dmaB(0), 2:dmaA(5), 3:dmaA(6), 4:dmaA(7), 5:dmaB(1)+dmaB(2), 6:dmaB(3)+dmaB(4), 7:(dmaB(5)+dmaB(6) if 'b5early' in OPT else [])}
    else: sched={0:dmaA(1)+dmaA(2), 1:dmaA(3)+dmaA(4), 2:dmaA(5)+dmaB(0), 3:dmaA(6), 4:dmaA(7), 5:dmaB(1)+dmaB(2), 6:dmaB(3)+dmaB(4), 7:(dmaB(5)+dmaB(6) if 'b5early' in OPT else [])}
    for st in range(8):
        if st==5: fstamp(h,0)
        if STAMP and 'stg' in OPT: h(f's_memrealtime s[{70+4*st}:{71+4*st}]') if st>0 else None
        h.wait_vm(f'A{st}')
        if STAMP and 'stg' in OPT and st>0: h(f's_memrealtime s[{72+4*st}:{73+4*st}]')
        if st==5: fstamp(h,1)
        h('s_barrier')
        if STAMP and 'stg' in OPT and st==0: h(f's_memrealtime s[72:73]')
        if st==5: fstamp(h,2)
        if st==0: stamp(h,3)
        dm=sched[st]
        for u in range(2):
            for kk in range(2):
                h(f'ds_read_b128 {R(XS16+8*u+4*kk,4)}, v{5+kk} offset:{2048*u}')
        for ks in range(4):
            for e in range(2):
                h(f'ds_read_b64_tr_b16 {R(TMP+4*ks+2*e,2)}, v17 offset:{ks*3072+e*768}')
        if st==5: fstamp(h,3)
        k=0; nv=0
        while nv<2 and k<len(dm):
            if dm[k][1]: h.vm(dm[k][1],dm[k][0]); nv+=1
            else: h(dm[k][0])
            k+=1
        val=[]
        for u in range(2):
            val.append(f'v_smfmac_f32_16x16x64_bf16 {R(SUMA[u],4)}, {R(ONES,4)}, {R(XS16+8*u,8)}, v{SIDX}')
            for kk in range(2):
                x=XS16+8*u+4*kk
                val.append(f'ds_read_b128 {R(XF+16*st+4*(2*u+kk),4)}, v{12+2*u+kk}')
                val.append(f'v_mfma_f32_16x16x32_bf16 {R(GRA[u],4)}, {R(x,4)}, {R(x,4)}, {R(GRA[u],4)}')
        val.append('s_waitcnt lgkmcnt(4)')
        for p_ in range(2):
            val.append(f'v_smfmac_f32_16x16x64_bf16 {R(CSA,4)}, {R(SPA,4)}, {R(TMP+8*p_,8)}, v{SIDX}')
        if st<7:
            d=(A_SLOT[st+1]-A_SLOT[st])*SLOT
            sr='s59' if d==SLOT else 's60'
            for r in (12,13,14,15,17,5,6): val.append(f'v_add_u32 v{r}, {sr}, v{r}')
        if st==5: fstamp(h,4)
        h('s_waitcnt lgkmcnt(8)')
        if st==5: fstamp(h,5)
        rest=dm[k:]; vi=0; fs_=6
        for (ins,tag) in rest:
            if tag:
                for _ in range(2):
                    if vi<len(val): h(val[vi]); vi+=1
                h.vm(tag,ins)
                if st==5: fstamp(h,fs_); fs_+=1
            else: h(ins)
        while vi<len(val):
            h(val[vi]); vi+=1
            if st==5 and val[vi-1].startswith('s_waitcnt'): fstamp(h,fs_); fs_+=1
        if st==5: fstamp(h,fs_); fs_+=1
        if st==6: fstamp(h,15)
    h('s_waitcnt lgkmcnt(0)')
    h('s_nop 1')
    for u in range(2):
        gr=GRA[u]; q=32+2*u
        h(f'v_cndmask_b32 v{q}, v{gr}, v{gr+1}, s[66:67]')
        h(f'v_cndmask_b32 v{q}, v{q}, v{gr+2}, s[68:69]')
        h(f'v_cndmask_b32 v{q}, v{q}, v{gr+3}, s[44:45]')
    for u in range(2):
        q=32+2*u; m=SUMA[u]
        h(f'v_add_f32 v{m}, v{m}, v{m+1}')
        h(f'v_mul_f32 v{q}, {f2u(1/512):#x}, v{q}')
        h(f'v_mul_f32 v{m}, {f2u(1/512):#x}, v{m}')
    h(f'v_add_f32 v{CSA}, v{CSA}, v{CSA+1}')
    h(f'v_add_f32 v{CSA+2}, v{CSA+2}, v{CSA+3}')
    for u in range(2):
        q=32+2*u; m=SUMA[u]
        h(f'v_fma_f32 v{q}, -v{m}, v{m}, v{q}')
        h(f'v_max_f32 v{q}, 0, v{q}')
        h(f'v_add_f32 v{q+1}, {f2u(1e-5):#x}, v{q}')
    h('s_mov_b64 exec, 0xffff')
    h(f'ds_write_b32 v29, v{CSA}')
    h(f'ds_write_b32 v29, v{CSA+2} offset:64')
    h('s_mov_b64 exec, -1')
    for u in range(2):
        q=32+2*u
        h(f'v_rsq_f32 v{q+1}, v{q+1}')
    h('s_mov_b64 exec, s[46:47]')
    for u in range(2):
        q=32+2*u; m=SUMA[u]
        h(f'ds_write_b32 v28, v{m} offset:{64*u+L_MU-L_A}')
        h(f'ds_write_b32 v28, v{q+1} offset:{64*u}')
    h('s_mov_b64 exec, -1')
    h('s_waitcnt lgkmcnt(0)')
    stamp(h,4)
    h('s_barrier')
    emit(h,(dmaB(7) if 'b5early' in OPT else dmaB(3)+dmaB(4)+dmaB(5)+dmaB(6)+dmaB(7) if 'smooth' in OPT else dmaB(5)+dmaB(6)+dmaB(7)))
    for u in range(2):
        q=32+2*u; m=SUMA[u]
        h(f'v_mul_f32 v{m+1}, v{q+1}, v{q+1}')
        h(f'v_mul_f32 v{m+1}, v{m+1}, v{q}')
        h(f'v_add_f32 v{m+1}, {f2u(1e-5):#x}, v{m+1}')
    for u in range(2):
        m=SUMA[u]
        h(f'v_rsq_f32 v{m+1}, v{m+1}')
    h('s_lshl_b32 s3, s37, 7')
    h('v_lshlrev_b32 v27, 2, v3')
    for u in range(2):
        q=32+2*u; m=SUMA[u]
        h(f'v_mul_f32 v{m+2}, v{m+1}, v{q+1}')
        h(f'v_mul_f32 v{m+3}, v{m+2}, v{m}')
    h('s_mov_b64 exec, s[46:47]')
    for u in range(2):
        m=SUMA[u]
        h(f'ds_write_b32 v28, v{m+2} offset:{64*u+L_A2-L_A}')
        h(f'ds_write_b32 v28, v{m+3} offset:{64*u+L_A2M-L_A}')
    h('s_mov_b64 exec, -1')
    h('v_add_u32 v28, s3, v27')
    h(f'v_add_u32 v28, {L_A2}, v28')
    h('s_waitcnt lgkmcnt(0)')
    h('ds_read_b32 v38, v28')
    h(f'ds_read_b32 v30, v28 offset:{L_A2M-L_A2}')
    h('v_lshlrev_b32 v34, 16, v31')
    h('v_and_b32 v35, 0xffff0000, v31')
    h('v_lshlrev_b32 v28, 3, v1')
    h(f'v_add_u32 v28, {L_B1}, v28')
    h('v_cmp_gt_u32 vcc, 48, v1')
    h('s_and_saveexec_b64 s[66:67], vcc')
    h('ds_write_b64 v28, v[34:35]')
    h('s_mov_b64 exec, s[66:67]')
    h('s_mov_b32 s62, 0x00030003')
    h('s_mov_b32 s63, 0x00030003')
    ACC=[64,80,96]
    TS=[57,59,60]
    for sl in range(3):
        h(f's_add_u32 s3, s37, {sl}')
        h('s_cmp_ge_u32 s3, 3')
        h('s_cselect_b32 s55, 3, 0')
        h('s_sub_u32 s3, s3, s55')
        h('s_cmp_ge_u32 s3, 3')
        h('s_cselect_b32 s55, 3, 0')
        h('s_sub_u32 s3, s3, s55')
        h(f's_mov_b32 s{TS[sl]}, s3')
    SPB=8; SIB=5; CS1A=124
    for r in range(4): h(f'v_mov_b32 v{SPB+r}, v{SPA+r}')
    h(f'v_mov_b32 v{SIB}, v{SIDX}')
    for r in range(4): h(f'v_mov_b32 v{CS1A+r}, 0')
    for r in range(64,112): h(f'v_mov_b32 v{r}, 0')
    h(f's_lshl_b32 s3, s{TS[0]}, 6')
    h('v_add_u32 v12, s3, v16')
    h('v_add_u32 v13, 86016, v12')
    h('v_add_u32 v14, 126976, v12')
    def waddr(n,e):
        st,ks=divmod(n,4); base=W1_ADDR[st]
        if base<65536-12288: reg,rel=12,base
        elif base<126976: reg,rel=13,base-86016
        else: reg,rel=14,base-126976
        return reg, rel+ks*3072+e*768
    FSET=[40,44,48,52]
    C1=-2*1.4426950408889634*0.7978845608028654
    C2=C1*0.044715
    h(f's_mov_b32 s66, {f2u(C2):#x}')
    h(f'v_mov_b32 v32, {f2u(C1):#x}')
    h('v_lshlrev_b32 v23, 4, v4')
    h('v_lshlrev_b32 v15, 4, v1')
    h('s_lshl_b32 s53, s38, 2')
    h('s_add_u32 s53, s53, s37')
    h('s_mul_i32 s53, s53, 86')
    SO=[67,68,69]
    CA=[33,34,35]
    for sl in range(3):
        h(f's_add_u32 s54, s48, s{TS[sl]}')
        h('s_lshl_b32 s54, s54, 1')
        h('s_add_u32 s54, s54, s53')
        h('s_lshl_b32 s54, s54, 10')
        h(f's_add_u32 s54, s54, {WS_H}')
        h(f's_cmp_ge_u32 s{TS[sl]}, s49')
        h(f's_cselect_b32 s{SO[sl]}, 0x7ff00000, s54')
        h(f's_lshl_b32 s3, s{TS[sl]}, 7')
        h(f'v_add_u32 v{CA[sl]}, s3, v23')
        h(f'v_add_u32 v{CA[sl]}, {L_CS1}, v{CA[sl]}')
    h('v_lshlrev_b32 v29, 2, v1')
    h(f's_lshl_b32 s55, s{TS[0]}, 7')
    h(f's_add_u32 s55, s55, {L_CS1}')
    h('v_add_u32 v29, s55, v29')
    h(f'v_mov_b32 v17, {L_CNT+12}')
    h('v_mov_b32 v7, 1')
    h.wait_vm(['B0','B1'])
    h('s_waitcnt lgkmcnt(0)')
    gbar_arrive(h, 17, 7)
    gbar_wait(h, 17, 6, 4)
    h.lgq=[]
    bar={8:(['B2','B3','B4'],8), 20:(['B5','B6','B7'],12)}
    NM=96
    def wreads(m):
        sl,n=divmod(m,32); fs=FSET[m%4]
        if n==0 and sl>0:
            h(f's_sub_u32 s3, s{TS[sl]}, s{TS[sl-1]}')
            h('s_lshl_b32 s3, s3, 6')
            for rg in (12,13,14): h(f'v_add_u32 v{rg}, s3, v{rg}')
        if sl==0 and n in bar:
            gbar_wait(h, 17, 6, bar[n][1]); h.lgq=[]
        for e in range(2):
            reg,off=waddr(n,e)
            h.lg(f'W{m}', f'ds_read_b64_tr_b16 {R(fs+2*e,2)}, v{reg} offset:{off}')
    TCS=[112,56]; TB1=[120,18]
    def ureads(sl,hf,k):
        cs=TCS[k%2]; b1=TB1[k%2]; q=[]
        for gg in range(2):
            q.append((4,'lg',(f'G{sl}{hf}', f'ds_read_b128 {R(cs+4*gg,4)}, v{CA[sl]} offset:{(16*hf+8*gg)*4}'),0))
            q.append((4,'lg',(f'G{sl}{hf}', f'ds_read_b128 {R(b1+4*gg,4)}, v{CA[sl]} offset:{(16*hf+8*gg)*4+L_B1-L_CS1}'),0))
        return q
    def ucomp(sl,hf,k,mmin):
        cs=TCS[k%2]; b1=TB1[k%2]; acc=ACC[sl]+8*hf; q=[]
        q.append((0,'wait',f'G{sl}{hf}',mmin))
        for r in range(8): q.append((4,'i',f'v_fma_f32 v{b1+r}, -v{cs+r}, v30, v{b1+r}',mmin))
        for r in range(8): q.append((4,'i',f'v_fma_f32 v{acc+r}, v{acc+r}, v38, v{b1+r}',mmin))
        for r in range(8): q.append((4,'i',f'v_mul_f32 v{cs+r}, v{acc+r}, v{acc+r}',mmin))
        for r in range(8): q.append((4,'i',f'v_fma_f32 v{cs+r}, v{cs+r}, s66, v32',mmin))
        for r in range(8): q.append((4,'i',f'v_mul_f32 v{cs+r}, v{cs+r}, v{acc+r}',mmin))
        for r in range(8): q.append((8,'i',f'v_exp_f32 v{cs+r}, v{cs+r}',mmin))
        for r in range(8): q.append((4,'i',f'v_add_f32 v{cs+r}, 1.0, v{cs+r}',mmin))
        for r in range(8): q.append((8,'i',f'v_rcp_f32 v{cs+r}, v{cs+r}',mmin))
        for r in range(8): q.append((4,'i',f'v_mul_f32 v{acc+r}, v{acc+r}, v{cs+r}',mmin))
        if 'lateh' in OPT:
            for i in range(4): q.append((4,'i',f'v_cvt_pk_bf16_f32 v{acc+i}, v{acc+2*i}, v{acc+2*i+1}',mmin))
            return q
        for i in range(4): q.append((4,'i',f'v_cvt_pk_bf16_f32 v{b1+i}, v{acc+2*i}, v{acc+2*i+1}',mmin))
        q.append((4,'i',f'buffer_store_dwordx4 {R(b1,4)}, v15, {W_}, s{SO[sl]} offen offset:{1024*hf} sc1',mmin))
        q.append((0,'i','s_nop 1',mmin))
        return q
    queue=[]
    def drain(budget, m):
        while queue and budget>0 and queue[0][3]<=m:
            c,kind,p,_=queue.pop(0)
            if kind=='lg': h.lg(p[0],p[1])
            elif kind=='wait': h.wait_lg(p)
            elif kind=='gbar': gbar_wait(h, 17, 6, p); h.lgq=[]
            else: h(p)
            budget-=c
    for m in range(3): wreads(m)
    uk=0
    for m in range(NM):
        sl,n=divmod(m,32)
        if sl==0 and (n+4) in bar:
            h.wait_vm(bar[n+4][0]); gbar_arrive(h, 17, 7); h.lgq.append('CNT')
        h.wait_lg(f'W{m}')
        fs=FSET[m%4]
        h(f'v_mfma_f32_32x32x16_bf16 {R(ACC[sl],16)}, {R(fs,4)}, {R(XF+4*n,4)}, {R(ACC[sl],16)}')
        if sl==0 and n%2==1:
            h(f'v_smfmac_f32_16x16x64_bf16 {R(CS1A,4)}, {R(SPB,4)}, {R(FSET[(m-1)%4],8)}, v{SIB}')
        if m+3<NM: wreads(m+3)
        if m==33:
            h('s_nop 3')
            h(f'v_add_f32 v{CS1A}, v{CS1A}, v{CS1A+1}')
            h(f'v_add_f32 v{CS1A+2}, v{CS1A+2}, v{CS1A+3}')
            h('s_mov_b64 exec, 0xffff')
            h.lg('CSW', f'ds_write_b32 v29, v{CS1A}')
            h.lg('CSW', f'ds_write_b32 v29, v{CS1A+2} offset:64')
            h('s_mov_b64 exec, -1')
            h.wait_lg('CSW')
            gbar_arrive(h, 17, 7); h.lgq.append('CNT')
            stamp(h,5)
            queue+=ureads(0,0,0)+ureads(0,1,1)+ucomp(0,0,0,35)
            queue+=[(0,'gbar',16,0)]+ureads(1,0,2)+ucomp(0,1,1,35)
            queue+=ureads(1,1,3)+ucomp(1,0,2,66)
            queue+=ureads(2,0,4)+ucomp(1,1,3,66)
            queue+=ureads(2,1,5)+ucomp(2,0,4,99)+ucomp(2,1,5,99)
        if m>=33: drain(16, m)
    gbar_arrive(h, 17, 7); h.lgq.append('CNT')
    h('s_nop 7')
    drain(1<<30, 1000)
    if 'lateh' in OPT:
        lab=newlab('HW'); done=newlab('HWD')
        h(f'v_mov_b32 v12, {L_CNT+24}')
        h.label(lab)
        h('ds_read_b32 v13, v12')
        h('s_waitcnt lgkmcnt(0)')
        h('v_readfirstlane_b32 s3, v13')
        h('s_nop 0')
        h('s_cmp_eq_u32 s3, 0')
        h(f's_cbranch_scc0 {done}')
        h('s_sleep 8')
        h(f's_branch {lab}')
        h.label(done)
        for sl in range(3):
            for hf in range(2):
                h(f'buffer_store_dwordx4 {R(ACC[sl]+8*hf,4)}, v15, {W_}, s{SO[sl]} offen offset:{1024*hf} sc1')
    stamp(h,6)
    h('s_waitcnt vmcnt(0)')
    h.vmq=[]
    h('s_lshl_b32 s48, s38, 4')
    h('s_add_u32 s48, s48, s39')
    h('s_lshl_b32 s48, s48, 7')
    h(f's_add_u32 s48, s48, {F_2}')
    signal(h, L_CNT+4, 3, 's48', 40)

    h('s_setprio 2' if 'g2hi' in OPT else 's_setprio 0')
    h('s_and_b32 s52, s2, 7')
    h('s_lshr_b32 s53, s2, 3')
    h('s_and_b32 s54, s53, 3')
    h('s_lshl_b32 s52, s52, 2')
    h('s_add_u32 s58, s52, s54')
    h('s_lshr_b32 s59, s53, 2')
    h('v_lshlrev_b32 v5, 4, v1')
    h('v_lshlrev_b32 v8, 7, v1')
    sWw=24
    h('s_lshr_b32 s52, s2, 3')
    h('s_lshl_b32 s52, s52, 2')
    h('s_add_u32 s52, s52, s37')
    h('s_lshl_b32 s52, s52, 14')
    h(f's_cmp_ge_u32 s52, {1376*1024}')
    h(f's_cselect_b32 s{sWw}, s{pWO}, s{pW2}')
    h(f's_cselect_b32 s{sWw+1}, s{pWO+1}, s{pW2+1}')
    h(f's_cselect_b32 s53, {1376*1024}, 0')
    h('s_sub_u32 s52, s52, s53')
    h('s_cmp_eq_u32 s53, 0')
    h(f's_mov_b32 s26, {512*512*2}')
    h(f's_cselect_b32 s26, {1376*512*2}, s26')
    h(f's_mov_b32 s{sWw+3}, 0x00020000')
    for k in range(0 if 'nowarm' in OPT else 16):
        h(f'buffer_load_dwordx4 v[40:43], v5, {SR(sWw)}, s52 offen offset:{1024*(k%4)}')
        if k%4==3: h('s_add_u32 s52, s52, 4096')
    sW2=24
    h('s_lshr_b32 s52, s58, 1')
    h('s_lshl_b32 s52, s52, 11')
    h(f's_add_u32 s52, s52, {F_2}')
    stamp(h,7)
    poll_wg(h, 16, 'v8', 's52', 26, 4, L_CNT+20)
    stamp(h,8)
    srd(h,sW2,pW2,1376*512*2)
    h('s_sub_u32 s60, s36, 4')
    h('s_mul_i32 s61, s60, 22')
    h('s_cmp_eq_u32 s60, 3')
    h('s_cselect_b32 s52, 1, 0')
    h('s_sub_u32 s61, s61, s52')
    h('s_cmp_lt_u32 s60, 2')
    h('s_cselect_b32 s62, 22, 21')
    h('s_lshl_b32 s63, s59, 1')
    h('s_and_b32 s52, s58, 3')
    h('s_add_u32 s63, s63, s52')
    h('s_sub_u32 s57, s62, s63')
    h('s_add_u32 s61, s61, s63')
    h('s_lshl_b32 s52, s58, 1')
    h('s_mul_i32 s52, s52, 86')
    h('s_add_u32 s52, s52, s61')
    h('s_lshl_b32 s52, s52, 10')
    h(f's_add_u32 s52, s52, {WS_H}')
    h('s_lshl_b32 s54, s61, 14')
    h('s_lshl_b32 s55, s59, 7')
    h('s_add_u32 s54, s54, s55')
    h('s_lshl_b32 s56, s62, 10')
    h('s_lshl_b32 s53, s62, 14')
    h('s_mov_b32 s50, s57')
    h(f's_mul_i32 s55, s60, {RINGSZ}')
    h(f's_add_u32 s55, s55, {L_RING}')
    def wdma_voff(e):
        e('v_lshrrev_b32 v10, 3, v1')
        e('v_lshlrev_b32 v10, 10, v10')
        e('v_and_b32 v11, 7, v1')
        e('v_bfe_u32 v12, v1, 4, 1')
        e('v_lshlrev_b32 v12, 2, v12')
        e('v_xor_b32 v11, v11, v12')
        e('v_lshlrev_b32 v11, 4, v11')
        e('v_add_u32 v10, v10, v11')
        e('v_add_u32 v11, 7168, v10')
    wdma_voff(h)
    h(f'v_add_u32 v17, {86*1024}, v5')
    def tr_addr(e, dst, base_s):
        e('v_bfe_u32 v13, v1, 2, 2')
        e('v_lshlrev_b32 v14, 2, v4')
        e('v_add_u32 v14, v14, v13')
        e('v_lshlrev_b32 v14, 7, v14')
        e('v_bfe_u32 v15, v1, 4, 1')
        e('v_lshlrev_b32 v15, 1, v15')
        e('v_and_b32 v16, 1, v1')
        e('v_add_u32 v15, v15, v16')
        e('v_lshrrev_b32 v13, 1, v13')
        e('v_lshlrev_b32 v13, 2, v13')
        e('v_xor_b32 v15, v15, v13')
        e('v_lshlrev_b32 v15, 4, v15')
        e('v_bfe_u32 v16, v1, 1, 1')
        e('v_lshlrev_b32 v16, 3, v16')
        e('v_add3_u32 v14, v14, v15, v16')
        e(f'v_add_u32 v{dst}, {base_s}, v14')
        e(f'v_xor_b32 v{dst+1}, 64, v{dst}')
    tr_addr(h, 18, 's55')
    def tail_prep(e):
        e('s_and_b32 s37, s36, 1')
        e('s_bfe_u32 s38, s36, 0x10001')
        e('s_lshr_b32 s39, s36, 2')
        srd(e,32,pOUT,2048*512*2)
        e('s_lshl_b32 s3, s58, 6')
        e('s_lshl_b32 s42, s37, 5')
        e('s_add_u32 s3, s3, s42')
        e('v_add_u32 v20, s3, v3')
        e('v_lshlrev_b32 v20, 10, v20')
        e('s_lshl_b32 s3, s59, 6')
        e('s_lshl_b32 s42, s38, 5')
        e('s_add_u32 s3, s3, s42')
        e('s_lshl_b32 s42, s39, 4')
        e('s_add_u32 s3, s3, s42')
        e('v_lshlrev_b32 v21, 3, v4')
        e('v_add_u32 v21, s3, v21')
        e('v_lshlrev_b32 v21, 1, v21')
        e('v_add_u32 v20, v20, v21')
        srd(e,44,pX,2048*512*2)
        e(f'buffer_load_dwordx4 v[24:27], v20, {SR(44)}, 0 offen')
        srd(e,44,pB2,512*2)
        e(f'buffer_load_dwordx4 v[28:31], v21, {SR(44)}, 0 offen')
        e('s_lshl_b32 s3, s39, 15')
        e(f's_add_u32 s3, s3, {L_WO}')
        tr_addr(e, 21, 's3')
        e('s_lshl_b32 s3, s38, 6')
        e('v_xor_b32 v21, s3, v21')
        e('s_lshl_b32 s3, s37, 15')
        e('s_lshl_b32 s42, s39, 14')
        e('s_add_u32 s3, s3, s42')
        e(f's_add_u32 s3, s3, {L_OX}')
        e('v_add_u32 v22, s3, v5')
        e('s_lshl_b32 s3, s38, 4')
        e('s_lshl_b32 s42, s39, 1')
        e('s_add_u32 s3, s3, s42')
        e('s_lshl_b32 s40, s58, 1')
        e('s_add_u32 s40, s40, s37')
        e('s_lshl_b32 s40, s40, 5')
        e('s_add_u32 s40, s40, s3')
        e('s_lshl_b32 s40, s40, 10')
        e(f's_add_u32 s40, s40, {WS_O}')
        e('s_lshl_b32 s41, s37, 5')
        e('s_add_u32 s41, s41, s3')
        e('s_lshl_b32 s41, s41, 10')
        e(f's_add_u32 s41, s41, {L_OX}')
        e('s_and_b32 s3, s36, 3')
        e('s_lshl_b32 s3, s3, 12')
        e(f's_add_u32 s3, s3, {L_EX}')
        e('s_lshl_b32 s42, s39, 11')
        e('s_add_u32 s43, s3, s42')
        e('v_add_u32 v23, s43, v5')
        e('s_xor_b32 s42, s42, 2048')
        e('s_add_u32 s43, s3, s42')
        e('v_add_u32 v6, s43, v5')
        e('s_lshr_b32 s42, s58, 2')
        e('s_lshl_b32 s42, s42, 12')
        e(f's_add_u32 s42, s42, {F_3}')
        e('s_waitcnt vmcnt(0)')
        for i in range(4):
            e(f'v_lshlrev_b32 v{40+2*i}, 16, v{24+i}')
            e(f'v_and_b32 v{41+2*i}, 0xffff0000, v{24+i}')
        for i in range(4):
            e(f'v_lshlrev_b32 v{24}, 16, v{28+i}')
            e(f'v_and_b32 v{25}, 0xffff0000, v{28+i}')
            e(f'v_add_f32 v{40+2*i}, v{40+2*i}, v24')
            e(f'v_add_f32 v{41+2*i}, v{41+2*i}, v25')
        e.vmq=[]
    GA=[[192,208],[224,240]]
    XR=[48+8*i for i in range(XD)]
    WB=[24,32]
    def x_issue(i):
        b=XR[i%XD]
        h.vm(f'X{i}', f'buffer_load_dwordx4 {R(b,4)}, v5, {W_}, s52 offen sc1')
        h.vm(f'X{i}', f'buffer_load_dwordx4 {R(b+4,4)}, v17, {W_}, s52 offen sc1')
        h('s_add_u32 s52, s52, 1024')
        h('s_sub_u32 s57, s57, 1')
        h('s_cmp_eq_u32 s57, 0')
        h('s_cselect_b32 s63, s56, 0')
        h('s_sub_u32 s52, s52, s63')
    def w_issue(i):
        h(f's_add_u32 m0, s55, {(i%WD)*2048}')
        h('s_sub_u32 s50, s50, 1')
        nt2=' nt' if 'ntw2' in OPT else ''
        h.vm(f'W{i}', f'buffer_load_dwordx4 v10, {SR(sW2)}, s54 offen{nt2} lds')
        h.vm(f'W{i}', f'buffer_load_dwordx4 v11, {SR(sW2)}, s54 offen offset:1024{nt2} lds')
        h('s_add_u32 s54, s54, 16384')
        h('s_cmp_eq_u32 s50, 0')
        h('s_cselect_b32 s63, s53, 0')
        h('s_sub_u32 s54, s54, s63')
    def g2_wread(i):
        for ct in range(2):
            for e in range(2):
                h(f'ds_read_b64_tr_b16 {R(WB[i%2]+4*ct+2*e,2)}, v{18+ct} offset:{(i%WD)*2048+e*1024}')
    if 'nog2' in OPT: h('s_branch K_G2_DONE')
    h.vmq=[]
    THR=4
    for o_ in OPT:
        if o_.startswith('THR='): THR=int(o_[4:])
    for i in range(XD):
        if i<WD: w_issue(i)
        x_issue(i)
        if THR<63 and len(h.vmq)>THR:
            h(f's_waitcnt vmcnt({THR-4 if THR>4 else 0})'); h.vmq=h.vmq[len(h.vmq)-(THR-4 if THR>4 else 0):] if THR>4 else []
    for tt in range(2):
        for ct in range(2):
            for r in range(16): h(f'v_mov_b32 v{GA[tt][ct]+r}, 0')
    if 'now2warm' not in OPT:
        h('s_mov_b32 s48, s54'); h('s_mov_b32 s49, s50')
        for i in range(WD,22):
            if i%2==0: h.wait_vm_all()
            h.vm('L2', f'buffer_load_dwordx4 v[40:43], v10, {SR(sW2)}, s48 offen')
            h.vm('L2', f'buffer_load_dwordx4 v[40:43], v11, {SR(sW2)}, s48 offen offset:1024')
            h('s_add_u32 s48, s48, 16384')
            h('s_sub_u32 s49, s49, 1')
            h('s_cmp_eq_u32 s49, 0')
            h('s_cselect_b32 s63, s53, 0')
            h('s_sub_u32 s48, s48, s63')
    h.wait_vm_all()
    tail_prep(h)
    lab=newlab('G2W'); done=newlab('G2WD')
    h(f'v_mov_b32 v12, {L_CNT+G2CNT}')
    h.label(lab)
    h('ds_read_b32 v13, v12')
    h('s_waitcnt lgkmcnt(0)')
    h('v_readfirstlane_b32 s3, v13')
    h('s_nop 0')
    h(f's_cmp_ge_u32 s3, {G2TGT}')
    h(f's_cbranch_scc1 {done}')
    h('s_sleep 16')
    h(f's_branch {lab}')
    h.label(done)
    G2PR=2
    for o_ in OPT:
        if o_.startswith('G2PR='): G2PR=int(o_[5:])
    h(f's_setprio {G2PR}')
    stamp(h,9)
    h.wait_vm_all()
    g2_wread(0)
    NK=22
    for i in range(NK):
        if i+1<NK:
            h.wait_vm([f'W{i+1}'])
            g2_wread(i+1)
            h.wait_vm([f'X{i}'])
            h('s_waitcnt lgkmcnt(4)')
        else:
            h.wait_vm([f'X{i}'])
            h('s_waitcnt lgkmcnt(0)')
            h('s_cmp_eq_u32 s62, 21')
            h('s_cbranch_scc1 K_G2_DONE')
        b=XR[i%XD]
        for tt in range(2):
            for ct in range(2):
                h(f'v_mfma_f32_32x32x16_bf16 {R(GA[tt][ct],16)}, {R(WB[i%2]+4*ct,4)}, {R(b+4*tt,4)}, {R(GA[tt][ct],16)}')
        if i+WD<NK: w_issue(i+WD)
        if i+XD<NK: x_issue(i+XD)
    h.label('K_G2_DONE')
    h('s_waitcnt vmcnt(0) lgkmcnt(0)')
    stamp(h,11)
    h('s_nop 7')
    for tt in range(2):
        for ct in range(2):
            qd=tt+2*ct
            lab=newlab('GXS')
            h(f's_cmp_eq_u32 s60, {qd}')
            h(f's_cbranch_scc1 {lab}')
            h(f's_sub_u32 s52, {qd+3}, s60')
            h('s_and_b32 s52, s52, 3')
            h('s_lshl_b32 s52, s52, 12')
            h('s_add_u32 s52, s52, s55')
            h('v_add_u32 v14, s52, v5')
            for k in range(4): h(f'ds_write_b128 v14, {R(GA[tt][ct]+4*k,4)} offset:{1024*k}')
            h.label(lab)
    def att_ids(e):
        e('s_and_b32 s48, s2, 7')
        e('s_lshr_b32 s49, s2, 3')
        e('s_and_b32 s50, s49, 3')
        e('s_lshl_b32 s48, s48, 2')
        e('s_add_u32 s38, s48, s50')
        e('s_lshr_b32 s39, s49, 2')
    h(f'v_mov_b32 v12, {L_CNT+12}')
    h('v_mov_b32 v13, 1')
    h('s_waitcnt lgkmcnt(0)')
    gbar_arrive(h, 12, 13)
    gbar_wait(h, 12, 13, 24)
    for sl in range(3):
        h(f's_sub_u32 s52, s60, {sl+1}')
        h('s_and_b32 s52, s52, 3')
        h(f's_mul_i32 s52, s52, {RINGSZ}')
        h(f's_add_u32 s52, s52, {L_RING+4096*sl}')
        h('v_add_u32 v14, s52, v5')
        for k in range(4): h(f'ds_read_b128 {R(128+16*sl+4*k,4)}, v14 offset:{1024*k}')
    h('s_waitcnt lgkmcnt(8)')
    gxe=newlab('GXE')
    for qd in range(4):
        lab=newlab('GXQ')
        tt,ct=qd&1,qd>>1
        if qd<3:
            h(f's_cmp_lg_u32 s60, {qd}')
            h(f's_cbranch_scc1 {lab}')
        for r in range(16): h(f'v_add_f32 v{192+r}, v{GA[tt][ct]+r}, v{128+r}')
        if qd<3:
            h(f's_branch {gxe}')
            h.label(lab)
    h.label(gxe)
    h('s_waitcnt lgkmcnt(4)')
    for r in range(16): h(f'v_add_f32 v{192+r}, v{192+r}, v{144+r}')
    h('s_waitcnt lgkmcnt(0)')
    for r in range(16): h(f'v_add_f32 v{192+r}, v{192+r}, v{160+r}')
    h('s_branch K_TAIL')

    a2=Asm()
    a2.label('K_ATT')
    a2('s_setprio 1')
    att_ids(a2)
    a2('v_lshlrev_b32 v5, 4, v1')
    a2('v_lshlrev_b32 v6, 8, v4')
    a2('v_and_b32 v7, 15, v1')
    a2('v_lshlrev_b32 v7, 4, v7')
    a2('v_add_u32 v6, v6, v7')
    a2('v_lshlrev_b32 v8, 7, v1')
    a2('v_lshlrev_b32 v9, 2, v1')
    a2('s_lshl_b32 s44, s38, 16')
    a2('s_lshl_b32 s46, s39, 13')
    a2('s_add_u32 s46, s46, s44')
    a2(f's_add_u32 s46, s46, {WS_Q}')
    a2('s_lshl_b32 s47, s36, 14')
    a2('s_add_u32 s47, s47, s44')
    a2(f's_add_u32 s48, s47, {WS_V}')
    a2(f's_add_u32 s47, s47, {WS_K}')
    a2('s_mov_b32 s40, s47')
    a2('s_mov_b32 s41, s48')
    a2('s_lshr_b32 s49, s38, 1')
    a2('s_mul_i32 s49, s49, 1536')
    a2(f's_add_u32 s49, s49, {WS_N}')
    a2('s_mov_b32 s50, 0x0000ffff')
    a2('s_mov_b32 s51, 0x0000ffff')
    KB=[80,84,88,92]; VB=[96,104,112,120]; QF=48
    SA,SB=10,26
    OA=[128+16*i for i in range(8)]; IDX=44
    a2('v_and_b32 v12, 27, v3')
    a2('v_cmp_eq_u32 vcc, 16, v12')
    a2('v_mov_b32 v12, 0x3f803f80')
    a2('s_nop 0')
    a2(f'v_cndmask_b32 v{IDX}, 0, v12, vcc')
    for b in VB:
        for r in range(8): a2(f'v_mov_b32 v{b+r}, v{IDX}')
    a2(f'v_mov_b32 v{IDX}, 0xdddddddd')
    for o in OA:
        for r in range(16): a2(f'v_mov_b32 v{o+r}, 0')
    for r in range(8,16): a2(f'v_mov_b32 v{SB+r}, 0')
    for p_ in range(4):
        a2(f's_sub_u32 s52, s36, {p_+1}')
        a2('s_and_b32 s52, s52, 3')
        a2('s_mul_i32 s52, s52, 2304')
        a2(f's_add_u32 s{56+p_}, s52, {2*p_*3*2304}')
    a2('s_lshl_b32 s52, s36, 1')
    a2('s_lshl_b32 s52, 3, s52')
    a2('s_xor_b32 s45, s52, 0xff')
    a2('s_lshr_b32 s52, s38, 1')
    a2('s_lshl_b32 s52, s52, 11')
    a2(f's_add_u32 s52, s52, {F_1}')
    stamp(a2,7)
    poll_wg(a2, 16, 'v8', 's52', 18, 0, L_CNT+24, bounds=True)
    stamp(a2,8)
    def loadkv(b, ko):
        a2.vm('KV', f'buffer_load_dwordx4 {R(KB[b],4)}, v5, {W_}, s47 offen offset:{1024*ko} sc1')
        a2('s_mov_b64 exec, s[50:51]')
        a2.vm('KV', f'buffer_load_dwordx4 {R(VB[b],4)}, v6, {W_}, s48 offen offset:{1024*ko} sc1')
        a2.vm('KV', f'buffer_load_dwordx4 {R(VB[b]+4,4)}, v6, {W_}, s48 offen offset:{1024*ko+512} sc1')
        a2('s_mov_b64 exec, -1')
    a2.vm('KV', f'buffer_load_dwordx4 {R(KB[0],4)}, v5, {W_}, s47 offen sc1')
    a2.vm('Q', f'buffer_load_dwordx4 {R(QF,4)}, v5, {W_}, s46 offen sc1')
    a2('s_mov_b64 exec, s[50:51]')
    a2.vm('KV', f'buffer_load_dwordx4 {R(VB[0],4)}, v6, {W_}, s48 offen sc1')
    a2.vm('KV', f'buffer_load_dwordx4 {R(VB[0]+4,4)}, v6, {W_}, s48 offen offset:512 sc1')
    a2('s_mov_b64 exec, -1')
    for i in range(1,4):
        a2.vm('Q', f'buffer_load_dwordx4 {R(QF+4*i,4)}, v5, {W_}, s46 offen offset:{1024*i} sc1')
    a2('s_add_u32 s46, s46, 4096')
    for i in range(4,8):
        a2.vm('Q', f'buffer_load_dwordx4 {R(QF+4*i,4)}, v5, {W_}, s46 offen offset:{1024*(i-4)} sc1')
    loadkv(1,1); loadkv(2,2)
    bounds_decision(a2, 18, 0)
    a2('s_add_u32 s47, s47, 3072')
    a2('s_add_u32 s48, s48, 3072')
    def qk(kb, i, dst): return f'v_mfma_f32_32x32x16_bf16 {R(dst,16)}, {R(KB[kb],4)}, {R(QF+4*i,4)}, 0'
    def pv(kb, i, half, src): return f'v_smfmac_f32_32x32x32_bf16 {R(OA[i],16)}, {R(VB[kb]+4*half,4)}, {R(src+8*half,8)}, v{IDX}'
    a2('s_mov_b32 s42, 0')
    a2('s_mov_b32 s43, 0')
    a2('s_waitcnt vmcnt(15)')
    stamp(a2,9)
    a2(qk(0,0,SA))
    a2('s_nop 7'); a2('s_nop 3')
    a2.label('K_ATT_LOOP')
    G2N=4; G2P=3
    for o_ in OPT:
        if o_.startswith('G2N='): G2N=int(o_[4:])
        if o_.startswith('G2P='): G2P=int(o_[4:])
    ool=Asm()
    def red_write(i, inline=False):
        lab=newlab('RW'); back=newlab('RWB')
        e=a2 if inline else ool
        a2(f's_bitcmp1_b32 s43, {i}')
        if inline: a2(f's_cbranch_scc0 {back}')
        else:
            a2(f's_cbranch_scc1 {lab}'); ool.label(lab)
        p_=i>>1; off=(i&1)*3*2304
        e(f'v_add_u32 v42, s{56+p_}, v5')
        e(f'v_add_u32 v43, s{56+p_}, v9')
        e(f'ds_write_b128 v42, {R(OA[i],4)} offset:{off}')
        e(f'ds_write_b128 v42, {R(OA[i]+4,4)} offset:{off+1024}')
        e(f'ds_write_b32 v43, v{OA[i]+8} offset:{off+2048}')
        if not inline: ool(f's_branch {back}')
        a2.label(back)
    for n in range(32):
        kb,i=divmod(n,8)
        sa=SA if n%2==0 else SB
        sb=SB if n%2==0 else SA
        ex=[f'v_exp_f32 v{sa+r}, v{sa+r}' for r in range(16)]
        if 'noexp' in OPT: ex=[f'v_mov_b32 v{sa+r}, v{sa+r}' for r in range(16)]
        for e in ex[0:2]: a2(e)
        pkb,pi=divmod((n-1)%32,8)
        if 'nopv' not in OPT: a2(pv(pkb,pi,1,sb))
        if i==0 and 'noload' not in OPT: loadkv((kb+3)%4, kb)
        if kb==1 and i==1:
            lab=newlab('CHK'); back=newlab('CHKB')
            a2('s_cmp_eq_u32 s42, 0')
            a2(f's_cbranch_scc1 {lab}')
            ool.label(lab)
            ool(f'v_mov_b32 v42, {L_CNT+36}')
            gbar_wait(ool, 42, 43, 1)
            ool('s_cmp_eq_u32 s3, 2')
            ool('s_cbranch_scc1 K_SLOW')
            ool(f'v_mov_b32 v42, {L_CNT+12}')
            gbar_wait(ool, 42, 43, 20)
            ool(f's_branch {back}')
            a2.label(back)
        for e in ex[2:5]: a2(e)
        nkb,ni=divmod((n+1)%32,8)
        if i==7: a2('s_waitcnt vmcnt(6)')
        if kb==0 and i<7: a2(f's_waitcnt vmcnt({15-i})')
        if 'noqk' not in OPT: a2(qk(nkb,ni,sb))
        for e in ex[5:11]: a2(e)
        if 'nopv' not in OPT: a2(pv(kb,i,0,sa))
        if kb==3 and i>=2: red_write(i-2)
        if n==G2N:
            lab=newlab('G2E'); back=newlab('G2EB')
            a2(f's_cmp_eq_u32 s42, {G2P}')
            a2(f's_cbranch_scc1 {lab}')
            ool.label(lab)
            ool(f'v_mov_b32 v46, {L_CNT+G2CNT}')
            ool('v_mov_b32 v47, 1')
            gbar_arrive(ool, 46, 47)
            ool('s_waitcnt lgkmcnt(0)')
            ool('s_wakeup')
            ool(f's_branch {back}')
            a2.label(back)
        for e in ex[11:16]: a2(e)
    a2('s_add_u32 s47, s47, 4096')
    a2('s_add_u32 s48, s48, 4096')
    a2('s_add_u32 s42, s42, 1')
    a2('s_cmp_eq_u32 s42, 3')
    a2('s_cselect_b32 s43, s45, 0')
    a2('s_cmp_lt_u32 s42, 4')
    a2('s_cbranch_scc1 K_ATT_LOOP')
    a2('s_nop 1')
    a2(pv(3,7,1,SB))
    if G2N>31:
        a2(f'v_mov_b32 v46, {L_CNT+G2CNT}')
        a2('v_mov_b32 v47, 1')
        gbar_arrive(a2, 46, 47)
        a2('s_mov_b32 s43, s45')
        red_write(6, True)
        a2('s_waitcnt lgkmcnt(0)')
        a2('s_wakeup')
        a2('s_nop 3')
    else:
        a2('s_mov_b32 s43, s45')
        red_write(6, True)
        a2('s_nop 7'); a2('s_nop 1')
    red_write(7, True)
    a2('s_branch K_ATT_RED')
    a2.label('K_ATT_DONE')
    a2('s_mov_b32 s43, s45')
    for i in range(8): red_write(i, True)
    a2.label('K_ATT_RED')
    a2('s_setprio 3')
    stamp(a2,10)
    a2.vmq=[]
    a2('s_and_b32 s52, s2, 7')
    a2('s_lshr_b32 s53, s2, 3')
    a2('s_and_b32 s54, s53, 3')
    a2('s_lshl_b32 s52, s52, 2')
    a2('s_add_u32 s58, s52, s54')
    a2('s_lshr_b32 s59, s53, 2')
    a2(f'v_mov_b32 v78, {L_CNT+28}')
    a2('v_mov_b32 v79, 1')
    a2(f's_mul_i32 s53, s36, {6*2304}')
    a2('v_add_u32 v2, s53, v5')
    a2('v_add_u32 v7, s53, v9')
    a2('s_waitcnt lgkmcnt(0)')
    gbar_arrive(a2, 78, 79)
    a2('s_lshl_b32 s53, s39, 3')
    a2('s_lshl_b32 s52, s36, 1')
    a2('s_add_u32 s53, s53, s52')
    a2('s_lshl_b32 s53, s53, 5')
    a2('s_add_u32 s53, s53, s38')
    a2('s_lshl_b32 s53, s53, 10')
    a2(f's_add_u32 s53, s53, {WS_O}')
    gbar_wait(a2, 78, 77, 4)
    stamp(a2,12)
    RB=[[10,22,32],[44,56,68]]
    for t_ in range(2):
        for k in range(3):
            b=RB[t_][k]; off=(t_*3+k)*2304
            a2(f'ds_read_b128 {R(b,4)}, v2 offset:{off}')
            a2(f'ds_read_b128 {R(b+4,4)}, v2 offset:{off+1024}')
            a2(f'ds_read_b32 v{b+8}, v7 offset:{off+2048}')
    for t_ in range(2):
        b=RB[t_][0]
        if t_==0: a2('s_waitcnt lgkmcnt(9)')
        if t_==1: a2('s_waitcnt lgkmcnt(0)'); gbar_arrive(a2, 78, 79)
        e_=newlab('RFE')
        for p_ in range(4):
            lab=newlab('RFQ')
            if p_<3:
                a2(f's_cmp_lg_u32 s36, {p_}'); a2(f's_cbranch_scc1 {lab}')
            for r in range(9): a2(f'v_add_f32 v{b+r}, v{OA[2*p_+t_]+r}, v{b+r}')
            if p_<3:
                a2(f's_branch {e_}'); a2.label(lab)
        a2.label(e_)
        for k in (1,2):
            for r in range(9): a2(f'v_add_f32 v{b+r}, v{b+r}, v{RB[t_][k]+r}')
        a2(f'v_rcp_f32 v{b+9}, v{b+8}')
        a2('s_nop 0')
        for r in range(8): a2(f'v_mul_f32 v{b+r}, v{b+r}, v{b+9}')
        c=RB[t_][1]
        for i in range(4): a2(f'v_cvt_pk_bf16_f32 v{c+i}, v{b+2*i}, v{b+2*i+1}')
        a2(f'buffer_store_dwordx4 {R(c,4)}, v5, {W_}, s53 offen sc1')
        if t_==0: a2(f's_add_u32 s53, s53, {32*1024}')
    ACC3=192
    for r in range(16): a2(f'v_mov_b32 v{ACC3+r}, 0')
    a2('s_lshl_b32 s52, s39, 5')
    a2('s_add_u32 s52, s52, s38')
    a2('s_lshl_b32 s52, s52, 7')
    a2(f's_add_u32 s52, s52, {F_3}')
    a2('s_waitcnt vmcnt(0)')
    signal(a2, L_CNT+8, 3, 's52', 46)
    if 'abs' in OPT: stamp(a2,11)
    a2('s_setprio 0')
    tail_prep(a2)
    a2('s_cmp_eq_u32 s36, 0')
    a2('s_cbranch_scc1 K_TAIL')
    a2(f'v_mov_b32 v12, {L_CNT+28}')
    gbar_wait(a2, 12, 13, 8)
    sWO=24
    srd(a2,sWO,pWO,512*512*2)
    wdma_voff(a2)
    a2('s_sub_u32 s54, s36, 1')
    a2('s_lshl_b32 s52, s54, 14')
    a2('s_lshl_b32 s53, s59, 7')
    a2('s_add_u32 s52, s52, s53')
    a2('s_lshl_b32 s53, s54, 11')
    for i in range(11):
        a2(f's_add_u32 m0, s53, {L_WO+3*2048*i}')
        a2('s_nop 0')
        nto=' nt' if 'ntwo' in OPT else ''
        a2(f'buffer_load_dwordx4 v10, {SR(sWO)}, s52 offen{nto} lds')
        a2(f'buffer_load_dwordx4 v11, {SR(sWO)}, s52 offen offset:1024{nto} lds')
        a2(f's_add_u32 s52, s52, {3*16384}')
    a2.label('K_TAIL')
    a2('s_setprio 0')
    a2('v_lshlrev_b32 v8, 7, v1')
    stamp(a2,13)
    a2('s_cmp_eq_u32 s36, 0')
    a2('s_cbranch_scc0 K_S3W')
    poll(a2, 32, 'v8', 's42', 48)
    a2.label('K_S3W')
    a2('s_waitcnt vmcnt(0)')
    a2.vmq=[]
    a2('s_barrier')
    stamp(a2,14)
    for s_ in range(4):
        a2(f's_add_u32 m0, s41, {4096*s_}')
        a2(f's_add_u32 s55, s40, {4096*s_}')
        a2.vm(f'O{s_}', f'buffer_load_dwordx4 v5, {W_}, s55 offen sc1 lds')
        a2.vm(f'O{s_}', f'buffer_load_dwordx4 v5, {W_}, s55 offen offset:1024 sc1 lds')
    a2('s_cmp_eq_u32 s2, 0')
    a2('s_cbranch_scc0 K_NOE')
    a2('s_cmp_eq_u32 s36, 0')
    a2('s_cbranch_scc0 K_NOE')
    a2('v_mov_b32 v60, s64'); a2('v_mov_b32 v61, s65'); a2('v_mov_b32 v62, 0')
    a2('s_mov_b64 exec, 1')
    a2(f'buffer_store_dwordx2 v[60:61], v62, {W_}, 0 offen')
    a2('s_mov_b64 exec, -1')
    a2('s_waitcnt vmcnt(0)')
    a2.label('K_NOE')
    FX=[64,68,72,76]; FW=[80,84,88,92]
    for s_ in range(4):
        a2.wait_vm(f'O{s_}')
        a2('s_barrier')
        for k in range(4):
            ks=4*s_+k
            a2(f'ds_read_b128 {R(FX[k],4)}, v22 offset:{ks*1024}')
            a2(f'ds_read_b64_tr_b16 {R(FW[k],2)}, v21 offset:{ks*2048}')
            a2(f'ds_read_b64_tr_b16 {R(FW[k]+2,2)}, v21 offset:{ks*2048+1024}')
        for k in range(4):
            a2(f's_waitcnt lgkmcnt({3*(3-k)})')
            a2(f'v_mfma_f32_32x32x16_bf16 {R(ACC3,16)}, {R(FW[k],4)}, {R(FX[k],4)}, {R(ACC3,16)}')
    stamp(a2,15)
    a2('s_cmp_eq_u32 s39, 0')
    a2('s_cbranch_scc1 K_KH0')
    a2('s_nop 7'); a2('s_nop 3')
    a2(f'ds_write_b128 v23, {R(ACC3,4)}')
    a2(f'ds_write_b128 v23, {R(ACC3+4,4)} offset:1024')
    for r in range(8): a2(f'v_add_f32 v{40+r}, v{40+r}, v{ACC3+8+r}')
    a2('s_branch K_EX')
    a2.label('K_KH0')
    a2('s_nop 7'); a2('s_nop 3')
    a2(f'ds_write_b128 v23, {R(ACC3+8,4)}')
    a2(f'ds_write_b128 v23, {R(ACC3+12,4)} offset:1024')
    for r in range(8): a2(f'v_add_f32 v{40+r}, v{40+r}, v{ACC3+r}')
    a2.label('K_EX')
    a2('s_waitcnt lgkmcnt(0)')
    a2('s_barrier')
    a2('ds_read_b128 v[64:67], v6')
    a2('ds_read_b128 v[68:71], v6 offset:1024')
    a2('s_waitcnt lgkmcnt(0)')
    for r in range(8): a2(f'v_add_f32 v{40+r}, v{40+r}, v{64+r}')
    for i in range(4): a2(f'v_cvt_pk_bf16_f32 v{64+i}, v{40+2*i}, v{41+2*i}')
    a2(f'buffer_store_dwordx4 v[64:67], v20, {SR(32)}, 0 offen')
    if STAMP and ('rt' in OPT or 'span' in OPT) and 'dbg' not in OPT:
        a2('s_memrealtime s[92:93]'); a2('s_memtime s[100:101]')
    if 'abs' in OPT:
        a2('s_cmp_lt_u32 s36, 4'); a2('s_cbranch_scc0 K_NOABS'); stamp(a2,6); a2.label('K_NOABS')
    stamp_flush(a2,16)
    stamp_dbg(a2)
    a2('s_endpgm')
    a2.label('K_SLOW')
    a2('s_waitcnt vmcnt(0)')
    a2('s_nop 7'); a2('s_nop 7')
    for o in OA:
        for r in range(16): a2(f'v_mov_b32 v{o+r}, 0')
    MX=116
    a2('s_mov_b32 s61, s40')
    for i in range(8): a2(f'v_mov_b32 v{MX+i}, 0xff800000')
    a2('s_mov_b32 s62, 0')
    a2.label('K_S1')
    a2(f'buffer_load_dwordx4 {R(KB[0],4)}, v5, {W_}, s61 offen sc1')
    a2('s_waitcnt vmcnt(0)')
    for i in range(8):
        a2(f'v_mfma_f32_32x32x16_bf16 {R(SA,16)}, {R(KB[0],4)}, {R(QF+4*i,4)}, 0')
        a2('s_nop 7'); a2('s_nop 7')
        for r in range(0,16,2): a2(f'v_max3_f32 v{MX+i}, v{MX+i}, v{SA+r}, v{SA+r+1}')
    a2('s_add_u32 s61, s61, 1024')
    a2('s_add_u32 s62, s62, 1')
    a2('s_cmp_lt_u32 s62, 16')
    a2('s_cbranch_scc1 K_S1')
    for i in range(8): a2(f'v_mov_b32 v{SA+i}, v{MX+i}')
    a2('s_nop 1')
    for i in range(8): a2(f'v_permlane32_swap_b32 v{MX+i}, v{SA+i}')
    a2('s_nop 1')
    for i in range(8): a2(f'v_max_f32 v{MX+i}, v{MX+i}, v{SA+i}')
    a2(f'v_mov_b32 v12, {L_CNT+12}')
    gbar_wait(a2, 12, 13, 20)
    a2('s_lshl_b32 s53, s36, 11')
    a2(f's_add_u32 s53, s53, {L_MX}')
    a2('v_add_u32 v42, s53, v9')
    for i in range(8): a2(f'ds_write_b32 v42, v{MX+i} offset:{256*i}')
    a2(f'v_mov_b32 v12, {L_CNT+16}')
    a2('v_mov_b32 v13, 1')
    a2('s_waitcnt lgkmcnt(0)')
    gbar_arrive(a2, 12, 13)
    gbar_wait(a2, 12, 13, 4)
    a2(f'v_add_u32 v42, {L_MX}, v9')
    for q in range(4):
        for i in range(8): a2(f'ds_read_b32 v{SA+i}, v42 offset:{2048*q+256*i}')
        a2('s_waitcnt lgkmcnt(0)')
        for i in range(8): a2(f'v_max_f32 v{MX+i}, v{MX+i}, v{SA+i}')
    a2('s_mov_b32 s61, s40'); a2('s_mov_b32 s60, s41')
    a2('s_mov_b32 s62, 0')
    a2.label('K_S2')
    a2(f'buffer_load_dwordx4 {R(KB[0],4)}, v5, {W_}, s61 offen sc1')
    a2('s_mov_b64 exec, s[50:51]')
    a2(f'buffer_load_dwordx4 {R(VB[0],4)}, v6, {W_}, s60 offen sc1')
    a2(f'buffer_load_dwordx4 {R(VB[0]+4,4)}, v6, {W_}, s60 offen offset:512 sc1')
    a2('s_mov_b64 exec, -1')
    a2('s_waitcnt vmcnt(0)')
    for i in range(8):
        a2(f'v_mfma_f32_32x32x16_bf16 {R(SA,16)}, {R(KB[0],4)}, {R(QF+4*i,4)}, 0')
        a2('s_nop 7'); a2('s_nop 7')
        for r in range(16): a2(f'v_sub_f32 v{SA+r}, v{SA+r}, v{MX+i}')
        for r in range(16): a2(f'v_exp_f32 v{SA+r}, v{SA+r}')
        a2('s_nop 1')
        a2(f'v_smfmac_f32_32x32x32_bf16 {R(OA[i],16)}, {R(VB[0],4)}, {R(SA,8)}, v{IDX}')
        a2(f'v_smfmac_f32_32x32x32_bf16 {R(OA[i],16)}, {R(VB[0]+4,4)}, {R(SA+8,8)}, v{IDX}')
        a2('s_nop 7')
    a2('s_add_u32 s61, s61, 1024')
    a2('s_add_u32 s60, s60, 1024')
    a2('s_add_u32 s62, s62, 1')
    a2('s_cmp_lt_u32 s62, 16')
    a2('s_cbranch_scc1 K_S2')
    a2(f'v_mov_b32 v42, {L_CNT+G2CNT}')
    a2('v_mov_b32 v43, 1')
    gbar_arrive(a2, 42, 43)
    a2('s_waitcnt lgkmcnt(0)')
    a2('s_wakeup')
    a2('s_nop 7')
    a2('s_branch K_ATT_DONE')
    return 'K_START:\n'+a.text()+'\n'+h.text()+'\n'+g.text()+'\n'+a2.text()+'\n'+ool.text()+'\nK_END:\n  s_endpgm\n'

HEADER=open('cdna_kernels/'+NAME+'.s.ref').read().split('; Override launch geometry')[0]
def assemble(body):
    n=NAME+'_kernel'
    return HEADER+f'''; @launch grid=(256,1,1) block=(512,1,1) lds={LDS_TOTAL}
.amdgcn_target "amdgcn-amd-amdhsa--gfx950"
.text
.globl {n}
.p2align 8
.type {n},@function
{n}:
{body}
.section .rodata,"a"
.p2align 6
.amdhsa_kernel {n}
  .amdhsa_next_free_vgpr 256
  .amdhsa_next_free_sgpr 102
  .amdhsa_accum_offset 256
  .amdhsa_group_segment_fixed_size 0
  .amdhsa_kernarg_size 88
  .amdhsa_user_sgpr_count 2
  .amdhsa_user_sgpr_kernarg_segment_ptr 1
  .amdhsa_system_sgpr_workgroup_id_x 1
  .amdhsa_float_denorm_mode_32 3
.end_amdhsa_kernel
'''
if __name__=='__main__':
    outp=sys.argv[1]
    if 'stamp' in sys.argv: STAMP=True
    OPT.update(sys.argv[2:])
    for o_ in list(OPT):
        if o_.startswith('PD='): POLLD=int(o_[3:])
    open(outp,'w').write(assemble(gen()))
    print('wrote',outp)
```

```python
import sys, struct
NAME='parallel_sum__softmax_full_mha__mixer_channel_mlp__prompt'

WS_F = 0
F_1, F_2, F_3 = 32768, 65536, 98304
WS_N = 256<<10
WS_Q = 1<<20
WS_K = 3<<20
WS_V = 5<<20
WS_O = 7<<20
WS_H = 9<<20
WS_T = 15<<20
WS_SIZE = 16<<20
QSCALE = 0.25*1.4426950408889634
T_LOG2 = 48.0
SPIN_MAX = 1<<20
POLLD = 1

def f2u(f): return struct.unpack('<I', struct.pack('<f', f))[0]

STAMP=False
OPT=set()
class Asm:
    def __init__(self):
        self.L=[]; self.vmq=[]; self.lgq=[]
    def __call__(self, s): self.L.append('  '+s)
    def c(self, s): self.L.append('  ; '+s)
    def label(self, n): self.L.append(n+':')
    def vm(self, tag, s):
        self.vmq.append(tag); self(s)
    def wait_vm(self, tags):
        if isinstance(tags,str): tags=[tags]
        idx=[i for i,t in enumerate(self.vmq) if t in tags]
        if not idx: return
        last=max(idx); n=len(self.vmq)-1-last
        assert n<=63
        self(f's_waitcnt vmcnt({n})')
        self.vmq=self.vmq[last+1:]
    def lg(self, tag, s):
        self.lgq.append(tag); self(s)
    def wait_lg(self, tags):
        if isinstance(tags,str): tags=[tags]
        idx=[i for i,t in enumerate(self.lgq) if t in tags]
        if not idx: return
        last=max(idx); n=len(self.lgq)-1-last
        if n<=15: self(f's_waitcnt lgkmcnt({n})')
        self.lgq=self.lgq[last+1:]
    def wait_vm_all(self):
        self('s_waitcnt vmcnt(0)'); self.vmq=[]
    def text(self): return '\n'.join(self.L)

RTMAP={3:1, 9:2, 10:4}
def fstamp(a, i):
    if STAMP and 'fine' in OPT and 'fe' not in OPT: a(f's_memtime s[{70+2*i}:{71+2*i}]')
def estamp(a, i):
    if STAMP and 'fe' in OPT: a(f's_memtime s[{70+2*i}:{71+2*i}]')
def stamp(a, i):
    if STAMP:
        if 'stg' in OPT and i!=0: return
        if 'span' in OPT: return
        if 'fine' in OPT: return
        if 'rt' in OPT and i in (1,2,4) : return
        if 'abs' in OPT:
            a(f's_memrealtime s[{70+2*i}:{71+2*i}]'); return
        a(f's_memtime s[{70+2*i}:{71+2*i}]')
        if 'rt' in OPT and i in RTMAP:
            j=RTMAP[i]; a(f's_memrealtime s[{70+2*j}:{71+2*j}]')
def stamp_flush(a, n):
    if not STAMP: return
    a('s_waitcnt vmcnt(0) lgkmcnt(0)')
    a('s_lshl_b32 s69, s2, 3')
    a('s_add_u32 s69, s69, s36')
    a('s_lshl_b32 s69, s69, 6')
    a(f's_add_u32 s69, s69, {WS_T}')
    a('v_mov_b32 v2, 0')
    for i in range(n):
        a(f'v_mov_b32 v3, s{70+2*i}')
        a('s_mov_b64 exec, 1')
        a(f'buffer_store_dword v3, v2, s[28:31], s69 offen offset:{4*i}')
        a('s_mov_b64 exec, -1')
        a('s_nop 1')

def stamp_dbg(a):
    if not (STAMP and 'dbg' in OPT): return
    lab=newlab('DBG')
    a('s_cmp_eq_u32 s2, 37')
    a(f's_cbranch_scc0 {lab}')
    a('s_cmp_eq_u32 s36, 0')
    a(f's_cbranch_scc0 {lab}')
    a('s_load_dwordx2 s[66:67], s[0:1], 72')
    if 'abs' in OPT:
        a('s_waitcnt lgkmcnt(0)')
    else:
        a('s_memrealtime s[92:93]')
        a('s_memtime s[100:101]')
        a('s_waitcnt lgkmcnt(0)')
        a('s_sub_u32 s92, s92, s82')
        a('s_add_u32 s92, s92, s70')
    if 'rt' in OPT:
        for j in (1,2,4):
            a(f's_sub_u32 s{70+2*j}, s{70+2*j}, s82'); a(f's_add_u32 s{70+2*j}, s{70+2*j}, s70')
    if 'abs' not in OPT: a('s_mov_b32 s82, s70')
    a('s_mov_b32 s40, s66'); a('s_mov_b32 s41, s67'); a('s_mov_b32 s42, 256'); a('s_mov_b32 s43, 0x00020000')
    a('v_mov_b32 v2, 0')
    a('s_mov_b64 exec, 1')
    for i in range(16):
        a(f's_sub_u32 s3, s{70+2*i}, s70')
        a('v_mov_b32 v3, s3')
        a(f'buffer_store_dword v3, v2, s[40:43], 0 offen offset:{4*i}')
        a('s_nop 1')
    a('s_mov_b64 exec, -1')
    a.label(lab)

def R(a,n=1): return f'v{a}' if n==1 else f'v[{a}:{a+n-1}]'
def SR(a): return f's[{a}:{a+3}]'
def srd(a, d, ptr, size):
    a(f's_mov_b32 s{d}, s{ptr}')
    a(f's_mov_b32 s{d+1}, s{ptr+1}')
    a(f's_mov_b32 s{d+2}, {size}')
    a(f's_mov_b32 s{d+3}, 0x00020000')
def pk(op, d, a_, b_, c_=None, bsel=None, csel=None, neg=None):
    ops=[a_,b_]+([c_] if c_ is not None else [])
    n=len(ops)
    txt=[ (f'v[{o}:{o+1}]' if isinstance(o,int) else o) for o in ops]
    hi=[1]*n
    if bsel=='lo': hi[1]=0
    if csel=='lo': hi[2]=0
    s_=f'v_pk_{op}_f32 v[{d}:{d+1}], '+', '.join(txt)
    if hi!=[1]*n: s_+=' op_sel_hi:['+','.join(map(str,hi))+']'
    if neg: s_+=' '+neg
    return s_

pX,pWQ,pWO,pW1,pB1,pW2,pB2,pOUT,pWS = 4,6,8,12,14,16,18,20,22
sWS=28
W_=SR(sWS)

SLOT=28672; XS=16384; WST=12288
W1_SPARE=5*SLOT
SCR=W1_SPARE+WST
L_A=SCR; L_MU=SCR+512; L_CS=SCR+1024; L_CS1=SCR+1536; L_B1=SCR+2048; L_A2=SCR+2560; L_A2M=SCR+3072
L_CNT=SCR+4096
LDS_TOTAL=163840
W1_ADDR=[W1_SPARE, 3*SLOT, 3*SLOT+WST, 4*SLOT, 4*SLOT+WST, 0, WST, SLOT]
A_SLOT=[0,1,2,3,4,0,1,2]
L_RED=0
L_RING=73728
RINGSZ=20480; WD=10; XD=18
L_MX=57344
G2CNT=32; G2TGT=4
L_WO=0
L_OX=65536
L_EX=131072

uid=[0]
def newlab(p):
    uid[0]+=1; return f'{p}_{uid[0]}'

def poll(a, nl, voff, soff, vt, wide=False):
    PD=POLLD
    lab=newlab('POLL'); done=newlab('POLLD')
    mask=(1<<nl)-1
    a(f's_mov_b32 s66, {mask:#x}')
    a('s_mov_b32 s67, 0')
    a(f's_mov_b32 s68, {SPIN_MAX}')
    a('s_waitcnt vmcnt(0)')
    a('s_mov_b64 exec, s[66:67]')
    for k in range(PD-1):
        a(f'buffer_load_dwordx2 v[{vt+2*k}:{vt+2*k+1}], {voff}, {W_}, {soff} offen sc1')
        if PD>1: a('s_sleep 2')
    a.label(lab)
    for k in range(PD):
        kn=(k+PD-1)%PD
        if wide:
            assert PD==1
            a(f'buffer_load_dwordx4 v[{vt}:{vt+3}], {voff}, {W_}, {soff} offen sc1')
        else:
            a(f'buffer_load_dwordx2 v[{vt+2*kn}:{vt+2*kn+1}], {voff}, {W_}, {soff} offen sc1')
        a(f's_waitcnt vmcnt({PD-1})')
        a(f'v_cmp_eq_u64 vcc, s[64:65], v[{vt+2*k}:{vt+2*k+1}]')
        a('s_sub_u32 s68, s68, 1')
        a('s_cmp_eq_u32 s68, 0')
        a(f's_cbranch_scc1 {done}')
        a('s_cmp_eq_u64 vcc, s[66:67]')
        a(f's_cbranch_scc1 {done}')
        a('s_sleep 2')
    a(f's_branch {lab}')
    a.label(done)
    a('s_mov_b64 exec, -1')
    a.vmq=[]

def poll_wg(a, nl, voff, soff, vt, leader, lds_addr, bounds=False):
    oth=newlab('PWO'); done=newlab('PWD')
    va=vt+(4 if bounds else 2*POLLD)
    a(f'v_mov_b32 v{va}, {lds_addr}')
    a(f's_cmp_eq_u32 s36, {leader}')
    a(f's_cbranch_scc0 {oth}')
    poll(a, nl, voff, soff, vt, wide=bounds)
    a(f'v_mov_b32 v{va+1}, 1')
    a('s_mov_b64 exec, 1')
    a(f'ds_write_b32 v{va}, v{va+1}')
    a('s_mov_b64 exec, -1')
    a('s_waitcnt lgkmcnt(0)')
    a('s_wakeup')
    a(f's_branch {done}')
    a.label(oth)
    lab=newlab('PWL')
    a.label(lab)
    a(f'ds_read_b32 v{va+1}, v{va}')
    a('s_waitcnt lgkmcnt(0)')
    a(f'v_readfirstlane_b32 s66, v{va+1}')
    a('s_nop 0')
    a('s_cmp_eq_u32 s66, 0')
    a(f's_cbranch_scc0 {done}')
    a('s_sleep 8')
    a(f's_branch {lab}')
    a.label(done)
    a.vmq=[]

def bounds_decision(a, vt, leader):
    skip=newlab('BD'); va=vt+4
    a(f's_cmp_eq_u32 s36, {leader}')
    a(f's_cbranch_scc0 {skip}')
    k_,q_,v_=va+2,va+3,vt+3
    a(f'v_lshlrev_b32 v{k_}, 16, v{vt+2}')
    a(f'v_and_b32 v{q_}, 0xffff0000, v{vt+2}')
    a('s_nop 1')
    for sh in (1,2,4,8):
        for r in (k_,q_,v_): a(f'v_max_f32_dpp v{r}, v{r}, v{r} row_shr:{sh} row_mask:0xf bank_mask:0xf')
    a(f'v_mul_f32 v{k_}, v{k_}, v{q_}')
    a(f'v_mul_f32 v{k_}, {f2u(1.05):#x}, v{k_}')
    a(f'v_mov_b32 v{q_}, {f2u(T_LOG2*T_LOG2):#x}')
    a(f'v_cmp_le_f32 vcc, v{k_}, v{q_}')
    a(f'v_mov_b32 v{q_}, {f2u(2.0**60):#x}')
    a(f'v_cmp_le_f32 s[66:67], v{v_}, v{q_}')
    a(f'v_mov_b32 v{va}, {L_CNT+36}')
    a('s_nop 0')
    a('s_and_b64 vcc, vcc, s[66:67]')
    a('s_bitcmp1_b64 vcc, 15')
    a('s_cselect_b32 s66, 1, 2')
    a(f'v_mov_b32 v{va+1}, s66')
    a('s_mov_b64 exec, 1')
    a(f'ds_write_b32 v{va}, v{va+1}')
    a('s_mov_b64 exec, -1')
    a.label(skip)

def signal(a, cnt_addr, last, flag_soff, vt):
    skip=newlab('SIG')
    a(f'v_mov_b32 v{vt}, {cnt_addr}')
    a(f'v_mov_b32 v{vt+1}, 1')
    a('s_mov_b64 exec, 1')
    a(f'ds_add_rtn_u32 v{vt+2}, v{vt}, v{vt+1}')
    a('s_waitcnt lgkmcnt(0)')
    a(f'v_readfirstlane_b32 s66, v{vt+2}')
    a(f'v_mov_b32 v{vt}, s64')
    a(f'v_mov_b32 v{vt+1}, s65')
    a(f'v_mov_b32 v{vt+2}, 0')
    a(f's_cmp_eq_u32 s66, {last}')
    a(f's_cbranch_scc0 {skip}')
    a(f'buffer_store_dwordx2 v[{vt}:{vt+1}], v{vt+2}, {W_}, {flag_soff} offen sc1')
    a.label(skip)
    a('s_mov_b64 exec, -1')

def gbar_arrive(a, vaddr, vone):
    a('s_mov_b64 exec, 1')
    a(f'ds_add_u32 v{vaddr}, v{vone}')
    a('s_mov_b64 exec, -1')
def gbar_wait(a, vaddr, vt, target):
    lab=newlab('GB')
    a.label(lab)
    a(f'ds_read_b32 v{vt}, v{vaddr}')
    a('s_waitcnt lgkmcnt(0)')
    a(f'v_readfirstlane_b32 s3, v{vt}')
    a('s_nop 0')
    a(f's_cmp_ge_u32 s3, {target}')
    a(f's_cbranch_scc0 {lab}')

def gen():
    a=Asm()
    a('s_cmp_ge_u32 s2, 256')
    a('s_cbranch_scc1 K_END')
    stamp(a,0)
    if STAMP and ('dbg' in OPT or 'rt' in OPT or 'span' in OPT) and 'abs' not in OPT: a('s_memrealtime s[82:83]')
    a('s_load_dwordx16 s[4:19], s[0:1], 0')
    a('s_load_dwordx2 s[20:21], s[0:1], 64')
    a('s_load_dwordx2 s[22:23], s[0:1], 80')
    a('v_and_b32 v1, 63, v0')
    a('v_lshrrev_b32 v2, 6, v0')
    a('s_and_b32 s48, s2, 7')
    a('v_readfirstlane_b32 s36, v2')
    a('s_lshr_b32 s49, s2, 3')
    a('s_and_b32 s50, s48, 1')
    a('s_lshr_b32 s51, s48, 1')
    a('s_lshl_b32 s50, s50, 3')
    a('s_and_b32 s52, s49, 7')
    a('s_add_u32 s38, s50, s52')
    a('s_lshl_b32 s51, s51, 2')
    a('s_lshr_b32 s52, s49, 3')
    a('s_add_u32 s39, s51, s52')
    a('s_and_b32 s37, s36, 3')
    a('v_and_b32 v3, 31, v1')
    a('v_lshrrev_b32 v4, 5, v1')
    a('s_cmp_ge_u32 s36, 4')
    a('s_cbranch_scc1 K_G1')
    a('s_getpc_b64 s[62:63]')
    a.label('PF_0')
    a('s_sub_u32 s62, s62, PF_0-K_START')
    a('s_subb_u32 s63, s63, 0')
    a('s_lshr_b32 s60, s2, 3')
    a('s_and_b32 s60, s60, 7')
    a('s_lshl_b32 s60, s60, 2')
    a('s_add_u32 s60, s60, s37')
    a('s_lshl_b32 s60, s60, 10')
    a('v_lshlrev_b32 v9, 4, v1')
    a('v_add_u32 v9, s60, v9')
    a('v_min_u32 v10, K_END-K_START-16, v9')
    a('global_load_dwordx4 v[200:203], v10, s[62:63]')
    a('v_add_u32 v9, 0x8000, v9')
    a('v_min_u32 v10, K_END-K_START-16, v9')
    a('global_load_dwordx4 v[204:207], v10, s[62:63]')
    a('s_branch K_G0')

    def common_lds_addr(e):
        e('v_bfe_u32 v5, v1, 1, 3')
        e('v_xor_b32 v5, v5, v4')
        e('v_lshlrev_b32 v5, 4, v5')
        e('s_lshl_b32 s3, s37, 12')
        e('v_lshlrev_b32 v6, 7, v3')
        e('v_add3_u32 v12, v6, v5, s3')
        e('v_xor_b32 v13, 32, v12')
        e('v_xor_b32 v14, 64, v12')
        e('v_xor_b32 v15, 0x60, v12')
        e('v_lshlrev_b32 v6, 3, v4')
        e('v_bfe_u32 v7, v1, 2, 2')
        e('v_add_u32 v6, v6, v7')
        e('v_mul_u32_u24 v6, 192, v6')
        e('v_bfe_u32 v7, v1, 4, 1')
        e('v_lshlrev_b32 v7, 5, v7')
        e('v_and_b32 v8, 3, v1')
        e('v_lshlrev_b32 v8, 3, v8')
        e('v_add3_u32 v16, v6, v7, v8')

    g=Asm()
    g.label('K_G0')
    accQ,accK,accV=64,80,96
    FS0=[128,144,160,176]
    common_lds_addr(g)
    for r in range(64,112): g(f'v_mov_b32 v{r}, 0')
    g(f'v_add_u32 v17, {XS}, v16')
    g(f's_mov_b32 s56, {(-4*SLOT)&0xffffffff:#x}')
    g(f's_mov_b32 s57, {SLOT}')
    g(f'v_lshlrev_b32 v18, 2, v1')
    g(f'v_add_u32 v18, {L_CNT}, v18')
    g('v_mov_b32 v19, 0')
    g('s_mov_b64 exec, 0xffff')
    g('ds_write_b32 v18, v19')
    g('s_mov_b64 exec, -1')
    g('s_lshl_b32 s48, s37, 7')
    g('v_lshlrev_b32 v20, 2, v3')
    g('v_add_u32 v20, s48, v20')
    g(f'v_add_u32 v20, {L_A}, v20')
    g('v_lshlrev_b32 v23, 4, v4')
    g(f'v_add_u32 v24, {L_CS}, v23')
    g('v_lshlrev_b32 v25, 2, v3')
    g(f'v_add_u32 v25, {L_CS+64*4}, v25')
    g('v_add_u32 v27, s48, v23')
    g(f'v_add_u32 v27, {L_A}, v27')
    g('s_lshl_b32 s49, s38, 2')
    g('s_add_u32 s49, s49, s37')
    g('s_lshl_b32 s50, s49, 10')
    g('s_lshl_b32 s51, s39, 17')
    g('s_add_u32 s50, s50, s51')
    g(f's_add_u32 s52, s50, {WS_K}')
    g(f's_add_u32 s53, s50, {WS_K+65536}')
    g(f's_add_u32 s54, s50, {WS_V}')
    g(f's_add_u32 s51, s50, {WS_Q+65536}')
    g(f's_add_u32 s50, s50, {WS_Q}')
    g('v_lshlrev_b32 v28, 4, v1')
    g('v_and_b32 v29, 0x13, v3')
    g('v_bfe_u32 v30, v3, 2, 1')
    g('v_lshlrev_b32 v30, 3, v30')
    g('v_bfe_u32 v31, v3, 3, 1')
    g('v_lshlrev_b32 v31, 2, v31')
    g('v_or3_b32 v29, v29, v30, v31')
    g('v_lshlrev_b32 v30, 5, v4')
    g('v_add_u32 v29, v29, v30')
    g('v_lshlrev_b32 v29, 4, v29')
    g('v_bfe_u32 v30, v3, 4, 1')
    g('v_lshlrev_b32 v30, 16, v30')
    g('v_lshlrev_b32 v31, 8, v4')
    g('v_and_b32 v32, 15, v3')
    g('v_lshlrev_b32 v32, 4, v32')
    g('v_add3_u32 v30, v30, v31, v32')
    g('s_mul_i32 s55, s39, 1536')
    g('s_lshl_b32 s58, s49, 2')
    g('s_add_u32 s55, s55, s58')
    g(f's_add_u32 s55, s55, {WS_N}')
    g('v_lshlrev_b32 v31, 8, v4')
    g('s_waitcnt lgkmcnt(0)')
    srd(g,sWS,pWS,WS_SIZE)
    g(f's_load_dwordx2 s[64:65], s[{pWS}:{pWS+1}], 0')
    if 'tlb' in OPT:
        g('v_mov_b32 v40, 0')
        g('v_mov_b32 v41, 0')
        g('s_mov_b64 exec, 1')
        for sreg in ('s50','s52','s54'):
            g(f'buffer_store_dword v40, v41, {W_}, {sreg} offen sc1')
        g(f'buffer_store_dword v40, v41, {W_}, s55 offen sc1')
        g('s_mov_b64 exec, -1')
        g('v_lshlrev_b32 v41, 21, v1')
        g(f's_mov_b32 s40, s{pW2}'); g(f's_mov_b32 s41, s{pW2+1}'); g(f's_mov_b32 s42, {1376*512*2}'); g('s_mov_b32 s43, 0x00020000')
        g('buffer_load_dword v208, v41, s[40:43], 0 offen')
        g(f's_mov_b32 s44, s{pWO}'); g(f's_mov_b32 s45, s{pWO+1}'); g(f's_mov_b32 s46, {512*512*2}'); g('s_mov_b32 s47, 0x00020000')
        g('buffer_load_dword v209, v41, s[44:47], 0 offen')
        g(f's_mov_b32 s40, s{pOUT}'); g(f's_mov_b32 s41, s{pOUT+1}'); g(f's_mov_b32 s42, {2048*512*2}')
        g('buffer_load_dword v210, v41, s[40:43], 0 offen')
    def readlist(set_, ks):
        L=[f'ds_read_b128 {R(set_,4)}, v{12+ks}']
        for t in range(3):
            for e in range(2):
                L.append(f'ds_read_b64_tr_b16 {R(set_+4+4*t+2*e,2)}, v17 offset:{ks*3072+e*768+t*64}')
        return L
    def mfmalist(set_):
        return [f'v_mfma_f32_32x32x16_bf16 {R(accQ,16)}, {R(set_+4,4)}, {R(set_,4)}, {R(accQ,16)}',
                f'v_mfma_f32_32x32x16_bf16 {R(accK,16)}, {R(set_+8,4)}, {R(set_,4)}, {R(accK,16)}',
                f'v_mfma_f32_32x32x16_bf16 {R(accV,16)}, {R(set_,4)}, {R(set_+12,4)}, {R(accV,16)}']
    g('s_waitcnt lgkmcnt(0)')
    g('s_add_u32 s64, s64, 0x7f4a7c15')
    g('s_addc_u32 s65, s65, 0x9e3779b9')
    stamp(g,1)
    for st in range(8):
        if st==5: fstamp(g,0)
        g('s_barrier')
        if st==5: fstamp(g,1)
        if st==6: fstamp(g,10)
        if st==0: stamp(g,2)
        for ks in range(4):
            rl=readlist(FS0[ks],ks); ml=mfmalist(FS0[(ks+2)%4])
            if st==5: fstamp(g,2+2*ks)
            if st==0 and ks<2:
                for r_ in rl: g(r_)
                continue
            g('s_waitcnt lgkmcnt(7)')
            if st==5: fstamp(g,3+2*ks)
            g(ml[0]); g(rl[0]); g(rl[1]); g(rl[2])
            g(ml[1]); g(rl[3]); g(rl[4])
            if 'noq' not in OPT: g(ml[2])
            g(rl[5]); g(rl[6])
        if st<7:
            sr='s57' if A_SLOT[st+1]>A_SLOT[st] else 's56'
            for r in (12,13,14,15,17): g(f'v_add_u32 v{r}, {sr}, v{r}')
    g('s_waitcnt lgkmcnt(7)')
    for m in mfmalist(FS0[2]): g(m)
    g('s_waitcnt lgkmcnt(0)')
    for m in mfmalist(FS0[3]): g(m)
    stamp(g,3)
    estamp(g,0)
    g('s_barrier')
    g('s_setprio 3')
    estamp(g,1)
    CSQ=128; CSK=144; AV=160; MV=176
    g('ds_read_b32 v21, v20')
    g(f'ds_read_b32 v22, v20 offset:{L_MU-L_A}')
    for gg in range(4): g(f'ds_read_b128 {R(CSK+4*gg,4)}, v24 offset:{(32+8*gg)*4}')
    g('ds_read_b32 v26, v25')
    for gg in range(4): g(f'ds_read_b128 {R(MV+4*gg,4)}, v27 offset:{8*gg*4+L_MU-L_A}')
    for gg in range(4): g(f'ds_read_b128 {R(AV+4*gg,4)}, v27 offset:{8*gg*4}')
    g('s_waitcnt lgkmcnt(13)')
    g('v_mul_f32 v38, v21, v22')
    g(f'v_mul_f32 v34, {f2u(QSCALE):#x}, v21')
    g('v_sub_f32 v38, 0, v38')
    g(f'v_mul_f32 v36, {f2u(QSCALE):#x}, v38')
    g('s_waitcnt lgkmcnt(9)')
    estamp(g,2)
    for r in range(16): g(f'v_mul_f32 v{CSK+r}, v38, v{CSK+r}')
    for r in range(16): g(f'v_fmac_f32 v{CSK+r}, v21, v{accK+r}')
    for i in range(8): g(f'v_cvt_pk_bf16_f32 v{accK+i}, v{CSK+2*i}, v{CSK+2*i+1}')
    estamp(g,3)
    g(f'buffer_store_dwordx4 {R(accK,4)}, v29, {W_}, s52 offen sc1')
    g(f'buffer_store_dwordx4 {R(accK+4,4)}, v29, {W_}, s53 offen sc1')
    estamp(g,4)
    for gg in range(4): g(f'ds_read_b128 {R(CSQ+4*gg,4)}, v24 offset:{(8*gg)*4}')
    g('s_waitcnt lgkmcnt(8)')
    g('v_sub_f32 v26, 0, v26')
    g('s_waitcnt lgkmcnt(4)')
    for r in range(16): g(f'v_fmac_f32 v{accV+r}, v26, v{MV+r}')
    for r in range(16): g(f'v_mul_f32 v{accV+r}, v{accV+r}, v{AV+r}')
    for i in range(8): g(f'v_cvt_pk_bf16_f32 v{AV+i}, v{accV+2*i}, v{accV+2*i+1}')
    estamp(g,5)
    g(f'buffer_store_dwordx4 {R(AV,4)}, v30, {W_}, s54 offen sc1')
    g(f'buffer_store_dwordx4 {R(AV+4,4)}, v30, {W_}, s54 offen offset:512 sc1')
    g('s_waitcnt lgkmcnt(0)')
    estamp(g,6)
    for r in range(16): g(f'v_mul_f32 v{CSQ+r}, v36, v{CSQ+r}')
    for r in range(16): g(f'v_fmac_f32 v{CSQ+r}, v34, v{accQ+r}')
    for i in range(8): g(f'v_cvt_pk_bf16_f32 v{accQ+i}, v{CSQ+2*i}, v{CSQ+2*i+1}')
    g(f'buffer_store_dwordx4 {R(accQ,4)}, v28, {W_}, s50 offen sc1')
    g(f'buffer_store_dwordx4 {R(accQ+4,4)}, v28, {W_}, s51 offen sc1')
    estamp(g,7)
    for (b,src) in ((42,CSK),(46,CSQ)):
        g(f'v_mul_f32 v{b}, v{src}, v{src}'); g(f'v_mul_f32 v{b+1}, v{src+8}, v{src+8}')
        for i in range(1,8):
            g(f'v_fmac_f32 v{b}, v{src+i}, v{src+i}'); g(f'v_fmac_f32 v{b+1}, v{src+8+i}, v{src+8+i}')
    g(f'v_max3_f32 v38, |v{accV}|, |v{accV+1}|, |v{accV+2}|')
    g('v_max_f32 v34, v42, v43')
    g('v_max_f32 v35, v46, v47')
    for r in range(3,15,2): g(f'v_max3_f32 v38, v38, |v{accV+r}|, |v{accV+r+1}|')
    g(f'v_max_f32 v36, v38, |v{accV+15}|')
    g('s_nop 1')
    for sh in (1,2,4,8):
        for r in (34,35,36): g(f'v_max_f32_dpp v{r}, v{r}, v{r} row_shr:{sh} row_mask:0xf bank_mask:0xf')
    for r in (34,35,36): g(f'v_max_f32_dpp v{r}, v{r}, v{r} row_bcast:15 row_mask:0xa bank_mask:0xf')
    g('s_nop 1')
    estamp(g,8)
    stamp(g,4)
    for i in range(3): g(f'v_mov_b32 v{40+i}, v{34+i}')
    g('s_nop 1')
    for i in range(3): g(f'v_permlane32_swap_b32 v{34+i}, v{40+i}')
    g('s_nop 1')
    g('v_add_f32 v34, v34, v40')
    g('v_add_f32 v35, v35, v41')
    g('v_max_f32 v36, v36, v42')
    g(f'v_mov_b32 v40, {L_CNT+48}')
    g('s_mov_b32 s66, 0x80000000')
    g('s_mov_b32 s67, 0')
    g('s_mov_b64 exec, s[66:67]')
    g('ds_max_u32 v40, v34')
    g('ds_max_u32 v40, v35 offset:4')
    g('ds_max_u32 v40, v36 offset:8')
    g('s_mov_b64 exec, -1')
    g('s_setprio 0')
    g('s_lshl_b32 s48, s39, 4')
    g('s_add_u32 s48, s48, s38')
    g('s_lshl_b32 s48, s48, 7')
    g(f's_add_u32 s48, s48, {F_1}')
    g(f'v_mov_b32 v44, {L_CNT}')
    g('v_mov_b32 v45, 1')
    g('s_waitcnt vmcnt(0) lgkmcnt(0)')
    estamp(g,10)
    skip=newlab('SIG1')
    g('s_mov_b64 exec, 1')
    g('ds_add_rtn_u32 v46, v44, v45')
    g('ds_read_b128 v[48:51], v40')
    g('s_waitcnt lgkmcnt(0)')
    g('v_readfirstlane_b32 s66, v46')
    g('v_add_u32 v48, 0xffff, v48')
    g('v_add_u32 v49, 0xffff, v49')
    g('v_lshrrev_b32 v48, 16, v48')
    g('v_and_b32 v49, 0xffff0000, v49')
    g('v_or_b32 v54, v48, v49')
    g('v_mov_b32 v55, v50')
    g('v_mov_b32 v52, s64')
    g('v_mov_b32 v53, s65')
    g('v_mov_b32 v46, 0')
    g('s_cmp_eq_u32 s66, 3')
    g(f's_cbranch_scc0 {skip}')
    g(f'buffer_store_dwordx4 v[52:55], v46, {W_}, s48 offen sc1')
    g.label(skip)
    g('s_mov_b64 exec, -1')
    stamp(g,5)

    h=Asm()
    h.label('K_G1')
    h('s_setprio 2')
    sX,sWQ,sW1,sB1=24,32,40,44
    XF=128
    h('v_lshrrev_b32 v20, 3, v1')
    h('v_and_b32 v21, 7, v1')
    h('v_lshrrev_b32 v22, 4, v1')
    h('v_xor_b32 v21, v21, v22')
    h('v_lshlrev_b32 v20, 10, v20')
    h('v_lshlrev_b32 v22, 4, v21')
    h('v_add_u32 v2, v20, v22')
    h('v_xor_b32 v22, 64, v22')
    h('v_add_u32 v22, 7168, v22')
    h('v_add_u32 v18, v20, v22')
    h('v_add_u32 v19, 14336, v2')
    h('v_add_u32 v20, 14336, v18')
    VX=[2,18,19,20]
    VW=[21,22,23]; VW1=[24,25,26]
    h('s_lshl_b32 s50, s38, 17')
    h('s_lshl_b32 s51, s37, 15')
    h('s_add_u32 s50, s50, s51')
    h('s_lshl_b32 s53, s37, 12')
    h('s_and_b32 s58, s39, 3')
    h('s_lshl_b32 s58, s58, 1')
    h('s_add_u32 s58, s58, s38')
    h('s_and_b32 s58, s58, 7')
    def dmaX(st):
        slot=A_SLOT[st]*SLOT; L=[]
        L.append((f's_add_u32 s61, s58, {st}',None))
        L.append(('s_and_b32 s61, s61, 7',None))
        L.append((f's_add_u32 m0, s53, {slot}',None))
        L.append(('s_lshl_b32 s55, s61, 7',None))
        L.append(('s_add_u32 s55, s55, s50',None))
        for i in range(4):
            L.append((f'buffer_load_dwordx4 v{VX[i]}, {SR(sX)}, s55 offen offset:{1024*i}{" nt" if "ntx" in OPT else ""} lds',f'A{st}'))
        return L
    def emit(e, dmas):
        for (ins,tag) in dmas:
            if tag: e.vm(tag,ins)
            else: e(ins)
    h('s_waitcnt lgkmcnt(0)')
    srd(h,sX,pX,2048*512*2)
    emit(h,dmaX(0))
    for p in range(3):
        h(f'v_add_u32 v27, {64*p}, v1')
        h('v_mul_u32_u24 v28, 43691, v27')
        h('v_lshrrev_b32 v28, 19, v28')
        h('v_mul_u32_u24 v29, 12, v28')
        h('v_sub_u32 v29, v27, v29')
        h('v_lshrrev_b32 v30, 2, v29')
        h('v_lshlrev_b32 v30, 10, v30')
        h('v_and_b32 v31, 3, v29')
        h('v_lshlrev_b32 v31, 4, v31')
        h('v_mul_u32_u24 v32, 3072, v28')
        h(f'v_add3_u32 v{VW[p]}, v32, v30, v31')
        if p: h(f'v_subrev_u32 v{VW[p]}, {1024*p}, v{VW[p]}')
        h(f'v_mov_b32 v{33+2*p}, v28')
        h(f'v_mov_b32 v{34+2*p}, v29')
    h('s_mul_i32 s51, s37, 49152')
    h('s_lshl_b32 s52, s39, 6')
    h('s_add_u32 s51, s51, s52')
    h('s_mul_i32 s54, s37, 3072')
    srd(h,sWQ,pWQ,512*1536*2)
    def dmaW(st):
        slot=A_SLOT[st]*SLOT; L=[]
        L.append((f's_add_u32 s61, s58, {st}',None))
        L.append(('s_and_b32 s61, s61, 7',None))
        L.append((f's_add_u32 m0, s54, {slot+XS}',None))
        L.append((f's_mul_i32 s55, s61, {64*3072}',None))
        L.append(('s_add_u32 s55, s55, s51',None))
        for p in range(3):
            L.append((f'buffer_load_dwordx4 v{VW[p]}, {SR(sWQ)}, s55 offen offset:{1024*p}{" nt" if "ntw" in OPT else ""} lds',f'A{st}'))
        return L
    emit(h,dmaW(0))
    for p in range(3):
        h(f'v_mul_u32_u24 v32, 2752, v{33+2*p}')
        h(f'v_lshlrev_b32 v31, 4, v{34+2*p}')
        h(f'v_add_u32 v{VW1[p]}, v32, v31')
        if p: h(f'v_subrev_u32 v{VW1[p]}, {1024*p}, v{VW1[p]}')
    h('s_mul_i32 s52, s39, 3')
    h('s_lshl_b32 s56, s39, 1')
    h('s_add_u32 s56, s56, 11')
    h('s_cmp_lt_u32 s39, 11')
    h('s_cselect_b32 s48, s52, s56')
    h('s_cselect_b32 s49, 3, 2')
    h('s_mul_i32 s52, s37, 44032')
    h('s_lshl_b32 s56, s48, 6')
    h('s_add_u32 s52, s52, s56')
    def dmaA(st): return dmaX(st)+dmaW(st)
    def dmaB(st):
        L=[]
        L.append((f's_add_u32 s61, s58, {st}',None))
        L.append(('s_and_b32 s61, s61, 7',None))
        L.append((f's_add_u32 m0, s54, {W1_ADDR[st]}',None))
        L.append((f's_mul_i32 s55, s61, {64*2752}',None))
        L.append(('s_add_u32 s55, s55, s52',None))
        for p in range(3):
            L.append((f'buffer_load_dwordx4 v{VW1[p]}, {SR(sW1)}, s55 offen offset:{1024*p}{" nt" if "ntw1" in OPT else ""} lds',f'B{st}'))
        return L
    stamp(h,1)
    NINIT=3
    for o_ in OPT:
        if o_.startswith('NI='): NINIT=int(o_[3:])
    for st in range(1,NINIT): emit(h,dmaA(st))
    stamp(h,2)
    srd(h,sW1,pW1,512*1376*2); srd(h,sWS,pWS,WS_SIZE); srd(h,sB1,pB1,1376*2)
    h(f's_load_dwordx2 s[64:65], s[{pWS}:{pWS+1}], 0')
    common_lds_addr(h)
    h('v_lshlrev_b32 v27, 2, v1')
    h.vm('b1', f'buffer_load_dword v31, v27, {SR(sB1)}, s56 offen')
    h('s_cmp_eq_u32 s37, 3')
    h('s_cselect_b32 s57, 0, s37')
    h('s_lshl_b32 s3, s57, 6')
    h(f's_add_u32 s3, s3, {XS}')
    h('v_add_u32 v17, s3, v16')
    PAT=112; ONES=8; SUMA=[116,120]; GRA=[124,104]; CSA=108
    h('v_and_b32 v27, 15, v1')
    h('v_bfe_u32 v28, v1, 4, 1')
    h('v_cmp_eq_u32 vcc, v27, v28')
    h('v_mov_b32 v29, 0x3f803f80')
    h('s_nop 0')
    h(f'v_cndmask_b32 v{PAT}, 0, v29, vcc')
    for r in range(1,4): h(f'v_mov_b32 v{PAT+r}, v{PAT}')
    for r in range(4): h(f'v_mov_b32 v{ONES+r}, v29')
    SIDX=99; SPA=100
    h('v_and_b32 v30, 1, v1')
    h('v_cmp_eq_u32 vcc, 1, v30')
    h('v_mov_b32 v30, 0x44444444')
    h('v_mov_b32 v32, 0xeeeeeeee')
    h(f'v_cndmask_b32 v{SIDX}, v30, v32, vcc')
    h('v_and_b32 v30, 14, v1')
    h('v_cmp_eq_u32 vcc, 0, v30')
    h('v_cmp_eq_u32 s[66:67], 2, v30')
    h('s_nop 0')
    h(f'v_cndmask_b32 v{SPA}, 0, v29, vcc')
    h(f'v_cndmask_b32 v{SPA+2}, 0, v29, s[66:67]')
    h(f'v_mov_b32 v{SPA+1}, v{SPA}')
    h(f'v_mov_b32 v{SPA+3}, v{SPA+2}')
    for b in SUMA+GRA+[CSA]:
        for r in range(4): h(f'v_mov_b32 v{b+r}, 0')
    h('v_lshrrev_b32 v28, 4, v1')
    h('v_bfe_u32 v29, v1, 1, 3')
    h('v_xor_b32 v28, v28, v29')
    h('v_lshlrev_b32 v28, 4, v28')
    h('v_lshlrev_b32 v27, 7, v27')
    h('s_lshl_b32 s3, s37, 12')
    h('v_add3_u32 v5, v27, v28, s3')
    h('v_xor_b32 v6, 64, v5')
    TMP=40; XS16=56
    h('v_and_b32 v27, 3, v1')
    h('v_cmp_eq_u32 s[66:67], 1, v27')
    h('v_cmp_eq_u32 s[68:69], 2, v27')
    h('v_cmp_eq_u32 s[44:45], 3, v27')
    h('s_mov_b32 s46, 0x00f0000f')
    h('s_mov_b32 s47, 0xf0000f00')
    h('v_and_b32 v28, 15, v1')
    h('v_lshlrev_b32 v28, 2, v28')
    h('s_lshl_b32 s3, s37, 7')
    h('v_add_u32 v28, s3, v28')
    h(f'v_add_u32 v28, {L_A}, v28')
    h('v_lshlrev_b32 v29, 2, v1')
    h('s_lshl_b32 s55, s57, 7')
    h(f's_add_u32 s55, s55, {L_CS}')
    h('v_add_u32 v29, s55, v29')
    h('s_waitcnt lgkmcnt(0)')
    h('s_add_u32 s64, s64, 0x7f4a7c15')
    h('s_addc_u32 s65, s65, 0x9e3779b9')
    h(f's_mov_b32 s59, {SLOT}')
    h(f's_mov_b32 s60, {(-4*SLOT)&0xffffffff:#x}')
    if NINIT==3: sched={0:dmaA(3)+dmaA(4), 1:dmaB(0), 2:dmaA(5), 3:dmaA(6), 4:dmaA(7), 5:dmaB(1)+dmaB(2), 6:dmaB(3)+dmaB(4), 7:(dmaB(5)+dmaB(6) if 'b5early' in OPT else [])}
    elif NINIT==2 and 'smooth' in OPT: sched={0:dmaA(2), 1:dmaA(3), 2:dmaA(4), 3:dmaA(5), 4:dmaA(6), 5:dmaA(7)+dmaB(0), 6:dmaB(1)+dmaB(2), 7:[]}
    elif NINIT==2 and 'smooth2' in OPT: sched={0:dmaA(2), 1:dmaA(3), 2:dmaA(4)+dmaB(0), 3:dmaA(5), 4:dmaA(6), 5:dmaA(7), 6:dmaB(1)+dmaB(2), 7:dmaB(3)+dmaB(4)}
    elif NINIT==2: sched={0:dmaA(2)+dmaA(3), 1:dmaA(4)+dmaB(0), 2:dmaA(5), 3:dmaA(6), 4:dmaA(7), 5:dmaB(1)+dmaB(2), 6:dmaB(3)+dmaB(4), 7:(dmaB(5)+dmaB(6) if 'b5early' in OPT else [])}
    else: sched={0:dmaA(1)+dmaA(2), 1:dmaA(3)+dmaA(4), 2:dmaA(5)+dmaB(0), 3:dmaA(6), 4:dmaA(7), 5:dmaB(1)+dmaB(2), 6:dmaB(3)+dmaB(4), 7:(dmaB(5)+dmaB(6) if 'b5early' in OPT else [])}
    for st in range(8):
        if st==5: fstamp(h,0)
        if STAMP and 'stg' in OPT: h(f's_memrealtime s[{70+4*st}:{71+4*st}]') if st>0 else None
        h.wait_vm(f'A{st}')
        if STAMP and 'stg' in OPT and st>0: h(f's_memrealtime s[{72+4*st}:{73+4*st}]')
        if st==5: fstamp(h,1)
        h('s_barrier')
        if STAMP and 'stg' in OPT and st==0: h(f's_memrealtime s[72:73]')
        if st==5: fstamp(h,2)
        if st==0: stamp(h,3)
        dm=sched[st]
        for u in range(2):
            for kk in range(2):
                h(f'ds_read_b128 {R(XS16+8*u+4*kk,4)}, v{5+kk} offset:{2048*u}')
        for ks in range(4):
            for e in range(2):
                h(f'ds_read_b64_tr_b16 {R(TMP+4*ks+2*e,2)}, v17 offset:{ks*3072+e*768}')
        if st==5: fstamp(h,3)
        k=0; nv=0
        while nv<2 and k<len(dm):
            if dm[k][1]: h.vm(dm[k][1],dm[k][0]); nv+=1
            else: h(dm[k][0])
            k+=1
        val=[]
        for u in range(2):
            val.append(f'v_smfmac_f32_16x16x64_bf16 {R(SUMA[u],4)}, {R(ONES,4)}, {R(XS16+8*u,8)}, v{SIDX}')
            for kk in range(2):
                x=XS16+8*u+4*kk
                val.append(f'ds_read_b128 {R(XF+16*st+4*(2*u+kk),4)}, v{12+2*u+kk}')
                val.append(f'v_mfma_f32_16x16x32_bf16 {R(GRA[u],4)}, {R(x,4)}, {R(x,4)}, {R(GRA[u],4)}')
        val.append('s_waitcnt lgkmcnt(4)')
        for p_ in range(2):
            val.append(f'v_smfmac_f32_16x16x64_bf16 {R(CSA,4)}, {R(SPA,4)}, {R(TMP+8*p_,8)}, v{SIDX}')
        if st<7:
            d=(A_SLOT[st+1]-A_SLOT[st])*SLOT
            sr='s59' if d==SLOT else 's60'
            for r in (12,13,14,15,17,5,6): val.append(f'v_add_u32 v{r}, {sr}, v{r}')
        if st==5: fstamp(h,4)
        h('s_waitcnt lgkmcnt(8)')
        if st==5: fstamp(h,5)
        rest=dm[k:]; vi=0; fs_=6
        for (ins,tag) in rest:
            if tag:
                for _ in range(2):
                    if vi<len(val): h(val[vi]); vi+=1
                h.vm(tag,ins)
                if st==5: fstamp(h,fs_); fs_+=1
            else: h(ins)
        while vi<len(val):
            h(val[vi]); vi+=1
            if st==5 and val[vi-1].startswith('s_waitcnt'): fstamp(h,fs_); fs_+=1
        if st==5: fstamp(h,fs_); fs_+=1
        if st==6: fstamp(h,15)
    h('s_waitcnt lgkmcnt(0)')
    h('s_nop 1')
    for u in range(2):
        gr=GRA[u]; q=32+2*u
        h(f'v_cndmask_b32 v{q}, v{gr}, v{gr+1}, s[66:67]')
        h(f'v_cndmask_b32 v{q}, v{q}, v{gr+2}, s[68:69]')
        h(f'v_cndmask_b32 v{q}, v{q}, v{gr+3}, s[44:45]')
    for u in range(2):
        q=32+2*u; m=SUMA[u]
        h(f'v_add_f32 v{m}, v{m}, v{m+1}')
        h(f'v_mul_f32 v{q}, {f2u(1/512):#x}, v{q}')
        h(f'v_mul_f32 v{m}, {f2u(1/512):#x}, v{m}')
    h(f'v_add_f32 v{CSA}, v{CSA}, v{CSA+1}')
    h(f'v_add_f32 v{CSA+2}, v{CSA+2}, v{CSA+3}')
    for u in range(2):
        q=32+2*u; m=SUMA[u]
        h(f'v_fma_f32 v{q}, -v{m}, v{m}, v{q}')
        h(f'v_max_f32 v{q}, 0, v{q}')
        h(f'v_add_f32 v{q+1}, {f2u(1e-5):#x}, v{q}')
    h('s_mov_b64 exec, 0xffff')
    h(f'ds_write_b32 v29, v{CSA}')
    h(f'ds_write_b32 v29, v{CSA+2} offset:64')
    h('s_mov_b64 exec, -1')
    for u in range(2):
        q=32+2*u
        h(f'v_rsq_f32 v{q+1}, v{q+1}')
    h('s_mov_b64 exec, s[46:47]')
    for u in range(2):
        q=32+2*u; m=SUMA[u]
        h(f'ds_write_b32 v28, v{m} offset:{64*u+L_MU-L_A}')
        h(f'ds_write_b32 v28, v{q+1} offset:{64*u}')
    h('s_mov_b64 exec, -1')
    h('s_waitcnt lgkmcnt(0)')
    stamp(h,4)
    h('s_barrier')
    emit(h,(dmaB(7) if 'b5early' in OPT else dmaB(3)+dmaB(4)+dmaB(5)+dmaB(6)+dmaB(7) if 'smooth' in OPT else dmaB(5)+dmaB(6)+dmaB(7)))
    for u in range(2):
        q=32+2*u; m=SUMA[u]
        h(f'v_mul_f32 v{m+1}, v{q+1}, v{q+1}')
        h(f'v_mul_f32 v{m+1}, v{m+1}, v{q}')
        h(f'v_add_f32 v{m+1}, {f2u(1e-5):#x}, v{m+1}')
    for u in range(2):
        m=SUMA[u]
        h(f'v_rsq_f32 v{m+1}, v{m+1}')
    h('s_lshl_b32 s3, s37, 7')
    h('v_lshlrev_b32 v27, 2, v3')
    for u in range(2):
        q=32+2*u; m=SUMA[u]
        h(f'v_mul_f32 v{m+2}, v{m+1}, v{q+1}')
        h(f'v_mul_f32 v{m+3}, v{m+2}, v{m}')
    h('s_mov_b64 exec, s[46:47]')
    for u in range(2):
        m=SUMA[u]
        h(f'ds_write_b32 v28, v{m+2} offset:{64*u+L_A2-L_A}')
        h(f'ds_write_b32 v28, v{m+3} offset:{64*u+L_A2M-L_A}')
    h('s_mov_b64 exec, -1')
    h('v_add_u32 v28, s3, v27')
    h(f'v_add_u32 v28, {L_A2}, v28')
    h('s_waitcnt lgkmcnt(0)')
    h('ds_read_b32 v38, v28')
    h(f'ds_read_b32 v30, v28 offset:{L_A2M-L_A2}')
    h('v_lshlrev_b32 v34, 16, v31')
    h('v_and_b32 v35, 0xffff0000, v31')
    h('v_lshlrev_b32 v28, 3, v1')
    h(f'v_add_u32 v28, {L_B1}, v28')
    h('v_cmp_gt_u32 vcc, 48, v1')
    h('s_and_saveexec_b64 s[66:67], vcc')
    h('ds_write_b64 v28, v[34:35]')
    h('s_mov_b64 exec, s[66:67]')
    h('s_mov_b32 s62, 0x00030003')
    h('s_mov_b32 s63, 0x00030003')
    ACC=[64,80,96]
    TS=[57,59,60]
    for sl in range(3):
        h(f's_add_u32 s3, s37, {sl}')
        h('s_cmp_ge_u32 s3, 3')
        h('s_cselect_b32 s55, 3, 0')
        h('s_sub_u32 s3, s3, s55')
        h('s_cmp_ge_u32 s3, 3')
        h('s_cselect_b32 s55, 3, 0')
        h('s_sub_u32 s3, s3, s55')
        h(f's_mov_b32 s{TS[sl]}, s3')
    SPB=8; SIB=5; CS1A=124
    for r in range(4): h(f'v_mov_b32 v{SPB+r}, v{SPA+r}')
    h(f'v_mov_b32 v{SIB}, v{SIDX}')
    for r in range(4): h(f'v_mov_b32 v{CS1A+r}, 0')
    for r in range(64,112): h(f'v_mov_b32 v{r}, 0')
    h(f's_lshl_b32 s3, s{TS[0]}, 6')
    h('v_add_u32 v12, s3, v16')
    h('v_add_u32 v13, 86016, v12')
    h('v_add_u32 v14, 126976, v12')
    def waddr(n,e):
        st,ks=divmod(n,4); base=W1_ADDR[st]
        if base<65536-12288: reg,rel=12,base
        elif base<126976: reg,rel=13,base-86016
        else: reg,rel=14,base-126976
        return reg, rel+ks*3072+e*768
    FSET=[40,44,48,52]
    C1=-2*1.4426950408889634*0.7978845608028654
    C2=C1*0.044715
    h(f's_mov_b32 s66, {f2u(C2):#x}')
    h(f'v_mov_b32 v32, {f2u(C1):#x}')
    h('v_lshlrev_b32 v23, 4, v4')
    h('v_lshlrev_b32 v15, 4, v1')
    h('s_lshl_b32 s53, s38, 2')
    h('s_add_u32 s53, s53, s37')
    h('s_mul_i32 s53, s53, 86')
    SO=[67,68,69]
    CA=[33,34,35]
    for sl in range(3):
        h(f's_add_u32 s54, s48, s{TS[sl]}')
        h('s_lshl_b32 s54, s54, 1')
        h('s_add_u32 s54, s54, s53')
        h('s_lshl_b32 s54, s54, 10')
        h(f's_add_u32 s54, s54, {WS_H}')
        h(f's_cmp_ge_u32 s{TS[sl]}, s49')
        h(f's_cselect_b32 s{SO[sl]}, 0x7ff00000, s54')
        h(f's_lshl_b32 s3, s{TS[sl]}, 7')
        h(f'v_add_u32 v{CA[sl]}, s3, v23')
        h(f'v_add_u32 v{CA[sl]}, {L_CS1}, v{CA[sl]}')
    h('v_lshlrev_b32 v29, 2, v1')
    h(f's_lshl_b32 s55, s{TS[0]}, 7')
    h(f's_add_u32 s55, s55, {L_CS1}')
    h('v_add_u32 v29, s55, v29')
    h(f'v_mov_b32 v17, {L_CNT+12}')
    h('v_mov_b32 v7, 1')
    h.wait_vm(['B0','B1'])
    h('s_waitcnt lgkmcnt(0)')
    gbar_arrive(h, 17, 7)
    gbar_wait(h, 17, 6, 4)
    h.lgq=[]
    bar={8:(['B2','B3','B4'],8), 20:(['B5','B6','B7'],12)}
    NM=96
    def wreads(m):
        sl,n=divmod(m,32); fs=FSET[m%4]
        if n==0 and sl>0:
            h(f's_sub_u32 s3, s{TS[sl]}, s{TS[sl-1]}')
            h('s_lshl_b32 s3, s3, 6')
            for rg in (12,13,14): h(f'v_add_u32 v{rg}, s3, v{rg}')
        if sl==0 and n in bar:
            gbar_wait(h, 17, 6, bar[n][1]); h.lgq=[]
        for e in range(2):
            reg,off=waddr(n,e)
            h.lg(f'W{m}', f'ds_read_b64_tr_b16 {R(fs+2*e,2)}, v{reg} offset:{off}')
    TCS=[112,56]; TB1=[120,18]
    def ureads(sl,hf,k):
        cs=TCS[k%2]; b1=TB1[k%2]; q=[]
        for gg in range(2):
            q.append((4,'lg',(f'G{sl}{hf}', f'ds_read_b128 {R(cs+4*gg,4)}, v{CA[sl]} offset:{(16*hf+8*gg)*4}'),0))
            q.append((4,'lg',(f'G{sl}{hf}', f'ds_read_b128 {R(b1+4*gg,4)}, v{CA[sl]} offset:{(16*hf+8*gg)*4+L_B1-L_CS1}'),0))
        return q
    def ucomp(sl,hf,k,mmin):
        cs=TCS[k%2]; b1=TB1[k%2]; acc=ACC[sl]+8*hf; q=[]
        q.append((0,'wait',f'G{sl}{hf}',mmin))
        for r in range(8): q.append((4,'i',f'v_fma_f32 v{b1+r}, -v{cs+r}, v30, v{b1+r}',mmin))
        for r in range(8): q.append((4,'i',f'v_fma_f32 v{acc+r}, v{acc+r}, v38, v{b1+r}',mmin))
        for r in range(8): q.append((4,'i',f'v_mul_f32 v{cs+r}, v{acc+r}, v{acc+r}',mmin))
        for r in range(8): q.append((4,'i',f'v_fma_f32 v{cs+r}, v{cs+r}, s66, v32',mmin))
        for r in range(8): q.append((4,'i',f'v_mul_f32 v{cs+r}, v{cs+r}, v{acc+r}',mmin))
        for r in range(8): q.append((8,'i',f'v_exp_f32 v{cs+r}, v{cs+r}',mmin))
        for r in range(8): q.append((4,'i',f'v_add_f32 v{cs+r}, 1.0, v{cs+r}',mmin))
        for r in range(8): q.append((8,'i',f'v_rcp_f32 v{cs+r}, v{cs+r}',mmin))
        for r in range(8): q.append((4,'i',f'v_mul_f32 v{acc+r}, v{acc+r}, v{cs+r}',mmin))
        if 'lateh' in OPT:
            for i in range(4): q.append((4,'i',f'v_cvt_pk_bf16_f32 v{acc+i}, v{acc+2*i}, v{acc+2*i+1}',mmin))
            return q
        for i in range(4): q.append((4,'i',f'v_cvt_pk_bf16_f32 v{b1+i}, v{acc+2*i}, v{acc+2*i+1}',mmin))
        q.append((4,'i',f'buffer_store_dwordx4 {R(b1,4)}, v15, {W_}, s{SO[sl]} offen offset:{1024*hf} sc1',mmin))
        q.append((0,'i','s_nop 1',mmin))
        return q
    queue=[]
    def drain(budget, m):
        while queue and budget>0 and queue[0][3]<=m:
            c,kind,p,_=queue.pop(0)
            if kind=='lg': h.lg(p[0],p[1])
            elif kind=='wait': h.wait_lg(p)
            elif kind=='gbar': gbar_wait(h, 17, 6, p); h.lgq=[]
            else: h(p)
            budget-=c
    for m in range(3): wreads(m)
    uk=0
    for m in range(NM):
        sl,n=divmod(m,32)
        if sl==0 and (n+4) in bar:
            h.wait_vm(bar[n+4][0]); gbar_arrive(h, 17, 7); h.lgq.append('CNT')
        h.wait_lg(f'W{m}')
        fs=FSET[m%4]
        h(f'v_mfma_f32_32x32x16_bf16 {R(ACC[sl],16)}, {R(fs,4)}, {R(XF+4*n,4)}, {R(ACC[sl],16)}')
        if sl==0 and n%2==1:
            h(f'v_smfmac_f32_16x16x64_bf16 {R(CS1A,4)}, {R(SPB,4)}, {R(FSET[(m-1)%4],8)}, v{SIB}')
        if m+3<NM: wreads(m+3)
        if m==33:
            h('s_nop 3')
            h(f'v_add_f32 v{CS1A}, v{CS1A}, v{CS1A+1}')
            h(f'v_add_f32 v{CS1A+2}, v{CS1A+2}, v{CS1A+3}')
            h('s_mov_b64 exec, 0xffff')
            h.lg('CSW', f'ds_write_b32 v29, v{CS1A}')
            h.lg('CSW', f'ds_write_b32 v29, v{CS1A+2} offset:64')
            h('s_mov_b64 exec, -1')
            h.wait_lg('CSW')
            gbar_arrive(h, 17, 7); h.lgq.append('CNT')
            stamp(h,5)
            queue+=ureads(0,0,0)+ureads(0,1,1)+ucomp(0,0,0,35)
            queue+=[(0,'gbar',16,0)]+ureads(1,0,2)+ucomp(0,1,1,35)
            queue+=ureads(1,1,3)+ucomp(1,0,2,66)
            queue+=ureads(2,0,4)+ucomp(1,1,3,66)
            queue+=ureads(2,1,5)+ucomp(2,0,4,99)+ucomp(2,1,5,99)
        if m>=33: drain(16, m)
    gbar_arrive(h, 17, 7); h.lgq.append('CNT')
    h('s_nop 7')
    drain(1<<30, 1000)
    if 'lateh' in OPT:
        lab=newlab('HW'); done=newlab('HWD')
        h(f'v_mov_b32 v12, {L_CNT+24}')
        h.label(lab)
        h('ds_read_b32 v13, v12')
        h('s_waitcnt lgkmcnt(0)')
        h('v_readfirstlane_b32 s3, v13')
        h('s_nop 0')
        h('s_cmp_eq_u32 s3, 0')
        h(f's_cbranch_scc0 {done}')
        h('s_sleep 8')
        h(f's_branch {lab}')
        h.label(done)
        for sl in range(3):
            for hf in range(2):
                h(f'buffer_store_dwordx4 {R(ACC[sl]+8*hf,4)}, v15, {W_}, s{SO[sl]} offen offset:{1024*hf} sc1')
    stamp(h,6)
    h('s_waitcnt vmcnt(0)')
    h.vmq=[]
    h('s_lshl_b32 s48, s38, 4')
    h('s_add_u32 s48, s48, s39')
    h('s_lshl_b32 s48, s48, 7')
    h(f's_add_u32 s48, s48, {F_2}')
    signal(h, L_CNT+4, 3, 's48', 40)

    h('s_setprio 2' if 'g2hi' in OPT else 's_setprio 0')
    h('s_and_b32 s52, s2, 7')
    h('s_lshr_b32 s53, s2, 3')
    h('s_and_b32 s54, s53, 3')
    h('s_lshl_b32 s52, s52, 2')
    h('s_add_u32 s58, s52, s54')
    h('s_lshr_b32 s59, s53, 2')
    h('v_lshlrev_b32 v5, 4, v1')
    h('v_lshlrev_b32 v8, 7, v1')
    sWw=24
    h('s_lshr_b32 s52, s2, 3')
    h('s_lshl_b32 s52, s52, 2')
    h('s_add_u32 s52, s52, s37')
    h('s_lshl_b32 s52, s52, 14')
    h(f's_cmp_ge_u32 s52, {1376*1024}')
    h(f's_cselect_b32 s{sWw}, s{pWO}, s{pW2}')
    h(f's_cselect_b32 s{sWw+1}, s{pWO+1}, s{pW2+1}')
    h(f's_cselect_b32 s53, {1376*1024}, 0')
    h('s_sub_u32 s52, s52, s53')
    h('s_cmp_eq_u32 s53, 0')
    h(f's_mov_b32 s26, {512*512*2}')
    h(f's_cselect_b32 s26, {1376*512*2}, s26')
    h(f's_mov_b32 s{sWw+3}, 0x00020000')
    for k in range(0 if 'nowarm' in OPT else 16):
        h(f'buffer_load_dwordx4 v[40:43], v5, {SR(sWw)}, s52 offen offset:{1024*(k%4)}')
        if k%4==3: h('s_add_u32 s52, s52, 4096')
    sW2=24
    h('s_lshr_b32 s52, s58, 1')
    h('s_lshl_b32 s52, s52, 11')
    h(f's_add_u32 s52, s52, {F_2}')
    stamp(h,7)
    poll_wg(h, 16, 'v8', 's52', 26, 4, L_CNT+20)
    stamp(h,8)
    srd(h,sW2,pW2,1376*512*2)
    h('s_sub_u32 s60, s36, 4')
    h('s_mul_i32 s61, s60, 22')
    h('s_cmp_eq_u32 s60, 3')
    h('s_cselect_b32 s52, 1, 0')
    h('s_sub_u32 s61, s61, s52')
    h('s_cmp_lt_u32 s60, 2')
    h('s_cselect_b32 s62, 22, 21')
    h('s_lshl_b32 s63, s59, 1')
    h('s_and_b32 s52, s58, 3')
    h('s_add_u32 s63, s63, s52')
    h('s_sub_u32 s57, s62, s63')
    h('s_add_u32 s61, s61, s63')
    h('s_lshl_b32 s52, s58, 1')
    h('s_mul_i32 s52, s52, 86')
    h('s_add_u32 s52, s52, s61')
    h('s_lshl_b32 s52, s52, 10')
    h(f's_add_u32 s52, s52, {WS_H}')
    h('s_lshl_b32 s54, s61, 14')
    h('s_lshl_b32 s55, s59, 7')
    h('s_add_u32 s54, s54, s55')
    h('s_lshl_b32 s56, s62, 10')
    h('s_lshl_b32 s53, s62, 14')
    h('s_mov_b32 s50, s57')
    h(f's_mul_i32 s55, s60, {RINGSZ}')
    h(f's_add_u32 s55, s55, {L_RING}')
    def wdma_voff(e):
        e('v_lshrrev_b32 v10, 3, v1')
        e('v_lshlrev_b32 v10, 10, v10')
        e('v_and_b32 v11, 7, v1')
        e('v_bfe_u32 v12, v1, 4, 1')
        e('v_lshlrev_b32 v12, 2, v12')
        e('v_xor_b32 v11, v11, v12')
        e('v_lshlrev_b32 v11, 4, v11')
        e('v_add_u32 v10, v10, v11')
        e('v_add_u32 v11, 7168, v10')
    wdma_voff(h)
    h(f'v_add_u32 v17, {86*1024}, v5')
    def tr_addr(e, dst, base_s):
        e('v_bfe_u32 v13, v1, 2, 2')
        e('v_lshlrev_b32 v14, 2, v4')
        e('v_add_u32 v14, v14, v13')
        e('v_lshlrev_b32 v14, 7, v14')
        e('v_bfe_u32 v15, v1, 4, 1')
        e('v_lshlrev_b32 v15, 1, v15')
        e('v_and_b32 v16, 1, v1')
        e('v_add_u32 v15, v15, v16')
        e('v_lshrrev_b32 v13, 1, v13')
        e('v_lshlrev_b32 v13, 2, v13')
        e('v_xor_b32 v15, v15, v13')
        e('v_lshlrev_b32 v15, 4, v15')
        e('v_bfe_u32 v16, v1, 1, 1')
        e('v_lshlrev_b32 v16, 3, v16')
        e('v_add3_u32 v14, v14, v15, v16')
        e(f'v_add_u32 v{dst}, {base_s}, v14')
        e(f'v_xor_b32 v{dst+1}, 64, v{dst}')
    tr_addr(h, 18, 's55')
    def tail_prep(e):
        e('s_and_b32 s37, s36, 1')
        e('s_bfe_u32 s38, s36, 0x10001')
        e('s_lshr_b32 s39, s36, 2')
        srd(e,32,pOUT,2048*512*2)
        e('s_lshl_b32 s3, s58, 6')
        e('s_lshl_b32 s42, s37, 5')
        e('s_add_u32 s3, s3, s42')
        e('v_add_u32 v20, s3, v3')
        e('v_lshlrev_b32 v20, 10, v20')
        e('s_lshl_b32 s3, s59, 6')
        e('s_lshl_b32 s42, s38, 5')
        e('s_add_u32 s3, s3, s42')
        e('s_lshl_b32 s42, s39, 4')
        e('s_add_u32 s3, s3, s42')
        e('v_lshlrev_b32 v21, 3, v4')
        e('v_add_u32 v21, s3, v21')
        e('v_lshlrev_b32 v21, 1, v21')
        e('v_add_u32 v20, v20, v21')
        srd(e,44,pX,2048*512*2)
        e(f'buffer_load_dwordx4 v[24:27], v20, {SR(44)}, 0 offen')
        srd(e,44,pB2,512*2)
        e(f'buffer_load_dwordx4 v[28:31], v21, {SR(44)}, 0 offen')
        e('s_lshl_b32 s3, s39, 15')
        e(f's_add_u32 s3, s3, {L_WO}')
        tr_addr(e, 21, 's3')
        e('s_lshl_b32 s3, s38, 6')
        e('v_xor_b32 v21, s3, v21')
        e('s_lshl_b32 s3, s37, 15')
        e('s_lshl_b32 s42, s39, 14')
        e('s_add_u32 s3, s3, s42')
        e(f's_add_u32 s3, s3, {L_OX}')
        e('v_add_u32 v22, s3, v5')
        e('s_lshl_b32 s3, s38, 4')
        e('s_lshl_b32 s42, s39, 1')
        e('s_add_u32 s3, s3, s42')
        e('s_lshl_b32 s40, s58, 1')
        e('s_add_u32 s40, s40, s37')
        e('s_lshl_b32 s40, s40, 5')
        e('s_add_u32 s40, s40, s3')
        e('s_lshl_b32 s40, s40, 10')
        e(f's_add_u32 s40, s40, {WS_O}')
        e('s_lshl_b32 s41, s37, 5')
        e('s_add_u32 s41, s41, s3')
        e('s_lshl_b32 s41, s41, 10')
        e(f's_add_u32 s41, s41, {L_OX}')
        e('s_and_b32 s3, s36, 3')
        e('s_lshl_b32 s3, s3, 12')
        e(f's_add_u32 s3, s3, {L_EX}')
        e('s_lshl_b32 s42, s39, 11')
        e('s_add_u32 s43, s3, s42')
        e('v_add_u32 v23, s43, v5')
        e('s_xor_b32 s42, s42, 2048')
        e('s_add_u32 s43, s3, s42')
        e('v_add_u32 v6, s43, v5')
        e('s_lshr_b32 s42, s58, 2')
        e('s_lshl_b32 s42, s42, 12')
        e(f's_add_u32 s42, s42, {F_3}')
        e('s_waitcnt vmcnt(0)')
        for i in range(4):
            e(f'v_lshlrev_b32 v{40+2*i}, 16, v{24+i}')
            e(f'v_and_b32 v{41+2*i}, 0xffff0000, v{24+i}')
        for i in range(4):
            e(f'v_lshlrev_b32 v{24}, 16, v{28+i}')
            e(f'v_and_b32 v{25}, 0xffff0000, v{28+i}')
            e(f'v_add_f32 v{40+2*i}, v{40+2*i}, v24')
            e(f'v_add_f32 v{41+2*i}, v{41+2*i}, v25')
        e.vmq=[]
    GA=[[192,208],[224,240]]
    XR=[48+8*i for i in range(XD)]
    WB=[24,32]
    def x_issue(i):
        b=XR[i%XD]
        h.vm(f'X{i}', f'buffer_load_dwordx4 {R(b,4)}, v5, {W_}, s52 offen sc1')
        h.vm(f'X{i}', f'buffer_load_dwordx4 {R(b+4,4)}, v17, {W_}, s52 offen sc1')
        h('s_add_u32 s52, s52, 1024')
        h('s_sub_u32 s57, s57, 1')
        h('s_cmp_eq_u32 s57, 0')
        h('s_cselect_b32 s63, s56, 0')
        h('s_sub_u32 s52, s52, s63')
    def w_issue(i):
        h(f's_add_u32 m0, s55, {(i%WD)*2048}')
        h('s_sub_u32 s50, s50, 1')
        nt2=' nt' if 'ntw2' in OPT else ''
        h.vm(f'W{i}', f'buffer_load_dwordx4 v10, {SR(sW2)}, s54 offen{nt2} lds')
        h.vm(f'W{i}', f'buffer_load_dwordx4 v11, {SR(sW2)}, s54 offen offset:1024{nt2} lds')
        h('s_add_u32 s54, s54, 16384')
        h('s_cmp_eq_u32 s50, 0')
        h('s_cselect_b32 s63, s53, 0')
        h('s_sub_u32 s54, s54, s63')
    def g2_wread(i):
        for ct in range(2):
            for e in range(2):
                h(f'ds_read_b64_tr_b16 {R(WB[i%2]+4*ct+2*e,2)}, v{18+ct} offset:{(i%WD)*2048+e*1024}')
    if 'nog2' in OPT: h('s_branch K_G2_DONE')
    h.vmq=[]
    THR=4
    for o_ in OPT:
        if o_.startswith('THR='): THR=int(o_[4:])
    for i in range(XD):
        if i<WD: w_issue(i)
        x_issue(i)
        if THR<63 and len(h.vmq)>THR:
            h(f's_waitcnt vmcnt({THR-4 if THR>4 else 0})'); h.vmq=h.vmq[len(h.vmq)-(THR-4 if THR>4 else 0):] if THR>4 else []
    for tt in range(2):
        for ct in range(2):
            for r in range(16): h(f'v_mov_b32 v{GA[tt][ct]+r}, 0')
    if 'now2warm' not in OPT:
        h('s_mov_b32 s48, s54'); h('s_mov_b32 s49, s50')
        for i in range(WD,22):
            if i%2==0: h.wait_vm_all()
            h.vm('L2', f'buffer_load_dwordx4 v[40:43], v10, {SR(sW2)}, s48 offen')
            h.vm('L2', f'buffer_load_dwordx4 v[40:43], v11, {SR(sW2)}, s48 offen offset:1024')
            h('s_add_u32 s48, s48, 16384')
            h('s_sub_u32 s49, s49, 1')
            h('s_cmp_eq_u32 s49, 0')
            h('s_cselect_b32 s63, s53, 0')
            h('s_sub_u32 s48, s48, s63')
    h.wait_vm_all()
    tail_prep(h)
    lab=newlab('G2W'); done=newlab('G2WD')
    h(f'v_mov_b32 v12, {L_CNT+G2CNT}')
    h.label(lab)
    h('ds_read_b32 v13, v12')
    h('s_waitcnt lgkmcnt(0)')
    h('v_readfirstlane_b32 s3, v13')
    h('s_nop 0')
    h(f's_cmp_ge_u32 s3, {G2TGT}')
    h(f's_cbranch_scc1 {done}')
    h('s_sleep 16')
    h(f's_branch {lab}')
    h.label(done)
    G2PR=2
    for o_ in OPT:
        if o_.startswith('G2PR='): G2PR=int(o_[5:])
    h(f's_setprio {G2PR}')
    stamp(h,9)
    h.wait_vm_all()
    g2_wread(0)
    NK=22
    for i in range(NK):
        if i+1<NK:
            h.wait_vm([f'W{i+1}'])
            g2_wread(i+1)
            h.wait_vm([f'X{i}'])
            h('s_waitcnt lgkmcnt(4)')
        else:
            h.wait_vm([f'X{i}'])
            h('s_waitcnt lgkmcnt(0)')
            h('s_cmp_eq_u32 s62, 21')
            h('s_cbranch_scc1 K_G2_DONE')
        b=XR[i%XD]
        for tt in range(2):
            for ct in range(2):
                h(f'v_mfma_f32_32x32x16_bf16 {R(GA[tt][ct],16)}, {R(WB[i%2]+4*ct,4)}, {R(b+4*tt,4)}, {R(GA[tt][ct],16)}')
        if i+WD<NK: w_issue(i+WD)
        if i+XD<NK: x_issue(i+XD)
    h.label('K_G2_DONE')
    h('s_waitcnt vmcnt(0) lgkmcnt(0)')
    stamp(h,11)
    h('s_nop 7')
    for tt in range(2):
        for ct in range(2):
            qd=tt+2*ct
            lab=newlab('GXS')
            h(f's_cmp_eq_u32 s60, {qd}')
            h(f's_cbranch_scc1 {lab}')
            h(f's_sub_u32 s52, {qd+3}, s60')
            h('s_and_b32 s52, s52, 3')
            h('s_lshl_b32 s52, s52, 12')
            h('s_add_u32 s52, s52, s55')
            h('v_add_u32 v14, s52, v5')
            for k in range(4): h(f'ds_write_b128 v14, {R(GA[tt][ct]+4*k,4)} offset:{1024*k}')
            h.label(lab)
    def att_ids(e):
        e('s_and_b32 s48, s2, 7')
        e('s_lshr_b32 s49, s2, 3')
        e('s_and_b32 s50, s49, 3')
        e('s_lshl_b32 s48, s48, 2')
        e('s_add_u32 s38, s48, s50')
        e('s_lshr_b32 s39, s49, 2')
    h(f'v_mov_b32 v12, {L_CNT+12}')
    h('v_mov_b32 v13, 1')
    h('s_waitcnt lgkmcnt(0)')
    gbar_arrive(h, 12, 13)
    gbar_wait(h, 12, 13, 24)
    for sl in range(3):
        h(f's_sub_u32 s52, s60, {sl+1}')
        h('s_and_b32 s52, s52, 3')
        h(f's_mul_i32 s52, s52, {RINGSZ}')
        h(f's_add_u32 s52, s52, {L_RING+4096*sl}')
        h('v_add_u32 v14, s52, v5')
        for k in range(4): h(f'ds_read_b128 {R(128+16*sl+4*k,4)}, v14 offset:{1024*k}')
    h('s_waitcnt lgkmcnt(8)')
    gxe=newlab('GXE')
    for qd in range(4):
        lab=newlab('GXQ')
        tt,ct=qd&1,qd>>1
        if qd<3:
            h(f's_cmp_lg_u32 s60, {qd}')
            h(f's_cbranch_scc1 {lab}')
        for r in range(16): h(f'v_add_f32 v{192+r}, v{GA[tt][ct]+r}, v{128+r}')
        if qd<3:
            h(f's_branch {gxe}')
            h.label(lab)
    h.label(gxe)
    h('s_waitcnt lgkmcnt(4)')
    for r in range(16): h(f'v_add_f32 v{192+r}, v{192+r}, v{144+r}')
    h('s_waitcnt lgkmcnt(0)')
    for r in range(16): h(f'v_add_f32 v{192+r}, v{192+r}, v{160+r}')
    h('s_branch K_TAIL')

    a2=Asm()
    a2.label('K_ATT')
    a2('s_setprio 1')
    att_ids(a2)
    a2('v_lshlrev_b32 v5, 4, v1')
    a2('v_lshlrev_b32 v6, 8, v4')
    a2('v_and_b32 v7, 15, v1')
    a2('v_lshlrev_b32 v7, 4, v7')
    a2('v_add_u32 v6, v6, v7')
    a2('v_lshlrev_b32 v8, 7, v1')
    a2('v_lshlrev_b32 v9, 2, v1')
    a2('s_lshl_b32 s44, s38, 16')
    a2('s_lshl_b32 s46, s39, 13')
    a2('s_add_u32 s46, s46, s44')
    a2(f's_add_u32 s46, s46, {WS_Q}')
    a2('s_lshl_b32 s47, s36, 14')
    a2('s_add_u32 s47, s47, s44')
    a2(f's_add_u32 s48, s47, {WS_V}')
    a2(f's_add_u32 s47, s47, {WS_K}')
    a2('s_mov_b32 s40, s47')
    a2('s_mov_b32 s41, s48')
    a2('s_lshr_b32 s49, s38, 1')
    a2('s_mul_i32 s49, s49, 1536')
    a2(f's_add_u32 s49, s49, {WS_N}')
    a2('s_mov_b32 s50, 0x0000ffff')
    a2('s_mov_b32 s51, 0x0000ffff')
    KB=[80,84,88,92]; VB=[96,104,112,120]; QF=48
    SA,SB=10,26
    OA=[128+16*i for i in range(8)]; IDX=44
    a2('v_and_b32 v12, 27, v3')
    a2('v_cmp_eq_u32 vcc, 16, v12')
    a2('v_mov_b32 v12, 0x3f803f80')
    a2('s_nop 0')
    a2(f'v_cndmask_b32 v{IDX}, 0, v12, vcc')
    for b in VB:
        for r in range(8): a2(f'v_mov_b32 v{b+r}, v{IDX}')
    a2(f'v_mov_b32 v{IDX}, 0xdddddddd')
    for o in OA:
        for r in range(16): a2(f'v_mov_b32 v{o+r}, 0')
    for r in range(8,16): a2(f'v_mov_b32 v{SB+r}, 0')
    for p_ in range(4):
        a2(f's_sub_u32 s52, s36, {p_+1}')
        a2('s_and_b32 s52, s52, 3')
        a2('s_mul_i32 s52, s52, 2304')
        a2(f's_add_u32 s{56+p_}, s52, {2*p_*3*2304}')
    a2('s_lshl_b32 s52, s36, 1')
    a2('s_lshl_b32 s52, 3, s52')
    a2('s_xor_b32 s45, s52, 0xff')
    a2('s_lshr_b32 s52, s38, 1')
    a2('s_lshl_b32 s52, s52, 11')
    a2(f's_add_u32 s52, s52, {F_1}')
    stamp(a2,7)
    poll_wg(a2, 16, 'v8', 's52', 18, 0, L_CNT+24, bounds=True)
    stamp(a2,8)
    def loadkv(b, ko):
        a2.vm('KV', f'buffer_load_dwordx4 {R(KB[b],4)}, v5, {W_}, s47 offen offset:{1024*ko} sc1')
        a2('s_mov_b64 exec, s[50:51]')
        a2.vm('KV', f'buffer_load_dwordx4 {R(VB[b],4)}, v6, {W_}, s48 offen offset:{1024*ko} sc1')
        a2.vm('KV', f'buffer_load_dwordx4 {R(VB[b]+4,4)}, v6, {W_}, s48 offen offset:{1024*ko+512} sc1')
        a2('s_mov_b64 exec, -1')
    a2.vm('KV', f'buffer_load_dwordx4 {R(KB[0],4)}, v5, {W_}, s47 offen sc1')
    a2.vm('Q', f'buffer_load_dwordx4 {R(QF,4)}, v5, {W_}, s46 offen sc1')
    a2('s_mov_b64 exec, s[50:51]')
    a2.vm('KV', f'buffer_load_dwordx4 {R(VB[0],4)}, v6, {W_}, s48 offen sc1')
    a2.vm('KV', f'buffer_load_dwordx4 {R(VB[0]+4,4)}, v6, {W_}, s48 offen offset:512 sc1')
    a2('s_mov_b64 exec, -1')
    for i in range(1,4):
        a2.vm('Q', f'buffer_load_dwordx4 {R(QF+4*i,4)}, v5, {W_}, s46 offen offset:{1024*i} sc1')
    a2('s_add_u32 s46, s46, 4096')
    for i in range(4,8):
        a2.vm('Q', f'buffer_load_dwordx4 {R(QF+4*i,4)}, v5, {W_}, s46 offen offset:{1024*(i-4)} sc1')
    loadkv(1,1); loadkv(2,2)
    bounds_decision(a2, 18, 0)
    a2('s_add_u32 s47, s47, 3072')
    a2('s_add_u32 s48, s48, 3072')
    def qk(kb, i, dst): return f'v_mfma_f32_32x32x16_bf16 {R(dst,16)}, {R(KB[kb],4)}, {R(QF+4*i,4)}, 0'
    def pv(kb, i, half, src): return f'v_smfmac_f32_32x32x32_bf16 {R(OA[i],16)}, {R(VB[kb]+4*half,4)}, {R(src+8*half,8)}, v{IDX}'
    a2('s_mov_b32 s42, 0')
    a2('s_mov_b32 s43, 0')
    a2('s_waitcnt vmcnt(15)')
    stamp(a2,9)
    a2(qk(0,0,SA))
    a2('s_nop 7'); a2('s_nop 3')
    a2.label('K_ATT_LOOP')
    G2N=4; G2P=3
    for o_ in OPT:
        if o_.startswith('G2N='): G2N=int(o_[4:])
        if o_.startswith('G2P='): G2P=int(o_[4:])
    ool=Asm()
    def red_write(i, inline=False):
        lab=newlab('RW'); back=newlab('RWB')
        e=a2 if inline else ool
        a2(f's_bitcmp1_b32 s43, {i}')
        if inline: a2(f's_cbranch_scc0 {back}')
        else:
            a2(f's_cbranch_scc1 {lab}'); ool.label(lab)
        p_=i>>1; off=(i&1)*3*2304
        e(f'v_add_u32 v42, s{56+p_}, v5')
        e(f'v_add_u32 v43, s{56+p_}, v9')
        e(f'ds_write_b128 v42, {R(OA[i],4)} offset:{off}')
        e(f'ds_write_b128 v42, {R(OA[i]+4,4)} offset:{off+1024}')
        e(f'ds_write_b32 v43, v{OA[i]+8} offset:{off+2048}')
        if not inline: ool(f's_branch {back}')
        a2.label(back)
    for n in range(32):
        kb,i=divmod(n,8)
        sa=SA if n%2==0 else SB
        sb=SB if n%2==0 else SA
        ex=[f'v_exp_f32 v{sa+r}, v{sa+r}' for r in range(16)]
        if 'noexp' in OPT: ex=[f'v_mov_b32 v{sa+r}, v{sa+r}' for r in range(16)]
        for e in ex[0:2]: a2(e)
        pkb,pi=divmod((n-1)%32,8)
        if 'nopv' not in OPT: a2(pv(pkb,pi,1,sb))
        if i==0 and 'noload' not in OPT: loadkv((kb+3)%4, kb)
        if kb==1 and i==1:
            lab=newlab('CHK'); back=newlab('CHKB')
            a2('s_cmp_eq_u32 s42, 0')
            a2(f's_cbranch_scc1 {lab}')
            ool.label(lab)
            ool(f'v_mov_b32 v42, {L_CNT+36}')
            gbar_wait(ool, 42, 43, 1)
            ool('s_cmp_eq_u32 s3, 2')
            ool('s_cbranch_scc1 K_SLOW')
            ool(f'v_mov_b32 v42, {L_CNT+12}')
            gbar_wait(ool, 42, 43, 20)
            ool(f's_branch {back}')
            a2.label(back)
        for e in ex[2:5]: a2(e)
        nkb,ni=divmod((n+1)%32,8)
        if i==7: a2('s_waitcnt vmcnt(6)')
        if kb==0 and i<7: a2(f's_waitcnt vmcnt({15-i})')
        if 'noqk' not in OPT: a2(qk(nkb,ni,sb))
        for e in ex[5:11]: a2(e)
        if 'nopv' not in OPT: a2(pv(kb,i,0,sa))
        if kb==3 and i>=2: red_write(i-2)
        if n==G2N:
            lab=newlab('G2E'); back=newlab('G2EB')
            a2(f's_cmp_eq_u32 s42, {G2P}')
            a2(f's_cbranch_scc1 {lab}')
            ool.label(lab)
            ool(f'v_mov_b32 v46, {L_CNT+G2CNT}')
            ool('v_mov_b32 v47, 1')
            gbar_arrive(ool, 46, 47)
            ool('s_waitcnt lgkmcnt(0)')
            ool('s_wakeup')
            ool(f's_branch {back}')
            a2.label(back)
        for e in ex[11:16]: a2(e)
    a2('s_add_u32 s47, s47, 4096')
    a2('s_add_u32 s48, s48, 4096')
    a2('s_add_u32 s42, s42, 1')
    a2('s_cmp_eq_u32 s42, 3')
    a2('s_cselect_b32 s43, s45, 0')
    a2('s_cmp_lt_u32 s42, 4')
    a2('s_cbranch_scc1 K_ATT_LOOP')
    a2('s_nop 1')
    a2(pv(3,7,1,SB))
    if G2N>31:
        a2(f'v_mov_b32 v46, {L_CNT+G2CNT}')
        a2('v_mov_b32 v47, 1')
        gbar_arrive(a2, 46, 47)
        a2('s_mov_b32 s43, s45')
        red_write(6, True)
        a2('s_waitcnt lgkmcnt(0)')
        a2('s_wakeup')
        a2('s_nop 3')
    else:
        a2('s_mov_b32 s43, s45')
        red_write(6, True)
        a2('s_nop 7'); a2('s_nop 1')
    red_write(7, True)
    a2('s_branch K_ATT_RED')
    a2.label('K_ATT_DONE')
    a2('s_mov_b32 s43, s45')
    for i in range(8): red_write(i, True)
    a2.label('K_ATT_RED')
    a2('s_setprio 3')
    stamp(a2,10)
    a2.vmq=[]
    a2('s_and_b32 s52, s2, 7')
    a2('s_lshr_b32 s53, s2, 3')
    a2('s_and_b32 s54, s53, 3')
    a2('s_lshl_b32 s52, s52, 2')
    a2('s_add_u32 s58, s52, s54')
    a2('s_lshr_b32 s59, s53, 2')
    a2(f'v_mov_b32 v78, {L_CNT+28}')
    a2('v_mov_b32 v79, 1')
    a2(f's_mul_i32 s53, s36, {6*2304}')
    a2('v_add_u32 v2, s53, v5')
    a2('v_add_u32 v7, s53, v9')
    a2('s_waitcnt lgkmcnt(0)')
    gbar_arrive(a2, 78, 79)
    a2('s_lshl_b32 s53, s39, 3')
    a2('s_lshl_b32 s52, s36, 1')
    a2('s_add_u32 s53, s53, s52')
    a2('s_lshl_b32 s53, s53, 5')
    a2('s_add_u32 s53, s53, s38')
    a2('s_lshl_b32 s53, s53, 10')
    a2(f's_add_u32 s53, s53, {WS_O}')
    gbar_wait(a2, 78, 77, 4)
    stamp(a2,12)
    RB=[[10,22,32],[44,56,68]]
    for t_ in range(2):
        for k in range(3):
            b=RB[t_][k]; off=(t_*3+k)*2304
            a2(f'ds_read_b128 {R(b,4)}, v2 offset:{off}')
            a2(f'ds_read_b128 {R(b+4,4)}, v2 offset:{off+1024}')
            a2(f'ds_read_b32 v{b+8}, v7 offset:{off+2048}')
    for t_ in range(2):
        b=RB[t_][0]
        if t_==0: a2('s_waitcnt lgkmcnt(9)')
        if t_==1: a2('s_waitcnt lgkmcnt(0)'); gbar_arrive(a2, 78, 79)
        e_=newlab('RFE')
        for p_ in range(4):
            lab=newlab('RFQ')
            if p_<3:
                a2(f's_cmp_lg_u32 s36, {p_}'); a2(f's_cbranch_scc1 {lab}')
            for r in range(9): a2(f'v_add_f32 v{b+r}, v{OA[2*p_+t_]+r}, v{b+r}')
            if p_<3:
                a2(f's_branch {e_}'); a2.label(lab)
        a2.label(e_)
        for k in (1,2):
            for r in range(9): a2(f'v_add_f32 v{b+r}, v{b+r}, v{RB[t_][k]+r}')
        a2(f'v_rcp_f32 v{b+9}, v{b+8}')
        a2('s_nop 0')
        for r in range(8): a2(f'v_mul_f32 v{b+r}, v{b+r}, v{b+9}')
        c=RB[t_][1]
        for i in range(4): a2(f'v_cvt_pk_bf16_f32 v{c+i}, v{b+2*i}, v{b+2*i+1}')
        a2(f'buffer_store_dwordx4 {R(c,4)}, v5, {W_}, s53 offen sc1')
        if t_==0: a2(f's_add_u32 s53, s53, {32*1024}')
    ACC3=192
    for r in range(16): a2(f'v_mov_b32 v{ACC3+r}, 0')
    a2('s_lshl_b32 s52, s39, 5')
    a2('s_add_u32 s52, s52, s38')
    a2('s_lshl_b32 s52, s52, 7')
    a2(f's_add_u32 s52, s52, {F_3}')
    a2('s_waitcnt vmcnt(0)')
    signal(a2, L_CNT+8, 3, 's52', 46)
    if 'abs' in OPT: stamp(a2,11)
    a2('s_setprio 0')
    tail_prep(a2)
    a2('s_cmp_eq_u32 s36, 0')
    a2('s_cbranch_scc1 K_TAIL')
    a2(f'v_mov_b32 v12, {L_CNT+28}')
    gbar_wait(a2, 12, 13, 8)
    sWO=24
    srd(a2,sWO,pWO,512*512*2)
    wdma_voff(a2)
    a2('s_sub_u32 s54, s36, 1')
    a2('s_lshl_b32 s52, s54, 14')
    a2('s_lshl_b32 s53, s59, 7')
    a2('s_add_u32 s52, s52, s53')
    a2('s_lshl_b32 s53, s54, 11')
    for i in range(11):
        a2(f's_add_u32 m0, s53, {L_WO+3*2048*i}')
        a2('s_nop 0')
        nto=' nt' if 'ntwo' in OPT else ''
        a2(f'buffer_load_dwordx4 v10, {SR(sWO)}, s52 offen{nto} lds')
        a2(f'buffer_load_dwordx4 v11, {SR(sWO)}, s52 offen offset:1024{nto} lds')
        a2(f's_add_u32 s52, s52, {3*16384}')
    a2.label('K_TAIL')
    a2('s_setprio 0')
    a2('v_lshlrev_b32 v8, 7, v1')
    stamp(a2,13)
    a2('s_cmp_eq_u32 s36, 0')
    a2('s_cbranch_scc0 K_S3W')
    poll(a2, 32, 'v8', 's42', 48)
    a2.label('K_S3W')
    a2('s_waitcnt vmcnt(0)')
    a2.vmq=[]
    a2('s_barrier')
    stamp(a2,14)
    for s_ in range(4):
        a2(f's_add_u32 m0, s41, {4096*s_}')
        a2(f's_add_u32 s55, s40, {4096*s_}')
        a2.vm(f'O{s_}', f'buffer_load_dwordx4 v5, {W_}, s55 offen sc1 lds')
        a2.vm(f'O{s_}', f'buffer_load_dwordx4 v5, {W_}, s55 offen offset:1024 sc1 lds')
    a2('s_cmp_eq_u32 s2, 0')
    a2('s_cbranch_scc0 K_NOE')
    a2('s_cmp_eq_u32 s36, 0')
    a2('s_cbranch_scc0 K_NOE')
    a2('v_mov_b32 v60, s64'); a2('v_mov_b32 v61, s65'); a2('v_mov_b32 v62, 0')
    a2('s_mov_b64 exec, 1')
    a2(f'buffer_store_dwordx2 v[60:61], v62, {W_}, 0 offen')
    a2('s_mov_b64 exec, -1')
    a2('s_waitcnt vmcnt(0)')
    a2.label('K_NOE')
    FX=[64,68,72,76]; FW=[80,84,88,92]
    for s_ in range(4):
        a2.wait_vm(f'O{s_}')
        a2('s_barrier')
        for k in range(4):
            ks=4*s_+k
            a2(f'ds_read_b128 {R(FX[k],4)}, v22 offset:{ks*1024}')
            a2(f'ds_read_b64_tr_b16 {R(FW[k],2)}, v21 offset:{ks*2048}')
            a2(f'ds_read_b64_tr_b16 {R(FW[k]+2,2)}, v21 offset:{ks*2048+1024}')
        for k in range(4):
            a2(f's_waitcnt lgkmcnt({3*(3-k)})')
            a2(f'v_mfma_f32_32x32x16_bf16 {R(ACC3,16)}, {R(FW[k],4)}, {R(FX[k],4)}, {R(ACC3,16)}')
    stamp(a2,15)
    a2('s_cmp_eq_u32 s39, 0')
    a2('s_cbranch_scc1 K_KH0')
    a2('s_nop 7'); a2('s_nop 3')
    a2(f'ds_write_b128 v23, {R(ACC3,4)}')
    a2(f'ds_write_b128 v23, {R(ACC3+4,4)} offset:1024')
    for r in range(8): a2(f'v_add_f32 v{40+r}, v{40+r}, v{ACC3+8+r}')
    a2('s_branch K_EX')
    a2.label('K_KH0')
    a2('s_nop 7'); a2('s_nop 3')
    a2(f'ds_write_b128 v23, {R(ACC3+8,4)}')
    a2(f'ds_write_b128 v23, {R(ACC3+12,4)} offset:1024')
    for r in range(8): a2(f'v_add_f32 v{40+r}, v{40+r}, v{ACC3+r}')
    a2.label('K_EX')
    a2('s_waitcnt lgkmcnt(0)')
    a2('s_barrier')
    a2('ds_read_b128 v[64:67], v6')
    a2('ds_read_b128 v[68:71], v6 offset:1024')
    a2('s_waitcnt lgkmcnt(0)')
    for r in range(8): a2(f'v_add_f32 v{40+r}, v{40+r}, v{64+r}')
    for i in range(4): a2(f'v_cvt_pk_bf16_f32 v{64+i}, v{40+2*i}, v{41+2*i}')
    a2(f'buffer_store_dwordx4 v[64:67], v20, {SR(32)}, 0 offen')
    if STAMP and ('rt' in OPT or 'span' in OPT) and 'dbg' not in OPT:
        a2('s_memrealtime s[92:93]'); a2('s_memtime s[100:101]')
    if 'abs' in OPT:
        a2('s_cmp_lt_u32 s36, 4'); a2('s_cbranch_scc0 K_NOABS'); stamp(a2,6); a2.label('K_NOABS')
    stamp_flush(a2,16)
    stamp_dbg(a2)
    a2('s_endpgm')
    a2.label('K_SLOW')
    a2('s_waitcnt vmcnt(0)')
    a2('s_nop 7'); a2('s_nop 7')
    for o in OA:
        for r in range(16): a2(f'v_mov_b32 v{o+r}, 0')
    MX=116
    a2('s_mov_b32 s61, s40')
    for i in range(8): a2(f'v_mov_b32 v{MX+i}, 0xff800000')
    a2('s_mov_b32 s62, 0')
    a2.label('K_S1')
    a2(f'buffer_load_dwordx4 {R(KB[0],4)}, v5, {W_}, s61 offen sc1')
    a2('s_waitcnt vmcnt(0)')
    for i in range(8):
        a2(f'v_mfma_f32_32x32x16_bf16 {R(SA,16)}, {R(KB[0],4)}, {R(QF+4*i,4)}, 0')
        a2('s_nop 7'); a2('s_nop 7')
        for r in range(0,16,2): a2(f'v_max3_f32 v{MX+i}, v{MX+i}, v{SA+r}, v{SA+r+1}')
    a2('s_add_u32 s61, s61, 1024')
    a2('s_add_u32 s62, s62, 1')
    a2('s_cmp_lt_u32 s62, 16')
    a2('s_cbranch_scc1 K_S1')
    for i in range(8): a2(f'v_mov_b32 v{SA+i}, v{MX+i}')
    a2('s_nop 1')
    for i in range(8): a2(f'v_permlane32_swap_b32 v{MX+i}, v{SA+i}')
    a2('s_nop 1')
    for i in range(8): a2(f'v_max_f32 v{MX+i}, v{MX+i}, v{SA+i}')
    a2(f'v_mov_b32 v12, {L_CNT+12}')
    gbar_wait(a2, 12, 13, 20)
    a2('s_lshl_b32 s53, s36, 11')
    a2(f's_add_u32 s53, s53, {L_MX}')
    a2('v_add_u32 v42, s53, v9')
    for i in range(8): a2(f'ds_write_b32 v42, v{MX+i} offset:{256*i}')
    a2(f'v_mov_b32 v12, {L_CNT+16}')
    a2('v_mov_b32 v13, 1')
    a2('s_waitcnt lgkmcnt(0)')
    gbar_arrive(a2, 12, 13)
    gbar_wait(a2, 12, 13, 4)
    a2(f'v_add_u32 v42, {L_MX}, v9')
    for q in range(4):
        for i in range(8): a2(f'ds_read_b32 v{SA+i}, v42 offset:{2048*q+256*i}')
        a2('s_waitcnt lgkmcnt(0)')
        for i in range(8): a2(f'v_max_f32 v{MX+i}, v{MX+i}, v{SA+i}')
    a2('s_mov_b32 s61, s40'); a2('s_mov_b32 s60, s41')
    a2('s_mov_b32 s62, 0')
    a2.label('K_S2')
    a2(f'buffer_load_dwordx4 {R(KB[0],4)}, v5, {W_}, s61 offen sc1')
    a2('s_mov_b64 exec, s[50:51]')
    a2(f'buffer_load_dwordx4 {R(VB[0],4)}, v6, {W_}, s60 offen sc1')
    a2(f'buffer_load_dwordx4 {R(VB[0]+4,4)}, v6, {W_}, s60 offen offset:512 sc1')
    a2('s_mov_b64 exec, -1')
    a2('s_waitcnt vmcnt(0)')
    for i in range(8):
        a2(f'v_mfma_f32_32x32x16_bf16 {R(SA,16)}, {R(KB[0],4)}, {R(QF+4*i,4)}, 0')
        a2('s_nop 7'); a2('s_nop 7')
        for r in range(16): a2(f'v_sub_f32 v{SA+r}, v{SA+r}, v{MX+i}')
        for r in range(16): a2(f'v_exp_f32 v{SA+r}, v{SA+r}')
        a2('s_nop 1')
        a2(f'v_smfmac_f32_32x32x32_bf16 {R(OA[i],16)}, {R(VB[0],4)}, {R(SA,8)}, v{IDX}')
        a2(f'v_smfmac_f32_32x32x32_bf16 {R(OA[i],16)}, {R(VB[0]+4,4)}, {R(SA+8,8)}, v{IDX}')
        a2('s_nop 7')
    a2('s_add_u32 s61, s61, 1024')
    a2('s_add_u32 s60, s60, 1024')
    a2('s_add_u32 s62, s62, 1')
    a2('s_cmp_lt_u32 s62, 16')
    a2('s_cbranch_scc1 K_S2')
    a2(f'v_mov_b32 v42, {L_CNT+G2CNT}')
    a2('v_mov_b32 v43, 1')
    gbar_arrive(a2, 42, 43)
    a2('s_waitcnt lgkmcnt(0)')
    a2('s_wakeup')
    a2('s_nop 7')
    a2('s_branch K_ATT_DONE')
    return 'K_START:\n'+a.text()+'\n'+h.text()+'\n'+g.text()+'\n'+a2.text()+'\n'+ool.text()+'\nK_END:\n  s_endpgm\n'

HEADER=open('cdna_kernels/'+NAME+'.s.ref').read().split('; Override launch geometry')[0]
def assemble(body):
    n=NAME+'_kernel'
    return HEADER+f'''; @launch grid=(256,1,1) block=(512,1,1) lds={LDS_TOTAL}
;
; One persistent launch, one workgroup (8 waves) per CU.  Generated by a script (dev/gen2.py); structure:
;   A  waves 0-3: QKV GEMM tile (128 tokens x 2 heads), LayerNorm folded in (raw x in the MFMAs; rstd, mean and the weight
;      column sums are applied in the epilogue).  waves 4-7: LDS-DMA staging, row statistics, keep x fragments.
;   B  waves 4-7: MLP GEMM1 on LN(LN(x)) + tanh-GELU.  waves 0-3 publish Q/K/V (write-through) and signal.
;   C  waves 0-3: attention for (head, 256 queries).  S^T = K Q^T (MFMA), P = exp2(S^T - m), O^T += V^T P^T (sparse MFMA reading the
;      fp32 P registers' high halves; a row of ones gives the row sums).  Softmax guard: producers publish max|k|^2, max|q|^2, max|v|;
;      when the Cauchy-Schwarz bound keeps every |logit| <= 48 (log2 units) m = 0 is safe and exact (shift invariance); otherwise
;      the whole workgroup takes the K_SLOW path, which subtracts the true row maximum.
;   D  waves 4-7: MLP GEMM2; then all waves: out-projection + residual + bias.
; Hand-offs between workgroups: write-through stores, vmcnt(0), then a tag word; tag = (epoch word found in d_ws) + constant, the
; epoch word is advanced by workgroup 0 at the end of the launch.  All waits on other workgroups are bounded.
.amdgcn_target "amdgcn-amd-amdhsa--gfx950"
.text
.globl {n}
.p2align 8
.type {n},@function
{n}:
{body}
.section .rodata,"a"
.p2align 6
.amdhsa_kernel {n}
  .amdhsa_next_free_vgpr 256
  .amdhsa_next_free_sgpr 102
  .amdhsa_accum_offset 256
  .amdhsa_group_segment_fixed_size 0
  .amdhsa_kernarg_size 88
  .amdhsa_user_sgpr_count 2
  .amdhsa_user_sgpr_kernarg_segment_ptr 1
  .amdhsa_system_sgpr_workgroup_id_x 1
  .amdhsa_float_denorm_mode_32 3
.end_amdhsa_kernel
'''
if __name__=='__main__':
    outp=sys.argv[1]
    if 'stamp' in sys.argv: STAMP=True
    OPT.update(sys.argv[2:])
    for o_ in list(OPT):
        if o_.startswith('PD='): POLLD=int(o_[3:])
    open(outp,'w').write(assemble(gen()))
    print('wrote',outp)
```
